```python
import torch

def _softmax(x, axis=-1):
    return torch.softmax(x, dim=axis)
def _gelu(x):
    return torch.nn.functional.gelu(x, approximate="tanh")
def _silu(x):
    return torch.nn.functional.silu(x)
def _sigmoid(x):
    return torch.sigmoid(x)
def _layernorm(x, axis=-1, eps=1e-5):
    m = x.mean(dim=axis, keepdim=True)
    v = x.var(dim=axis, keepdim=True, unbiased=False)
    return (x - m) / torch.sqrt(v + eps)
def _scatter_add(tgt, idx, src, axis=0):
    return tgt.clone().index_add_(axis, idx, src)
def _segment_sum(src, seg, n):
    out = torch.zeros((n,) + src.shape[1:], dtype=src.dtype)
    return out.index_add_(0, seg, src)
def _pad(x, pw):
    flat = tuple(v for pair in reversed(pw) for v in pair)
    return torch.nn.functional.pad(x, flat)

kernel_name = 'standalone__mha_softmax__near_ridge'

def setup_inputs():

    _w = (lambda a: (lambda t: t.to(torch.bfloat16) if t.is_floating_point() else t)(torch.as_tensor(a)))
    B, H, Sq, Sk, D = 16, 32, 512, 512, 128
    return {
        "q": _w((lambda *s: torch.randn(*s, dtype=torch.bfloat16) * 0.8)(B, H, Sq, D)),
        "k": _w((lambda *s: torch.randn(*s, dtype=torch.bfloat16) * 0.8)(B, H, Sk, D)),
        "v": _w((lambda *s: torch.randn(*s, dtype=torch.bfloat16) * 0.05)(B, H, Sk, D)),
    }

def reference(q, k, v):
    scale = q.shape[-1] ** -0.5
    scores = torch.einsum("bhqd,bhkd->bhqk", q, k) * scale
    p = _softmax(scores, axis=-1)
    return torch.einsum("bhqk,bhkd->bhqd", p, v)
```

```python
import sys

class Ins:
    __slots__ = ("text", "kind", "rd", "wr", "tag", "needs", "n", "states", "used", "cmt", "srcc", "frees")
    def __init__(self, text, kind, rd=(), wr=(), tag=None, needs=None, states=1, srcc=(), cmt=""):
        self.text = text; self.kind = kind; self.rd = frozenset(rd); self.wr = frozenset(wr)
        self.tag = tag; self.needs = needs; self.n = None; self.states = states; self.cmt = cmt
        self.srcc = frozenset(srcc)

def R(p, a, n=1):
    return [p + str(a + i) for i in range(n)]
def rng(p, a, n):
    return "%s%d" % (p, a) if n == 1 else "%s[%d:%d]" % (p, a, a + n - 1)

def mfma(dp, d, ap, a, bp, b, czero=False):
    c = "0" if czero else rng(dp, d, 4)
    rd = R(ap, a, 4) + R(bp, b, 4) + ([] if czero else R(dp, d, 4))
    return Ins("v_mfma_f32_16x16x32_bf16 %s, %s, %s, %s" % (rng(dp, d, 4), rng(ap, a, 4), rng(bp, b, 4), c), "M", rd, R(dp, d, 4),
               srcc=[] if czero else R(dp, d, 4))
def valu(text, rd, wr, kind="V"):
    return Ins(text, kind, rd, wr)
def salu(text, rd=(), wr=()):
    return Ins(text, "S", rd, wr)
def nop(n):
    return Ins("s_nop %d" % (n - 1), "N", states=n)
def lsite():
    return Ins("", "LSITE")
def vsite(needs):
    return Ins("", "VSITE", needs=needs)
def bar():
    return Ins("s_barrier", "BAR")
def label(name):
    return Ins(name + ":", "LBL", states=0)
def raw(text, kind="S"):
    return Ins(text, kind)

VALU_KINDS = ("V", "T", "K")

def resolve(tag, ctx):
    if tag is None: return None
    if tag[0] in ("K", "V"): return (tag[0], ctx["T"] + tag[1])
    if tag[0] in ("Q", "O"): return (tag[0], tag[1], ctx["u"] + tag[2])
    return tag

def insert_waits(segs, trace):
    for it in range(8):
        changed = False
        ds_issued = 0; ds_known = 0; ds_wr = {}
        vm_issued = 0; vm_known = 0; vm_tag = {}; vm_wr = {}
        last_site = None; last_site_issued = 0
        for seg, ctx in trace:
            for ins in segs[seg]:
                k = ins.kind
                if k == "LSITE":
                    last_site = ins; last_site_issued = ds_issued
                    if ins.needs == "all":
                        if ds_known < ds_issued and ins.n != 0: ins.n = 0; changed = True
                    if ins.n is not None: ds_known = max(ds_known, ds_issued - ins.n)
                    continue
                if k == "VSITE":
                    need = -1
                    for t in ins.needs:
                        t = resolve(t, ctx)
                        if t in vm_tag: need = max(need, vm_tag[t])
                        elif not ctx.get("allow_missing"): raise Exception("vsite needs unknown tag %s in %s" % (t, seg))
                    if need >= vm_known:
                        n = min(63, vm_issued - (need + 1))
                        if ins.n is None or n < ins.n: ins.n = n; changed = True
                    if ins.n is not None: vm_known = max(vm_known, vm_issued - ins.n)
                    continue
                if k == "WAITALL":
                    ds_known = ds_issued; vm_known = vm_issued; continue
                for r in (ins.rd | (ins.wr if k != "D" else frozenset())):
                    if r in ds_wr and ds_wr[r] >= ds_known:
                        need = ds_wr[r]
                        if last_site is None or need >= last_site_issued:
                            raise Exception("no lgkm site for %s (reg %s) in %s" % (ins.text, r, seg))
                        n = min(15, last_site_issued - (need + 1))
                        if last_site.n is None or n < last_site.n: last_site.n = n; changed = True
                        ds_known = max(ds_known, last_site_issued - last_site.n)
                if k in ("D", "W"):
                    for r in ins.wr: ds_wr[r] = ds_issued
                    ds_issued += 1
                if k == "X":
                    if ins.tag is not None: vm_tag[resolve(ins.tag, ctx)] = vm_issued
                    vm_issued += 1
        if not changed: break
    else:
        raise Exception("wait insertion did not converge")

def finalize(lst):
    out = []
    i = 0
    while i < len(lst):
        ins = lst[i]
        if ins.kind in ("LSITE", "VSITE"):
            l = v = None
            while i < len(lst) and lst[i].kind in ("LSITE", "VSITE"):
                if lst[i].n is not None:
                    if lst[i].kind == "LSITE": l = lst[i].n if l is None else min(l, lst[i].n)
                    else: v = lst[i].n if v is None else min(v, lst[i].n)
                i += 1
            if l is not None or v is not None:
                t = "s_waitcnt" + ("" if v is None else " vmcnt(%d)" % v) + ("" if l is None else " lgkmcnt(%d)" % l)
                w = Ins(t, "WAIT"); w.n = (v, l); out.append(w)
            continue
        out.append(ins); i += 1
    return out

def verify(fsegs, trace, nreads):
    errs = []
    hist = []
    ds_issued = ds_known = 0; ds_wr = {}; rd_idx = {}
    vm_issued = vm_known = 0; vm_idx = {}
    visible = set(); freed = set()
    def dist_check(ins, seg):
        d = 0
        for p in reversed(hist):
            if d >= 12: break
            def need(n, why):
                if d < n: errs.append("%s: hazard %s: '%s' -> '%s' dist %d < %d" % (seg, why, p.text, ins.text, d, n))
            pk = p.kind; k = ins.kind
            if pk in VALU_KINDS:
                vw = {r for r in p.wr if r[0] in "va" and r != "vcc"}
                sw = p.wr - vw
                if k == "M" and vw & ins.rd: need(2, "valu->mfma")
                if pk == "T" and k in ("V", "K") and vw & ins.rd: need(1, "trans->valu")
                if pk == "T" and k in ("W", "X") and vw & ins.rd: need(1, "trans->mem")
                if "permlane" in ins.text and vw & (ins.rd | ins.wr): need(2, "valu->permlane")
                if "readfirstlane" in ins.text and vw & ins.rd: need(1, "valu->readlane")
                if sw & ins.rd:
                    if k == "X": need(5, "valu sgpr->vmem")
                    elif k in VALU_KINDS: need(2, "valu sgpr->valu")
                    else: need(2, "valu sgpr->salu")
            if pk == "M":
                if k == "M":
                    ab = ins.rd - ins.srcc
                    if p.wr & ab: need(8, "mfma->mfma ab")
                    if p.wr & ins.srcc and p.wr != ins.srcc: need(6, "mfma->mfma c overlap")
                elif k in VALU_KINDS:
                    if p.wr & (ins.rd | ins.wr): need(8, "mfma->valu")
                    if p.srcc & ins.wr: need(3, "mfma srcc war")
                elif k in ("W", "X", "D"):
                    if p.wr & (ins.rd | ins.wr): need(8, "mfma->mem")
            if pk == "S" and "m0" in p.wr and k == "X" and "m0" in ins.rd: need(1, "m0->dma")
            if pk == "X" and "store" in p.text and k in VALU_KINDS + ("M", "D") and (p.rd & ins.wr): need(2, "store data war")
            d += p.states
    for seg, ctx in trace:
        for ins in fsegs[seg]:
            k = ins.kind
            if k == "LBL": continue
            dist_check(ins, seg)
            if k == "WAIT":
                v, l = ins.n
                if v is not None: vm_known = max(vm_known, vm_issued - v)
                if l is not None: ds_known = max(ds_known, ds_issued - l)
            elif k == "WAITALL":
                vm_known = vm_issued; ds_known = ds_issued
            elif k == "BAR":
                for t, idx in vm_idx.items():
                    if max(idx) < vm_known: visible.add(t)
                for t, idx in rd_idx.items():
                    if len(idx) == nreads[t[0]] and max(idx) < ds_known: freed.add(t)
            for r in (ins.rd | (ins.wr if k != "D" else frozenset())):
                if r in ds_wr and ds_wr[r] >= ds_known: errs.append("%s: DS result %s not waited for '%s'" % (seg, r, ins.text))
            if k in ("D", "W"):
                t = resolve(ins.tag, ctx)
                if k == "D" and t is not None:
                    if t[0] in "KV":
                        if t not in visible: errs.append("%s: read of %s not visible: %s" % (seg, t, ins.text))
                    elif t[0] == "Q":
                        if t not in vm_idx or max(vm_idx[t]) >= vm_known: errs.append("%s: read of %s before landed" % (seg, t))
                    rd_idx.setdefault(t, []).append(ds_issued)
                for r in ins.wr: ds_wr[r] = ds_issued
                ds_issued += 1
                if ds_issued - ds_known > 15 and False: errs.append("%s: >15 DS outstanding" % seg)
            if k == "X":
                t = resolve(ins.tag, ctx)
                if t is not None and "lds" in ins.text:
                    if t[0] in "KV":
                        prev = (t[0], t[1] - 8)
                        if t[1] >= 8 and prev not in freed: errs.append("%s: DMA %s before %s freed" % (seg, t, prev))
                        if t[0] == "V" and 4 <= t[1] < 8 and ("Q", 1, 0) not in freed: errs.append("%s: DMA %s before first Q h1 freed" % (seg, t))
                    else:
                        for tt, idx in rd_idx.items():
                            if tt[0] in "QO" and max(idx) >= ds_known: errs.append("%s: staging DMA %s before reads of %s done" % (seg, t, tt))
                    vm_idx.setdefault(t, []).append(vm_issued)
                vm_issued += 1
                if vm_issued - vm_known > 63: errs.append("%s: >63 VMEM outstanding at %s" % (seg, ins.text))
            hist.append(ins)
            if len(hist) > 16: hist.pop(0)
    return errs

def issue_estimate(lst):
    t = 0; mfma_free = 0; last = None; vec_free = 0
    for ins in lst:
        k = ins.kind
        if k == "LBL": continue
        if k == "M":
            t = max(t, mfma_free, vec_free); mfma_free = t + 16; vec_free = t + 8; t += 4
        elif k in ("V", "K"):
            t = max(t, vec_free);
            if k == "K": t = max(t, mfma_free + 4)
            t += 8 if "permlane" in ins.text else 4
        elif k == "T":
            t = max(t, vec_free) + 8
        elif k in ("D", "W"):
            t = max(t, vec_free) + 4 + (8 if last in VALU_KINDS else 0)
        elif k == "X":
            t = max(t, vec_free) + 8 + (24 if last in VALU_KINDS else 0) + (8 if last in ("D", "W") else 0)
        elif k == "N":
            t += 4 * ins.states
        else:
            t += 4
        last = k
    return t
```

```python
import sys, os, struct, math
from core import *

class Cfg:
    barper = 2
    finchk = 1
    lat = 7
    kv_aux = ""
    q_aux = ""
    o_aux = ""
    e0 = 10; c0 = 4; f0 = 5
    force_slow = 0
    lag = 1.5
    rdy = 5
cfg = Cfg()
for a in sys.argv[2:]:
    k, v = a.split("=")
    setattr(cfg, k, type(getattr(cfg, k))(v))

NAME = "standalone__mha_softmax__near_ridge"
KA = 16; VA = 20; DA = 28; DB = 29; QA = 30; OW = 34; OR_ = 38; OS = 40
ET = 42; ER = 44; EU = 48
MX = 50; NM = 54; TM = 58
PB = 80; SB = 96; OB = 128
def S_(h, q, kt): return SB + 16 * h + 8 * q + 4 * kt
def P_(h, q): return PB + 8 * h + 4 * q
def O_(qt, b): return OB + 32 * qt + 4 * b
AQ = 0; AQN = 64; AK = 96; AV = 128; AO = 160; AL = 192; AONE = 208; AZERO = 212; ACHK = 216
sQ_, sK_, sV_, sO_ = 4, 8, 12, 16
sW = 20; sKo = 21; sVo = 22; sMK = 23; sMV = 24; sQo = 25; sOo = 26; sC = 27; sBAD = 28; sUB = 29; sACC = 30; sCMP = 32
sLO = 34; sRG = 35; sMS = 44; sCNT = 47; sONR = 48; sQa = 50; sQb = 51; sOa = 52; sOb = 53; sT = 54
LDS_V = 65536; LDS_S = 131072
SCALE = struct.unpack("<I", struct.pack("<f", math.log2(math.e) / math.sqrt(128.0)))[0]
LO_BITS = (127 - (40 if cfg.finchk else 24)) << 23
HI_BITS = (127 + (40 if cfg.finchk else 24)) << 23

def srd(b): return "s[%d:%d]" % (b, b + 3)
def srdr(b): return R("s", b, 4)

def v2(op, d, a, b, kind="V"):
    rd = [x for x in (a, b) if isinstance(x, str) and x[0] in "vsa" and x[1:].isdigit()]
    return valu("%s %s, %s, %s" % (op, d, a, b), rd, [d], kind)
def v1(op, d, a, kind="V"):
    rd = [a] if isinstance(a, str) and a[0] in "vsa" and a[1:].isdigit() else []
    return valu("%s %s, %s" % (op, d, a), rd, [d], kind)
def v3(op, d, a, b, c):
    rd = [x for x in (a, b, c) if isinstance(x, str) and x[0] in "vsa" and x[1:].isdigit()]
    return valu("%s %s, %s, %s, %s" % (op, d, a, b, c), rd, [d])
def s2(op, d, a, b):
    rd = [x for x in (a, b) if isinstance(x, str) and (x[0] == "s" or x == "m0")]
    return salu("%s %s, %s, %s" % (op, d, a, b), rd, [d, "scc"])
def smov(d, a):
    return salu("s_mov_b32 %s, %s" % (d, a), [a] if isinstance(a, str) and a[0] == "s" else [], [d])
def mul_(r): return v2("v_mul_f32", "v%d" % r, "s%d" % sC, "v%d" % r)
def exp_(r): return v1("v_exp_f32", "v%d" % r, "v%d" % r, "T")
def cvt_(d, a, b): return v2("v_cvt_pk_bf16_f32", "v%d" % d, "v%d" % a, "v%d" % b)
def dsr128(dp, d, addr, off, tag):
    assert 0 <= off < 65536
    return Ins("ds_read_b128 %s, v%d offset:%d" % (rng(dp, d, 4), addr, off), "D", ["v%d" % addr], R(dp, d, 4), tag=tag)
def dstr(d, addr, off, tag):
    assert 0 <= off < 65536
    return Ins("ds_read_b64_tr_b16 %s, v%d offset:%d" % (rng("a", d, 2), addr, off), "D", ["v%d" % addr], R("a", d, 2), tag=tag)
def dsw64(addr, src, off):
    return Ins("ds_write_b64 v%d, %s offset:%d" % (addr, rng("v", src, 2), off), "W", ["v%d" % addr] + R("v", src, 2), [])
def dma(voff, sr, soff, off, tag, m0, aux=""):
    i = Ins("buffer_load_dwordx4 v%d, %s, s%d offen offset:%d %slds" % (voff, srd(sr), soff, off, aux + " " if aux else ""), "X",
            ["v%d" % voff, "s%d" % soff, "m0"] + srdr(sr), [], tag=tag)
    i.cmt = m0
    return i
def store(src, soff, off, tag=None):
    return Ins("buffer_store_dwordx4 %s, v%d, %s, s%d offen offset:%d%s" % (rng("a", src, 4), OS, srd(sO_), soff, off, " " + cfg.o_aux if cfg.o_aux else ""), "X",
               R("a", src, 4) + ["v%d" % OS, "s%d" % soff] + srdr(sO_), [], tag=tag)
def setm0(m0):
    return s2("s_add_u32", "m0", "s%d" % m0[0], str(m0[1]))

def qk_block(h):
    L = []
    for f in range(8):
        kt, s = f // 4, f % 4
        for q in range(2):
            L.append(mfma("v", S_(h, q, kt), "a", AK + 4 * f, "a", AQ + 16 * (2 * h + q) + 4 * s, czero=(s == 0)))
    return L
def pvpos(b, q): return 2 * b + q + (1 if b >= 3 else 0) + (1 if b >= 6 else 0)
def pv_block(h, first):
    L = []
    for b in range(8):
        for q in range(2):
            L.append(mfma("v", O_(2 * h + q, b), "a", AV + 4 * b, "v", P_(h, q), czero=first))
        if b in (2, 5):
            q = b // 4
            L.append(mfma("a", AL + 4 * (2 * h + q), "a", AONE, "v", P_(h, q), czero=first))
    return L

class Item:
    def __init__(self, ins, ready, dead, target, deps=()):
        self.ins = ins; self.ready = ready; self.dead = dead; self.target = target; self.deps = list(deps); self.gap = None
        k = ins.kind
        self.cost = 8 if k in ("T", "X") else 4
class Gap:
    def __init__(self, m):
        self.pre = []; self.m = m; self.sh = [lsite()]; self.ds = []; self.va = []
    def flat(self): return self.pre + [self.m] + self.sh + self.ds + self.va

def schedule(gaps, items, name):
    n = len(gaps)
    todo = sorted(items, key=lambda i: (i.target, i.dead))
    for g in range(n):
        G = gaps[g]
        def ok(it):
            if it.ready > g: return False
            for d, dist in it.deps:
                if d.gap is None or d.gap + dist > g: return False
            return True
        def place(it):
            it.gap = g; todo.remove(it)
            (G.ds if it.ins.kind in ("D", "W", "X") else G.va).append(it.ins)
        def fits(it, used):
            k = it.ins.kind
            if any(x.kind == "X" for x in G.ds): return False
            if k == "X": return used == 0
            return True
        used = 0
        for it in [x for x in todo if x.dead <= g]:
            if ok(it) and fits(it, used): place(it); used += it.cost
        while used < 8:
            c = [it for it in todo if ok(it) and fits(it, used) and it.cost <= 8 - used]
            if not c: break
            it = c[0]
            if used == 0 and it.cost == 4:
                four = [x for x in c[1:] if x.cost == 4 or False]
                dep_next = [x for x in todo if x.cost == 4 and x is not it and x.ready <= g and all((d.gap is not None and d.gap + dist <= g) or (d is it and dist == 0) for d, dist in x.deps)]
                eight = [x for x in c if x.cost == 8]
                if not dep_next and eight and it.dead > g: it = eight[0]
            place(it); used += it.cost
        c = [it for it in todo if ok(it) and fits(it, used) and it.cost == 4 and it.target < g - cfg.lag]
        if c and used > 0:
            place(c[0]); used += 4
        while True:
            over = False
            dem = 0
            for it in sorted(todo, key=lambda i: min(i.dead, n - 1)):
                dem += 12 if it.ins.kind == "X" else it.cost
                d = min(it.dead, n - 1)
                if dem > 12 * (d - g): over = True; break
            if not over: break
            c = sorted([it for it in todo if ok(it) and fits(it, used)], key=lambda i: (min(i.dead, n - 1), i.target))
            if not c: break
            place(c[0]); used += c[0].cost
    if todo:
        raise Exception("%s: unscheduled items: %s" % (name, [(i.ins.text, i.ready, i.dead) for i in todo]))
    for it in items:
        if it.gap > it.dead: raise Exception("%s: deadline miss %s gap %d > %d" % (name, it.ins.text, it.gap, it.dead))

def softmax_items(h, base, rdy, dead, lo=(0, 0, 0), hi=(16, 16, 8), carry=None):
    its = []; M = {}; E = {}
    def reg(e):
        grp = e // 4; q = grp % 2; kt = grp // 2
        return q, kt, S_(h, q, kt) + e % 4
    for e in range(lo[0], hi[0]):
        q, kt, r = reg(e)
        M[e] = Item(mul_(r), rdy(q, kt), dead(q) - 2, base + 2 * e); its.append(M[e])
    for e in range(lo[1], hi[1]):
        q, kt, r = reg(e)
        E[e] = Item(exp_(r), rdy(q, kt), dead(q) - 1, base + 2 * e + 1, [(M[e], 0)] if e in M else []); its.append(E[e])
    for j in range(lo[2], hi[2]):
        q, kt, r = reg(2 * j)
        deps = [(E[e], 1) for e in (2 * j, 2 * j + 1) if e in E]
        its.append(Item(cvt_(P_(h, q) + 2 * kt + j % 2, r, r + 1), rdy(q, kt), dead(q), base + 4 * j + 4, deps))
    return its

def kread(f, slot, dT):
    return dsr128("a", AK + 4 * f, KA + f % 4, slot * 8192 + (f // 4) * 4096, ("K", dT))
def vread(b, jj, slot, dT):
    return dstr(AV + 4 * b + 2 * jj, VA + b, slot * 8192 + jj * 4096, ("V", dT))
def kv_dmas(t, lead):
    ks = (t + lead + 1) % 8; vs = (t + lead) % 8
    return [dma(DA, sK_, sKo, 0, ("K", lead + 1), (sMK, ks * 8192), cfg.kv_aux), dma(DB, sK_, sKo, 1024, ("K", lead + 1), (sMK, ks * 8192), cfg.kv_aux),
            dma(DA, sV_, sVo, 0, ("V", lead), (sMV, vs * 8192), cfg.kv_aux), dma(DB, sV_, sVo, 1024, ("V", lead), (sMV, vs * 8192), cfg.kv_aux)]
def q_dmas(h, du, msgpr=sMS, mconst=0):
    return [dma(DA if i % 2 == 0 else DB, sQ_, sQa if i < 4 else sQb, (i % 4) * 1024, ("Q", h, du), (msgpr, mconst + (i // 4) * 4096), cfg.q_aux) for i in range(8)]
def q_reads(dst, h, du, addr=QA):
    return [dsr128("a", dst + 16 * q + 4 * s, addr + s, q * 4096, ("Q", h, du)) for q in range(2) for s in range(4)]

def epi_burst(h, check=True):
    L = []
    for q in range(2): L.append(v1("v_accvgpr_read_b32", "v%d" % (ET + q), "a%d" % (AL + 4 * (2 * h + q))))
    for q in range(2): L.append(v1("v_rcp_f32", "v%d" % (ER + 2 * q), "v%d" % (ET + q), "T"))
    if check:
        for q in range(2): L.append(v2("v_subrev_u32", "v%d" % (EU + q), "s%d" % sLO, "v%d" % (ET + q)))
        L.append(valu("v_cmp_le_u32 vcc, s%d, v%d" % (sRG, EU), ["s%d" % sRG, "v%d" % EU], ["vcc"]))
        L.append(valu("v_cmp_le_u32 s[%d:%d], s%d, v%d" % (sCMP, sCMP + 1, sRG, EU + 1), ["s%d" % sRG, "v%d" % (EU + 1)], R("s", sCMP, 2)))
    else:
        L.append(nop(1))
    for q in range(2):
        for b in range(8):
            for i in range(2):
                a = O_(2 * h + q, b) + 2 * i
                L.append(valu("v_pk_mul_f32 v[%d:%d], v[%d:%d], v[%d:%d] op_sel_hi:[1,0]" % (a, a + 1, a, a + 1, ER + 2 * q, ER + 2 * q + 1),
                              R("v", a, 2) + ["v%d" % (ER + 2 * q)], R("v", a, 2), "K"))
    if check:
        L.append(salu("s_or_b64 s[%d:%d], s[%d:%d], vcc" % (sACC, sACC + 1, sACC, sACC + 1), ["vcc"] + R("s", sACC, 2), R("s", sACC, 2)))
        L.append(salu("s_or_b64 s[%d:%d], s[%d:%d], s[%d:%d]" % (sACC, sACC + 1, sACC, sACC + 1, sCMP, sCMP + 1), R("s", sCMP, 2) + R("s", sACC, 2), R("s", sACC, 2)))
    for q in range(2):
        for bp in range(4):
            a = O_(2 * h + q, 2 * bp)
            for i in range(4): L.append(cvt_(a + i, a + 2 * i, a + 2 * i + 1))
            if check and cfg.finchk and (q, bp) != (0, 0):
                pa = a - 8
                L.append(mfma("a", ACHK, "a", AZERO, "v", pa, czero=(h == 0 and (q, bp) == (0, 1))))
    if check and cfg.finchk:
        L.append(nop(2))
        L.append(mfma("a", ACHK, "a", AZERO, "v", O_(2 * h + 1, 6)))
    return L
def flag_ops():
    L = []
    if cfg.finchk:
        L.append(v1("v_accvgpr_read_b32", "v%d" % ET, "a%d" % ACHK))
        L.append(valu("v_cmp_u_f32 vcc, v%d, v%d" % (ET, ET), ["v%d" % ET], ["vcc"]))
        L.append(nop(2))
        L.append(salu("s_or_b64 s[%d:%d], s[%d:%d], vcc" % (sACC, sACC + 1, sACC, sACC + 1), ["vcc"] + R("s", sACC, 2), R("s", sACC, 2)))
    L.append(salu("s_cmp_lg_u64 s[%d:%d], 0" % (sACC, sACC + 1), R("s", sACC, 2), ["scc"]))
    L.append(salu("s_cselect_b32 s%d, s%d, 0" % (sT, sUB), ["scc", "s%d" % sUB], ["s%d" % sT]))
    L.append(s2("s_or_b32", "s%d" % sBAD, "s%d" % sBAD, "s%d" % sT))
    L.append(salu("s_mov_b64 s[%d:%d], 0" % (sACC, sACC + 1), [], R("s", sACC, 2)))
    L.append(s2("s_lshl_b32", "s%d" % sUB, "s%d" % sUB, "1"))
    return L
def o_writes(h):
    return [dsw64(OW + b % 4, O_(2 * h + q, b & ~1) + 2 * (b & 1), (b // 4) * 128 + q * 4096) for q in range(2) for b in range(8)]
def o_reads(h, du):
    return [dsr128("a", AO + 4 * j, OR_ + j % 2, j * 1024, ("O", h, du)) for j in range(8)]
def o_stores():
    return [store(AO + 4 * j, sOa if j < 4 else sOb, (j % 4) * 1024) for j in range(8)]

LEAD = 6 if cfg.barper == 2 else 7
LAT = cfg.lat
B0, B1, B2, B3, NG = 0, 16, 34, 50, 68

class Seg:
    def __init__(self): self.gaps = []; self.sitems = []; self.head = []; self.tail = []

def build_iter(t, first=False):
    sg = Seg()
    if first:
        b0, b1, b2, b3, ng = 0, None, 16, 32, 50
        mf = qk_block(0) + qk_block(1) + pv_block(0, True)
    else:
        b0, b1, b2, b3, ng = B0, B1, B2, B3, NG
        mf = qk_block(0) + pv_block(1, t == 1) + qk_block(1) + pv_block(0, t == 0)
    gaps = [Gap(m) for m in mf]
    items = []
    INF = 10 ** 6
    slot = t % 8; nslot = (t + 1) % 8
    isbar = (t % cfg.barper == 0)
    bar_gap = 14
    if not first:
        items += softmax_items(1, 48 - NG, lambda q, kt: 0, lambda q: b1 + q - 2, lo=(cfg.e0, cfg.e0, cfg.c0))
        for f in range(cfg.f0, 8):
            items.append(Item(kread(f, slot, 0), 0, 2 * f - LAT, 57.7 + 2.48 * f - NG))
    items += softmax_items(0, (14 if not first else 12), lambda q, kt: b0 + 8 * kt + 6 + q + cfg.rdy, lambda q: b3 + q - 2)
    items += softmax_items(1, b3 - 2, lambda q, kt: b2 + 8 * kt + 6 + q + cfg.rdy, lambda q: INF, hi=(cfg.e0, cfg.e0, cfg.c0))
    for b in range(8):
        for jj in range(2):
            rdy = (b1 + pvpos(b, 1)) if not first else 16
            items.append(Item(vread(b, jj, slot, 0), max(rdy, bar_gap + 1), b3 + pvpos(b, 0) - LAT, (18 + 2.48 * (2 * b + jj)) if not first else 16 + b + jj * 0.5))
    for f in range(cfg.f0):
        items.append(Item(kread(f, nslot, 1), b2 + 2 * f + 1, INF, b3 + 7.7 + 2.48 * f))
    dm = kv_dmas(t, LEAD)
    tg = [20, 24, 28, 32] if False else [1, 5, 62, 66]
    prev = None
    def chain(lst, targets, ready, dead=INF):
        p = None; res = []
        for ins, tgt in zip(lst, targets):
            it = Item(ins, ready, dead, tgt, [(p, 1)] if p else []); items.append(it); p = it; res.append(it)
        return res
    if first:
        extra = [dma(DA, sV_, sT, 0, ("V", 4), (sMV, 4 * 8192), cfg.kv_aux), dma(DB, sV_, sT, 1024, ("V", 4), (sMV, 4 * 8192), cfg.kv_aux),
                 dma(DA, sV_, sT + 1, 0, ("V", 5), (sMV, 5 * 8192), cfg.kv_aux), dma(DB, sV_, sT + 1, 1024, ("V", 5), (sMV, 5 * 8192), cfg.kv_aux)]
        if LEAD == 7:
            extra += [dma(DA, sV_, sT + 2, 0, ("V", 6), (sMV, 6 * 8192), cfg.kv_aux), dma(DB, sV_, sT + 2, 1024, ("V", 6), (sMV, 6 * 8192), cfg.kv_aux)]
        lst = extra + dm + o_stores()
        chain(lst, [17 + 2 * i for i in range(len(lst))], 17)
    else:
        dmt = [17, 21, 62, 66] if isbar else [3, 7, 62, 66]
        kvits = chain(dm, dmt, (bar_gap + 2) if isbar else 1)
        sg.sitems.append((s2("s_add_u32", "s%d" % sKo, "s%d" % sKo, "8192"), ("after", kvits[1]), None))
        sg.sitems.append((s2("s_add_u32", "s%d" % sVo, "s%d" % sVo, "8192"), ("after", kvits[3]), None))
    if first:
        sg.tail += [s2("s_add_u32", "s%d" % sKo, "s%d" % sKo, "8192"), s2("s_add_u32", "s%d" % sVo, "s%d" % sVo, "8192")]
    if isbar:
        needs = [("V", 0), ("K", 1)] + ([("V", 1), ("K", 2)] if cfg.barper == 2 else [])
        if not first:
            gaps[bar_gap - 1].sh.append(vsite(needs))
            gaps[bar_gap].sh.append(bar())
        else:
            al = lsite(); al.needs = "all"
            gaps[15].sh += [al, vsite(needs), bar()]
    if first:
        gaps[5].sh.append(vsite([("Q", 1, 0)]))
        for i, ins in enumerate(q_reads(AQ + 32, 1, 0, addr=TM)):
            items.append(Item(ins, 6, 14, 6 + i))
    def o_path(h, w_ready, w_dead, du, lo=0, hi=32):
        ops = o_writes(h) + o_reads(h, du) + o_stores()
        return ops
    if not first and t == 0:
        gaps[0].pre += epi_burst(0)
        W = chain(o_writes(0), [0.5 + 1.3 * i for i in range(16)], 0, 40)
        Rr = []
        for j, ins in enumerate(o_reads(0, -1)):
            it = Item(ins, 0, 47, 22 + 1.5 * j, [(W[15], 0)] + ([(Rr[-1], 0)] if Rr else [])); items.append(it); Rr.append(it)
        p = None
        for j, ins in enumerate(o_stores()):
            it = Item(ins, 0, INF, 36 + 3.5 * j, [(Rr[j], LAT)] + ([(p, 1)] if p else [])); items.append(it); p = it
        sg.head += [s2("s_add_u32", "s%d" % sOb, "s%d" % sOa, "4096")]
        gaps[b3].pre += epi_burst(1)
        chain(o_writes(1)[:10], [b3 + 0.5 + 1.7 * i for i in range(10)], b3)
        sg.sitems.append((s2("s_add_u32", "s%d" % sOa, "s%d" % sOa, "8192"), ("after", p), None))
        sg.sitems.append((s2("s_add_u32", "s%d" % sOb, "s%d" % sOb, "8192"), ("after", p), None))
        for i in range(16, 32):
            items.append(Item(v1("v_accvgpr_mov_b32", "a%d" % (AQ + 32 + i), "a%d" % (AQN + i)), 0, b2 - 2, 2 * (i - 16)))
        gaps[b3 + 10].pre += flag_ops()
    if t == 1:
        W = chain(o_writes(1)[10:], [0.5 + 1.7 * i for i in range(6)], 0, b1 + 1)
        Rr = []
        for j, ins in enumerate(o_reads(1, -1)):
            it = Item(ins, 0, INF, 12 + 2 * j, [(W[-1], 0)] + ([(Rr[-1], 0)] if Rr else [])); items.append(it); Rr.append(it)
        p = None
        for j, ins in enumerate(o_stores()):
            it = Item(ins, 0, INF, 30 + 4 * j, [(Rr[j], LAT)] + ([(p, 1)] if p else [])); items.append(it); p = it
        sg.sitems.append((s2("s_add_u32", "s%d" % sOa, "s%d" % sOa, str(131072 - 8192)), ("after", p), None))
        sg.sitems.append((smov("s%d" % (sO_ + 2), "s%d" % sONR), ("after", p), None))
    if t in (3, 4):
        if t == 3:
            sg.head += [s2("s_add_u32", "s%d" % sQa, "s%d" % sQo, "8192"), s2("s_add_u32", "s%d" % sQb, "s%d" % sQo, str(8192 + 4096))]
        chain(q_dmas(1, 1)[4 * (t - 3):4 * (t - 3) + 4], [30, 36, 42, 48], 24, 58)
    if t == 9:
        gaps[1].sh.append(vsite([("Q", 1, 1)]))
        for i, ins in enumerate(q_reads(AQN, 1, 1)):
            items.append(Item(ins, 2, INF, 3 + 2 * i))
        al = lsite(); al.needs = "all"; gaps[ng - 1].sh.insert(1, al)
    if t in (10, 11):
        if t == 10:
            sg.head += [smov("s%d" % sQa, "s%d" % sQo), s2("s_add_u32", "s%d" % sQb, "s%d" % sQo, "4096")]
        chain(q_dmas(0, 1)[4 * (t - 10):4 * (t - 10) + 4], [30, 36, 42, 48], 24, 58)
        if t == 11: sg.tail += [s2("s_add_u32", "s%d" % sQo, "s%d" % sQo, "131072")]
    if t == 15:
        gaps[15].sh.append(vsite([("Q", 0, 1)]))
        for i, ins in enumerate(q_reads(AQ, 0, 1)):
            items.append(Item(ins, 16, ng - 1 - LAT, 17 + 5 * i))
        for i in range(16):
            items.append(Item(v1("v_accvgpr_mov_b32", "a%d" % (AQ + 32 + i), "a%d" % (AQN + i)), b3, INF, b3 + i))
    schedule(gaps, items, "it%d%s" % (t, "f" if first else ""))
    sg.gaps = gaps
    return sg

def place_scalar(sg):
    gaps = sg.gaps
    def busy(G): return sum(1 for x in G.sh if (x.kind not in ("LSITE", "VSITE")) ) + (1 if any(x.kind in ("LSITE", "VSITE") and x.n is not None for x in G.sh) else 0)
    cur = None; lastx = -1
    for g, G in enumerate(gaps):
        for x in G.ds:
            if x.kind == "X" and "m0" in x.rd:
                if cur != x.cmt:
                    cands = [k for k in range(max(lastx, 0) if lastx < 0 else lastx + 1, g)]
                    free = [k for k in cands if busy(gaps[k]) == 0]
                    if cands:
                        k = free[-1] if free else cands[-1]
                        gaps[k].sh.append(setm0(x.cmt))
                    else:
                        gaps[lastx].va.append(setm0(x.cmt))
                    cur = x.cmt
                lastx = g
    for ins, (how, it), _ in sg.sitems:
        c = [k for k in range(it.gap + 1, len(gaps)) if busy(gaps[k]) == 0]
        if c: gaps[c[0]].sh.append(ins)
        else: sg.tail.append(ins)

def flat(sg):
    L = list(sg.head)
    for G in sg.gaps: L += G.flat()
    return L + sg.tail

def prologue():
    L = []
    A = L.append
    A(raw("s_cmp_ge_u32 s2, 256")); A(raw("s_cbranch_scc1 L_end"))
    A(raw("s_load_dwordx4 s[36:39], s[0:1], 0")); A(raw("s_load_dwordx4 s[40:43], s[0:1], 16"))
    A(v2("v_lshrrev_b32", "v1", "6", "v0")); A(v2("v_and_b32", "v0", "63", "v0"))
    A(valu("v_readfirstlane_b32 s%d, v1" % sW, ["v1"], ["s%d" % sW]))
    A(v2("v_lshrrev_b32", "v2", "4", "v0"))
    A(v2("v_and_b32", "v3", "15", "v0"))
    A(raw("s_and_b32 s45, s2, 7")); A(raw("s_lshr_b32 s46, s2, 4")); A(raw("s_lshl_b32 s45, s45, 4")); A(raw("s_add_u32 s45, s45, s46"))
    A(raw("s_lshl_b32 s45, s45, 19"))
    A(raw("s_bfe_u32 s46, s2, 0x10003")); A(raw("s_lshl_b32 s46, s46, 16")); A(raw("s_add_u32 s46, s46, s45"))
    A(s2("s_lshl_b32", "s%d" % sMK, "s%d" % sW, "11"))
    A(v2("v_lshlrev_b32", "v4", "1", "v2")); A(v2("v_xor_b32", "v4", "v3", "v4")); A(v2("v_lshlrev_b32", "v4", "4", "v4"))
    A(v3("v_lshl_add_u32", "v4", "v2", "8", "v4")); A(v2("v_add_u32", "v%d" % DA, "s%d" % sMK, "v4")); A(v2("v_xor_b32", "v%d" % DB, "0x80", "v%d" % DA))
    A(s2("s_add_u32", "s%d" % sMV, "s%d" % sMK, str(LDS_V)))
    A(s2("s_lshl_b32", "s%d" % sMS, "s%d" % sW, "13")); A(s2("s_add_u32", "s%d" % sMS, "s%d" % sMS, str(LDS_S)))
    A(s2("s_mul_i32", "s%d" % sQo, "s%d" % sW, str(16384 - 2048)))
    A(s2("s_lshl_b32", "s%d" % sOa, "s%d" % sW, "14")); A(s2("s_sub_u32", "s%d" % sOa, "s%d" % sOa, str(131072 - 8192)))
    for b in (sQ_, sK_, sV_, sO_): A(smov("s%d" % (b + 3), "0x20000"))
    A(smov("s%d" % (sK_ + 2), str(4 * 131072))); A(smov("s%d" % (sV_ + 2), str(4 * 131072)))
    A(smov("s%d" % (sQ_ + 2), str(3 * 131072 + 65536))); A(smov("s%d" % sONR, str(3 * 131072 + 65536))); A(smov("s%d" % (sO_ + 2), "0"))
    A(smov("s%d" % sKo, "0")); A(smov("s%d" % sVo, "0"))
    A(raw("s_waitcnt lgkmcnt(0)"))
    for b, p, o in ((sK_, 38, 45), (sQ_, 36, 46), (sV_, 40, 45), (sO_, 42, 46)):
        A(salu("s_add_u32 s%d, s%d, s%d" % (b, p, o), [], ["s%d" % b])); A(salu("s_addc_u32 s%d, s%d, 0" % (b + 1, p + 1), [], ["s%d" % (b + 1)]))
    def issue(lst):
        cur = None
        for x in lst:
            if x.kind == "X" and cur != x.cmt:
                A(setm0(x.cmt)); A(nop(1)); cur = x.cmt
            A(x)
    def kd(t): return [dma(DA, sK_, sKo, 0, ("K", t), (sMK, t * 8192), cfg.kv_aux), dma(DB, sK_, sKo, 1024, ("K", t), (sMK, t * 8192), cfg.kv_aux), s2("s_add_u32", "s%d" % sKo, "s%d" % sKo, "8192")]
    def vd(t): return [dma(DA, sV_, sVo, 0, ("V", t), (sMV, t * 8192), cfg.kv_aux), dma(DB, sV_, sVo, 1024, ("V", t), (sMV, t * 8192), cfg.kv_aux), s2("s_add_u32", "s%d" % sVo, "s%d" % sVo, "8192")]
    issue(kd(0))
    A(smov("s%d" % sQa, "s%d" % sQo)); A(s2("s_add_u32", "s%d" % sQb, "s%d" % sQo, "4096"))
    issue(q_dmas(0, 0))
    A(s2("s_add_u32", "s%d" % sQa, "s%d" % sQo, "8192")); A(s2("s_add_u32", "s%d" % sQb, "s%d" % sQo, str(8192 + 4096)))
    A(s2("s_sub_u32", "s%d" % sT, "s%d" % sMS, "32768"))
    issue(q_dmas(1, 0, msgpr=sT))
    for t in range(4): issue(vd(t) + kd(t + 1))
    for t in range(5, LEAD + 1): issue(kd(t))
    A(s2("s_add_u32", "s%d" % sQo, "s%d" % sQo, "131072"))
    A(smov("s%d" % sT, str(4 * 8192))); A(smov("s%d" % (sT + 1), str(5 * 8192))); A(smov("s%d" % (sT + 2), str(6 * 8192)))
    A(smov("s%d" % sVo, str(LEAD * 8192)))
    A(v2("v_and_b32", "v5", "7", "v3")); A(v2("v_lshlrev_b32", "v6", "1", "v5"))
    for s in range(4):
        A(v2("v_add_u32", "v7", str(4 * s), "v2")); A(v2("v_xor_b32", "v7", "v7", "v6")); A(v2("v_lshlrev_b32", "v7", "4", "v7"))
        A(v3("v_lshl_add_u32", "v%d" % (KA + s), "v3", "8", "v7"))
        A(v2("v_add_u32", "v%d" % (QA + s), "s%d" % sMS, "v%d" % (KA + s)))
        A(v2("v_subrev_u32", "v%d" % (TM + s), "0x8000", "v%d" % (QA + s)))
    A(v2("v_lshrrev_b32", "v8", "2", "v0"))
    A(v2("v_and_b32", "v9", "7", "v8")); A(v2("v_lshlrev_b32", "v9", "1", "v9"))
    A(valu("v_bfe_u32 v10, v0, 1, 1", ["v0"], ["v10"]))
    A(v2("v_and_b32", "v11", "1", "v0")); A(v2("v_lshlrev_b32", "v11", "3", "v11"))
    A(v3("v_lshl_add_u32", "v11", "v8", "8", "v11")); A(v2("v_add_u32", "v11", str(LDS_V), "v11"))
    for b in range(8):
        A(v2("v_add_u32", "v7", str(2 * b), "v10")); A(v2("v_xor_b32", "v7", "v7", "v9"))
        A(v3("v_lshl_add_u32", "v%d" % (VA + b), "v7", "4", "v11"))
    A(v2("v_lshrrev_b32", "v10", "1", "v2")); A(v2("v_and_b32", "v11", "1", "v2")); A(v2("v_lshlrev_b32", "v11", "3", "v11"))
    A(v3("v_lshl_add_u32", "v11", "v3", "8", "v11")); A(v2("v_add_u32", "v11", "s%d" % sMS, "v11"))
    for j in range(4):
        A(v2("v_add_u32", "v7", str(2 * j), "v10")); A(v2("v_xor_b32", "v7", "v7", "v5"))
        A(v3("v_lshl_add_u32", "v%d" % (OW + j), "v7", "4", "v11"))
    A(v2("v_xor_b32", "v7", "v3", "v2")); A(v2("v_lshlrev_b32", "v7", "4", "v7")); A(v3("v_lshl_add_u32", "v7", "v2", "8", "v7"))
    A(v2("v_add_u32", "v%d" % OR_, "s%d" % sMS, "v7")); A(v2("v_xor_b32", "v%d" % (OR_ + 1), "64", "v%d" % OR_))
    A(v2("v_lshlrev_b32", "v%d" % OS, "4", "v0"))
    A(v2("v_and_b32", "v7", "3", "v0")); A(valu("v_cmp_eq_u32 vcc, 0, v7", ["v7"], ["vcc"])); A(v1("v_mov_b32", "v8", "0x3f803f80")); A(v1("v_mov_b32", "v9", "0"))
    A(valu("v_cndmask_b32 v7, v9, v8, vcc", ["v8", "v9", "vcc"], ["v7"]))
    for i in range(4):
        A(v1("v_accvgpr_write_b32", "a%d" % (AONE + i), "v7")); A(v1("v_accvgpr_write_b32", "a%d" % (AZERO + i), "v9"))
    A(smov("s%d" % sC, "0x%08x" % SCALE)); A(smov("s%d" % sLO, "0x%08x" % LO_BITS)); A(smov("s%d" % sRG, "0x%08x" % (HI_BITS - LO_BITS)))
    A(smov("s%d" % sBAD, "15" if cfg.force_slow else "0")); A(smov("s%d" % sUB, "1")); A(salu("s_mov_b64 s[%d:%d], 0" % (sACC, sACC + 1), [], R("s", sACC, 2)))
    A(smov("s%d" % sCNT, "3"))
    A(s2("s_add_u32", "s%d" % sOb, "s%d" % sOa, "4096"))
    A(vsite([("K", 0), ("Q", 0, 0)])); A(bar())
    qr = q_reads(AQ, 0, 0)
    for s in range(4): L += [kread(s, 0, 0), qr[s], qr[4 + s]]
    for f in range(4, 8): A(kread(f, 0, 0))
    A(lsite())
    return L

def tail_seg():
    L = []
    for it in softmax_items(1, 0, lambda q, kt: 0, lambda q: 99, lo=(cfg.e0, cfg.e0, cfg.c0)):
        L.append(it.ins)
        if it.ins.kind == "T" and it.ins.text == exp_(S_(1, 1, 1) + 3).text: L.append(nop(1))
    L.append(s2("s_add_u32", "s%d" % sOb, "s%d" % sOa, "4096"))
    L += epi_burst(0)
    gaps = [Gap(m) for m in pv_block(1, False)]
    for g, w in enumerate(o_writes(0)): gaps[g].ds.append(w)
    gaps[17].ds += o_reads(0, 0)
    for G in gaps: L += G.flat()
    L.append(nop(1))
    L += epi_burst(1)
    L.append(lsite())
    L += o_stores()
    L += o_writes(1) + o_reads(1, 0)
    L += [s2("s_add_u32", "s%d" % sOa, "s%d" % sOa, "8192"), s2("s_add_u32", "s%d" % sOb, "s%d" % sOb, "8192")]
    L += flag_ops()
    L.append(lsite())
    L += o_stores()
    return L

def slow_path():
    T = []
    A = T.append
    def emit(l):
        for x in l: A(x.text)
    def wait(): A("s_waitcnt vmcnt(0) lgkmcnt(0)");
    A("s_barrier")
    A("s_cmp_eq_u32 s%d, 0" % sBAD); A("s_cbranch_scc1 L_end")
    A("s_lshl_b32 s45, s%d, 13" % sW)
    for i in range(4): A("v_add_u32 v%d, s45, v%d" % (KA + i, KA + i))
    for i in range(8): A("v_add_u32 v%d, s45, v%d" % (VA + i, VA + i))
    A("s_add_u32 s46, s45, %d" % LDS_V)
    A("s_mul_i32 s%d, s%d, %d" % (sQo, sW, 16384 - 2048))
    A("s_lshl_b32 s%d, s%d, 14" % (sOo, sW))
    A("v_subrev_u32 v%d, s%d, v%d" % (TM + 4, sMK, DA)); A("v_subrev_u32 v%d, s%d, v%d" % (TM + 5, sMK, DB))
    A("s_mov_b32 s%d, 0" % sCNT)
    A("L_slow_unit:")
    A("s_bitcmp1_b32 s%d, 0" % sBAD); A("s_cbranch_scc0 L_slow_next")
    wait()
    for h in range(2):
        A("s_add_u32 s%d, s%d, %d" % (sQa, sQo, h * 8192)); A("s_add_u32 s%d, s%d, 4096" % (sQb, sQa))
        cur = None
        for x in q_dmas(h, 0):
            if cur != x.cmt: A(setm0(x.cmt).text); A("s_nop 0"); cur = x.cmt
            A(x.text)
        wait(); emit(q_reads(AQ + 32 * h, h, 0)); wait()
    def tile_dma(sr, m0s):
        for i in range(8):
            if i % 4 == 0:
                A("s_add_u32 m0, s%d, %d" % (m0s, (i // 4) * 4096)); A("s_add_u32 s%d, s%d, %d" % (sT, sKo, (i // 4) * 4096))
            A("buffer_load_dwordx4 v%d, %s, s%d offen offset:%d lds" % (TM + 4 + i % 2, srd(sr), sT, (i % 4) * 1024))
    def qk_all():
        emit([kread(f, 0, 0) for f in range(8)]); wait()
        emit(qk_block(0) + qk_block(1)); A("s_nop 7"); A("s_nop 3")
    for i in range(4): A("v_mov_b32 v%d, 0xff800000" % (MX + i))
    A("s_mov_b32 s%d, s%d" % (sKo, sCNT)); A("s_add_u32 s%d, s%d, 131072" % (sVo, sCNT))
    A("L_slow_p1:")
    tile_dma(sK_, 45); wait(); qk_all()
    for h in range(2):
        for q in range(2):
            a = S_(h, q, 0)
            for i in range(4): A("v_max3_f32 v%d, v%d, v%d, v%d" % (MX + 2 * h + q, a + 2 * i, a + 2 * i + 1, MX + 2 * h + q))
    A("s_add_u32 s%d, s%d, 8192" % (sKo, sKo)); A("s_cmp_lt_u32 s%d, s%d" % (sKo, sVo)); A("s_cbranch_scc1 L_slow_p1")
    for op in ("v_permlane32_swap_b32", "v_permlane16_swap_b32"):
        for i in range(4): A("v_mov_b32 v%d, v%d" % (NM + i, MX + i))
        A("s_nop 1")
        for i in range(4): A("%s v%d, v%d" % (op, NM + i, MX + i))
        A("s_nop 1")
        for i in range(4): A("v_max_f32 v%d, v%d, v%d" % (MX + i, MX + i, NM + i))
    for i in range(4): A("v_mul_f32 v%d, s%d, v%d" % (NM + i, sC, MX + i))
    for i in range(128): A("v_mov_b32 v%d, 0" % (OB + i))
    for i in range(16): A("v_accvgpr_write_b32 a%d, 0" % (AL + i))
    A("s_mov_b32 s%d, s%d" % (sKo, sCNT))
    A("L_slow_p2:")
    tile_dma(sK_, 45); tile_dma(sV_, 46); wait(); qk_all()
    emit([vread(b, jj, 0, 0) for b in range(4) for jj in range(2)])
    for h in range(2):
        for q in range(2):
            a = S_(h, q, 0)
            for i in range(8): A("v_fma_f32 v%d, v%d, s%d, -v%d" % (a + i, a + i, sC, NM + 2 * h + q))
            for i in range(8): A("v_exp_f32 v%d, v%d" % (a + i, a + i))
            A("s_nop 0")
            for i in range(4): A(cvt_(P_(h, q) + i, a + 2 * i, a + 2 * i + 1).text)
    emit([vread(b, jj, 0, 0) for b in range(4, 8) for jj in range(2)])
    wait()
    emit(pv_block(0, False) + pv_block(1, False))
    A("s_add_u32 s%d, s%d, 8192" % (sKo, sKo)); A("s_cmp_lt_u32 s%d, s%d" % (sKo, sVo)); A("s_cbranch_scc1 L_slow_p2")
    A("s_nop 7"); A("s_nop 3")
    for h in range(2):
        emit(epi_burst(h, check=False)); emit(o_writes(h) + o_reads(h, 0))
        A("s_add_u32 s%d, s%d, %d" % (sOa, sOo, h * 8192)); A("s_add_u32 s%d, s%d, 4096" % (sOb, sOa))
        wait(); emit(o_stores()); wait()
    A("L_slow_next:")
    A("s_lshr_b32 s%d, s%d, 1" % (sBAD, sBAD))
    for r in (sCNT, sQo, sOo): A("s_add_u32 s%d, s%d, 131072" % (r, r))
    A("s_cmp_lg_u32 s%d, 0" % sBAD); A("s_cbranch_scc1 L_slow_unit")
    return T

def main():
    sgs = {"it0f": build_iter(0, True)}
    for t in range(16): sgs["it%d" % t] = build_iter(t)
    def segs():
        d = {"pro": pro, "tail": tl}
        for k, s in sgs.items(): d[k] = flat(s)
        return d
    pro = prologue(); tl = tail_seg()
    trace = [("pro", dict(T=0, u=0)), ("it0f", dict(T=0, u=0))]
    for u in range(4):
        for t in range(16):
            if (u, t) != (0, 0): trace.append(("it%d" % t, dict(T=16 * u + t, u=u)))
    trace.append(("tail", dict(T=64, u=3)))
    sgs["it0f"].tail.append(raw("s_branch L_it1", "BR"))
    sgs["it15"].tail += [s2("s_sub_u32", "s%d" % sCNT, "s%d" % sCNT, "1"), raw("s_cbranch_scc0 L_it0", "BR")]
    insert_waits(segs(), trace)
    for k, s in sgs.items():
        br = [x for x in s.tail if x.kind == "BR" or "s_sub_u32 s%d" % sCNT in x.text]
        s.tail = [x for x in s.tail if x not in br]
        place_scalar(s)
        s.tail += br
    fs = {k: finalize(v) for k, v in segs().items()}
    errs = verify(fs, trace, {"K": 8, "V": 16, "Q": 8, "O": 8})
    for e in errs[:40]: sys.stderr.write("ERR " + e + "\n")
    tot = 0
    for k in ["pro", "it0f"] + ["it%d" % t for t in range(16)] + ["tail"]:
        est = issue_estimate(fs[k]); sys.stderr.write("%s:%d " % (k, est))
        if k.startswith("it") and k != "it0f": tot += est
    sys.stderr.write("\nunit estimate %d cycles, errors %d\n" % (tot, len(errs)))
    out = []
    hdr = open(os.path.join(os.path.dirname(os.path.abspath(__file__)), "..", "cdna_kernels", NAME + ".s.ref")).read().split("; Override")[0]
    out.append(hdr.rstrip())
    out.append("; @launch grid=(256,1,1) block=(256,1,1) lds=163840")
    out.append('.amdgcn_target "amdgcn-amd-amdhsa--gfx950"\n.text\n.globl %s_kernel\n.p2align 8\n.type %s_kernel,@function\n%s_kernel:' % (NAME, NAME, NAME))
    def dump(k):
        out.append("; ---- " + k)
        for x in fs[k]: out.append("  " + x.text)
    dump("pro"); dump("it0f")
    out.append(".p2align 6\nL_it0:"); dump("it0"); out.append("L_it1:")
    for t in range(1, 16): dump("it%d" % t)
    dump("tail")
    out += ["  " + x if not x.endswith(":") else x for x in slow_path()]
    out.append("L_end:\n  s_endpgm")
    out.append('.section .rodata,"a"\n.p2align 6\n.amdhsa_kernel %s_kernel' % NAME)
    out.append("  .amdhsa_next_free_vgpr 512\n  .amdhsa_next_free_sgpr 64\n  .amdhsa_accum_offset 256\n  .amdhsa_group_segment_fixed_size 0\n  .amdhsa_kernarg_size 48\n  .amdhsa_user_sgpr_count 2\n  .amdhsa_user_sgpr_kernarg_segment_ptr 1\n  .amdhsa_system_sgpr_workgroup_id_x 1\n.end_amdhsa_kernel")
    open(sys.argv[1], "w").write("\n".join(out) + "\n")
    if errs: sys.exit(1)
main()
```

```python
import sys, os, struct, math
from core import *

class Cfg:
    barper = 2
    finchk = 1
    lat = 7
    kv_aux = ""
    q_aux = ""
    o_aux = ""
    e0 = 10; c0 = 4; f0 = 5
    force_slow = 0
    stamp = 0
    lag = 1.5
    rdy = 5
cfg = Cfg()
for a in sys.argv[2:]:
    k, v = a.split("=")
    setattr(cfg, k, type(getattr(cfg, k))(v))

NAME = "standalone__mha_softmax__near_ridge"
KA = 16; VA = 20; DA = 28; DB = 29; QA = 30; OW = 34; OR_ = 38; OS = 40
ET = 42; ER = 44; EU = 48
MX = 50; NM = 54; TM = 58
PB = 80; SB = 96; OB = 128
def S_(h, q, kt): return SB + 16 * h + 8 * q + 4 * kt
def P_(h, q): return PB + 8 * h + 4 * q
def O_(qt, b): return OB + 32 * qt + 4 * b
AQ = 0; AQN = 64; AK = 96; AV = 128; AO = 160; AL = 192; AONE = 208; AZERO = 212; ACHK = 216
sQ_, sK_, sV_, sO_ = 4, 8, 12, 16
sW = 20; sKo = 21; sVo = 22; sMK = 23; sMV = 24; sQo = 25; sOo = 26; sC = 27; sBAD = 28; sUB = 29; sACC = 30; sCMP = 32
sLO = 34; sRG = 35; sMS = 44; sCNT = 47; sONR = 48; sQa = 50; sQb = 51; sOa = 52; sOb = 53; sT = 54
LDS_V = 65536; LDS_S = 131072
SCALE = struct.unpack("<I", struct.pack("<f", math.log2(math.e) / math.sqrt(128.0)))[0]
LO_BITS = (127 - (40 if cfg.finchk else 24)) << 23
HI_BITS = (127 + (40 if cfg.finchk else 24)) << 23

def srd(b): return "s[%d:%d]" % (b, b + 3)
def srdr(b): return R("s", b, 4)

def v2(op, d, a, b, kind="V"):
    rd = [x for x in (a, b) if isinstance(x, str) and x[0] in "vsa" and x[1:].isdigit()]
    return valu("%s %s, %s, %s" % (op, d, a, b), rd, [d], kind)
def v1(op, d, a, kind="V"):
    rd = [a] if isinstance(a, str) and a[0] in "vsa" and a[1:].isdigit() else []
    return valu("%s %s, %s" % (op, d, a), rd, [d], kind)
def v3(op, d, a, b, c):
    rd = [x for x in (a, b, c) if isinstance(x, str) and x[0] in "vsa" and x[1:].isdigit()]
    return valu("%s %s, %s, %s, %s" % (op, d, a, b, c), rd, [d])
def s2(op, d, a, b):
    rd = [x for x in (a, b) if isinstance(x, str) and (x[0] == "s" or x == "m0")]
    return salu("%s %s, %s, %s" % (op, d, a, b), rd, [d, "scc"])
def smov(d, a):
    return salu("s_mov_b32 %s, %s" % (d, a), [a] if isinstance(a, str) and a[0] == "s" else [], [d])
def mul_(r): return v2("v_mul_f32", "v%d" % r, "s%d" % sC, "v%d" % r)
def exp_(r): return v1("v_exp_f32", "v%d" % r, "v%d" % r, "T")
def cvt_(d, a, b): return v2("v_cvt_pk_bf16_f32", "v%d" % d, "v%d" % a, "v%d" % b)
def dsr128(dp, d, addr, off, tag):
    assert 0 <= off < 65536
    return Ins("ds_read_b128 %s, v%d offset:%d" % (rng(dp, d, 4), addr, off), "D", ["v%d" % addr], R(dp, d, 4), tag=tag)
def dstr(d, addr, off, tag):
    assert 0 <= off < 65536
    return Ins("ds_read_b64_tr_b16 %s, v%d offset:%d" % (rng("a", d, 2), addr, off), "D", ["v%d" % addr], R("a", d, 2), tag=tag)
def dsw64(addr, src, off):
    return Ins("ds_write_b64 v%d, %s offset:%d" % (addr, rng("v", src, 2), off), "W", ["v%d" % addr] + R("v", src, 2), [])
def dma(voff, sr, soff, off, tag, m0, aux=""):
    i = Ins("buffer_load_dwordx4 v%d, %s, s%d offen offset:%d %slds" % (voff, srd(sr), soff, off, aux + " " if aux else ""), "X",
            ["v%d" % voff, "s%d" % soff, "m0"] + srdr(sr), [], tag=tag)
    i.cmt = m0
    return i
def store(src, soff, off, tag=None):
    return Ins("buffer_store_dwordx4 %s, v%d, %s, s%d offen offset:%d%s" % (rng("a", src, 4), OS, srd(sO_), soff, off, " " + cfg.o_aux if cfg.o_aux else ""), "X",
               R("a", src, 4) + ["v%d" % OS, "s%d" % soff] + srdr(sO_), [], tag=tag)
def setm0(m0):
    return s2("s_add_u32", "m0", "s%d" % m0[0], str(m0[1]))

def qk_block(h):
    L = []
    for f in range(8):
        kt, s = f // 4, f % 4
        for q in range(2):
            L.append(mfma("v", S_(h, q, kt), "a", AK + 4 * f, "a", AQ + 16 * (2 * h + q) + 4 * s, czero=(s == 0)))
    return L
def pvpos(b, q): return 2 * b + q + (1 if b >= 3 else 0) + (1 if b >= 6 else 0)
def pv_block(h, first):
    L = []
    for b in range(8):
        for q in range(2):
            L.append(mfma("v", O_(2 * h + q, b), "a", AV + 4 * b, "v", P_(h, q), czero=first))
        if b in (2, 5):
            q = b // 4
            L.append(mfma("a", AL + 4 * (2 * h + q), "a", AONE, "v", P_(h, q), czero=first))
    return L

class Item:
    def __init__(self, ins, ready, dead, target, deps=()):
        self.ins = ins; self.ready = ready; self.dead = dead; self.target = target; self.deps = list(deps); self.gap = None
        k = ins.kind
        self.cost = 8 if k in ("T", "X") else 4
class Gap:
    def __init__(self, m):
        self.pre = []; self.m = m; self.sh = [lsite()]; self.ds = []; self.va = []
    def flat(self): return self.pre + [self.m] + self.sh + self.ds + self.va

def schedule(gaps, items, name):
    n = len(gaps)
    todo = sorted(items, key=lambda i: (i.target, i.dead))
    for g in range(n):
        G = gaps[g]
        def ok(it):
            if it.ready > g: return False
            for d, dist in it.deps:
                if d.gap is None or d.gap + dist > g: return False
            return True
        def place(it):
            it.gap = g; todo.remove(it)
            (G.ds if it.ins.kind in ("D", "W", "X") else G.va).append(it.ins)
        def fits(it, used):
            k = it.ins.kind
            if any(x.kind == "X" for x in G.ds): return False
            if k == "X": return used == 0
            return True
        used = 0
        for it in [x for x in todo if x.dead <= g]:
            if ok(it) and fits(it, used): place(it); used += it.cost
        while used < 8:
            c = [it for it in todo if ok(it) and fits(it, used) and it.cost <= 8 - used]
            if not c: break
            it = c[0]
            if used == 0 and it.cost == 4:
                four = [x for x in c[1:] if x.cost == 4 or False]
                dep_next = [x for x in todo if x.cost == 4 and x is not it and x.ready <= g and all((d.gap is not None and d.gap + dist <= g) or (d is it and dist == 0) for d, dist in x.deps)]
                eight = [x for x in c if x.cost == 8]
                if not dep_next and eight and it.dead > g: it = eight[0]
            place(it); used += it.cost
        c = [it for it in todo if ok(it) and fits(it, used) and it.cost == 4 and it.target < g - cfg.lag]
        if c and used > 0:
            place(c[0]); used += 4
        while True:
            over = False
            dem = 0
            for it in sorted(todo, key=lambda i: min(i.dead, n - 1)):
                dem += 12 if it.ins.kind == "X" else it.cost
                d = min(it.dead, n - 1)
                if dem > 12 * (d - g): over = True; break
            if not over: break
            c = sorted([it for it in todo if ok(it) and fits(it, used)], key=lambda i: (min(i.dead, n - 1), i.target))
            if not c: break
            place(c[0]); used += c[0].cost
    if todo:
        raise Exception("%s: unscheduled items: %s" % (name, [(i.ins.text, i.ready, i.dead) for i in todo]))
    for it in items:
        if it.gap > it.dead: raise Exception("%s: deadline miss %s gap %d > %d" % (name, it.ins.text, it.gap, it.dead))

def softmax_items(h, base, rdy, dead, lo=(0, 0, 0), hi=(16, 16, 8), carry=None):
    its = []; M = {}; E = {}
    def reg(e):
        grp = e // 4; q = grp % 2; kt = grp // 2
        return q, kt, S_(h, q, kt) + e % 4
    for e in range(lo[0], hi[0]):
        q, kt, r = reg(e)
        M[e] = Item(mul_(r), rdy(q, kt), dead(q) - 2, base + 2 * e); its.append(M[e])
    for e in range(lo[1], hi[1]):
        q, kt, r = reg(e)
        E[e] = Item(exp_(r), rdy(q, kt), dead(q) - 1, base + 2 * e + 1, [(M[e], 0)] if e in M else []); its.append(E[e])
    for j in range(lo[2], hi[2]):
        q, kt, r = reg(2 * j)
        deps = [(E[e], 1) for e in (2 * j, 2 * j + 1) if e in E]
        its.append(Item(cvt_(P_(h, q) + 2 * kt + j % 2, r, r + 1), rdy(q, kt), dead(q), base + 4 * j + 4, deps))
    return its

def kread(f, slot, dT):
    return dsr128("a", AK + 4 * f, KA + f % 4, slot * 8192 + (f // 4) * 4096, ("K", dT))
def vread(b, jj, slot, dT):
    return dstr(AV + 4 * b + 2 * jj, VA + b, slot * 8192 + jj * 4096, ("V", dT))
def kv_dmas(t, lead):
    ks = (t + lead + 1) % 8; vs = (t + lead) % 8
    return [dma(DA, sK_, sKo, 0, ("K", lead + 1), (sMK, ks * 8192), cfg.kv_aux), dma(DB, sK_, sKo, 1024, ("K", lead + 1), (sMK, ks * 8192), cfg.kv_aux),
            dma(DA, sV_, sVo, 0, ("V", lead), (sMV, vs * 8192), cfg.kv_aux), dma(DB, sV_, sVo, 1024, ("V", lead), (sMV, vs * 8192), cfg.kv_aux)]
def q_dmas(h, du, msgpr=sMS, mconst=0):
    return [dma(DA if i % 2 == 0 else DB, sQ_, sQa if i < 4 else sQb, (i % 4) * 1024, ("Q", h, du), (msgpr, mconst + (i // 4) * 4096), cfg.q_aux) for i in range(8)]
def q_reads(dst, h, du, addr=QA):
    return [dsr128("a", dst + 16 * q + 4 * s, addr + s, q * 4096, ("Q", h, du)) for q in range(2) for s in range(4)]

def epi_burst(h, check=True):
    L = []
    for q in range(2): L.append(v1("v_accvgpr_read_b32", "v%d" % (ET + q), "a%d" % (AL + 4 * (2 * h + q))))
    for q in range(2): L.append(v1("v_rcp_f32", "v%d" % (ER + 2 * q), "v%d" % (ET + q), "T"))
    if check:
        for q in range(2): L.append(v2("v_subrev_u32", "v%d" % (EU + q), "s%d" % sLO, "v%d" % (ET + q)))
        L.append(valu("v_cmp_le_u32 vcc, s%d, v%d" % (sRG, EU), ["s%d" % sRG, "v%d" % EU], ["vcc"]))
        L.append(valu("v_cmp_le_u32 s[%d:%d], s%d, v%d" % (sCMP, sCMP + 1, sRG, EU + 1), ["s%d" % sRG, "v%d" % (EU + 1)], R("s", sCMP, 2)))
    else:
        L.append(nop(1))
    for q in range(2):
        for b in range(8):
            for i in range(2):
                a = O_(2 * h + q, b) + 2 * i
                L.append(valu("v_pk_mul_f32 v[%d:%d], v[%d:%d], v[%d:%d] op_sel_hi:[1,0]" % (a, a + 1, a, a + 1, ER + 2 * q, ER + 2 * q + 1),
                              R("v", a, 2) + ["v%d" % (ER + 2 * q)], R("v", a, 2), "K"))
    if check:
        L.append(salu("s_or_b64 s[%d:%d], s[%d:%d], vcc" % (sACC, sACC + 1, sACC, sACC + 1), ["vcc"] + R("s", sACC, 2), R("s", sACC, 2)))
        L.append(salu("s_or_b64 s[%d:%d], s[%d:%d], s[%d:%d]" % (sACC, sACC + 1, sACC, sACC + 1, sCMP, sCMP + 1), R("s", sCMP, 2) + R("s", sACC, 2), R("s", sACC, 2)))
    for q in range(2):
        for bp in range(4):
            a = O_(2 * h + q, 2 * bp)
            for i in range(4): L.append(cvt_(a + i, a + 2 * i, a + 2 * i + 1))
            if check and cfg.finchk and (q, bp) != (0, 0):
                pa = a - 8
                L.append(mfma("a", ACHK, "a", AZERO, "v", pa, czero=(h == 0 and (q, bp) == (0, 1))))
    if check and cfg.finchk:
        L.append(nop(2))
        L.append(mfma("a", ACHK, "a", AZERO, "v", O_(2 * h + 1, 6)))
    return L
def flag_ops():
    L = []
    if cfg.finchk:
        L.append(v1("v_accvgpr_read_b32", "v%d" % ET, "a%d" % ACHK))
        L.append(valu("v_cmp_u_f32 vcc, v%d, v%d" % (ET, ET), ["v%d" % ET], ["vcc"]))
        L.append(nop(2))
        L.append(salu("s_or_b64 s[%d:%d], s[%d:%d], vcc" % (sACC, sACC + 1, sACC, sACC + 1), ["vcc"] + R("s", sACC, 2), R("s", sACC, 2)))
    L.append(salu("s_cmp_lg_u64 s[%d:%d], 0" % (sACC, sACC + 1), R("s", sACC, 2), ["scc"]))
    L.append(salu("s_cselect_b32 s%d, s%d, 0" % (sT, sUB), ["scc", "s%d" % sUB], ["s%d" % sT]))
    L.append(s2("s_or_b32", "s%d" % sBAD, "s%d" % sBAD, "s%d" % sT))
    L.append(salu("s_mov_b64 s[%d:%d], 0" % (sACC, sACC + 1), [], R("s", sACC, 2)))
    L.append(s2("s_lshl_b32", "s%d" % sUB, "s%d" % sUB, "1"))
    return L
def o_writes(h):
    return [dsw64(OW + b % 4, O_(2 * h + q, b & ~1) + 2 * (b & 1), (b // 4) * 128 + q * 4096) for q in range(2) for b in range(8)]
def o_reads(h, du):
    return [dsr128("a", AO + 4 * j, OR_ + j % 2, j * 1024, ("O", h, du)) for j in range(8)]
def o_stores():
    return [store(AO + 4 * j, sOa if j < 4 else sOb, (j % 4) * 1024) for j in range(8)]

LEAD = 6 if cfg.barper == 2 else 7
LAT = cfg.lat
B0, B1, B2, B3, NG = 0, 16, 34, 50, 68

class Seg:
    def __init__(self): self.gaps = []; self.sitems = []; self.head = []; self.tail = []

def build_iter(t, first=False):
    sg = Seg()
    if first:
        b0, b1, b2, b3, ng = 0, None, 16, 32, 50
        mf = qk_block(0) + qk_block(1) + pv_block(0, True)
    else:
        b0, b1, b2, b3, ng = B0, B1, B2, B3, NG
        mf = qk_block(0) + pv_block(1, t == 1) + qk_block(1) + pv_block(0, t == 0)
    gaps = [Gap(m) for m in mf]
    items = []
    INF = 10 ** 6
    slot = t % 8; nslot = (t + 1) % 8
    isbar = (t % cfg.barper == 0)
    bar_gap = 14
    if not first:
        items += softmax_items(1, 48 - NG, lambda q, kt: 0, lambda q: b1 + q - 2, lo=(cfg.e0, cfg.e0, cfg.c0))
        for f in range(cfg.f0, 8):
            items.append(Item(kread(f, slot, 0), 0, 2 * f - LAT, 57.7 + 2.48 * f - NG))
    items += softmax_items(0, (14 if not first else 12), lambda q, kt: b0 + 8 * kt + 6 + q + cfg.rdy, lambda q: b3 + q - 2)
    items += softmax_items(1, b3 - 2, lambda q, kt: b2 + 8 * kt + 6 + q + cfg.rdy, lambda q: INF, hi=(cfg.e0, cfg.e0, cfg.c0))
    for b in range(8):
        for jj in range(2):
            rdy = (b1 + pvpos(b, 1)) if not first else 16
            items.append(Item(vread(b, jj, slot, 0), max(rdy, bar_gap + 1), b3 + pvpos(b, 0) - LAT, (18 + 2.48 * (2 * b + jj)) if not first else 16 + b + jj * 0.5))
    for f in range(cfg.f0):
        items.append(Item(kread(f, nslot, 1), b2 + 2 * f + 1, INF, b3 + 7.7 + 2.48 * f))
    dm = kv_dmas(t, LEAD)
    tg = [20, 24, 28, 32] if False else [1, 5, 62, 66]
    prev = None
    def chain(lst, targets, ready, dead=INF):
        p = None; res = []
        for ins, tgt in zip(lst, targets):
            it = Item(ins, ready, dead, tgt, [(p, 1)] if p else []); items.append(it); p = it; res.append(it)
        return res
    if first:
        extra = [dma(DA, sV_, sT, 0, ("V", 4), (sMV, 4 * 8192), cfg.kv_aux), dma(DB, sV_, sT, 1024, ("V", 4), (sMV, 4 * 8192), cfg.kv_aux),
                 dma(DA, sV_, sT + 1, 0, ("V", 5), (sMV, 5 * 8192), cfg.kv_aux), dma(DB, sV_, sT + 1, 1024, ("V", 5), (sMV, 5 * 8192), cfg.kv_aux)]
        if LEAD == 7:
            extra += [dma(DA, sV_, sT + 2, 0, ("V", 6), (sMV, 6 * 8192), cfg.kv_aux), dma(DB, sV_, sT + 2, 1024, ("V", 6), (sMV, 6 * 8192), cfg.kv_aux)]
        lst = extra + dm + o_stores()
        chain(lst, [17 + 2 * i for i in range(len(lst))], 17)
    else:
        dmt = [17, 21, 62, 66] if isbar else [3, 7, 62, 66]
        kvits = chain(dm, dmt, (bar_gap + 2) if isbar else 1)
        sg.sitems.append((s2("s_add_u32", "s%d" % sKo, "s%d" % sKo, "8192"), ("after", kvits[1]), None))
        sg.sitems.append((s2("s_add_u32", "s%d" % sVo, "s%d" % sVo, "8192"), ("after", kvits[3]), None))
    if first:
        sg.tail += [s2("s_add_u32", "s%d" % sKo, "s%d" % sKo, "8192"), s2("s_add_u32", "s%d" % sVo, "s%d" % sVo, "8192")]
    if isbar:
        needs = [("V", 0), ("K", 1)] + ([("V", 1), ("K", 2)] if cfg.barper == 2 else [])
        if not first:
            gaps[bar_gap - 1].sh.append(vsite(needs))
            gaps[bar_gap].sh.append(bar())
        else:
            al = lsite(); al.needs = "all"
            gaps[15].sh += [al, vsite(needs), bar()]
    if first:
        gaps[5].sh.append(vsite([("Q", 1, 0)]))
        for i, ins in enumerate(q_reads(AQ + 32, 1, 0, addr=TM)):
            items.append(Item(ins, 6, 14, 6 + i))
    def o_path(h, w_ready, w_dead, du, lo=0, hi=32):
        ops = o_writes(h) + o_reads(h, du) + o_stores()
        return ops
    if not first and t == 0:
        gaps[0].pre += epi_burst(0)
        W = chain(o_writes(0), [0.5 + 1.3 * i for i in range(16)], 0, 40)
        Rr = []
        for j, ins in enumerate(o_reads(0, -1)):
            it = Item(ins, 0, 47, 22 + 1.5 * j, [(W[15], 0)] + ([(Rr[-1], 0)] if Rr else [])); items.append(it); Rr.append(it)
        p = None
        for j, ins in enumerate(o_stores()):
            it = Item(ins, 0, INF, 36 + 3.5 * j, [(Rr[j], LAT)] + ([(p, 1)] if p else [])); items.append(it); p = it
        sg.head += [s2("s_add_u32", "s%d" % sOb, "s%d" % sOa, "4096")]
        gaps[b3].pre += epi_burst(1)
        chain(o_writes(1)[:10], [b3 + 0.5 + 1.7 * i for i in range(10)], b3)
        sg.sitems.append((s2("s_add_u32", "s%d" % sOa, "s%d" % sOa, "8192"), ("after", p), None))
        sg.sitems.append((s2("s_add_u32", "s%d" % sOb, "s%d" % sOb, "8192"), ("after", p), None))
        for i in range(16, 32):
            items.append(Item(v1("v_accvgpr_mov_b32", "a%d" % (AQ + 32 + i), "a%d" % (AQN + i)), 0, b2 - 2, 2 * (i - 16)))
        gaps[b3 + 10].pre += flag_ops()
    if t == 1:
        W = chain(o_writes(1)[10:], [0.5 + 1.7 * i for i in range(6)], 0, b1 + 1)
        Rr = []
        for j, ins in enumerate(o_reads(1, -1)):
            it = Item(ins, 0, INF, 12 + 2 * j, [(W[-1], 0)] + ([(Rr[-1], 0)] if Rr else [])); items.append(it); Rr.append(it)
        p = None
        for j, ins in enumerate(o_stores()):
            it = Item(ins, 0, INF, 30 + 4 * j, [(Rr[j], LAT)] + ([(p, 1)] if p else [])); items.append(it); p = it
        sg.sitems.append((s2("s_add_u32", "s%d" % sOa, "s%d" % sOa, str(131072 - 8192)), ("after", p), None))
        sg.sitems.append((smov("s%d" % (sO_ + 2), "s%d" % sONR), ("after", p), None))
    if t in (3, 4):
        if t == 3:
            sg.head += [s2("s_add_u32", "s%d" % sQa, "s%d" % sQo, "8192"), s2("s_add_u32", "s%d" % sQb, "s%d" % sQo, str(8192 + 4096))]
        chain(q_dmas(1, 1)[4 * (t - 3):4 * (t - 3) + 4], [30, 36, 42, 48], 24, 58)
    if t == 9:
        gaps[1].sh.append(vsite([("Q", 1, 1)]))
        for i, ins in enumerate(q_reads(AQN, 1, 1)):
            items.append(Item(ins, 2, INF, 3 + 2 * i))
        al = lsite(); al.needs = "all"; gaps[ng - 1].sh.insert(1, al)
    if t in (10, 11):
        if t == 10:
            sg.head += [smov("s%d" % sQa, "s%d" % sQo), s2("s_add_u32", "s%d" % sQb, "s%d" % sQo, "4096")]
        chain(q_dmas(0, 1)[4 * (t - 10):4 * (t - 10) + 4], [30, 36, 42, 48], 24, 58)
        if t == 11: sg.tail += [s2("s_add_u32", "s%d" % sQo, "s%d" % sQo, "131072")]
    if t == 15:
        gaps[15].sh.append(vsite([("Q", 0, 1)]))
        for i, ins in enumerate(q_reads(AQ, 0, 1)):
            items.append(Item(ins, 16, ng - 1 - LAT, 17 + 5 * i))
        for i in range(16):
            items.append(Item(v1("v_accvgpr_mov_b32", "a%d" % (AQ + 32 + i), "a%d" % (AQN + i)), b3, INF, b3 + i))
    schedule(gaps, items, "it%d%s" % (t, "f" if first else ""))
    sg.gaps = gaps
    return sg

def place_scalar(sg):
    gaps = sg.gaps
    def busy(G): return sum(1 for x in G.sh if (x.kind not in ("LSITE", "VSITE")) ) + (1 if any(x.kind in ("LSITE", "VSITE") and x.n is not None for x in G.sh) else 0)
    cur = None; lastx = -1
    for g, G in enumerate(gaps):
        for x in G.ds:
            if x.kind == "X" and "m0" in x.rd:
                if cur != x.cmt:
                    cands = [k for k in range(max(lastx, 0) if lastx < 0 else lastx + 1, g)]
                    free = [k for k in cands if busy(gaps[k]) == 0]
                    if cands:
                        k = free[-1] if free else cands[-1]
                        gaps[k].sh.append(setm0(x.cmt))
                    else:
                        gaps[lastx].va.append(setm0(x.cmt))
                    cur = x.cmt
                lastx = g
    for ins, (how, it), _ in sg.sitems:
        c = [k for k in range(it.gap + 1, len(gaps)) if busy(gaps[k]) == 0]
        if c: gaps[c[0]].sh.append(ins)
        else: sg.tail.append(ins)

def flat(sg):
    L = list(sg.head)
    for G in sg.gaps: L += G.flat()
    return L + sg.tail

def prologue():
    L = []
    A = L.append
    A(raw("s_cmp_ge_u32 s2, 256")); A(raw("s_cbranch_scc1 L_end"))
    A(raw("s_load_dwordx4 s[36:39], s[0:1], 0")); A(raw("s_load_dwordx4 s[40:43], s[0:1], 16"))
    A(v2("v_lshrrev_b32", "v1", "6", "v0")); A(v2("v_and_b32", "v0", "63", "v0"))
    A(valu("v_readfirstlane_b32 s%d, v1" % sW, ["v1"], ["s%d" % sW]))
    A(v2("v_lshrrev_b32", "v2", "4", "v0"))
    A(v2("v_and_b32", "v3", "15", "v0"))
    A(raw("s_and_b32 s45, s2, 7")); A(raw("s_lshr_b32 s46, s2, 4")); A(raw("s_lshl_b32 s45, s45, 4")); A(raw("s_add_u32 s45, s45, s46"))
    A(raw("s_lshl_b32 s45, s45, 19"))
    A(raw("s_bfe_u32 s46, s2, 0x10003")); A(raw("s_lshl_b32 s46, s46, 16")); A(raw("s_add_u32 s46, s46, s45"))
    A(s2("s_lshl_b32", "s%d" % sMK, "s%d" % sW, "11"))
    A(v2("v_lshlrev_b32", "v4", "1", "v2")); A(v2("v_xor_b32", "v4", "v3", "v4")); A(v2("v_lshlrev_b32", "v4", "4", "v4"))
    A(v3("v_lshl_add_u32", "v4", "v2", "8", "v4")); A(v2("v_add_u32", "v%d" % DA, "s%d" % sMK, "v4")); A(v2("v_xor_b32", "v%d" % DB, "0x80", "v%d" % DA))
    A(s2("s_add_u32", "s%d" % sMV, "s%d" % sMK, str(LDS_V)))
    A(s2("s_lshl_b32", "s%d" % sMS, "s%d" % sW, "13")); A(s2("s_add_u32", "s%d" % sMS, "s%d" % sMS, str(LDS_S)))
    A(s2("s_mul_i32", "s%d" % sQo, "s%d" % sW, str(16384 - 2048)))
    A(s2("s_lshl_b32", "s%d" % sOa, "s%d" % sW, "14")); A(s2("s_sub_u32", "s%d" % sOa, "s%d" % sOa, str(131072 - 8192)))
    for b in (sQ_, sK_, sV_, sO_): A(smov("s%d" % (b + 3), "0x20000"))
    A(smov("s%d" % (sK_ + 2), str(4 * 131072))); A(smov("s%d" % (sV_ + 2), str(4 * 131072)))
    A(smov("s%d" % (sQ_ + 2), str(3 * 131072 + 65536))); A(smov("s%d" % sONR, str(3 * 131072 + 65536))); A(smov("s%d" % (sO_ + 2), "0"))
    A(smov("s%d" % sKo, "0")); A(smov("s%d" % sVo, "0"))
    A(raw("s_waitcnt lgkmcnt(0)"))
    for b, p, o in ((sK_, 38, 45), (sQ_, 36, 46), (sV_, 40, 45), (sO_, 42, 46)):
        A(salu("s_add_u32 s%d, s%d, s%d" % (b, p, o), [], ["s%d" % b])); A(salu("s_addc_u32 s%d, s%d, 0" % (b + 1, p + 1), [], ["s%d" % (b + 1)]))
    def issue(lst):
        cur = None
        for x in lst:
            if x.kind == "X" and cur != x.cmt:
                A(setm0(x.cmt)); A(nop(1)); cur = x.cmt
            A(x)
    def kd(t): return [dma(DA, sK_, sKo, 0, ("K", t), (sMK, t * 8192), cfg.kv_aux), dma(DB, sK_, sKo, 1024, ("K", t), (sMK, t * 8192), cfg.kv_aux), s2("s_add_u32", "s%d" % sKo, "s%d" % sKo, "8192")]
    def vd(t): return [dma(DA, sV_, sVo, 0, ("V", t), (sMV, t * 8192), cfg.kv_aux), dma(DB, sV_, sVo, 1024, ("V", t), (sMV, t * 8192), cfg.kv_aux), s2("s_add_u32", "s%d" % sVo, "s%d" % sVo, "8192")]
    issue(kd(0))
    A(smov("s%d" % sQa, "s%d" % sQo)); A(s2("s_add_u32", "s%d" % sQb, "s%d" % sQo, "4096"))
    issue(q_dmas(0, 0))
    A(s2("s_add_u32", "s%d" % sQa, "s%d" % sQo, "8192")); A(s2("s_add_u32", "s%d" % sQb, "s%d" % sQo, str(8192 + 4096)))
    A(s2("s_sub_u32", "s%d" % sT, "s%d" % sMS, "32768"))
    issue(q_dmas(1, 0, msgpr=sT))
    for t in range(4): issue(vd(t) + kd(t + 1))
    for t in range(5, LEAD + 1): issue(kd(t))
    A(s2("s_add_u32", "s%d" % sQo, "s%d" % sQo, "131072"))
    A(smov("s%d" % sT, str(4 * 8192))); A(smov("s%d" % (sT + 1), str(5 * 8192))); A(smov("s%d" % (sT + 2), str(6 * 8192)))
    A(smov("s%d" % sVo, str(LEAD * 8192)))
    A(v2("v_and_b32", "v5", "7", "v3")); A(v2("v_lshlrev_b32", "v6", "1", "v5"))
    for s in range(4):
        A(v2("v_add_u32", "v7", str(4 * s), "v2")); A(v2("v_xor_b32", "v7", "v7", "v6")); A(v2("v_lshlrev_b32", "v7", "4", "v7"))
        A(v3("v_lshl_add_u32", "v%d" % (KA + s), "v3", "8", "v7"))
        A(v2("v_add_u32", "v%d" % (QA + s), "s%d" % sMS, "v%d" % (KA + s)))
        A(v2("v_subrev_u32", "v%d" % (TM + s), "0x8000", "v%d" % (QA + s)))
    A(v2("v_lshrrev_b32", "v8", "2", "v0"))
    A(v2("v_and_b32", "v9", "7", "v8")); A(v2("v_lshlrev_b32", "v9", "1", "v9"))
    A(valu("v_bfe_u32 v10, v0, 1, 1", ["v0"], ["v10"]))
    A(v2("v_and_b32", "v11", "1", "v0")); A(v2("v_lshlrev_b32", "v11", "3", "v11"))
    A(v3("v_lshl_add_u32", "v11", "v8", "8", "v11")); A(v2("v_add_u32", "v11", str(LDS_V), "v11"))
    for b in range(8):
        A(v2("v_add_u32", "v7", str(2 * b), "v10")); A(v2("v_xor_b32", "v7", "v7", "v9"))
        A(v3("v_lshl_add_u32", "v%d" % (VA + b), "v7", "4", "v11"))
    A(v2("v_lshrrev_b32", "v10", "1", "v2")); A(v2("v_and_b32", "v11", "1", "v2")); A(v2("v_lshlrev_b32", "v11", "3", "v11"))
    A(v3("v_lshl_add_u32", "v11", "v3", "8", "v11")); A(v2("v_add_u32", "v11", "s%d" % sMS, "v11"))
    for j in range(4):
        A(v2("v_add_u32", "v7", str(2 * j), "v10")); A(v2("v_xor_b32", "v7", "v7", "v5"))
        A(v3("v_lshl_add_u32", "v%d" % (OW + j), "v7", "4", "v11"))
    A(v2("v_xor_b32", "v7", "v3", "v2")); A(v2("v_lshlrev_b32", "v7", "4", "v7")); A(v3("v_lshl_add_u32", "v7", "v2", "8", "v7"))
    A(v2("v_add_u32", "v%d" % OR_, "s%d" % sMS, "v7")); A(v2("v_xor_b32", "v%d" % (OR_ + 1), "64", "v%d" % OR_))
    A(v2("v_lshlrev_b32", "v%d" % OS, "4", "v0"))
    A(v2("v_and_b32", "v7", "3", "v0")); A(valu("v_cmp_eq_u32 vcc, 0, v7", ["v7"], ["vcc"])); A(v1("v_mov_b32", "v8", "0x3f803f80")); A(v1("v_mov_b32", "v9", "0"))
    A(valu("v_cndmask_b32 v7, v9, v8, vcc", ["v8", "v9", "vcc"], ["v7"]))
    for i in range(4):
        A(v1("v_accvgpr_write_b32", "a%d" % (AONE + i), "v7")); A(v1("v_accvgpr_write_b32", "a%d" % (AZERO + i), "v9"))
    A(smov("s%d" % sC, "0x%08x" % SCALE)); A(smov("s%d" % sLO, "0x%08x" % LO_BITS)); A(smov("s%d" % sRG, "0x%08x" % (HI_BITS - LO_BITS)))
    A(smov("s%d" % sBAD, "15" if cfg.force_slow else "0")); A(smov("s%d" % sUB, "1")); A(salu("s_mov_b64 s[%d:%d], 0" % (sACC, sACC + 1), [], R("s", sACC, 2)))
    A(smov("s%d" % sCNT, "3"))
    A(s2("s_add_u32", "s%d" % sOb, "s%d" % sOa, "4096"))
    A(vsite([("K", 0), ("Q", 0, 0)])); A(bar())
    qr = q_reads(AQ, 0, 0)
    for s in range(4): L += [kread(s, 0, 0), qr[s], qr[4 + s]]
    for f in range(4, 8): A(kread(f, 0, 0))
    A(lsite())
    return L

def tail_seg():
    L = []
    for it in softmax_items(1, 0, lambda q, kt: 0, lambda q: 99, lo=(cfg.e0, cfg.e0, cfg.c0)):
        L.append(it.ins)
        if it.ins.kind == "T" and it.ins.text == exp_(S_(1, 1, 1) + 3).text: L.append(nop(1))
    L.append(s2("s_add_u32", "s%d" % sOb, "s%d" % sOa, "4096"))
    L += epi_burst(0)
    gaps = [Gap(m) for m in pv_block(1, False)]
    for g, w in enumerate(o_writes(0)): gaps[g].ds.append(w)
    gaps[17].ds += o_reads(0, 0)
    for G in gaps: L += G.flat()
    L.append(nop(1))
    L += epi_burst(1)
    L.append(lsite())
    L += o_stores()
    L += o_writes(1) + o_reads(1, 0)
    L += [s2("s_add_u32", "s%d" % sOa, "s%d" % sOa, "8192"), s2("s_add_u32", "s%d" % sOb, "s%d" % sOb, "8192")]
    L += flag_ops()
    L.append(lsite())
    L += o_stores()
    return L

def slow_path():
    T = []
    A = T.append
    def emit(l):
        for x in l: A(x.text)
    def wait(): A("s_waitcnt vmcnt(0) lgkmcnt(0)");
    A("s_barrier")
    A("s_cmp_eq_u32 s%d, 0" % sBAD); A("s_cbranch_scc1 L_end")
    A("s_lshl_b32 s45, s%d, 13" % sW)
    for i in range(4): A("v_add_u32 v%d, s45, v%d" % (KA + i, KA + i))
    for i in range(8): A("v_add_u32 v%d, s45, v%d" % (VA + i, VA + i))
    A("s_add_u32 s46, s45, %d" % LDS_V)
    A("s_mul_i32 s%d, s%d, %d" % (sQo, sW, 16384 - 2048))
    A("s_lshl_b32 s%d, s%d, 14" % (sOo, sW))
    A("v_subrev_u32 v%d, s%d, v%d" % (TM + 4, sMK, DA)); A("v_subrev_u32 v%d, s%d, v%d" % (TM + 5, sMK, DB))
    A("s_mov_b32 s%d, 0" % sCNT)
    A("L_slow_unit:")
    A("s_bitcmp1_b32 s%d, 0" % sBAD); A("s_cbranch_scc0 L_slow_next")
    wait()
    for h in range(2):
        A("s_add_u32 s%d, s%d, %d" % (sQa, sQo, h * 8192)); A("s_add_u32 s%d, s%d, 4096" % (sQb, sQa))
        cur = None
        for x in q_dmas(h, 0):
            if cur != x.cmt: A(setm0(x.cmt).text); A("s_nop 0"); cur = x.cmt
            A(x.text)
        wait(); emit(q_reads(AQ + 32 * h, h, 0)); wait()
    def tile_dma(sr, m0s):
        for i in range(8):
            if i % 4 == 0:
                A("s_add_u32 m0, s%d, %d" % (m0s, (i // 4) * 4096)); A("s_add_u32 s%d, s%d, %d" % (sT, sKo, (i // 4) * 4096))
            A("buffer_load_dwordx4 v%d, %s, s%d offen offset:%d lds" % (TM + 4 + i % 2, srd(sr), sT, (i % 4) * 1024))
    def qk_all():
        emit([kread(f, 0, 0) for f in range(8)]); wait()
        emit(qk_block(0) + qk_block(1)); A("s_nop 7"); A("s_nop 3")
    for i in range(4): A("v_mov_b32 v%d, 0xff800000" % (MX + i))
    A("s_mov_b32 s%d, s%d" % (sKo, sCNT)); A("s_add_u32 s%d, s%d, 131072" % (sVo, sCNT))
    A("L_slow_p1:")
    tile_dma(sK_, 45); wait(); qk_all()
    for h in range(2):
        for q in range(2):
            a = S_(h, q, 0)
            for i in range(4): A("v_max3_f32 v%d, v%d, v%d, v%d" % (MX + 2 * h + q, a + 2 * i, a + 2 * i + 1, MX + 2 * h + q))
    A("s_add_u32 s%d, s%d, 8192" % (sKo, sKo)); A("s_cmp_lt_u32 s%d, s%d" % (sKo, sVo)); A("s_cbranch_scc1 L_slow_p1")
    for op in ("v_permlane32_swap_b32", "v_permlane16_swap_b32"):
        for i in range(4): A("v_mov_b32 v%d, v%d" % (NM + i, MX + i))
        A("s_nop 1")
        for i in range(4): A("%s v%d, v%d" % (op, NM + i, MX + i))
        A("s_nop 1")
        for i in range(4): A("v_max_f32 v%d, v%d, v%d" % (MX + i, MX + i, NM + i))
    for i in range(4): A("v_mul_f32 v%d, s%d, v%d" % (NM + i, sC, MX + i))
    for i in range(128): A("v_mov_b32 v%d, 0" % (OB + i))
    for i in range(16): A("v_accvgpr_write_b32 a%d, 0" % (AL + i))
    A("s_mov_b32 s%d, s%d" % (sKo, sCNT))
    A("L_slow_p2:")
    tile_dma(sK_, 45); tile_dma(sV_, 46); wait(); qk_all()
    emit([vread(b, jj, 0, 0) for b in range(4) for jj in range(2)])
    for h in range(2):
        for q in range(2):
            a = S_(h, q, 0)
            for i in range(8): A("v_fma_f32 v%d, v%d, s%d, -v%d" % (a + i, a + i, sC, NM + 2 * h + q))
            for i in range(8): A("v_exp_f32 v%d, v%d" % (a + i, a + i))
            A("s_nop 0")
            for i in range(4): A(cvt_(P_(h, q) + i, a + 2 * i, a + 2 * i + 1).text)
    emit([vread(b, jj, 0, 0) for b in range(4, 8) for jj in range(2)])
    wait()
    emit(pv_block(0, False) + pv_block(1, False))
    A("s_add_u32 s%d, s%d, 8192" % (sKo, sKo)); A("s_cmp_lt_u32 s%d, s%d" % (sKo, sVo)); A("s_cbranch_scc1 L_slow_p2")
    A("s_nop 7"); A("s_nop 3")
    for h in range(2):
        emit(epi_burst(h, check=False)); emit(o_writes(h) + o_reads(h, 0))
        A("s_add_u32 s%d, s%d, %d" % (sOa, sOo, h * 8192)); A("s_add_u32 s%d, s%d, 4096" % (sOb, sOa))
        wait(); emit(o_stores()); wait()
    A("L_slow_next:")
    A("s_lshr_b32 s%d, s%d, 1" % (sBAD, sBAD))
    for r in (sCNT, sQo, sOo): A("s_add_u32 s%d, s%d, 131072" % (r, r))
    A("s_cmp_lg_u32 s%d, 0" % sBAD); A("s_cbranch_scc1 L_slow_unit")
    return T

def stamp():
    if not cfg.stamp: return []
    return [raw("s_memtime s[58:59]"), raw("s_memrealtime s[60:61]"), raw("s_waitcnt lgkmcnt(0)"),
            raw("s_mov_b32 m0, s57"), raw("s_nop 0"), raw("v_writelane_b32 v62, s58, m0"), raw("v_writelane_b32 v63, s60, m0"), raw("s_add_u32 s57, s57, 1")]
def stamp_out():
    if not cfg.stamp: return []
    return [x.text for x in stamp()] + ["s_load_dwordx2 s[36:37], s[0:1], 40", "s_waitcnt lgkmcnt(0)", "s_mov_b32 s38, 0x1000000", "s_mov_b32 s39, 0x20000",
            "s_lshl_b32 s45, s2, 2", "s_add_u32 s45, s45, s%d" % sW, "s_lshl_b32 s45, s45, 9", "v_lshrrev_b32 v61, 2, v%d" % OS,
            "buffer_store_dword v62, v61, s[36:39], s45 offen", "buffer_store_dword v63, v61, s[36:39], s45 offen offset:256"]
def main():
    sgs = {"it0f": build_iter(0, True)}
    for t in range(16): sgs["it%d" % t] = build_iter(t)
    def segs():
        d = {"pro": pro, "tail": tl}
        for k, s in sgs.items(): d[k] = flat(s)
        return d
    pro = prologue(); tl = tail_seg()
    if cfg.stamp:
        pro[2:2] = [raw("s_mov_b32 s57, 0")] + stamp()
        i = [k for k, x in enumerate(pro) if x.kind == "BAR"][0]
        pro[i + 1:i + 1] = stamp()
        for t in range(0, 16, cfg.stamp): sgs["it%d" % t].head[0:0] = stamp()
        tl[0:0] = stamp()
    trace = [("pro", dict(T=0, u=0)), ("it0f", dict(T=0, u=0))]
    for u in range(4):
        for t in range(16):
            if (u, t) != (0, 0): trace.append(("it%d" % t, dict(T=16 * u + t, u=u)))
    trace.append(("tail", dict(T=64, u=3)))
    sgs["it0f"].tail.append(raw("s_branch L_it1", "BR"))
    sgs["it15"].tail += [s2("s_sub_u32", "s%d" % sCNT, "s%d" % sCNT, "1"), raw("s_cbranch_scc0 L_it0", "BR")]
    insert_waits(segs(), trace)
    for k, s in sgs.items():
        br = [x for x in s.tail if x.kind == "BR" or "s_sub_u32 s%d" % sCNT in x.text]
        s.tail = [x for x in s.tail if x not in br]
        place_scalar(s)
        s.tail += br
    fs = {k: finalize(v) for k, v in segs().items()}
    errs = verify(fs, trace, {"K": 8, "V": 16, "Q": 8, "O": 8})
    for e in errs[:40]: sys.stderr.write("ERR " + e + "\n")
    tot = 0
    for k in ["pro", "it0f"] + ["it%d" % t for t in range(16)] + ["tail"]:
        est = issue_estimate(fs[k]); sys.stderr.write("%s:%d " % (k, est))
        if k.startswith("it") and k != "it0f": tot += est
    sys.stderr.write("\nunit estimate %d cycles, errors %d\n" % (tot, len(errs)))
    out = []
    hdr = open(os.path.join(os.path.dirname(os.path.abspath(__file__)), "..", "cdna_kernels", NAME + ".s.ref")).read().split("; Override")[0]
    out.append(hdr.rstrip())
    out.append("; @launch grid=(256,1,1) block=(256,1,1) lds=163840")
    out.append('.amdgcn_target "amdgcn-amd-amdhsa--gfx950"\n.text\n.globl %s_kernel\n.p2align 8\n.type %s_kernel,@function\n%s_kernel:' % (NAME, NAME, NAME))
    def dump(k):
        out.append("; ---- " + k)
        for x in fs[k]: out.append("  " + x.text)
    dump("pro"); dump("it0f")
    out.append(".p2align 6\nL_it0:"); dump("it0"); out.append("L_it1:")
    for t in range(1, 16): dump("it%d" % t)
    dump("tail")
    if cfg.stamp:
        out.append("  s_waitcnt vmcnt(0)")
        out += ["  " + x for x in stamp_out()]
    out += ["  " + x if not x.endswith(":") else x for x in slow_path()]
    out.append("L_end:\n  s_endpgm")
    out.append('.section .rodata,"a"\n.p2align 6\n.amdhsa_kernel %s_kernel' % NAME)
    out.append("  .amdhsa_next_free_vgpr 512\n  .amdhsa_next_free_sgpr 64\n  .amdhsa_accum_offset 256\n  .amdhsa_group_segment_fixed_size 0\n  .amdhsa_kernarg_size 48\n  .amdhsa_user_sgpr_count 2\n  .amdhsa_user_sgpr_kernarg_segment_ptr 1\n  .amdhsa_system_sgpr_workgroup_id_x 1\n.end_amdhsa_kernel")
    open(sys.argv[1], "w").write("\n".join(out) + "\n")
    if errs: sys.exit(1)
main()
```

```python
import sys, os, struct, math
from core import *

class Cfg:
    barper = 2
    finchk = 1
    lat = 7
    kv_aux = ""
    q_aux = ""
    o_aux = ""
    e0 = 10; c0 = 4; f0 = 5
    force_slow = 0
    stamp = 0
    dbgspan = 0
    lag = 1.5
    rdy = 5
cfg = Cfg()
for a in sys.argv[2:]:
    k, v = a.split("=")
    setattr(cfg, k, type(getattr(cfg, k))(v))

NAME = "standalone__mha_softmax__near_ridge"
KA = 16; VA = 20; DA = 28; DB = 29; QA = 30; OW = 34; OR_ = 38; OS = 40
ET = 42; ER = 44; EU = 48
MX = 50; NM = 54; TM = 58
PB = 80; SB = 96; OB = 128
def S_(h, q, kt): return SB + 16 * h + 8 * q + 4 * kt
def P_(h, q): return PB + 8 * h + 4 * q
def O_(qt, b): return OB + 32 * qt + 4 * b
AQ = 0; AQN = 64; AK = 96; AV = 128; AO = 160; AL = 192; AONE = 208; AZERO = 212; ACHK = 216
sQ_, sK_, sV_, sO_ = 4, 8, 12, 16
sW = 20; sKo = 21; sVo = 22; sMK = 23; sMV = 24; sQo = 25; sOo = 26; sC = 27; sBAD = 28; sUB = 29; sACC = 30; sCMP = 32
sLO = 34; sRG = 35; sMS = 44; sCNT = 47; sONR = 48; sQa = 50; sQb = 51; sOa = 52; sOb = 53; sT = 54
LDS_V = 65536; LDS_S = 131072
SCALE = struct.unpack("<I", struct.pack("<f", math.log2(math.e) / math.sqrt(128.0)))[0]
LO_BITS = (127 - (40 if cfg.finchk else 24)) << 23
HI_BITS = (127 + (40 if cfg.finchk else 24)) << 23

def srd(b): return "s[%d:%d]" % (b, b + 3)
def srdr(b): return R("s", b, 4)

def v2(op, d, a, b, kind="V"):
    rd = [x for x in (a, b) if isinstance(x, str) and x[0] in "vsa" and x[1:].isdigit()]
    return valu("%s %s, %s, %s" % (op, d, a, b), rd, [d], kind)
def v1(op, d, a, kind="V"):
    rd = [a] if isinstance(a, str) and a[0] in "vsa" and a[1:].isdigit() else []
    return valu("%s %s, %s" % (op, d, a), rd, [d], kind)
def v3(op, d, a, b, c):
    rd = [x for x in (a, b, c) if isinstance(x, str) and x[0] in "vsa" and x[1:].isdigit()]
    return valu("%s %s, %s, %s, %s" % (op, d, a, b, c), rd, [d])
def s2(op, d, a, b):
    rd = [x for x in (a, b) if isinstance(x, str) and (x[0] == "s" or x == "m0")]
    return salu("%s %s, %s, %s" % (op, d, a, b), rd, [d, "scc"])
def smov(d, a):
    return salu("s_mov_b32 %s, %s" % (d, a), [a] if isinstance(a, str) and a[0] == "s" else [], [d])
def mul_(r): return v2("v_mul_f32", "v%d" % r, "s%d" % sC, "v%d" % r)
def exp_(r): return v1("v_exp_f32", "v%d" % r, "v%d" % r, "T")
def cvt_(d, a, b): return v2("v_cvt_pk_bf16_f32", "v%d" % d, "v%d" % a, "v%d" % b)
def dsr128(dp, d, addr, off, tag):
    assert 0 <= off < 65536
    return Ins("ds_read_b128 %s, v%d offset:%d" % (rng(dp, d, 4), addr, off), "D", ["v%d" % addr], R(dp, d, 4), tag=tag)
def dstr(d, addr, off, tag):
    assert 0 <= off < 65536
    return Ins("ds_read_b64_tr_b16 %s, v%d offset:%d" % (rng("a", d, 2), addr, off), "D", ["v%d" % addr], R("a", d, 2), tag=tag)
def dsw64(addr, src, off):
    return Ins("ds_write_b64 v%d, %s offset:%d" % (addr, rng("v", src, 2), off), "W", ["v%d" % addr] + R("v", src, 2), [])
def dma(voff, sr, soff, off, tag, m0, aux=""):
    i = Ins("buffer_load_dwordx4 v%d, %s, s%d offen offset:%d %slds" % (voff, srd(sr), soff, off, aux + " " if aux else ""), "X",
            ["v%d" % voff, "s%d" % soff, "m0"] + srdr(sr), [], tag=tag)
    i.cmt = m0
    return i
def store(src, soff, off, tag=None):
    return Ins("buffer_store_dwordx4 %s, v%d, %s, s%d offen offset:%d%s" % (rng("a", src, 4), OS, srd(sO_), soff, off, " " + cfg.o_aux if cfg.o_aux else ""), "X",
               R("a", src, 4) + ["v%d" % OS, "s%d" % soff] + srdr(sO_), [], tag=tag)
def setm0(m0):
    return s2("s_add_u32", "m0", "s%d" % m0[0], str(m0[1]))

def qk_block(h):
    L = []
    for f in range(8):
        kt, s = f // 4, f % 4
        for q in range(2):
            L.append(mfma("v", S_(h, q, kt), "a", AK + 4 * f, "a", AQ + 16 * (2 * h + q) + 4 * s, czero=(s == 0)))
    return L
def pvpos(b, q): return 2 * b + q + (1 if b >= 3 else 0) + (1 if b >= 6 else 0)
def pv_block(h, first):
    L = []
    for b in range(8):
        for q in range(2):
            L.append(mfma("v", O_(2 * h + q, b), "a", AV + 4 * b, "v", P_(h, q), czero=first))
        if b in (2, 5):
            q = b // 4
            L.append(mfma("a", AL + 4 * (2 * h + q), "a", AONE, "v", P_(h, q), czero=first))
    return L

class Item:
    def __init__(self, ins, ready, dead, target, deps=()):
        self.ins = ins; self.ready = ready; self.dead = dead; self.target = target; self.deps = list(deps); self.gap = None
        k = ins.kind
        self.cost = 8 if k in ("T", "X") else 4
class Gap:
    def __init__(self, m):
        self.pre = []; self.m = m; self.sh = [lsite()]; self.ds = []; self.va = []
    def flat(self): return self.pre + [self.m] + self.sh + self.ds + self.va

def schedule(gaps, items, name):
    n = len(gaps)
    todo = sorted(items, key=lambda i: (i.target, i.dead))
    for g in range(n):
        G = gaps[g]
        def ok(it):
            if it.ready > g: return False
            for d, dist in it.deps:
                if d.gap is None or d.gap + dist > g: return False
            return True
        def place(it):
            it.gap = g; todo.remove(it)
            (G.ds if it.ins.kind in ("D", "W", "X") else G.va).append(it.ins)
        def fits(it, used):
            k = it.ins.kind
            if any(x.kind == "X" for x in G.ds): return False
            if k == "X": return used == 0
            return True
        used = 0
        for it in [x for x in todo if x.dead <= g]:
            if ok(it) and fits(it, used): place(it); used += it.cost
        while used < 8:
            c = [it for it in todo if ok(it) and fits(it, used) and it.cost <= 8 - used]
            if not c: break
            it = c[0]
            if used == 0 and it.cost == 4:
                four = [x for x in c[1:] if x.cost == 4 or False]
                dep_next = [x for x in todo if x.cost == 4 and x is not it and x.ready <= g and all((d.gap is not None and d.gap + dist <= g) or (d is it and dist == 0) for d, dist in x.deps)]
                eight = [x for x in c if x.cost == 8]
                if not dep_next and eight and it.dead > g: it = eight[0]
            place(it); used += it.cost
        c = [it for it in todo if ok(it) and fits(it, used) and it.cost == 4 and it.target < g - cfg.lag]
        if c and used > 0:
            place(c[0]); used += 4
        while True:
            over = False
            dem = 0
            for it in sorted(todo, key=lambda i: min(i.dead, n - 1)):
                dem += 12 if it.ins.kind == "X" else it.cost
                d = min(it.dead, n - 1)
                if dem > 12 * (d - g): over = True; break
            if not over: break
            c = sorted([it for it in todo if ok(it) and fits(it, used)], key=lambda i: (min(i.dead, n - 1), i.target))
            if not c: break
            place(c[0]); used += c[0].cost
    if todo:
        raise Exception("%s: unscheduled items: %s" % (name, [(i.ins.text, i.ready, i.dead) for i in todo]))
    for it in items:
        if it.gap > it.dead: raise Exception("%s: deadline miss %s gap %d > %d" % (name, it.ins.text, it.gap, it.dead))

def softmax_items(h, base, rdy, dead, lo=(0, 0, 0), hi=(16, 16, 8), carry=None):
    its = []; M = {}; E = {}
    def reg(e):
        grp = e // 4; q = grp % 2; kt = grp // 2
        return q, kt, S_(h, q, kt) + e % 4
    for e in range(lo[0], hi[0]):
        q, kt, r = reg(e)
        M[e] = Item(mul_(r), rdy(q, kt), dead(q) - 2, base + 2 * e); its.append(M[e])
    for e in range(lo[1], hi[1]):
        q, kt, r = reg(e)
        E[e] = Item(exp_(r), rdy(q, kt), dead(q) - 1, base + 2 * e + 1, [(M[e], 0)] if e in M else []); its.append(E[e])
    for j in range(lo[2], hi[2]):
        q, kt, r = reg(2 * j)
        deps = [(E[e], 1) for e in (2 * j, 2 * j + 1) if e in E]
        its.append(Item(cvt_(P_(h, q) + 2 * kt + j % 2, r, r + 1), rdy(q, kt), dead(q), base + 4 * j + 4, deps))
    return its

def kread(f, slot, dT):
    return dsr128("a", AK + 4 * f, KA + f % 4, slot * 8192 + (f // 4) * 4096, ("K", dT))
def vread(b, jj, slot, dT):
    return dstr(AV + 4 * b + 2 * jj, VA + b, slot * 8192 + jj * 4096, ("V", dT))
def kv_dmas(t, lead):
    ks = (t + lead + 1) % 8; vs = (t + lead) % 8
    return [dma(DA, sK_, sKo, 0, ("K", lead + 1), (sMK, ks * 8192), cfg.kv_aux), dma(DB, sK_, sKo, 1024, ("K", lead + 1), (sMK, ks * 8192), cfg.kv_aux),
            dma(DA, sV_, sVo, 0, ("V", lead), (sMV, vs * 8192), cfg.kv_aux), dma(DB, sV_, sVo, 1024, ("V", lead), (sMV, vs * 8192), cfg.kv_aux)]
def q_dmas(h, du, msgpr=sMS, mconst=0):
    return [dma(DA if i % 2 == 0 else DB, sQ_, sQa if i < 4 else sQb, (i % 4) * 1024, ("Q", h, du), (msgpr, mconst + (i // 4) * 4096), cfg.q_aux) for i in range(8)]
def q_reads(dst, h, du, addr=QA):
    return [dsr128("a", dst + 16 * q + 4 * s, addr + s, q * 4096, ("Q", h, du)) for q in range(2) for s in range(4)]

def epi_burst(h, check=True):
    L = []
    for q in range(2): L.append(v1("v_accvgpr_read_b32", "v%d" % (ET + q), "a%d" % (AL + 4 * (2 * h + q))))
    for q in range(2): L.append(v1("v_rcp_f32", "v%d" % (ER + 2 * q), "v%d" % (ET + q), "T"))
    if check:
        for q in range(2): L.append(v2("v_subrev_u32", "v%d" % (EU + q), "s%d" % sLO, "v%d" % (ET + q)))
        L.append(valu("v_cmp_le_u32 vcc, s%d, v%d" % (sRG, EU), ["s%d" % sRG, "v%d" % EU], ["vcc"]))
        L.append(valu("v_cmp_le_u32 s[%d:%d], s%d, v%d" % (sCMP, sCMP + 1, sRG, EU + 1), ["s%d" % sRG, "v%d" % (EU + 1)], R("s", sCMP, 2)))
    else:
        L.append(nop(1))
    for q in range(2):
        for b in range(8):
            for i in range(2):
                a = O_(2 * h + q, b) + 2 * i
                L.append(valu("v_pk_mul_f32 v[%d:%d], v[%d:%d], v[%d:%d] op_sel_hi:[1,0]" % (a, a + 1, a, a + 1, ER + 2 * q, ER + 2 * q + 1),
                              R("v", a, 2) + ["v%d" % (ER + 2 * q)], R("v", a, 2), "K"))
    if check:
        L.append(salu("s_or_b64 s[%d:%d], s[%d:%d], vcc" % (sACC, sACC + 1, sACC, sACC + 1), ["vcc"] + R("s", sACC, 2), R("s", sACC, 2)))
        L.append(salu("s_or_b64 s[%d:%d], s[%d:%d], s[%d:%d]" % (sACC, sACC + 1, sACC, sACC + 1, sCMP, sCMP + 1), R("s", sCMP, 2) + R("s", sACC, 2), R("s", sACC, 2)))
    for q in range(2):
        for bp in range(4):
            a = O_(2 * h + q, 2 * bp)
            for i in range(4): L.append(cvt_(a + i, a + 2 * i, a + 2 * i + 1))
            if check and cfg.finchk and (q, bp) != (0, 0):
                pa = a - 8
                L.append(mfma("a", ACHK, "a", AZERO, "v", pa, czero=(h == 0 and (q, bp) == (0, 1))))
    if check and cfg.finchk:
        L.append(nop(2))
        L.append(mfma("a", ACHK, "a", AZERO, "v", O_(2 * h + 1, 6)))
    return L
def flag_ops():
    L = []
    if cfg.finchk:
        L.append(v1("v_accvgpr_read_b32", "v%d" % ET, "a%d" % ACHK))
        L.append(valu("v_cmp_u_f32 vcc, v%d, v%d" % (ET, ET), ["v%d" % ET], ["vcc"]))
        L.append(nop(2))
        L.append(salu("s_or_b64 s[%d:%d], s[%d:%d], vcc" % (sACC, sACC + 1, sACC, sACC + 1), ["vcc"] + R("s", sACC, 2), R("s", sACC, 2)))
    L.append(salu("s_cmp_lg_u64 s[%d:%d], 0" % (sACC, sACC + 1), R("s", sACC, 2), ["scc"]))
    L.append(salu("s_cselect_b32 s%d, s%d, 0" % (sT, sUB), ["scc", "s%d" % sUB], ["s%d" % sT]))
    L.append(s2("s_or_b32", "s%d" % sBAD, "s%d" % sBAD, "s%d" % sT))
    L.append(salu("s_mov_b64 s[%d:%d], 0" % (sACC, sACC + 1), [], R("s", sACC, 2)))
    L.append(s2("s_lshl_b32", "s%d" % sUB, "s%d" % sUB, "1"))
    return L
def o_writes(h):
    return [dsw64(OW + b % 4, O_(2 * h + q, b & ~1) + 2 * (b & 1), (b // 4) * 128 + q * 4096) for q in range(2) for b in range(8)]
def o_reads(h, du):
    return [dsr128("a", AO + 4 * j, OR_ + j % 2, j * 1024, ("O", h, du)) for j in range(8)]
def o_stores():
    return [store(AO + 4 * j, sOa if j < 4 else sOb, (j % 4) * 1024) for j in range(8)]

LEAD = 6 if cfg.barper == 2 else 7
LAT = cfg.lat
B0, B1, B2, B3, NG = 0, 16, 34, 50, 68

class Seg:
    def __init__(self): self.gaps = []; self.sitems = []; self.head = []; self.tail = []

def build_iter(t, first=False):
    sg = Seg()
    if first:
        b0, b1, b2, b3, ng = 0, None, 16, 32, 50
        mf = qk_block(0) + qk_block(1) + pv_block(0, True)
    else:
        b0, b1, b2, b3, ng = B0, B1, B2, B3, NG
        mf = qk_block(0) + pv_block(1, t == 1) + qk_block(1) + pv_block(0, t == 0)
    gaps = [Gap(m) for m in mf]
    items = []
    INF = 10 ** 6
    slot = t % 8; nslot = (t + 1) % 8
    isbar = (t % cfg.barper == 0)
    bar_gap = 14
    if not first:
        items += softmax_items(1, 48 - NG, lambda q, kt: 0, lambda q: b1 + q - 2, lo=(cfg.e0, cfg.e0, cfg.c0))
        for f in range(cfg.f0, 8):
            items.append(Item(kread(f, slot, 0), 0, 2 * f - LAT, 57.7 + 2.48 * f - NG))
    items += softmax_items(0, (14 if not first else 12), lambda q, kt: b0 + 8 * kt + 6 + q + cfg.rdy, lambda q: b3 + q - 2)
    items += softmax_items(1, b3 - 2, lambda q, kt: b2 + 8 * kt + 6 + q + cfg.rdy, lambda q: INF, hi=(cfg.e0, cfg.e0, cfg.c0))
    for b in range(8):
        for jj in range(2):
            rdy = (b1 + pvpos(b, 1)) if not first else 16
            items.append(Item(vread(b, jj, slot, 0), max(rdy, bar_gap + 1), b3 + pvpos(b, 0) - LAT, (18 + 2.48 * (2 * b + jj)) if not first else 16 + b + jj * 0.5))
    for f in range(cfg.f0):
        items.append(Item(kread(f, nslot, 1), b2 + 2 * f + 1, INF, b3 + 7.7 + 2.48 * f))
    dm = kv_dmas(t, LEAD)
    tg = [20, 24, 28, 32] if False else [1, 5, 62, 66]
    prev = None
    def chain(lst, targets, ready, dead=INF):
        p = None; res = []
        for ins, tgt in zip(lst, targets):
            it = Item(ins, ready, dead, tgt, [(p, 1)] if p else []); items.append(it); p = it; res.append(it)
        return res
    if first:
        extra = [dma(DA, sV_, sT, 0, ("V", 4), (sMV, 4 * 8192), cfg.kv_aux), dma(DB, sV_, sT, 1024, ("V", 4), (sMV, 4 * 8192), cfg.kv_aux),
                 dma(DA, sV_, sT + 1, 0, ("V", 5), (sMV, 5 * 8192), cfg.kv_aux), dma(DB, sV_, sT + 1, 1024, ("V", 5), (sMV, 5 * 8192), cfg.kv_aux)]
        if LEAD == 7:
            extra += [dma(DA, sV_, sT + 2, 0, ("V", 6), (sMV, 6 * 8192), cfg.kv_aux), dma(DB, sV_, sT + 2, 1024, ("V", 6), (sMV, 6 * 8192), cfg.kv_aux)]
        lst = extra + dm + o_stores()
        chain(lst, [17 + 2 * i for i in range(len(lst))], 17)
    else:
        dmt = [17, 21, 62, 66] if isbar else [3, 7, 62, 66]
        kvits = chain(dm, dmt, (bar_gap + 2) if isbar else 1)
        sg.sitems.append((s2("s_add_u32", "s%d" % sKo, "s%d" % sKo, "8192"), ("after", kvits[1]), None))
        sg.sitems.append((s2("s_add_u32", "s%d" % sVo, "s%d" % sVo, "8192"), ("after", kvits[3]), None))
    if first:
        sg.tail += [s2("s_add_u32", "s%d" % sKo, "s%d" % sKo, "8192"), s2("s_add_u32", "s%d" % sVo, "s%d" % sVo, "8192")]
    if isbar:
        needs = [("V", 0), ("K", 1)] + ([("V", 1), ("K", 2)] if cfg.barper == 2 else [])
        if not first:
            gaps[bar_gap - 1].sh.append(vsite(needs))
            gaps[bar_gap].sh.append(bar())
        else:
            al = lsite(); al.needs = "all"
            gaps[15].sh += [al, vsite(needs), bar()]
    if first:
        gaps[5].sh.append(vsite([("Q", 1, 0)]))
        for i, ins in enumerate(q_reads(AQ + 32, 1, 0, addr=TM)):
            items.append(Item(ins, 6, 14, 6 + i))
    def o_path(h, w_ready, w_dead, du, lo=0, hi=32):
        ops = o_writes(h) + o_reads(h, du) + o_stores()
        return ops
    if not first and t == 0:
        gaps[0].pre += epi_burst(0)
        W = chain(o_writes(0), [0.5 + 1.3 * i for i in range(16)], 0, 40)
        Rr = []
        for j, ins in enumerate(o_reads(0, -1)):
            it = Item(ins, 0, 47, 22 + 1.5 * j, [(W[15], 0)] + ([(Rr[-1], 0)] if Rr else [])); items.append(it); Rr.append(it)
        p = None
        for j, ins in enumerate(o_stores()):
            it = Item(ins, 0, INF, 36 + 3.5 * j, [(Rr[j], LAT)] + ([(p, 1)] if p else [])); items.append(it); p = it
        sg.head += [s2("s_add_u32", "s%d" % sOb, "s%d" % sOa, "4096")]
        gaps[b3].pre += epi_burst(1)
        chain(o_writes(1)[:10], [b3 + 0.5 + 1.7 * i for i in range(10)], b3)
        sg.sitems.append((s2("s_add_u32", "s%d" % sOa, "s%d" % sOa, "8192"), ("after", p), None))
        sg.sitems.append((s2("s_add_u32", "s%d" % sOb, "s%d" % sOb, "8192"), ("after", p), None))
        for i in range(16, 32):
            items.append(Item(v1("v_accvgpr_mov_b32", "a%d" % (AQ + 32 + i), "a%d" % (AQN + i)), 0, b2 - 2, 2 * (i - 16)))
        gaps[b3 + 10].pre += flag_ops()
    if t == 1:
        W = chain(o_writes(1)[10:], [0.5 + 1.7 * i for i in range(6)], 0, b1 + 1)
        Rr = []
        for j, ins in enumerate(o_reads(1, -1)):
            it = Item(ins, 0, INF, 12 + 2 * j, [(W[-1], 0)] + ([(Rr[-1], 0)] if Rr else [])); items.append(it); Rr.append(it)
        p = None
        for j, ins in enumerate(o_stores()):
            it = Item(ins, 0, INF, 30 + 4 * j, [(Rr[j], LAT)] + ([(p, 1)] if p else [])); items.append(it); p = it
        sg.sitems.append((s2("s_add_u32", "s%d" % sOa, "s%d" % sOa, str(131072 - 8192)), ("after", p), None))
        sg.sitems.append((smov("s%d" % (sO_ + 2), "s%d" % sONR), ("after", p), None))
    if t in (3, 4):
        if t == 3:
            sg.head += [s2("s_add_u32", "s%d" % sQa, "s%d" % sQo, "8192"), s2("s_add_u32", "s%d" % sQb, "s%d" % sQo, str(8192 + 4096))]
        chain(q_dmas(1, 1)[4 * (t - 3):4 * (t - 3) + 4], [30, 36, 42, 48], 24, 58)
    if t == 9:
        gaps[1].sh.append(vsite([("Q", 1, 1)]))
        for i, ins in enumerate(q_reads(AQN, 1, 1)):
            items.append(Item(ins, 2, INF, 3 + 2 * i))
        al = lsite(); al.needs = "all"; gaps[ng - 1].sh.insert(1, al)
    if t in (10, 11):
        if t == 10:
            sg.head += [smov("s%d" % sQa, "s%d" % sQo), s2("s_add_u32", "s%d" % sQb, "s%d" % sQo, "4096")]
        chain(q_dmas(0, 1)[4 * (t - 10):4 * (t - 10) + 4], [30, 36, 42, 48], 24, 58)
        if t == 11: sg.tail += [s2("s_add_u32", "s%d" % sQo, "s%d" % sQo, "131072")]
    if t == 15:
        gaps[15].sh.append(vsite([("Q", 0, 1)]))
        for i, ins in enumerate(q_reads(AQ, 0, 1)):
            items.append(Item(ins, 16, ng - 1 - LAT, 17 + 5 * i))
        for i in range(16):
            items.append(Item(v1("v_accvgpr_mov_b32", "a%d" % (AQ + 32 + i), "a%d" % (AQN + i)), b3, INF, b3 + i))
    schedule(gaps, items, "it%d%s" % (t, "f" if first else ""))
    sg.gaps = gaps
    return sg

def place_scalar(sg):
    gaps = sg.gaps
    def busy(G): return sum(1 for x in G.sh if (x.kind not in ("LSITE", "VSITE")) ) + (1 if any(x.kind in ("LSITE", "VSITE") and x.n is not None for x in G.sh) else 0)
    cur = None; lastx = -1
    for g, G in enumerate(gaps):
        for x in G.ds:
            if x.kind == "X" and "m0" in x.rd:
                if cur != x.cmt:
                    cands = [k for k in range(max(lastx, 0) if lastx < 0 else lastx + 1, g)]
                    free = [k for k in cands if busy(gaps[k]) == 0]
                    if cands:
                        k = free[-1] if free else cands[-1]
                        gaps[k].sh.append(setm0(x.cmt))
                    else:
                        gaps[lastx].va.append(setm0(x.cmt))
                    cur = x.cmt
                lastx = g
    for ins, (how, it), _ in sg.sitems:
        c = [k for k in range(it.gap + 1, len(gaps)) if busy(gaps[k]) == 0]
        if c: gaps[c[0]].sh.append(ins)
        else: sg.tail.append(ins)

def flat(sg):
    L = list(sg.head)
    for G in sg.gaps: L += G.flat()
    return L + sg.tail

def prologue():
    L = []
    A = L.append
    A(raw("s_cmp_ge_u32 s2, 256")); A(raw("s_cbranch_scc1 L_end"))
    A(raw("s_load_dwordx4 s[36:39], s[0:1], 0")); A(raw("s_load_dwordx4 s[40:43], s[0:1], 16"))
    A(v2("v_lshrrev_b32", "v1", "6", "v0")); A(v2("v_and_b32", "v0", "63", "v0"))
    A(valu("v_readfirstlane_b32 s%d, v1" % sW, ["v1"], ["s%d" % sW]))
    A(v2("v_lshrrev_b32", "v2", "4", "v0"))
    A(v2("v_and_b32", "v3", "15", "v0"))
    A(raw("s_and_b32 s45, s2, 7")); A(raw("s_lshr_b32 s46, s2, 4")); A(raw("s_lshl_b32 s45, s45, 4")); A(raw("s_add_u32 s45, s45, s46"))
    A(raw("s_lshl_b32 s45, s45, 19"))
    A(raw("s_bfe_u32 s46, s2, 0x10003")); A(raw("s_lshl_b32 s46, s46, 16")); A(raw("s_add_u32 s46, s46, s45"))
    A(s2("s_lshl_b32", "s%d" % sMK, "s%d" % sW, "11"))
    A(v2("v_lshlrev_b32", "v4", "1", "v2")); A(v2("v_xor_b32", "v4", "v3", "v4")); A(v2("v_lshlrev_b32", "v4", "4", "v4"))
    A(v3("v_lshl_add_u32", "v4", "v2", "8", "v4")); A(v2("v_add_u32", "v%d" % DA, "s%d" % sMK, "v4")); A(v2("v_xor_b32", "v%d" % DB, "0x80", "v%d" % DA))
    A(s2("s_add_u32", "s%d" % sMV, "s%d" % sMK, str(LDS_V)))
    A(s2("s_lshl_b32", "s%d" % sMS, "s%d" % sW, "13")); A(s2("s_add_u32", "s%d" % sMS, "s%d" % sMS, str(LDS_S)))
    A(s2("s_mul_i32", "s%d" % sQo, "s%d" % sW, str(16384 - 2048)))
    A(s2("s_lshl_b32", "s%d" % sOa, "s%d" % sW, "14")); A(s2("s_sub_u32", "s%d" % sOa, "s%d" % sOa, str(131072 - 8192)))
    for b in (sQ_, sK_, sV_, sO_): A(smov("s%d" % (b + 3), "0x20000"))
    A(smov("s%d" % (sK_ + 2), str(4 * 131072))); A(smov("s%d" % (sV_ + 2), str(4 * 131072)))
    A(smov("s%d" % (sQ_ + 2), str(3 * 131072 + 65536))); A(smov("s%d" % sONR, str(3 * 131072 + 65536))); A(smov("s%d" % (sO_ + 2), "0"))
    A(smov("s%d" % sKo, "0")); A(smov("s%d" % sVo, "0"))
    A(raw("s_waitcnt lgkmcnt(0)"))
    for b, p, o in ((sK_, 38, 45), (sQ_, 36, 46), (sV_, 40, 45), (sO_, 42, 46)):
        A(salu("s_add_u32 s%d, s%d, s%d" % (b, p, o), [], ["s%d" % b])); A(salu("s_addc_u32 s%d, s%d, 0" % (b + 1, p + 1), [], ["s%d" % (b + 1)]))
    def issue(lst):
        cur = None
        for x in lst:
            if x.kind == "X" and cur != x.cmt:
                A(setm0(x.cmt)); A(nop(1)); cur = x.cmt
            A(x)
    def kd(t): return [dma(DA, sK_, sKo, 0, ("K", t), (sMK, t * 8192), cfg.kv_aux), dma(DB, sK_, sKo, 1024, ("K", t), (sMK, t * 8192), cfg.kv_aux), s2("s_add_u32", "s%d" % sKo, "s%d" % sKo, "8192")]
    def vd(t): return [dma(DA, sV_, sVo, 0, ("V", t), (sMV, t * 8192), cfg.kv_aux), dma(DB, sV_, sVo, 1024, ("V", t), (sMV, t * 8192), cfg.kv_aux), s2("s_add_u32", "s%d" % sVo, "s%d" % sVo, "8192")]
    issue(kd(0))
    A(smov("s%d" % sQa, "s%d" % sQo)); A(s2("s_add_u32", "s%d" % sQb, "s%d" % sQo, "4096"))
    issue(q_dmas(0, 0))
    A(s2("s_add_u32", "s%d" % sQa, "s%d" % sQo, "8192")); A(s2("s_add_u32", "s%d" % sQb, "s%d" % sQo, str(8192 + 4096)))
    A(s2("s_sub_u32", "s%d" % sT, "s%d" % sMS, "32768"))
    issue(q_dmas(1, 0, msgpr=sT))
    for t in range(4): issue(vd(t) + kd(t + 1))
    for t in range(5, LEAD + 1): issue(kd(t))
    A(s2("s_add_u32", "s%d" % sQo, "s%d" % sQo, "131072"))
    A(smov("s%d" % sT, str(4 * 8192))); A(smov("s%d" % (sT + 1), str(5 * 8192))); A(smov("s%d" % (sT + 2), str(6 * 8192)))
    A(smov("s%d" % sVo, str(LEAD * 8192)))
    A(v2("v_and_b32", "v5", "7", "v3")); A(v2("v_lshlrev_b32", "v6", "1", "v5"))
    for s in range(4):
        A(v2("v_add_u32", "v7", str(4 * s), "v2")); A(v2("v_xor_b32", "v7", "v7", "v6")); A(v2("v_lshlrev_b32", "v7", "4", "v7"))
        A(v3("v_lshl_add_u32", "v%d" % (KA + s), "v3", "8", "v7"))
        A(v2("v_add_u32", "v%d" % (QA + s), "s%d" % sMS, "v%d" % (KA + s)))
        A(v2("v_subrev_u32", "v%d" % (TM + s), "0x8000", "v%d" % (QA + s)))
    A(v2("v_lshrrev_b32", "v8", "2", "v0"))
    A(v2("v_and_b32", "v9", "7", "v8")); A(v2("v_lshlrev_b32", "v9", "1", "v9"))
    A(valu("v_bfe_u32 v10, v0, 1, 1", ["v0"], ["v10"]))
    A(v2("v_and_b32", "v11", "1", "v0")); A(v2("v_lshlrev_b32", "v11", "3", "v11"))
    A(v3("v_lshl_add_u32", "v11", "v8", "8", "v11")); A(v2("v_add_u32", "v11", str(LDS_V), "v11"))
    for b in range(8):
        A(v2("v_add_u32", "v7", str(2 * b), "v10")); A(v2("v_xor_b32", "v7", "v7", "v9"))
        A(v3("v_lshl_add_u32", "v%d" % (VA + b), "v7", "4", "v11"))
    A(v2("v_lshrrev_b32", "v10", "1", "v2")); A(v2("v_and_b32", "v11", "1", "v2")); A(v2("v_lshlrev_b32", "v11", "3", "v11"))
    A(v3("v_lshl_add_u32", "v11", "v3", "8", "v11")); A(v2("v_add_u32", "v11", "s%d" % sMS, "v11"))
    for j in range(4):
        A(v2("v_add_u32", "v7", str(2 * j), "v10")); A(v2("v_xor_b32", "v7", "v7", "v5"))
        A(v3("v_lshl_add_u32", "v%d" % (OW + j), "v7", "4", "v11"))
    A(v2("v_xor_b32", "v7", "v3", "v2")); A(v2("v_lshlrev_b32", "v7", "4", "v7")); A(v3("v_lshl_add_u32", "v7", "v2", "8", "v7"))
    A(v2("v_add_u32", "v%d" % OR_, "s%d" % sMS, "v7")); A(v2("v_xor_b32", "v%d" % (OR_ + 1), "64", "v%d" % OR_))
    A(v2("v_lshlrev_b32", "v%d" % OS, "4", "v0"))
    A(v2("v_and_b32", "v7", "3", "v0")); A(valu("v_cmp_eq_u32 vcc, 0, v7", ["v7"], ["vcc"])); A(v1("v_mov_b32", "v8", "0x3f803f80")); A(v1("v_mov_b32", "v9", "0"))
    A(valu("v_cndmask_b32 v7, v9, v8, vcc", ["v8", "v9", "vcc"], ["v7"]))
    for i in range(4):
        A(v1("v_accvgpr_write_b32", "a%d" % (AONE + i), "v7")); A(v1("v_accvgpr_write_b32", "a%d" % (AZERO + i), "v9"))
    A(smov("s%d" % sC, "0x%08x" % SCALE)); A(smov("s%d" % sLO, "0x%08x" % LO_BITS)); A(smov("s%d" % sRG, "0x%08x" % (HI_BITS - LO_BITS)))
    A(smov("s%d" % sBAD, "15" if cfg.force_slow else "0")); A(smov("s%d" % sUB, "1")); A(salu("s_mov_b64 s[%d:%d], 0" % (sACC, sACC + 1), [], R("s", sACC, 2)))
    A(smov("s%d" % sCNT, "3"))
    A(s2("s_add_u32", "s%d" % sOb, "s%d" % sOa, "4096"))
    A(vsite([("K", 0), ("Q", 0, 0)])); A(bar())
    qr = q_reads(AQ, 0, 0)
    for s in range(4): L += [kread(s, 0, 0), qr[s], qr[4 + s]]
    for f in range(4, 8): A(kread(f, 0, 0))
    A(lsite())
    return L

def tail_seg():
    L = []
    for it in softmax_items(1, 0, lambda q, kt: 0, lambda q: 99, lo=(cfg.e0, cfg.e0, cfg.c0)):
        L.append(it.ins)
        if it.ins.kind == "T" and it.ins.text == exp_(S_(1, 1, 1) + 3).text: L.append(nop(1))
    L.append(s2("s_add_u32", "s%d" % sOb, "s%d" % sOa, "4096"))
    L += epi_burst(0)
    gaps = [Gap(m) for m in pv_block(1, False)]
    for g, w in enumerate(o_writes(0)): gaps[g].ds.append(w)
    gaps[17].ds += o_reads(0, 0)
    for G in gaps: L += G.flat()
    L.append(nop(1))
    L += epi_burst(1)
    L.append(lsite())
    L += o_stores()
    L += o_writes(1) + o_reads(1, 0)
    L += [s2("s_add_u32", "s%d" % sOa, "s%d" % sOa, "8192"), s2("s_add_u32", "s%d" % sOb, "s%d" % sOb, "8192")]
    L += flag_ops()
    L.append(lsite())
    L += o_stores()
    return L

def slow_path():
    T = []
    A = T.append
    def emit(l):
        for x in l: A(x.text)
    def wait(): A("s_waitcnt vmcnt(0) lgkmcnt(0)");
    A("s_barrier")
    A("s_cmp_eq_u32 s%d, 0" % sBAD); A("s_cbranch_scc1 L_end")
    A("s_lshl_b32 s45, s%d, 13" % sW)
    for i in range(4): A("v_add_u32 v%d, s45, v%d" % (KA + i, KA + i))
    for i in range(8): A("v_add_u32 v%d, s45, v%d" % (VA + i, VA + i))
    A("s_add_u32 s46, s45, %d" % LDS_V)
    A("s_mul_i32 s%d, s%d, %d" % (sQo, sW, 16384 - 2048))
    A("s_lshl_b32 s%d, s%d, 14" % (sOo, sW))
    A("v_subrev_u32 v%d, s%d, v%d" % (TM + 4, sMK, DA)); A("v_subrev_u32 v%d, s%d, v%d" % (TM + 5, sMK, DB))
    A("s_mov_b32 s%d, 0" % sCNT)
    A("L_slow_unit:")
    A("s_bitcmp1_b32 s%d, 0" % sBAD); A("s_cbranch_scc0 L_slow_next")
    wait()
    for h in range(2):
        A("s_add_u32 s%d, s%d, %d" % (sQa, sQo, h * 8192)); A("s_add_u32 s%d, s%d, 4096" % (sQb, sQa))
        cur = None
        for x in q_dmas(h, 0):
            if cur != x.cmt: A(setm0(x.cmt).text); A("s_nop 0"); cur = x.cmt
            A(x.text)
        wait(); emit(q_reads(AQ + 32 * h, h, 0)); wait()
    def tile_dma(sr, m0s):
        for i in range(8):
            if i % 4 == 0:
                A("s_add_u32 m0, s%d, %d" % (m0s, (i // 4) * 4096)); A("s_add_u32 s%d, s%d, %d" % (sT, sKo, (i // 4) * 4096))
            A("buffer_load_dwordx4 v%d, %s, s%d offen offset:%d lds" % (TM + 4 + i % 2, srd(sr), sT, (i % 4) * 1024))
    def qk_all():
        emit([kread(f, 0, 0) for f in range(8)]); wait()
        emit(qk_block(0) + qk_block(1)); A("s_nop 7"); A("s_nop 3")
    for i in range(4): A("v_mov_b32 v%d, 0xff800000" % (MX + i))
    A("s_mov_b32 s%d, s%d" % (sKo, sCNT)); A("s_add_u32 s%d, s%d, 131072" % (sVo, sCNT))
    A("L_slow_p1:")
    tile_dma(sK_, 45); wait(); qk_all()
    for h in range(2):
        for q in range(2):
            a = S_(h, q, 0)
            for i in range(4): A("v_max3_f32 v%d, v%d, v%d, v%d" % (MX + 2 * h + q, a + 2 * i, a + 2 * i + 1, MX + 2 * h + q))
    A("s_add_u32 s%d, s%d, 8192" % (sKo, sKo)); A("s_cmp_lt_u32 s%d, s%d" % (sKo, sVo)); A("s_cbranch_scc1 L_slow_p1")
    for op in ("v_permlane32_swap_b32", "v_permlane16_swap_b32"):
        for i in range(4): A("v_mov_b32 v%d, v%d" % (NM + i, MX + i))
        A("s_nop 1")
        for i in range(4): A("%s v%d, v%d" % (op, NM + i, MX + i))
        A("s_nop 1")
        for i in range(4): A("v_max_f32 v%d, v%d, v%d" % (MX + i, MX + i, NM + i))
    for i in range(4): A("v_mul_f32 v%d, s%d, v%d" % (NM + i, sC, MX + i))
    for i in range(128): A("v_mov_b32 v%d, 0" % (OB + i))
    for i in range(16): A("v_accvgpr_write_b32 a%d, 0" % (AL + i))
    A("s_mov_b32 s%d, s%d" % (sKo, sCNT))
    A("L_slow_p2:")
    tile_dma(sK_, 45); tile_dma(sV_, 46); wait(); qk_all()
    emit([vread(b, jj, 0, 0) for b in range(4) for jj in range(2)])
    for h in range(2):
        for q in range(2):
            a = S_(h, q, 0)
            for i in range(8): A("v_fma_f32 v%d, v%d, s%d, -v%d" % (a + i, a + i, sC, NM + 2 * h + q))
            for i in range(8): A("v_exp_f32 v%d, v%d" % (a + i, a + i))
            A("s_nop 0")
            for i in range(4): A(cvt_(P_(h, q) + i, a + 2 * i, a + 2 * i + 1).text)
    emit([vread(b, jj, 0, 0) for b in range(4, 8) for jj in range(2)])
    wait()
    emit(pv_block(0, False) + pv_block(1, False))
    A("s_add_u32 s%d, s%d, 8192" % (sKo, sKo)); A("s_cmp_lt_u32 s%d, s%d" % (sKo, sVo)); A("s_cbranch_scc1 L_slow_p2")
    A("s_nop 7"); A("s_nop 3")
    for h in range(2):
        emit(epi_burst(h, check=False)); emit(o_writes(h) + o_reads(h, 0))
        A("s_add_u32 s%d, s%d, %d" % (sOa, sOo, h * 8192)); A("s_add_u32 s%d, s%d, 4096" % (sOb, sOa))
        wait(); emit(o_stores()); wait()
    A("L_slow_next:")
    A("s_lshr_b32 s%d, s%d, 1" % (sBAD, sBAD))
    for r in (sCNT, sQo, sOo): A("s_add_u32 s%d, s%d, 131072" % (r, r))
    A("s_cmp_lg_u32 s%d, 0" % sBAD); A("s_cbranch_scc1 L_slow_unit")
    return T

def stamp():
    if not cfg.stamp: return []
    return [raw("s_memtime s[58:59]"), raw("s_memrealtime s[60:61]"), raw("s_waitcnt lgkmcnt(0)"),
            raw("s_mov_b32 m0, s57"), raw("s_nop 0"), raw("v_writelane_b32 v62, s58, m0"), raw("v_writelane_b32 v63, s60, m0"), raw("s_add_u32 s57, s57, 1")]
def stamp_out():
    if not cfg.stamp: return []
    return [x.text for x in stamp()] + ["s_load_dwordx2 s[36:37], s[0:1], 40", "s_waitcnt lgkmcnt(0)", "s_mov_b32 s38, 0x1000000", "s_mov_b32 s39, 0x20000",
            "s_lshl_b32 s45, s2, 2", "s_add_u32 s45, s45, s%d" % sW, "s_lshl_b32 s45, s45, 9", "v_lshrrev_b32 v61, 2, v%d" % OS,
            "buffer_store_dword v62, v61, s[36:39], s45 offen", "buffer_store_dword v63, v61, s[36:39], s45 offen offset:256"]
def main():
    sgs = {"it0f": build_iter(0, True)}
    for t in range(16): sgs["it%d" % t] = build_iter(t)
    def segs():
        d = {"pro": pro, "tail": tl}
        for k, s in sgs.items(): d[k] = flat(s)
        return d
    pro = prologue(); tl = tail_seg()
    if cfg.dbgspan:
        pro[2:2] = [raw("s_memrealtime s[60:61]"), raw("s_memtime s[62:63]"), raw("s_waitcnt lgkmcnt(0)"), raw("s_mov_b32 s56, s60"), raw("s_mov_b32 s57, s62")]
        i = [k for k, x in enumerate(pro) if x.kind == "BAR"][0]
        pro[i + 1:i + 1] = [raw("s_memrealtime s[58:59]")]
    if cfg.stamp:
        pro[2:2] = [raw("s_mov_b32 s57, 0")] + stamp()
        i = [k for k, x in enumerate(pro) if x.kind == "BAR"][0]
        pro[i + 1:i + 1] = stamp()
        for t in range(0, 16, cfg.stamp): sgs["it%d" % t].head[0:0] = stamp()
        tl[0:0] = stamp()
    trace = [("pro", dict(T=0, u=0)), ("it0f", dict(T=0, u=0))]
    for u in range(4):
        for t in range(16):
            if (u, t) != (0, 0): trace.append(("it%d" % t, dict(T=16 * u + t, u=u)))
    trace.append(("tail", dict(T=64, u=3)))
    sgs["it0f"].tail.append(raw("s_branch L_it1", "BR"))
    sgs["it15"].tail += [s2("s_sub_u32", "s%d" % sCNT, "s%d" % sCNT, "1"), raw("s_cbranch_scc0 L_it0", "BR")]
    insert_waits(segs(), trace)
    for k, s in sgs.items():
        br = [x for x in s.tail if x.kind == "BR" or "s_sub_u32 s%d" % sCNT in x.text]
        s.tail = [x for x in s.tail if x not in br]
        place_scalar(s)
        s.tail += br
    fs = {k: finalize(v) for k, v in segs().items()}
    errs = verify(fs, trace, {"K": 8, "V": 16, "Q": 8, "O": 8})
    for e in errs[:40]: sys.stderr.write("ERR " + e + "\n")
    tot = 0
    for k in ["pro", "it0f"] + ["it%d" % t for t in range(16)] + ["tail"]:
        est = issue_estimate(fs[k]); sys.stderr.write("%s:%d " % (k, est))
        if k.startswith("it") and k != "it0f": tot += est
    sys.stderr.write("\nunit estimate %d cycles, errors %d\n" % (tot, len(errs)))
    out = []
    hdr = open(os.path.join(os.path.dirname(os.path.abspath(__file__)), "..", "cdna_kernels", NAME + ".s.ref")).read().split("; Override")[0]
    out.append(hdr.rstrip())
    out.append("; @launch grid=(256,1,1) block=(256,1,1) lds=163840")
    out.append('.amdgcn_target "amdgcn-amd-amdhsa--gfx950"\n.text\n.globl %s_kernel\n.p2align 8\n.type %s_kernel,@function\n%s_kernel:' % (NAME, NAME, NAME))
    def dump(k):
        out.append("; ---- " + k)
        for x in fs[k]: out.append("  " + x.text)
    dump("pro"); dump("it0f")
    out.append(".p2align 6\nL_it0:"); dump("it0"); out.append("L_it1:")
    for t in range(1, 16): dump("it%d" % t)
    dump("tail")
    if cfg.dbgspan:
        out += ["  " + x for x in ["s_waitcnt vmcnt(0)", "s_memrealtime s[60:61]", "s_memtime s[62:63]", "s_load_dwordx2 s[36:37], s[0:1], 32", "s_waitcnt lgkmcnt(0)", "s_mov_b32 s38, 256", "s_mov_b32 s39, 0x20000",
            "s_not_b32 s45, s56", "v_mov_b32 v2, s45", "v_mov_b32 v3, s58", "v_mov_b32 v4, s60", "v_mov_b32 v5, s56", "s_not_b32 s45, s60", "v_mov_b32 v6, s45", "s_sub_u32 s45, s62, s57", "v_mov_b32 v7, s45", "v_mov_b32 v1, 0",
            "s_mov_b64 exec, 1",
            "buffer_atomic_umax v2, v1, s[36:39], 0 offen", "buffer_atomic_umax v3, v1, s[36:39], 0 offen offset:4", "buffer_atomic_umax v4, v1, s[36:39], 0 offen offset:8",
            "buffer_atomic_umax v5, v1, s[36:39], 0 offen offset:12", "buffer_atomic_umax v6, v1, s[36:39], 0 offen offset:16", "buffer_atomic_umax v7, v1, s[36:39], 0 offen offset:20", "s_mov_b64 exec, -1"]]
    if cfg.stamp:
        out.append("  s_waitcnt vmcnt(0)")
        out += ["  " + x for x in stamp_out()]
    out += ["  " + x if not x.endswith(":") else x for x in slow_path()]
    out.append("L_end:\n  s_endpgm")
    out.append('.section .rodata,"a"\n.p2align 6\n.amdhsa_kernel %s_kernel' % NAME)
    out.append("  .amdhsa_next_free_vgpr 512\n  .amdhsa_next_free_sgpr 64\n  .amdhsa_accum_offset 256\n  .amdhsa_group_segment_fixed_size 0\n  .amdhsa_kernarg_size 48\n  .amdhsa_user_sgpr_count 2\n  .amdhsa_user_sgpr_kernarg_segment_ptr 1\n  .amdhsa_system_sgpr_workgroup_id_x 1\n.end_amdhsa_kernel")
    open(sys.argv[1], "w").write("\n".join(out) + "\n")
    if errs: sys.exit(1)
main()
```

```python
import sys, os, struct, math
from core import *

class Cfg:
    barper = 2
    finchk = 1
    lat = 7
    kv_aux = ""
    q_aux = ""
    o_aux = ""
    e0 = 10; c0 = 4; f0 = 5
    force_slow = 0
    hmap = 1
    rot = 0
    xmap = 0
    stamp = 0
    stamp3 = 0
    stamp2 = 0
    nocomp = 0
    nomem = 0
    nostore = 0
    dbgspan = 0
    lag = 1.5
    lead = 6
    qa0 = 2
    early = 0
    fbar = 22
    rdy = 5
cfg = Cfg()
for a in sys.argv[2:]:
    k, v = a.split("=")
    setattr(cfg, k, type(getattr(cfg, k))(v))

NAME = "standalone__mha_softmax__near_ridge"
KA = 16; VA = 20; DA = 28; DB = 29; QA = 30; OW = 34; OS = 40; OR_ = 64
ET = 42; ER = 44; EU = 48
MX = 50; NM = 54; TM = 58
PB = 80; SB = 96; OB = 128
def S_(h, q, kt): return SB + 16 * h + 8 * q + 4 * kt
def P_(h, q): return PB + 8 * h + 4 * q
def O_(qt, b): return OB + 32 * qt + 4 * b
AQ = 0; AQN = 64; AK = 96; AV = 128; AO = 160; AL = 224; AONE = 240; AZERO = 244; ACHK = 248
sQ_, sK_, sV_, sO_ = 4, 8, 12, 16
sW = 20; sKo = 21; sVo = 22; sMK = 23; sMV = 24; sQo = 25; sOo = 26; sC = 27; sBAD = 28; sUB = 29; sACC = 30; sCMP = 32
sLO = 34; sRG = 35; sMS = 44; sCNT = 47; sONR = 48; sQa = 50; sQb = 51; sOa = 52; sOb = 53; sT = 54; sKt = 55; sVt = 56; sKb = 62; sVb = 63
LDS_V = 65536; LDS_S = 131072
SCALE = struct.unpack("<I", struct.pack("<f", math.log2(math.e) / math.sqrt(128.0)))[0]
LO_BITS = (127 - (40 if cfg.finchk else 24)) << 23
HI_BITS = (127 + (40 if cfg.finchk else 24)) << 23

def srd(b): return "s[%d:%d]" % (b, b + 3)
def srdr(b): return R("s", b, 4)

def v2(op, d, a, b, kind="V"):
    rd = [x for x in (a, b) if isinstance(x, str) and x[0] in "vsa" and x[1:].isdigit()]
    return valu("%s %s, %s, %s" % (op, d, a, b), rd, [d], kind)
def v1(op, d, a, kind="V"):
    rd = [a] if isinstance(a, str) and a[0] in "vsa" and a[1:].isdigit() else []
    return valu("%s %s, %s" % (op, d, a), rd, [d], kind)
def v3(op, d, a, b, c):
    rd = [x for x in (a, b, c) if isinstance(x, str) and x[0] in "vsa" and x[1:].isdigit()]
    return valu("%s %s, %s, %s, %s" % (op, d, a, b, c), rd, [d])
def s2(op, d, a, b):
    rd = [x for x in (a, b) if isinstance(x, str) and (x[0] == "s" or x == "m0")]
    return salu("%s %s, %s, %s" % (op, d, a, b), rd, [d, "scc"])
def smov(d, a):
    return salu("s_mov_b32 %s, %s" % (d, a), [a] if isinstance(a, str) and a[0] == "s" else [], [d])
def mul_(r): return v2("v_mul_f32", "v%d" % r, "s%d" % sC, "v%d" % r)
def exp_(r): return v1("v_exp_f32", "v%d" % r, "v%d" % r, "T")
def cvt_(d, a, b): return v2("v_cvt_pk_bf16_f32", "v%d" % d, "v%d" % a, "v%d" % b)
def dsr128(dp, d, addr, off, tag):
    assert 0 <= off < 65536
    return Ins("ds_read_b128 %s, v%d offset:%d" % (rng(dp, d, 4), addr, off), "D", ["v%d" % addr], R(dp, d, 4), tag=tag)
def dstr(d, addr, off, tag):
    assert 0 <= off < 65536
    return Ins("ds_read_b64_tr_b16 %s, v%d offset:%d" % (rng("a", d, 2), addr, off), "D", ["v%d" % addr], R("a", d, 2), tag=tag)
def dsw64(addr, src, off):
    return Ins("ds_write_b64 v%d, %s offset:%d" % (addr, rng("v", src, 2), off), "W", ["v%d" % addr] + R("v", src, 2), [])
def dma(voff, sr, soff, off, tag, m0, aux=""):
    i = Ins("buffer_load_dwordx4 v%d, %s, s%d offen offset:%d %slds" % (voff, srd(sr), soff, off, aux + " " if aux else ""), "X",
            ["v%d" % voff, "s%d" % soff, "m0"] + srdr(sr), [], tag=tag)
    i.cmt = m0
    return i
def store(src, soff, off, tag=None):
    return Ins("buffer_store_dwordx4 %s, v%d, %s, s%d offen offset:%d%s" % (rng("a", src, 4), OS, srd(sO_), soff, off, " " + cfg.o_aux if cfg.o_aux else ""), "X",
               R("a", src, 4) + ["v%d" % OS, "s%d" % soff] + srdr(sO_), [], tag=tag)
def setm0(m0):
    return s2("s_add_u32", "m0", "s%d" % m0[0], str(m0[1]))

def qk_block(h):
    L = []
    for f in range(8):
        kt, s = f // 4, f % 4
        for q in range(2):
            L.append(mfma("v", S_(h, q, kt), "a", AK + 4 * f, "a", AQ + 16 * (2 * h + q) + 4 * s, czero=(s == 0)))
    return L
def pvpos(b, q): return 2 * b + q + (1 if b >= 3 else 0) + (1 if b >= 6 else 0)
def pv_block(h, first):
    L = []
    for b in range(8):
        for q in range(2):
            L.append(mfma("v", O_(2 * h + q, b), "a", AV + 4 * b, "v", P_(h, q), czero=first))
        if b in (2, 5):
            q = b // 4
            L.append(mfma("a", AL + 4 * (2 * h + q), "a", AONE, "v", P_(h, q), czero=first))
    return L

class Item:
    def __init__(self, ins, ready, dead, target, deps=()):
        self.ins = ins; self.ready = ready; self.dead = dead; self.target = target; self.deps = list(deps); self.gap = None
        k = ins.kind
        self.cost = 8 if k in ("T", "X") else 4
class Gap:
    def __init__(self, m):
        self.pre = []; self.m = m; self.sh = [lsite()]; self.ds = []; self.va = []
    def flat(self): return self.pre + [self.m] + self.sh + self.ds + self.va

def schedule(gaps, items, name):
    n = len(gaps)
    todo = sorted(items, key=lambda i: (i.target, i.dead))
    for g in range(n):
        G = gaps[g]
        def ok(it):
            if it.ready > g: return False
            for d, dist in it.deps:
                if d.gap is None or d.gap + dist > g: return False
            return True
        def place(it):
            it.gap = g; todo.remove(it)
            (G.ds if it.ins.kind in ("D", "W", "X") else G.va).append(it.ins)
        def fits(it, used):
            k = it.ins.kind
            if any(x.kind == "X" for x in G.ds): return False
            if k == "X": return used == 0
            return True
        used = 0
        for it in [x for x in todo if x.dead <= g]:
            if ok(it) and fits(it, used): place(it); used += it.cost
        while used < 8:
            c = [it for it in todo if ok(it) and fits(it, used) and it.cost <= 8 - used]
            if not c: break
            it = c[0]
            if used == 0 and it.cost == 4:
                four = [x for x in c[1:] if x.cost == 4 or False]
                dep_next = [x for x in todo if x.cost == 4 and x is not it and x.ready <= g and all((d.gap is not None and d.gap + dist <= g) or (d is it and dist == 0) for d, dist in x.deps)]
                eight = [x for x in c if x.cost == 8]
                if not dep_next and eight and it.dead > g: it = eight[0]
            place(it); used += it.cost
        c = [it for it in todo if ok(it) and fits(it, used) and it.cost == 4 and it.target < g - cfg.lag]
        if c and used > 0:
            place(c[0]); used += 4
        while True:
            over = False
            dem = 0
            for it in sorted(todo, key=lambda i: min(i.dead, n - 1)):
                dem += 12 if it.ins.kind == "X" else it.cost
                d = min(it.dead, n - 1)
                if dem > 12 * (d - g): over = True; break
            if not over: break
            c = sorted([it for it in todo if ok(it) and fits(it, used)], key=lambda i: (min(i.dead, n - 1), i.target))
            if not c: break
            place(c[0]); used += c[0].cost
    if todo:
        raise Exception("%s: unscheduled items: %s" % (name, [(i.ins.text, i.ready, i.dead) for i in todo]))
    for it in items:
        if it.gap > it.dead: raise Exception("%s: deadline miss %s gap %d > %d" % (name, it.ins.text, it.gap, it.dead))

def softmax_items(h, base, rdy, dead, lo=(0, 0, 0), hi=(16, 16, 8), carry=None):
    its = []; M = {}; E = {}
    def reg(e):
        grp = e // 4; q = grp % 2; kt = grp // 2
        return q, kt, S_(h, q, kt) + e % 4
    for e in range(lo[0], hi[0]):
        q, kt, r = reg(e)
        M[e] = Item(mul_(r), rdy(q, kt), dead(q) - 2, base + 2 * e); its.append(M[e])
    for e in range(lo[1], hi[1]):
        q, kt, r = reg(e)
        E[e] = Item(exp_(r), rdy(q, kt), dead(q) - 1, base + 2 * e + 1, [(M[e], 0)] if e in M else []); its.append(E[e])
    for j in range(lo[2], hi[2]):
        q, kt, r = reg(2 * j)
        deps = [(E[e], 1) for e in (2 * j, 2 * j + 1) if e in E]
        its.append(Item(cvt_(P_(h, q) + 2 * kt + j % 2, r, r + 1), rdy(q, kt), dead(q), base + 4 * j + 4, deps))
    return its

def kread(f, slot, dT):
    return dsr128("a", AK + 4 * f, KA + f % 4, slot * 8192 + (f // 4) * 4096, ("K", dT))
def vread(b, jj, slot, dT):
    return dstr(AV + 4 * b + 2 * jj, VA + b, slot * 8192 + jj * 4096, ("V", dT))
def kv_dmas(t, lead):
    ks = (t + lead + 1) % 8; vs = (t + lead) % 8
    return [dma(DA, sK_, sKo, 0, ("K", lead + 1), (sMK, ks * 8192), cfg.kv_aux), dma(DB, sK_, sKo, 1024, ("K", lead + 1), (sMK, ks * 8192), cfg.kv_aux),
            dma(DA, sV_, sVo, 0, ("V", lead), (sMV, vs * 8192), cfg.kv_aux), dma(DB, sV_, sVo, 1024, ("V", lead), (sMV, vs * 8192), cfg.kv_aux)]
def q_dmas(h, du, msgpr=sMS, mconst=0):
    return [dma(DA if i % 2 == 0 else DB, sQ_, sQa if i < 4 else sQb, (i % 4) * 1024, ("Q", h, du), (msgpr, mconst + (i // 4) * 4096), cfg.q_aux) for i in range(8)]
def q_reads(dst, h, du, addr=QA):
    return [dsr128("a", dst + 16 * q + 4 * s, addr + s, q * 4096, ("Q", h, du)) for q in range(2) for s in range(4)]

def epi_burst(h, check=True):
    L = []
    for q in range(2): L.append(v1("v_accvgpr_read_b32", "v%d" % (ET + q), "a%d" % (AL + 4 * (2 * h + q))))
    for q in range(2): L.append(v1("v_rcp_f32", "v%d" % (ER + 2 * q), "v%d" % (ET + q), "T"))
    if check:
        for q in range(2): L.append(v2("v_subrev_u32", "v%d" % (EU + q), "s%d" % sLO, "v%d" % (ET + q)))
        L.append(valu("v_cmp_le_u32 vcc, s%d, v%d" % (sRG, EU), ["s%d" % sRG, "v%d" % EU], ["vcc"]))
        L.append(valu("v_cmp_le_u32 s[%d:%d], s%d, v%d" % (sCMP, sCMP + 1, sRG, EU + 1), ["s%d" % sRG, "v%d" % (EU + 1)], R("s", sCMP, 2)))
    else:
        L.append(nop(1))
    for q in range(2):
        for b in range(8):
            for i in range(2):
                a = O_(2 * h + q, b) + 2 * i
                L.append(valu("v_pk_mul_f32 v[%d:%d], v[%d:%d], v[%d:%d] op_sel_hi:[1,0]" % (a, a + 1, a, a + 1, ER + 2 * q, ER + 2 * q + 1),
                              R("v", a, 2) + ["v%d" % (ER + 2 * q)], R("v", a, 2), "K"))
    if check:
        L.append(salu("s_or_b64 s[%d:%d], s[%d:%d], vcc" % (sACC, sACC + 1, sACC, sACC + 1), ["vcc"] + R("s", sACC, 2), R("s", sACC, 2)))
        L.append(salu("s_or_b64 s[%d:%d], s[%d:%d], s[%d:%d]" % (sACC, sACC + 1, sACC, sACC + 1, sCMP, sCMP + 1), R("s", sCMP, 2) + R("s", sACC, 2), R("s", sACC, 2)))
    for q in range(2):
        for bp in range(4):
            a = O_(2 * h + q, 2 * bp)
            for i in range(4): L.append(cvt_(a + i, a + 2 * i, a + 2 * i + 1))
            if check and cfg.finchk and (q, bp) != (0, 0):
                pa = a - 8
                L.append(mfma("a", ACHK, "a", AZERO, "v", pa, czero=(h == 0 and (q, bp) == (0, 1))))
    if check and cfg.finchk:
        L.append(nop(2))
        L.append(mfma("a", ACHK, "a", AZERO, "v", O_(2 * h + 1, 6)))
    return L
def flag_ops():
    L = []
    if cfg.finchk:
        L.append(v1("v_accvgpr_read_b32", "v%d" % ET, "a%d" % ACHK))
        L.append(valu("v_cmp_u_f32 vcc, v%d, v%d" % (ET, ET), ["v%d" % ET], ["vcc"]))
        L.append(nop(2))
        L.append(salu("s_or_b64 s[%d:%d], s[%d:%d], vcc" % (sACC, sACC + 1, sACC, sACC + 1), ["vcc"] + R("s", sACC, 2), R("s", sACC, 2)))
    L.append(salu("s_cmp_lg_u64 s[%d:%d], 0" % (sACC, sACC + 1), R("s", sACC, 2), ["scc"]))
    L.append(salu("s_addc_u32 s%d, s%d, s%d" % (sBAD, sBAD, sBAD), ["scc", "s%d" % sBAD], ["s%d" % sBAD]))
    L.append(salu("s_mov_b64 s[%d:%d], 0" % (sACC, sACC + 1), [], R("s", sACC, 2)))
    return L
def o_writes(h):
    return [dsw64(OW + b % 4, O_(2 * h + q, b & ~1) + 2 * (b & 1), (b // 4) * 128 + q * 4096) for q in range(2) for b in range(8)]
def o_reads(h, du):
    L = []
    for j in range(8):
        for i in range(2):
            d = AO + 32 * h + 4 * j + 2 * i; addr = OR_ + 2 * (j % 4) + i
            L.append(Ins("ds_read_b64 %s, v%d offset:%d" % (rng("a", d, 2), addr, j * 1024), "D", ["v%d" % addr], R("a", d, 2), tag=("O", h, du)))
    return L
def o_stores(h):
    return [store(AO + 32 * h + 4 * j, sOa if j < 4 else sOb, (j % 4) * 1024) for j in range(8)]
USTRIDE = 131072 if cfg.hmap == 0 else 128 * 131072
def adv(which, cross):
    o, t, b = (sKo, sKt, sKb) if which == "K" else (sVo, sVt, sVb)
    if not cfg.rot:
        return [s2("s_add_u32", "s%d" % o, "s%d" % o, str(8192 + (USTRIDE - 131072 if cross else 0)))]
    L = [s2("s_add_u32", "s%d" % t, "s%d" % t, "8192"), s2("s_and_b32", "s%d" % t, "s%d" % t, "0x1ffff")]
    if cross: L.append(s2("s_add_u32", "s%d" % b, "s%d" % b, str(USTRIDE)))
    L.append(s2("s_add_u32", "s%d" % o, "s%d" % b, "s%d" % t))
    return L

LEAD = cfg.lead
LAT = cfg.lat
B0, B1, B2, B3, NG = 0, 16, 34, 50, 68
NW0 = 9
QA_IT = [cfg.qa0 + i for i in range(4)]; QB_IT = [8, 9, 10, 11]; ST_IT = [1, 6, 7, 12, 13, 14, 15]
QRD = cfg.qa0 + 5; QB_IT = [QRD + 1 + i for i in range(4)] if QRD <= 7 else [QRD + 1, QRD + 2]
ST_IT = ([1] + [t for t in range(2, 16) if t not in QA_IT and t not in QB_IT] + [8])
ST_IT = sorted(ST_IT[:8])

class Seg:
    def __init__(self): self.gaps = []; self.sitems = []; self.head = []; self.tail = []; self.post = []

def build_iter(t, first=False):
    sg = Seg()
    if first:
        b0, b1, b2, b3, ng = 0, None, 16, 32, 50
        mf = qk_block(0) + qk_block(1) + pv_block(0, True)
    else:
        b0, b1, b2, b3, ng = B0, B1, B2, B3, NG
        mf = qk_block(0) + pv_block(1, t == 1) + qk_block(1) + pv_block(0, t == 0)
    gaps = [Gap(m) for m in mf]
    items = []
    INF = 10 ** 6
    slot = t % 8; nslot = (t + 1) % 8
    isbar = (t % cfg.barper == 0)
    bar_gap = 14
    if not first:
        items += softmax_items(1, 48 - NG, lambda q, kt: 0, lambda q: b1 + q - 2, lo=(cfg.e0, cfg.e0, cfg.c0))
        for f in range(cfg.f0, 8):
            items.append(Item(kread(f, slot, 0), 0, 2 * f - LAT, 57.7 + 2.48 * f - NG))
    items += softmax_items(0, (14 if not first else 12), lambda q, kt: b0 + 8 * kt + 6 + q + cfg.rdy, lambda q: b3 + q - 2)
    items += softmax_items(1, b3 - 2, lambda q, kt: b2 + 8 * kt + 6 + q + cfg.rdy, lambda q: INF, hi=(cfg.e0, cfg.e0, cfg.c0))
    for b in range(8):
        for jj in range(2):
            rdy = (b1 + pvpos(b, 1)) if not first else cfg.fbar + 1
            items.append(Item(vread(b, jj, slot, 0), max(rdy, bar_gap + 1), b3 + pvpos(b, 0) - LAT, (18 + 2.48 * (2 * b + jj)) if not first else cfg.fbar + 1 + b + jj * 0.5))
    for f in range(cfg.f0):
        items.append(Item(kread(f, nslot, 1), max(b2 + 2 * f + 1, cfg.fbar + 1 if first else 0), INF, b3 + 7.7 + 2.48 * f))
    def chain(lst, targets, ready, dead=INF, dist=1, after=None):
        p = after; res = []
        for k, (ins, tgt) in enumerate(zip(lst, targets)):
            dd = dead[k] if isinstance(dead, list) else dead
            it = Item(ins, ready, dd, tgt, [(p, dist)] if p else []); items.append(it); p = it; res.append(it)
        return res
    def kd(n): return [dma(DA, sK_, sKo, 0, ("K", n), (sMK, (n % 8) * 8192), cfg.kv_aux), dma(DB, sK_, sKo, 1024, ("K", n), (sMK, (n % 8) * 8192), cfg.kv_aux)]
    def vd(n): return [dma(DA, sV_, sVo, 0, ("V", n), (sMV, (n % 8) * 8192), cfg.kv_aux), dma(DB, sV_, sVo, 1024, ("V", n), (sMV, (n % 8) * 8192), cfg.kv_aux)]
    if first:
        lst = []
        for n in range(LEAD + 1): lst += [("V", vd(n)), ("K", kd(n + 1))]
        if cfg.early: lst = lst[1:]
        p = None; tg = 1
        for k, (w, pr) in enumerate(lst):
            rdy = 1 if k < 8 - cfg.early else cfg.fbar + 2
            its = chain(pr, [tg, tg + 1], rdy, after=p, dist=1); p = its[1]; tg += 2 if k < 4 else 3
            sg.post.append((its[1], adv(w, False)))
        gaps[7].sh.append(vsite([("Q", 1, 0)]))
        for i, ins in enumerate(q_reads(AQ + 32, 1, 0, addr=TM)):
            items.append(Item(ins, 8, 15 - LAT + 2 * (i % 4) + (i // 4) + 2, 8 + (i % 4) + 0.5 * (i // 4)))
        al = lsite(); al.needs = "all"
        gaps[cfg.fbar].sh += [al, vsite([("V", 0), ("K", 1)]), bar()]
        if cfg.barper == 2: gaps[ng - 1].va += [vsite([("V", 1), ("K", 2)]), bar()]
    else:
        dm = kv_dmas(t, LEAD)
        dmt = [17, 21, 58, 62] if isbar else [3, 7, 58, 62]
        kvits = chain(dm, dmt, (bar_gap + 2) if isbar else 1)
        for a in adv("K", (t + LEAD + 2) % 16 == 0): sg.sitems.append((a, ("after", kvits[1]), None))
        for a in adv("V", (t + LEAD + 1) % 16 == 0): sg.sitems.append((a, ("after", kvits[3]), None))
        if isbar:
            needs = [("V", 0), ("K", 1)] + ([("V", 1), ("K", 2)] if cfg.barper == 2 else [])
            gaps[bar_gap - 1].sh.append(vsite(needs))
            gaps[bar_gap].sh.append(bar())
    XT = [32, 42]
    if not first and t == 0:
        gaps[0].pre += epi_burst(0)
        W = chain(o_writes(0), [0.5 + 1.9 * i for i in range(16)], 0, 38)
        chain(o_reads(0, -1), [31 + 0.9 * j for j in range(16)], 0, 47, dist=0, after=W[15])
        gaps[48].pre += epi_burst(1)
        chain(o_writes(1)[:NW0], [48.5 + 2 * i for i in range(NW0)], 48)
        for i in range(16, 32):
            items.append(Item(v1("v_accvgpr_mov_b32", "a%d" % (AQ + 32 + i), "a%d" % (AQN + i)), 0, b2 - 2, 2 * (i - 16)))
        gaps[60].pre += flag_ops()
    if t == 1:
        ws = o_writes(1)[NW0:]
        W = chain(ws, [0.5 + 2 * i for i in range(len(ws))], 0, [b1 + pvpos(2 * ((NW0 + i) % 8 // 2), (NW0 + i) // 8) - 1 for i in range(len(ws))])
        chain(o_reads(1, -1), [16 + 2 * j for j in range(16)], 0, INF, dist=0, after=W[-1])
        al = lsite(); al.needs = "all"; gaps[ng - 1].sh.insert(1, al)
    if not first and t in ST_IT:
        k = ST_IT.index(t); h = k // 4
        st = chain(o_stores(h)[2 * (k % 4):2 * (k % 4) + 2], XT if t != 1 else [50, 54], 24, 56)
        if k % 4 == 0: sg.head += [s2("s_add_u32", "s%d" % sOb, "s%d" % sOa, "4096")]
        if k == 3: sg.sitems.append((s2("s_add_u32", "s%d" % sOa, "s%d" % sOa, "8192"), ("after", st[1]), None))
        if k == 7:
            sg.sitems.append((s2("s_add_u32", "s%d" % sOa, "s%d" % sOa, str(USTRIDE - 8192)), ("after", st[1]), None))
            sg.sitems.append((smov("s%d" % (sO_ + 2), "s%d" % sONR), ("after", st[1]), None))
    for h, its in ((1, QA_IT), (0, QB_IT)):
        if t in its:
            k = its.index(t)
            if k == 0:
                sg.head += [s2("s_add_u32", "s%d" % sQa, "s%d" % sQo, str(8192 * h)), s2("s_add_u32", "s%d" % sQb, "s%d" % sQo, str(8192 * h + 4096))]
            npi = 8 // len(its)
            chain(q_dmas(h, 1)[npi * k:npi * k + npi], XT if npi == 2 else [28, 34, 40, 46], 24, 56)
            if h == 0 and k == len(its) - 1: sg.tail += [s2("s_add_u32", "s%d" % sQo, "s%d" % sQo, str(USTRIDE))]
    if t == QRD:
        gaps[29].sh.append(vsite([("Q", 1, 1)]))
        for i, ins in enumerate(q_reads(AQN, 1, 1)):
            items.append(Item(ins, 30, INF, 30 + 4 * i))
        al = lsite(); al.needs = "all"; gaps[ng - 1].sh.insert(1, al)
    if t == 15:
        gaps[15].sh.append(vsite([("Q", 0, 1)]))
        for i, ins in enumerate(q_reads(AQ, 0, 1)):
            items.append(Item(ins, 16, ng - 1 - LAT, 17 + 5 * i))
        for i in range(16):
            items.append(Item(v1("v_accvgpr_mov_b32", "a%d" % (AQ + 32 + i), "a%d" % (AQN + i)), b3, INF, b3 + i))
    schedule(gaps, items, "it%d%s" % (t, "f" if first else ""))
    for it, ops in sg.post: gaps[it.gap].va += ops
    sg.gaps = gaps
    return sg

def place_scalar(sg):
    gaps = sg.gaps
    def busy(G): return sum(1 for x in G.sh if (x.kind not in ("LSITE", "VSITE")) ) + (1 if any(x.kind in ("LSITE", "VSITE") and x.n is not None for x in G.sh) else 0)
    cur = None; lastx = -1
    for g, G in enumerate(gaps):
        if any("s_mov_b32 m0" in x.text for x in G.pre): cur = None; lastx = max(lastx, g - 1)
        for x in G.ds:
            if x.kind == "X" and "m0" in x.rd:
                if cur != x.cmt:
                    cands = [k for k in range(max(lastx, 0) if lastx < 0 else lastx + 1, g)]
                    free = [k for k in cands if busy(gaps[k]) == 0]
                    if cands:
                        k = free[-1] if free else cands[-1]
                        gaps[k].sh.append(setm0(x.cmt))
                    elif any("s_mov_b32 m0" in y.text for y in G.pre):
                        G.pre.append(setm0(x.cmt))
                    else:
                        gaps[lastx].va.append(setm0(x.cmt))
                    cur = x.cmt
                lastx = g
    lastpos = {}
    ntail = 0
    for ins, (how, it), _ in sg.sitems:
        c = [k for k in range(max(it.gap, lastpos.get(id(it), -1)) + 1, len(gaps)) if busy(gaps[k]) == 0]
        if c: gaps[c[0]].sh.append(ins); lastpos[id(it)] = c[0]
        else: sg.tail.insert(ntail, ins); ntail += 1; lastpos[id(it)] = len(gaps)

def flat(sg):
    L = list(sg.head)
    for G in sg.gaps: L += G.flat()
    return L + sg.tail

def prologue():
    L = []
    A = L.append
    A(raw("s_cmp_ge_u32 s2, 256")); A(raw("s_cbranch_scc1 L_end"))
    A(raw("s_load_dwordx4 s[36:39], s[0:1], 0")); A(raw("s_load_dwordx4 s[40:43], s[0:1], 16"))
    A(v2("v_lshrrev_b32", "v1", "6", "v0")); A(v2("v_and_b32", "v0", "63", "v0"))
    A(valu("v_readfirstlane_b32 s%d, v1" % sW, ["v1"], ["s%d" % sW]))
    A(v2("v_lshrrev_b32", "v2", "4", "v0"))
    A(v2("v_and_b32", "v3", "15", "v0"))
    if cfg.xmap == 0:
        A(raw("s_and_b32 s45, s2, 7")); A(raw("s_lshr_b32 s46, s2, 4")); A(raw("s_lshl_b32 s45, s45, 4")); A(raw("s_add_u32 s45, s45, s46"))
    else:
        A(raw("s_and_b32 s45, s2, 7")); A(raw("s_lshr_b32 s46, s2, 4")); A(raw("s_lshl_b32 s46, s46, 3")); A(raw("s_add_u32 s45, s45, s46"))
    if cfg.rot:
        A(raw("s_mul_i32 s%d, s45, %d" % (sKt, cfg.rot * 8192))); A(raw("s_and_b32 s%d, s%d, 0x1ffff" % (sKt, sKt))); A(smov("s%d" % sVt, "s%d" % sKt))
        A(smov("s%d" % sKb, "0")); A(smov("s%d" % sVb, "0"))
    A(raw("s_lshl_b32 s45, s45, %d" % (19 if cfg.hmap == 0 else 17)))
    A(raw("s_bfe_u32 s46, s2, 0x10003")); A(raw("s_lshl_b32 s46, s46, 16")); A(raw("s_add_u32 s46, s46, s45"))
    A(s2("s_lshl_b32", "s%d" % sMK, "s%d" % sW, "11"))
    A(v2("v_lshlrev_b32", "v4", "1", "v2")); A(v2("v_xor_b32", "v4", "v3", "v4")); A(v2("v_lshlrev_b32", "v4", "4", "v4"))
    A(v3("v_lshl_add_u32", "v4", "v2", "8", "v4")); A(v2("v_add_u32", "v%d" % DA, "s%d" % sMK, "v4")); A(v2("v_xor_b32", "v%d" % DB, "0x80", "v%d" % DA))
    A(s2("s_add_u32", "s%d" % sMV, "s%d" % sMK, str(LDS_V)))
    A(s2("s_lshl_b32", "s%d" % sMS, "s%d" % sW, "13")); A(s2("s_add_u32", "s%d" % sMS, "s%d" % sMS, str(LDS_S)))
    A(s2("s_mul_i32", "s%d" % sQo, "s%d" % sW, str(16384 - 2048)))
    A(s2("s_lshl_b32", "s%d" % sOa, "s%d" % sW, "14")); A(s2("s_sub_u32", "s%d" % sOa, "s%d" % sOa, str(USTRIDE)))
    for b in (sQ_, sK_, sV_, sO_): A(smov("s%d" % (b + 3), "0x20000"))
    A(smov("s%d" % (sK_ + 2), str(3 * USTRIDE + 131072))); A(smov("s%d" % (sV_ + 2), str(3 * USTRIDE + 131072)))
    A(smov("s%d" % (sQ_ + 2), str(3 * USTRIDE + 65536))); A(smov("s%d" % sONR, str(3 * USTRIDE + 65536))); A(smov("s%d" % (sO_ + 2), "0"))
    A(smov("s%d" % sKo, "s%d" % sKt if cfg.rot else "0")); A(smov("s%d" % sVo, "s%d" % sKt if cfg.rot else "0"))
    A(raw("s_waitcnt lgkmcnt(0)"))
    if cfg.stamp2: L += stamp()
    for b, p, o in ((sK_, 38, 45), (sQ_, 36, 46), (sV_, 40, 45), (sO_, 42, 46)):
        A(salu("s_add_u32 s%d, s%d, s%d" % (b, p, o), [], ["s%d" % b])); A(salu("s_addc_u32 s%d, s%d, 0" % (b + 1, p + 1), [], ["s%d" % (b + 1)]))
    def issue(lst):
        cur = None
        for x in lst:
            if x.kind == "X" and cur != x.cmt:
                A(setm0(x.cmt)); A(nop(1)); cur = x.cmt
            A(x)
    A(smov("s%d" % sQa, "s%d" % sQo)); A(s2("s_add_u32", "s%d" % sQb, "s%d" % sQo, "4096"))
    k0 = [dma(DA, sK_, sKo, 0, ("K", 0), (sMK, 0), cfg.kv_aux), dma(DB, sK_, sKo, 1024, ("K", 0), (sMK, 0), cfg.kv_aux)]
    v0 = [dma(DA, sV_, sVo, 0, ("V", 0), (sMV, 0), cfg.kv_aux), dma(DB, sV_, sVo, 1024, ("V", 0), (sMV, 0), cfg.kv_aux)]
    q0 = q_dmas(0, 0)
    if cfg.early:
        issue([k0[0], q0[0], v0[0], k0[1], v0[1]] + adv("K", False) + adv("V", False) + q0[1:])
    else:
        issue(k0 + adv("K", False) + q0)
    A(s2("s_add_u32", "s%d" % sQa, "s%d" % sQo, "8192")); A(s2("s_add_u32", "s%d" % sQb, "s%d" % sQo, str(8192 + 4096)))
    A(s2("s_sub_u32", "s%d" % sT, "s%d" % sMS, "32768"))
    issue(q_dmas(1, 0, msgpr=sT))
    if cfg.stamp2: L += stamp()
    A(s2("s_add_u32", "s%d" % sQo, "s%d" % sQo, str(USTRIDE)))
    A(v2("v_and_b32", "v5", "7", "v3")); A(v2("v_lshlrev_b32", "v6", "1", "v5"))
    for s in range(4):
        A(v2("v_add_u32", "v7", str(4 * s), "v2")); A(v2("v_xor_b32", "v7", "v7", "v6")); A(v2("v_lshlrev_b32", "v7", "4", "v7"))
        A(v3("v_lshl_add_u32", "v%d" % (KA + s), "v3", "8", "v7"))
        A(v2("v_add_u32", "v%d" % (QA + s), "s%d" % sMS, "v%d" % (KA + s)))
        A(v2("v_subrev_u32", "v%d" % (TM + s), "0x8000", "v%d" % (QA + s)))
    A(v2("v_lshrrev_b32", "v8", "2", "v0"))
    A(v2("v_and_b32", "v9", "7", "v8")); A(v2("v_lshlrev_b32", "v9", "1", "v9"))
    A(valu("v_bfe_u32 v10, v0, 1, 1", ["v0"], ["v10"]))
    A(v2("v_and_b32", "v11", "1", "v0")); A(v2("v_lshlrev_b32", "v11", "3", "v11"))
    A(v3("v_lshl_add_u32", "v11", "v8", "8", "v11")); A(v2("v_add_u32", "v11", str(LDS_V), "v11"))
    for b in range(8):
        A(v2("v_add_u32", "v7", str(2 * b), "v10")); A(v2("v_xor_b32", "v7", "v7", "v9"))
        A(v3("v_lshl_add_u32", "v%d" % (VA + b), "v7", "4", "v11"))
    A(v2("v_lshlrev_b32", "v11", "8", "v3")); A(v2("v_add_u32", "v11", "s%d" % sMS, "v11"))
    A(v2("v_lshlrev_b32", "v12", "8", "v2")); A(v2("v_add_u32", "v12", "s%d" % sMS, "v12")); A(v2("v_lshlrev_b32", "v13", "1", "v3"))
    for j in range(4):
        A(v2("v_add_u32", "v7", str(4 * j), "v2")); A(v2("v_xor_b32", "v10", "v7", "v3"))
        A(v3("v_lshl_add_u32", "v%d" % (OW + j), "v10", "3", "v11"))
        A(v2("v_xor_b32", "v10", "v7", "v13"))
        A(v3("v_lshl_add_u32", "v%d" % (OR_ + 2 * j), "v10", "3", "v12")); A(v2("v_xor_b32", "v%d" % (OR_ + 2 * j + 1), "8", "v%d" % (OR_ + 2 * j)))
    A(v2("v_lshlrev_b32", "v%d" % OS, "4", "v0"))
    A(v2("v_and_b32", "v7", "3", "v0")); A(valu("v_cmp_eq_u32 vcc, 0, v7", ["v7"], ["vcc"])); A(v1("v_mov_b32", "v8", "0x3f803f80")); A(v1("v_mov_b32", "v9", "0"))
    A(valu("v_cndmask_b32 v7, v9, v8, vcc", ["v8", "v9", "vcc"], ["v7"]))
    for i in range(4):
        A(v1("v_accvgpr_write_b32", "a%d" % (AONE + i), "v7")); A(v1("v_accvgpr_write_b32", "a%d" % (AZERO + i), "v9"))
    A(smov("s%d" % sC, "0x%08x" % SCALE)); A(smov("s%d" % sLO, "0x%08x" % LO_BITS)); A(smov("s%d" % sRG, "0x%08x" % (HI_BITS - LO_BITS)))
    A(smov("s%d" % sBAD, "0")); A(salu("s_mov_b64 s[%d:%d], 0" % (sACC, sACC + 1), [], R("s", sACC, 2)))
    A(smov("s%d" % sCNT, "3"))
    A(s2("s_add_u32", "s%d" % sOb, "s%d" % sOa, "4096"))
    if cfg.stamp2: L += stamp()
    A(vsite([("K", 0), ("Q", 0, 0)]))
    if cfg.stamp2: L += stamp()
    A(bar())
    qr = q_reads(AQ, 0, 0)
    for s in range(4): L += [kread(s, 0, 0), qr[s], qr[4 + s]]
    for f in range(4, 8): A(kread(f, 0, 0))
    A(lsite())
    return L

def tail_seg():
    L = []
    for it in softmax_items(1, 0, lambda q, kt: 0, lambda q: 99, lo=(cfg.e0, cfg.e0, cfg.c0)):
        L.append(it.ins)
        if it.ins.kind == "T" and it.ins.text == exp_(S_(1, 1, 1) + 3).text: L.append(nop(1))
    L.append(s2("s_add_u32", "s%d" % sOb, "s%d" % sOa, "4096"))
    L += epi_burst(0)
    gaps = [Gap(m) for m in pv_block(1, False)]
    for g, w in enumerate(o_writes(0)): gaps[g].ds.append(w)
    gaps[16].ds += o_reads(0, 0)[:8]
    gaps[17].ds += o_reads(0, 0)[8:]
    for G in gaps: L += G.flat()
    L.append(nop(1))
    L += epi_burst(1)
    L.append(lsite())
    L += o_writes(1)[:8] + o_stores(0)[:4] + o_writes(1)[8:] + o_reads(1, 0) + o_stores(0)[4:]
    L += [s2("s_add_u32", "s%d" % sOa, "s%d" % sOa, "8192"), s2("s_add_u32", "s%d" % sOb, "s%d" % sOb, "8192")]
    L += flag_ops()
    st = o_stores(1)
    L += [lsite()] + st[:4] + [lsite()] + st[4:]
    return L

def slow_path():
    T = []
    A = T.append
    def emit(l):
        for x in l: A(x.text)
    def wait(): A("s_waitcnt vmcnt(0) lgkmcnt(0)");
    A("s_barrier")
    if cfg.force_slow: A("s_mov_b32 s%d, 15" % sBAD)
    A("s_cmp_eq_u32 s%d, 0" % sBAD); A("s_cbranch_scc1 L_end")
    A("s_lshl_b32 s45, s%d, 13" % sW)
    for i in range(4): A("v_add_u32 v%d, s45, v%d" % (KA + i, KA + i))
    for i in range(8): A("v_add_u32 v%d, s45, v%d" % (VA + i, VA + i))
    A("s_add_u32 s46, s45, %d" % LDS_V)
    A("s_mul_i32 s%d, s%d, %d" % (sQo, sW, 16384 - 2048))
    A("s_lshl_b32 s%d, s%d, 14" % (sOo, sW))
    A("v_subrev_u32 v%d, s%d, v%d" % (TM + 4, sMK, DA)); A("v_subrev_u32 v%d, s%d, v%d" % (TM + 5, sMK, DB))
    A("s_mov_b32 s%d, 0" % sCNT)
    A("L_slow_unit:")
    A("s_bitcmp1_b32 s%d, 3" % sBAD); A("s_cbranch_scc0 L_slow_next")
    wait()
    for h in range(2):
        A("s_add_u32 s%d, s%d, %d" % (sQa, sQo, h * 8192)); A("s_add_u32 s%d, s%d, 4096" % (sQb, sQa))
        cur = None
        for x in q_dmas(h, 0):
            if cur != x.cmt: A(setm0(x.cmt).text); A("s_nop 0"); cur = x.cmt
            A(x.text)
        wait(); emit(q_reads(AQ + 32 * h, h, 0)); wait()
    def tile_dma(sr, m0s):
        for i in range(8):
            if i % 4 == 0:
                A("s_add_u32 m0, s%d, %d" % (m0s, (i // 4) * 4096)); A("s_add_u32 s%d, s%d, %d" % (sT, sKo, (i // 4) * 4096))
            A("buffer_load_dwordx4 v%d, %s, s%d offen offset:%d lds" % (TM + 4 + i % 2, srd(sr), sT, (i % 4) * 1024))
    def qk_all():
        emit([kread(f, 0, 0) for f in range(8)]); wait()
        emit(qk_block(0) + qk_block(1)); A("s_nop 7"); A("s_nop 3")
    for i in range(4): A("v_mov_b32 v%d, 0xff800000" % (MX + i))
    A("s_mov_b32 s%d, s%d" % (sKo, sCNT)); A("s_add_u32 s%d, s%d, 131072" % (sVo, sCNT))
    A("L_slow_p1:")
    tile_dma(sK_, 45); wait(); qk_all()
    for h in range(2):
        for q in range(2):
            a = S_(h, q, 0)
            for i in range(4): A("v_max3_f32 v%d, v%d, v%d, v%d" % (MX + 2 * h + q, a + 2 * i, a + 2 * i + 1, MX + 2 * h + q))
    A("s_add_u32 s%d, s%d, 8192" % (sKo, sKo)); A("s_cmp_lt_u32 s%d, s%d" % (sKo, sVo)); A("s_cbranch_scc1 L_slow_p1")
    for op in ("v_permlane32_swap_b32", "v_permlane16_swap_b32"):
        for i in range(4): A("v_mov_b32 v%d, v%d" % (NM + i, MX + i))
        A("s_nop 1")
        for i in range(4): A("%s v%d, v%d" % (op, NM + i, MX + i))
        A("s_nop 1")
        for i in range(4): A("v_max_f32 v%d, v%d, v%d" % (MX + i, MX + i, NM + i))
    for i in range(4): A("v_mul_f32 v%d, s%d, v%d" % (NM + i, sC, MX + i))
    for i in range(128): A("v_mov_b32 v%d, 0" % (OB + i))
    for i in range(16): A("v_accvgpr_write_b32 a%d, 0" % (AL + i))
    A("s_mov_b32 s%d, s%d" % (sKo, sCNT))
    A("L_slow_p2:")
    tile_dma(sK_, 45); tile_dma(sV_, 46); wait(); qk_all()
    emit([vread(b, jj, 0, 0) for b in range(4) for jj in range(2)])
    for h in range(2):
        for q in range(2):
            a = S_(h, q, 0)
            for i in range(8): A("v_fma_f32 v%d, v%d, s%d, -v%d" % (a + i, a + i, sC, NM + 2 * h + q))
            for i in range(8): A("v_exp_f32 v%d, v%d" % (a + i, a + i))
            A("s_nop 0")
            for i in range(4): A(cvt_(P_(h, q) + i, a + 2 * i, a + 2 * i + 1).text)
    emit([vread(b, jj, 0, 0) for b in range(4, 8) for jj in range(2)])
    wait()
    emit(pv_block(0, False) + pv_block(1, False))
    A("s_add_u32 s%d, s%d, 8192" % (sKo, sKo)); A("s_cmp_lt_u32 s%d, s%d" % (sKo, sVo)); A("s_cbranch_scc1 L_slow_p2")
    A("s_nop 7"); A("s_nop 3")
    for h in range(2):
        emit(epi_burst(h, check=False)); emit(o_writes(h) + o_reads(h, 0))
        A("s_add_u32 s%d, s%d, %d" % (sOa, sOo, h * 8192)); A("s_add_u32 s%d, s%d, 4096" % (sOb, sOa))
        wait(); emit(o_stores(h)); wait()
    A("L_slow_next:")
    A("s_lshl_b32 s%d, s%d, 1" % (sBAD, sBAD)); A("s_and_b32 s%d, s%d, 15" % (sBAD, sBAD))
    for r in (sCNT, sQo, sOo): A("s_add_u32 s%d, s%d, %d" % (r, r, USTRIDE))
    A("s_cmp_lg_u32 s%d, 0" % sBAD); A("s_cbranch_scc1 L_slow_unit")
    return T

def stamp():
    if not cfg.stamp: return []
    return [raw("s_memtime s[58:59]"), raw("s_memrealtime s[60:61]"), raw("s_waitcnt lgkmcnt(0)"),
            raw("s_mov_b32 m0, s57"), raw("s_nop 0"), raw("v_writelane_b32 v62, s58, m0"), raw("v_writelane_b32 v63, s60, m0"), raw("s_add_u32 s57, s57, 1")]
def stamp_out():
    if not cfg.stamp: return []
    return [x.text for x in stamp()] + ["s_load_dwordx2 s[36:37], s[0:1], 40", "s_waitcnt lgkmcnt(0)", "s_mov_b32 s38, 0x1000000", "s_mov_b32 s39, 0x20000",
            "s_lshl_b32 s45, s2, 2", "s_add_u32 s45, s45, s%d" % sW, "s_lshl_b32 s45, s45, 9", "v_lshrrev_b32 v61, 2, v%d" % OS,
            "buffer_store_dword v62, v61, s[36:39], s45 offen", "buffer_store_dword v63, v61, s[36:39], s45 offen offset:256"]
def main():
    sgs = {"it0f": build_iter(0, True)}
    for t in range(16): sgs["it%d" % t] = build_iter(t)
    def segs():
        d = {"pro": pro, "tail": tl}
        for k, s in sgs.items(): d[k] = flat(s)
        return d
    pro = prologue(); tl = tail_seg()
    if cfg.dbgspan:
        pro[2:2] = [raw("s_memrealtime s[60:61]"), raw("s_memtime s[62:63]"), raw("s_waitcnt lgkmcnt(0)"), raw("s_mov_b32 s56, s60"), raw("s_mov_b32 s57, s62")]
        i = [k for k, x in enumerate(pro) if x.kind == "BAR"][0]
        pro[i + 1:i + 1] = [raw("s_memrealtime s[58:59]")]
    if cfg.stamp:
        pro[2:2] = [raw("s_mov_b32 s57, 0")] + stamp()
        i = [k for k, x in enumerate(pro) if x.kind == "BAR"][0]
        pro[i + 1:i + 1] = stamp()
        for t in range(0, 16, cfg.stamp): sgs["it%d" % t].head[0:0] = stamp()
        tl[0:0] = stamp()
        if cfg.stamp3:
            G = sgs["it0"].gaps
            G[0].pre += stamp(); G[16].pre += stamp(); G[34].pre += stamp(); G[50].pre[0:0] = stamp(); G[50].pre += stamp()
            sgs["it1"].head[0:0] = stamp(); sgs["it1"].gaps[34].pre += stamp(); sgs["it2"].head[0:0] = stamp(); sgs["it3"].head[0:0] = stamp()
        if cfg.stamp2:
            sgs["it0f"].gaps[16].pre += stamp(); sgs["it0f"].gaps[cfg.fbar + 1].pre += stamp(); sgs["it0f"].tail[0:0] = stamp()
    trace = [("pro", dict(T=0, u=0)), ("it0f", dict(T=0, u=0))]
    for u in range(4):
        for t in range(16):
            if (u, t) != (0, 0): trace.append(("it%d" % t, dict(T=16 * u + t, u=u)))
    trace.append(("tail", dict(T=64, u=3)))
    sgs["it0f"].tail.append(raw("s_branch L_it1", "BR"))
    sgs["it15"].tail += [s2("s_sub_u32", "s%d" % sCNT, "s%d" % sCNT, "1"), raw("s_cbranch_scc0 L_it0", "BR")]
    insert_waits(segs(), trace)
    for k, s in sgs.items():
        br = [x for x in s.tail if x.kind == "BR" or "s_sub_u32 s%d" % sCNT in x.text]
        s.tail = [x for x in s.tail if x not in br]
        place_scalar(s)
        s.tail += br
    fs = {k: finalize(v) for k, v in segs().items()}
    errs = verify(fs, trace, {"K": 8, "V": 16, "Q": 8, "O": 16})
    for e in errs[:40]: sys.stderr.write("ERR " + e + "\n")
    tot = 0
    for k in ["pro", "it0f"] + ["it%d" % t for t in range(16)] + ["tail"]:
        est = issue_estimate(fs[k]); sys.stderr.write("%s:%d " % (k, est))
        if k.startswith("it") and k != "it0f": tot += est
    sys.stderr.write("\nunit estimate %d cycles, errors %d\n" % (tot, len(errs)))
    out = []
    hdr = open(os.path.join(os.path.dirname(os.path.abspath(__file__)), "..", "cdna_kernels", NAME + ".s.ref")).read().split("; Override")[0]
    out.append(hdr.rstrip())
    out.append("; @launch grid=(256,1,1) block=(256,1,1) lds=163840")
    out.append('.amdgcn_target "amdgcn-amd-amdhsa--gfx950"\n.text\n.globl %s_kernel\n.p2align 8\n.type %s_kernel,@function\n%s_kernel:' % (NAME, NAME, NAME))
    def dump(k):
        out.append("; ---- " + k)
        for x in fs[k]:
            if cfg.nocomp and k != "pro" and x.kind in ("M", "V", "T", "K", "D", "W"): continue
            if cfg.nomem and k != "pro" and x.kind == "X" and (cfg.nomem == 1 or "store" in x.text): continue
            if cfg.nostore and x.kind == "X" and "store" in x.text: continue
            out.append("  " + x.text)
            if cfg.nocomp and "m0" in x.wr: out.append("  s_nop 0")
    dump("pro"); dump("it0f")
    out.append(".p2align 6\nL_it0:"); dump("it0"); out.append("L_it1:")
    for t in range(1, 16): dump("it%d" % t)
    dump("tail")
    if cfg.dbgspan:
        out += ["  " + x for x in ["s_waitcnt vmcnt(0)", "s_memrealtime s[60:61]", "s_memtime s[62:63]", "s_load_dwordx2 s[36:37], s[0:1], 32", "s_waitcnt lgkmcnt(0)", "s_mov_b32 s38, 256", "s_mov_b32 s39, 0x20000",
            "s_not_b32 s45, s56", "v_mov_b32 v2, s45", "v_mov_b32 v3, s58", "v_mov_b32 v4, s60", "v_mov_b32 v5, s56", "s_not_b32 s45, s60", "v_mov_b32 v6, s45", "s_sub_u32 s45, s62, s57", "v_mov_b32 v7, s45", "v_mov_b32 v1, 0",
            "s_mov_b64 exec, 1",
            "buffer_atomic_umax v2, v1, s[36:39], 0 offen", "buffer_atomic_umax v3, v1, s[36:39], 0 offen offset:4", "buffer_atomic_umax v4, v1, s[36:39], 0 offen offset:8",
            "buffer_atomic_umax v5, v1, s[36:39], 0 offen offset:12", "buffer_atomic_umax v6, v1, s[36:39], 0 offen offset:16", "buffer_atomic_umax v7, v1, s[36:39], 0 offen offset:20", "s_mov_b64 exec, -1"]]
    if cfg.stamp:
        out.append("  s_waitcnt vmcnt(0)")
        out += ["  " + x for x in stamp_out()]
    if cfg.nocomp or cfg.nomem: out.append("  s_mov_b32 s%d, 0" % sBAD)
    out += ["  " + x if not x.endswith(":") else x for x in slow_path()]
    out.append("L_end:\n  s_endpgm")
    out.append('.section .rodata,"a"\n.p2align 6\n.amdhsa_kernel %s_kernel' % NAME)
    out.append("  .amdhsa_next_free_vgpr 512\n  .amdhsa_next_free_sgpr 64\n  .amdhsa_accum_offset 256\n  .amdhsa_group_segment_fixed_size 0\n  .amdhsa_kernarg_size 48\n  .amdhsa_user_sgpr_count 2\n  .amdhsa_user_sgpr_kernarg_segment_ptr 1\n  .amdhsa_system_sgpr_workgroup_id_x 1\n.end_amdhsa_kernel")
    open(sys.argv[1], "w").write("\n".join(out) + "\n")
    if errs: sys.exit(1)
main()
```

```python
import sys, os, struct, math
from core import *

class Cfg:
    barper = 2
    finchk = 1
    lat = 7
    k_aux = ""
    v_aux = ""
    kv_aux = ""
    q_aux = ""
    o_aux = ""
    e0 = 10; c0 = 4; f0 = 5
    force_slow = 0
    hmap = 1
    rot = 0
    xmap = 0
    stamp = 0
    stamp3 = 0
    stamp2 = 0
    nocomp = 0
    nomem = 0
    nostore = 0
    dbgspan = 0
    lag = 1.5
    lead = 6
    qa0 = 2
    early = 0
    fbar = 22
    rdy = 5
cfg = Cfg()
for a in sys.argv[2:]:
    k, v = a.split("=")
    setattr(cfg, k, type(getattr(cfg, k))(v))

NAME = "standalone__mha_softmax__near_ridge"
KA = 16; VA = 20; DA = 28; DB = 29; QA = 30; OW = 34; OS = 40; OR_ = 64
ET = 42; ER = 44; EU = 48
MX = 50; NM = 54; TM = 58
PB = 80; SB = 96; OB = 128
def S_(h, q, kt): return SB + 16 * h + 8 * q + 4 * kt
def P_(h, q): return PB + 8 * h + 4 * q
def O_(qt, b): return OB + 32 * qt + 4 * b
AQ = 0; AQN = 64; AK = 96; AV = 128; AO = 160; AL = 224; AONE = 240; AZERO = 244; ACHK = 248
sQ_, sK_, sV_, sO_ = 4, 8, 12, 16
sW = 20; sKo = 21; sVo = 22; sMK = 23; sMV = 24; sQo = 25; sOo = 26; sC = 27; sBAD = 28; sUB = 29; sACC = 30; sCMP = 32
sLO = 34; sRG = 35; sMS = 44; sCNT = 47; sONR = 48; sQa = 50; sQb = 51; sOa = 52; sOb = 53; sT = 54; sKt = 55; sVt = 56; sKb = 62; sVb = 63
LDS_V = 65536; LDS_S = 131072
SCALE = struct.unpack("<I", struct.pack("<f", math.log2(math.e) / math.sqrt(128.0)))[0]
LO_BITS = (127 - (40 if cfg.finchk else 24)) << 23
HI_BITS = (127 + (40 if cfg.finchk else 24)) << 23

def srd(b): return "s[%d:%d]" % (b, b + 3)
def srdr(b): return R("s", b, 4)

def v2(op, d, a, b, kind="V"):
    rd = [x for x in (a, b) if isinstance(x, str) and x[0] in "vsa" and x[1:].isdigit()]
    return valu("%s %s, %s, %s" % (op, d, a, b), rd, [d], kind)
def v1(op, d, a, kind="V"):
    rd = [a] if isinstance(a, str) and a[0] in "vsa" and a[1:].isdigit() else []
    return valu("%s %s, %s" % (op, d, a), rd, [d], kind)
def v3(op, d, a, b, c):
    rd = [x for x in (a, b, c) if isinstance(x, str) and x[0] in "vsa" and x[1:].isdigit()]
    return valu("%s %s, %s, %s, %s" % (op, d, a, b, c), rd, [d])
def s2(op, d, a, b):
    rd = [x for x in (a, b) if isinstance(x, str) and (x[0] == "s" or x == "m0")]
    return salu("%s %s, %s, %s" % (op, d, a, b), rd, [d, "scc"])
def smov(d, a):
    return salu("s_mov_b32 %s, %s" % (d, a), [a] if isinstance(a, str) and a[0] == "s" else [], [d])
def mul_(r): return v2("v_mul_f32", "v%d" % r, "s%d" % sC, "v%d" % r)
def exp_(r): return v1("v_exp_f32", "v%d" % r, "v%d" % r, "T")
def cvt_(d, a, b): return v2("v_cvt_pk_bf16_f32", "v%d" % d, "v%d" % a, "v%d" % b)
def dsr128(dp, d, addr, off, tag):
    assert 0 <= off < 65536
    return Ins("ds_read_b128 %s, v%d offset:%d" % (rng(dp, d, 4), addr, off), "D", ["v%d" % addr], R(dp, d, 4), tag=tag)
def dstr(d, addr, off, tag):
    assert 0 <= off < 65536
    return Ins("ds_read_b64_tr_b16 %s, v%d offset:%d" % (rng("a", d, 2), addr, off), "D", ["v%d" % addr], R("a", d, 2), tag=tag)
def dsw64(addr, src, off):
    return Ins("ds_write_b64 v%d, %s offset:%d" % (addr, rng("v", src, 2), off), "W", ["v%d" % addr] + R("v", src, 2), [])
def dma(voff, sr, soff, off, tag, m0, aux=""):
    if sr == sK_ and cfg.k_aux: aux = cfg.k_aux
    if sr == sV_ and cfg.v_aux: aux = cfg.v_aux
    i = Ins("buffer_load_dwordx4 v%d, %s, s%d offen offset:%d %slds" % (voff, srd(sr), soff, off, aux + " " if aux else ""), "X",
            ["v%d" % voff, "s%d" % soff, "m0"] + srdr(sr), [], tag=tag)
    i.cmt = m0
    return i
def store(src, soff, off, tag=None):
    return Ins("buffer_store_dwordx4 %s, v%d, %s, s%d offen offset:%d%s" % (rng("a", src, 4), OS, srd(sO_), soff, off, " " + cfg.o_aux if cfg.o_aux else ""), "X",
               R("a", src, 4) + ["v%d" % OS, "s%d" % soff] + srdr(sO_), [], tag=tag)
def setm0(m0):
    return s2("s_add_u32", "m0", "s%d" % m0[0], str(m0[1]))

def qk_block(h):
    L = []
    for f in range(8):
        kt, s = f // 4, f % 4
        for q in range(2):
            L.append(mfma("v", S_(h, q, kt), "a", AK + 4 * f, "a", AQ + 16 * (2 * h + q) + 4 * s, czero=(s == 0)))
    return L
def pvpos(b, q): return 2 * b + q + (1 if b >= 3 else 0) + (1 if b >= 6 else 0)
def pv_block(h, first):
    L = []
    for b in range(8):
        for q in range(2):
            L.append(mfma("v", O_(2 * h + q, b), "a", AV + 4 * b, "v", P_(h, q), czero=first))
        if b in (2, 5):
            q = b // 4
            L.append(mfma("a", AL + 4 * (2 * h + q), "a", AONE, "v", P_(h, q), czero=first))
    return L

class Item:
    def __init__(self, ins, ready, dead, target, deps=()):
        self.ins = ins; self.ready = ready; self.dead = dead; self.target = target; self.deps = list(deps); self.gap = None
        k = ins.kind
        self.cost = 8 if k in ("T", "X") else 4
class Gap:
    def __init__(self, m):
        self.pre = []; self.m = m; self.sh = [lsite()]; self.ds = []; self.va = []
    def flat(self): return self.pre + [self.m] + self.sh + self.ds + self.va

def schedule(gaps, items, name):
    n = len(gaps)
    todo = sorted(items, key=lambda i: (i.target, i.dead))
    for g in range(n):
        G = gaps[g]
        def ok(it):
            if it.ready > g: return False
            for d, dist in it.deps:
                if d.gap is None or d.gap + dist > g: return False
            return True
        def place(it):
            it.gap = g; todo.remove(it)
            (G.ds if it.ins.kind in ("D", "W", "X") else G.va).append(it.ins)
        def fits(it, used):
            k = it.ins.kind
            if any(x.kind == "X" for x in G.ds): return False
            if k == "X": return used == 0
            return True
        used = 0
        for it in [x for x in todo if x.dead <= g]:
            if ok(it) and fits(it, used): place(it); used += it.cost
        while used < 8:
            c = [it for it in todo if ok(it) and fits(it, used) and it.cost <= 8 - used]
            if not c: break
            it = c[0]
            if used == 0 and it.cost == 4:
                four = [x for x in c[1:] if x.cost == 4 or False]
                dep_next = [x for x in todo if x.cost == 4 and x is not it and x.ready <= g and all((d.gap is not None and d.gap + dist <= g) or (d is it and dist == 0) for d, dist in x.deps)]
                eight = [x for x in c if x.cost == 8]
                if not dep_next and eight and it.dead > g: it = eight[0]
            place(it); used += it.cost
        c = [it for it in todo if ok(it) and fits(it, used) and it.cost == 4 and it.target < g - cfg.lag]
        if c and used > 0:
            place(c[0]); used += 4
        while True:
            over = False
            dem = 0
            for it in sorted(todo, key=lambda i: min(i.dead, n - 1)):
                dem += 12 if it.ins.kind == "X" else it.cost
                d = min(it.dead, n - 1)
                if dem > 12 * (d - g): over = True; break
            if not over: break
            c = sorted([it for it in todo if ok(it) and fits(it, used)], key=lambda i: (min(i.dead, n - 1), i.target))
            if not c: break
            place(c[0]); used += c[0].cost
    if todo:
        raise Exception("%s: unscheduled items: %s" % (name, [(i.ins.text, i.ready, i.dead) for i in todo]))
    for it in items:
        if it.gap > it.dead: raise Exception("%s: deadline miss %s gap %d > %d" % (name, it.ins.text, it.gap, it.dead))

def softmax_items(h, base, rdy, dead, lo=(0, 0, 0), hi=(16, 16, 8), carry=None):
    its = []; M = {}; E = {}
    def reg(e):
        grp = e // 4; q = grp % 2; kt = grp // 2
        return q, kt, S_(h, q, kt) + e % 4
    for e in range(lo[0], hi[0]):
        q, kt, r = reg(e)
        M[e] = Item(mul_(r), rdy(q, kt), dead(q) - 2, base + 2 * e); its.append(M[e])
    for e in range(lo[1], hi[1]):
        q, kt, r = reg(e)
        E[e] = Item(exp_(r), rdy(q, kt), dead(q) - 1, base + 2 * e + 1, [(M[e], 0)] if e in M else []); its.append(E[e])
    for j in range(lo[2], hi[2]):
        q, kt, r = reg(2 * j)
        deps = [(E[e], 1) for e in (2 * j, 2 * j + 1) if e in E]
        its.append(Item(cvt_(P_(h, q) + 2 * kt + j % 2, r, r + 1), rdy(q, kt), dead(q), base + 4 * j + 4, deps))
    return its

def kread(f, slot, dT):
    return dsr128("a", AK + 4 * f, KA + f % 4, slot * 8192 + (f // 4) * 4096, ("K", dT))
def vread(b, jj, slot, dT):
    return dstr(AV + 4 * b + 2 * jj, VA + b, slot * 8192 + jj * 4096, ("V", dT))
def kv_dmas(t, lead):
    ks = (t + lead + 1) % 8; vs = (t + lead) % 8
    return [dma(DA, sK_, sKo, 0, ("K", lead + 1), (sMK, ks * 8192), cfg.kv_aux), dma(DB, sK_, sKo, 1024, ("K", lead + 1), (sMK, ks * 8192), cfg.kv_aux),
            dma(DA, sV_, sVo, 0, ("V", lead), (sMV, vs * 8192), cfg.kv_aux), dma(DB, sV_, sVo, 1024, ("V", lead), (sMV, vs * 8192), cfg.kv_aux)]
def q_dmas(h, du, msgpr=sMS, mconst=0):
    return [dma(DA if i % 2 == 0 else DB, sQ_, sQa if i < 4 else sQb, (i % 4) * 1024, ("Q", h, du), (msgpr, mconst + (i // 4) * 4096), cfg.q_aux) for i in range(8)]
def q_reads(dst, h, du, addr=QA):
    return [dsr128("a", dst + 16 * q + 4 * s, addr + s, q * 4096, ("Q", h, du)) for q in range(2) for s in range(4)]

def epi_burst(h, check=True):
    L = []
    for q in range(2): L.append(v1("v_accvgpr_read_b32", "v%d" % (ET + q), "a%d" % (AL + 4 * (2 * h + q))))
    for q in range(2): L.append(v1("v_rcp_f32", "v%d" % (ER + 2 * q), "v%d" % (ET + q), "T"))
    if check:
        for q in range(2): L.append(v2("v_subrev_u32", "v%d" % (EU + q), "s%d" % sLO, "v%d" % (ET + q)))
        L.append(valu("v_cmp_le_u32 vcc, s%d, v%d" % (sRG, EU), ["s%d" % sRG, "v%d" % EU], ["vcc"]))
        L.append(valu("v_cmp_le_u32 s[%d:%d], s%d, v%d" % (sCMP, sCMP + 1, sRG, EU + 1), ["s%d" % sRG, "v%d" % (EU + 1)], R("s", sCMP, 2)))
    else:
        L.append(nop(1))
    for q in range(2):
        for b in range(8):
            for i in range(2):
                a = O_(2 * h + q, b) + 2 * i
                L.append(valu("v_pk_mul_f32 v[%d:%d], v[%d:%d], v[%d:%d] op_sel_hi:[1,0]" % (a, a + 1, a, a + 1, ER + 2 * q, ER + 2 * q + 1),
                              R("v", a, 2) + ["v%d" % (ER + 2 * q)], R("v", a, 2), "K"))
    if check:
        L.append(salu("s_or_b64 s[%d:%d], s[%d:%d], vcc" % (sACC, sACC + 1, sACC, sACC + 1), ["vcc"] + R("s", sACC, 2), R("s", sACC, 2)))
        L.append(salu("s_or_b64 s[%d:%d], s[%d:%d], s[%d:%d]" % (sACC, sACC + 1, sACC, sACC + 1, sCMP, sCMP + 1), R("s", sCMP, 2) + R("s", sACC, 2), R("s", sACC, 2)))
    for q in range(2):
        for bp in range(4):
            a = O_(2 * h + q, 2 * bp)
            for i in range(4): L.append(cvt_(a + i, a + 2 * i, a + 2 * i + 1))
            if check and cfg.finchk and (q, bp) != (0, 0):
                pa = a - 8
                L.append(mfma("a", ACHK, "a", AZERO, "v", pa, czero=(h == 0 and (q, bp) == (0, 1))))
    if check and cfg.finchk:
        L.append(nop(2))
        L.append(mfma("a", ACHK, "a", AZERO, "v", O_(2 * h + 1, 6)))
    return L
def flag_ops():
    L = []
    if cfg.finchk:
        L.append(v1("v_accvgpr_read_b32", "v%d" % ET, "a%d" % ACHK))
        L.append(valu("v_cmp_u_f32 vcc, v%d, v%d" % (ET, ET), ["v%d" % ET], ["vcc"]))
        L.append(nop(2))
        L.append(salu("s_or_b64 s[%d:%d], s[%d:%d], vcc" % (sACC, sACC + 1, sACC, sACC + 1), ["vcc"] + R("s", sACC, 2), R("s", sACC, 2)))
    L.append(salu("s_cmp_lg_u64 s[%d:%d], 0" % (sACC, sACC + 1), R("s", sACC, 2), ["scc"]))
    L.append(salu("s_addc_u32 s%d, s%d, s%d" % (sBAD, sBAD, sBAD), ["scc", "s%d" % sBAD], ["s%d" % sBAD]))
    L.append(salu("s_mov_b64 s[%d:%d], 0" % (sACC, sACC + 1), [], R("s", sACC, 2)))
    return L
def o_writes(h):
    return [dsw64(OW + b % 4, O_(2 * h + q, b & ~1) + 2 * (b & 1), (b // 4) * 128 + q * 4096) for q in range(2) for b in range(8)]
def o_reads(h, du):
    L = []
    for j in range(8):
        for i in range(2):
            d = AO + 32 * h + 4 * j + 2 * i; addr = OR_ + 2 * (j % 4) + i
            L.append(Ins("ds_read_b64 %s, v%d offset:%d" % (rng("a", d, 2), addr, j * 1024), "D", ["v%d" % addr], R("a", d, 2), tag=("O", h, du)))
    return L
def o_stores(h):
    return [store(AO + 32 * h + 4 * j, sOa if j < 4 else sOb, (j % 4) * 1024) for j in range(8)]
USTRIDE = 131072 if cfg.hmap == 0 else 128 * 131072
def adv(which, cross):
    o, t, b = (sKo, sKt, sKb) if which == "K" else (sVo, sVt, sVb)
    if not cfg.rot:
        return [s2("s_add_u32", "s%d" % o, "s%d" % o, str(8192 + (USTRIDE - 131072 if cross else 0)))]
    L = [s2("s_add_u32", "s%d" % t, "s%d" % t, "8192"), s2("s_and_b32", "s%d" % t, "s%d" % t, "0x1ffff")]
    if cross: L.append(s2("s_add_u32", "s%d" % b, "s%d" % b, str(USTRIDE)))
    L.append(s2("s_add_u32", "s%d" % o, "s%d" % b, "s%d" % t))
    return L

LEAD = cfg.lead
LAT = cfg.lat
B0, B1, B2, B3, NG = 0, 16, 34, 50, 68
NW0 = 9
QA_IT = [cfg.qa0 + i for i in range(4)]; QB_IT = [8, 9, 10, 11]; ST_IT = [1, 6, 7, 12, 13, 14, 15]
QRD = cfg.qa0 + 5; QB_IT = [QRD + 1 + i for i in range(4)] if QRD <= 7 else [QRD + 1, QRD + 2]
ST_IT = ([1] + [t for t in range(2, 16) if t not in QA_IT and t not in QB_IT] + [8])
ST_IT = sorted(ST_IT[:8])

class Seg:
    def __init__(self): self.gaps = []; self.sitems = []; self.head = []; self.tail = []; self.post = []

def build_iter(t, first=False):
    sg = Seg()
    if first:
        b0, b1, b2, b3, ng = 0, None, 16, 32, 50
        mf = qk_block(0) + qk_block(1) + pv_block(0, True)
    else:
        b0, b1, b2, b3, ng = B0, B1, B2, B3, NG
        mf = qk_block(0) + pv_block(1, t == 1) + qk_block(1) + pv_block(0, t == 0)
    gaps = [Gap(m) for m in mf]
    items = []
    INF = 10 ** 6
    slot = t % 8; nslot = (t + 1) % 8
    isbar = (t % cfg.barper == 0)
    bar_gap = 14
    if not first:
        items += softmax_items(1, 48 - NG, lambda q, kt: 0, lambda q: b1 + q - 2, lo=(cfg.e0, cfg.e0, cfg.c0))
        for f in range(cfg.f0, 8):
            items.append(Item(kread(f, slot, 0), 0, 2 * f - LAT, 57.7 + 2.48 * f - NG))
    items += softmax_items(0, (14 if not first else 12), lambda q, kt: b0 + 8 * kt + 6 + q + cfg.rdy, lambda q: b3 + q - 2)
    items += softmax_items(1, b3 - 2, lambda q, kt: b2 + 8 * kt + 6 + q + cfg.rdy, lambda q: INF, hi=(cfg.e0, cfg.e0, cfg.c0))
    for b in range(8):
        for jj in range(2):
            rdy = (b1 + pvpos(b, 1)) if not first else cfg.fbar + 1
            items.append(Item(vread(b, jj, slot, 0), max(rdy, bar_gap + 1), b3 + pvpos(b, 0) - LAT, (18 + 2.48 * (2 * b + jj)) if not first else cfg.fbar + 1 + b + jj * 0.5))
    for f in range(cfg.f0):
        items.append(Item(kread(f, nslot, 1), max(b2 + 2 * f + 1, cfg.fbar + 1 if first else 0), INF, b3 + 7.7 + 2.48 * f))
    def chain(lst, targets, ready, dead=INF, dist=1, after=None):
        p = after; res = []
        for k, (ins, tgt) in enumerate(zip(lst, targets)):
            dd = dead[k] if isinstance(dead, list) else dead
            it = Item(ins, ready, dd, tgt, [(p, dist)] if p else []); items.append(it); p = it; res.append(it)
        return res
    def kd(n): return [dma(DA, sK_, sKo, 0, ("K", n), (sMK, (n % 8) * 8192), cfg.kv_aux), dma(DB, sK_, sKo, 1024, ("K", n), (sMK, (n % 8) * 8192), cfg.kv_aux)]
    def vd(n): return [dma(DA, sV_, sVo, 0, ("V", n), (sMV, (n % 8) * 8192), cfg.kv_aux), dma(DB, sV_, sVo, 1024, ("V", n), (sMV, (n % 8) * 8192), cfg.kv_aux)]
    if first:
        lst = []
        for n in range(LEAD + 1): lst += [("V", vd(n)), ("K", kd(n + 1))]
        if cfg.early: lst = lst[1:]
        p = None; tg = 1
        for k, (w, pr) in enumerate(lst):
            rdy = 1 if k < 8 - cfg.early else cfg.fbar + 2
            its = chain(pr, [tg, tg + 1], rdy, after=p, dist=1); p = its[1]; tg += 2 if k < 4 else 3
            sg.post.append((its[1], adv(w, False)))
        gaps[7].sh.append(vsite([("Q", 1, 0)]))
        for i, ins in enumerate(q_reads(AQ + 32, 1, 0, addr=TM)):
            items.append(Item(ins, 8, 15 - LAT + 2 * (i % 4) + (i // 4) + 2, 8 + (i % 4) + 0.5 * (i // 4)))
        al = lsite(); al.needs = "all"
        gaps[cfg.fbar].sh += [al, vsite([("V", 0), ("K", 1)]), bar()]
        if cfg.barper == 2: gaps[ng - 1].va += [vsite([("V", 1), ("K", 2)]), bar()]
    else:
        dm = kv_dmas(t, LEAD)
        dmt = [17, 21, 58, 62] if isbar else [3, 7, 58, 62]
        kvits = chain(dm, dmt, (bar_gap + 2) if isbar else 1)
        for a in adv("K", (t + LEAD + 2) % 16 == 0): sg.sitems.append((a, ("after", kvits[1]), None))
        for a in adv("V", (t + LEAD + 1) % 16 == 0): sg.sitems.append((a, ("after", kvits[3]), None))
        if isbar:
            needs = [("V", 0), ("K", 1)] + ([("V", 1), ("K", 2)] if cfg.barper == 2 else [])
            gaps[bar_gap - 1].sh.append(vsite(needs))
            gaps[bar_gap].sh.append(bar())
    XT = [32, 42]
    if not first and t == 0:
        gaps[0].pre += epi_burst(0)
        W = chain(o_writes(0), [0.5 + 1.9 * i for i in range(16)], 0, 38)
        chain(o_reads(0, -1), [31 + 0.9 * j for j in range(16)], 0, 47, dist=0, after=W[15])
        gaps[48].pre += epi_burst(1)
        chain(o_writes(1)[:NW0], [48.5 + 2 * i for i in range(NW0)], 48)
        for i in range(16, 32):
            items.append(Item(v1("v_accvgpr_mov_b32", "a%d" % (AQ + 32 + i), "a%d" % (AQN + i)), 0, b2 - 2, 2 * (i - 16)))
        gaps[60].pre += flag_ops()
    if t == 1:
        ws = o_writes(1)[NW0:]
        W = chain(ws, [0.5 + 2 * i for i in range(len(ws))], 0, [b1 + pvpos(2 * ((NW0 + i) % 8 // 2), (NW0 + i) // 8) - 1 for i in range(len(ws))])
        chain(o_reads(1, -1), [16 + 2 * j for j in range(16)], 0, INF, dist=0, after=W[-1])
        al = lsite(); al.needs = "all"; gaps[ng - 1].sh.insert(1, al)
    if not first and t in ST_IT:
        k = ST_IT.index(t); h = k // 4
        st = chain(o_stores(h)[2 * (k % 4):2 * (k % 4) + 2], XT if t != 1 else [50, 54], 24, 56)
        if k % 4 == 0: sg.head += [s2("s_add_u32", "s%d" % sOb, "s%d" % sOa, "4096")]
        if k == 3: sg.sitems.append((s2("s_add_u32", "s%d" % sOa, "s%d" % sOa, "8192"), ("after", st[1]), None))
        if k == 7:
            sg.sitems.append((s2("s_add_u32", "s%d" % sOa, "s%d" % sOa, str(USTRIDE - 8192)), ("after", st[1]), None))
            sg.sitems.append((smov("s%d" % (sO_ + 2), "s%d" % sONR), ("after", st[1]), None))
    for h, its in ((1, QA_IT), (0, QB_IT)):
        if t in its:
            k = its.index(t)
            if k == 0:
                sg.head += [s2("s_add_u32", "s%d" % sQa, "s%d" % sQo, str(8192 * h)), s2("s_add_u32", "s%d" % sQb, "s%d" % sQo, str(8192 * h + 4096))]
            npi = 8 // len(its)
            chain(q_dmas(h, 1)[npi * k:npi * k + npi], XT if npi == 2 else [28, 34, 40, 46], 24, 56)
            if h == 0 and k == len(its) - 1: sg.tail += [s2("s_add_u32", "s%d" % sQo, "s%d" % sQo, str(USTRIDE))]
    if t == QRD:
        gaps[29].sh.append(vsite([("Q", 1, 1)]))
        for i, ins in enumerate(q_reads(AQN, 1, 1)):
            items.append(Item(ins, 30, INF, 30 + 4 * i))
        al = lsite(); al.needs = "all"; gaps[ng - 1].sh.insert(1, al)
    if t == 15:
        gaps[15].sh.append(vsite([("Q", 0, 1)]))
        for i, ins in enumerate(q_reads(AQ, 0, 1)):
            items.append(Item(ins, 16, ng - 1 - LAT, 17 + 5 * i))
        for i in range(16):
            items.append(Item(v1("v_accvgpr_mov_b32", "a%d" % (AQ + 32 + i), "a%d" % (AQN + i)), b3, INF, b3 + i))
    schedule(gaps, items, "it%d%s" % (t, "f" if first else ""))
    for it, ops in sg.post: gaps[it.gap].va += ops
    sg.gaps = gaps
    return sg

def place_scalar(sg):
    gaps = sg.gaps
    def busy(G): return sum(1 for x in G.sh if (x.kind not in ("LSITE", "VSITE")) ) + (1 if any(x.kind in ("LSITE", "VSITE") and x.n is not None for x in G.sh) else 0)
    cur = None; lastx = -1
    for g, G in enumerate(gaps):
        if any("s_mov_b32 m0" in x.text for x in G.pre): cur = None; lastx = max(lastx, g - 1)
        for x in G.ds:
            if x.kind == "X" and "m0" in x.rd:
                if cur != x.cmt:
                    cands = [k for k in range(max(lastx, 0) if lastx < 0 else lastx + 1, g)]
                    free = [k for k in cands if busy(gaps[k]) == 0]
                    if cands:
                        k = free[-1] if free else cands[-1]
                        gaps[k].sh.append(setm0(x.cmt))
                    elif any("s_mov_b32 m0" in y.text for y in G.pre):
                        G.pre.append(setm0(x.cmt))
                    else:
                        gaps[lastx].va.append(setm0(x.cmt))
                    cur = x.cmt
                lastx = g
    lastpos = {}
    ntail = 0
    for ins, (how, it), _ in sg.sitems:
        c = [k for k in range(max(it.gap, lastpos.get(id(it), -1)) + 1, len(gaps)) if busy(gaps[k]) == 0]
        if c: gaps[c[0]].sh.append(ins); lastpos[id(it)] = c[0]
        else: sg.tail.insert(ntail, ins); ntail += 1; lastpos[id(it)] = len(gaps)

def flat(sg):
    L = list(sg.head)
    for G in sg.gaps: L += G.flat()
    return L + sg.tail

def prologue():
    L = []
    A = L.append
    A(raw("s_cmp_ge_u32 s2, 256")); A(raw("s_cbranch_scc1 L_end"))
    A(raw("s_load_dwordx4 s[36:39], s[0:1], 0")); A(raw("s_load_dwordx4 s[40:43], s[0:1], 16"))
    A(v2("v_lshrrev_b32", "v1", "6", "v0")); A(v2("v_and_b32", "v0", "63", "v0"))
    A(valu("v_readfirstlane_b32 s%d, v1" % sW, ["v1"], ["s%d" % sW]))
    A(v2("v_lshrrev_b32", "v2", "4", "v0"))
    A(v2("v_and_b32", "v3", "15", "v0"))
    if cfg.xmap == 0:
        A(raw("s_and_b32 s45, s2, 7")); A(raw("s_lshr_b32 s46, s2, 4")); A(raw("s_lshl_b32 s45, s45, 4")); A(raw("s_add_u32 s45, s45, s46"))
    else:
        A(raw("s_and_b32 s45, s2, 7")); A(raw("s_lshr_b32 s46, s2, 4")); A(raw("s_lshl_b32 s46, s46, 3")); A(raw("s_add_u32 s45, s45, s46"))
    if cfg.rot:
        A(raw("s_mul_i32 s%d, s45, %d" % (sKt, cfg.rot * 8192))); A(raw("s_and_b32 s%d, s%d, 0x1ffff" % (sKt, sKt))); A(smov("s%d" % sVt, "s%d" % sKt))
        A(smov("s%d" % sKb, "0")); A(smov("s%d" % sVb, "0"))
    A(raw("s_lshl_b32 s45, s45, %d" % (19 if cfg.hmap == 0 else 17)))
    A(raw("s_bfe_u32 s46, s2, 0x10003")); A(raw("s_lshl_b32 s46, s46, 16")); A(raw("s_add_u32 s46, s46, s45"))
    A(s2("s_lshl_b32", "s%d" % sMK, "s%d" % sW, "11"))
    A(v2("v_lshlrev_b32", "v4", "1", "v2")); A(v2("v_xor_b32", "v4", "v3", "v4")); A(v2("v_lshlrev_b32", "v4", "4", "v4"))
    A(v3("v_lshl_add_u32", "v4", "v2", "8", "v4")); A(v2("v_add_u32", "v%d" % DA, "s%d" % sMK, "v4")); A(v2("v_xor_b32", "v%d" % DB, "0x80", "v%d" % DA))
    A(s2("s_add_u32", "s%d" % sMV, "s%d" % sMK, str(LDS_V)))
    A(s2("s_lshl_b32", "s%d" % sMS, "s%d" % sW, "13")); A(s2("s_add_u32", "s%d" % sMS, "s%d" % sMS, str(LDS_S)))
    A(s2("s_mul_i32", "s%d" % sQo, "s%d" % sW, str(16384 - 2048)))
    A(s2("s_lshl_b32", "s%d" % sOa, "s%d" % sW, "14")); A(s2("s_sub_u32", "s%d" % sOa, "s%d" % sOa, str(USTRIDE)))
    for b in (sQ_, sK_, sV_, sO_): A(smov("s%d" % (b + 3), "0x20000"))
    A(smov("s%d" % (sK_ + 2), str(3 * USTRIDE + 131072))); A(smov("s%d" % (sV_ + 2), str(3 * USTRIDE + 131072)))
    A(smov("s%d" % (sQ_ + 2), str(3 * USTRIDE + 65536))); A(smov("s%d" % sONR, str(3 * USTRIDE + 65536))); A(smov("s%d" % (sO_ + 2), "0"))
    A(smov("s%d" % sKo, "s%d" % sKt if cfg.rot else "0")); A(smov("s%d" % sVo, "s%d" % sKt if cfg.rot else "0"))
    A(raw("s_waitcnt lgkmcnt(0)"))
    if cfg.stamp2: L += stamp()
    for b, p, o in ((sK_, 38, 45), (sQ_, 36, 46), (sV_, 40, 45), (sO_, 42, 46)):
        A(salu("s_add_u32 s%d, s%d, s%d" % (b, p, o), [], ["s%d" % b])); A(salu("s_addc_u32 s%d, s%d, 0" % (b + 1, p + 1), [], ["s%d" % (b + 1)]))
    def issue(lst):
        cur = None
        for x in lst:
            if x.kind == "X" and cur != x.cmt:
                A(setm0(x.cmt)); A(nop(1)); cur = x.cmt
            A(x)
    A(smov("s%d" % sQa, "s%d" % sQo)); A(s2("s_add_u32", "s%d" % sQb, "s%d" % sQo, "4096"))
    k0 = [dma(DA, sK_, sKo, 0, ("K", 0), (sMK, 0), cfg.kv_aux), dma(DB, sK_, sKo, 1024, ("K", 0), (sMK, 0), cfg.kv_aux)]
    v0 = [dma(DA, sV_, sVo, 0, ("V", 0), (sMV, 0), cfg.kv_aux), dma(DB, sV_, sVo, 1024, ("V", 0), (sMV, 0), cfg.kv_aux)]
    q0 = q_dmas(0, 0)
    if cfg.early:
        issue([k0[0], q0[0], v0[0], k0[1], v0[1]] + adv("K", False) + adv("V", False) + q0[1:])
    else:
        issue(k0 + adv("K", False) + q0)
    A(s2("s_add_u32", "s%d" % sQa, "s%d" % sQo, "8192")); A(s2("s_add_u32", "s%d" % sQb, "s%d" % sQo, str(8192 + 4096)))
    A(s2("s_sub_u32", "s%d" % sT, "s%d" % sMS, "32768"))
    issue(q_dmas(1, 0, msgpr=sT))
    if cfg.stamp2: L += stamp()
    A(s2("s_add_u32", "s%d" % sQo, "s%d" % sQo, str(USTRIDE)))
    A(v2("v_and_b32", "v5", "7", "v3")); A(v2("v_lshlrev_b32", "v6", "1", "v5"))
    for s in range(4):
        A(v2("v_add_u32", "v7", str(4 * s), "v2")); A(v2("v_xor_b32", "v7", "v7", "v6")); A(v2("v_lshlrev_b32", "v7", "4", "v7"))
        A(v3("v_lshl_add_u32", "v%d" % (KA + s), "v3", "8", "v7"))
        A(v2("v_add_u32", "v%d" % (QA + s), "s%d" % sMS, "v%d" % (KA + s)))
        A(v2("v_subrev_u32", "v%d" % (TM + s), "0x8000", "v%d" % (QA + s)))
    A(v2("v_lshrrev_b32", "v8", "2", "v0"))
    A(v2("v_and_b32", "v9", "7", "v8")); A(v2("v_lshlrev_b32", "v9", "1", "v9"))
    A(valu("v_bfe_u32 v10, v0, 1, 1", ["v0"], ["v10"]))
    A(v2("v_and_b32", "v11", "1", "v0")); A(v2("v_lshlrev_b32", "v11", "3", "v11"))
    A(v3("v_lshl_add_u32", "v11", "v8", "8", "v11")); A(v2("v_add_u32", "v11", str(LDS_V), "v11"))
    for b in range(8):
        A(v2("v_add_u32", "v7", str(2 * b), "v10")); A(v2("v_xor_b32", "v7", "v7", "v9"))
        A(v3("v_lshl_add_u32", "v%d" % (VA + b), "v7", "4", "v11"))
    A(v2("v_lshlrev_b32", "v11", "8", "v3")); A(v2("v_add_u32", "v11", "s%d" % sMS, "v11"))
    A(v2("v_lshlrev_b32", "v12", "8", "v2")); A(v2("v_add_u32", "v12", "s%d" % sMS, "v12")); A(v2("v_lshlrev_b32", "v13", "1", "v3"))
    for j in range(4):
        A(v2("v_add_u32", "v7", str(4 * j), "v2")); A(v2("v_xor_b32", "v10", "v7", "v3"))
        A(v3("v_lshl_add_u32", "v%d" % (OW + j), "v10", "3", "v11"))
        A(v2("v_xor_b32", "v10", "v7", "v13"))
        A(v3("v_lshl_add_u32", "v%d" % (OR_ + 2 * j), "v10", "3", "v12")); A(v2("v_xor_b32", "v%d" % (OR_ + 2 * j + 1), "8", "v%d" % (OR_ + 2 * j)))
    A(v2("v_lshlrev_b32", "v%d" % OS, "4", "v0"))
    A(v2("v_and_b32", "v7", "3", "v0")); A(valu("v_cmp_eq_u32 vcc, 0, v7", ["v7"], ["vcc"])); A(v1("v_mov_b32", "v8", "0x3f803f80")); A(v1("v_mov_b32", "v9", "0"))
    A(valu("v_cndmask_b32 v7, v9, v8, vcc", ["v8", "v9", "vcc"], ["v7"]))
    for i in range(4):
        A(v1("v_accvgpr_write_b32", "a%d" % (AONE + i), "v7")); A(v1("v_accvgpr_write_b32", "a%d" % (AZERO + i), "v9"))
    A(smov("s%d" % sC, "0x%08x" % SCALE)); A(smov("s%d" % sLO, "0x%08x" % LO_BITS)); A(smov("s%d" % sRG, "0x%08x" % (HI_BITS - LO_BITS)))
    A(smov("s%d" % sBAD, "0")); A(salu("s_mov_b64 s[%d:%d], 0" % (sACC, sACC + 1), [], R("s", sACC, 2)))
    A(smov("s%d" % sCNT, "3"))
    A(s2("s_add_u32", "s%d" % sOb, "s%d" % sOa, "4096"))
    if cfg.stamp2: L += stamp()
    A(vsite([("K", 0), ("Q", 0, 0)]))
    if cfg.stamp2: L += stamp()
    A(bar())
    qr = q_reads(AQ, 0, 0)
    for s in range(4): L += [kread(s, 0, 0), qr[s], qr[4 + s]]
    for f in range(4, 8): A(kread(f, 0, 0))
    A(lsite())
    return L

def tail_seg():
    L = []
    for it in softmax_items(1, 0, lambda q, kt: 0, lambda q: 99, lo=(cfg.e0, cfg.e0, cfg.c0)):
        L.append(it.ins)
        if it.ins.kind == "T" and it.ins.text == exp_(S_(1, 1, 1) + 3).text: L.append(nop(1))
    L.append(s2("s_add_u32", "s%d" % sOb, "s%d" % sOa, "4096"))
    L += epi_burst(0)
    gaps = [Gap(m) for m in pv_block(1, False)]
    for g, w in enumerate(o_writes(0)): gaps[g].ds.append(w)
    gaps[16].ds += o_reads(0, 0)[:8]
    gaps[17].ds += o_reads(0, 0)[8:]
    for G in gaps: L += G.flat()
    L.append(nop(1))
    L += epi_burst(1)
    L.append(lsite())
    L += o_writes(1)[:8] + o_stores(0)[:4] + o_writes(1)[8:] + o_reads(1, 0) + o_stores(0)[4:]
    L += [s2("s_add_u32", "s%d" % sOa, "s%d" % sOa, "8192"), s2("s_add_u32", "s%d" % sOb, "s%d" % sOb, "8192")]
    L += flag_ops()
    st = o_stores(1)
    L += [lsite()] + st[:4] + [lsite()] + st[4:]
    return L

def slow_path():
    T = []
    A = T.append
    def emit(l):
        for x in l: A(x.text)
    def wait(): A("s_waitcnt vmcnt(0) lgkmcnt(0)");
    A("s_barrier")
    if cfg.force_slow: A("s_mov_b32 s%d, 15" % sBAD)
    A("s_cmp_eq_u32 s%d, 0" % sBAD); A("s_cbranch_scc1 L_end")
    A("s_lshl_b32 s45, s%d, 13" % sW)
    for i in range(4): A("v_add_u32 v%d, s45, v%d" % (KA + i, KA + i))
    for i in range(8): A("v_add_u32 v%d, s45, v%d" % (VA + i, VA + i))
    A("s_add_u32 s46, s45, %d" % LDS_V)
    A("s_mul_i32 s%d, s%d, %d" % (sQo, sW, 16384 - 2048))
    A("s_lshl_b32 s%d, s%d, 14" % (sOo, sW))
    A("v_subrev_u32 v%d, s%d, v%d" % (TM + 4, sMK, DA)); A("v_subrev_u32 v%d, s%d, v%d" % (TM + 5, sMK, DB))
    A("s_mov_b32 s%d, 0" % sCNT)
    A("L_slow_unit:")
    A("s_bitcmp1_b32 s%d, 3" % sBAD); A("s_cbranch_scc0 L_slow_next")
    wait()
    for h in range(2):
        A("s_add_u32 s%d, s%d, %d" % (sQa, sQo, h * 8192)); A("s_add_u32 s%d, s%d, 4096" % (sQb, sQa))
        cur = None
        for x in q_dmas(h, 0):
            if cur != x.cmt: A(setm0(x.cmt).text); A("s_nop 0"); cur = x.cmt
            A(x.text)
        wait(); emit(q_reads(AQ + 32 * h, h, 0)); wait()
    def tile_dma(sr, m0s):
        for i in range(8):
            if i % 4 == 0:
                A("s_add_u32 m0, s%d, %d" % (m0s, (i // 4) * 4096)); A("s_add_u32 s%d, s%d, %d" % (sT, sKo, (i // 4) * 4096))
            A("buffer_load_dwordx4 v%d, %s, s%d offen offset:%d lds" % (TM + 4 + i % 2, srd(sr), sT, (i % 4) * 1024))
    def qk_all():
        emit([kread(f, 0, 0) for f in range(8)]); wait()
        emit(qk_block(0) + qk_block(1)); A("s_nop 7"); A("s_nop 3")
    for i in range(4): A("v_mov_b32 v%d, 0xff800000" % (MX + i))
    A("s_mov_b32 s%d, s%d" % (sKo, sCNT)); A("s_add_u32 s%d, s%d, 131072" % (sVo, sCNT))
    A("L_slow_p1:")
    tile_dma(sK_, 45); wait(); qk_all()
    for h in range(2):
        for q in range(2):
            a = S_(h, q, 0)
            for i in range(4): A("v_max3_f32 v%d, v%d, v%d, v%d" % (MX + 2 * h + q, a + 2 * i, a + 2 * i + 1, MX + 2 * h + q))
    A("s_add_u32 s%d, s%d, 8192" % (sKo, sKo)); A("s_cmp_lt_u32 s%d, s%d" % (sKo, sVo)); A("s_cbranch_scc1 L_slow_p1")
    for op in ("v_permlane32_swap_b32", "v_permlane16_swap_b32"):
        for i in range(4): A("v_mov_b32 v%d, v%d" % (NM + i, MX + i))
        A("s_nop 1")
        for i in range(4): A("%s v%d, v%d" % (op, NM + i, MX + i))
        A("s_nop 1")
        for i in range(4): A("v_max_f32 v%d, v%d, v%d" % (MX + i, MX + i, NM + i))
    for i in range(4): A("v_mul_f32 v%d, s%d, v%d" % (NM + i, sC, MX + i))
    for i in range(128): A("v_mov_b32 v%d, 0" % (OB + i))
    for i in range(16): A("v_accvgpr_write_b32 a%d, 0" % (AL + i))
    A("s_mov_b32 s%d, s%d" % (sKo, sCNT))
    A("L_slow_p2:")
    tile_dma(sK_, 45); tile_dma(sV_, 46); wait(); qk_all()
    emit([vread(b, jj, 0, 0) for b in range(4) for jj in range(2)])
    for h in range(2):
        for q in range(2):
            a = S_(h, q, 0)
            for i in range(8): A("v_fma_f32 v%d, v%d, s%d, -v%d" % (a + i, a + i, sC, NM + 2 * h + q))
            for i in range(8): A("v_exp_f32 v%d, v%d" % (a + i, a + i))
            A("s_nop 0")
            for i in range(4): A(cvt_(P_(h, q) + i, a + 2 * i, a + 2 * i + 1).text)
    emit([vread(b, jj, 0, 0) for b in range(4, 8) for jj in range(2)])
    wait()
    emit(pv_block(0, False) + pv_block(1, False))
    A("s_add_u32 s%d, s%d, 8192" % (sKo, sKo)); A("s_cmp_lt_u32 s%d, s%d" % (sKo, sVo)); A("s_cbranch_scc1 L_slow_p2")
    A("s_nop 7"); A("s_nop 3")
    for h in range(2):
        emit(epi_burst(h, check=False)); emit(o_writes(h) + o_reads(h, 0))
        A("s_add_u32 s%d, s%d, %d" % (sOa, sOo, h * 8192)); A("s_add_u32 s%d, s%d, 4096" % (sOb, sOa))
        wait(); emit(o_stores(h)); wait()
    A("L_slow_next:")
    A("s_lshl_b32 s%d, s%d, 1" % (sBAD, sBAD)); A("s_and_b32 s%d, s%d, 15" % (sBAD, sBAD))
    for r in (sCNT, sQo, sOo): A("s_add_u32 s%d, s%d, %d" % (r, r, USTRIDE))
    A("s_cmp_lg_u32 s%d, 0" % sBAD); A("s_cbranch_scc1 L_slow_unit")
    return T

def stamp():
    if not cfg.stamp: return []
    return [raw("s_memtime s[58:59]"), raw("s_memrealtime s[60:61]"), raw("s_waitcnt lgkmcnt(0)"),
            raw("s_mov_b32 m0, s57"), raw("s_nop 0"), raw("v_writelane_b32 v62, s58, m0"), raw("v_writelane_b32 v63, s60, m0"), raw("s_add_u32 s57, s57, 1")]
def stamp_out():
    if not cfg.stamp: return []
    return [x.text for x in stamp()] + ["s_load_dwordx2 s[36:37], s[0:1], 40", "s_waitcnt lgkmcnt(0)", "s_mov_b32 s38, 0x1000000", "s_mov_b32 s39, 0x20000",
            "s_lshl_b32 s45, s2, 2", "s_add_u32 s45, s45, s%d" % sW, "s_lshl_b32 s45, s45, 9", "v_lshrrev_b32 v61, 2, v%d" % OS,
            "buffer_store_dword v62, v61, s[36:39], s45 offen", "buffer_store_dword v63, v61, s[36:39], s45 offen offset:256"]
def main():
    sgs = {"it0f": build_iter(0, True)}
    for t in range(16): sgs["it%d" % t] = build_iter(t)
    def segs():
        d = {"pro": pro, "tail": tl}
        for k, s in sgs.items(): d[k] = flat(s)
        return d
    pro = prologue(); tl = tail_seg()
    if cfg.dbgspan:
        pro[2:2] = [raw("s_memrealtime s[60:61]"), raw("s_memtime s[62:63]"), raw("s_waitcnt lgkmcnt(0)"), raw("s_mov_b32 s56, s60"), raw("s_mov_b32 s57, s62")]
        i = [k for k, x in enumerate(pro) if x.kind == "BAR"][0]
        pro[i + 1:i + 1] = [raw("s_memrealtime s[58:59]")]
    if cfg.stamp:
        pro[2:2] = [raw("s_mov_b32 s57, 0")] + stamp()
        i = [k for k, x in enumerate(pro) if x.kind == "BAR"][0]
        pro[i + 1:i + 1] = stamp()
        for t in range(0, 16, cfg.stamp): sgs["it%d" % t].head[0:0] = stamp()
        tl[0:0] = stamp()
        if cfg.stamp3:
            G = sgs["it0"].gaps
            G[0].pre += stamp(); G[16].pre += stamp(); G[34].pre += stamp(); G[50].pre[0:0] = stamp(); G[50].pre += stamp()
            sgs["it1"].head[0:0] = stamp(); sgs["it1"].gaps[34].pre += stamp(); sgs["it2"].head[0:0] = stamp(); sgs["it3"].head[0:0] = stamp()
        if cfg.stamp2:
            sgs["it0f"].gaps[16].pre += stamp(); sgs["it0f"].gaps[cfg.fbar + 1].pre += stamp(); sgs["it0f"].tail[0:0] = stamp()
    trace = [("pro", dict(T=0, u=0)), ("it0f", dict(T=0, u=0))]
    for u in range(4):
        for t in range(16):
            if (u, t) != (0, 0): trace.append(("it%d" % t, dict(T=16 * u + t, u=u)))
    trace.append(("tail", dict(T=64, u=3)))
    sgs["it0f"].tail.append(raw("s_branch L_it1", "BR"))
    sgs["it15"].tail += [s2("s_sub_u32", "s%d" % sCNT, "s%d" % sCNT, "1"), raw("s_cbranch_scc0 L_it0", "BR")]
    insert_waits(segs(), trace)
    for k, s in sgs.items():
        br = [x for x in s.tail if x.kind == "BR" or "s_sub_u32 s%d" % sCNT in x.text]
        s.tail = [x for x in s.tail if x not in br]
        place_scalar(s)
        s.tail += br
    fs = {k: finalize(v) for k, v in segs().items()}
    errs = verify(fs, trace, {"K": 8, "V": 16, "Q": 8, "O": 16})
    for e in errs[:40]: sys.stderr.write("ERR " + e + "\n")
    tot = 0
    for k in ["pro", "it0f"] + ["it%d" % t for t in range(16)] + ["tail"]:
        est = issue_estimate(fs[k]); sys.stderr.write("%s:%d " % (k, est))
        if k.startswith("it") and k != "it0f": tot += est
    sys.stderr.write("\nunit estimate %d cycles, errors %d\n" % (tot, len(errs)))
    out = []
    hdr = open(os.path.join(os.path.dirname(os.path.abspath(__file__)), "..", "cdna_kernels", NAME + ".s.ref")).read().split("; Override")[0]
    out.append(hdr.rstrip())
    out.append("; @launch grid=(256,1,1) block=(256,1,1) lds=163840")
    out.append('.amdgcn_target "amdgcn-amd-amdhsa--gfx950"\n.text\n.globl %s_kernel\n.p2align 8\n.type %s_kernel,@function\n%s_kernel:' % (NAME, NAME, NAME))
    def dump(k):
        out.append("; ---- " + k)
        for x in fs[k]:
            if cfg.nocomp and k != "pro" and x.kind in ("M", "V", "T", "K", "D", "W"): continue
            if cfg.nomem and k != "pro" and x.kind == "X" and (cfg.nomem == 1 or "store" in x.text): continue
            if cfg.nostore and x.kind == "X" and "store" in x.text: continue
            out.append("  " + x.text)
            if cfg.nocomp and "m0" in x.wr: out.append("  s_nop 0")
    dump("pro"); dump("it0f")
    out.append(".p2align 6\nL_it0:"); dump("it0"); out.append("L_it1:")
    for t in range(1, 16): dump("it%d" % t)
    dump("tail")
    if cfg.dbgspan:
        out += ["  " + x for x in ["s_waitcnt vmcnt(0)", "s_memrealtime s[60:61]", "s_memtime s[62:63]", "s_load_dwordx2 s[36:37], s[0:1], 32", "s_waitcnt lgkmcnt(0)", "s_mov_b32 s38, 256", "s_mov_b32 s39, 0x20000",
            "s_not_b32 s45, s56", "v_mov_b32 v2, s45", "v_mov_b32 v3, s58", "v_mov_b32 v4, s60", "v_mov_b32 v5, s56", "s_not_b32 s45, s60", "v_mov_b32 v6, s45", "s_sub_u32 s45, s62, s57", "v_mov_b32 v7, s45", "v_mov_b32 v1, 0",
            "s_mov_b64 exec, 1",
            "buffer_atomic_umax v2, v1, s[36:39], 0 offen", "buffer_atomic_umax v3, v1, s[36:39], 0 offen offset:4", "buffer_atomic_umax v4, v1, s[36:39], 0 offen offset:8",
            "buffer_atomic_umax v5, v1, s[36:39], 0 offen offset:12", "buffer_atomic_umax v6, v1, s[36:39], 0 offen offset:16", "buffer_atomic_umax v7, v1, s[36:39], 0 offen offset:20", "s_mov_b64 exec, -1"]]
    if cfg.stamp:
        out.append("  s_waitcnt vmcnt(0)")
        out += ["  " + x for x in stamp_out()]
    if cfg.nocomp or cfg.nomem: out.append("  s_mov_b32 s%d, 0" % sBAD)
    out += ["  " + x if not x.endswith(":") else x for x in slow_path()]
    out.append("L_end:\n  s_endpgm")
    out.append('.section .rodata,"a"\n.p2align 6\n.amdhsa_kernel %s_kernel' % NAME)
    out.append("  .amdhsa_next_free_vgpr 512\n  .amdhsa_next_free_sgpr 64\n  .amdhsa_accum_offset 256\n  .amdhsa_group_segment_fixed_size 0\n  .amdhsa_kernarg_size 48\n  .amdhsa_user_sgpr_count 2\n  .amdhsa_user_sgpr_kernarg_segment_ptr 1\n  .amdhsa_system_sgpr_workgroup_id_x 1\n.end_amdhsa_kernel")
    open(sys.argv[1], "w").write("\n".join(out) + "\n")
    if errs: sys.exit(1)
main()
```

```python
import sys

class Ins:
    __slots__ = ("text", "kind", "rd", "wr", "tag", "needs", "n", "states", "used", "cmt", "srcc", "frees")
    def __init__(self, text, kind, rd=(), wr=(), tag=None, needs=None, states=1, srcc=(), cmt=""):
        self.text = text; self.kind = kind; self.rd = frozenset(rd); self.wr = frozenset(wr)
        self.tag = tag; self.needs = needs; self.n = None; self.states = states; self.cmt = cmt
        self.srcc = frozenset(srcc)

def R(p, a, n=1):
    return [p + str(a + i) for i in range(n)]
def rng(p, a, n):
    return "%s%d" % (p, a) if n == 1 else "%s[%d:%d]" % (p, a, a + n - 1)

def mfma(dp, d, ap, a, bp, b, czero=False):
    c = "0" if czero else rng(dp, d, 4)
    rd = R(ap, a, 4) + R(bp, b, 4) + ([] if czero else R(dp, d, 4))
    return Ins("v_mfma_f32_16x16x32_bf16 %s, %s, %s, %s" % (rng(dp, d, 4), rng(ap, a, 4), rng(bp, b, 4), c), "M", rd, R(dp, d, 4),
               srcc=[] if czero else R(dp, d, 4))
def valu(text, rd, wr, kind="V"):
    return Ins(text, kind, rd, wr)
def salu(text, rd=(), wr=()):
    return Ins(text, "S", rd, wr)
def nop(n):
    return Ins("s_nop %d" % (n - 1), "N", states=n)
def lsite():
    return Ins("", "LSITE")
def vsite(needs):
    return Ins("", "VSITE", needs=needs)
def bar():
    return Ins("s_barrier", "BAR")
def label(name):
    return Ins(name + ":", "LBL", states=0)
def raw(text, kind="S"):
    return Ins(text, kind)

VALU_KINDS = ("V", "T", "K")

def resolve(tag, ctx):
    if tag is None: return None
    if tag[0] in ("K", "V"): return (tag[0], ctx["T"] + tag[1])
    if tag[0] in ("Q", "O"): return (tag[0], tag[1], ctx["u"] + tag[2])
    return tag

def walk(segs, trace):
    cnt = {"K": -1, "V": -1}
    def one(seg, ctx):
        for ins in segs[seg]:
            t = ins.tag
            if ins.kind == "X" and t is not None and t[0] in "KV" and t[1] in ("a", "b"):
                if t[1] == "a": cnt[t[0]] += 1
                t = (t[0], cnt[t[0]])
                if ins.needs is not None and not ctx.get("first"):
                    assert t[1] == ctx["T"] + ins.needs, (seg, t, ctx)
            else:
                t = resolve(t, ctx)
            yield ins, ctx, seg, t
            if ins.kind == "RAMP" and ctx.get("first"):
                for x in one(ins.cmt, ctx): yield x
    for seg, ctx in trace:
        for x in one(seg, ctx): yield x

def insert_waits(segs, trace):
    for it in range(8):
        changed = False
        ds_issued = 0; ds_known = 0; ds_wr = {}
        vm_issued = 0; vm_known = 0; vm_tag = {}; vm_wr = {}
        last_site = None; last_site_issued = 0
        for once in (0,):
            for ins, ctx, seg, rtag in walk(segs, trace):
                k = ins.kind
                if k == "LSITE":
                    last_site = ins; last_site_issued = ds_issued
                    if ins.needs == "all":
                        if ds_known < ds_issued and ins.n != 0: ins.n = 0; changed = True
                    if ins.n is not None: ds_known = max(ds_known, ds_issued - ins.n)
                    continue
                if k == "VSITE":
                    need = -1
                    for t in ins.needs:
                        t = resolve(t, ctx)
                        if t in vm_tag: need = max(need, vm_tag[t])
                        elif not ctx.get("allow_missing"): raise Exception("vsite needs unknown tag %s in %s" % (t, seg))
                    if need >= vm_known:
                        n = min(63, vm_issued - (need + 1))
                        if ins.n is None or n < ins.n: ins.n = n; changed = True
                    if ins.n is not None: vm_known = max(vm_known, vm_issued - ins.n)
                    continue
                if k == "WAITALL":
                    ds_known = ds_issued; vm_known = vm_issued; continue
                for r in (ins.rd | (ins.wr if k != "D" else frozenset())):
                    if r in ds_wr and ds_wr[r] >= ds_known:
                        need = ds_wr[r]
                        if last_site is None or need >= last_site_issued:
                            raise Exception("no lgkm site for %s (reg %s) in %s" % (ins.text, r, seg))
                        n = min(15, last_site_issued - (need + 1))
                        if last_site.n is None or n < last_site.n: last_site.n = n; changed = True
                        ds_known = max(ds_known, last_site_issued - last_site.n)
                if k in ("D", "W"):
                    for r in ins.wr: ds_wr[r] = ds_issued
                    ds_issued += 1
                if k == "X":
                    if ins.tag is not None: vm_tag[rtag] = vm_issued
                    vm_issued += 1
        if not changed: break
    else:
        raise Exception("wait insertion did not converge")

def finalize(lst):
    out = []
    i = 0
    while i < len(lst):
        ins = lst[i]
        if ins.kind in ("LSITE", "VSITE"):
            l = v = None
            while i < len(lst) and lst[i].kind in ("LSITE", "VSITE"):
                if lst[i].n is not None:
                    if lst[i].kind == "LSITE": l = lst[i].n if l is None else min(l, lst[i].n)
                    else: v = lst[i].n if v is None else min(v, lst[i].n)
                i += 1
            if l is not None or v is not None:
                t = "s_waitcnt" + ("" if v is None else " vmcnt(%d)" % v) + ("" if l is None else " lgkmcnt(%d)" % l)
                w = Ins(t, "WAIT"); w.n = (v, l); out.append(w)
            continue
        out.append(ins); i += 1
    return out

def verify(fsegs, trace, nreads):
    errs = []
    hist = []
    ds_issued = ds_known = 0; ds_wr = {}; rd_idx = {}
    vm_issued = vm_known = 0; vm_idx = {}
    visible = set(); freed = set()
    def dist_check(ins, seg):
        d = 0
        for p in reversed(hist):
            if d >= 12: break
            def need(n, why):
                if d < n: errs.append("%s: hazard %s: '%s' -> '%s' dist %d < %d" % (seg, why, p.text, ins.text, d, n))
            pk = p.kind; k = ins.kind
            if pk in VALU_KINDS:
                vw = {r for r in p.wr if r[0] in "va" and r != "vcc"}
                sw = p.wr - vw
                if k == "M" and vw & ins.rd: need(2, "valu->mfma")
                if pk == "T" and k in ("V", "K") and vw & ins.rd: need(1, "trans->valu")
                if pk == "T" and k in ("W", "X") and vw & ins.rd: need(1, "trans->mem")
                if "permlane" in ins.text and vw & (ins.rd | ins.wr): need(2, "valu->permlane")
                if "readfirstlane" in ins.text and vw & ins.rd: need(1, "valu->readlane")
                if sw & ins.rd:
                    if k == "X": need(5, "valu sgpr->vmem")
                    elif k in VALU_KINDS: need(2, "valu sgpr->valu")
                    else: need(2, "valu sgpr->salu")
            if pk == "M":
                if k == "M":
                    ab = ins.rd - ins.srcc
                    if p.wr & ab: need(8, "mfma->mfma ab")
                    if p.wr & ins.srcc and p.wr != ins.srcc: need(6, "mfma->mfma c overlap")
                elif k in VALU_KINDS:
                    if p.wr & (ins.rd | ins.wr): need(8, "mfma->valu")
                    if p.srcc & ins.wr: need(3, "mfma srcc war")
                elif k in ("W", "X", "D"):
                    if p.wr & (ins.rd | ins.wr): need(8, "mfma->mem")
            if pk == "S" and "m0" in p.wr and k == "X" and "m0" in ins.rd: need(1, "m0->dma")
            if pk == "X" and "store" in p.text and k in VALU_KINDS + ("M", "D") and (p.rd & ins.wr): need(2, "store data war")
            d += p.states
    for once in (0,):
        for ins, ctx, seg, rtag in walk(fsegs, trace):
            k = ins.kind
            if k == "LBL": continue
            dist_check(ins, seg)
            if k == "WAIT":
                v, l = ins.n
                if v is not None: vm_known = max(vm_known, vm_issued - v)
                if l is not None: ds_known = max(ds_known, ds_issued - l)
            elif k == "WAITALL":
                vm_known = vm_issued; ds_known = ds_issued
            elif k == "BAR":
                for t, idx in vm_idx.items():
                    if max(idx) < vm_known: visible.add(t)
                for t, idx in rd_idx.items():
                    if len(idx) == nreads[t[0]] and max(idx) < ds_known: freed.add(t)
            for r in (ins.rd | (ins.wr if k != "D" else frozenset())):
                if r in ds_wr and ds_wr[r] >= ds_known: errs.append("%s: DS result %s not waited for '%s'" % (seg, r, ins.text))
            if k in ("D", "W"):
                t = rtag
                if k == "D" and t is not None:
                    if t[0] in "KV":
                        if t not in visible: errs.append("%s: read of %s not visible: %s" % (seg, t, ins.text))
                    elif t[0] == "Q":
                        if t not in vm_idx or max(vm_idx[t]) >= vm_known: errs.append("%s: read of %s before landed" % (seg, t))
                    rd_idx.setdefault(t, []).append(ds_issued)
                for r in ins.wr: ds_wr[r] = ds_issued
                ds_issued += 1
                if ds_issued - ds_known > 15 and False: errs.append("%s: >15 DS outstanding" % seg)
            if k == "X":
                t = rtag
                if t is not None and "lds" in ins.text:
                    if t[0] in "KV":
                        prev = (t[0], t[1] - 8)
                        if t[1] >= 8 and prev not in freed: errs.append("%s: DMA %s before %s freed" % (seg, t, prev))
                        if t[0] == "V" and 4 <= t[1] < 8 and ("Q", 1, 0) not in freed: errs.append("%s: DMA %s before first Q h1 freed" % (seg, t))
                    else:
                        for tt, idx in rd_idx.items():
                            if tt[0] in "QO" and max(idx) >= ds_known: errs.append("%s: staging DMA %s before reads of %s done" % (seg, t, tt))
                    vm_idx.setdefault(t, []).append(vm_issued)
                vm_issued += 1
                if vm_issued - vm_known > 63: errs.append("%s: >63 VMEM outstanding at %s" % (seg, ins.text))
            hist.append(ins)
            if len(hist) > 16: hist.pop(0)
    return errs

def issue_estimate(lst):
    t = 0; mfma_free = 0; last = None; vec_free = 0
    for ins in lst:
        k = ins.kind
        if k == "LBL": continue
        if k == "M":
            t = max(t, mfma_free, vec_free); mfma_free = t + 16; vec_free = t + 8; t += 4
        elif k in ("V", "K"):
            t = max(t, vec_free);
            if k == "K": t = max(t, mfma_free + 4)
            t += 8 if "permlane" in ins.text else 4
        elif k == "T":
            t = max(t, vec_free) + 8
        elif k in ("D", "W"):
            t = max(t, vec_free) + 4 + (8 if last in VALU_KINDS else 0)
        elif k == "X":
            t = max(t, vec_free) + 8 + (24 if last in VALU_KINDS else 0) + (8 if last in ("D", "W") else 0)
        elif k == "N":
            t += 4 * ins.states
        else:
            t += 4
        last = k
    return t
```

```python
import sys, os, struct, math
from core import *

class Cfg:
    barper = 2
    finchk = 1
    lat = 7
    k_aux = ""
    v_aux = ""
    kv_aux = "nt"
    q_aux = "nt"
    o_aux = "nt"
    e0 = 10; c0 = 4; f0 = 5
    force_slow = 0
    hmap = 1
    rot = 0
    xmap = 0
    stamp = 0
    stamp3 = 0
    stamp2 = 0
    nocomp = 0
    nomem = 0
    nostore = 0
    dbgspan = 0
    lag = 1.5
    lead = 6
    stmode = 1
    stgap = 48
    l0 = 3
    cpf = 1
    qa0 = 2
    early = 1
    fbar = 22
    rdy = 5
cfg = Cfg()
for a in sys.argv[2:]:
    k, v = a.split("=")
    setattr(cfg, k, type(getattr(cfg, k))(v))

NAME = "standalone__mha_softmax__near_ridge"
KA = 16; VA = 20; DA = 28; DB = 29; QA = 30; OW = 34; OS = 40; OR_ = 64
ET = 42; ER = 44; EU = 48
MX = 50; NM = 54; TM = 58
PB = 80; SB = 96; OB = 128
def S_(h, q, kt): return SB + 16 * h + 8 * q + 4 * kt
def P_(h, q): return PB + 8 * h + 4 * q
def O_(qt, b): return OB + 32 * qt + 4 * b
AQ = 0; AQN = 64; AK = 96; AV = 128; AO = 160; AL = 224; AONE = 240; AZERO = 244; ACHK = 248
sQ_, sK_, sV_, sO_ = 4, 8, 12, 16
sW = 20; sKo = 21; sVo = 22; sMK = 23; sMV = 24; sQo = 25; sOo = 26; sC = 27; sBAD = 28; sUB = 29; sACC = 30; sCMP = 32
sLO = 34; sRG = 35; sMS = 44; sCNT = 47; sONR = 48; sQa = 50; sQb = 51; sOa = 52; sOb = 53; sT = 54; sKt = 55; sVt = 56; sKb = 62; sVb = 63; sMKn = 29; sMVn = 49
LDS_V = 65536; LDS_S = 131072
SCALE = struct.unpack("<I", struct.pack("<f", math.log2(math.e) / math.sqrt(128.0)))[0]
LO_BITS = (127 - (40 if cfg.finchk else 24)) << 23
HI_BITS = (127 + (40 if cfg.finchk else 24)) << 23

def srd(b): return "s[%d:%d]" % (b, b + 3)
def srdr(b): return R("s", b, 4)

def v2(op, d, a, b, kind="V"):
    rd = [x for x in (a, b) if isinstance(x, str) and x[0] in "vsa" and x[1:].isdigit()]
    return valu("%s %s, %s, %s" % (op, d, a, b), rd, [d], kind)
def v1(op, d, a, kind="V"):
    rd = [a] if isinstance(a, str) and a[0] in "vsa" and a[1:].isdigit() else []
    return valu("%s %s, %s" % (op, d, a), rd, [d], kind)
def v3(op, d, a, b, c):
    rd = [x for x in (a, b, c) if isinstance(x, str) and x[0] in "vsa" and x[1:].isdigit()]
    return valu("%s %s, %s, %s, %s" % (op, d, a, b, c), rd, [d])
def s2(op, d, a, b):
    rd = [x for x in (a, b) if isinstance(x, str) and (x[0] == "s" or x == "m0")]
    return salu("%s %s, %s, %s" % (op, d, a, b), rd, [d, "scc"])
def smov(d, a):
    return salu("s_mov_b32 %s, %s" % (d, a), [a] if isinstance(a, str) and a[0] == "s" else [], [d])
def mul_(r): return v2("v_mul_f32", "v%d" % r, "s%d" % sC, "v%d" % r)
def exp_(r): return v1("v_exp_f32", "v%d" % r, "v%d" % r, "T")
def cvt_(d, a, b): return v2("v_cvt_pk_bf16_f32", "v%d" % d, "v%d" % a, "v%d" % b)
def dsr128(dp, d, addr, off, tag):
    assert 0 <= off < 65536
    return Ins("ds_read_b128 %s, v%d offset:%d" % (rng(dp, d, 4), addr, off), "D", ["v%d" % addr], R(dp, d, 4), tag=tag)
def dstr(d, addr, off, tag):
    assert 0 <= off < 65536
    return Ins("ds_read_b64_tr_b16 %s, v%d offset:%d" % (rng("a", d, 2), addr, off), "D", ["v%d" % addr], R("a", d, 2), tag=tag)
def dsw64(addr, src, off):
    return Ins("ds_write_b64 v%d, %s offset:%d" % (addr, rng("v", src, 2), off), "W", ["v%d" % addr] + R("v", src, 2), [])
def dma(voff, sr, soff, off, tag, m0, aux=""):
    if sr == sK_ and cfg.k_aux: aux = cfg.k_aux
    if sr == sV_ and cfg.v_aux: aux = cfg.v_aux
    i = Ins("buffer_load_dwordx4 v%d, %s, s%d offen offset:%d %slds" % (voff, srd(sr), soff, off, aux + " " if aux else ""), "X",
            ["v%d" % voff, "s%d" % soff, "m0"] + srdr(sr), [], tag=tag)
    i.cmt = m0
    return i
def store(src, soff, off, tag=None):
    return Ins("buffer_store_dwordx4 %s, v%d, %s, s%d offen offset:%d%s" % (rng("a", src, 4), OS, srd(sO_), soff, off, " " + cfg.o_aux if cfg.o_aux else ""), "X",
               R("a", src, 4) + ["v%d" % OS, "s%d" % soff] + srdr(sO_), [], tag=tag)
def setm0(m0):
    return s2("s_add_u32", "m0", "s%d" % m0[0], str(m0[1]))

def qk_block(h):
    L = []
    for f in range(8):
        kt, s = f // 4, f % 4
        for q in range(2):
            L.append(mfma("v", S_(h, q, kt), "a", AK + 4 * f, "a", AQ + 16 * (2 * h + q) + 4 * s, czero=(s == 0)))
    return L
def pvpos(b, q): return 2 * b + q + (1 if b >= 3 else 0) + (1 if b >= 6 else 0)
def pv_block(h, first):
    L = []
    for b in range(8):
        for q in range(2):
            L.append(mfma("v", O_(2 * h + q, b), "a", AV + 4 * b, "v", P_(h, q), czero=first))
        if b in (2, 5):
            q = b // 4
            L.append(mfma("a", AL + 4 * (2 * h + q), "a", AONE, "v", P_(h, q), czero=first))
    return L

class Item:
    def __init__(self, ins, ready, dead, target, deps=()):
        self.ins = ins; self.ready = ready; self.dead = dead; self.target = target; self.deps = list(deps); self.gap = None
        k = ins.kind
        self.cost = 8 if k in ("T", "X") else 4
class Gap:
    def __init__(self, m):
        self.pre = []; self.m = m; self.sh = [lsite()]; self.ds = []; self.va = []
    def flat(self): return self.pre + [self.m] + self.sh + self.ds + self.va

def schedule(gaps, items, name):
    n = len(gaps)
    todo = sorted(items, key=lambda i: (i.target, i.dead))
    for g in range(n):
        G = gaps[g]
        def ok(it):
            if it.ready > g: return False
            for d, dist in it.deps:
                if d.gap is None or d.gap + dist > g: return False
            return True
        def place(it):
            it.gap = g; todo.remove(it)
            (G.ds if it.ins.kind in ("D", "W", "X") else G.va).append(it.ins)
        def fits(it, used):
            k = it.ins.kind
            if any(x.kind == "X" for x in G.ds): return False
            if k == "X": return used == 0
            return True
        used = 0
        for it in [x for x in todo if x.dead <= g]:
            if ok(it) and fits(it, used): place(it); used += it.cost
        while used < 8:
            c = [it for it in todo if ok(it) and fits(it, used) and it.cost <= 8 - used]
            if not c: break
            it = c[0]
            if used == 0 and it.cost == 4:
                four = [x for x in c[1:] if x.cost == 4 or False]
                dep_next = [x for x in todo if x.cost == 4 and x is not it and x.ready <= g and all((d.gap is not None and d.gap + dist <= g) or (d is it and dist == 0) for d, dist in x.deps)]
                eight = [x for x in c if x.cost == 8]
                if not dep_next and eight and it.dead > g: it = eight[0]
            place(it); used += it.cost
        c = [it for it in todo if ok(it) and fits(it, used) and it.cost == 4 and it.target < g - cfg.lag]
        if c and used > 0:
            place(c[0]); used += 4
        while True:
            over = False
            dem = 0
            for it in sorted(todo, key=lambda i: min(i.dead, n - 1)):
                dem += 12 if it.ins.kind == "X" else it.cost
                d = min(it.dead, n - 1)
                if dem > 12 * (d - g): over = True; break
            if not over: break
            c = sorted([it for it in todo if ok(it) and fits(it, used)], key=lambda i: (min(i.dead, n - 1), i.target))
            if not c: break
            place(c[0]); used += c[0].cost
    if todo:
        raise Exception("%s: unscheduled items: %s" % (name, [(i.ins.text, i.ready, i.dead) for i in todo]))
    for it in items:
        if it.gap > it.dead: raise Exception("%s: deadline miss %s gap %d > %d" % (name, it.ins.text, it.gap, it.dead))

def softmax_items(h, base, rdy, dead, lo=(0, 0, 0), hi=(16, 16, 8), carry=None):
    its = []; M = {}; E = {}
    def reg(e):
        grp = e // 4; q = grp % 2; kt = grp // 2
        return q, kt, S_(h, q, kt) + e % 4
    for e in range(lo[0], hi[0]):
        q, kt, r = reg(e)
        M[e] = Item(mul_(r), rdy(q, kt), dead(q) - 2, base + 2 * e); its.append(M[e])
    for e in range(lo[1], hi[1]):
        q, kt, r = reg(e)
        E[e] = Item(exp_(r), rdy(q, kt), dead(q) - 1, base + 2 * e + 1, [(M[e], 0)] if e in M else []); its.append(E[e])
    for j in range(lo[2], hi[2]):
        q, kt, r = reg(2 * j)
        deps = [(E[e], 1) for e in (2 * j, 2 * j + 1) if e in E]
        its.append(Item(cvt_(P_(h, q) + 2 * kt + j % 2, r, r + 1), rdy(q, kt), dead(q), base + 4 * j + 4, deps))
    return its

def kread(f, slot, dT):
    return dsr128("a", AK + 4 * f, KA + f % 4, slot * 8192 + (f // 4) * 4096, ("K", dT))
def vread(b, jj, slot, dT):
    return dstr(AV + 4 * b + 2 * jj, VA + b, slot * 8192 + jj * 4096, ("V", dT))
_uid = [0]
def kd(lead=None):
    _uid[0] += 1
    L = [dma(DA, sK_, sKo, 0, ("K", "a"), (sMKn, 0, _uid[0]), cfg.kv_aux), dma(DB, sK_, sKo, 1024, ("K", "b"), (sMKn, 0, _uid[0]), cfg.kv_aux)]
    for x in L: x.needs = lead
    return L
def vd(lead=None):
    _uid[0] += 1
    L = [dma(DA, sV_, sVo, 0, ("V", "a"), (sMVn, LDS_V, _uid[0]), cfg.kv_aux), dma(DB, sV_, sVo, 1024, ("V", "b"), (sMVn, LDS_V, _uid[0]), cfg.kv_aux)]
    for x in L: x.needs = lead
    return L
def kv_dmas(t, lead):
    return kd(lead + 1) + vd(lead)
def q_dmas(h, du, msgpr=sMS, mconst=0):
    return [dma(DA if i % 2 == 0 else DB, sQ_, sQa if i < 4 else sQb, (i % 4) * 1024, ("Q", h, du), (msgpr, mconst + (i // 4) * 4096), cfg.q_aux) for i in range(8)]
def q_reads(dst, h, du, addr=QA):
    return [dsr128("a", dst + 16 * q + 4 * s, addr + s, q * 4096, ("Q", h, du)) for q in range(2) for s in range(4)]

def epi_burst(h, check=True):
    L = []
    for q in range(2): L.append(v1("v_accvgpr_read_b32", "v%d" % (ET + q), "a%d" % (AL + 4 * (2 * h + q))))
    for q in range(2): L.append(v1("v_rcp_f32", "v%d" % (ER + 2 * q), "v%d" % (ET + q), "T"))
    if check:
        for q in range(2): L.append(v2("v_subrev_u32", "v%d" % (EU + q), "s%d" % sLO, "v%d" % (ET + q)))
        L.append(valu("v_cmp_le_u32 vcc, s%d, v%d" % (sRG, EU), ["s%d" % sRG, "v%d" % EU], ["vcc"]))
        L.append(valu("v_cmp_le_u32 s[%d:%d], s%d, v%d" % (sCMP, sCMP + 1, sRG, EU + 1), ["s%d" % sRG, "v%d" % (EU + 1)], R("s", sCMP, 2)))
    else:
        L.append(nop(1))
    for q in range(2):
        for b in range(8):
            for i in range(2):
                a = O_(2 * h + q, b) + 2 * i
                L.append(valu("v_pk_mul_f32 v[%d:%d], v[%d:%d], v[%d:%d] op_sel_hi:[1,0]" % (a, a + 1, a, a + 1, ER + 2 * q, ER + 2 * q + 1),
                              R("v", a, 2) + ["v%d" % (ER + 2 * q)], R("v", a, 2), "K"))
    if check:
        L.append(salu("s_or_b64 s[%d:%d], s[%d:%d], vcc" % (sACC, sACC + 1, sACC, sACC + 1), ["vcc"] + R("s", sACC, 2), R("s", sACC, 2)))
        L.append(salu("s_or_b64 s[%d:%d], s[%d:%d], s[%d:%d]" % (sACC, sACC + 1, sACC, sACC + 1, sCMP, sCMP + 1), R("s", sCMP, 2) + R("s", sACC, 2), R("s", sACC, 2)))
    for q in range(2):
        for bp in range(4):
            a = O_(2 * h + q, 2 * bp)
            for i in range(4): L.append(cvt_(a + i, a + 2 * i, a + 2 * i + 1))
            if check and cfg.finchk and (q, bp) != (0, 0):
                pa = a - 8
                L.append(mfma("a", ACHK, "a", AZERO, "v", pa, czero=(h == 0 and (q, bp) == (0, 1))))
    if check and cfg.finchk:
        L.append(nop(2))
        L.append(mfma("a", ACHK, "a", AZERO, "v", O_(2 * h + 1, 6)))
    return L
def flag_ops():
    L = []
    if cfg.finchk:
        L.append(v1("v_accvgpr_read_b32", "v%d" % ET, "a%d" % ACHK))
        L.append(valu("v_cmp_u_f32 vcc, v%d, v%d" % (ET, ET), ["v%d" % ET], ["vcc"]))
        L.append(nop(2))
        L.append(salu("s_or_b64 s[%d:%d], s[%d:%d], vcc" % (sACC, sACC + 1, sACC, sACC + 1), ["vcc"] + R("s", sACC, 2), R("s", sACC, 2)))
    L.append(salu("s_cmp_lg_u64 s[%d:%d], 0" % (sACC, sACC + 1), R("s", sACC, 2), ["scc"]))
    L.append(salu("s_addc_u32 s%d, s%d, s%d" % (sBAD, sBAD, sBAD), ["scc", "s%d" % sBAD], ["s%d" % sBAD]))
    L.append(salu("s_mov_b64 s[%d:%d], 0" % (sACC, sACC + 1), [], R("s", sACC, 2)))
    L.append(salu("s_mov_b64 vcc, 0", [], ["vcc"]))
    return L
def o_writes(h):
    return [dsw64(OW + b % 4, O_(2 * h + q, b & ~1) + 2 * (b & 1), (b // 4) * 128 + q * 4096) for q in range(2) for b in range(8)]
def o_reads(h, du):
    L = []
    for j in range(8):
        for i in range(2):
            d = AO + 32 * h + 4 * j + 2 * i; addr = OR_ + 2 * (j % 4) + i
            L.append(Ins("ds_read_b64 %s, v%d offset:%d" % (rng("a", d, 2), addr, j * 1024), "D", ["v%d" % addr], R("a", d, 2), tag=("O", h, du)))
    return L
def o_stores(h):
    return [store(AO + 32 * h + 4 * j, sOa if j < 4 else sOb, (j % 4) * 1024) for j in range(8)]
USTRIDE = 131072 if cfg.hmap == 0 else 128 * 131072
def adv(which, cross):
    o, t, b = (sKo, sKt, sKb) if which == "K" else (sVo, sVt, sVb)
    m = sMKn if which == "K" else sMVn
    M = [s2("s_add_u32", "s%d" % m, "s%d" % m, "8192"), s2("s_and_b32", "s%d" % m, "s%d" % m, "0xffff")]
    if not cfg.rot:
        return M + [s2("s_add_u32", "s%d" % o, "s%d" % o, str(8192 + (USTRIDE - 131072 if cross else 0)))]
    L = M + [s2("s_add_u32", "s%d" % t, "s%d" % t, "8192"), s2("s_and_b32", "s%d" % t, "s%d" % t, "0x1ffff")]
    if cross: L.append(s2("s_add_u32", "s%d" % b, "s%d" % b, str(USTRIDE)))
    L.append(s2("s_add_u32", "s%d" % o, "s%d" % b, "s%d" % t))
    return L

LEAD = cfg.lead
LAT = cfg.lat
B0, B1, B2, B3, NG = 0, 16, 34, 50, 68
NW0 = 9
RAMP_IT = [2, 4, 6][:cfg.lead - cfg.l0]
RAMPS = {}
QA_IT = [cfg.qa0 + i for i in range(4)]; QB_IT = [8, 9, 10, 11]; ST_IT = [1, 6, 7, 12, 13, 14, 15]
QRD = cfg.qa0 + 5; QB_IT = [QRD + 1 + i for i in range(4)] if QRD <= 7 else [QRD + 1, QRD + 2]
ST_IT = ([1] + [t for t in range(2, 16) if t not in QA_IT and t not in QB_IT] + [8])
ST_IT = sorted(ST_IT[:8])
ST_MAP = {t: [2 * i, 2 * i + 1] for i, t in enumerate(ST_IT)} if cfg.stmode == 0 else {(k + 1) % 16: [k] for k in range(16)}

class Seg:
    def __init__(self): self.gaps = []; self.sitems = []; self.head = []; self.tail = []; self.post = []

def build_iter(t, first=False):
    sg = Seg()
    if first:
        b0, b1, b2, b3, ng = 0, None, 16, 32, 50
        mf = qk_block(0) + qk_block(1) + pv_block(0, True)
    else:
        b0, b1, b2, b3, ng = B0, B1, B2, B3, NG
        mf = qk_block(0) + pv_block(1, t == 1) + qk_block(1) + pv_block(0, t == 0)
    gaps = [Gap(m) for m in mf]
    items = []
    INF = 10 ** 6
    slot = t % 8; nslot = (t + 1) % 8
    isbar = (t % cfg.barper == 0)
    bar_gap = 14
    if not first:
        items += softmax_items(1, 48 - NG, lambda q, kt: 0, lambda q: b1 + q - 2, lo=(cfg.e0, cfg.e0, cfg.c0))
        for f in range(cfg.f0, 8):
            items.append(Item(kread(f, slot, 0), 0, 2 * f - LAT, 57.7 + 2.48 * f - NG))
    items += softmax_items(0, (14 if not first else 12), lambda q, kt: b0 + 8 * kt + 6 + q + cfg.rdy, lambda q: b3 + q - 2)
    items += softmax_items(1, b3 - 2, lambda q, kt: b2 + 8 * kt + 6 + q + cfg.rdy, lambda q: INF, hi=(cfg.e0, cfg.e0, cfg.c0))
    for b in range(8):
        for jj in range(2):
            rdy = (b1 + pvpos(b, 1)) if not first else cfg.fbar + 1
            items.append(Item(vread(b, jj, slot, 0), max(rdy, bar_gap + 1), b3 + pvpos(b, 0) - LAT, (18 + 2.48 * (2 * b + jj)) if not first else cfg.fbar + 1 + b + jj * 0.5))
    for f in range(cfg.f0):
        items.append(Item(kread(f, nslot, 1), max(b2 + 2 * f + 1, cfg.fbar + 1 if first else 0), INF, b3 + 7.7 + 2.48 * f))
    def chain(lst, targets, ready, dead=INF, dist=1, after=None):
        p = after; res = []
        for k, (ins, tgt) in enumerate(zip(lst, targets)):
            dd = dead[k] if isinstance(dead, list) else dead
            it = Item(ins, ready, dd, tgt, [(p, dist)] if p else []); items.append(it); p = it; res.append(it)
        return res
    if first:
        lst = []
        for n in range(cfg.l0 + 1): lst += [("V", vd()), ("K", kd())]
        if cfg.early: lst = lst[1:]
        p = None; tg = 1
        for k, (w, pr) in enumerate(lst):
            rdy = 1 if k < 8 - cfg.early else cfg.fbar + 2
            its = chain(pr, [tg, tg + 1], rdy, after=p, dist=1); p = its[1]; tg += 2 if k < 4 else 3
            sg.post.append((its[1], adv(w, False)))
        gaps[7].sh.append(vsite([("Q", 1, 0)]))
        for i, ins in enumerate(q_reads(AQ + 32, 1, 0, addr=TM)):
            items.append(Item(ins, 8, 15 - LAT + 2 * (i % 4) + (i // 4) + 2, 8 + (i % 4) + 0.5 * (i // 4)))
        al = lsite(); al.needs = "all"
        gaps[cfg.fbar].sh += [al, vsite([("V", 0), ("K", 1)]), bar()]
        if cfg.barper == 2: gaps[ng - 1].va += [vsite([("V", 1), ("K", 2)]), bar()]
    else:
        dm = kv_dmas(t, LEAD)
        dmt = [17, 21, 58, 62] if isbar else [3, 7, 58, 62]
        kvits = chain(dm, dmt, (bar_gap + 2) if isbar else 1)
        for a in adv("K", (t + LEAD + 2) % 16 == 0): sg.sitems.append((a, ("after", kvits[1]), None))
        for a in adv("V", (t + LEAD + 1) % 16 == 0): sg.sitems.append((a, ("after", kvits[3]), None))
        if isbar:
            needs = [("V", 0), ("K", 1)] + ([("V", 1), ("K", 2)] if cfg.barper == 2 else [])
            if t in RAMP_IT:
                r = Ins("s_cbranch_vccnz L_ramp%d\nL_back%d:" % (t, t), "RAMP", ["vcc"]); r.cmt = "ramp%d" % t
                gaps[bar_gap - 2].sh.append(r)
                L = [vsite(needs)]
                for w, pr in (("V", vd()), ("K", kd())):
                    L += [setm0(pr[0].cmt), nop(1)] + pr + adv(w, False)
                if t == RAMP_IT[-1]: L.append(salu("s_mov_b64 vcc, 0", [], ["vcc"]))
                L.append(raw("s_branch L_back%d" % t, "BR"))
                RAMPS["ramp%d" % t] = L
            gaps[bar_gap - 1].sh.append(vsite(needs))
            gaps[bar_gap].sh.append(bar())
    XT = [32, 42]
    if not first and t == 0:
        gaps[0].pre += epi_burst(0)
        W = chain(o_writes(0), [0.5 + 1.9 * i for i in range(16)], 0, 38)
        chain(o_reads(0, -1), [31 + 0.9 * j for j in range(16)], 0, 47, dist=0, after=W[15])
        gaps[48].pre += epi_burst(1)
        chain(o_writes(1)[:NW0], [48.5 + 2 * i for i in range(NW0)], 48)
        for i in range(16, 32):
            items.append(Item(v1("v_accvgpr_mov_b32", "a%d" % (AQ + 32 + i), "a%d" % (AQN + i)), 0, b2 - 2, 2 * (i - 16)))
        gaps[60].pre += flag_ops()
    if t == 1:
        ws = o_writes(1)[NW0:]
        W = chain(ws, [0.5 + 2 * i for i in range(len(ws))], 0, [b1 + pvpos(2 * ((NW0 + i) % 8 // 2), (NW0 + i) // 8) - 1 for i in range(len(ws))])
        chain(o_reads(1, -1), [16 + 2 * j for j in range(16)], 0, INF, dist=0, after=W[-1])
        al = lsite(); al.needs = "all"; gaps[ng - 1].sh.insert(1, al)
    if not first and ST_MAP.get(t):
        ks = ST_MAP[t]
        tg = {1: [cfg.stgap], 2: XT}[len(ks)] if t not in (0, 1) else ([50, 54] if t == 1 else [20])
        st = chain([o_stores(k // 8)[k % 8] for k in ks], tg, 18, 56 if t != 0 else 30)
        for k, it in zip(ks, st):
            if k % 8 == 0: sg.head += [s2("s_add_u32", "s%d" % sOb, "s%d" % sOa, "4096")]
            if k == 7: sg.sitems.append((s2("s_add_u32", "s%d" % sOa, "s%d" % sOa, "8192"), ("after", it), None))
            if k == 15:
                sg.sitems.append((s2("s_add_u32", "s%d" % sOa, "s%d" % sOa, str(USTRIDE - 8192)), ("after", it), None))
            if k == (15 if cfg.stmode == 0 else 15):
                sg.sitems.append((smov("s%d" % (sO_ + 2), "s%d" % sONR), ("after", it), None))
    for h, its in ((1, QA_IT), (0, QB_IT)):
        if t in its:
            k = its.index(t)
            if k == 0:
                sg.head += [s2("s_add_u32", "s%d" % sQa, "s%d" % sQo, str(8192 * h)), s2("s_add_u32", "s%d" % sQb, "s%d" % sQo, str(8192 * h + 4096))]
            npi = 8 // len(its)
            chain(q_dmas(h, 1)[npi * k:npi * k + npi], XT if npi == 2 else [28, 34, 40, 46], 24, 56)
            if h == 0 and k == len(its) - 1: sg.tail += [s2("s_add_u32", "s%d" % sQo, "s%d" % sQo, str(USTRIDE))]
    if t == QRD:
        gaps[29].sh.append(vsite([("Q", 1, 1)]))
        for i, ins in enumerate(q_reads(AQN, 1, 1)):
            items.append(Item(ins, 30, INF, 30 + 4 * i))
        al = lsite(); al.needs = "all"; gaps[ng - 1].sh.insert(1, al)
    if t == 15:
        gaps[15].sh.append(vsite([("Q", 0, 1)]))
        for i, ins in enumerate(q_reads(AQ, 0, 1)):
            items.append(Item(ins, 16, ng - 1 - LAT, 17 + 5 * i))
        for i in range(16):
            items.append(Item(v1("v_accvgpr_mov_b32", "a%d" % (AQ + 32 + i), "a%d" % (AQN + i)), b3, INF, b3 + i))
    schedule(gaps, items, "it%d%s" % (t, "f" if first else ""))
    for it, ops in sg.post: gaps[it.gap].va += ops
    sg.gaps = gaps
    return sg

def place_scalar(sg):
    gaps = sg.gaps
    def busy(G): return sum(1 for x in G.sh if (x.kind not in ("LSITE", "VSITE")) ) + (1 if any(x.kind in ("LSITE", "VSITE") and x.n is not None for x in G.sh) else 0)
    cur = None; lastx = -1
    for g, G in enumerate(gaps):
        if any("s_mov_b32 m0" in x.text for x in G.pre): cur = None; lastx = max(lastx, g - 1)
        if any(x.kind == "RAMP" for x in G.sh): cur = None; lastx = max(lastx, g)
        for x in G.ds:
            if x.kind == "X" and "m0" in x.rd:
                if cur != x.cmt:
                    cands = [k for k in range(max(lastx, 0) if lastx < 0 else lastx + 1, g)]
                    free = [k for k in cands if busy(gaps[k]) == 0]
                    if cands:
                        k = free[-1] if free else cands[-1]
                        gaps[k].sh.append(setm0(x.cmt))
                    elif any("s_mov_b32 m0" in y.text for y in G.pre):
                        G.pre.append(setm0(x.cmt))
                    else:
                        gaps[lastx].va.append(setm0(x.cmt))
                    cur = x.cmt
                lastx = g
    lastpos = {}
    ntail = 0
    for ins, (how, it), _ in sg.sitems:
        c = [k for k in range(max(it.gap, lastpos.get(id(it), -1)) + 1, len(gaps)) if busy(gaps[k]) == 0]
        if c: gaps[c[0]].sh.append(ins); lastpos[id(it)] = c[0]
        else: sg.tail.insert(ntail, ins); ntail += 1; lastpos[id(it)] = len(gaps)

def flat(sg):
    L = list(sg.head)
    for G in sg.gaps: L += G.flat()
    return L + sg.tail

def prologue():
    L = []
    A = L.append
    A(raw("s_cmp_ge_u32 s2, 256")); A(raw("s_cbranch_scc1 L_end"))
    A(raw("s_load_dwordx4 s[36:39], s[0:1], 0")); A(raw("s_load_dwordx4 s[40:43], s[0:1], 16"))
    A(v2("v_lshrrev_b32", "v1", "6", "v0")); A(v2("v_and_b32", "v0", "63", "v0"))
    A(valu("v_readfirstlane_b32 s%d, v1" % sW, ["v1"], ["s%d" % sW]))
    A(v2("v_lshrrev_b32", "v2", "4", "v0"))
    A(v2("v_and_b32", "v3", "15", "v0"))
    if cfg.xmap == 0:
        A(raw("s_and_b32 s45, s2, 7")); A(raw("s_lshr_b32 s46, s2, 4")); A(raw("s_lshl_b32 s45, s45, 4")); A(raw("s_add_u32 s45, s45, s46"))
    else:
        A(raw("s_and_b32 s45, s2, 7")); A(raw("s_lshr_b32 s46, s2, 4")); A(raw("s_lshl_b32 s46, s46, 3")); A(raw("s_add_u32 s45, s45, s46"))
    if cfg.rot:
        A(raw("s_mul_i32 s%d, s45, %d" % (sKt, cfg.rot * 8192))); A(raw("s_and_b32 s%d, s%d, 0x1ffff" % (sKt, sKt))); A(smov("s%d" % sVt, "s%d" % sKt))
        A(smov("s%d" % sKb, "0")); A(smov("s%d" % sVb, "0"))
    A(raw("s_lshl_b32 s45, s45, %d" % (19 if cfg.hmap == 0 else 17)))
    A(raw("s_bfe_u32 s46, s2, 0x10003")); A(raw("s_lshl_b32 s46, s46, 16")); A(raw("s_add_u32 s46, s46, s45"))
    A(s2("s_lshl_b32", "s%d" % sMK, "s%d" % sW, "11"))
    A(v2("v_lshlrev_b32", "v4", "1", "v2")); A(v2("v_xor_b32", "v4", "v3", "v4")); A(v2("v_lshlrev_b32", "v4", "4", "v4"))
    A(v3("v_lshl_add_u32", "v4", "v2", "8", "v4")); A(v2("v_add_u32", "v%d" % DA, "s%d" % sMK, "v4")); A(v2("v_xor_b32", "v%d" % DB, "0x80", "v%d" % DA))
    A(smov("s%d" % sMKn, "s%d" % sMK)); A(smov("s%d" % sMVn, "s%d" % sMK))
    if cfg.cpf:
        A(raw("s_lshr_b32 s%d, s2, 3" % sT)); A(raw("s_lshl_b32 s%d, s%d, 2" % (sT, sT))); A(raw("s_add_u32 s%d, s%d, s%d" % (sT, sT, sW)))
        A(raw("s_and_b32 s%d, s%d, 31" % (sT, sT))); A(raw("s_lshl_b32 s%d, s%d, 10" % (sT, sT)))
        A(raw("s_min_u32 s%d, s%d, L_end - L_pc - 1024" % (sT, sT)))
        A(v2("v_lshlrev_b32", "v5", "4", "v0")); A(v2("v_add_u32", "v5", "s%d" % sT, "v5"))
        A(raw("s_getpc_b64 s[58:59]\nL_pc:"))
        A(Ins("global_load_dwordx4 v[72:75], v5, s[58:59]", "X", ["v5"], R("v", 72, 4)))
    A(s2("s_lshl_b32", "s%d" % sMS, "s%d" % sW, "13")); A(s2("s_add_u32", "s%d" % sMS, "s%d" % sMS, str(LDS_S)))
    A(s2("s_mul_i32", "s%d" % sQo, "s%d" % sW, str(16384 - 2048)))
    A(s2("s_lshl_b32", "s%d" % sOa, "s%d" % sW, "14")); A(s2("s_sub_u32", "s%d" % sOa, "s%d" % sOa, str(USTRIDE)))
    for b in (sQ_, sK_, sV_, sO_): A(smov("s%d" % (b + 3), "0x20000"))
    A(smov("s%d" % (sK_ + 2), str(3 * USTRIDE + 131072))); A(smov("s%d" % (sV_ + 2), str(3 * USTRIDE + 131072)))
    A(smov("s%d" % (sQ_ + 2), str(3 * USTRIDE + 65536))); A(smov("s%d" % sONR, str(3 * USTRIDE + 65536))); A(smov("s%d" % (sO_ + 2), "0"))
    A(smov("s%d" % sKo, "s%d" % sKt if cfg.rot else "0")); A(smov("s%d" % sVo, "s%d" % sKt if cfg.rot else "0"))
    A(raw("s_waitcnt lgkmcnt(0)"))
    if cfg.stamp2: L += stamp()
    for b, p, o in ((sK_, 38, 45), (sQ_, 36, 46), (sV_, 40, 45), (sO_, 42, 46)):
        A(salu("s_add_u32 s%d, s%d, s%d" % (b, p, o), [], ["s%d" % b])); A(salu("s_addc_u32 s%d, s%d, 0" % (b + 1, p + 1), [], ["s%d" % (b + 1)]))
    def issue(lst):
        cur = None
        for x in lst:
            if x.kind == "X" and cur != x.cmt:
                A(setm0(x.cmt)); A(nop(1)); cur = x.cmt
            A(x)
    A(smov("s%d" % sQa, "s%d" % sQo)); A(s2("s_add_u32", "s%d" % sQb, "s%d" % sQo, "4096"))
    k0 = kd(); v0 = vd() if cfg.early else None
    q0 = q_dmas(0, 0)
    if cfg.early:
        issue([k0[0], q0[0], v0[0], k0[1], v0[1]] + adv("K", False) + adv("V", False) + q0[1:])
    else:
        issue(k0 + adv("K", False) + q0)
    A(s2("s_add_u32", "s%d" % sQa, "s%d" % sQo, "8192")); A(s2("s_add_u32", "s%d" % sQb, "s%d" % sQo, str(8192 + 4096)))
    A(s2("s_sub_u32", "s%d" % sT, "s%d" % sMS, "32768"))
    issue(q_dmas(1, 0, msgpr=sT))
    if cfg.stamp2: L += stamp()
    A(s2("s_add_u32", "s%d" % sQo, "s%d" % sQo, str(USTRIDE)))
    A(v2("v_and_b32", "v5", "7", "v3")); A(v2("v_lshlrev_b32", "v6", "1", "v5"))
    for s in range(4):
        A(v2("v_add_u32", "v7", str(4 * s), "v2")); A(v2("v_xor_b32", "v7", "v7", "v6")); A(v2("v_lshlrev_b32", "v7", "4", "v7"))
        A(v3("v_lshl_add_u32", "v%d" % (KA + s), "v3", "8", "v7"))
        A(v2("v_add_u32", "v%d" % (QA + s), "s%d" % sMS, "v%d" % (KA + s)))
        A(v2("v_subrev_u32", "v%d" % (TM + s), "0x8000", "v%d" % (QA + s)))
    A(v2("v_lshrrev_b32", "v8", "2", "v0"))
    A(v2("v_and_b32", "v9", "7", "v8")); A(v2("v_lshlrev_b32", "v9", "1", "v9"))
    A(valu("v_bfe_u32 v10, v0, 1, 1", ["v0"], ["v10"]))
    A(v2("v_and_b32", "v11", "1", "v0")); A(v2("v_lshlrev_b32", "v11", "3", "v11"))
    A(v3("v_lshl_add_u32", "v11", "v8", "8", "v11")); A(v2("v_add_u32", "v11", str(LDS_V), "v11"))
    for b in range(8):
        A(v2("v_add_u32", "v7", str(2 * b), "v10")); A(v2("v_xor_b32", "v7", "v7", "v9"))
        A(v3("v_lshl_add_u32", "v%d" % (VA + b), "v7", "4", "v11"))
    A(v2("v_lshlrev_b32", "v11", "8", "v3")); A(v2("v_add_u32", "v11", "s%d" % sMS, "v11"))
    A(v2("v_lshlrev_b32", "v12", "8", "v2")); A(v2("v_add_u32", "v12", "s%d" % sMS, "v12")); A(v2("v_lshlrev_b32", "v13", "1", "v3"))
    for j in range(4):
        A(v2("v_add_u32", "v7", str(4 * j), "v2")); A(v2("v_xor_b32", "v10", "v7", "v3"))
        A(v3("v_lshl_add_u32", "v%d" % (OW + j), "v10", "3", "v11"))
        A(v2("v_xor_b32", "v10", "v7", "v13"))
        A(v3("v_lshl_add_u32", "v%d" % (OR_ + 2 * j), "v10", "3", "v12")); A(v2("v_xor_b32", "v%d" % (OR_ + 2 * j + 1), "8", "v%d" % (OR_ + 2 * j)))
    A(v2("v_lshlrev_b32", "v%d" % OS, "4", "v0"))
    A(v2("v_and_b32", "v7", "3", "v0")); A(valu("v_cmp_eq_u32 vcc, 0, v7", ["v7"], ["vcc"])); A(v1("v_mov_b32", "v8", "0x3f803f80")); A(v1("v_mov_b32", "v9", "0"))
    A(valu("v_cndmask_b32 v7, v9, v8, vcc", ["v8", "v9", "vcc"], ["v7"]))
    for i in range(4):
        A(v1("v_accvgpr_write_b32", "a%d" % (AONE + i), "v7")); A(v1("v_accvgpr_write_b32", "a%d" % (AZERO + i), "v9"))
    A(smov("s%d" % sC, "0x%08x" % SCALE)); A(smov("s%d" % sLO, "0x%08x" % LO_BITS)); A(smov("s%d" % sRG, "0x%08x" % (HI_BITS - LO_BITS)))
    A(smov("s%d" % sBAD, "0")); A(salu("s_mov_b64 s[%d:%d], 0" % (sACC, sACC + 1), [], R("s", sACC, 2)))
    A(smov("s%d" % sCNT, "3"))
    A(salu("s_mov_b64 vcc, %d" % (-1 if RAMP_IT else 0), [], ["vcc"]))
    A(s2("s_add_u32", "s%d" % sOb, "s%d" % sOa, "4096"))
    if cfg.stamp2: L += stamp()
    A(vsite([("K", 0), ("Q", 0, 0)]))
    if cfg.stamp2: L += stamp()
    A(bar())
    qr = q_reads(AQ, 0, 0)
    for s in range(4): L += [kread(s, 0, 0), qr[s], qr[4 + s]]
    for f in range(4, 8): A(kread(f, 0, 0))
    A(lsite())
    return L

def tail_seg():
    L = []
    for it in softmax_items(1, 0, lambda q, kt: 0, lambda q: 99, lo=(cfg.e0, cfg.e0, cfg.c0)):
        L.append(it.ins)
        if it.ins.kind == "T" and it.ins.text == exp_(S_(1, 1, 1) + 3).text: L.append(nop(1))
    if cfg.stmode == 1:
        L += [o_stores(1)[7], s2("s_add_u32", "s%d" % sOa, "s%d" % sOa, str(USTRIDE - 8192))]
    L.append(s2("s_add_u32", "s%d" % sOb, "s%d" % sOa, "4096"))
    L += epi_burst(0)
    gaps = [Gap(m) for m in pv_block(1, False)]
    for g, w in enumerate(o_writes(0)): gaps[g].ds.append(w)
    gaps[16].ds += o_reads(0, 0)[:8]
    gaps[17].ds += o_reads(0, 0)[8:]
    for G in gaps: L += G.flat()
    L.append(nop(1))
    L += epi_burst(1)
    L.append(lsite())
    L += o_writes(1)[:8] + o_stores(0)[:4] + o_writes(1)[8:] + o_reads(1, 0) + o_stores(0)[4:]
    L += [s2("s_add_u32", "s%d" % sOa, "s%d" % sOa, "8192"), s2("s_add_u32", "s%d" % sOb, "s%d" % sOb, "8192")]
    L += flag_ops()
    st = o_stores(1)
    L += [lsite()] + st[:4] + [lsite()] + st[4:]
    return L

def slow_path():
    T = []
    A = T.append
    def emit(l):
        for x in l: A(x.text)
    def wait(): A("s_waitcnt vmcnt(0) lgkmcnt(0)");
    A("s_barrier")
    if cfg.force_slow: A("s_mov_b32 s%d, 15" % sBAD)
    A("s_cmp_eq_u32 s%d, 0" % sBAD); A("s_cbranch_scc1 L_end")
    A("s_lshl_b32 s45, s%d, 13" % sW)
    for i in range(4): A("v_add_u32 v%d, s45, v%d" % (KA + i, KA + i))
    for i in range(8): A("v_add_u32 v%d, s45, v%d" % (VA + i, VA + i))
    A("s_add_u32 s46, s45, %d" % LDS_V)
    A("s_mul_i32 s%d, s%d, %d" % (sQo, sW, 16384 - 2048))
    A("s_lshl_b32 s%d, s%d, 14" % (sOo, sW))
    A("v_subrev_u32 v%d, s%d, v%d" % (TM + 4, sMK, DA)); A("v_subrev_u32 v%d, s%d, v%d" % (TM + 5, sMK, DB))
    A("s_mov_b32 s%d, 0" % sCNT)
    A("L_slow_unit:")
    A("s_bitcmp1_b32 s%d, 3" % sBAD); A("s_cbranch_scc0 L_slow_next")
    wait()
    for h in range(2):
        A("s_add_u32 s%d, s%d, %d" % (sQa, sQo, h * 8192)); A("s_add_u32 s%d, s%d, 4096" % (sQb, sQa))
        cur = None
        for x in q_dmas(h, 0):
            if cur != x.cmt: A(setm0(x.cmt).text); A("s_nop 0"); cur = x.cmt
            A(x.text)
        wait(); emit(q_reads(AQ + 32 * h, h, 0)); wait()
    def tile_dma(sr, m0s):
        for i in range(8):
            if i % 4 == 0:
                A("s_add_u32 m0, s%d, %d" % (m0s, (i // 4) * 4096)); A("s_add_u32 s%d, s%d, %d" % (sT, sKo, (i // 4) * 4096))
            A("buffer_load_dwordx4 v%d, %s, s%d offen offset:%d lds" % (TM + 4 + i % 2, srd(sr), sT, (i % 4) * 1024))
    def qk_all():
        emit([kread(f, 0, 0) for f in range(8)]); wait()
        emit(qk_block(0) + qk_block(1)); A("s_nop 7"); A("s_nop 3")
    for i in range(4): A("v_mov_b32 v%d, 0xff800000" % (MX + i))
    A("s_mov_b32 s%d, s%d" % (sKo, sCNT)); A("s_add_u32 s%d, s%d, 131072" % (sVo, sCNT))
    A("L_slow_p1:")
    tile_dma(sK_, 45); wait(); qk_all()
    for h in range(2):
        for q in range(2):
            a = S_(h, q, 0)
            for i in range(4): A("v_max3_f32 v%d, v%d, v%d, v%d" % (MX + 2 * h + q, a + 2 * i, a + 2 * i + 1, MX + 2 * h + q))
    A("s_add_u32 s%d, s%d, 8192" % (sKo, sKo)); A("s_cmp_lt_u32 s%d, s%d" % (sKo, sVo)); A("s_cbranch_scc1 L_slow_p1")
    for op in ("v_permlane32_swap_b32", "v_permlane16_swap_b32"):
        for i in range(4): A("v_mov_b32 v%d, v%d" % (NM + i, MX + i))
        A("s_nop 1")
        for i in range(4): A("%s v%d, v%d" % (op, NM + i, MX + i))
        A("s_nop 1")
        for i in range(4): A("v_max_f32 v%d, v%d, v%d" % (MX + i, MX + i, NM + i))
    for i in range(4): A("v_mul_f32 v%d, s%d, v%d" % (NM + i, sC, MX + i))
    for i in range(128): A("v_mov_b32 v%d, 0" % (OB + i))
    for i in range(16): A("v_accvgpr_write_b32 a%d, 0" % (AL + i))
    A("s_mov_b32 s%d, s%d" % (sKo, sCNT))
    A("L_slow_p2:")
    tile_dma(sK_, 45); tile_dma(sV_, 46); wait(); qk_all()
    emit([vread(b, jj, 0, 0) for b in range(4) for jj in range(2)])
    for h in range(2):
        for q in range(2):
            a = S_(h, q, 0)
            for i in range(8): A("v_fma_f32 v%d, v%d, s%d, -v%d" % (a + i, a + i, sC, NM + 2 * h + q))
            for i in range(8): A("v_exp_f32 v%d, v%d" % (a + i, a + i))
            A("s_nop 0")
            for i in range(4): A(cvt_(P_(h, q) + i, a + 2 * i, a + 2 * i + 1).text)
    emit([vread(b, jj, 0, 0) for b in range(4, 8) for jj in range(2)])
    wait()
    emit(pv_block(0, False) + pv_block(1, False))
    A("s_add_u32 s%d, s%d, 8192" % (sKo, sKo)); A("s_cmp_lt_u32 s%d, s%d" % (sKo, sVo)); A("s_cbranch_scc1 L_slow_p2")
    A("s_nop 7"); A("s_nop 3")
    for h in range(2):
        emit(epi_burst(h, check=False)); emit(o_writes(h) + o_reads(h, 0))
        A("s_add_u32 s%d, s%d, %d" % (sOa, sOo, h * 8192)); A("s_add_u32 s%d, s%d, 4096" % (sOb, sOa))
        wait(); emit(o_stores(h)); wait()
    A("L_slow_next:")
    A("s_lshl_b32 s%d, s%d, 1" % (sBAD, sBAD)); A("s_and_b32 s%d, s%d, 15" % (sBAD, sBAD))
    for r in (sCNT, sQo, sOo): A("s_add_u32 s%d, s%d, %d" % (r, r, USTRIDE))
    A("s_cmp_lg_u32 s%d, 0" % sBAD); A("s_cbranch_scc1 L_slow_unit")
    return T

def stamp():
    if not cfg.stamp: return []
    return [raw("s_memtime s[58:59]"), raw("s_memrealtime s[60:61]"), raw("s_waitcnt lgkmcnt(0)"),
            raw("s_mov_b32 m0, s57"), raw("s_nop 0"), raw("v_writelane_b32 v62, s58, m0"), raw("v_writelane_b32 v63, s60, m0"), raw("s_add_u32 s57, s57, 1")]
def stamp_out():
    if not cfg.stamp: return []
    return [x.text for x in stamp()] + ["s_load_dwordx2 s[36:37], s[0:1], 40", "s_waitcnt lgkmcnt(0)", "s_mov_b32 s38, 0x1000000", "s_mov_b32 s39, 0x20000",
            "s_lshl_b32 s45, s2, 2", "s_add_u32 s45, s45, s%d" % sW, "s_lshl_b32 s45, s45, 9", "v_lshrrev_b32 v61, 2, v%d" % OS,
            "buffer_store_dword v62, v61, s[36:39], s45 offen", "buffer_store_dword v63, v61, s[36:39], s45 offen offset:256"]
def main():
    sgs = {"it0f": build_iter(0, True)}
    for t in range(16): sgs["it%d" % t] = build_iter(t)
    def segs():
        d = {"pro": pro, "tail": tl}
        d.update(RAMPS)
        for k, s in sgs.items(): d[k] = flat(s)
        return d
    pro = prologue(); tl = tail_seg()
    if cfg.dbgspan:
        pro[2:2] = [raw("s_memrealtime s[60:61]"), raw("s_memtime s[62:63]"), raw("s_waitcnt lgkmcnt(0)"), raw("s_mov_b32 s56, s60"), raw("s_mov_b32 s57, s62")]
        i = [k for k, x in enumerate(pro) if x.kind == "BAR"][0]
        pro[i + 1:i + 1] = [raw("s_memrealtime s[58:59]")]
    if cfg.stamp:
        pro[2:2] = [raw("s_mov_b32 s57, 0")] + stamp()
        i = [k for k, x in enumerate(pro) if x.kind == "BAR"][0]
        pro[i + 1:i + 1] = stamp()
        for t in range(0, 16, cfg.stamp): sgs["it%d" % t].head[0:0] = stamp()
        tl[0:0] = stamp()
        if cfg.stamp3:
            G = sgs["it0"].gaps
            G[0].pre += stamp(); G[16].pre += stamp(); G[34].pre += stamp(); G[48].pre[0:0] = stamp(); G[48].pre += stamp()
            sgs["it1"].head[0:0] = stamp(); sgs["it1"].gaps[34].pre += stamp(); sgs["it2"].head[0:0] = stamp(); sgs["it3"].head[0:0] = stamp()
        if cfg.stamp2:
            sgs["it0f"].gaps[16].pre += stamp(); sgs["it0f"].gaps[cfg.fbar + 1].pre += stamp(); sgs["it0f"].tail[0:0] = stamp()
    trace = [("pro", dict(T=0, u=0, first=1)), ("it0f", dict(T=0, u=0, first=1))]
    for u in range(4):
        for t in range(16):
            if (u, t) != (0, 0): trace.append(("it%d" % t, dict(T=16 * u + t, u=u, first=(u == 0 and t < 8))))
    trace.append(("tail", dict(T=64, u=3)))
    sgs["it0f"].tail.append(raw("s_branch L_it1", "BR"))
    sgs["it15"].tail += [s2("s_sub_u32", "s%d" % sCNT, "s%d" % sCNT, "1"), raw("s_cbranch_scc0 L_it0", "BR")]
    insert_waits(segs(), trace)
    for k, s in sgs.items():
        br = [x for x in s.tail if x.kind == "BR" or "s_sub_u32 s%d" % sCNT in x.text]
        s.tail = [x for x in s.tail if x not in br]
        place_scalar(s)
        s.tail += br
    fs = {k: finalize(v) for k, v in segs().items()}
    errs = verify(fs, trace, {"K": 8, "V": 16, "Q": 8, "O": 16})
    for e in errs[:40]: sys.stderr.write("ERR " + e + "\n")
    tot = 0
    for k in ["pro", "it0f"] + ["it%d" % t for t in range(16)] + ["tail"]:
        est = issue_estimate(fs[k]); sys.stderr.write("%s:%d " % (k, est))
        if k.startswith("it") and k != "it0f": tot += est
    if cfg.stamp3:
        for k in ("it0", "it1", "it2"):
            parts = [[]]
            for x in fs[k]:
                if "s_memtime" in x.text: parts.append([])
                parts[-1].append(x)
            sys.stderr.write("\n%s parts %s" % (k, [issue_estimate(p) for p in parts]))
    sys.stderr.write("\nunit estimate %d cycles, errors %d\n" % (tot, len(errs)))
    out = []
    hdr = open(os.path.join(os.path.dirname(os.path.abspath(__file__)), "..", "cdna_kernels", NAME + ".s.ref")).read().split("; Override")[0]
    out.append(hdr.rstrip())
    out.append("; @launch grid=(256,1,1) block=(256,1,1) lds=163840")
    out.append('.amdgcn_target "amdgcn-amd-amdhsa--gfx950"\n.text\n.globl %s_kernel\n.p2align 8\n.type %s_kernel,@function\n%s_kernel:' % (NAME, NAME, NAME))
    def dump(k):
        out.append("; ---- " + k)
        for x in fs[k]:
            if cfg.nocomp and k != "pro" and x.kind in ("M", "V", "T", "K", "D", "W"): continue
            if cfg.nomem and k != "pro" and x.kind == "X" and (cfg.nomem == 1 or "store" in x.text): continue
            if cfg.nostore and x.kind == "X" and "store" in x.text: continue
            out.append("  " + x.text)
            if cfg.nocomp and "m0" in x.wr: out.append("  s_nop 0")
    dump("pro"); dump("it0f")
    for k in RAMPS: out.append("L_%s:" % k); dump(k)
    out.append(".p2align 6\nL_it0:"); dump("it0"); out.append("L_it1:")
    for t in range(1, 16): dump("it%d" % t)
    dump("tail")
    if cfg.dbgspan:
        out += ["  " + x for x in ["s_waitcnt vmcnt(0)", "s_memrealtime s[60:61]", "s_memtime s[62:63]", "s_load_dwordx2 s[36:37], s[0:1], 32", "s_waitcnt lgkmcnt(0)", "s_mov_b32 s38, 256", "s_mov_b32 s39, 0x20000",
            "s_not_b32 s45, s56", "v_mov_b32 v2, s45", "v_mov_b32 v3, s58", "v_mov_b32 v4, s60", "v_mov_b32 v5, s56", "s_not_b32 s45, s60", "v_mov_b32 v6, s45", "s_sub_u32 s45, s62, s57", "v_mov_b32 v7, s45", "v_mov_b32 v1, 0",
            "s_mov_b64 exec, 1",
            "buffer_atomic_umax v2, v1, s[36:39], 0 offen", "buffer_atomic_umax v3, v1, s[36:39], 0 offen offset:4", "buffer_atomic_umax v4, v1, s[36:39], 0 offen offset:8",
            "buffer_atomic_umax v5, v1, s[36:39], 0 offen offset:12", "buffer_atomic_umax v6, v1, s[36:39], 0 offen offset:16", "buffer_atomic_umax v7, v1, s[36:39], 0 offen offset:20", "s_mov_b64 exec, -1"]]
    if cfg.stamp:
        out.append("  s_waitcnt vmcnt(0)")
        out += ["  " + x for x in stamp_out()]
    if cfg.nocomp or cfg.nomem: out.append("  s_mov_b32 s%d, 0" % sBAD)
    out += ["  " + x if not x.endswith(":") else x for x in slow_path()]
    out.append("L_end:\n  s_endpgm")
    out.append('.section .rodata,"a"\n.p2align 6\n.amdhsa_kernel %s_kernel' % NAME)
    out.append("  .amdhsa_next_free_vgpr 512\n  .amdhsa_next_free_sgpr 64\n  .amdhsa_accum_offset 256\n  .amdhsa_group_segment_fixed_size 0\n  .amdhsa_kernarg_size 48\n  .amdhsa_user_sgpr_count 2\n  .amdhsa_user_sgpr_kernarg_segment_ptr 1\n  .amdhsa_system_sgpr_workgroup_id_x 1\n.end_amdhsa_kernel")
    open(sys.argv[1], "w").write("\n".join(out) + "\n")
    if errs: sys.exit(1)
main()
```

```python
import sys

class Ins:
    __slots__ = ("text", "kind", "rd", "wr", "tag", "needs", "n", "states", "used", "cmt", "srcc", "frees")
    def __init__(self, text, kind, rd=(), wr=(), tag=None, needs=None, states=1, srcc=(), cmt=""):
        self.text = text; self.kind = kind; self.rd = frozenset(rd); self.wr = frozenset(wr)
        self.tag = tag; self.needs = needs; self.n = None; self.states = states; self.cmt = cmt
        self.srcc = frozenset(srcc)

def R(p, a, n=1):
    return [p + str(a + i) for i in range(n)]
def rng(p, a, n):
    return "%s%d" % (p, a) if n == 1 else "%s[%d:%d]" % (p, a, a + n - 1)

def mfma(dp, d, ap, a, bp, b, czero=False):
    c = "0" if czero else rng(dp, d, 4)
    rd = R(ap, a, 4) + R(bp, b, 4) + ([] if czero else R(dp, d, 4))
    return Ins("v_mfma_f32_16x16x32_bf16 %s, %s, %s, %s" % (rng(dp, d, 4), rng(ap, a, 4), rng(bp, b, 4), c), "M", rd, R(dp, d, 4),
               srcc=[] if czero else R(dp, d, 4))
def valu(text, rd, wr, kind="V"):
    return Ins(text, kind, rd, wr)
def salu(text, rd=(), wr=()):
    return Ins(text, "S", rd, wr)
def nop(n):
    return Ins("s_nop %d" % (n - 1), "N", states=n)
def lsite():
    return Ins("", "LSITE")
def vsite(needs):
    return Ins("", "VSITE", needs=needs)
def bar():
    return Ins("s_barrier", "BAR")
def label(name):
    return Ins(name + ":", "LBL", states=0)
def raw(text, kind="S"):
    return Ins(text, kind)

VALU_KINDS = ("V", "T", "K")

def resolve(tag, ctx):
    if tag is None: return None
    if tag[0] in ("K", "V"): return (tag[0], ctx["T"] + tag[1])
    if tag[0] in ("Q", "O"): return (tag[0], tag[1], ctx["u"] + tag[2])
    return tag

def walk(segs, trace):
    cnt = {"K": -1, "V": -1}
    def one(seg, ctx):
        for ins in segs[seg]:
            t = ins.tag
            if ins.kind == "X" and t is not None and t[0] in "KV" and t[1] in ("a", "b"):
                if t[1] == "a": cnt[t[0]] += 1
                t = (t[0], cnt[t[0]])
                if ins.needs is not None and not ctx.get("first"):
                    assert t[1] == ctx["T"] + ins.needs - ctx.get("lag" + t[0], 0), (seg, t, ctx)
            else:
                t = resolve(t, ctx)
            yield ins, ctx, seg, t
            if ins.kind == "LAST" and ctx.get("u") == 3:
                for x in one(ins.cmt, ctx): yield x
            if ins.kind == "RAMP" and ctx.get("first"):
                for x in one(ins.cmt + ctx.get("role", ""), ctx): yield x
    for seg, ctx in trace:
        for x in one(seg, ctx): yield x

def insert_waits(segs, traces):
    for rounds in range(4):
        ch = False
        for tr in traces: ch |= insert_waits1(segs, tr)
        if not ch: return
    raise Exception("no convergence over traces")

def insert_waits1(segs, trace):
    anyc = False
    for it in range(8):
        changed = False
        ds_issued = 0; ds_known = 0; ds_wr = {}
        vm_issued = 0; vm_known = 0; vm_tag = {}; vm_wr = {}
        last_site = None; last_site_issued = 0
        for once in (0,):
            for ins, ctx, seg, rtag in walk(segs, trace):
                k = ins.kind
                if k == "LSITE":
                    last_site = ins; last_site_issued = ds_issued
                    if ins.needs == "all":
                        if ds_known < ds_issued and ins.n != 0: ins.n = 0; changed = True
                    if ins.n is not None: ds_known = max(ds_known, ds_issued - ins.n)
                    continue
                if k == "VSITE":
                    need = -1
                    for t in ins.needs:
                        t = resolve(t, ctx)
                        if t in vm_tag: need = max(need, vm_tag[t])
                        elif not ctx.get("allow_missing"): raise Exception("vsite needs unknown tag %s in %s" % (t, seg))
                    if need >= vm_known:
                        n = min(63, vm_issued - (need + 1))
                        if ins.n is None or n < ins.n: ins.n = n; changed = True
                    if ins.n is not None: vm_known = max(vm_known, vm_issued - ins.n)
                    continue
                if k == "WAITALL":
                    ds_known = ds_issued; vm_known = vm_issued; continue
                for r in (ins.rd | (ins.wr if k != "D" else frozenset())):
                    if r in ds_wr and ds_wr[r] >= ds_known:
                        need = ds_wr[r]
                        if last_site is None or need >= last_site_issued:
                            raise Exception("no lgkm site for %s (reg %s) in %s" % (ins.text, r, seg))
                        n = min(15, last_site_issued - (need + 1))
                        if last_site.n is None or n < last_site.n: last_site.n = n; changed = True
                        ds_known = max(ds_known, last_site_issued - last_site.n)
                if k in ("D", "W"):
                    for r in ins.wr: ds_wr[r] = ds_issued
                    ds_issued += 1
                if k == "X":
                    if ins.tag is not None: vm_tag[rtag] = vm_issued
                    vm_issued += 1
        if not changed: break
        anyc = True
    else:
        raise Exception("wait insertion did not converge")
    return anyc

def finalize(lst):
    out = []
    i = 0
    while i < len(lst):
        ins = lst[i]
        if ins.kind in ("LSITE", "VSITE"):
            l = v = None
            while i < len(lst) and lst[i].kind in ("LSITE", "VSITE"):
                if lst[i].n is not None:
                    if lst[i].kind == "LSITE": l = lst[i].n if l is None else min(l, lst[i].n)
                    else: v = lst[i].n if v is None else min(v, lst[i].n)
                i += 1
            if l is not None or v is not None:
                t = "s_waitcnt" + ("" if v is None else " vmcnt(%d)" % v) + ("" if l is None else " lgkmcnt(%d)" % l)
                w = Ins(t, "WAIT"); w.n = (v, l); out.append(w)
            continue
        out.append(ins); i += 1
    return out

def verify(fsegs, trace, nreads):
    errs = []
    hist = []
    ds_issued = ds_known = 0; ds_wr = {}; rd_idx = {}
    vm_issued = vm_known = 0; vm_idx = {}
    visible = set(); freed = set()
    def dist_check(ins, seg):
        d = 0
        for p in reversed(hist):
            if d >= 12: break
            def need(n, why):
                if d < n: errs.append("%s: hazard %s: '%s' -> '%s' dist %d < %d" % (seg, why, p.text, ins.text, d, n))
            pk = p.kind; k = ins.kind
            if pk in VALU_KINDS:
                vw = {r for r in p.wr if r[0] in "va" and r != "vcc"}
                sw = p.wr - vw
                if k == "M" and vw & ins.rd: need(2, "valu->mfma")
                if pk == "T" and k in ("V", "K") and vw & ins.rd: need(1, "trans->valu")
                if pk == "T" and k in ("W", "X") and vw & ins.rd: need(1, "trans->mem")
                if "permlane" in ins.text and vw & (ins.rd | ins.wr): need(2, "valu->permlane")
                if "readfirstlane" in ins.text and vw & ins.rd: need(1, "valu->readlane")
                if sw & ins.rd:
                    if k == "X": need(5, "valu sgpr->vmem")
                    elif k in VALU_KINDS: need(2, "valu sgpr->valu")
                    else: need(2, "valu sgpr->salu")
            if pk == "M":
                if k == "M":
                    ab = ins.rd - ins.srcc
                    if p.wr & ab: need(8, "mfma->mfma ab")
                    if p.wr & ins.srcc and p.wr != ins.srcc: need(6, "mfma->mfma c overlap")
                elif k in VALU_KINDS:
                    if p.wr & (ins.rd | ins.wr): need(8, "mfma->valu")
                    if p.srcc & ins.wr: need(3, "mfma srcc war")
                elif k in ("W", "X", "D"):
                    if p.wr & (ins.rd | ins.wr): need(8, "mfma->mem")
            if pk == "S" and "m0" in p.wr and k == "X" and "m0" in ins.rd: need(1, "m0->dma")
            if pk == "X" and "store" in p.text and k in VALU_KINDS + ("M", "D") and (p.rd & ins.wr): need(2, "store data war")
            d += p.states
    for once in (0,):
        for ins, ctx, seg, rtag in walk(fsegs, trace):
            k = ins.kind
            if k == "LBL": continue
            dist_check(ins, seg)
            if k == "WAIT":
                v, l = ins.n
                if v is not None: vm_known = max(vm_known, vm_issued - v)
                if l is not None: ds_known = max(ds_known, ds_issued - l)
            elif k == "WAITALL":
                vm_known = vm_issued; ds_known = ds_issued
            elif k == "BAR":
                for t, idx in vm_idx.items():
                    if max(idx) < vm_known: visible.add(t)
                for t, idx in rd_idx.items():
                    if len(idx) == nreads[t[0]] and max(idx) < ds_known: freed.add(t)
            for r in (ins.rd | (ins.wr if k != "D" else frozenset())):
                if r in ds_wr and ds_wr[r] >= ds_known: errs.append("%s: DS result %s not waited for '%s'" % (seg, r, ins.text))
            if k in ("D", "W"):
                t = rtag
                if k == "D" and t is not None:
                    if t[0] in "KV":
                        if t not in visible: errs.append("%s: read of %s not visible: %s" % (seg, t, ins.text))
                    elif t[0] == "Q":
                        if t not in vm_idx or max(vm_idx[t]) >= vm_known: errs.append("%s: read of %s before landed" % (seg, t))
                    rd_idx.setdefault(t, []).append(ds_issued)
                for r in ins.wr: ds_wr[r] = ds_issued
                ds_issued += 1
                if ds_issued - ds_known > 15 and False: errs.append("%s: >15 DS outstanding" % seg)
            if k == "X":
                t = rtag
                if t is not None and "lds" in ins.text:
                    if t[0] in "KV":
                        prev = (t[0], t[1] - 8)
                        if t[1] >= 8 and prev not in freed: errs.append("%s: DMA %s before %s freed" % (seg, t, prev))
                        if t[0] == "V" and 4 <= t[1] < 8 and ("Q", 1, 0) not in freed: errs.append("%s: DMA %s before first Q h1 freed" % (seg, t))
                    else:
                        for tt, idx in rd_idx.items():
                            if tt[0] in "QO" and max(idx) >= ds_known: errs.append("%s: staging DMA %s before reads of %s done" % (seg, t, tt))
                    vm_idx.setdefault(t, []).append(vm_issued)
                vm_issued += 1
                if vm_issued - vm_known > 63: errs.append("%s: >63 VMEM outstanding at %s" % (seg, ins.text))
            hist.append(ins)
            if len(hist) > 16: hist.pop(0)
    return errs

def issue_estimate(lst):
    t = 0; mfma_free = 0; last = None; vec_free = 0
    for ins in lst:
        k = ins.kind
        if k == "LBL": continue
        if k == "M":
            t = max(t, mfma_free, vec_free); mfma_free = t + 16; vec_free = t + 8; t += 4
        elif k in ("V", "K"):
            t = max(t, vec_free);
            if k == "K": t = max(t, mfma_free + 4)
            t += 8 if "permlane" in ins.text else 4
        elif k == "T":
            t = max(t, vec_free) + 8
        elif k in ("D", "W"):
            t = max(t, vec_free) + (4 if k == "D" else 20 if "b128" in ins.text else 12) + (8 if last in VALU_KINDS else 0)
        elif k == "X":
            t = max(t, vec_free) + 8 + (24 if last in VALU_KINDS else 0) + (8 if last in ("D", "W") else 0)
        elif k == "N":
            t += 4 * ins.states
        else:
            t += 4
        last = k
    return t
```

```python
import sys, os, struct, math
from core import *

class Cfg:
    barper = 2
    finchk = 1
    lat = 7
    k_aux = ""
    v_aux = ""
    kv_aux = "nt"
    q_aux = "nt"
    o_aux = "nt"
    e0 = 10; c0 = 4; f0 = 6
    force_slow = 0
    hmap = 1
    rot = 0
    xmap = 0
    stamp = 0
    stamp3 = 0
    stamp2 = 0
    nocomp = 0
    nomem = 0
    nostore = 0
    dbgspan = 0
    lag = 1.5
    lead = 6
    kvmap = 0
    fakepre = 0
    vx = 25
    vx2 = 12
    xt = 42
    flag_ = 0
    stmode = 0
    qmaj = 0
    bargap = 14
    sm0 = 14
    qkord = 2
    kt0 = 54.0
    kts = 2.48
    vt0 = 18.0
    vts = 2.48
    stgap = 48
    l0 = 3
    cpf = 1
    qa0 = 2
    early = 1
    fbar = 22
    rdy = 5
cfg = Cfg()
for a in sys.argv[2:]:
    k, v = a.split("=")
    setattr(cfg, k, type(getattr(cfg, k))(v))

NAME = "standalone__mha_softmax__near_ridge"
KA = 16; VA = 20; DA = 28; DB = 29; QA = 30; OW = 34; OS = 40; OR_ = 64
ET = 42; ER = 44; EU = 48
MX = 50; NM = 54; TM = 58
PB = 80; SB = 96; OB = 128
def S_(h, q, kt): return SB + 16 * h + 8 * q + 4 * kt
def P_(h, q): return PB + 8 * h + 4 * q
def O_(qt, b): return OB + 32 * qt + 4 * b
AQ = 0; AQN = 64; AK = 96; AV = 128; AO = 160; AL = 224; AONE = 240; AZERO = 244; ACHK = 248
sQ_, sK_, sV_, sO_ = 4, 8, 12, 16
sW = 20; sKo = 21; sVo = 22; sMK = 23; sMV = 24; sQo = 25; sOo = 26; sC = 27; sBAD = 28; sUB = 29; sACC = 30; sCMP = 32
sLO = 34; sRG = 35; sMS = 44; sCNT = 47; sONR = 48; sQa = 50; sQb = 51; sOa = 52; sOb = 53; sT = 54; sKt = 55; sVt = 56; sKb = 62; sVb = 63; sMKn = 29; sMVn = 49
LDS_V = 65536; LDS_S = 131072
SCALE = struct.unpack("<I", struct.pack("<f", math.log2(math.e) / math.sqrt(128.0)))[0]
LO_BITS = (127 - (40 if cfg.finchk else 24)) << 23
HI_BITS = (127 + (40 if cfg.finchk else 24)) << 23

def srd(b): return "s[%d:%d]" % (b, b + 3)
def srdr(b): return R("s", b, 4)

def v2(op, d, a, b, kind="V"):
    rd = [x for x in (a, b) if isinstance(x, str) and x[0] in "vsa" and x[1:].isdigit()]
    return valu("%s %s, %s, %s" % (op, d, a, b), rd, [d], kind)
def v1(op, d, a, kind="V"):
    rd = [a] if isinstance(a, str) and a[0] in "vsa" and a[1:].isdigit() else []
    return valu("%s %s, %s" % (op, d, a), rd, [d], kind)
def v3(op, d, a, b, c):
    rd = [x for x in (a, b, c) if isinstance(x, str) and x[0] in "vsa" and x[1:].isdigit()]
    return valu("%s %s, %s, %s, %s" % (op, d, a, b, c), rd, [d])
def s2(op, d, a, b):
    rd = [x for x in (a, b) if isinstance(x, str) and (x[0] == "s" or x == "m0")]
    return salu("%s %s, %s, %s" % (op, d, a, b), rd, [d, "scc"])
def smov(d, a):
    return salu("s_mov_b32 %s, %s" % (d, a), [a] if isinstance(a, str) and a[0] == "s" else [], [d])
def mul_(r): return v2("v_mul_f32", "v%d" % r, "s%d" % sC, "v%d" % r)
def exp_(r): return v1("v_exp_f32", "v%d" % r, "v%d" % r, "T")
def cvt_(d, a, b): return v2("v_cvt_pk_bf16_f32", "v%d" % d, "v%d" % a, "v%d" % b)
def dsr128(dp, d, addr, off, tag):
    assert 0 <= off < 65536
    return Ins("ds_read_b128 %s, v%d offset:%d" % (rng(dp, d, 4), addr, off), "D", ["v%d" % addr], R(dp, d, 4), tag=tag)
def dstr(d, addr, off, tag):
    assert 0 <= off < 65536
    return Ins("ds_read_b64_tr_b16 %s, v%d offset:%d" % (rng("a", d, 2), addr, off), "D", ["v%d" % addr], R("a", d, 2), tag=tag)
def dsw64(addr, src, off):
    return Ins("ds_write_b64 v%d, %s offset:%d" % (addr, rng("v", src, 2), off), "W", ["v%d" % addr] + R("v", src, 2), [])
def dma(voff, sr, soff, off, tag, m0, aux=""):
    if sr == sK_ and cfg.k_aux: aux = cfg.k_aux
    if sr == sV_ and cfg.v_aux: aux = cfg.v_aux
    i = Ins("buffer_load_dwordx4 v%d, %s, s%d offen offset:%d %slds" % (voff, srd(sr), soff, off, aux + " " if aux else ""), "X",
            ["v%d" % voff, "s%d" % soff, "m0"] + srdr(sr), [], tag=tag)
    i.cmt = m0
    return i
def store(src, soff, off, tag=None):
    return Ins("buffer_store_dwordx4 %s, v%d, %s, s%d offen offset:%d%s" % (rng("a", src, 4), OS, srd(sO_), soff, off, " " + cfg.o_aux if cfg.o_aux else ""), "X",
               R("a", src, 4) + ["v%d" % OS, "s%d" % soff] + srdr(sO_), [], tag=tag)
def setm0(m0):
    return s2("s_add_u32", "m0", "s%d" % m0[0], str(m0[1]))

if cfg.qkord == 0:   QKSEQ = [(f // 4, q, f % 4) for f in range(8) for q in range(2)]
elif cfg.qkord == 1: QKSEQ = [(kt, q, s if q == 0 else 3 - s) for kt in range(2) for q in range(2) for s in range(4)]
else:                QKSEQ = [(c // 2, (0, 1, 1, 0)[c], s if c % 2 == 0 else 3 - s) for c in range(4) for s in range(4)]
def kfirst(f): return min(i for i, (kt, q, s) in enumerate(QKSEQ) if 4 * kt + s == f)
def klast(f): return max(i for i, (kt, q, s) in enumerate(QKSEQ) if 4 * kt + s == f)
def sdone(q, kt): return max(i for i, x in enumerate(QKSEQ) if x[:2] == (kt, q))
def qfirst(q, s): return min(i for i, x in enumerate(QKSEQ) if x[1:] == (q, s))
GRP = sorted([(q, kt) for q in range(2) for kt in range(2)], key=lambda g: sdone(*g))
KORD = sorted(range(8), key=kfirst)
def qk_block(h):
    L = []; seen = set()
    for kt, q, s in QKSEQ:
        L.append(mfma("v", S_(h, q, kt), "a", AK + 4 * (4 * kt + s), "a", AQ + 16 * (2 * h + q) + 4 * s, czero=((kt, q) not in seen)))
        seen.add((kt, q))
    return L
def pvpos(b, q):
    if cfg.qmaj: return 9 * q + 1 + b
    return 2 * b + q + (1 if b >= 3 else 0) + (1 if b >= 6 else 0)
def pfirst(q): return 9 * q if cfg.qmaj else q
def pv_block(h, first):
    L = []
    if cfg.qmaj:
        for q in range(2):
            L.append(mfma("a", AL + 4 * (2 * h + q), "a", AONE, "v", P_(h, q), czero=first))
            for b in range(8): L.append(mfma("v", O_(2 * h + q, b), "a", AV + 4 * b, "v", P_(h, q), czero=first))
        return L
    for b in range(8):
        for q in range(2):
            L.append(mfma("v", O_(2 * h + q, b), "a", AV + 4 * b, "v", P_(h, q), czero=first))
        if b in (2, 5):
            q = b // 4
            L.append(mfma("a", AL + 4 * (2 * h + q), "a", AONE, "v", P_(h, q), czero=first))
    return L

class Item:
    def __init__(self, ins, ready, dead, target, deps=()):
        self.ins = ins; self.ready = ready; self.dead = dead; self.target = target; self.deps = list(deps); self.gap = None
        k = ins.kind
        self.cost = 8 if k in ("T", "X") else 4
class Gap:
    def __init__(self, m):
        self.pre = []; self.m = m; self.sh = [lsite()]; self.ds = []; self.va = []
    def flat(self): return self.pre + [self.m] + self.sh + self.ds + self.va

def schedule(gaps, items, name):
    n = len(gaps)
    todo = sorted(items, key=lambda i: (i.target, i.dead))
    for g in range(n):
        G = gaps[g]
        def ok(it):
            if it.ready > g: return False
            for d, dist in it.deps:
                if d.gap is None or d.gap + dist > g: return False
            return True
        def place(it):
            it.gap = g; todo.remove(it)
            (G.ds if it.ins.kind in ("D", "W", "X") else G.va).append(it.ins)
        def fits(it, used):
            k = it.ins.kind
            if any(x.kind == "X" for x in G.ds): return False
            if k == "X": return used == 0
            return True
        used = 0
        for it in [x for x in todo if x.dead <= g]:
            if ok(it) and fits(it, used): place(it); used += it.cost
        while used < 8:
            c = [it for it in todo if ok(it) and fits(it, used) and it.cost <= 8 - used]
            if not c: break
            it = c[0]
            if used == 0 and it.cost == 4:
                four = [x for x in c[1:] if x.cost == 4 or False]
                dep_next = [x for x in todo if x.cost == 4 and x is not it and x.ready <= g and all((d.gap is not None and d.gap + dist <= g) or (d is it and dist == 0) for d, dist in x.deps)]
                eight = [x for x in c if x.cost == 8]
                if not dep_next and eight and it.dead > g: it = eight[0]
            place(it); used += it.cost
        c = [it for it in todo if ok(it) and fits(it, used) and it.cost == 4 and it.target < g - cfg.lag]
        if c and used > 0:
            place(c[0]); used += 4
        while True:
            over = False
            dem = 0
            for it in sorted(todo, key=lambda i: min(i.dead, n - 1)):
                dem += 12 if it.ins.kind == "X" else it.cost
                d = min(it.dead, n - 1)
                if dem > 12 * (d - g): over = True; break
            if not over: break
            c = sorted([it for it in todo if ok(it) and fits(it, used)], key=lambda i: (min(i.dead, n - 1), i.target))
            if not c: break
            place(c[0]); used += c[0].cost
    if todo:
        raise Exception("%s: unscheduled items: %s" % (name, [(i.ins.text, i.ready, i.dead) for i in todo]))
    for it in items:
        if it.gap > it.dead: raise Exception("%s: deadline miss %s gap %d > %d" % (name, it.ins.text, it.gap, it.dead))

def softmax_items(h, base, rdy, dead, lo=(0, 0, 0), hi=(16, 16, 8), carry=None):
    its = []; M = {}; E = {}
    def reg(e):
        q, kt = GRP[e // 4]
        return q, kt, S_(h, q, kt) + e % 4
    for e in range(lo[0], hi[0] if not cfg.fakepre else lo[0]):
        q, kt, r = reg(e)
        M[e] = Item(mul_(r), rdy(q, kt), dead(q) - 2, base + 2 * e); its.append(M[e])
    for e in range(lo[1], hi[1]):
        q, kt, r = reg(e)
        E[e] = Item(exp_(r), rdy(q, kt), dead(q) - 1, base + 2 * e + 1, [(M[e], 0)] if e in M else []); its.append(E[e])
    for j in range(lo[2], hi[2]):
        q, kt, r = reg(2 * j)
        deps = [(E[e], 1) for e in (2 * j, 2 * j + 1) if e in E]
        its.append(Item(cvt_(P_(h, q) + 2 * kt + j % 2, r, r + 1), rdy(q, kt), dead(q), base + 4 * j + 4, deps))
    return its

def kread(f, slot, dT):
    return dsr128("a", AK + 4 * f, KA + f % 4, slot * 8192 + (f // 4) * 4096, ("K", dT))
def vread(b, jj, slot, dT):
    return dstr(AV + 4 * b + 2 * jj, VA + b, slot * 8192 + jj * 4096, ("V", dT))
_uid = [0]
def kd(lead=None):
    _uid[0] += 1
    L = [dma(DA, sK_, sKo, 0, ("K", "a"), (sMKn, 0, _uid[0]), cfg.kv_aux), dma(DB, sK_, sKo, 1024, ("K", "b"), (sMKn, 0, _uid[0]), cfg.kv_aux)]
    for x in L: x.needs = lead
    return L
def vd(lead=None):
    _uid[0] += 1
    L = [dma(DA, sV_, sVo, 0, ("V", "a"), (sMVn, LDS_V, _uid[0]), cfg.kv_aux), dma(DB, sV_, sVo, 1024, ("V", "b"), (sMVn, LDS_V, _uid[0]), cfg.kv_aux)]
    for x in L: x.needs = lead
    return L
def kv_dmas(t, lead):
    return kd(lead + 1) + vd(lead)
def q_dmas(h, du, msgpr=sMS, mconst=0):
    return [dma(DA if i % 2 == 0 else DB, sQ_, sQa if i < 4 else sQb, (i % 4) * 1024, ("Q", h, du), (msgpr, mconst + (i // 4) * 4096), cfg.q_aux) for i in range(8)]
def q_reads(dst, h, du, addr=QA):
    return [dsr128("a", dst + 16 * q + 4 * s, addr + s, q * 4096, ("Q", h, du)) for q in range(2) for s in range(4)]

def epi_burst(h, check=True):
    L = []
    for q in range(2): L.append(v1("v_accvgpr_read_b32", "v%d" % (ET + q), "a%d" % (AL + 4 * (2 * h + q))))
    for q in range(2): L.append(v1("v_rcp_f32", "v%d" % (ER + 2 * q), "v%d" % (ET + q), "T"))
    if check:
        for q in range(2): L.append(v2("v_subrev_u32", "v%d" % (EU + q), "s%d" % sLO, "v%d" % (ET + q)))
        L.append(valu("v_cmp_le_u32 vcc, s%d, v%d" % (sRG, EU), ["s%d" % sRG, "v%d" % EU], ["vcc"]))
        L.append(valu("v_cmp_le_u32 s[%d:%d], s%d, v%d" % (sCMP, sCMP + 1, sRG, EU + 1), ["s%d" % sRG, "v%d" % (EU + 1)], R("s", sCMP, 2)))
    else:
        L.append(nop(1))
    for q in range(2):
        for b in range(8):
            for i in range(2):
                a = O_(2 * h + q, b) + 2 * i
                L.append(valu("v_pk_mul_f32 v[%d:%d], v[%d:%d], v[%d:%d] op_sel_hi:[1,0]" % (a, a + 1, a, a + 1, ER + 2 * q, ER + 2 * q + 1),
                              R("v", a, 2) + ["v%d" % (ER + 2 * q)], R("v", a, 2), "K"))
    if check:
        L.append(salu("s_or_b64 s[%d:%d], s[%d:%d], vcc" % (sACC, sACC + 1, sACC, sACC + 1), ["vcc"] + R("s", sACC, 2), R("s", sACC, 2)))
        L.append(salu("s_or_b64 s[%d:%d], s[%d:%d], s[%d:%d]" % (sACC, sACC + 1, sACC, sACC + 1, sCMP, sCMP + 1), R("s", sCMP, 2) + R("s", sACC, 2), R("s", sACC, 2)))
    for q in range(2):
        for bp in range(4):
            a = O_(2 * h + q, 2 * bp)
            for i in range(4): L.append(cvt_(a + i, a + 2 * i, a + 2 * i + 1))
            if check and cfg.finchk and (q, bp) != (0, 0):
                pa = a - 8
                L.append(mfma("a", ACHK, "a", AZERO, "v", pa, czero=(h == 0 and (q, bp) == (0, 1))))
    if check and cfg.finchk:
        L.append(nop(2))
        L.append(mfma("a", ACHK, "a", AZERO, "v", O_(2 * h + 1, 6)))
    return L
def flag_ops():
    L = []
    if cfg.finchk:
        L.append(v1("v_accvgpr_read_b32", "v%d" % ET, "a%d" % ACHK))
        L.append(valu("v_cmp_u_f32 vcc, v%d, v%d" % (ET, ET), ["v%d" % ET], ["vcc"]))
        L.append(nop(2))
        L.append(salu("s_or_b64 s[%d:%d], s[%d:%d], vcc" % (sACC, sACC + 1, sACC, sACC + 1), ["vcc"] + R("s", sACC, 2), R("s", sACC, 2)))
    L.append(salu("s_cmp_lg_u64 s[%d:%d], 0" % (sACC, sACC + 1), R("s", sACC, 2), ["scc"]))
    L.append(salu("s_addc_u32 s%d, s%d, s%d" % (sBAD, sBAD, sBAD), ["scc", "s%d" % sBAD], ["s%d" % sBAD]))
    L.append(salu("s_mov_b64 s[%d:%d], 0" % (sACC, sACC + 1), [], R("s", sACC, 2)))
    L.append(salu("s_mov_b64 vcc, 0", [], ["vcc"]))
    return L
def o_writes(h):
    return [dsw64(OW + b % 4, O_(2 * h + q, b & ~1) + 2 * (b & 1), (b // 4) * 128 + q * 4096) for q in range(2) for b in range(8)]
def o_reads(h, du):
    L = []
    for j in range(8):
        for i in range(2):
            d = AO + 32 * h + 4 * j + 2 * i; addr = OR_ + 2 * (j % 4) + i
            L.append(Ins("ds_read_b64 %s, v%d offset:%d" % (rng("a", d, 2), addr, j * 1024), "D", ["v%d" % addr], R("a", d, 2), tag=("O", h, du)))
    return L
def o_stores(h):
    return [store(AO + 32 * h + 4 * j, sOa if j < 4 else sOb, (j % 4) * 1024) for j in range(8)]
USTRIDE = 131072 if cfg.hmap == 0 else 128 * 131072
KSTEP = (8192, 2048, 4096)[cfg.kvmap]
def adv(which, cross):
    o, t, b = (sKo, sKt, sKb) if which == "K" else (sVo, sVt, sVb)
    m = sMKn if which == "K" else sMVn
    if cfg.flag_:
        assert not cfg.rot
        L = [s2("s_add_u32", "s%d" % o, "s%d" % o, "8192")]
        if USTRIDE != 131072:
            L += [s2("s_bfe_u32", "s%d" % t, "s%d" % o, "0x10011"), s2("s_mul_i32", "s%d" % t, "s%d" % t, str(USTRIDE - 131072)), s2("s_add_u32", "s%d" % o, "s%d" % o, "s%d" % t)]
        return L + [s2("s_add_u32", "s%d" % m, "s%d" % m, "8192"), s2("s_and_b32", "s%d" % m, "s%d" % m, "0xffff")]
    M = [s2("s_add_u32", "s%d" % m, "s%d" % m, "8192"), s2("s_and_b32", "s%d" % m, "s%d" % m, "0xffff")]
    if not cfg.rot:
        return M + [s2("s_add_u32", "s%d" % o, "s%d" % o, str(KSTEP + (USTRIDE - 16 * KSTEP if cross else 0)))]
    L = M + [s2("s_add_u32", "s%d" % t, "s%d" % t, "8192"), s2("s_and_b32", "s%d" % t, "s%d" % t, "0x1ffff")]
    if cross: L.append(s2("s_add_u32", "s%d" % b, "s%d" % b, str(USTRIDE)))
    L.append(s2("s_add_u32", "s%d" % o, "s%d" % b, "s%d" % t))
    return L

LEAD = cfg.lead
LAT = cfg.lat
B0, B1, B2, B3, NG = 0, 16, 34, 50, 68
NW0 = 9
RAMP_IT = [2, 4, 6][:cfg.lead - cfg.l0]
RAMPS = {}
QA_IT = [cfg.qa0 + i for i in range(4)]; QB_IT = [8, 9, 10, 11]; ST_IT = [1, 6, 7, 12, 13, 14, 15]
QRD = cfg.qa0 + 5; QB_IT = [QRD + 1 + i for i in range(4)] if QRD <= 7 else [QRD + 1, QRD + 2]
ST_IT = ([1] + [t for t in range(2, 16) if t not in QA_IT and t not in QB_IT] + [8])
ST_IT = sorted(ST_IT[:8])
ST_MAP = {t: [2 * i, 2 * i + 1] for i, t in enumerate(ST_IT)} if cfg.stmode == 0 else {(k + 1) % 16: [k] for k in range(16)}

class Seg:
    def __init__(self): self.gaps = []; self.sitems = []; self.head = []; self.tail = []; self.post = []

def build_iter(t, first=False):
    sg = Seg()
    if first:
        b0, b1, b2, b3, ng = 0, None, 16, 32, 50
        mf = qk_block(0) + qk_block(1) + pv_block(0, True)
    else:
        b0, b1, b2, b3, ng = B0, B1, B2, B3, NG
        mf = qk_block(0) + pv_block(1, t == 1) + qk_block(1) + pv_block(0, t == 0)
    gaps = [Gap(m) for m in mf]
    items = []
    INF = 10 ** 6
    slot = t % 8; nslot = (t + 1) % 8
    isbar = (t % cfg.barper == 0)
    bar_gap = cfg.bargap
    if not first:
        items += softmax_items(1, cfg.sm0 + 34 - NG, lambda q, kt: 0, lambda q: b1 + pfirst(q) - 2, lo=(cfg.e0, cfg.e0, cfg.c0))
        for i in range(cfg.f0, 8):
            f = KORD[i]
            items.append(Item(kread(f, slot, 0), 0, kfirst(f) - LAT, cfg.kt0 + cfg.kts * i - NG))
    items += softmax_items(0, (cfg.sm0 if not first else 12), lambda q, kt: b0 + sdone(q, kt) + cfg.rdy, lambda q: b3 + pfirst(q) - 2)
    items += softmax_items(1, b3 - B3 + cfg.sm0 + 34, lambda q, kt: b2 + sdone(q, kt) + cfg.rdy, lambda q: INF, hi=(cfg.e0, cfg.e0, cfg.c0))
    for b in range(8):
        for jj in range(2):
            rdy = (b1 + pvpos(b, 1)) if not first else cfg.fbar + 1
            items.append(Item(vread(b, jj, slot, 0), max(rdy, bar_gap + 1), b3 + pvpos(b, 0) - LAT, (cfg.vt0 + cfg.vts * (2 * b + jj)) if not first else cfg.fbar + 1 + b + jj * 0.5))
    for i in range(cfg.f0):
        f = KORD[i]
        items.append(Item(kread(f, nslot, 1), max(b2 + klast(f), cfg.fbar + 1 if first else 0), min(ng - 1, ng + kfirst(f) - LAT), b3 - B3 + cfg.kt0 + cfg.kts * i))
    def chain(lst, targets, ready, dead=INF, dist=1, after=None):
        p = after; res = []
        for k, (ins, tgt) in enumerate(zip(lst, targets)):
            dd = dead[k] if isinstance(dead, list) else dead
            it = Item(ins, ready, dd, tgt, [(p, dist)] if p else []); items.append(it); p = it; res.append(it)
        return res
    if first:
        lst = []
        for n in range(cfg.l0 + 1): lst += [("V", vd()), ("K", kd())]
        if cfg.early: lst = lst[1:]
        p = None; tg = 1
        for k, (w, pr) in enumerate(lst):
            rdy = 1 if k < 8 - cfg.early else cfg.fbar + 2
            its = chain(pr, [tg, tg + 1], rdy, after=p, dist=1); p = its[1]; tg += 2 if k < 4 else 3
            sg.post.append((its[1], adv(w, False)))
        gaps[7].sh.append(vsite([("Q", 1, 0)]))
        for i, ins in enumerate(q_reads(AQ + 32, 1, 0, addr=TM)):
            items.append(Item(ins, 8, 16 - LAT + qfirst(i // 4, i % 4) + 1, 8 + 0.5 * qfirst(i // 4, i % 4)))
        al = lsite(); al.needs = "all"
        gaps[cfg.fbar].sh += [al, vsite([("V", 0), ("K", 1)]), bar()]
        if cfg.barper == 2: gaps[ng - 1].va += [vsite([("V", 1), ("K", 2)]), bar()]
    else:
        dm = kv_dmas(t, LEAD)
        dmt = [17, 21, cfg.vx, cfg.vx + 4] if isbar else [3, 7, cfg.vx2, cfg.vx2 + 4]
        kvits = chain(dm, dmt, (bar_gap + 2) if isbar else 1)
        for a in adv("K", (t + LEAD + 2) % 16 == 0): sg.sitems.append((a, ("after", kvits[1]), None))
        for a in adv("V", (t + LEAD + 1) % 16 == 0): sg.sitems.append((a, ("after", kvits[3]), None))
        if isbar:
            needs = [("V", 0), ("K", 1)] + ([("V", 1), ("K", 2)] if cfg.barper == 2 else [])
            if t in RAMP_IT:
                r = Ins("s_cbranch_vccnz L_ramp%dA\nL_back%d:" % (t, t), "RAMP", ["vcc"]); r.cmt = "ramp%d" % t
                gaps[bar_gap - 2].sh.append(r)
                k = RAMP_IT.index(t)
                for role in ("A", "B"):
                    L = [vsite(needs)]
                    for w, pr in (("V", vd()), ("K", kd())):
                        follower = (w == "V") == (role == "A")
                        if follower and k >= len(RAMP_IT) - cfg.flag_: continue
                        L += [setm0(pr[0].cmt), nop(1)] + pr + adv(w, False)
                    if t == RAMP_IT[-1]: L.append(salu("s_mov_b64 vcc, 0", [], ["vcc"]))
                    L.append(raw("s_branch L_back%d" % t, "BR"))
                    if role == "A": L[0:0] = [raw("s_bitcmp1_b32 s2, 3"), raw("s_cbranch_scc1 L_ramp%dB" % t)]
                    RAMPS["ramp%d%s" % (t, role)] = L
            gaps[bar_gap - 1].sh.append(vsite(needs))
            gaps[bar_gap].sh.append(bar())
    XT = [cfg.xt, cfg.xt + 10]
    if not first and t == 0:
        gaps[0].pre += epi_burst(0)
        W = chain(o_writes(0), [0.5 + 1.9 * i for i in range(16)], 0, 38)
        chain(o_reads(0, -1), [31 + 0.9 * j for j in range(16)], 0, 47, dist=0, after=W[15])
        gaps[48].pre += epi_burst(1)
        chain(o_writes(1)[:NW0], [48.5 + 2 * i for i in range(NW0)], 48)
        for i in range(16, 32):
            items.append(Item(v1("v_accvgpr_mov_b32", "a%d" % (AQ + 32 + i), "a%d" % (AQN + i)), 0, b2 - 2, 2 * (i - 16)))
        gaps[60].pre += flag_ops()
    if t == 1:
        ws = o_writes(1)[NW0:]
        W = chain(ws, [0.5 + 2 * i for i in range(len(ws))], 0, [b1 + pvpos(2 * ((NW0 + i) % 8 // 2), (NW0 + i) // 8) - 1 for i in range(len(ws))])
        chain(o_reads(1, -1), [16 + 2 * j for j in range(16)], 0, INF, dist=0, after=W[-1])
        al = lsite(); al.needs = "all"; gaps[ng - 1].sh.insert(1, al)
    if not first and ST_MAP.get(t):
        ks = ST_MAP[t]
        tg = {1: [cfg.stgap], 2: XT}[len(ks)] if t not in (0, 1) else ([50, 54] if t == 1 else [20])
        st = chain([o_stores(k // 8)[k % 8] for k in ks], tg, 18, 62 if t != 0 else 30)
        for k, it in zip(ks, st):
            if k % 8 == 0: sg.head += [s2("s_add_u32", "s%d" % sOb, "s%d" % sOa, "4096")]
            if k == 7: sg.sitems.append((s2("s_add_u32", "s%d" % sOa, "s%d" % sOa, "8192"), ("after", it), None))
            if k == 15:
                sg.sitems.append((s2("s_add_u32", "s%d" % sOa, "s%d" % sOa, str(USTRIDE - 8192)), ("after", it), None))
            if k == (15 if cfg.stmode == 0 else 15):
                sg.sitems.append((smov("s%d" % (sO_ + 2), "s%d" % sONR), ("after", it), None))
    for h, its in ((1, QA_IT), (0, QB_IT)):
        if t in its:
            k = its.index(t)
            if k == 0:
                sg.head += [s2("s_add_u32", "s%d" % sQa, "s%d" % sQo, str(8192 * h)), s2("s_add_u32", "s%d" % sQb, "s%d" % sQo, str(8192 * h + 4096))]
            npi = 8 // len(its)
            chain(q_dmas(h, 1)[npi * k:npi * k + npi], XT if npi == 2 else [34, 40, 46, 52], cfg.vx + 6, 60)
            if h == 0 and k == len(its) - 1: sg.tail += [s2("s_add_u32", "s%d" % sQo, "s%d" % sQo, str(USTRIDE))]
    if t == QRD:
        gaps[29].sh.append(vsite([("Q", 1, 1)]))
        for i, ins in enumerate(q_reads(AQN, 1, 1)):
            items.append(Item(ins, 30, INF, 30 + 4 * i))
        al = lsite(); al.needs = "all"; gaps[ng - 1].sh.insert(1, al)
    if cfg.fakepre and 8 <= t <= 14:
        for i in range(23):
            r = 2 + (i % 4)
            op = [v2("v_and_b32", "v%d" % r, "0xffff0000", "v10"), v2("v_lshlrev_b32", "v%d" % r, "16", "v10"), mul_(r), mul_(r), cvt_(8, 2, 3)][i % 5]
            items.append(Item(op, 0, INF, 3 * i))
    if cfg.fakepre and t == 15:
        for i in range(32):
            sg.tail += [v2("v_and_b32", "v3", "0xffff0000", "v10"), v2("v_lshlrev_b32", "v2", "16", "v10"),
                        valu("v_pk_mul_f32 v[4:5], v[2:3], v[6:7]", [], [], "K"), cvt_(8, 4, 5), v1("v_accvgpr_write_b32", "a%d" % (AQN + i), "v8")]
    if t == 15:
        gaps[15].sh.append(vsite([("Q", 0, 1)]))
        for i, ins in enumerate(q_reads(AQ, 0, 1)):
            items.append(Item(ins, 16, ng - 1 - LAT, 17 + 5 * i))
        for i in range(16):
            items.append(Item(v1("v_accvgpr_mov_b32", "a%d" % (AQ + 32 + i), "a%d" % (AQN + i)), b3, INF, b3 + i))
    schedule(gaps, items, "it%d%s" % (t, "f" if first else ""))
    for it, ops in sg.post: gaps[it.gap].va += ops
    sg.gaps = gaps
    return sg

def place_scalar(sg):
    gaps = sg.gaps
    def busy(G): return sum(1 for x in G.sh if (x.kind not in ("LSITE", "VSITE")) ) + (1 if any(x.kind in ("LSITE", "VSITE") and x.n is not None for x in G.sh) else 0)
    cur = None; lastx = -1
    for g, G in enumerate(gaps):
        if any("s_mov_b32 m0" in x.text for x in G.pre): cur = None; lastx = max(lastx, g - 1)
        if any(x.kind == "RAMP" for x in G.sh): cur = None; lastx = max(lastx, g)
        for x in G.ds:
            if x.kind == "X" and "m0" in x.rd:
                if cur != x.cmt:
                    cands = [k for k in range(max(lastx, 0) if lastx < 0 else lastx + 1, g)]
                    free = [k for k in cands if busy(gaps[k]) == 0]
                    if cands:
                        k = free[-1] if free else cands[-1]
                        gaps[k].sh.append(setm0(x.cmt))
                    elif any("s_mov_b32 m0" in y.text for y in G.pre):
                        G.pre.append(setm0(x.cmt))
                    else:
                        gaps[lastx].va.append(setm0(x.cmt))
                    cur = x.cmt
                lastx = g
    lastpos = {}
    ntail = 0
    for ins, (how, it), _ in sg.sitems:
        c = [k for k in range(max(it.gap, lastpos.get(id(it), -1)) + 1, len(gaps)) if busy(gaps[k]) == 0]
        if c: gaps[c[0]].sh.append(ins); lastpos[id(it)] = c[0]
        else: sg.tail.insert(ntail, ins); ntail += 1; lastpos[id(it)] = len(gaps)

def flat(sg):
    L = list(sg.head)
    for G in sg.gaps: L += G.flat()
    return L + sg.tail

def prologue():
    L = []
    A = L.append
    A(raw("s_cmp_ge_u32 s2, 256")); A(raw("s_cbranch_scc1 L_end"))
    A(raw("s_load_dwordx4 s[36:39], s[0:1], 0")); A(raw("s_load_dwordx4 s[40:43], s[0:1], 16"))
    A(v2("v_lshrrev_b32", "v1", "6", "v0")); A(v2("v_and_b32", "v0", "63", "v0"))
    A(valu("v_readfirstlane_b32 s%d, v1" % sW, ["v1"], ["s%d" % sW]))
    A(v2("v_lshrrev_b32", "v2", "4", "v0"))
    A(v2("v_and_b32", "v3", "15", "v0"))
    if cfg.xmap == 0:
        A(raw("s_and_b32 s45, s2, 7")); A(raw("s_lshr_b32 s46, s2, 4")); A(raw("s_lshl_b32 s45, s45, 4")); A(raw("s_add_u32 s45, s45, s46"))
    else:
        A(raw("s_and_b32 s45, s2, 7")); A(raw("s_lshr_b32 s46, s2, 4")); A(raw("s_lshl_b32 s46, s46, 3")); A(raw("s_add_u32 s45, s45, s46"))
    if cfg.rot:
        A(raw("s_mul_i32 s%d, s45, %d" % (sKt, cfg.rot * 8192))); A(raw("s_and_b32 s%d, s%d, 0x1ffff" % (sKt, sKt))); A(smov("s%d" % sVt, "s%d" % sKt))
        A(smov("s%d" % sKb, "0")); A(smov("s%d" % sVb, "0"))
    A(raw("s_lshl_b32 s45, s45, %d" % (19 if cfg.hmap == 0 else 17)))
    A(raw("s_bfe_u32 s46, s2, 0x10003")); A(raw("s_lshl_b32 s46, s46, 16")); A(raw("s_add_u32 s46, s46, s45"))
    A(s2("s_lshl_b32", "s%d" % sMK, "s%d" % sW, "11"))
    A(v2("v_lshlrev_b32", "v4", "1", "v2")); A(v2("v_xor_b32", "v4", "v3", "v4")); A(v2("v_lshlrev_b32", "v4", "4", "v4"))
    A(v3("v_lshl_add_u32", "v%d" % DA, "v2", "8", "v4")); A(v2("v_xor_b32", "v%d" % DB, "0x80", "v%d" % DA))
    A(smov("s%d" % sMKn, "s%d" % sMK)); A(smov("s%d" % sMVn, "s%d" % sMK))
    if cfg.cpf:
        A(raw("s_lshr_b32 s%d, s2, 3" % sT)); A(raw("s_lshl_b32 s%d, s%d, 2" % (sT, sT))); A(raw("s_add_u32 s%d, s%d, s%d" % (sT, sT, sW)))
        A(raw("s_and_b32 s%d, s%d, 31" % (sT, sT))); A(raw("s_lshl_b32 s%d, s%d, 10" % (sT, sT)))
        A(raw("s_min_u32 s%d, s%d, L_end - L_pc - 1024" % (sT, sT)))
        A(v2("v_lshlrev_b32", "v5", "4", "v0")); A(v2("v_add_u32", "v5", "s%d" % sT, "v5"))
        A(raw("s_getpc_b64 s[58:59]\nL_pc:"))
        A(Ins("global_load_dwordx4 v[72:75], v5, s[58:59]", "X", ["v5"], R("v", 72, 4)))
    A(s2("s_lshl_b32", "s%d" % sMS, "s%d" % sW, "13")); A(s2("s_add_u32", "s%d" % sMS, "s%d" % sMS, str(LDS_S)))
    A(s2("s_lshl_b32", "s%d" % sQo, "s%d" % sW, "14"))
    A(s2("s_lshl_b32", "s%d" % sOa, "s%d" % sW, "14")); A(s2("s_sub_u32", "s%d" % sOa, "s%d" % sOa, str(USTRIDE)))
    for b in (sQ_, sK_, sV_, sO_): A(smov("s%d" % (b + 3), "0x20000"))
    A(smov("s%d" % (sK_ + 2), str(3 * USTRIDE + 131072))); A(smov("s%d" % (sV_ + 2), str(3 * USTRIDE + 131072)))
    A(smov("s%d" % (sQ_ + 2), str(3 * USTRIDE + 65536))); A(smov("s%d" % sONR, str(3 * USTRIDE + 65536))); A(smov("s%d" % (sO_ + 2), "0"))
    assert not cfg.rot and not cfg.flag_
    if cfg.kvmap == 0: A(s2("s_lshl_b32", "s%d" % sKo, "s%d" % sW, "11"))
    elif cfg.kvmap == 1: A(s2("s_lshl_b32", "s%d" % sKo, "s%d" % sW, "15"))
    else:
        A(s2("s_and_b32", "s%d" % sKo, "s%d" % sW, "1")); A(s2("s_lshl_b32", "s%d" % sKo, "s%d" % sKo, "11"))
        A(s2("s_lshr_b32", "s%d" % sVo, "s%d" % sW, "1")); A(s2("s_lshl_b32", "s%d" % sVo, "s%d" % sVo, "16")); A(s2("s_add_u32", "s%d" % sKo, "s%d" % sKo, "s%d" % sVo))
    A(smov("s%d" % sVo, "s%d" % sKo))
    A(raw("s_waitcnt lgkmcnt(0)"))
    if cfg.stamp2: L += stamp()
    for b, p, o in ((sK_, 38, 45), (sQ_, 36, 46), (sV_, 40, 45), (sO_, 42, 46)):
        A(salu("s_add_u32 s%d, s%d, s%d" % (b, p, o), [], ["s%d" % b])); A(salu("s_addc_u32 s%d, s%d, 0" % (b + 1, p + 1), [], ["s%d" % (b + 1)]))
    def issue(lst):
        cur = None
        for x in lst:
            if x.kind == "X" and cur != x.cmt:
                A(setm0(x.cmt)); A(nop(1)); cur = x.cmt
            A(x)
    A(smov("s%d" % sQa, "s%d" % sQo)); A(s2("s_add_u32", "s%d" % sQb, "s%d" % sQo, "4096"))
    k0 = kd(); v0 = vd() if cfg.early else None
    q0 = q_dmas(0, 0)
    if cfg.early:
        issue([k0[0], q0[0], v0[0], k0[1], v0[1]] + adv("K", False) + adv("V", False) + q0[1:])
    else:
        issue(k0 + adv("K", False) + q0)
    A(s2("s_add_u32", "s%d" % sQa, "s%d" % sQo, "8192")); A(s2("s_add_u32", "s%d" % sQb, "s%d" % sQo, str(8192 + 4096)))
    A(s2("s_sub_u32", "s%d" % sT, "s%d" % sMS, "32768"))
    issue(q_dmas(1, 0, msgpr=sT))
    if cfg.stamp2: L += stamp()
    A(s2("s_add_u32", "s%d" % sQo, "s%d" % sQo, str(USTRIDE)))
    A(v2("v_and_b32", "v5", "7", "v3")); A(v2("v_lshlrev_b32", "v6", "1", "v5"))
    for s in range(4):
        A(v2("v_add_u32", "v7", str(4 * s), "v2")); A(v2("v_xor_b32", "v7", "v7", "v6")); A(v2("v_lshlrev_b32", "v7", "4", "v7"))
        A(v3("v_lshl_add_u32", "v%d" % (KA + s), "v3", "8", "v7"))
        A(v2("v_add_u32", "v%d" % (QA + s), "s%d" % sMS, "v%d" % (KA + s)))
        A(v2("v_subrev_u32", "v%d" % (TM + s), "0x8000", "v%d" % (QA + s)))
    A(v2("v_lshrrev_b32", "v8", "2", "v0"))
    A(v2("v_and_b32", "v9", "7", "v8")); A(v2("v_lshlrev_b32", "v9", "1", "v9"))
    A(valu("v_bfe_u32 v10, v0, 1, 1", ["v0"], ["v10"]))
    A(v2("v_and_b32", "v11", "1", "v0")); A(v2("v_lshlrev_b32", "v11", "3", "v11"))
    A(v3("v_lshl_add_u32", "v11", "v8", "8", "v11")); A(v2("v_add_u32", "v11", str(LDS_V), "v11"))
    for b in range(8):
        A(v2("v_add_u32", "v7", str(2 * b), "v10")); A(v2("v_xor_b32", "v7", "v7", "v9"))
        A(v3("v_lshl_add_u32", "v%d" % (VA + b), "v7", "4", "v11"))
    A(v2("v_lshlrev_b32", "v11", "8", "v3")); A(v2("v_add_u32", "v11", "s%d" % sMS, "v11"))
    A(v2("v_lshlrev_b32", "v12", "8", "v2")); A(v2("v_add_u32", "v12", "s%d" % sMS, "v12")); A(v2("v_lshlrev_b32", "v13", "1", "v3"))
    for j in range(4):
        A(v2("v_add_u32", "v7", str(4 * j), "v2")); A(v2("v_xor_b32", "v10", "v7", "v3"))
        A(v3("v_lshl_add_u32", "v%d" % (OW + j), "v10", "3", "v11"))
        A(v2("v_xor_b32", "v10", "v7", "v13"))
        A(v3("v_lshl_add_u32", "v%d" % (OR_ + 2 * j), "v10", "3", "v12")); A(v2("v_xor_b32", "v%d" % (OR_ + 2 * j + 1), "8", "v%d" % (OR_ + 2 * j)))
    A(v2("v_lshlrev_b32", "v%d" % OS, "4", "v0"))
    A(v2("v_and_b32", "v7", "3", "v0")); A(valu("v_cmp_eq_u32 vcc, 0, v7", ["v7"], ["vcc"])); A(v1("v_mov_b32", "v8", "0x3f803f80")); A(v1("v_mov_b32", "v9", "0"))
    A(valu("v_cndmask_b32 v7, v9, v8, vcc", ["v8", "v9", "vcc"], ["v7"]))
    for i in range(4):
        A(v1("v_accvgpr_write_b32", "a%d" % (AONE + i), "v7")); A(v1("v_accvgpr_write_b32", "a%d" % (AZERO + i), "v9"))
    A(smov("s%d" % sC, "0x%08x" % SCALE))
    if cfg.fakepre: L += [v1("v_mov_b32", "v%d" % i, "1.0") for i in range(2, 12)]
    A(smov("s%d" % sLO, "0x%08x" % LO_BITS)); A(smov("s%d" % sRG, "0x%08x" % (HI_BITS - LO_BITS)))
    A(smov("s%d" % sBAD, "0")); A(salu("s_mov_b64 s[%d:%d], 0" % (sACC, sACC + 1), [], R("s", sACC, 2)))
    A(smov("s%d" % sCNT, "3"))
    A(salu("s_mov_b64 vcc, %d" % (-1 if RAMP_IT else 0), [], ["vcc"]))
    A(s2("s_add_u32", "s%d" % sOb, "s%d" % sOa, "4096"))
    if cfg.stamp2: L += stamp()
    A(vsite([("K", 0), ("Q", 0, 0)]))
    if cfg.stamp2: L += stamp()
    A(bar())
    qr = q_reads(AQ, 0, 0)
    seen = set()
    for kt, q, s in QKSEQ:
        if ("k", kt, s) not in seen: A(kread(4 * kt + s, 0, 0)); seen.add(("k", kt, s))
        if ("q", q, s) not in seen: A(qr[4 * q + s]); seen.add(("q", q, s))
    A(lsite())
    return L

def tail_seg():
    L = []
    for it in softmax_items(1, 0, lambda q, kt: 0, lambda q: 99, lo=(cfg.e0, cfg.e0, cfg.c0)):
        L.append(it.ins)
        if it.ins.kind == "T" and it.ins.text == exp_(S_(1, *GRP[3]) + 3).text: L.append(nop(1))
    if cfg.stmode == 1:
        L += [o_stores(1)[7], s2("s_add_u32", "s%d" % sOa, "s%d" % sOa, str(USTRIDE - 8192))]
    L.append(s2("s_add_u32", "s%d" % sOb, "s%d" % sOa, "4096"))
    L += epi_burst(0)
    gaps = [Gap(m) for m in pv_block(1, False)]
    for g, w in enumerate(o_writes(0)): gaps[g].ds.append(w)
    gaps[16].ds += o_reads(0, 0)[:8]
    gaps[17].ds += o_reads(0, 0)[8:]
    for G in gaps: L += G.flat()
    L.append(nop(1))
    L += epi_burst(1)
    L.append(lsite())
    L += o_writes(1)[:8] + o_stores(0)[:4] + o_writes(1)[8:] + o_reads(1, 0) + o_stores(0)[4:]
    L += [s2("s_add_u32", "s%d" % sOa, "s%d" % sOa, "8192"), s2("s_add_u32", "s%d" % sOb, "s%d" % sOb, "8192")]
    L += flag_ops()
    st = o_stores(1)
    L += [lsite()] + st[:4] + [lsite()] + st[4:]
    return L

def slow_path():
    T = []
    A = T.append
    def emit(l):
        for x in l: A(x.text)
    def wait(): A("s_waitcnt vmcnt(0) lgkmcnt(0)");
    A("s_barrier")
    if cfg.force_slow: A("s_mov_b32 s%d, 15" % sBAD)
    A("s_cmp_eq_u32 s%d, 0" % sBAD); A("s_cbranch_scc1 L_end")
    A("s_lshl_b32 s45, s%d, 13" % sW)
    for i in range(4): A("v_add_u32 v%d, s45, v%d" % (KA + i, KA + i))
    for i in range(8): A("v_add_u32 v%d, s45, v%d" % (VA + i, VA + i))
    A("s_add_u32 s46, s45, %d" % LDS_V)
    A("s_lshl_b32 s%d, s%d, 14" % (sQo, sW))
    A("s_lshl_b32 s%d, s%d, 14" % (sOo, sW))
    A("v_mov_b32 v%d, v%d" % (TM + 4, DA)); A("v_mov_b32 v%d, v%d" % (TM + 5, DB))
    A("s_mov_b32 s%d, 0" % sCNT)
    A("L_slow_unit:")
    A("s_bitcmp1_b32 s%d, 3" % sBAD); A("s_cbranch_scc0 L_slow_next")
    wait()
    for h in range(2):
        A("s_add_u32 s%d, s%d, %d" % (sQa, sQo, h * 8192)); A("s_add_u32 s%d, s%d, 4096" % (sQb, sQa))
        cur = None
        for x in q_dmas(h, 0):
            if cur != x.cmt: A(setm0(x.cmt).text); A("s_nop 0"); cur = x.cmt
            A(x.text)
        wait(); emit(q_reads(AQ + 32 * h, h, 0)); wait()
    def tile_dma(sr, m0s):
        for i in range(8):
            if i % 4 == 0:
                A("s_add_u32 m0, s%d, %d" % (m0s, (i // 4) * 4096)); A("s_add_u32 s%d, s%d, %d" % (sT, sKo, (i // 4) * 4096))
            A("buffer_load_dwordx4 v%d, %s, s%d offen offset:%d lds" % (TM + 4 + i % 2, srd(sr), sT, (i % 4) * 1024))
    def qk_all():
        emit([kread(f, 0, 0) for f in range(8)]); wait()
        emit(qk_block(0) + qk_block(1)); A("s_nop 7"); A("s_nop 3")
    for i in range(4): A("v_mov_b32 v%d, 0xff800000" % (MX + i))
    A("s_mov_b32 s%d, s%d" % (sKo, sCNT)); A("s_add_u32 s%d, s%d, 131072" % (sVo, sCNT))
    A("L_slow_p1:")
    tile_dma(sK_, 45); wait(); qk_all()
    for h in range(2):
        for q in range(2):
            a = S_(h, q, 0)
            for i in range(4): A("v_max3_f32 v%d, v%d, v%d, v%d" % (MX + 2 * h + q, a + 2 * i, a + 2 * i + 1, MX + 2 * h + q))
    A("s_add_u32 s%d, s%d, 8192" % (sKo, sKo)); A("s_cmp_lt_u32 s%d, s%d" % (sKo, sVo)); A("s_cbranch_scc1 L_slow_p1")
    for op in ("v_permlane32_swap_b32", "v_permlane16_swap_b32"):
        for i in range(4): A("v_mov_b32 v%d, v%d" % (NM + i, MX + i))
        A("s_nop 1")
        for i in range(4): A("%s v%d, v%d" % (op, NM + i, MX + i))
        A("s_nop 1")
        for i in range(4): A("v_max_f32 v%d, v%d, v%d" % (MX + i, MX + i, NM + i))
    for i in range(4): A("v_mul_f32 v%d, s%d, v%d" % (NM + i, sC, MX + i))
    for i in range(128): A("v_mov_b32 v%d, 0" % (OB + i))
    for i in range(16): A("v_accvgpr_write_b32 a%d, 0" % (AL + i))
    A("s_mov_b32 s%d, s%d" % (sKo, sCNT))
    A("L_slow_p2:")
    tile_dma(sK_, 45); tile_dma(sV_, 46); wait(); qk_all()
    emit([vread(b, jj, 0, 0) for b in range(4) for jj in range(2)])
    for h in range(2):
        for q in range(2):
            a = S_(h, q, 0)
            for i in range(8): A("v_fma_f32 v%d, v%d, s%d, -v%d" % (a + i, a + i, sC, NM + 2 * h + q))
            for i in range(8): A("v_exp_f32 v%d, v%d" % (a + i, a + i))
            A("s_nop 0")
            for i in range(4): A(cvt_(P_(h, q) + i, a + 2 * i, a + 2 * i + 1).text)
    emit([vread(b, jj, 0, 0) for b in range(4, 8) for jj in range(2)])
    wait()
    emit(pv_block(0, False) + pv_block(1, False))
    A("s_add_u32 s%d, s%d, 8192" % (sKo, sKo)); A("s_cmp_lt_u32 s%d, s%d" % (sKo, sVo)); A("s_cbranch_scc1 L_slow_p2")
    A("s_nop 7"); A("s_nop 3")
    for h in range(2):
        emit(epi_burst(h, check=False)); emit(o_writes(h) + o_reads(h, 0))
        A("s_add_u32 s%d, s%d, %d" % (sOa, sOo, h * 8192)); A("s_add_u32 s%d, s%d, 4096" % (sOb, sOa))
        wait(); emit(o_stores(h)); wait()
    A("L_slow_next:")
    A("s_lshl_b32 s%d, s%d, 1" % (sBAD, sBAD)); A("s_and_b32 s%d, s%d, 15" % (sBAD, sBAD))
    for r in (sCNT, sQo, sOo): A("s_add_u32 s%d, s%d, %d" % (r, r, USTRIDE))
    A("s_cmp_lg_u32 s%d, 0" % sBAD); A("s_cbranch_scc1 L_slow_unit")
    return T

def stamp():
    if not cfg.stamp: return []
    return [raw("s_memtime s[58:59]"), raw("s_memrealtime s[60:61]"), raw("s_waitcnt lgkmcnt(0)"),
            raw("s_mov_b32 m0, s57"), raw("s_nop 0"), raw("v_writelane_b32 v62, s58, m0"), raw("v_writelane_b32 v63, s60, m0"), raw("s_add_u32 s57, s57, 1")]
def stamp_out():
    if not cfg.stamp: return []
    return [x.text for x in stamp()] + ["s_load_dwordx2 s[36:37], s[0:1], 40", "s_waitcnt lgkmcnt(0)", "s_mov_b32 s38, 0x1000000", "s_mov_b32 s39, 0x20000",
            "s_lshl_b32 s45, s2, 2", "s_add_u32 s45, s45, s%d" % sW, "s_lshl_b32 s45, s45, 9", "v_lshrrev_b32 v61, 2, v%d" % OS,
            "buffer_store_dword v62, v61, s[36:39], s45 offen", "buffer_store_dword v63, v61, s[36:39], s45 offen offset:256"]
def main():
    sgs = {"it0f": build_iter(0, True)}
    for t in range(16): sgs["it%d" % t] = build_iter(t)
    def segs():
        d = {"pro": pro, "tail": tl}
        d.update(RAMPS)
        for k, s in sgs.items(): d[k] = flat(s)
        return d
    pro = prologue(); tl = tail_seg()
    if cfg.dbgspan:
        pro[2:2] = [raw("s_memrealtime s[60:61]"), raw("s_memtime s[62:63]"), raw("s_waitcnt lgkmcnt(0)"), raw("s_mov_b32 s56, s60"), raw("s_mov_b32 s57, s62")]
        i = [k for k, x in enumerate(pro) if x.kind == "BAR"][0]
        pro[i + 1:i + 1] = [raw("s_memrealtime s[58:59]")]
    if cfg.stamp:
        pro[2:2] = [raw("s_mov_b32 s57, 0")] + stamp()
        i = [k for k, x in enumerate(pro) if x.kind == "BAR"][0]
        pro[i + 1:i + 1] = stamp()
        for t in range(0, 16, cfg.stamp): sgs["it%d" % t].head[0:0] = stamp()
        tl[0:0] = stamp()
        if cfg.stamp3:
            G = sgs["it0"].gaps
            G[0].pre += stamp(); G[16].pre += stamp(); G[34].pre += stamp(); G[48].pre[0:0] = stamp(); G[48].pre += stamp()
            sgs["it1"].head[0:0] = stamp(); sgs["it1"].gaps[34].pre += stamp(); sgs["it2"].head[0:0] = stamp(); sgs["it3"].head[0:0] = stamp()
        if cfg.stamp2:
            sgs["it0f"].gaps[16].pre += stamp(); sgs["it0f"].gaps[cfg.fbar + 1].pre += stamp(); sgs["it0f"].tail[0:0] = stamp()
    traces = []
    for role in ("A", "B"):
        x = dict(role=role, lagK=cfg.flag_ if role == "B" else 0, lagV=cfg.flag_ if role == "A" else 0)
        trace = [("pro", dict(T=0, u=0, first=1, **x)), ("it0f", dict(T=0, u=0, first=1, **x))]
        for u in range(4):
            for t in range(16):
                if (u, t) != (0, 0): trace.append(("it%d" % t, dict(T=16 * u + t, u=u, first=(u == 0 and t < 8), **x)))
        trace.append(("tail", dict(T=64, u=3, **x)))
        traces.append(trace)
    sgs["it0f"].tail.append(raw("s_branch L_it1", "BR"))
    sgs["it15"].tail += [s2("s_sub_u32", "s%d" % sCNT, "s%d" % sCNT, "1"), raw("s_cbranch_scc0 L_it0", "BR")]
    insert_waits(segs(), traces)
    for k, s in sgs.items():
        br = [x for x in s.tail if x.kind == "BR" or "s_sub_u32 s%d" % sCNT in x.text]
        s.tail = [x for x in s.tail if x not in br]
        place_scalar(s)
        s.tail += br
    fs = {k: finalize(v) for k, v in segs().items()}
    errs = sum((verify(fs, tr, {"K": 8, "V": 16, "Q": 8, "O": 16}) for tr in traces), [])
    for e in errs[:40]: sys.stderr.write("ERR " + e + "\n")
    tot = 0
    for k in ["pro", "it0f"] + ["it%d" % t for t in range(16)] + ["tail"]:
        est = issue_estimate(fs[k]); sys.stderr.write("%s:%d " % (k, est))
        if k.startswith("it") and k != "it0f": tot += est
    if cfg.stamp3:
        for k in ("it0", "it1", "it2"):
            parts = [[]]
            for x in fs[k]:
                if "s_memtime" in x.text: parts.append([])
                parts[-1].append(x)
            sys.stderr.write("\n%s parts %s" % (k, [issue_estimate(p) for p in parts]))
    sys.stderr.write("\nunit estimate %d cycles, errors %d\n" % (tot, len(errs)))
    out = []
    hdr = open(os.path.join(os.path.dirname(os.path.abspath(__file__)), "..", "cdna_kernels", NAME + ".s.ref")).read().split("; Override")[0]
    out.append(hdr.rstrip())
    out.append("; @launch grid=(256,1,1) block=(256,1,1) lds=163840")
    out.append('.amdgcn_target "amdgcn-amd-amdhsa--gfx950"\n.text\n.globl %s_kernel\n.p2align 8\n.type %s_kernel,@function\n%s_kernel:' % (NAME, NAME, NAME))
    par = {}
    def dump(k):
        out.append("; ---- " + k)
        for x in fs[k]:
            if cfg.nocomp and k != "pro" and x.kind in ("M", "V", "T", "K", "D", "W"):
                par[x.kind] = par.get(x.kind, 0) + 1
                if cfg.nocomp == 1 or par[x.kind] % cfg.nocomp == 0: continue
            if cfg.nomem and k != "pro" and x.kind == "X" and (cfg.nomem == 1 or "store" in x.text): continue
            if cfg.nostore and x.kind == "X" and "store" in x.text: continue
            out.append("  " + x.text)
            if cfg.nocomp and "m0" in x.wr: out.append("  s_nop 0")
    dump("pro"); dump("it0f")
    for k in RAMPS: out.append("L_%s:" % k); dump(k)
    out.append(".p2align 6\nL_it0:"); dump("it0"); out.append("L_it1:")
    for t in range(1, 16): dump("it%d" % t)
    dump("tail")
    if cfg.dbgspan:
        out += ["  " + x for x in ["s_waitcnt vmcnt(0)", "s_memrealtime s[60:61]", "s_memtime s[62:63]", "s_load_dwordx2 s[36:37], s[0:1], 32", "s_waitcnt lgkmcnt(0)", "s_mov_b32 s38, 256", "s_mov_b32 s39, 0x20000",
            "s_not_b32 s45, s56", "v_mov_b32 v2, s45", "v_mov_b32 v3, s58", "v_mov_b32 v4, s60", "v_mov_b32 v5, s56", "s_not_b32 s45, s60", "v_mov_b32 v6, s45", "s_sub_u32 s45, s62, s57", "v_mov_b32 v7, s45", "v_mov_b32 v1, 0",
            "s_mov_b64 exec, 1",
            "buffer_atomic_umax v2, v1, s[36:39], 0 offen", "buffer_atomic_umax v3, v1, s[36:39], 0 offen offset:4", "buffer_atomic_umax v4, v1, s[36:39], 0 offen offset:8",
            "buffer_atomic_umax v5, v1, s[36:39], 0 offen offset:12", "buffer_atomic_umax v6, v1, s[36:39], 0 offen offset:16", "buffer_atomic_umax v7, v1, s[36:39], 0 offen offset:20", "s_mov_b64 exec, -1"]]
    if cfg.stamp:
        out.append("  s_waitcnt vmcnt(0)")
        out += ["  " + x for x in stamp_out()]
    if cfg.nocomp or cfg.nomem or cfg.fakepre: out.append("  s_mov_b32 s%d, 0" % sBAD)
    out += ["  " + x if not x.endswith(":") else x for x in slow_path()]
    out.append("L_end:\n  s_endpgm")
    out.append('.section .rodata,"a"\n.p2align 6\n.amdhsa_kernel %s_kernel' % NAME)
    out.append("  .amdhsa_next_free_vgpr 512\n  .amdhsa_next_free_sgpr 64\n  .amdhsa_accum_offset 256\n  .amdhsa_group_segment_fixed_size 0\n  .amdhsa_kernarg_size 48\n  .amdhsa_user_sgpr_count 2\n  .amdhsa_user_sgpr_kernarg_segment_ptr 1\n  .amdhsa_system_sgpr_workgroup_id_x 1\n.end_amdhsa_kernel")
    open(sys.argv[1], "w").write("\n".join(out) + "\n")
    if errs: sys.exit(1)
main()
```

```python
import sys, os, struct, math
from core import *

class Cfg:
    barper = 2
    finchk = 1
    lat = 7
    k_aux = ""
    v_aux = ""
    kv_aux = "nt"
    q_aux = "nt"
    o_aux = "nt"
    e0 = 10; c0 = 4; f0 = 6
    force_slow = 0
    hmap = 1
    rot = 0
    xmap = 0
    stamp = 0
    stamp3 = 0
    stamp2 = 0
    nocomp = 0
    nomem = 0
    nostore = 0
    dbgspan = 0
    lag = 1.5
    lead = 6
    wbl2 = 0
    kvmap = 2
    fakepre = 0
    x0 = 17
    x1 = 9
    xs = 8
    xts = 8
    xt = 52
    flag_ = 0
    stmode = 0
    qmaj = 0
    bargap = 14
    sm0 = 14
    qkord = 2
    kt0 = 54.0
    kts = 2.48
    vt0 = 18.0
    vts = 2.48
    stgap = 48
    l0 = 3
    cpf = 1
    qa0 = 2
    early = 1
    fbar = 22
    rdy = 5
cfg = Cfg()
for a in sys.argv[2:]:
    k, v = a.split("=")
    setattr(cfg, k, type(getattr(cfg, k))(v))

NAME = "standalone__mha_softmax__near_ridge"
KA = 16; VA = 20; DA = 28; DB = 29; QA = 30; OW = 34; OS = 40; OR_ = 64
ET = 42; ER = 44; EU = 48
MX = 50; NM = 54; TM = 58
PB = 80; SB = 96; OB = 128
def S_(h, q, kt): return SB + 16 * h + 8 * q + 4 * kt
def P_(h, q): return PB + 8 * h + 4 * q
def O_(qt, b): return OB + 32 * qt + 4 * b
AQ = 0; AQN = 64; AK = 96; AV = 128; AO = 160; AL = 224; AONE = 240; AZERO = 244; ACHK = 248
sQ_, sK_, sV_, sO_ = 4, 8, 12, 16
sW = 20; sKo = 21; sVo = 22; sMK = 23; sMV = 24; sQo = 25; sOo = 26; sC = 27; sBAD = 28; sUB = 29; sACC = 30; sCMP = 32
sLO = 34; sRG = 35; sMS = 44; sCNT = 47; sONR = 48; sQa = 50; sQb = 51; sOa = 52; sOb = 53; sT = 54; sKt = 55; sVt = 56; sKb = 62; sVb = 63; sMKn = 29; sMVn = 49
LDS_V = 65536; LDS_S = 131072
SCALE = struct.unpack("<I", struct.pack("<f", math.log2(math.e) / math.sqrt(128.0)))[0]
LO_BITS = (127 - (40 if cfg.finchk else 24)) << 23
HI_BITS = (127 + (126 if cfg.finchk else 24)) << 23

def srd(b): return "s[%d:%d]" % (b, b + 3)
def srdr(b): return R("s", b, 4)

def v2(op, d, a, b, kind="V"):
    rd = [x for x in (a, b) if isinstance(x, str) and x[0] in "vsa" and x[1:].isdigit()]
    return valu("%s %s, %s, %s" % (op, d, a, b), rd, [d], kind)
def v1(op, d, a, kind="V"):
    rd = [a] if isinstance(a, str) and a[0] in "vsa" and a[1:].isdigit() else []
    return valu("%s %s, %s" % (op, d, a), rd, [d], kind)
def v3(op, d, a, b, c):
    rd = [x for x in (a, b, c) if isinstance(x, str) and x[0] in "vsa" and x[1:].isdigit()]
    return valu("%s %s, %s, %s, %s" % (op, d, a, b, c), rd, [d])
def s2(op, d, a, b):
    rd = [x for x in (a, b) if isinstance(x, str) and (x[0] == "s" or x == "m0")]
    return salu("%s %s, %s, %s" % (op, d, a, b), rd, [d, "scc"])
def smov(d, a):
    return salu("s_mov_b32 %s, %s" % (d, a), [a] if isinstance(a, str) and a[0] == "s" else [], [d])
def mul_(r): return v2("v_mul_f32", "v%d" % r, "s%d" % sC, "v%d" % r)
def exp_(r): return v1("v_exp_f32", "v%d" % r, "v%d" % r, "T")
def cvt_(d, a, b): return v2("v_cvt_pk_bf16_f32", "v%d" % d, "v%d" % a, "v%d" % b)
def dsr128(dp, d, addr, off, tag):
    assert 0 <= off < 65536
    return Ins("ds_read_b128 %s, v%d offset:%d" % (rng(dp, d, 4), addr, off), "D", ["v%d" % addr], R(dp, d, 4), tag=tag)
def dstr(d, addr, off, tag):
    assert 0 <= off < 65536
    return Ins("ds_read_b64_tr_b16 %s, v%d offset:%d" % (rng("a", d, 2), addr, off), "D", ["v%d" % addr], R("a", d, 2), tag=tag)
def dsw64(addr, src, off):
    return Ins("ds_write_b64 v%d, %s offset:%d" % (addr, rng("v", src, 2), off), "W", ["v%d" % addr] + R("v", src, 2), [])
def dma(voff, sr, soff, off, tag, m0, aux=""):
    if sr == sK_ and cfg.k_aux: aux = cfg.k_aux
    if sr == sV_ and cfg.v_aux: aux = cfg.v_aux
    i = Ins("buffer_load_dwordx4 v%d, %s, s%d offen offset:%d %slds" % (voff, srd(sr), soff, off, aux + " " if aux else ""), "X",
            ["v%d" % voff, "s%d" % soff, "m0"] + srdr(sr), [], tag=tag)
    i.cmt = m0
    return i
def store(src, soff, off, tag=None):
    return Ins("buffer_store_dwordx4 %s, v%d, %s, s%d offen offset:%d%s" % (rng("a", src, 4), OS, srd(sO_), soff, off, " " + cfg.o_aux if cfg.o_aux else ""), "X",
               R("a", src, 4) + ["v%d" % OS, "s%d" % soff] + srdr(sO_), [], tag=tag)
def setm0(m0):
    return s2("s_add_u32", "m0", "s%d" % m0[0], str(m0[1]))

if cfg.qkord == 0:   QKSEQ = [(f // 4, q, f % 4) for f in range(8) for q in range(2)]
elif cfg.qkord == 1: QKSEQ = [(kt, q, s if q == 0 else 3 - s) for kt in range(2) for q in range(2) for s in range(4)]
else:                QKSEQ = [(c // 2, (0, 1, 1, 0)[c], s if c % 2 == 0 else 3 - s) for c in range(4) for s in range(4)]
def kfirst(f): return min(i for i, (kt, q, s) in enumerate(QKSEQ) if 4 * kt + s == f)
def klast(f): return max(i for i, (kt, q, s) in enumerate(QKSEQ) if 4 * kt + s == f)
def sdone(q, kt): return max(i for i, x in enumerate(QKSEQ) if x[:2] == (kt, q))
def qfirst(q, s): return min(i for i, x in enumerate(QKSEQ) if x[1:] == (q, s))
GRP = sorted([(q, kt) for q in range(2) for kt in range(2)], key=lambda g: sdone(*g))
KORD = sorted(range(8), key=kfirst)
def qk_block(h):
    L = []; seen = set()
    for kt, q, s in QKSEQ:
        L.append(mfma("v", S_(h, q, kt), "a", AK + 4 * (4 * kt + s), "a", AQ + 16 * (2 * h + q) + 4 * s, czero=((kt, q) not in seen)))
        seen.add((kt, q))
    return L
def pvpos(b, q):
    if cfg.qmaj: return 9 * q + 1 + b
    return 2 * b + q + (1 if b >= 3 else 0) + (1 if b >= 6 else 0)
def pfirst(q): return 9 * q if cfg.qmaj else q
def pv_block(h, first):
    L = []
    if cfg.qmaj:
        for q in range(2):
            L.append(mfma("a", AL + 4 * (2 * h + q), "a", AONE, "v", P_(h, q), czero=first))
            for b in range(8): L.append(mfma("v", O_(2 * h + q, b), "a", AV + 4 * b, "v", P_(h, q), czero=first))
        return L
    for b in range(8):
        for q in range(2):
            L.append(mfma("v", O_(2 * h + q, b), "a", AV + 4 * b, "v", P_(h, q), czero=first))
        if b in (2, 5):
            q = b // 4
            L.append(mfma("a", AL + 4 * (2 * h + q), "a", AONE, "v", P_(h, q), czero=first))
    return L

class Item:
    def __init__(self, ins, ready, dead, target, deps=()):
        self.ins = ins; self.ready = ready; self.dead = dead; self.target = target; self.deps = list(deps); self.gap = None
        k = ins.kind
        self.cost = 8 if k in ("T", "X", "W") else 4
class Gap:
    def __init__(self, m):
        self.pre = []; self.m = m; self.sh = [lsite()]; self.ds = []; self.va = []
    def flat(self): return self.pre + [self.m] + self.sh + self.ds + self.va

def schedule(gaps, items, name):
    n = len(gaps)
    todo = sorted(items, key=lambda i: (i.target, i.dead))
    for g in range(n):
        G = gaps[g]
        def ok(it):
            if it.ready > g: return False
            for d, dist in it.deps:
                if d.gap is None or d.gap + dist > g: return False
            return True
        def place(it):
            it.gap = g; todo.remove(it)
            (G.ds if it.ins.kind in ("D", "W", "X") else G.va).append(it.ins)
        def fits(it, used):
            k = it.ins.kind
            if any(x.kind == "X" for x in G.ds): return False
            if k == "X": return used == 0
            return True
        used = 0
        for it in [x for x in todo if x.dead <= g]:
            if ok(it) and fits(it, used): place(it); used += it.cost
        while used < 8:
            c = [it for it in todo if ok(it) and fits(it, used) and it.cost <= 8 - used]
            if not c: break
            it = c[0]
            if used == 0 and it.cost == 4:
                four = [x for x in c[1:] if x.cost == 4 or False]
                dep_next = [x for x in todo if x.cost == 4 and x is not it and x.ready <= g and all((d.gap is not None and d.gap + dist <= g) or (d is it and dist == 0) for d, dist in x.deps)]
                eight = [x for x in c if x.cost == 8]
                if not dep_next and eight and it.dead > g: it = eight[0]
            place(it); used += it.cost
        c = [it for it in todo if ok(it) and fits(it, used) and it.cost == 4 and it.target < g - cfg.lag]
        if c and used > 0:
            place(c[0]); used += 4
        while True:
            over = False
            dem = 0
            for it in sorted(todo, key=lambda i: min(i.dead, n - 1)):
                dem += 12 if it.ins.kind == "X" else it.cost
                d = min(it.dead, n - 1)
                if dem > 12 * (d - g): over = True; break
            if not over: break
            c = sorted([it for it in todo if ok(it) and fits(it, used)], key=lambda i: (min(i.dead, n - 1), i.target))
            if not c: break
            place(c[0]); used += c[0].cost
    if todo:
        raise Exception("%s: unscheduled items: %s" % (name, [(i.ins.text, i.ready, i.dead) for i in todo]))
    for it in items:
        if it.gap > it.dead: raise Exception("%s: deadline miss %s gap %d > %d" % (name, it.ins.text, it.gap, it.dead))

def softmax_items(h, base, rdy, dead, lo=(0, 0, 0), hi=(16, 16, 8), carry=None):
    its = []; M = {}; E = {}
    def reg(e):
        q, kt = GRP[e // 4]
        return q, kt, S_(h, q, kt) + e % 4
    for e in range(lo[0], hi[0] if not cfg.fakepre else lo[0]):
        q, kt, r = reg(e)
        M[e] = Item(mul_(r), rdy(q, kt), dead(q) - 2, base + 2 * e); its.append(M[e])
    for e in range(lo[1], hi[1]):
        q, kt, r = reg(e)
        E[e] = Item(exp_(r), rdy(q, kt), dead(q) - 1, base + 2 * e + 1, [(M[e], 0)] if e in M else []); its.append(E[e])
    for j in range(lo[2], hi[2]):
        q, kt, r = reg(2 * j)
        deps = [(E[e], 1) for e in (2 * j, 2 * j + 1) if e in E]
        its.append(Item(cvt_(P_(h, q) + 2 * kt + j % 2, r, r + 1), rdy(q, kt), dead(q), base + 4 * j + 4, deps))
    return its

def kread(f, slot, dT):
    return dsr128("a", AK + 4 * f, KA + f % 4, slot * 8192 + (f // 4) * 4096, ("K", dT))
def vread(b, jj, slot, dT):
    return dstr(AV + 4 * b + 2 * jj, VA + b, slot * 8192 + jj * 4096, ("V", dT))
_uid = [0]
def kd(lead=None):
    _uid[0] += 1
    L = [dma(DA, sK_, sKo, 0, ("K", "a"), (sMKn, 0, _uid[0]), cfg.kv_aux), dma(DB, sK_, sKo, 1024, ("K", "b"), (sMKn, 0, _uid[0]), cfg.kv_aux)]
    for x in L: x.needs = lead
    return L
def vd(lead=None):
    _uid[0] += 1
    L = [dma(DA, sV_, sVo, 0, ("V", "a"), (sMVn, LDS_V, _uid[0]), cfg.kv_aux), dma(DB, sV_, sVo, 1024, ("V", "b"), (sMVn, LDS_V, _uid[0]), cfg.kv_aux)]
    for x in L: x.needs = lead
    return L
def kv_dmas(t, lead):
    return kd(lead + 1) + vd(lead)
def q_dmas(h, du, msgpr=sMS, mconst=0):
    return [dma(DA if i % 2 == 0 else DB, sQ_, sQa if i < 4 else sQb, (i % 4) * 1024, ("Q", h, du), (msgpr, mconst + (i // 4) * 4096), cfg.q_aux) for i in range(8)]
def q_reads(dst, h, du, addr=QA):
    return [dsr128("a", dst + 16 * q + 4 * s, addr + s, q * 4096, ("Q", h, du)) for q in range(2) for s in range(4)]

def epi_burst(h, check=True, defer=False):
    L = []
    for q in range(2): L.append(v1("v_accvgpr_read_b32", "v%d" % (ET + q), "a%d" % (AL + 4 * (2 * h + q))))
    for q in range(2): L.append(v1("v_rcp_f32", "v%d" % (ER + 2 * q), "v%d" % (ET + q), "T"))
    if check:
        for q in range(2): L.append(v2("v_subrev_u32", "v%d" % (EU + q), "s%d" % sLO, "v%d" % (ET + q)))
        L.append(valu("v_cmp_le_u32 vcc, s%d, v%d" % (sRG, EU), ["s%d" % sRG, "v%d" % EU], ["vcc"]))
        L.append(valu("v_cmp_le_u32 s[%d:%d], s%d, v%d" % (sCMP, sCMP + 1, sRG, EU + 1), ["s%d" % sRG, "v%d" % (EU + 1)], R("s", sCMP, 2)))
    else:
        L.append(nop(1))
    for q in range(2):
        for b in range(8):
            for i in range(2):
                a = O_(2 * h + q, b) + 2 * i
                L.append(valu("v_pk_mul_f32 v[%d:%d], v[%d:%d], v[%d:%d] op_sel_hi:[1,0]" % (a, a + 1, a, a + 1, ER + 2 * q, ER + 2 * q + 1),
                              R("v", a, 2) + ["v%d" % (ER + 2 * q)], R("v", a, 2), "K"))
    sor = []
    if check:
        sor = [salu("s_or_b64 s[%d:%d], s[%d:%d], vcc" % (sACC, sACC + 1, sACC, sACC + 1), ["vcc"] + R("s", sACC, 2), R("s", sACC, 2)),
               salu("s_or_b64 s[%d:%d], s[%d:%d], s[%d:%d]" % (sACC, sACC + 1, sACC, sACC + 1, sCMP, sCMP + 1), R("s", sCMP, 2) + R("s", sACC, 2), R("s", sACC, 2))]
        if not cfg.finchk: L += sor
    for q in range(2):
        for bp in range(4):
            a = O_(2 * h + q, 2 * bp)
            for i in range(4): L.append(cvt_(a + i, a + 2 * i, a + 2 * i + 1))
            if check and cfg.finchk and (q, bp) != (0, 0):
                pa = a - 8
                L.append(mfma("a", ACHK, "a", AZERO, "v", pa, czero=(h == 0 and (q, bp) == (0, 1))))
                if sor: L.append(sor.pop(0))
    last = [mfma("a", ACHK, "a", AZERO, "v", O_(2 * h + 1, 6))] if check and cfg.finchk else []
    if defer: LASTCHK[h] = last
    elif last: L += [nop(2)] + last
    return L
def flag_ops():
    L = []
    if cfg.finchk:
        L.append(v1("v_accvgpr_read_b32", "v%d" % ET, "a%d" % ACHK))
        L.append(valu("v_cmp_u_f32 vcc, v%d, v%d" % (ET, ET), ["v%d" % ET], ["vcc"]))
        L.append(nop(2))
        L.append(salu("s_or_b64 s[%d:%d], s[%d:%d], vcc" % (sACC, sACC + 1, sACC, sACC + 1), ["vcc"] + R("s", sACC, 2), R("s", sACC, 2)))
    L.append(salu("s_cmp_lg_u64 s[%d:%d], 0" % (sACC, sACC + 1), R("s", sACC, 2), ["scc"]))
    L.append(salu("s_addc_u32 s%d, s%d, s%d" % (sBAD, sBAD, sBAD), ["scc", "s%d" % sBAD], ["s%d" % sBAD]))
    L.append(salu("s_mov_b64 s[%d:%d], 0" % (sACC, sACC + 1), [], R("s", sACC, 2)))
    L.append(salu("s_mov_b64 vcc, 0", [], ["vcc"]))
    return L
def o_writes(h):
    L = []
    for q in range(2):
        for bp in range(4):
            a = O_(2 * h + q, 2 * bp); addr = OW + bp % 2
            L.append(Ins("ds_write_b128 v%d, %s offset:%d" % (addr, rng("v", a, 4), (bp // 2) * 128 + q * 4096), "W", ["v%d" % addr] + R("v", a, 4), []))
    return L
def o_reads(h, du):
    L = []
    for j in range(8):
        for i in range(2):
            d = AO + 32 * h + 4 * j + 2 * i; addr = OR_ + 2 * (j % 2) + i
            L.append(Ins("ds_read_b64 %s, v%d offset:%d" % (rng("a", d, 2), addr, j * 1024), "D", ["v%d" % addr], R("a", d, 2), tag=("O", h, du)))
    return L
def o_stores(h):
    return [store(AO + 32 * h + 4 * j, sOa if j < 4 else sOb, (j % 4) * 1024) for j in range(8)]
USTRIDE = 131072 if cfg.hmap == 0 else 128 * 131072
KSTEP = (8192, 2048, 4096)[cfg.kvmap]
def adv(which, cross):
    o, t, b = (sKo, sKt, sKb) if which == "K" else (sVo, sVt, sVb)
    m = sMKn if which == "K" else sMVn
    if cfg.flag_:
        assert not cfg.rot
        L = [s2("s_add_u32", "s%d" % o, "s%d" % o, "8192")]
        if USTRIDE != 131072:
            L += [s2("s_bfe_u32", "s%d" % t, "s%d" % o, "0x10011"), s2("s_mul_i32", "s%d" % t, "s%d" % t, str(USTRIDE - 131072)), s2("s_add_u32", "s%d" % o, "s%d" % o, "s%d" % t)]
        return L + [s2("s_add_u32", "s%d" % m, "s%d" % m, "8192"), s2("s_and_b32", "s%d" % m, "s%d" % m, "0xffff")]
    M = [s2("s_add_u32", "s%d" % m, "s%d" % m, "8192"), s2("s_and_b32", "s%d" % m, "s%d" % m, "0xffff")]
    if not cfg.rot:
        return M + [s2("s_add_u32", "s%d" % o, "s%d" % o, str(KSTEP + (USTRIDE - 16 * KSTEP if cross else 0)))]
    L = M + [s2("s_add_u32", "s%d" % t, "s%d" % t, "8192"), s2("s_and_b32", "s%d" % t, "s%d" % t, "0x1ffff")]
    if cross: L.append(s2("s_add_u32", "s%d" % b, "s%d" % b, str(USTRIDE)))
    L.append(s2("s_add_u32", "s%d" % o, "s%d" % b, "s%d" % t))
    return L

LEAD = cfg.lead
LAT = cfg.lat
B0, B1, B2, B3, NG = 0, 16, 34, 50, 68
NW0 = 5
LASTCHK = {}
RAMP_IT = [2, 4, 6][:cfg.lead - cfg.l0]
RAMPS = {}
QA_IT = [cfg.qa0 + i for i in range(4)]; QB_IT = [8, 9, 10, 11]; ST_IT = [1, 6, 7, 12, 13, 14, 15]
QRD = cfg.qa0 + 5; QB_IT = [QRD + 1 + i for i in range(4)] if QRD <= 7 else [QRD + 1, QRD + 2]
ST_IT = ([1] + [t for t in range(2, 16) if t not in QA_IT and t not in QB_IT] + [8])
ST_IT = sorted(ST_IT[:8])
ST_MAP = {t: [2 * i, 2 * i + 1] for i, t in enumerate(ST_IT)} if cfg.stmode == 0 else {(k + 1) % 16: [k] for k in range(16)}
if cfg.stmode == 2: ST_MAP = {6: [0, 1, 2, 3], 7: [4, 5, 6, 7], 12: [8, 9, 10, 11], 13: [12, 13, 14, 15]}
if cfg.stmode == 3: ST_MAP = {12: [0, 1, 2, 3], 13: [4, 5, 6, 7], 14: [8, 9, 10, 11], 15: [12, 13, 14, 15]}

class Seg:
    def __init__(self): self.gaps = []; self.sitems = []; self.head = []; self.tail = []; self.post = []

def build_iter(t, first=False):
    sg = Seg()
    if first:
        b0, b1, b2, b3, ng = 0, None, 16, 32, 50
        mf = qk_block(0) + qk_block(1) + pv_block(0, True)
    else:
        b0, b1, b2, b3, ng = B0, B1, B2, B3, NG
        mf = qk_block(0) + pv_block(1, t == 1) + qk_block(1) + pv_block(0, t == 0)
    gaps = [Gap(m) for m in mf]
    items = []
    INF = 10 ** 6
    slot = t % 8; nslot = (t + 1) % 8
    isbar = (t % cfg.barper == 0)
    bar_gap = cfg.bargap
    if not first:
        items += softmax_items(1, cfg.sm0 + 34 - NG, lambda q, kt: 0, lambda q: b1 + pfirst(q) - 2, lo=(cfg.e0, cfg.e0, cfg.c0))
        for i in range(cfg.f0, 8):
            f = KORD[i]
            items.append(Item(kread(f, slot, 0), 0, kfirst(f) - LAT, cfg.kt0 + cfg.kts * i - NG))
    items += softmax_items(0, (cfg.sm0 if not first else 12), lambda q, kt: b0 + sdone(q, kt) + cfg.rdy, lambda q: b3 + pfirst(q) - 2)
    items += softmax_items(1, b3 - B3 + cfg.sm0 + 34, lambda q, kt: b2 + sdone(q, kt) + cfg.rdy, lambda q: INF, hi=(cfg.e0, cfg.e0, cfg.c0))
    for b in range(8):
        for jj in range(2):
            rdy = (b1 + pvpos(b, 1)) if not first else cfg.fbar + 1
            items.append(Item(vread(b, jj, slot, 0), max(rdy, bar_gap + 1), b3 + pvpos(b, 0) - LAT, (cfg.vt0 + cfg.vts * (2 * b + jj)) if not first else cfg.fbar + 1 + b + jj * 0.5))
    for i in range(cfg.f0):
        f = KORD[i]
        items.append(Item(kread(f, nslot, 1), max(b2 + klast(f), cfg.fbar + 1 if first else 0), min(ng - 1, ng + kfirst(f) - LAT), b3 - B3 + cfg.kt0 + cfg.kts * i))
    def chain(lst, targets, ready, dead=INF, dist=1, after=None):
        p = after; res = []
        for k, (ins, tgt) in enumerate(zip(lst, targets)):
            dd = dead[k] if isinstance(dead, list) else dead
            it = Item(ins, ready, dd, tgt, [(p, dist)] if p else []); items.append(it); p = it; res.append(it)
        return res
    if first:
        lst = []
        for n in range(cfg.l0 + 1): lst += [("V", vd()), ("K", kd())]
        if cfg.early: lst = lst[1:]
        p = None; tg = 1
        for k, (w, pr) in enumerate(lst):
            rdy = 1 if k < 8 - cfg.early else cfg.fbar + 2
            its = chain(pr, [tg, tg + 1], rdy, after=p, dist=1); p = its[1]; tg += 2 if k < 4 else 3
            sg.post.append((its[1], adv(w, False)))
        gaps[7].sh.append(vsite([("Q", 1, 0)]))
        for i, ins in enumerate(q_reads(AQ + 32, 1, 0, addr=TM)):
            items.append(Item(ins, 8, 16 - LAT + qfirst(i // 4, i % 4) + 1, 8 + 0.5 * qfirst(i // 4, i % 4)))
        al = lsite(); al.needs = "all"
        gaps[cfg.fbar].sh += [al, vsite([("V", 0), ("K", 1)]), bar()]
        if cfg.barper == 2: gaps[ng - 1].va += [vsite([("V", 1), ("K", 2)]), bar()]
    else:
        dm = kv_dmas(t, LEAD)
        dmt = [cfg.x0 + cfg.xs * i for i in range(4)] if isbar else [cfg.x1 + cfg.xs * i for i in range(4)]
        kvits = chain(dm, dmt, (bar_gap + 2) if isbar else 1)
        for a in adv("K", (t + LEAD + 2) % 16 == 0): sg.sitems.append((a, ("after", kvits[1]), None))
        for a in adv("V", (t + LEAD + 1) % 16 == 0): sg.sitems.append((a, ("after", kvits[3]), None))
        if isbar:
            needs = [("V", 0), ("K", 1)] + ([("V", 1), ("K", 2)] if cfg.barper == 2 else [])
            if t in RAMP_IT:
                r = Ins("s_cbranch_vccnz L_ramp%dA\nL_back%d:" % (t, t), "RAMP", ["vcc"]); r.cmt = "ramp%d" % t
                gaps[bar_gap - 2].sh.append(r)
                k = RAMP_IT.index(t)
                for role in ("A", "B"):
                    L = [vsite(needs)]
                    for w, pr in (("V", vd()), ("K", kd())):
                        follower = (w == "V") == (role == "A")
                        if follower and k >= len(RAMP_IT) - cfg.flag_: continue
                        L += [setm0(pr[0].cmt), nop(1)] + pr + adv(w, False)
                    if t == RAMP_IT[-1]: L.append(salu("s_mov_b64 vcc, 0", [], ["vcc"]))
                    L.append(raw("s_branch L_back%d" % t, "BR"))
                    if role == "A": L[0:0] = [raw("s_bitcmp1_b32 s2, 3"), raw("s_cbranch_scc1 L_ramp%dB" % t)]
                    RAMPS["ramp%d%s" % (t, role)] = L
            gaps[bar_gap - 1].sh.append(vsite(needs))
            gaps[bar_gap].sh.append(bar())
    XT = [cfg.xt, cfg.xt + cfg.xts]
    if not first and t == 0:
        gaps[0].pre += epi_burst(0, defer=True)
        gaps[1].pre += LASTCHK[0]
        W = chain(o_writes(0), [1.5 + 3.5 * i for i in range(8)], 0, 38)
        chain(o_reads(0, -1), [29 + 1.1 * j for j in range(16)], 0, 47, dist=0, after=W[7])
        gaps[48].pre += epi_burst(1, defer=True)
        gaps[49].pre += LASTCHK[1]
        chain(o_writes(1)[:NW0], [49.5 + 4 * i for i in range(NW0)], 48)
        for i in range(16, 32):
            items.append(Item(v1("v_accvgpr_mov_b32", "a%d" % (AQ + 32 + i), "a%d" % (AQN + i)), 0, b2 - 2, 2 * (i - 16)))
        fo = flag_ops()
        if cfg.finchk:
            i1 = Item(fo[0], 56, INF, 56); i2 = Item(fo[1], 56, 62, 57, [(i1, 0)]); items += [i1, i2]
            sg.sitems.append((fo[3], ("after2", i2), None)); sg.sitems.append(([fo[4], fo[5]], ("after2", i2), None))
            sg.sitems.append((fo[6], ("after2", i2), None)); sg.sitems.append((fo[7], ("after2", i2), None))
        else:
            gaps[60].pre += fo
    if t == 1:
        ws = o_writes(1)[NW0:]
        W = chain(ws, [0.5 + 4 * i for i in range(len(ws))], 0, [b1 + pvpos(2 * ((NW0 + i) % 4), (NW0 + i) // 4) - 1 for i in range(len(ws))])
        chain(o_reads(1, -1), [16 + 2 * j for j in range(16)], 0, INF, dist=0, after=W[-1])
        al = lsite(); al.needs = "all"; gaps[ng - 1].sh.insert(1, al)
    if not first and ST_MAP.get(t):
        ks = ST_MAP[t]
        tg = {1: [cfg.stgap], 2: XT, 4: [36, 42, 48, 54]}[len(ks)] if t not in (0, 1) else ([50, 54] if t == 1 else [20])
        st = chain([o_stores(k // 8)[k % 8] for k in ks], tg, 18, 65 if t != 0 else 30)
        for k, it in zip(ks, st):
            if k % 8 == 0: sg.head += [s2("s_add_u32", "s%d" % sOb, "s%d" % sOa, "4096")]
            if k == 7: sg.sitems.append((s2("s_add_u32", "s%d" % sOa, "s%d" % sOa, "8192"), ("after", it), None))
            if k == 15:
                sg.sitems.append((s2("s_add_u32", "s%d" % sOa, "s%d" % sOa, str(USTRIDE - 8192)), ("after", it), None))
            if k == (15 if cfg.stmode == 0 else 15):
                sg.sitems.append((smov("s%d" % (sO_ + 2), "s%d" % sONR), ("after", it), None))
    for h, its in ((1, QA_IT), (0, QB_IT)):
        if t in its:
            k = its.index(t)
            if k == 0:
                sg.head += [s2("s_add_u32", "s%d" % sQa, "s%d" % sQo, str(8192 * h)), s2("s_add_u32", "s%d" % sQb, "s%d" % sQo, str(8192 * h + 4096))]
            npi = 8 // len(its)
            chain(q_dmas(h, 1)[npi * k:npi * k + npi], XT if npi == 2 else [34, 40, 46, 52], cfg.xt - 2, 64)
            if h == 0 and k == len(its) - 1: sg.tail += [s2("s_add_u32", "s%d" % sQo, "s%d" % sQo, str(USTRIDE))]
    if cfg.wbl2 and t == cfg.wbl2:
        sg.head += [raw("s_cmp_lg_u32 s%d, 0" % sCNT), raw("s_cbranch_scc1 L_nowb"), raw("s_cmp_lg_u32 s%d, 0" % sW), raw("s_cbranch_scc1 L_nowb"),
                    raw("buffer_wbl2 sc1"), raw("L_nowb:")]
    if t == QRD:
        gaps[29].sh.append(vsite([("Q", 1, 1)]))
        for i, ins in enumerate(q_reads(AQN, 1, 1)):
            items.append(Item(ins, 30, INF, 30 + 4 * i))
        al = lsite(); al.needs = "all"; gaps[ng - 1].sh.insert(1, al)
    if cfg.fakepre and 8 <= t <= 14:
        for i in range(23):
            r = 2 + (i % 4)
            op = [v2("v_and_b32", "v%d" % r, "0xffff0000", "v10"), v2("v_lshlrev_b32", "v%d" % r, "16", "v10"), mul_(r), mul_(r), cvt_(8, 2, 3)][i % 5]
            items.append(Item(op, 0, INF, 3 * i))
    if cfg.fakepre and t == 15:
        for i in range(32):
            sg.tail += [v2("v_and_b32", "v3", "0xffff0000", "v10"), v2("v_lshlrev_b32", "v2", "16", "v10"),
                        valu("v_pk_mul_f32 v[4:5], v[2:3], v[6:7]", [], [], "K"), cvt_(8, 4, 5), v1("v_accvgpr_write_b32", "a%d" % (AQN + i), "v8")]
    if t == 15:
        gaps[15].sh.append(vsite([("Q", 0, 1)]))
        for i, ins in enumerate(q_reads(AQ, 0, 1)):
            items.append(Item(ins, 16, ng - 1 - LAT, 17 + 5 * i))
        for i in range(16):
            items.append(Item(v1("v_accvgpr_mov_b32", "a%d" % (AQ + 32 + i), "a%d" % (AQN + i)), b3, INF, b3 + i))
    schedule(gaps, items, "it%d%s" % (t, "f" if first else ""))
    for it, ops in sg.post: gaps[it.gap].va += ops
    sg.gaps = gaps
    return sg

def place_scalar(sg):
    gaps = sg.gaps
    def busy(G): return sum(1 for x in G.sh if (x.kind not in ("LSITE", "VSITE")) ) + (1 if any(x.kind in ("LSITE", "VSITE") and x.n is not None for x in G.sh) else 0)
    cur = None; lastx = -1
    for g, G in enumerate(gaps):
        if any("s_mov_b32 m0" in x.text for x in G.pre): cur = None; lastx = max(lastx, g - 1)
        if any(x.kind == "RAMP" for x in G.sh): cur = None; lastx = max(lastx, g)
        for x in G.ds:
            if x.kind == "X" and "m0" in x.rd:
                if cur != x.cmt:
                    cands = [k for k in range(max(lastx, 0) if lastx < 0 else lastx + 1, g)]
                    free = [k for k in cands if busy(gaps[k]) == 0]
                    if cands:
                        k = free[-1] if free else cands[-1]
                        gaps[k].sh.append(setm0(x.cmt))
                    elif any("s_mov_b32 m0" in y.text for y in G.pre):
                        G.pre.append(setm0(x.cmt))
                    else:
                        gaps[lastx].va.append(setm0(x.cmt))
                    cur = x.cmt
                lastx = g
    lastpos = {}
    ntail = 0
    for ins, (how, it), _ in sg.sitems:
        lst = ins if isinstance(ins, list) else [ins]
        c = [k for k in range(max(it.gap + (1 if how == "after2" else 0), lastpos.get(id(it), -1)) + 1, len(gaps)) if busy(gaps[k]) == 0]
        if c: gaps[c[0]].sh += lst; lastpos[id(it)] = c[0]
        else: sg.tail[ntail:ntail] = lst; ntail += len(lst); lastpos[id(it)] = len(gaps)

def flat(sg):
    L = list(sg.head)
    for G in sg.gaps: L += G.flat()
    return L + sg.tail

def prologue():
    L = []
    A = L.append
    A(raw("s_cmp_ge_u32 s2, 256")); A(raw("s_cbranch_scc1 L_end"))
    A(raw("s_load_dwordx4 s[36:39], s[0:1], 0")); A(raw("s_load_dwordx4 s[40:43], s[0:1], 16"))
    A(v2("v_lshrrev_b32", "v1", "6", "v0")); A(v2("v_and_b32", "v0", "63", "v0"))
    A(valu("v_readfirstlane_b32 s%d, v1" % sW, ["v1"], ["s%d" % sW]))
    A(v2("v_lshrrev_b32", "v2", "4", "v0"))
    A(v2("v_and_b32", "v3", "15", "v0"))
    if cfg.xmap == 0:
        A(raw("s_and_b32 s45, s2, 7")); A(raw("s_lshr_b32 s46, s2, 4")); A(raw("s_lshl_b32 s45, s45, 4")); A(raw("s_add_u32 s45, s45, s46"))
    else:
        A(raw("s_and_b32 s45, s2, 7")); A(raw("s_lshr_b32 s46, s2, 4")); A(raw("s_lshl_b32 s46, s46, 3")); A(raw("s_add_u32 s45, s45, s46"))
    if cfg.rot:
        A(raw("s_mul_i32 s%d, s45, %d" % (sKt, cfg.rot * 8192))); A(raw("s_and_b32 s%d, s%d, 0x1ffff" % (sKt, sKt))); A(smov("s%d" % sVt, "s%d" % sKt))
        A(smov("s%d" % sKb, "0")); A(smov("s%d" % sVb, "0"))
    A(raw("s_lshl_b32 s45, s45, %d" % (19 if cfg.hmap == 0 else 17)))
    A(raw("s_bfe_u32 s46, s2, 0x10003")); A(raw("s_lshl_b32 s46, s46, 16")); A(raw("s_add_u32 s46, s46, s45"))
    A(s2("s_lshl_b32", "s%d" % sMK, "s%d" % sW, "11"))
    A(v2("v_lshlrev_b32", "v4", "1", "v2")); A(v2("v_xor_b32", "v4", "v3", "v4")); A(v2("v_lshlrev_b32", "v4", "4", "v4"))
    A(v3("v_lshl_add_u32", "v%d" % DA, "v2", "8", "v4")); A(v2("v_xor_b32", "v%d" % DB, "0x80", "v%d" % DA))
    A(smov("s%d" % sMKn, "s%d" % sMK)); A(smov("s%d" % sMVn, "s%d" % sMK))
    if cfg.cpf:
        A(raw("s_lshr_b32 s%d, s2, 3" % sT)); A(raw("s_lshl_b32 s%d, s%d, 2" % (sT, sT))); A(raw("s_add_u32 s%d, s%d, s%d" % (sT, sT, sW)))
        A(raw("s_and_b32 s%d, s%d, 31" % (sT, sT))); A(raw("s_lshl_b32 s%d, s%d, 10" % (sT, sT)))
        A(raw("s_min_u32 s%d, s%d, L_end - L_pc - 1024" % (sT, sT)))
        A(v2("v_lshlrev_b32", "v5", "4", "v0")); A(v2("v_add_u32", "v5", "s%d" % sT, "v5"))
        A(raw("s_getpc_b64 s[58:59]\nL_pc:"))
        A(Ins("global_load_dwordx4 v[72:75], v5, s[58:59]", "X", ["v5"], R("v", 72, 4)))
    A(s2("s_lshl_b32", "s%d" % sMS, "s%d" % sW, "13")); A(s2("s_add_u32", "s%d" % sMS, "s%d" % sMS, str(LDS_S)))
    A(s2("s_lshl_b32", "s%d" % sQo, "s%d" % sW, "14"))
    A(s2("s_lshl_b32", "s%d" % sOa, "s%d" % sW, "14")); A(s2("s_sub_u32", "s%d" % sOa, "s%d" % sOa, str(USTRIDE)))
    for b in (sQ_, sK_, sV_, sO_): A(smov("s%d" % (b + 3), "0x20000"))
    A(smov("s%d" % (sK_ + 2), str(3 * USTRIDE + 131072))); A(smov("s%d" % (sV_ + 2), str(3 * USTRIDE + 131072)))
    A(smov("s%d" % (sQ_ + 2), str(3 * USTRIDE + 65536))); A(smov("s%d" % sONR, str(3 * USTRIDE + 65536))); A(smov("s%d" % (sO_ + 2), "0"))
    assert not cfg.rot and not cfg.flag_
    if cfg.kvmap == 0: A(s2("s_lshl_b32", "s%d" % sKo, "s%d" % sW, "11"))
    elif cfg.kvmap == 1: A(s2("s_lshl_b32", "s%d" % sKo, "s%d" % sW, "15"))
    else:
        A(s2("s_and_b32", "s%d" % sKo, "s%d" % sW, "1")); A(s2("s_lshl_b32", "s%d" % sKo, "s%d" % sKo, "11"))
        A(s2("s_lshr_b32", "s%d" % sVo, "s%d" % sW, "1")); A(s2("s_lshl_b32", "s%d" % sVo, "s%d" % sVo, "16")); A(s2("s_add_u32", "s%d" % sKo, "s%d" % sKo, "s%d" % sVo))
    A(smov("s%d" % sVo, "s%d" % sKo))
    A(raw("s_waitcnt lgkmcnt(0)"))
    if cfg.stamp2: L += stamp()
    for b, p, o in ((sK_, 38, 45), (sQ_, 36, 46), (sV_, 40, 45), (sO_, 42, 46)):
        A(salu("s_add_u32 s%d, s%d, s%d" % (b, p, o), [], ["s%d" % b])); A(salu("s_addc_u32 s%d, s%d, 0" % (b + 1, p + 1), [], ["s%d" % (b + 1)]))
    def issue(lst):
        cur = None
        for x in lst:
            if x.kind == "X" and cur != x.cmt:
                A(setm0(x.cmt)); A(nop(1)); cur = x.cmt
            A(x)
    A(smov("s%d" % sQa, "s%d" % sQo)); A(s2("s_add_u32", "s%d" % sQb, "s%d" % sQo, "4096"))
    k0 = kd(); v0 = vd() if cfg.early else None
    q0 = q_dmas(0, 0)
    if cfg.early:
        issue([k0[0], q0[0], v0[0], k0[1], v0[1]] + adv("K", False) + adv("V", False) + q0[1:])
    else:
        issue(k0 + adv("K", False) + q0)
    A(s2("s_add_u32", "s%d" % sQa, "s%d" % sQo, "8192")); A(s2("s_add_u32", "s%d" % sQb, "s%d" % sQo, str(8192 + 4096)))
    A(s2("s_sub_u32", "s%d" % sT, "s%d" % sMS, "32768"))
    issue(q_dmas(1, 0, msgpr=sT))
    if cfg.stamp2: L += stamp()
    A(s2("s_add_u32", "s%d" % sQo, "s%d" % sQo, str(USTRIDE)))
    A(v2("v_and_b32", "v5", "7", "v3")); A(v2("v_lshlrev_b32", "v6", "1", "v5"))
    for s in range(4):
        A(v2("v_add_u32", "v7", str(4 * s), "v2")); A(v2("v_xor_b32", "v7", "v7", "v6")); A(v2("v_lshlrev_b32", "v7", "4", "v7"))
        A(v3("v_lshl_add_u32", "v%d" % (KA + s), "v3", "8", "v7"))
        A(v2("v_add_u32", "v%d" % (QA + s), "s%d" % sMS, "v%d" % (KA + s)))
        A(v2("v_subrev_u32", "v%d" % (TM + s), "0x8000", "v%d" % (QA + s)))
    A(v2("v_lshrrev_b32", "v8", "2", "v0"))
    A(v2("v_and_b32", "v9", "7", "v8")); A(v2("v_lshlrev_b32", "v9", "1", "v9"))
    A(valu("v_bfe_u32 v10, v0, 1, 1", ["v0"], ["v10"]))
    A(v2("v_and_b32", "v11", "1", "v0")); A(v2("v_lshlrev_b32", "v11", "3", "v11"))
    A(v3("v_lshl_add_u32", "v11", "v8", "8", "v11")); A(v2("v_add_u32", "v11", str(LDS_V), "v11"))
    for b in range(8):
        A(v2("v_add_u32", "v7", str(2 * b), "v10")); A(v2("v_xor_b32", "v7", "v7", "v9"))
        A(v3("v_lshl_add_u32", "v%d" % (VA + b), "v7", "4", "v11"))
    A(v2("v_lshlrev_b32", "v11", "8", "v3")); A(v2("v_add_u32", "v11", "s%d" % sMS, "v11"))
    A(v2("v_xor_b32", "v10", "v2", "v5"))
    A(v3("v_lshl_add_u32", "v%d" % OW, "v10", "4", "v11")); A(v2("v_xor_b32", "v%d" % (OW + 1), "64", "v%d" % OW))
    A(v2("v_and_b32", "v10", "12", "v3")); A(v2("v_and_b32", "v12", "1", "v3")); A(v3("v_lshl_add_u32", "v10", "v12", "1", "v10"))
    A(v2("v_xor_b32", "v10", "v10", "v2")); A(v2("v_lshlrev_b32", "v10", "4", "v10")); A(v3("v_lshl_add_u32", "v10", "v2", "8", "v10"))
    A(v2("v_and_b32", "v12", "2", "v3")); A(v3("v_lshl_add_u32", "v10", "v12", "2", "v10"))
    A(v2("v_add_u32", "v%d" % OR_, "s%d" % sMS, "v10"))
    for i, x in enumerate((16, 64, 80)): A(v2("v_xor_b32", "v%d" % (OR_ + 1 + i), str(x), "v%d" % OR_))
    A(v2("v_lshlrev_b32", "v%d" % OS, "4", "v0"))
    A(v2("v_and_b32", "v7", "3", "v0")); A(valu("v_cmp_eq_u32 vcc, 0, v7", ["v7"], ["vcc"])); A(v1("v_mov_b32", "v8", "0x3f803f80")); A(v1("v_mov_b32", "v9", "0"))
    A(valu("v_cndmask_b32 v7, v9, v8, vcc", ["v8", "v9", "vcc"], ["v7"]))
    for i in range(4):
        A(v1("v_accvgpr_write_b32", "a%d" % (AONE + i), "v7")); A(v1("v_accvgpr_write_b32", "a%d" % (AZERO + i), "v9"))
    A(smov("s%d" % sC, "0x%08x" % SCALE))
    if cfg.fakepre: L += [v1("v_mov_b32", "v%d" % i, "1.0") for i in range(2, 12)]
    A(smov("s%d" % sLO, "0x%08x" % LO_BITS)); A(smov("s%d" % sRG, "0x%08x" % (HI_BITS - LO_BITS)))
    A(smov("s%d" % sBAD, "0")); A(salu("s_mov_b64 s[%d:%d], 0" % (sACC, sACC + 1), [], R("s", sACC, 2)))
    A(smov("s%d" % sCNT, "3"))
    A(salu("s_mov_b64 vcc, %d" % (-1 if RAMP_IT else 0), [], ["vcc"]))
    A(s2("s_add_u32", "s%d" % sOb, "s%d" % sOa, "4096"))
    if cfg.stamp2: L += stamp()
    A(vsite([("K", 0), ("Q", 0, 0)]))
    if cfg.stamp2: L += stamp()
    A(bar())
    qr = q_reads(AQ, 0, 0)
    seen = set()
    for kt, q, s in QKSEQ:
        if ("k", kt, s) not in seen: A(kread(4 * kt + s, 0, 0)); seen.add(("k", kt, s))
        if ("q", q, s) not in seen: A(qr[4 * q + s]); seen.add(("q", q, s))
    A(lsite())
    return L

def tail_seg():
    L = []
    for it in softmax_items(1, 0, lambda q, kt: 0, lambda q: 99, lo=(cfg.e0, cfg.e0, cfg.c0)):
        L.append(it.ins)
        if it.ins.kind == "T" and it.ins.text == exp_(S_(1, *GRP[3]) + 3).text: L.append(nop(1))
    if cfg.stmode == 1:
        L += [o_stores(1)[7], s2("s_add_u32", "s%d" % sOa, "s%d" % sOa, str(USTRIDE - 8192))]
    L.append(s2("s_add_u32", "s%d" % sOb, "s%d" % sOa, "4096"))
    L += epi_burst(0)
    gaps = [Gap(m) for m in pv_block(1, False)]
    for g, w in enumerate(o_writes(0)): gaps[g].ds.append(w)
    rd = o_reads(0, 0)
    for g in range(8): gaps[8 + g].ds += rd[2 * g:2 * g + 2]
    for G in gaps: L += G.flat()
    st = o_stores(0)
    L += [lsite()] + st[:4]
    b1 = epi_burst(1)
    k = [i for i, x in enumerate(b1) if x.kind == "K"][-1] + 1
    L += b1[:k] + [lsite()] + st[4:] + b1[k:]
    L += [s2("s_add_u32", "s%d" % sOa, "s%d" % sOa, "8192"), s2("s_add_u32", "s%d" % sOb, "s%d" % sOb, "8192")]
    w1 = o_writes(1); r1 = o_reads(1, 0); st = o_stores(1)
    L += w1[:4] + r1[:8] + w1[4:] + r1[8:]
    L += [lsite()] + st[:2] + [lsite()] + st[2:4] + [lsite()] + st[4:6] + [lsite()] + st[6:]
    L += flag_ops()
    return L

def slow_path():
    T = []
    A = T.append
    def emit(l):
        for x in l: A(x.text)
    def wait(): A("s_waitcnt vmcnt(0) lgkmcnt(0)");
    A("s_barrier")
    if cfg.force_slow: A("s_mov_b32 s%d, 15" % sBAD)
    A("s_cmp_eq_u32 s%d, 0" % sBAD); A("s_cbranch_scc1 L_end")
    A("s_lshl_b32 s45, s%d, 13" % sW)
    for i in range(4): A("v_add_u32 v%d, s45, v%d" % (KA + i, KA + i))
    for i in range(8): A("v_add_u32 v%d, s45, v%d" % (VA + i, VA + i))
    A("s_add_u32 s46, s45, %d" % LDS_V)
    A("s_lshl_b32 s%d, s%d, 14" % (sQo, sW))
    A("s_lshl_b32 s%d, s%d, 14" % (sOo, sW))
    A("v_mov_b32 v%d, v%d" % (TM + 4, DA)); A("v_mov_b32 v%d, v%d" % (TM + 5, DB))
    A("s_mov_b32 s%d, 0" % sCNT)
    A("L_slow_unit:")
    A("s_bitcmp1_b32 s%d, 3" % sBAD); A("s_cbranch_scc0 L_slow_next")
    wait()
    for h in range(2):
        A("s_add_u32 s%d, s%d, %d" % (sQa, sQo, h * 8192)); A("s_add_u32 s%d, s%d, 4096" % (sQb, sQa))
        cur = None
        for x in q_dmas(h, 0):
            if cur != x.cmt: A(setm0(x.cmt).text); A("s_nop 0"); cur = x.cmt
            A(x.text)
        wait(); emit(q_reads(AQ + 32 * h, h, 0)); wait()
    def tile_dma(sr, m0s):
        for i in range(8):
            if i % 4 == 0:
                A("s_add_u32 m0, s%d, %d" % (m0s, (i // 4) * 4096)); A("s_add_u32 s%d, s%d, %d" % (sT, sKo, (i // 4) * 4096))
            A("buffer_load_dwordx4 v%d, %s, s%d offen offset:%d lds" % (TM + 4 + i % 2, srd(sr), sT, (i % 4) * 1024))
    def qk_all():
        emit([kread(f, 0, 0) for f in range(8)]); wait()
        emit(qk_block(0) + qk_block(1)); A("s_nop 7"); A("s_nop 3")
    for i in range(4): A("v_mov_b32 v%d, 0xff800000" % (MX + i))
    A("s_mov_b32 s%d, s%d" % (sKo, sCNT)); A("s_add_u32 s%d, s%d, 131072" % (sVo, sCNT))
    A("L_slow_p1:")
    tile_dma(sK_, 45); wait(); qk_all()
    for h in range(2):
        for q in range(2):
            a = S_(h, q, 0)
            for i in range(4): A("v_max3_f32 v%d, v%d, v%d, v%d" % (MX + 2 * h + q, a + 2 * i, a + 2 * i + 1, MX + 2 * h + q))
    A("s_add_u32 s%d, s%d, 8192" % (sKo, sKo)); A("s_cmp_lt_u32 s%d, s%d" % (sKo, sVo)); A("s_cbranch_scc1 L_slow_p1")
    for op in ("v_permlane32_swap_b32", "v_permlane16_swap_b32"):
        for i in range(4): A("v_mov_b32 v%d, v%d" % (NM + i, MX + i))
        A("s_nop 1")
        for i in range(4): A("%s v%d, v%d" % (op, NM + i, MX + i))
        A("s_nop 1")
        for i in range(4): A("v_max_f32 v%d, v%d, v%d" % (MX + i, MX + i, NM + i))
    for i in range(4): A("v_mul_f32 v%d, s%d, v%d" % (NM + i, sC, MX + i))
    for i in range(128): A("v_mov_b32 v%d, 0" % (OB + i))
    for i in range(16): A("v_accvgpr_write_b32 a%d, 0" % (AL + i))
    A("s_mov_b32 s%d, s%d" % (sKo, sCNT))
    A("L_slow_p2:")
    tile_dma(sK_, 45); tile_dma(sV_, 46); wait(); qk_all()
    emit([vread(b, jj, 0, 0) for b in range(4) for jj in range(2)])
    for h in range(2):
        for q in range(2):
            a = S_(h, q, 0)
            for i in range(8): A("v_fma_f32 v%d, v%d, s%d, -v%d" % (a + i, a + i, sC, NM + 2 * h + q))
            for i in range(8): A("v_exp_f32 v%d, v%d" % (a + i, a + i))
            A("s_nop 0")
            for i in range(4): A(cvt_(P_(h, q) + i, a + 2 * i, a + 2 * i + 1).text)
    emit([vread(b, jj, 0, 0) for b in range(4, 8) for jj in range(2)])
    wait()
    emit(pv_block(0, False) + pv_block(1, False))
    A("s_add_u32 s%d, s%d, 8192" % (sKo, sKo)); A("s_cmp_lt_u32 s%d, s%d" % (sKo, sVo)); A("s_cbranch_scc1 L_slow_p2")
    A("s_nop 7"); A("s_nop 3")
    for h in range(2):
        emit(epi_burst(h, check=False)); emit(o_writes(h) + o_reads(h, 0))
        A("s_add_u32 s%d, s%d, %d" % (sOa, sOo, h * 8192)); A("s_add_u32 s%d, s%d, 4096" % (sOb, sOa))
        wait(); emit(o_stores(h)); wait()
    A("L_slow_next:")
    A("s_lshl_b32 s%d, s%d, 1" % (sBAD, sBAD)); A("s_and_b32 s%d, s%d, 15" % (sBAD, sBAD))
    for r in (sCNT, sQo, sOo): A("s_add_u32 s%d, s%d, %d" % (r, r, USTRIDE))
    A("s_cmp_lg_u32 s%d, 0" % sBAD); A("s_cbranch_scc1 L_slow_unit")
    return T

def stamp():
    if not cfg.stamp: return []
    return [raw("s_memtime s[58:59]"), raw("s_memrealtime s[60:61]"), raw("s_waitcnt lgkmcnt(0)"),
            raw("s_mov_b32 m0, s57"), raw("s_nop 0"), raw("v_writelane_b32 v62, s58, m0"), raw("v_writelane_b32 v63, s60, m0"), raw("s_add_u32 s57, s57, 1")]
def stamp_out():
    if not cfg.stamp: return []
    return [x.text for x in stamp()] + ["s_load_dwordx2 s[36:37], s[0:1], 40", "s_waitcnt lgkmcnt(0)", "s_mov_b32 s38, 0x1000000", "s_mov_b32 s39, 0x20000",
            "s_lshl_b32 s45, s2, 2", "s_add_u32 s45, s45, s%d" % sW, "s_lshl_b32 s45, s45, 9", "v_lshrrev_b32 v61, 2, v%d" % OS,
            "buffer_store_dword v62, v61, s[36:39], s45 offen", "buffer_store_dword v63, v61, s[36:39], s45 offen offset:256"]
def main():
    sgs = {"it0f": build_iter(0, True)}
    for t in range(16): sgs["it%d" % t] = build_iter(t)
    def segs():
        d = {"pro": pro, "tail": tl}
        d.update(RAMPS)
        for k, s in sgs.items(): d[k] = flat(s)
        return d
    pro = prologue(); tl = tail_seg()
    if cfg.dbgspan:
        pro[2:2] = [raw("s_memrealtime s[60:61]"), raw("s_memtime s[62:63]"), raw("s_waitcnt lgkmcnt(0)"), raw("s_mov_b32 s56, s60"), raw("s_mov_b32 s57, s62")]
        i = [k for k, x in enumerate(pro) if x.kind == "BAR"][0]
        pro[i + 1:i + 1] = [raw("s_memrealtime s[58:59]")]
    if cfg.stamp:
        pro[2:2] = [raw("s_mov_b32 s57, 0")] + stamp()
        i = [k for k, x in enumerate(pro) if x.kind == "BAR"][0]
        pro[i + 1:i + 1] = stamp()
        for t in range(0, 16, cfg.stamp): sgs["it%d" % t].head[0:0] = stamp()
        tl[0:0] = stamp()
        if cfg.stamp3:
            G = sgs["it0"].gaps
            G[0].pre += stamp(); G[16].pre += stamp(); G[34].pre += stamp(); G[48].pre[0:0] = stamp(); G[48].pre += stamp()
            sgs["it1"].head[0:0] = stamp(); sgs["it1"].gaps[34].pre += stamp(); sgs["it2"].head[0:0] = stamp(); sgs["it3"].head[0:0] = stamp()
        if cfg.stamp2:
            sgs["it0f"].gaps[16].pre += stamp(); sgs["it0f"].gaps[cfg.fbar + 1].pre += stamp(); sgs["it0f"].tail[0:0] = stamp()
    traces = []
    for role in ("A", "B"):
        x = dict(role=role, lagK=cfg.flag_ if role == "B" else 0, lagV=cfg.flag_ if role == "A" else 0)
        trace = [("pro", dict(T=0, u=0, first=1, **x)), ("it0f", dict(T=0, u=0, first=1, **x))]
        for u in range(4):
            for t in range(16):
                if (u, t) != (0, 0): trace.append(("it%d" % t, dict(T=16 * u + t, u=u, first=(u == 0 and t < 8), **x)))
        trace.append(("tail", dict(T=64, u=3, **x)))
        traces.append(trace)
    sgs["it0f"].tail.append(raw("s_branch L_it1", "BR"))
    sgs["it15"].tail += [s2("s_sub_u32", "s%d" % sCNT, "s%d" % sCNT, "1"), raw("s_cbranch_scc0 L_it0", "BR")]
    insert_waits(segs(), traces)
    for k, s in sgs.items():
        br = [x for x in s.tail if x.kind == "BR" or "s_sub_u32 s%d" % sCNT in x.text]
        s.tail = [x for x in s.tail if x not in br]
        place_scalar(s)
        s.tail += br
    fs = {k: finalize(v) for k, v in segs().items()}
    errs = sum((verify(fs, tr, {"K": 8, "V": 16, "Q": 8, "O": 16}) for tr in traces), [])
    for e in errs[:40]: sys.stderr.write("ERR " + e + "\n")
    tot = 0
    for k in ["pro", "it0f"] + ["it%d" % t for t in range(16)] + ["tail"]:
        est = issue_estimate(fs[k]); sys.stderr.write("%s:%d " % (k, est))
        if k.startswith("it") and k != "it0f": tot += est
    if cfg.stamp3:
        for k in ("it0", "it1", "it2"):
            parts = [[]]
            for x in fs[k]:
                if "s_memtime" in x.text: parts.append([])
                parts[-1].append(x)
            sys.stderr.write("\n%s parts %s" % (k, [issue_estimate(p) for p in parts]))
    sys.stderr.write("\nunit estimate %d cycles, errors %d\n" % (tot, len(errs)))
    out = []
    hdr = open(os.path.join(os.path.dirname(os.path.abspath(__file__)), "..", "cdna_kernels", NAME + ".s.ref")).read().split("; Override")[0]
    out.append(hdr.rstrip())
    out.append("; @launch grid=(256,1,1) block=(256,1,1) lds=163840")
    out.append('.amdgcn_target "amdgcn-amd-amdhsa--gfx950"\n.text\n.globl %s_kernel\n.p2align 8\n.type %s_kernel,@function\n%s_kernel:' % (NAME, NAME, NAME))
    par = {}
    def dump(k):
        out.append("; ---- " + k)
        for x in fs[k]:
            if cfg.nocomp and k != "pro" and x.kind in ("M", "V", "T", "K", "D", "W"):
                par[x.kind] = par.get(x.kind, 0) + 1
                if cfg.nocomp == 1 or par[x.kind] % cfg.nocomp == 0: continue
            if cfg.nomem and k != "pro" and x.kind == "X" and (cfg.nomem == 1 or "store" in x.text): continue
            if cfg.nostore and x.kind == "X" and "store" in x.text: continue
            out.append("  " + x.text)
            if cfg.nocomp and "m0" in x.wr: out.append("  s_nop 0")
    dump("pro"); dump("it0f")
    for k in RAMPS: out.append("L_%s:" % k); dump(k)
    out.append(".p2align 6\nL_it0:"); dump("it0"); out.append("L_it1:")
    for t in range(1, 16): dump("it%d" % t)
    dump("tail")
    if cfg.dbgspan:
        out += ["  " + x for x in ["s_waitcnt vmcnt(0)", "s_memrealtime s[60:61]", "s_memtime s[62:63]", "s_load_dwordx2 s[36:37], s[0:1], 32", "s_waitcnt lgkmcnt(0)", "s_mov_b32 s38, 256", "s_mov_b32 s39, 0x20000",
            "s_not_b32 s45, s56", "v_mov_b32 v2, s45", "v_mov_b32 v3, s58", "v_mov_b32 v4, s60", "v_mov_b32 v5, s56", "s_not_b32 s45, s60", "v_mov_b32 v6, s45", "s_sub_u32 s45, s62, s57", "v_mov_b32 v7, s45", "v_mov_b32 v1, 0",
            "s_mov_b64 exec, 1",
            "buffer_atomic_umax v2, v1, s[36:39], 0 offen", "buffer_atomic_umax v3, v1, s[36:39], 0 offen offset:4", "buffer_atomic_umax v4, v1, s[36:39], 0 offen offset:8",
            "buffer_atomic_umax v5, v1, s[36:39], 0 offen offset:12", "buffer_atomic_umax v6, v1, s[36:39], 0 offen offset:16", "buffer_atomic_umax v7, v1, s[36:39], 0 offen offset:20", "s_mov_b64 exec, -1"]]
    if cfg.stamp:
        out.append("  s_waitcnt vmcnt(0)")
        out += ["  " + x for x in stamp_out()]
    if cfg.nocomp or cfg.nomem or cfg.fakepre: out.append("  s_mov_b32 s%d, 0" % sBAD)
    out += ["  " + x if not x.endswith(":") else x for x in slow_path()]
    out.append("L_end:\n  s_endpgm")
    out.append('.section .rodata,"a"\n.p2align 6\n.amdhsa_kernel %s_kernel' % NAME)
    out.append("  .amdhsa_next_free_vgpr 512\n  .amdhsa_next_free_sgpr 64\n  .amdhsa_accum_offset 256\n  .amdhsa_group_segment_fixed_size 0\n  .amdhsa_kernarg_size 48\n  .amdhsa_user_sgpr_count 2\n  .amdhsa_user_sgpr_kernarg_segment_ptr 1\n  .amdhsa_system_sgpr_workgroup_id_x 1\n.end_amdhsa_kernel")
    open(sys.argv[1], "w").write("\n".join(out) + "\n")
    if errs: sys.exit(1)
main()
```

```python
import sys, os, struct, math
from core import *

class Cfg:
    barper = 2
    finchk = 1
    lat = 7
    k_aux = ""
    v_aux = ""
    kv_aux = "nt"
    q_aux = "nt"
    o_aux = "nt"
    e0 = 10; c0 = 4; f0 = 6
    force_slow = 0
    hmap = 1
    rot = 0
    xmap = 0
    stamp = 0
    stamp3 = 0
    stamp2 = 0
    nocomp = 0
    nomem = 0
    nostore = 0
    dbgspan = 0
    lag = 1.5
    lead = 6
    pre = 0
    wbl2 = 0
    kvmap = 2
    fakepre = 0
    x0 = 17
    x1 = 9
    xs = 8
    xts = 8
    xt = 52
    flag_ = 0
    stmode = 0
    qmaj = 0
    bargap = 14
    sm0 = 14
    qkord = 2
    kt0 = 54.0
    kts = 2.48
    vt0 = 18.0
    vts = 2.48
    stgap = 48
    l0 = 3
    cpf = 1
    qa0 = 2
    early = 1
    fbar = 22
    rdy = 5
cfg = Cfg()
for a in sys.argv[2:]:
    k, v = a.split("=")
    setattr(cfg, k, type(getattr(cfg, k))(v))

NAME = "standalone__mha_softmax__near_ridge"
KA = 16; VA = 20; DA = 28; DB = 29; QA = 30; OW = 34; OS = 40; OR_ = 8; QR = 48; PT = 2
ET = 42; ER = 44; EU = 36
MX = 50; NM = 54; TM = 12; TS = 58
PB = 80; SB = 96; OB = 128
def S_(h, q, kt): return SB + 16 * h + 8 * q + 4 * kt
def P_(h, q): return PB + 8 * h + 4 * q
def O_(qt, b): return OB + 32 * qt + 4 * b
AQ = 0; AQN = 64; AK = 96; AV = 128; AO = 160; AL = 224; AONE = 240; AZERO = 244; ACHK = 248
sQ_, sK_, sV_, sO_ = 4, 8, 12, 16
sW = 20; sKo = 21; sVo = 22; sMK = 23; sMV = 24; sQo = 25; sOo = 26; sC = 27; sBAD = 28; sUB = 29; sACC = 30; sCMP = 32
sLO = 34; sRG = 35; sMS = 44; sCNT = 47; sONR = 48; sQa = 50; sQb = 51; sOa = 52; sOb = 53; sT = 54; sKt = 55; sVt = 56; sKb = 62; sVb = 63; sMKn = 29; sMVn = 49; sC2 = 60
LDS_V = 65536; LDS_S = 131072
SCALE = struct.unpack("<I", struct.pack("<f", math.log2(math.e) / math.sqrt(128.0)))[0]
LO_BITS = (127 - (40 if cfg.finchk else 24)) << 23
HI_BITS = (127 + (126 if cfg.finchk else 24)) << 23

def srd(b): return "s[%d:%d]" % (b, b + 3)
def srdr(b): return R("s", b, 4)

def v2(op, d, a, b, kind="V"):
    rd = [x for x in (a, b) if isinstance(x, str) and x[0] in "vsa" and x[1:].isdigit()]
    return valu("%s %s, %s, %s" % (op, d, a, b), rd, [d], kind)
def v1(op, d, a, kind="V"):
    rd = [a] if isinstance(a, str) and a[0] in "vsa" and a[1:].isdigit() else []
    return valu("%s %s, %s" % (op, d, a), rd, [d], kind)
def v3(op, d, a, b, c):
    rd = [x for x in (a, b, c) if isinstance(x, str) and x[0] in "vsa" and x[1:].isdigit()]
    return valu("%s %s, %s, %s, %s" % (op, d, a, b, c), rd, [d])
def s2(op, d, a, b):
    rd = [x for x in (a, b) if isinstance(x, str) and (x[0] == "s" or x == "m0")]
    return salu("%s %s, %s, %s" % (op, d, a, b), rd, [d, "scc"])
def smov(d, a):
    return salu("s_mov_b32 %s, %s" % (d, a), [a] if isinstance(a, str) and a[0] == "s" else [], [d])
def mul_(r): return v2("v_mul_f32", "v%d" % r, "s%d" % sC, "v%d" % r)
def exp_(r): return v1("v_exp_f32", "v%d" % r, "v%d" % r, "T")
def cvt_(d, a, b): return v2("v_cvt_pk_bf16_f32", "v%d" % d, "v%d" % a, "v%d" % b)
def dsr128(dp, d, addr, off, tag):
    assert 0 <= off < 65536
    return Ins("ds_read_b128 %s, v%d offset:%d" % (rng(dp, d, 4), addr, off), "D", ["v%d" % addr], R(dp, d, 4), tag=tag)
def dstr(d, addr, off, tag):
    assert 0 <= off < 65536
    return Ins("ds_read_b64_tr_b16 %s, v%d offset:%d" % (rng("a", d, 2), addr, off), "D", ["v%d" % addr], R("a", d, 2), tag=tag)
def dsw64(addr, src, off):
    return Ins("ds_write_b64 v%d, %s offset:%d" % (addr, rng("v", src, 2), off), "W", ["v%d" % addr] + R("v", src, 2), [])
def dma(voff, sr, soff, off, tag, m0, aux=""):
    if sr == sK_ and cfg.k_aux: aux = cfg.k_aux
    if sr == sV_ and cfg.v_aux: aux = cfg.v_aux
    i = Ins("buffer_load_dwordx4 v%d, %s, s%d offen offset:%d %slds" % (voff, srd(sr), soff, off, aux + " " if aux else ""), "X",
            ["v%d" % voff, "s%d" % soff, "m0"] + srdr(sr), [], tag=tag)
    i.cmt = m0
    return i
def store(src, soff, off, tag=None):
    return Ins("buffer_store_dwordx4 %s, v%d, %s, s%d offen offset:%d%s" % (rng("a", src, 4), OS, srd(sO_), soff, off, " " + cfg.o_aux if cfg.o_aux else ""), "X",
               R("a", src, 4) + ["v%d" % OS, "s%d" % soff] + srdr(sO_), [], tag=tag)
def setm0(m0):
    return s2("s_add_u32", "m0", "s%d" % m0[0], str(m0[1]))

if cfg.qkord == 0:   QKSEQ = [(f // 4, q, f % 4) for f in range(8) for q in range(2)]
elif cfg.qkord == 1: QKSEQ = [(kt, q, s if q == 0 else 3 - s) for kt in range(2) for q in range(2) for s in range(4)]
else:                QKSEQ = [(c // 2, (0, 1, 1, 0)[c], s if c % 2 == 0 else 3 - s) for c in range(4) for s in range(4)]
def kfirst(f): return min(i for i, (kt, q, s) in enumerate(QKSEQ) if 4 * kt + s == f)
def klast(f): return max(i for i, (kt, q, s) in enumerate(QKSEQ) if 4 * kt + s == f)
def sdone(q, kt): return max(i for i, x in enumerate(QKSEQ) if x[:2] == (kt, q))
def qfirst(q, s): return min(i for i, x in enumerate(QKSEQ) if x[1:] == (q, s))
GRP = sorted([(q, kt) for q in range(2) for kt in range(2)], key=lambda g: sdone(*g))
KORD = sorted(range(8), key=kfirst)
def qk_block(h):
    L = []; seen = set()
    for kt, q, s in QKSEQ:
        L.append(mfma("v", S_(h, q, kt), "a", AK + 4 * (4 * kt + s), "a", AQ + 16 * (2 * h + q) + 4 * s, czero=((kt, q) not in seen)))
        seen.add((kt, q))
    return L
def pvpos(b, q):
    if cfg.qmaj: return 9 * q + 1 + b
    return 2 * b + q + (1 if b >= 3 else 0) + (1 if b >= 6 else 0)
def pfirst(q): return 9 * q if cfg.qmaj else q
def pv_block(h, first):
    L = []
    if cfg.qmaj:
        for q in range(2):
            L.append(mfma("a", AL + 4 * (2 * h + q), "a", AONE, "v", P_(h, q), czero=first))
            for b in range(8): L.append(mfma("v", O_(2 * h + q, b), "a", AV + 4 * b, "v", P_(h, q), czero=first))
        return L
    for b in range(8):
        for q in range(2):
            L.append(mfma("v", O_(2 * h + q, b), "a", AV + 4 * b, "v", P_(h, q), czero=first))
        if b in (2, 5):
            q = b // 4
            L.append(mfma("a", AL + 4 * (2 * h + q), "a", AONE, "v", P_(h, q), czero=first))
    return L

class Item:
    def __init__(self, ins, ready, dead, target, deps=()):
        self.ins = ins; self.ready = ready; self.dead = dead; self.target = target; self.deps = list(deps); self.gap = None
        k = ins.kind
        self.cost = 8 if k in ("T", "X", "W") else 4
class Gap:
    def __init__(self, m):
        self.pre = []; self.m = m; self.sh = [lsite()]; self.ds = []; self.va = []
    def flat(self): return self.pre + [self.m] + self.sh + self.ds + self.va

def schedule(gaps, items, name):
    n = len(gaps)
    todo = sorted(items, key=lambda i: (i.target, i.dead))
    for g in range(n):
        G = gaps[g]
        def ok(it):
            if it.ready > g: return False
            for d, dist in it.deps:
                if d.gap is None or d.gap + dist > g: return False
            return True
        def place(it):
            it.gap = g; todo.remove(it)
            (G.ds if it.ins.kind in ("D", "W", "X") else G.va).append(it.ins)
        def fits(it, used):
            k = it.ins.kind
            if any(x.kind == "X" for x in G.ds): return False
            if k == "X": return used == 0
            return True
        used = 0
        for it in [x for x in todo if x.dead <= g]:
            if ok(it) and fits(it, used): place(it); used += it.cost
        while used < 8:
            c = [it for it in todo if ok(it) and fits(it, used) and it.cost <= 8 - used]
            if not c: break
            it = c[0]
            if used == 0 and it.cost == 4:
                four = [x for x in c[1:] if x.cost == 4 or False]
                dep_next = [x for x in todo if x.cost == 4 and x is not it and x.ready <= g and all((d.gap is not None and d.gap + dist <= g) or (d is it and dist == 0) for d, dist in x.deps)]
                eight = [x for x in c if x.cost == 8]
                if not dep_next and eight and it.dead > g: it = eight[0]
            place(it); used += it.cost
        c = [it for it in todo if ok(it) and fits(it, used) and it.cost == 4 and it.target < g - cfg.lag]
        if c and used > 0:
            place(c[0]); used += 4
        while True:
            over = False
            dem = 0
            for it in sorted(todo, key=lambda i: min(i.dead, n - 1)):
                dem += 12 if it.ins.kind == "X" else it.cost
                d = min(it.dead, n - 1)
                if dem > 12 * (d - g): over = True; break
            if not over: break
            c = sorted([it for it in todo if ok(it) and fits(it, used)], key=lambda i: (min(i.dead, n - 1), i.target))
            if not c: break
            place(c[0]); used += c[0].cost
    if todo:
        raise Exception("%s: unscheduled items: %s" % (name, [(i.ins.text, i.ready, i.dead) for i in todo]))
    for it in items:
        if it.gap > it.dead: raise Exception("%s: deadline miss %s gap %d > %d" % (name, it.ins.text, it.gap, it.dead))

def softmax_items(h, base, rdy, dead, lo=(0, 0, 0), hi=(16, 16, 8), carry=None):
    its = []; M = {}; E = {}
    def reg(e):
        q, kt = GRP[e // 4]
        return q, kt, S_(h, q, kt) + e % 4
    for e in range(lo[0], hi[0] if not (cfg.fakepre or cfg.pre) else lo[0]):
        q, kt, r = reg(e)
        M[e] = Item(mul_(r), rdy(q, kt), dead(q) - 2, base + 2 * e); its.append(M[e])
    for e in range(lo[1], hi[1]):
        q, kt, r = reg(e)
        E[e] = Item(exp_(r), rdy(q, kt), dead(q) - 1, base + 2 * e + 1, [(M[e], 0)] if e in M else []); its.append(E[e])
    for j in range(lo[2], hi[2]):
        q, kt, r = reg(2 * j)
        deps = [(E[e], 1) for e in (2 * j, 2 * j + 1) if e in E]
        its.append(Item(cvt_(P_(h, q) + 2 * kt + j % 2, r, r + 1), rdy(q, kt), dead(q), base + 4 * j + 4, deps))
    return its

def kread(f, slot, dT):
    return dsr128("a", AK + 4 * f, KA + f % 4, slot * 8192 + (f // 4) * 4096, ("K", dT))
def vread(b, jj, slot, dT):
    return dstr(AV + 4 * b + 2 * jj, VA + b, slot * 8192 + jj * 4096, ("V", dT))
_uid = [0]
def kd(lead=None):
    _uid[0] += 1
    L = [dma(DA, sK_, sKo, 0, ("K", "a"), (sMKn, 0, _uid[0]), cfg.kv_aux), dma(DB, sK_, sKo, 1024, ("K", "b"), (sMKn, 0, _uid[0]), cfg.kv_aux)]
    for x in L: x.needs = lead
    return L
def vd(lead=None):
    _uid[0] += 1
    L = [dma(DA, sV_, sVo, 0, ("V", "a"), (sMVn, LDS_V, _uid[0]), cfg.kv_aux), dma(DB, sV_, sVo, 1024, ("V", "b"), (sMVn, LDS_V, _uid[0]), cfg.kv_aux)]
    for x in L: x.needs = lead
    return L
def kv_dmas(t, lead):
    return kd(lead + 1) + vd(lead)
def q_dmas(h, du, msgpr=sMS, mconst=0):
    return [dma(DA if i % 2 == 0 else DB, sQ_, sQa if i < 4 else sQb, (i % 4) * 1024, ("Q", h, du), (msgpr, mconst + (i // 4) * 4096), cfg.q_aux) for i in range(8)]
def q_reads(dst, h, du, addr=QA, p="a"):
    return [dsr128(p, dst + 16 * q + 4 * s, addr + s, q * 4096, ("Q", h, du)) for q in range(2) for s in range(4)]

def pre_ops(i, k):
    r = QR + i; a = PT + 2 * k
    return [v2("v_lshlrev_b32", "v%d" % a, "16", "v%d" % r), v2("v_and_b32", "v%d" % (a + 1), "0xffff0000", "v%d" % r), mul_(a), mul_(a + 1), cvt_(r, a, a + 1)]
def pre_burst(dst, writes=True):
    L = []
    def stage(i, n):
        r = QR + i; a = PT + 2 * (i % 3)
        if n == 0: return [v2("v_lshlrev_b32", "v%d" % a, "16", "v%d" % r), v2("v_and_b32", "v%d" % (a + 1), "0xffff0000", "v%d" % r)]
        if n == 1: return [valu("v_pk_mul_f32 v[%d:%d], v[%d:%d], s[%d:%d]" % (a, a + 1, a, a + 1, sC2, sC2 + 1), R("v", a, 2), R("v", a, 2), "K")]
        if n == 2: return [cvt_(r, a, a + 1)]
        return [v1("v_accvgpr_write_b32", "a%d" % (dst + i), "v%d" % r)] if writes else []
    for i in range(32 + 3):
        for n in (3, 2, 1, 0):
            if 0 <= i - n < 32: L += stage(i - n, n)
    return L
def epi_burst(h, check=True, defer=False):
    L = []
    for q in range(2): L.append(v1("v_accvgpr_read_b32", "v%d" % (ET + q), "a%d" % (AL + 4 * (2 * h + q))))
    for q in range(2): L.append(v1("v_rcp_f32", "v%d" % (ER + 2 * q), "v%d" % (ET + q), "T"))
    if check:
        for q in range(2): L.append(v2("v_subrev_u32", "v%d" % (EU + q), "s%d" % sLO, "v%d" % (ET + q)))
        L.append(valu("v_cmp_le_u32 vcc, s%d, v%d" % (sRG, EU), ["s%d" % sRG, "v%d" % EU], ["vcc"]))
        L.append(valu("v_cmp_le_u32 s[%d:%d], s%d, v%d" % (sCMP, sCMP + 1, sRG, EU + 1), ["s%d" % sRG, "v%d" % (EU + 1)], R("s", sCMP, 2)))
    else:
        L.append(nop(1))
    for q in range(2):
        for b in range(8):
            for i in range(2):
                a = O_(2 * h + q, b) + 2 * i
                L.append(valu("v_pk_mul_f32 v[%d:%d], v[%d:%d], v[%d:%d] op_sel_hi:[1,0]" % (a, a + 1, a, a + 1, ER + 2 * q, ER + 2 * q + 1),
                              R("v", a, 2) + ["v%d" % (ER + 2 * q)], R("v", a, 2), "K"))
    sor = []
    if check:
        sor = [salu("s_or_b64 s[%d:%d], s[%d:%d], vcc" % (sACC, sACC + 1, sACC, sACC + 1), ["vcc"] + R("s", sACC, 2), R("s", sACC, 2)),
               salu("s_or_b64 s[%d:%d], s[%d:%d], s[%d:%d]" % (sACC, sACC + 1, sACC, sACC + 1, sCMP, sCMP + 1), R("s", sCMP, 2) + R("s", sACC, 2), R("s", sACC, 2))]
        if not cfg.finchk: L += sor
    for q in range(2):
        for bp in range(4):
            a = O_(2 * h + q, 2 * bp)
            for i in range(4): L.append(cvt_(a + i, a + 2 * i, a + 2 * i + 1))
            if check and cfg.finchk and (q, bp) != (0, 0):
                pa = a - 8
                L.append(mfma("a", ACHK, "a", AZERO, "v", pa, czero=(h == 0 and (q, bp) == (0, 1))))
                if sor: L.append(sor.pop(0))
    last = [mfma("a", ACHK, "a", AZERO, "v", O_(2 * h + 1, 6))] if check and cfg.finchk else []
    if defer: LASTCHK[h] = last
    elif last: L += [nop(2)] + last
    return L
def flag_ops():
    L = []
    if cfg.finchk:
        L.append(v1("v_accvgpr_read_b32", "v%d" % ET, "a%d" % ACHK))
        L.append(valu("v_cmp_u_f32 vcc, v%d, v%d" % (ET, ET), ["v%d" % ET], ["vcc"]))
        L.append(nop(2))
        L.append(salu("s_or_b64 s[%d:%d], s[%d:%d], vcc" % (sACC, sACC + 1, sACC, sACC + 1), ["vcc"] + R("s", sACC, 2), R("s", sACC, 2)))
    L.append(salu("s_cmp_lg_u64 s[%d:%d], 0" % (sACC, sACC + 1), R("s", sACC, 2), ["scc"]))
    L.append(salu("s_addc_u32 s%d, s%d, s%d" % (sBAD, sBAD, sBAD), ["scc", "s%d" % sBAD], ["s%d" % sBAD]))
    L.append(salu("s_mov_b64 s[%d:%d], 0" % (sACC, sACC + 1), [], R("s", sACC, 2)))
    L.append(salu("s_mov_b64 vcc, 0", [], ["vcc"]))
    return L
def o_writes(h):
    L = []
    for q in range(2):
        for bp in range(4):
            a = O_(2 * h + q, 2 * bp); addr = OW + bp % 2
            L.append(Ins("ds_write_b128 v%d, %s offset:%d" % (addr, rng("v", a, 4), (bp // 2) * 128 + q * 4096), "W", ["v%d" % addr] + R("v", a, 4), []))
    return L
def o_reads(h, du):
    L = []
    for j in range(8):
        for i in range(2):
            d = AO + 32 * h + 4 * j + 2 * i; addr = OR_ + 2 * (j % 2) + i
            L.append(Ins("ds_read_b64 %s, v%d offset:%d" % (rng("a", d, 2), addr, j * 1024), "D", ["v%d" % addr], R("a", d, 2), tag=("O", h, du)))
    return L
def o_stores(h):
    return [store(AO + 32 * h + 4 * j, sOa if j < 4 else sOb, (j % 4) * 1024) for j in range(8)]
USTRIDE = 131072 if cfg.hmap == 0 else 128 * 131072
KSTEP = (8192, 2048, 4096)[cfg.kvmap]
def adv(which, cross):
    o, t, b = (sKo, sKt, sKb) if which == "K" else (sVo, sVt, sVb)
    m = sMKn if which == "K" else sMVn
    if cfg.flag_:
        assert not cfg.rot
        L = [s2("s_add_u32", "s%d" % o, "s%d" % o, "8192")]
        if USTRIDE != 131072:
            L += [s2("s_bfe_u32", "s%d" % t, "s%d" % o, "0x10011"), s2("s_mul_i32", "s%d" % t, "s%d" % t, str(USTRIDE - 131072)), s2("s_add_u32", "s%d" % o, "s%d" % o, "s%d" % t)]
        return L + [s2("s_add_u32", "s%d" % m, "s%d" % m, "8192"), s2("s_and_b32", "s%d" % m, "s%d" % m, "0xffff")]
    M = [s2("s_add_u32", "s%d" % m, "s%d" % m, "8192"), s2("s_and_b32", "s%d" % m, "s%d" % m, "0xffff")]
    if not cfg.rot:
        return M + [s2("s_add_u32", "s%d" % o, "s%d" % o, str(KSTEP + (USTRIDE - 16 * KSTEP if cross else 0)))]
    L = M + [s2("s_add_u32", "s%d" % t, "s%d" % t, "8192"), s2("s_and_b32", "s%d" % t, "s%d" % t, "0x1ffff")]
    if cross: L.append(s2("s_add_u32", "s%d" % b, "s%d" % b, str(USTRIDE)))
    L.append(s2("s_add_u32", "s%d" % o, "s%d" % b, "s%d" % t))
    return L

LEAD = cfg.lead
LAT = cfg.lat
B0, B1, B2, B3, NG = 0, 16, 34, 50, 68
NW0 = 5
LASTCHK = {}
RAMP_IT = [2, 4, 6][:cfg.lead - cfg.l0]
RAMPS = {}
QA_IT = [cfg.qa0 + i for i in range(4)]; QB_IT = [8, 9, 10, 11]; ST_IT = [1, 6, 7, 12, 13, 14, 15]
QRD = cfg.qa0 + 5; QB_IT = [QRD + 1 + i for i in range(4)] if QRD <= 7 else [QRD + 1, QRD + 2]
ST_IT = ([1] + [t for t in range(2, 16) if t not in QA_IT and t not in QB_IT] + [8])
ST_IT = sorted(ST_IT[:8])
ST_MAP = {t: [2 * i, 2 * i + 1] for i, t in enumerate(ST_IT)} if cfg.stmode == 0 else {(k + 1) % 16: [k] for k in range(16)}
if cfg.stmode == 2: ST_MAP = {6: [0, 1, 2, 3], 7: [4, 5, 6, 7], 12: [8, 9, 10, 11], 13: [12, 13, 14, 15]}
if cfg.stmode == 3: ST_MAP = {12: [0, 1, 2, 3], 13: [4, 5, 6, 7], 14: [8, 9, 10, 11], 15: [12, 13, 14, 15]}

class Seg:
    def __init__(self): self.gaps = []; self.sitems = []; self.head = []; self.tail = []; self.post = []

def build_iter(t, first=False):
    sg = Seg()
    if first:
        b0, b1, b2, b3, ng = 0, None, 16, 32, 50
        mf = qk_block(0) + qk_block(1) + pv_block(0, True)
    else:
        b0, b1, b2, b3, ng = B0, B1, B2, B3, NG
        mf = qk_block(0) + pv_block(1, t == 1) + qk_block(1) + pv_block(0, t == 0)
    gaps = [Gap(m) for m in mf]
    items = []
    INF = 10 ** 6
    slot = t % 8; nslot = (t + 1) % 8
    isbar = (t % cfg.barper == 0)
    bar_gap = cfg.bargap
    if not first:
        items += softmax_items(1, cfg.sm0 + 34 - NG, lambda q, kt: 0, lambda q: b1 + pfirst(q) - 2, lo=(cfg.e0, cfg.e0, cfg.c0))
        for i in range(cfg.f0, 8):
            f = KORD[i]
            items.append(Item(kread(f, slot, 0), 0, kfirst(f) - LAT, cfg.kt0 + cfg.kts * i - NG))
    items += softmax_items(0, (cfg.sm0 if not first else 12), lambda q, kt: b0 + sdone(q, kt) + cfg.rdy, lambda q: b3 + pfirst(q) - 2)
    items += softmax_items(1, b3 - B3 + cfg.sm0 + 34, lambda q, kt: b2 + sdone(q, kt) + cfg.rdy, lambda q: INF, hi=(cfg.e0, cfg.e0, cfg.c0))
    for b in range(8):
        for jj in range(2):
            rdy = (b1 + pvpos(b, 1)) if not first else cfg.fbar + 1
            items.append(Item(vread(b, jj, slot, 0), max(rdy, bar_gap + 1), b3 + pvpos(b, 0) - LAT, (cfg.vt0 + cfg.vts * (2 * b + jj)) if not first else cfg.fbar + 1 + b + jj * 0.5))
    for i in range(cfg.f0):
        f = KORD[i]
        items.append(Item(kread(f, nslot, 1), max(b2 + klast(f), cfg.fbar + 1 if first else 0), min(ng - 1, ng + kfirst(f) - LAT), b3 - B3 + cfg.kt0 + cfg.kts * i))
    def chain(lst, targets, ready, dead=INF, dist=1, after=None):
        p = after; res = []
        for k, (ins, tgt) in enumerate(zip(lst, targets)):
            dd = dead[k] if isinstance(dead, list) else dead
            it = Item(ins, ready, dd, tgt, [(p, dist)] if p else []); items.append(it); p = it; res.append(it)
        return res
    if first:
        lst = []
        for n in range(cfg.l0 + 1): lst += [("V", vd()), ("K", kd())]
        if cfg.early: lst = lst[1:]
        p = None; tg = 1
        for k, (w, pr) in enumerate(lst):
            rdy = 1 if k < 8 - cfg.early else cfg.fbar + 2
            its = chain(pr, [tg, tg + 1], rdy, after=p, dist=1); p = its[1]; tg += 2 if k < 4 else 3
            sg.post.append((its[1], adv(w, False)))
        gaps[7].sh.append(vsite([("Q", 1, 0)]))
        if cfg.pre:
            for i, ins in enumerate(q_reads(QR, 1, 0, addr=TM, p="v")): items.append(Item(ins, 8, 11, 8 + 0.5 * i))
            gaps[16].pre += [lsite()] + pre_burst(AQ + 32) + [nop(1)]
        else:
          for i, ins in enumerate(q_reads(AQ + 32, 1, 0, addr=TM)):
            items.append(Item(ins, 8, 16 - LAT + qfirst(i // 4, i % 4) + 1, 8 + 0.5 * qfirst(i // 4, i % 4)))
        al = lsite(); al.needs = "all"
        gaps[cfg.fbar].sh += [al, vsite([("V", 0), ("K", 1)]), bar()]
        if cfg.barper == 2: gaps[ng - 1].va += [vsite([("V", 1), ("K", 2)]), bar()]
    else:
        dm = kv_dmas(t, LEAD)
        dmt = [cfg.x0 + cfg.xs * i for i in range(4)] if isbar else [cfg.x1 + cfg.xs * i for i in range(4)]
        kvits = chain(dm, dmt, (bar_gap + 2) if isbar else 1)
        for a in adv("K", (t + LEAD + 2) % 16 == 0): sg.sitems.append((a, ("after", kvits[1]), None))
        for a in adv("V", (t + LEAD + 1) % 16 == 0): sg.sitems.append((a, ("after", kvits[3]), None))
        if isbar:
            needs = [("V", 0), ("K", 1)] + ([("V", 1), ("K", 2)] if cfg.barper == 2 else [])
            if t in RAMP_IT:
                r = Ins("s_cbranch_vccnz L_ramp%dA\nL_back%d:" % (t, t), "RAMP", ["vcc"]); r.cmt = "ramp%d" % t
                gaps[bar_gap - 2].sh.append(r)
                k = RAMP_IT.index(t)
                for role in ("A", "B"):
                    L = [vsite(needs)]
                    for w, pr in (("V", vd()), ("K", kd())):
                        follower = (w == "V") == (role == "A")
                        if follower and k >= len(RAMP_IT) - cfg.flag_: continue
                        L += [setm0(pr[0].cmt), nop(1)] + pr + adv(w, False)
                    if t == RAMP_IT[-1]: L.append(salu("s_mov_b64 vcc, 0", [], ["vcc"]))
                    L.append(raw("s_branch L_back%d" % t, "BR"))
                    if role == "A": L[0:0] = [raw("s_bitcmp1_b32 s2, 3"), raw("s_cbranch_scc1 L_ramp%dB" % t)]
                    RAMPS["ramp%d%s" % (t, role)] = L
            gaps[bar_gap - 1].sh.append(vsite(needs))
            gaps[bar_gap].sh.append(bar())
    XT = [cfg.xt, cfg.xt + cfg.xts]
    if not first and t == 0:
        gaps[0].pre += epi_burst(0, defer=True)
        gaps[1].pre += LASTCHK[0]
        W = chain(o_writes(0), [1.5 + 3.5 * i for i in range(8)], 0, 38)
        chain(o_reads(0, -1), [29 + 1.1 * j for j in range(16)], 0, 47, dist=0, after=W[7])
        gaps[48].pre += epi_burst(1, defer=True)
        gaps[49].pre += LASTCHK[1]
        chain(o_writes(1)[:NW0], [49.5 + 4 * i for i in range(NW0)], 48)
        for i in range(16, 32) if not cfg.pre else []:
            items.append(Item(v1("v_accvgpr_mov_b32", "a%d" % (AQ + 32 + i), "a%d" % (AQN + i)), 0, b2 - 2, 2 * (i - 16)))
        for i in range(32) if cfg.pre else []:
            items.append(Item(v1("v_accvgpr_write_b32", "a%d" % (AQ + 32 + i), "v%d" % (QR + i)), 0, b2 - 2, i))
        fo = flag_ops()
        if cfg.finchk:
            i1 = Item(fo[0], 56, INF, 56); i2 = Item(fo[1], 56, 62, 57, [(i1, 0)]); items += [i1, i2]
            sg.sitems.append((fo[3], ("after2", i2), None)); sg.sitems.append(([fo[4], fo[5]], ("after2", i2), None))
            sg.sitems.append((fo[6], ("after2", i2), None)); sg.sitems.append((fo[7], ("after2", i2), None))
        else:
            gaps[60].pre += fo
    if t == 1:
        ws = o_writes(1)[NW0:]
        W = chain(ws, [0.5 + 4 * i for i in range(len(ws))], 0, [b1 + pvpos(2 * ((NW0 + i) % 4), (NW0 + i) // 4) - 1 for i in range(len(ws))])
        chain(o_reads(1, -1), [16 + 2 * j for j in range(16)], 0, INF, dist=0, after=W[-1])
        al = lsite(); al.needs = "all"; gaps[ng - 1].sh.insert(1, al)
    if not first and ST_MAP.get(t):
        ks = ST_MAP[t]
        tg = {1: [cfg.stgap], 2: XT, 4: [36, 42, 48, 54]}[len(ks)] if t not in (0, 1) else ([50, 54] if t == 1 else [20])
        st = chain([o_stores(k // 8)[k % 8] for k in ks], tg, 18, 65 if t != 0 else 30)
        for k, it in zip(ks, st):
            if k % 8 == 0: sg.head += [s2("s_add_u32", "s%d" % sOb, "s%d" % sOa, "4096")]
            if k == 7: sg.sitems.append((s2("s_add_u32", "s%d" % sOa, "s%d" % sOa, "8192"), ("after", it), None))
            if k == 15:
                sg.sitems.append((s2("s_add_u32", "s%d" % sOa, "s%d" % sOa, str(USTRIDE - 8192)), ("after", it), None))
            if k == (15 if cfg.stmode == 0 else 15):
                sg.sitems.append((smov("s%d" % (sO_ + 2), "s%d" % sONR), ("after", it), None))
    for h, its in ((1 - cfg.pre, QA_IT), (cfg.pre, QB_IT)):
        if t in its:
            k = its.index(t)
            if k == 0:
                sg.head += [s2("s_add_u32", "s%d" % sQa, "s%d" % sQo, str(8192 * h)), s2("s_add_u32", "s%d" % sQb, "s%d" % sQo, str(8192 * h + 4096))]
            npi = 8 // len(its)
            chain(q_dmas(h, 1)[npi * k:npi * k + npi], XT if npi == 2 else [34, 40, 46, 52], cfg.xt - 2, 64)
            if its is QB_IT and k == len(its) - 1: sg.tail += [s2("s_add_u32", "s%d" % sQo, "s%d" % sQo, str(USTRIDE))]
    if cfg.wbl2 and t == cfg.wbl2:
        sg.head += [raw("s_cmp_lg_u32 s%d, 0" % sCNT), raw("s_cbranch_scc1 L_nowb"), raw("s_cmp_lg_u32 s%d, 0" % sW), raw("s_cbranch_scc1 L_nowb"),
                    raw("buffer_wbl2 sc1"), raw("L_nowb:")]
    if t == QRD:
        gaps[29].sh.append(vsite([("Q", 1 - cfg.pre, 1)]))
        for i, ins in enumerate(q_reads(AQN, 1, 1) if not cfg.pre else q_reads(QR, 0, 1, p="v")):
            items.append(Item(ins, 30, INF, 30 + 4 * i))
        al = lsite(); al.needs = "all"; gaps[ng - 1].sh.insert(1, al)
    if cfg.fakepre and 8 <= t <= 14:
        for i in range(23):
            r = 2 + (i % 4)
            op = [v2("v_and_b32", "v%d" % r, "0xffff0000", "v10"), v2("v_lshlrev_b32", "v%d" % r, "16", "v10"), mul_(r), mul_(r), cvt_(8, 2, 3)][i % 5]
            items.append(Item(op, 0, INF, 3 * i))
    if cfg.fakepre and t == 15:
        for i in range(32):
            sg.tail += [v2("v_and_b32", "v3", "0xffff0000", "v10"), v2("v_lshlrev_b32", "v2", "16", "v10"),
                        valu("v_pk_mul_f32 v[4:5], v[2:3], v[6:7]", [], [], "K"), cvt_(8, 4, 5), v1("v_accvgpr_write_b32", "a%d" % (AQN + i), "v8")]
    if cfg.pre and QRD < t < 15:
        n = 14 - QRD; lo_ = (t - QRD - 1) * 32 // n; hi_ = (t - QRD) * 32 // n
        last = {}
        for j, i in enumerate(range(lo_, hi_)):
            k = i % 3; p = last.get(k); base = j * (ng - 6.0) / (hi_ - lo_)
            for m, op in enumerate(pre_ops(i, k)):
                it = Item(op, 0, INF, base + 2.2 * m, [(p, 0)] if p else []); items.append(it); p = it
            last[k] = p
    if cfg.pre and t == 15:
        gaps[15].sh.append(vsite([("Q", 1, 1)]))
        Wr = [Item(v1("v_accvgpr_write_b32", "a%d" % (AQ + i), "v%d" % (QR + i)), 16, 56, 16 + i) for i in range(32)]
        items += Wr
        for i, ins in enumerate(q_reads(QR, 1, 1, p="v")):
            items.append(Item(ins, 16, ng - 6, 22 + 4.5 * i, [(w, 1) for w in Wr[4 * i:4 * i + 4]]))
        sg.tail += [lsite()] + pre_burst(None, writes=False)
    if t == 15 and not cfg.pre:
        gaps[15].sh.append(vsite([("Q", 0, 1)]))
        for i, ins in enumerate(q_reads(AQ, 0, 1)):
            items.append(Item(ins, 16, ng - 1 - LAT, 17 + 5 * i))
        for i in range(16):
            items.append(Item(v1("v_accvgpr_mov_b32", "a%d" % (AQ + 32 + i), "a%d" % (AQN + i)), b3, INF, b3 + i))
    schedule(gaps, items, "it%d%s" % (t, "f" if first else ""))
    for it, ops in sg.post: gaps[it.gap].va += ops
    sg.gaps = gaps
    return sg

def place_scalar(sg):
    gaps = sg.gaps
    def busy(G): return sum(1 for x in G.sh if (x.kind not in ("LSITE", "VSITE")) ) + (1 if any(x.kind in ("LSITE", "VSITE") and x.n is not None for x in G.sh) else 0)
    cur = None; lastx = -1
    for g, G in enumerate(gaps):
        if any("s_mov_b32 m0" in x.text for x in G.pre): cur = None; lastx = max(lastx, g - 1)
        if any(x.kind == "RAMP" for x in G.sh): cur = None; lastx = max(lastx, g)
        for x in G.ds:
            if x.kind == "X" and "m0" in x.rd:
                if cur != x.cmt:
                    cands = [k for k in range(max(lastx, 0) if lastx < 0 else lastx + 1, g)]
                    free = [k for k in cands if busy(gaps[k]) == 0]
                    if cands:
                        k = free[-1] if free else cands[-1]
                        gaps[k].sh.append(setm0(x.cmt))
                    elif any("s_mov_b32 m0" in y.text for y in G.pre):
                        G.pre.append(setm0(x.cmt))
                    else:
                        gaps[lastx].va.append(setm0(x.cmt))
                    cur = x.cmt
                lastx = g
    lastpos = {}
    ntail = 0
    for ins, (how, it), _ in sg.sitems:
        lst = ins if isinstance(ins, list) else [ins]
        c = [k for k in range(max(it.gap + (1 if how == "after2" else 0), lastpos.get(id(it), -1)) + 1, len(gaps)) if busy(gaps[k]) == 0]
        if c: gaps[c[0]].sh += lst; lastpos[id(it)] = c[0]
        else: sg.tail[ntail:ntail] = lst; ntail += len(lst); lastpos[id(it)] = len(gaps)

def flat(sg):
    L = list(sg.head)
    for G in sg.gaps: L += G.flat()
    return L + sg.tail

def prologue():
    L = []
    A = L.append
    A(raw("s_cmp_ge_u32 s2, 256")); A(raw("s_cbranch_scc1 L_end"))
    A(raw("s_load_dwordx4 s[36:39], s[0:1], 0")); A(raw("s_load_dwordx4 s[40:43], s[0:1], 16"))
    A(v2("v_lshrrev_b32", "v1", "6", "v0")); A(v2("v_and_b32", "v0", "63", "v0"))
    A(valu("v_readfirstlane_b32 s%d, v1" % sW, ["v1"], ["s%d" % sW]))
    A(v2("v_lshrrev_b32", "v2", "4", "v0"))
    A(v2("v_and_b32", "v3", "15", "v0"))
    if cfg.xmap == 0:
        A(raw("s_and_b32 s45, s2, 7")); A(raw("s_lshr_b32 s46, s2, 4")); A(raw("s_lshl_b32 s45, s45, 4")); A(raw("s_add_u32 s45, s45, s46"))
    else:
        A(raw("s_and_b32 s45, s2, 7")); A(raw("s_lshr_b32 s46, s2, 4")); A(raw("s_lshl_b32 s46, s46, 3")); A(raw("s_add_u32 s45, s45, s46"))
    if cfg.rot:
        A(raw("s_mul_i32 s%d, s45, %d" % (sKt, cfg.rot * 8192))); A(raw("s_and_b32 s%d, s%d, 0x1ffff" % (sKt, sKt))); A(smov("s%d" % sVt, "s%d" % sKt))
        A(smov("s%d" % sKb, "0")); A(smov("s%d" % sVb, "0"))
    A(raw("s_lshl_b32 s45, s45, %d" % (19 if cfg.hmap == 0 else 17)))
    A(raw("s_bfe_u32 s46, s2, 0x10003")); A(raw("s_lshl_b32 s46, s46, 16")); A(raw("s_add_u32 s46, s46, s45"))
    A(s2("s_lshl_b32", "s%d" % sMK, "s%d" % sW, "11"))
    A(v2("v_lshlrev_b32", "v4", "1", "v2")); A(v2("v_xor_b32", "v4", "v3", "v4")); A(v2("v_lshlrev_b32", "v4", "4", "v4"))
    A(v3("v_lshl_add_u32", "v%d" % DA, "v2", "8", "v4")); A(v2("v_xor_b32", "v%d" % DB, "0x80", "v%d" % DA))
    A(smov("s%d" % sMKn, "s%d" % sMK)); A(smov("s%d" % sMVn, "s%d" % sMK))
    if cfg.cpf:
        A(raw("s_lshr_b32 s%d, s2, 3" % sT)); A(raw("s_lshl_b32 s%d, s%d, 2" % (sT, sT))); A(raw("s_add_u32 s%d, s%d, s%d" % (sT, sT, sW)))
        A(raw("s_and_b32 s%d, s%d, 31" % (sT, sT))); A(raw("s_lshl_b32 s%d, s%d, 10" % (sT, sT)))
        A(raw("s_min_u32 s%d, s%d, L_end - L_pc - 1024" % (sT, sT)))
        A(v2("v_lshlrev_b32", "v5", "4", "v0")); A(v2("v_add_u32", "v5", "s%d" % sT, "v5"))
        A(raw("s_getpc_b64 s[58:59]\nL_pc:"))
        A(Ins("global_load_dwordx4 v[72:75], v5, s[58:59]", "X", ["v5"], R("v", 72, 4)))
    A(s2("s_lshl_b32", "s%d" % sMS, "s%d" % sW, "13")); A(s2("s_add_u32", "s%d" % sMS, "s%d" % sMS, str(LDS_S)))
    A(s2("s_lshl_b32", "s%d" % sQo, "s%d" % sW, "14"))
    A(s2("s_lshl_b32", "s%d" % sOa, "s%d" % sW, "14")); A(s2("s_sub_u32", "s%d" % sOa, "s%d" % sOa, str(USTRIDE)))
    for b in (sQ_, sK_, sV_, sO_): A(smov("s%d" % (b + 3), "0x20000"))
    A(smov("s%d" % (sK_ + 2), str(3 * USTRIDE + 131072))); A(smov("s%d" % (sV_ + 2), str(3 * USTRIDE + 131072)))
    A(smov("s%d" % (sQ_ + 2), str(3 * USTRIDE + 65536))); A(smov("s%d" % sONR, str(3 * USTRIDE + 65536))); A(smov("s%d" % (sO_ + 2), "0"))
    assert not cfg.rot and not cfg.flag_
    if cfg.kvmap == 0: A(s2("s_lshl_b32", "s%d" % sKo, "s%d" % sW, "11"))
    elif cfg.kvmap == 1: A(s2("s_lshl_b32", "s%d" % sKo, "s%d" % sW, "15"))
    else:
        A(s2("s_and_b32", "s%d" % sKo, "s%d" % sW, "1")); A(s2("s_lshl_b32", "s%d" % sKo, "s%d" % sKo, "11"))
        A(s2("s_lshr_b32", "s%d" % sVo, "s%d" % sW, "1")); A(s2("s_lshl_b32", "s%d" % sVo, "s%d" % sVo, "16")); A(s2("s_add_u32", "s%d" % sKo, "s%d" % sKo, "s%d" % sVo))
    A(smov("s%d" % sVo, "s%d" % sKo))
    A(raw("s_waitcnt lgkmcnt(0)"))
    if cfg.stamp2: L += stamp()
    for b, p, o in ((sK_, 38, 45), (sQ_, 36, 46), (sV_, 40, 45), (sO_, 42, 46)):
        A(salu("s_add_u32 s%d, s%d, s%d" % (b, p, o), [], ["s%d" % b])); A(salu("s_addc_u32 s%d, s%d, 0" % (b + 1, p + 1), [], ["s%d" % (b + 1)]))
    def issue(lst):
        cur = None
        for x in lst:
            if x.kind == "X" and cur != x.cmt:
                A(setm0(x.cmt)); A(nop(1)); cur = x.cmt
            A(x)
    A(smov("s%d" % sQa, "s%d" % sQo)); A(s2("s_add_u32", "s%d" % sQb, "s%d" % sQo, "4096"))
    k0 = kd(); v0 = vd() if cfg.early else None
    q0 = q_dmas(0, 0)
    if cfg.early:
        issue([k0[0], q0[0], v0[0], k0[1], v0[1]] + adv("K", False) + adv("V", False) + q0[1:])
    else:
        issue(k0 + adv("K", False) + q0)
    A(s2("s_add_u32", "s%d" % sQa, "s%d" % sQo, "8192")); A(s2("s_add_u32", "s%d" % sQb, "s%d" % sQo, str(8192 + 4096)))
    A(s2("s_sub_u32", "s%d" % sT, "s%d" % sMS, "32768"))
    issue(q_dmas(1, 0, msgpr=sT))
    if cfg.stamp2: L += stamp()
    A(s2("s_add_u32", "s%d" % sQo, "s%d" % sQo, str(USTRIDE)))
    A(v2("v_and_b32", "v5", "7", "v3")); A(v2("v_lshlrev_b32", "v6", "1", "v5"))
    for s in range(4):
        A(v2("v_add_u32", "v7", str(4 * s), "v2")); A(v2("v_xor_b32", "v7", "v7", "v6")); A(v2("v_lshlrev_b32", "v7", "4", "v7"))
        A(v3("v_lshl_add_u32", "v%d" % (KA + s), "v3", "8", "v7"))
        A(v2("v_add_u32", "v%d" % (QA + s), "s%d" % sMS, "v%d" % (KA + s)))
        A(v2("v_subrev_u32", "v%d" % (TM + s), "0x8000", "v%d" % (QA + s)))
    A(v2("v_lshrrev_b32", "v76", "2", "v0"))
    A(v2("v_and_b32", "v77", "7", "v76")); A(v2("v_lshlrev_b32", "v77", "1", "v77"))
    A(valu("v_bfe_u32 v78, v0, 1, 1", ["v0"], ["v78"]))
    A(v2("v_and_b32", "v79", "1", "v0")); A(v2("v_lshlrev_b32", "v79", "3", "v79"))
    A(v3("v_lshl_add_u32", "v79", "v76", "8", "v79")); A(v2("v_add_u32", "v79", str(LDS_V), "v79"))
    for b in range(8):
        A(v2("v_add_u32", "v7", str(2 * b), "v78")); A(v2("v_xor_b32", "v7", "v7", "v77"))
        A(v3("v_lshl_add_u32", "v%d" % (VA + b), "v7", "4", "v79"))
    A(v2("v_lshlrev_b32", "v79", "8", "v3")); A(v2("v_add_u32", "v79", "s%d" % sMS, "v79"))
    A(v2("v_xor_b32", "v78", "v2", "v5"))
    A(v3("v_lshl_add_u32", "v%d" % OW, "v78", "4", "v79")); A(v2("v_xor_b32", "v%d" % (OW + 1), "64", "v%d" % OW))
    A(v2("v_and_b32", "v78", "12", "v3")); A(v2("v_and_b32", "v70", "1", "v3")); A(v3("v_lshl_add_u32", "v78", "v70", "1", "v78"))
    A(v2("v_xor_b32", "v78", "v78", "v2")); A(v2("v_lshlrev_b32", "v78", "4", "v78")); A(v3("v_lshl_add_u32", "v78", "v2", "8", "v78"))
    A(v2("v_and_b32", "v70", "2", "v3")); A(v3("v_lshl_add_u32", "v78", "v70", "2", "v78"))
    A(v2("v_add_u32", "v%d" % OR_, "s%d" % sMS, "v78"))
    for i, x in enumerate((16, 64, 80)): A(v2("v_xor_b32", "v%d" % (OR_ + 1 + i), str(x), "v%d" % OR_))
    A(v2("v_lshlrev_b32", "v%d" % OS, "4", "v0"))
    A(v2("v_and_b32", "v7", "3", "v0")); A(valu("v_cmp_eq_u32 vcc, 0, v7", ["v7"], ["vcc"])); A(v1("v_mov_b32", "v76", "0x3f803f80")); A(v1("v_mov_b32", "v77", "0"))
    A(valu("v_cndmask_b32 v7, v77, v76, vcc", ["v76", "v77", "vcc"], ["v7"]))
    for i in range(4):
        A(v1("v_accvgpr_write_b32", "a%d" % (AONE + i), "v7")); A(v1("v_accvgpr_write_b32", "a%d" % (AZERO + i), "v77"))
    A(smov("s%d" % sC, "0x%08x" % SCALE)); A(smov("s%d" % sC2, "0x%08x" % SCALE)); A(smov("s%d" % (sC2 + 1), "0x%08x" % SCALE))
    if cfg.fakepre: L += [v1("v_mov_b32", "v%d" % i, "1.0") for i in range(2, 12)]
    A(smov("s%d" % sLO, "0x%08x" % LO_BITS)); A(smov("s%d" % sRG, "0x%08x" % (HI_BITS - LO_BITS)))
    A(smov("s%d" % sBAD, "0")); A(salu("s_mov_b64 s[%d:%d], 0" % (sACC, sACC + 1), [], R("s", sACC, 2)))
    A(smov("s%d" % sCNT, "3"))
    A(salu("s_mov_b64 vcc, %d" % (-1 if RAMP_IT else 0), [], ["vcc"]))
    A(s2("s_add_u32", "s%d" % sOb, "s%d" % sOa, "4096"))
    if cfg.stamp2: L += stamp()
    A(vsite([("K", 0), ("Q", 0, 0)]))
    if cfg.stamp2: L += stamp()
    A(bar())
    if cfg.pre:
        L += q_reads(QR, 0, 0, p="v") + [kread(f, 0, 0) for f in KORD] + [lsite()]
        b = pre_burst(AQ)
        for i in range(0, len(b), 20): L += b[i:i + 20] + [lsite()]
        return L + [nop(1), lsite()]
    qr = q_reads(AQ, 0, 0)
    seen = set()
    for kt, q, s in QKSEQ:
        if ("k", kt, s) not in seen: A(kread(4 * kt + s, 0, 0)); seen.add(("k", kt, s))
        if ("q", q, s) not in seen: A(qr[4 * q + s]); seen.add(("q", q, s))
    A(lsite())
    return L

def tail_seg():
    L = []
    for it in softmax_items(1, 0, lambda q, kt: 0, lambda q: 99, lo=(cfg.e0, cfg.e0, cfg.c0)):
        L.append(it.ins)
        if it.ins.kind == "T" and it.ins.text == exp_(S_(1, *GRP[3]) + 3).text: L.append(nop(1))
    if cfg.stmode == 1:
        L += [o_stores(1)[7], s2("s_add_u32", "s%d" % sOa, "s%d" % sOa, str(USTRIDE - 8192))]
    L.append(s2("s_add_u32", "s%d" % sOb, "s%d" % sOa, "4096"))
    L += epi_burst(0)
    gaps = [Gap(m) for m in pv_block(1, False)]
    for g, w in enumerate(o_writes(0)): gaps[g].ds.append(w)
    rd = o_reads(0, 0)
    for g in range(8): gaps[8 + g].ds += rd[2 * g:2 * g + 2]
    for G in gaps: L += G.flat()
    st = o_stores(0)
    L += [lsite()] + st[:4]
    b1 = epi_burst(1)
    k = [i for i, x in enumerate(b1) if x.kind == "K"][-1] + 1
    L += b1[:k] + [lsite()] + st[4:] + b1[k:]
    L += [s2("s_add_u32", "s%d" % sOa, "s%d" % sOa, "8192"), s2("s_add_u32", "s%d" % sOb, "s%d" % sOb, "8192")]
    w1 = o_writes(1); r1 = o_reads(1, 0); st = o_stores(1)
    L += w1[:4] + r1[:8] + w1[4:] + r1[8:]
    L += [lsite()] + st[:2] + [lsite()] + st[2:4] + [lsite()] + st[4:6] + [lsite()] + st[6:]
    L += flag_ops()
    return L

def slow_path():
    T = []
    A = T.append
    def emit(l):
        for x in l: A(x.text)
    def wait(): A("s_waitcnt vmcnt(0) lgkmcnt(0)");
    A("s_barrier")
    if cfg.force_slow: A("s_mov_b32 s%d, 15" % sBAD)
    A("s_cmp_eq_u32 s%d, 0" % sBAD); A("s_cbranch_scc1 L_end")
    A("s_lshl_b32 s45, s%d, 13" % sW)
    for i in range(4): A("v_add_u32 v%d, s45, v%d" % (KA + i, KA + i))
    for i in range(8): A("v_add_u32 v%d, s45, v%d" % (VA + i, VA + i))
    A("s_add_u32 s46, s45, %d" % LDS_V)
    A("s_lshl_b32 s%d, s%d, 14" % (sQo, sW))
    A("s_lshl_b32 s%d, s%d, 14" % (sOo, sW))
    A("v_mov_b32 v%d, v%d" % (TS + 4, DA)); A("v_mov_b32 v%d, v%d" % (TS + 5, DB))
    A("s_mov_b32 s%d, 0" % sCNT)
    A("L_slow_unit:")
    A("s_bitcmp1_b32 s%d, 3" % sBAD); A("s_cbranch_scc0 L_slow_next")
    wait()
    for h in range(2):
        A("s_add_u32 s%d, s%d, %d" % (sQa, sQo, h * 8192)); A("s_add_u32 s%d, s%d, 4096" % (sQb, sQa))
        cur = None
        for x in q_dmas(h, 0):
            if cur != x.cmt: A(setm0(x.cmt).text); A("s_nop 0"); cur = x.cmt
            A(x.text)
        wait(); emit(q_reads(AQ + 32 * h, h, 0)); wait()
    def tile_dma(sr, m0s):
        for i in range(8):
            if i % 4 == 0:
                A("s_add_u32 m0, s%d, %d" % (m0s, (i // 4) * 4096)); A("s_add_u32 s%d, s%d, %d" % (sT, sKo, (i // 4) * 4096))
            A("buffer_load_dwordx4 v%d, %s, s%d offen offset:%d lds" % (TS + 4 + i % 2, srd(sr), sT, (i % 4) * 1024))
    def qk_all():
        emit([kread(f, 0, 0) for f in range(8)]); wait()
        emit(qk_block(0) + qk_block(1)); A("s_nop 7"); A("s_nop 3")
    for i in range(4): A("v_mov_b32 v%d, 0xff800000" % (MX + i))
    A("s_mov_b32 s%d, s%d" % (sKo, sCNT)); A("s_add_u32 s%d, s%d, 131072" % (sVo, sCNT))
    A("L_slow_p1:")
    tile_dma(sK_, 45); wait(); qk_all()
    for h in range(2):
        for q in range(2):
            a = S_(h, q, 0)
            for i in range(4): A("v_max3_f32 v%d, v%d, v%d, v%d" % (MX + 2 * h + q, a + 2 * i, a + 2 * i + 1, MX + 2 * h + q))
    A("s_add_u32 s%d, s%d, 8192" % (sKo, sKo)); A("s_cmp_lt_u32 s%d, s%d" % (sKo, sVo)); A("s_cbranch_scc1 L_slow_p1")
    for op in ("v_permlane32_swap_b32", "v_permlane16_swap_b32"):
        for i in range(4): A("v_mov_b32 v%d, v%d" % (NM + i, MX + i))
        A("s_nop 1")
        for i in range(4): A("%s v%d, v%d" % (op, NM + i, MX + i))
        A("s_nop 1")
        for i in range(4): A("v_max_f32 v%d, v%d, v%d" % (MX + i, MX + i, NM + i))
    for i in range(4): A("v_mul_f32 v%d, s%d, v%d" % (NM + i, sC, MX + i))
    for i in range(128): A("v_mov_b32 v%d, 0" % (OB + i))
    for i in range(16): A("v_accvgpr_write_b32 a%d, 0" % (AL + i))
    A("s_mov_b32 s%d, s%d" % (sKo, sCNT))
    A("L_slow_p2:")
    tile_dma(sK_, 45); tile_dma(sV_, 46); wait(); qk_all()
    emit([vread(b, jj, 0, 0) for b in range(4) for jj in range(2)])
    for h in range(2):
        for q in range(2):
            a = S_(h, q, 0)
            for i in range(8): A("v_fma_f32 v%d, v%d, s%d, -v%d" % (a + i, a + i, sC, NM + 2 * h + q))
            for i in range(8): A("v_exp_f32 v%d, v%d" % (a + i, a + i))
            A("s_nop 0")
            for i in range(4): A(cvt_(P_(h, q) + i, a + 2 * i, a + 2 * i + 1).text)
    emit([vread(b, jj, 0, 0) for b in range(4, 8) for jj in range(2)])
    wait()
    emit(pv_block(0, False) + pv_block(1, False))
    A("s_add_u32 s%d, s%d, 8192" % (sKo, sKo)); A("s_cmp_lt_u32 s%d, s%d" % (sKo, sVo)); A("s_cbranch_scc1 L_slow_p2")
    A("s_nop 7"); A("s_nop 3")
    for h in range(2):
        emit(epi_burst(h, check=False)); emit(o_writes(h) + o_reads(h, 0))
        A("s_add_u32 s%d, s%d, %d" % (sOa, sOo, h * 8192)); A("s_add_u32 s%d, s%d, 4096" % (sOb, sOa))
        wait(); emit(o_stores(h)); wait()
    A("L_slow_next:")
    A("s_lshl_b32 s%d, s%d, 1" % (sBAD, sBAD)); A("s_and_b32 s%d, s%d, 15" % (sBAD, sBAD))
    for r in (sCNT, sQo, sOo): A("s_add_u32 s%d, s%d, %d" % (r, r, USTRIDE))
    A("s_cmp_lg_u32 s%d, 0" % sBAD); A("s_cbranch_scc1 L_slow_unit")
    return T

def stamp():
    if not cfg.stamp: return []
    return [raw("s_memtime s[58:59]"), raw("s_memrealtime s[62:63]"), raw("s_waitcnt lgkmcnt(0)"),
            raw("s_mov_b32 m0, s57"), raw("s_nop 0"), raw("v_writelane_b32 v38, s58, m0"), raw("v_writelane_b32 v39, s62, m0"), raw("s_add_u32 s57, s57, 1")]
def stamp_out():
    if not cfg.stamp: return []
    return [x.text for x in stamp()] + ["s_load_dwordx2 s[36:37], s[0:1], 40", "s_waitcnt lgkmcnt(0)", "s_mov_b32 s38, 0x1000000", "s_mov_b32 s39, 0x20000",
            "s_lshl_b32 s45, s2, 2", "s_add_u32 s45, s45, s%d" % sW, "s_lshl_b32 s45, s45, 9", "v_lshrrev_b32 v41, 2, v%d" % OS,
            "buffer_store_dword v38, v41, s[36:39], s45 offen", "buffer_store_dword v39, v41, s[36:39], s45 offen offset:256"]
def main():
    sgs = {"it0f": build_iter(0, True)}
    for t in range(16): sgs["it%d" % t] = build_iter(t)
    def segs():
        d = {"pro": pro, "tail": tl}
        d.update(RAMPS)
        for k, s in sgs.items(): d[k] = flat(s)
        return d
    pro = prologue(); tl = tail_seg()
    if cfg.dbgspan:
        pro[2:2] = [raw("s_memrealtime s[60:61]"), raw("s_memtime s[62:63]"), raw("s_waitcnt lgkmcnt(0)"), raw("s_mov_b32 s56, s60"), raw("s_mov_b32 s57, s62")]
        i = [k for k, x in enumerate(pro) if x.kind == "BAR"][0]
        pro[i + 1:i + 1] = [raw("s_memrealtime s[58:59]")]
    if cfg.stamp:
        pro[2:2] = [raw("s_mov_b32 s57, 0")] + stamp()
        i = [k for k, x in enumerate(pro) if x.kind == "BAR"][0]
        pro[i + 1:i + 1] = stamp()
        for t in range(0, 16, cfg.stamp): sgs["it%d" % t].head[0:0] = stamp()
        tl[0:0] = stamp()
        if cfg.stamp3:
            G = sgs["it0"].gaps
            G[0].pre += stamp(); G[16].pre += stamp(); G[34].pre += stamp(); G[48].pre[0:0] = stamp(); G[48].pre += stamp()
            sgs["it1"].head[0:0] = stamp(); sgs["it1"].gaps[34].pre += stamp(); sgs["it2"].head[0:0] = stamp(); sgs["it3"].head[0:0] = stamp()
        if cfg.stamp2:
            sgs["it0f"].gaps[16].pre += stamp(); sgs["it0f"].gaps[cfg.fbar + 1].pre += stamp(); sgs["it0f"].tail[0:0] = stamp()
    traces = []
    for role in ("A", "B"):
        x = dict(role=role, lagK=cfg.flag_ if role == "B" else 0, lagV=cfg.flag_ if role == "A" else 0)
        trace = [("pro", dict(T=0, u=0, first=1, **x)), ("it0f", dict(T=0, u=0, first=1, **x))]
        for u in range(4):
            for t in range(16):
                if (u, t) != (0, 0): trace.append(("it%d" % t, dict(T=16 * u + t, u=u, first=(u == 0 and t < 8), **x)))
        trace.append(("tail", dict(T=64, u=3, **x)))
        traces.append(trace)
    sgs["it0f"].tail.append(raw("s_branch L_it1", "BR"))
    sgs["it15"].tail += [s2("s_sub_u32", "s%d" % sCNT, "s%d" % sCNT, "1"), raw("s_cbranch_scc0 L_it0", "BR")]
    insert_waits(segs(), traces)
    for k, s in sgs.items():
        br = [x for x in s.tail if x.kind == "BR" or "s_sub_u32 s%d" % sCNT in x.text]
        s.tail = [x for x in s.tail if x not in br]
        place_scalar(s)
        s.tail += br
    fs = {k: finalize(v) for k, v in segs().items()}
    errs = sum((verify(fs, tr, {"K": 8, "V": 16, "Q": 8, "O": 16}) for tr in traces), [])
    for e in errs[:40]: sys.stderr.write("ERR " + e + "\n")
    tot = 0
    for k in ["pro", "it0f"] + ["it%d" % t for t in range(16)] + ["tail"]:
        est = issue_estimate(fs[k]); sys.stderr.write("%s:%d " % (k, est))
        if k.startswith("it") and k != "it0f": tot += est
    if cfg.stamp3:
        for k in ("it0", "it1", "it2"):
            parts = [[]]
            for x in fs[k]:
                if "s_memtime" in x.text: parts.append([])
                parts[-1].append(x)
            sys.stderr.write("\n%s parts %s" % (k, [issue_estimate(p) for p in parts]))
    sys.stderr.write("\nunit estimate %d cycles, errors %d\n" % (tot, len(errs)))
    out = []
    hdr = open(os.path.join(os.path.dirname(os.path.abspath(__file__)), "..", "cdna_kernels", NAME + ".s.ref")).read().split("; Override")[0]
    out.append(hdr.rstrip())
    out.append("; @launch grid=(256,1,1) block=(256,1,1) lds=163840")
    out.append('.amdgcn_target "amdgcn-amd-amdhsa--gfx950"\n.text\n.globl %s_kernel\n.p2align 8\n.type %s_kernel,@function\n%s_kernel:' % (NAME, NAME, NAME))
    par = {}
    def dump(k):
        out.append("; ---- " + k)
        for x in fs[k]:
            if cfg.nocomp and k != "pro" and x.kind in ("M", "V", "T", "K", "D", "W"):
                par[x.kind] = par.get(x.kind, 0) + 1
                if cfg.nocomp == 1 or par[x.kind] % cfg.nocomp == 0: continue
            if cfg.nomem and k != "pro" and x.kind == "X" and (cfg.nomem == 1 or "store" in x.text): continue
            if cfg.nostore and x.kind == "X" and "store" in x.text: continue
            out.append("  " + x.text)
            if cfg.nocomp and "m0" in x.wr: out.append("  s_nop 0")
    dump("pro"); dump("it0f")
    for k in RAMPS: out.append("L_%s:" % k); dump(k)
    out.append(".p2align 6\nL_it0:"); dump("it0"); out.append("L_it1:")
    for t in range(1, 16): dump("it%d" % t)
    dump("tail")
    if cfg.dbgspan:
        out += ["  " + x for x in ["s_waitcnt vmcnt(0)", "s_memrealtime s[60:61]", "s_memtime s[62:63]", "s_load_dwordx2 s[36:37], s[0:1], 32", "s_waitcnt lgkmcnt(0)", "s_mov_b32 s38, 256", "s_mov_b32 s39, 0x20000",
            "s_not_b32 s45, s56", "v_mov_b32 v2, s45", "v_mov_b32 v3, s58", "v_mov_b32 v4, s60", "v_mov_b32 v5, s56", "s_not_b32 s45, s60", "v_mov_b32 v6, s45", "s_sub_u32 s45, s62, s57", "v_mov_b32 v7, s45", "v_mov_b32 v1, 0",
            "s_mov_b64 exec, 1",
            "buffer_atomic_umax v2, v1, s[36:39], 0 offen", "buffer_atomic_umax v3, v1, s[36:39], 0 offen offset:4", "buffer_atomic_umax v4, v1, s[36:39], 0 offen offset:8",
            "buffer_atomic_umax v5, v1, s[36:39], 0 offen offset:12", "buffer_atomic_umax v6, v1, s[36:39], 0 offen offset:16", "buffer_atomic_umax v7, v1, s[36:39], 0 offen offset:20", "s_mov_b64 exec, -1"]]
    if cfg.stamp:
        out.append("  s_waitcnt vmcnt(0)")
        out += ["  " + x for x in stamp_out()]
    if cfg.nocomp or cfg.nomem or cfg.fakepre: out.append("  s_mov_b32 s%d, 0" % sBAD)
    out += ["  " + x if not x.endswith(":") else x for x in slow_path()]
    out.append("L_end:\n  s_endpgm")
    out.append('.section .rodata,"a"\n.p2align 6\n.amdhsa_kernel %s_kernel' % NAME)
    out.append("  .amdhsa_next_free_vgpr 512\n  .amdhsa_next_free_sgpr 64\n  .amdhsa_accum_offset 256\n  .amdhsa_group_segment_fixed_size 0\n  .amdhsa_kernarg_size 48\n  .amdhsa_user_sgpr_count 2\n  .amdhsa_user_sgpr_kernarg_segment_ptr 1\n  .amdhsa_system_sgpr_workgroup_id_x 1\n.end_amdhsa_kernel")
    open(sys.argv[1], "w").write("\n".join(out) + "\n")
    if errs: sys.exit(1)
main()
```

```python
import sys, os, struct, math
from core import *

class Cfg:
    barper = 2
    finchk = 1
    lat = 7
    k_aux = ""
    v_aux = ""
    kv_aux = "nt"
    q_aux = "nt"
    o_aux = "nt"
    e0 = 10; c0 = 4; f0 = 6
    force_slow = 0
    hmap = 1
    rot = 0
    xmap = 0
    stamp = 0
    dbgwg = -1
    stamp3 = 0
    stamp2 = 0
    nocomp = 0
    nomem = 0
    nostore = 0
    dbgspan = 0
    lag = 1.5
    lead = 6
    pre = 0
    wbl2 = 0
    kvmap = 2
    fakepre = 0
    x0 = 17
    x1 = 9
    xs = 8
    xts = 8
    xt = 52
    flag_ = 0
    stmode = 0
    qmaj = 0
    bargap = 14
    sm0 = 14
    qkord = 2
    kt0 = 54.0
    kts = 2.48
    vt0 = 18.0
    vts = 2.48
    stgap = 48
    l0 = 3
    cpf = 1
    qa0 = 2
    early = 1
    fbar = 22
    rdy = 5
cfg = Cfg()
for a in sys.argv[2:]:
    k, v = a.split("=")
    setattr(cfg, k, type(getattr(cfg, k))(v))

NAME = "standalone__mha_softmax__near_ridge"
KA = 16; VA = 20; DA = 28; DB = 29; QA = 30; OW = 34; OS = 40; OR_ = 8; QR = 48; PT = 2
ET = 42; ER = 44; EU = 36
MX = 50; NM = 54; TM = 12; TS = 58
PB = 80; SB = 96; OB = 128
def S_(h, q, kt): return SB + 16 * h + 8 * q + 4 * kt
def P_(h, q): return PB + 8 * h + 4 * q
def O_(qt, b): return OB + 32 * qt + 4 * b
AQ = 0; AQN = 64; AK = 96; AV = 128; AO = 160; AL = 224; AONE = 240; AZERO = 244; ACHK = 248
sQ_, sK_, sV_, sO_ = 4, 8, 12, 16
sW = 20; sKo = 21; sVo = 22; sMK = 23; sMV = 24; sQo = 25; sOo = 26; sC = 27; sBAD = 28; sUB = 29; sACC = 30; sCMP = 32
sLO = 34; sRG = 35; sMS = 44; sCNT = 47; sONR = 48; sQa = 50; sQb = 51; sOa = 52; sOb = 53; sT = 54; sKt = 55; sVt = 56; sKb = 62; sVb = 63; sMKn = 29; sMVn = 49; sC2 = 60
LDS_V = 65536; LDS_S = 131072
SCALE = struct.unpack("<I", struct.pack("<f", math.log2(math.e) / math.sqrt(128.0)))[0]
LO_BITS = (127 - (40 if cfg.finchk else 24)) << 23
HI_BITS = (127 + (126 if cfg.finchk else 24)) << 23

def srd(b): return "s[%d:%d]" % (b, b + 3)
def srdr(b): return R("s", b, 4)

def v2(op, d, a, b, kind="V"):
    rd = [x for x in (a, b) if isinstance(x, str) and x[0] in "vsa" and x[1:].isdigit()]
    return valu("%s %s, %s, %s" % (op, d, a, b), rd, [d], kind)
def v1(op, d, a, kind="V"):
    rd = [a] if isinstance(a, str) and a[0] in "vsa" and a[1:].isdigit() else []
    return valu("%s %s, %s" % (op, d, a), rd, [d], kind)
def v3(op, d, a, b, c):
    rd = [x for x in (a, b, c) if isinstance(x, str) and x[0] in "vsa" and x[1:].isdigit()]
    return valu("%s %s, %s, %s, %s" % (op, d, a, b, c), rd, [d])
def s2(op, d, a, b):
    rd = [x for x in (a, b) if isinstance(x, str) and (x[0] == "s" or x == "m0")]
    return salu("%s %s, %s, %s" % (op, d, a, b), rd, [d, "scc"])
def smov(d, a):
    return salu("s_mov_b32 %s, %s" % (d, a), [a] if isinstance(a, str) and a[0] == "s" else [], [d])
def mul_(r): return v2("v_mul_f32", "v%d" % r, "s%d" % sC, "v%d" % r)
def exp_(r): return v1("v_exp_f32", "v%d" % r, "v%d" % r, "T")
def cvt_(d, a, b): return v2("v_cvt_pk_bf16_f32", "v%d" % d, "v%d" % a, "v%d" % b)
def dsr128(dp, d, addr, off, tag):
    assert 0 <= off < 65536
    return Ins("ds_read_b128 %s, v%d offset:%d" % (rng(dp, d, 4), addr, off), "D", ["v%d" % addr], R(dp, d, 4), tag=tag)
def dstr(d, addr, off, tag):
    assert 0 <= off < 65536
    return Ins("ds_read_b64_tr_b16 %s, v%d offset:%d" % (rng("a", d, 2), addr, off), "D", ["v%d" % addr], R("a", d, 2), tag=tag)
def dsw64(addr, src, off):
    return Ins("ds_write_b64 v%d, %s offset:%d" % (addr, rng("v", src, 2), off), "W", ["v%d" % addr] + R("v", src, 2), [])
def dma(voff, sr, soff, off, tag, m0, aux=""):
    if sr == sK_ and cfg.k_aux: aux = cfg.k_aux
    if sr == sV_ and cfg.v_aux: aux = cfg.v_aux
    i = Ins("buffer_load_dwordx4 v%d, %s, s%d offen offset:%d %slds" % (voff, srd(sr), soff, off, aux + " " if aux else ""), "X",
            ["v%d" % voff, "s%d" % soff, "m0"] + srdr(sr), [], tag=tag)
    i.cmt = m0
    return i
def store(src, soff, off, tag=None):
    return Ins("buffer_store_dwordx4 %s, v%d, %s, s%d offen offset:%d%s" % (rng("a", src, 4), OS, srd(sO_), soff, off, " " + cfg.o_aux if cfg.o_aux else ""), "X",
               R("a", src, 4) + ["v%d" % OS, "s%d" % soff] + srdr(sO_), [], tag=tag)
def setm0(m0):
    return s2("s_add_u32", "m0", "s%d" % m0[0], str(m0[1]))

if cfg.qkord == 0:   QKSEQ = [(f // 4, q, f % 4) for f in range(8) for q in range(2)]
elif cfg.qkord == 1: QKSEQ = [(kt, q, s if q == 0 else 3 - s) for kt in range(2) for q in range(2) for s in range(4)]
else:                QKSEQ = [(c // 2, (0, 1, 1, 0)[c], s if c % 2 == 0 else 3 - s) for c in range(4) for s in range(4)]
def kfirst(f): return min(i for i, (kt, q, s) in enumerate(QKSEQ) if 4 * kt + s == f)
def klast(f): return max(i for i, (kt, q, s) in enumerate(QKSEQ) if 4 * kt + s == f)
def sdone(q, kt): return max(i for i, x in enumerate(QKSEQ) if x[:2] == (kt, q))
def qfirst(q, s): return min(i for i, x in enumerate(QKSEQ) if x[1:] == (q, s))
GRP = sorted([(q, kt) for q in range(2) for kt in range(2)], key=lambda g: sdone(*g))
KORD = sorted(range(8), key=kfirst)
def qk_block(h):
    L = []; seen = set()
    for kt, q, s in QKSEQ:
        L.append(mfma("v", S_(h, q, kt), "a", AK + 4 * (4 * kt + s), "a", AQ + 16 * (2 * h + q) + 4 * s, czero=((kt, q) not in seen)))
        seen.add((kt, q))
    return L
def pvpos(b, q):
    if cfg.qmaj: return 9 * q + 1 + b
    return 2 * b + q + (1 if b >= 3 else 0) + (1 if b >= 6 else 0)
def pfirst(q): return 9 * q if cfg.qmaj else q
def pv_block(h, first):
    L = []
    if cfg.qmaj:
        for q in range(2):
            L.append(mfma("a", AL + 4 * (2 * h + q), "a", AONE, "v", P_(h, q), czero=first))
            for b in range(8): L.append(mfma("v", O_(2 * h + q, b), "a", AV + 4 * b, "v", P_(h, q), czero=first))
        return L
    for b in range(8):
        for q in range(2):
            L.append(mfma("v", O_(2 * h + q, b), "a", AV + 4 * b, "v", P_(h, q), czero=first))
        if b in (2, 5):
            q = b // 4
            L.append(mfma("a", AL + 4 * (2 * h + q), "a", AONE, "v", P_(h, q), czero=first))
    return L

class Item:
    def __init__(self, ins, ready, dead, target, deps=()):
        self.ins = ins; self.ready = ready; self.dead = dead; self.target = target; self.deps = list(deps); self.gap = None
        k = ins.kind
        self.cost = 8 if k in ("T", "X", "W") else 4
class Gap:
    def __init__(self, m):
        self.pre = []; self.m = m; self.sh = [lsite()]; self.ds = []; self.va = []
    def flat(self): return self.pre + [self.m] + self.sh + self.ds + self.va

def schedule(gaps, items, name):
    n = len(gaps)
    todo = sorted(items, key=lambda i: (i.target, i.dead))
    for g in range(n):
        G = gaps[g]
        def ok(it):
            if it.ready > g: return False
            for d, dist in it.deps:
                if d.gap is None or d.gap + dist > g: return False
            return True
        def place(it):
            it.gap = g; todo.remove(it)
            (G.ds if it.ins.kind in ("D", "W", "X") else G.va).append(it.ins)
        def fits(it, used):
            k = it.ins.kind
            if any(x.kind == "X" for x in G.ds): return False
            if k == "X": return used == 0
            return True
        used = 0
        for it in [x for x in todo if x.dead <= g]:
            if ok(it) and fits(it, used): place(it); used += it.cost
        while used < 8:
            c = [it for it in todo if ok(it) and fits(it, used) and it.cost <= 8 - used]
            if not c: break
            it = c[0]
            if used == 0 and it.cost == 4:
                four = [x for x in c[1:] if x.cost == 4 or False]
                dep_next = [x for x in todo if x.cost == 4 and x is not it and x.ready <= g and all((d.gap is not None and d.gap + dist <= g) or (d is it and dist == 0) for d, dist in x.deps)]
                eight = [x for x in c if x.cost == 8]
                if not dep_next and eight and it.dead > g: it = eight[0]
            place(it); used += it.cost
        c = [it for it in todo if ok(it) and fits(it, used) and it.cost == 4 and it.target < g - cfg.lag]
        if c and used > 0:
            place(c[0]); used += 4
        while True:
            over = False
            dem = 0
            for it in sorted(todo, key=lambda i: min(i.dead, n - 1)):
                dem += 12 if it.ins.kind == "X" else it.cost
                d = min(it.dead, n - 1)
                if dem > 12 * (d - g): over = True; break
            if not over: break
            c = sorted([it for it in todo if ok(it) and fits(it, used)], key=lambda i: (min(i.dead, n - 1), i.target))
            if not c: break
            place(c[0]); used += c[0].cost
    if todo:
        raise Exception("%s: unscheduled items: %s" % (name, [(i.ins.text, i.ready, i.dead) for i in todo]))
    for it in items:
        if it.gap > it.dead: raise Exception("%s: deadline miss %s gap %d > %d" % (name, it.ins.text, it.gap, it.dead))

def softmax_items(h, base, rdy, dead, lo=(0, 0, 0), hi=(16, 16, 8), carry=None):
    its = []; M = {}; E = {}
    def reg(e):
        q, kt = GRP[e // 4]
        return q, kt, S_(h, q, kt) + e % 4
    for e in range(lo[0], hi[0] if not (cfg.fakepre or cfg.pre) else lo[0]):
        q, kt, r = reg(e)
        M[e] = Item(mul_(r), rdy(q, kt), dead(q) - 2, base + 2 * e); its.append(M[e])
    for e in range(lo[1], hi[1]):
        q, kt, r = reg(e)
        E[e] = Item(exp_(r), rdy(q, kt), dead(q) - 1, base + 2 * e + 1, [(M[e], 0)] if e in M else []); its.append(E[e])
    for j in range(lo[2], hi[2]):
        q, kt, r = reg(2 * j)
        deps = [(E[e], 1) for e in (2 * j, 2 * j + 1) if e in E]
        its.append(Item(cvt_(P_(h, q) + 2 * kt + j % 2, r, r + 1), rdy(q, kt), dead(q), base + 4 * j + 4, deps))
    return its

def kread(f, slot, dT):
    return dsr128("a", AK + 4 * f, KA + f % 4, slot * 8192 + (f // 4) * 4096, ("K", dT))
def vread(b, jj, slot, dT):
    return dstr(AV + 4 * b + 2 * jj, VA + b, slot * 8192 + jj * 4096, ("V", dT))
_uid = [0]
def kd(lead=None):
    _uid[0] += 1
    L = [dma(DA, sK_, sKo, 0, ("K", "a"), (sMKn, 0, _uid[0]), cfg.kv_aux), dma(DB, sK_, sKo, 1024, ("K", "b"), (sMKn, 0, _uid[0]), cfg.kv_aux)]
    for x in L: x.needs = lead
    return L
def vd(lead=None):
    _uid[0] += 1
    L = [dma(DA, sV_, sVo, 0, ("V", "a"), (sMVn, LDS_V, _uid[0]), cfg.kv_aux), dma(DB, sV_, sVo, 1024, ("V", "b"), (sMVn, LDS_V, _uid[0]), cfg.kv_aux)]
    for x in L: x.needs = lead
    return L
def kv_dmas(t, lead):
    return kd(lead + 1) + vd(lead)
def q_dmas(h, du, msgpr=sMS, mconst=0):
    return [dma(DA if i % 2 == 0 else DB, sQ_, sQa if i < 4 else sQb, (i % 4) * 1024, ("Q", h, du), (msgpr, mconst + (i // 4) * 4096), cfg.q_aux) for i in range(8)]
def q_reads(dst, h, du, addr=QA, p="a"):
    return [dsr128(p, dst + 16 * q + 4 * s, addr + s, q * 4096, ("Q", h, du)) for q in range(2) for s in range(4)]

def pre_ops(i, k):
    r = QR + i; a = PT + 2 * k
    return [v2("v_lshlrev_b32", "v%d" % a, "16", "v%d" % r), v2("v_and_b32", "v%d" % (a + 1), "0xffff0000", "v%d" % r), mul_(a), mul_(a + 1), cvt_(r, a, a + 1)]
def pre_burst(dst, writes=True):
    L = []
    def stage(i, n):
        r = QR + i; a = PT + 2 * (i % 3)
        if n == 0: return [v2("v_lshlrev_b32", "v%d" % a, "16", "v%d" % r), v2("v_and_b32", "v%d" % (a + 1), "0xffff0000", "v%d" % r)]
        if n == 1: return [valu("v_pk_mul_f32 v[%d:%d], v[%d:%d], s[%d:%d]" % (a, a + 1, a, a + 1, sC2, sC2 + 1), R("v", a, 2), R("v", a, 2), "K")]
        if n == 2: return [cvt_(r, a, a + 1)]
        return [v1("v_accvgpr_write_b32", "a%d" % (dst + i), "v%d" % r)] if writes else []
    for i in range(32 + 3):
        for n in (3, 2, 1, 0):
            if 0 <= i - n < 32: L += stage(i - n, n)
    return L
def epi_burst(h, check=True, defer=False):
    L = []
    for q in range(2): L.append(v1("v_accvgpr_read_b32", "v%d" % (ET + q), "a%d" % (AL + 4 * (2 * h + q))))
    for q in range(2): L.append(v1("v_rcp_f32", "v%d" % (ER + 2 * q), "v%d" % (ET + q), "T"))
    if check:
        for q in range(2): L.append(v2("v_subrev_u32", "v%d" % (EU + q), "s%d" % sLO, "v%d" % (ET + q)))
        L.append(valu("v_cmp_le_u32 vcc, s%d, v%d" % (sRG, EU), ["s%d" % sRG, "v%d" % EU], ["vcc"]))
        L.append(valu("v_cmp_le_u32 s[%d:%d], s%d, v%d" % (sCMP, sCMP + 1, sRG, EU + 1), ["s%d" % sRG, "v%d" % (EU + 1)], R("s", sCMP, 2)))
    else:
        L.append(nop(1))
    for q in range(2):
        for b in range(8):
            for i in range(2):
                a = O_(2 * h + q, b) + 2 * i
                L.append(valu("v_pk_mul_f32 v[%d:%d], v[%d:%d], v[%d:%d] op_sel_hi:[1,0]" % (a, a + 1, a, a + 1, ER + 2 * q, ER + 2 * q + 1),
                              R("v", a, 2) + ["v%d" % (ER + 2 * q)], R("v", a, 2), "K"))
    sor = []
    if check:
        sor = [salu("s_or_b64 s[%d:%d], s[%d:%d], vcc" % (sACC, sACC + 1, sACC, sACC + 1), ["vcc"] + R("s", sACC, 2), R("s", sACC, 2)),
               salu("s_or_b64 s[%d:%d], s[%d:%d], s[%d:%d]" % (sACC, sACC + 1, sACC, sACC + 1, sCMP, sCMP + 1), R("s", sCMP, 2) + R("s", sACC, 2), R("s", sACC, 2))]
        if not cfg.finchk: L += sor
    for q in range(2):
        for bp in range(4):
            a = O_(2 * h + q, 2 * bp)
            for i in range(4): L.append(cvt_(a + i, a + 2 * i, a + 2 * i + 1))
            if check and cfg.finchk and (q, bp) != (0, 0):
                pa = a - 8
                L.append(mfma("a", ACHK, "a", AZERO, "v", pa, czero=(h == 0 and (q, bp) == (0, 1))))
                if sor: L.append(sor.pop(0))
    last = [mfma("a", ACHK, "a", AZERO, "v", O_(2 * h + 1, 6))] if check and cfg.finchk else []
    if defer: LASTCHK[h] = last
    elif last: L += [nop(2)] + last
    return L
def flag_ops():
    L = []
    if cfg.finchk:
        L.append(v1("v_accvgpr_read_b32", "v%d" % ET, "a%d" % ACHK))
        L.append(valu("v_cmp_u_f32 vcc, v%d, v%d" % (ET, ET), ["v%d" % ET], ["vcc"]))
        L.append(nop(2))
        L.append(salu("s_or_b64 s[%d:%d], s[%d:%d], vcc" % (sACC, sACC + 1, sACC, sACC + 1), ["vcc"] + R("s", sACC, 2), R("s", sACC, 2)))
    L.append(salu("s_cmp_lg_u64 s[%d:%d], 0" % (sACC, sACC + 1), R("s", sACC, 2), ["scc"]))
    L.append(salu("s_addc_u32 s%d, s%d, s%d" % (sBAD, sBAD, sBAD), ["scc", "s%d" % sBAD], ["s%d" % sBAD]))
    L.append(salu("s_mov_b64 s[%d:%d], 0" % (sACC, sACC + 1), [], R("s", sACC, 2)))
    L.append(salu("s_mov_b64 vcc, 0", [], ["vcc"]))
    return L
def o_writes(h):
    L = []
    for q in range(2):
        for bp in range(4):
            a = O_(2 * h + q, 2 * bp); addr = OW + bp % 2
            L.append(Ins("ds_write_b128 v%d, %s offset:%d" % (addr, rng("v", a, 4), (bp // 2) * 128 + q * 4096), "W", ["v%d" % addr] + R("v", a, 4), []))
    return L
def o_reads(h, du):
    L = []
    for j in range(8):
        for i in range(2):
            d = AO + 32 * h + 4 * j + 2 * i; addr = OR_ + 2 * (j % 2) + i
            L.append(Ins("ds_read_b64 %s, v%d offset:%d" % (rng("a", d, 2), addr, j * 1024), "D", ["v%d" % addr], R("a", d, 2), tag=("O", h, du)))
    return L
def o_stores(h):
    return [store(AO + 32 * h + 4 * j, sOa if j < 4 else sOb, (j % 4) * 1024) for j in range(8)]
USTRIDE = 131072 if cfg.hmap == 0 else 128 * 131072
KSTEP = (8192, 2048, 4096)[cfg.kvmap]
def adv(which, cross):
    o, t, b = (sKo, sKt, sKb) if which == "K" else (sVo, sVt, sVb)
    m = sMKn if which == "K" else sMVn
    if cfg.flag_:
        assert not cfg.rot
        L = [s2("s_add_u32", "s%d" % o, "s%d" % o, "8192")]
        if USTRIDE != 131072:
            L += [s2("s_bfe_u32", "s%d" % t, "s%d" % o, "0x10011"), s2("s_mul_i32", "s%d" % t, "s%d" % t, str(USTRIDE - 131072)), s2("s_add_u32", "s%d" % o, "s%d" % o, "s%d" % t)]
        return L + [s2("s_add_u32", "s%d" % m, "s%d" % m, "8192"), s2("s_and_b32", "s%d" % m, "s%d" % m, "0xffff")]
    M = [s2("s_add_u32", "s%d" % m, "s%d" % m, "8192"), s2("s_and_b32", "s%d" % m, "s%d" % m, "0xffff")]
    if not cfg.rot:
        return M + [s2("s_add_u32", "s%d" % o, "s%d" % o, str(KSTEP + (USTRIDE - 16 * KSTEP if cross else 0)))]
    L = M + [s2("s_add_u32", "s%d" % t, "s%d" % t, "8192"), s2("s_and_b32", "s%d" % t, "s%d" % t, "0x1ffff")]
    if cross: L.append(s2("s_add_u32", "s%d" % b, "s%d" % b, str(USTRIDE)))
    L.append(s2("s_add_u32", "s%d" % o, "s%d" % b, "s%d" % t))
    return L

LEAD = cfg.lead
LAT = cfg.lat
B0, B1, B2, B3, NG = 0, 16, 34, 50, 68
NW0 = 5
LASTCHK = {}
RAMP_IT = [2, 4, 6][:cfg.lead - cfg.l0]
RAMPS = {}
QA_IT = [cfg.qa0 + i for i in range(4)]; QB_IT = [8, 9, 10, 11]; ST_IT = [1, 6, 7, 12, 13, 14, 15]
QRD = cfg.qa0 + 5; QB_IT = [QRD + 1 + i for i in range(4)] if QRD <= 7 else [QRD + 1, QRD + 2]
ST_IT = ([1] + [t for t in range(2, 16) if t not in QA_IT and t not in QB_IT] + [8])
ST_IT = sorted(ST_IT[:8])
ST_MAP = {t: [2 * i, 2 * i + 1] for i, t in enumerate(ST_IT)} if cfg.stmode == 0 else {(k + 1) % 16: [k] for k in range(16)}
if cfg.stmode == 2: ST_MAP = {6: [0, 1, 2, 3], 7: [4, 5, 6, 7], 12: [8, 9, 10, 11], 13: [12, 13, 14, 15]}
if cfg.stmode == 3: ST_MAP = {12: [0, 1, 2, 3], 13: [4, 5, 6, 7], 14: [8, 9, 10, 11], 15: [12, 13, 14, 15]}

class Seg:
    def __init__(self): self.gaps = []; self.sitems = []; self.head = []; self.tail = []; self.post = []

def build_iter(t, first=False):
    sg = Seg()
    if first:
        b0, b1, b2, b3, ng = 0, None, 16, 32, 50
        mf = qk_block(0) + qk_block(1) + pv_block(0, True)
    else:
        b0, b1, b2, b3, ng = B0, B1, B2, B3, NG
        mf = qk_block(0) + pv_block(1, t == 1) + qk_block(1) + pv_block(0, t == 0)
    gaps = [Gap(m) for m in mf]
    items = []
    INF = 10 ** 6
    slot = t % 8; nslot = (t + 1) % 8
    isbar = (t % cfg.barper == 0)
    bar_gap = cfg.bargap
    if not first:
        items += softmax_items(1, cfg.sm0 + 34 - NG, lambda q, kt: 0, lambda q: b1 + pfirst(q) - 2, lo=(cfg.e0, cfg.e0, cfg.c0))
        for i in range(cfg.f0, 8):
            f = KORD[i]
            items.append(Item(kread(f, slot, 0), 0, kfirst(f) - LAT, cfg.kt0 + cfg.kts * i - NG))
    items += softmax_items(0, (cfg.sm0 if not first else 12), lambda q, kt: b0 + sdone(q, kt) + cfg.rdy, lambda q: b3 + pfirst(q) - 2)
    items += softmax_items(1, b3 - B3 + cfg.sm0 + 34, lambda q, kt: b2 + sdone(q, kt) + cfg.rdy, lambda q: INF, hi=(cfg.e0, cfg.e0, cfg.c0))
    for b in range(8):
        for jj in range(2):
            rdy = (b1 + pvpos(b, 1)) if not first else cfg.fbar + 1
            items.append(Item(vread(b, jj, slot, 0), max(rdy, bar_gap + 1), b3 + pvpos(b, 0) - LAT, (cfg.vt0 + cfg.vts * (2 * b + jj)) if not first else cfg.fbar + 1 + b + jj * 0.5))
    for i in range(cfg.f0):
        f = KORD[i]
        items.append(Item(kread(f, nslot, 1), max(b2 + klast(f), cfg.fbar + 1 if first else 0), min(ng - 1, ng + kfirst(f) - LAT), b3 - B3 + cfg.kt0 + cfg.kts * i))
    def chain(lst, targets, ready, dead=INF, dist=1, after=None):
        p = after; res = []
        for k, (ins, tgt) in enumerate(zip(lst, targets)):
            dd = dead[k] if isinstance(dead, list) else dead
            it = Item(ins, ready, dd, tgt, [(p, dist)] if p else []); items.append(it); p = it; res.append(it)
        return res
    if first:
        lst = []
        for n in range(cfg.l0 + 1): lst += [("V", vd()), ("K", kd())]
        if cfg.early: lst = lst[1:]
        p = None; tg = 1
        for k, (w, pr) in enumerate(lst):
            rdy = 1 if k < 8 - cfg.early else cfg.fbar + 2
            its = chain(pr, [tg, tg + 1], rdy, after=p, dist=1); p = its[1]; tg += 2 if k < 4 else 3
            sg.post.append((its[1], adv(w, False)))
        gaps[7].sh.append(vsite([("Q", 1, 0)]))
        if cfg.pre:
            for i, ins in enumerate(q_reads(QR, 1, 0, addr=TM, p="v")): items.append(Item(ins, 8, 11, 8 + 0.5 * i))
            gaps[16].pre += [lsite()] + pre_burst(AQ + 32) + [nop(1)]
        else:
          for i, ins in enumerate(q_reads(AQ + 32, 1, 0, addr=TM)):
            items.append(Item(ins, 8, 16 - LAT + qfirst(i // 4, i % 4) + 1, 8 + 0.5 * qfirst(i // 4, i % 4)))
        al = lsite(); al.needs = "all"
        gaps[cfg.fbar].sh += [al, vsite([("V", 0), ("K", 1)]), bar()]
        if cfg.barper == 2: gaps[ng - 1].va += [vsite([("V", 1), ("K", 2)]), bar()]
    else:
        dm = kv_dmas(t, LEAD)
        dmt = [cfg.x0 + cfg.xs * i for i in range(4)] if isbar else [cfg.x1 + cfg.xs * i for i in range(4)]
        kvits = chain(dm, dmt, (bar_gap + 2) if isbar else 1)
        for a in adv("K", (t + LEAD + 2) % 16 == 0): sg.sitems.append((a, ("after", kvits[1]), None))
        for a in adv("V", (t + LEAD + 1) % 16 == 0): sg.sitems.append((a, ("after", kvits[3]), None))
        if isbar:
            needs = [("V", 0), ("K", 1)] + ([("V", 1), ("K", 2)] if cfg.barper == 2 else [])
            if t in RAMP_IT:
                r = Ins("s_cbranch_vccnz L_ramp%dA\nL_back%d:" % (t, t), "RAMP", ["vcc"]); r.cmt = "ramp%d" % t
                gaps[bar_gap - 2].sh.append(r)
                k = RAMP_IT.index(t)
                for role in ("A", "B"):
                    L = [vsite(needs)]
                    for w, pr in (("V", vd()), ("K", kd())):
                        follower = (w == "V") == (role == "A")
                        if follower and k >= len(RAMP_IT) - cfg.flag_: continue
                        L += [setm0(pr[0].cmt), nop(1)] + pr + adv(w, False)
                    if t == RAMP_IT[-1]: L.append(salu("s_mov_b64 vcc, 0", [], ["vcc"]))
                    L.append(raw("s_branch L_back%d" % t, "BR"))
                    if role == "A": L[0:0] = [raw("s_bitcmp1_b32 s2, 3"), raw("s_cbranch_scc1 L_ramp%dB" % t)]
                    RAMPS["ramp%d%s" % (t, role)] = L
            gaps[bar_gap - 1].sh.append(vsite(needs))
            gaps[bar_gap].sh.append(bar())
    XT = [cfg.xt, cfg.xt + cfg.xts]
    if not first and t == 0:
        gaps[0].pre += epi_burst(0, defer=True)
        gaps[1].pre += LASTCHK[0]
        W = chain(o_writes(0), [1.5 + 3.5 * i for i in range(8)], 0, 38)
        chain(o_reads(0, -1), [29 + 1.1 * j for j in range(16)], 0, 47, dist=0, after=W[7])
        gaps[48].pre += epi_burst(1, defer=True)
        gaps[49].pre += LASTCHK[1]
        chain(o_writes(1)[:NW0], [49.5 + 4 * i for i in range(NW0)], 48)
        for i in range(16, 32) if not cfg.pre else []:
            items.append(Item(v1("v_accvgpr_mov_b32", "a%d" % (AQ + 32 + i), "a%d" % (AQN + i)), 0, b2 - 2, 2 * (i - 16)))
        for i in range(32) if cfg.pre else []:
            items.append(Item(v1("v_accvgpr_write_b32", "a%d" % (AQ + 32 + i), "v%d" % (QR + i)), 0, b2 - 2, i))
        fo = flag_ops()
        if cfg.finchk:
            i1 = Item(fo[0], 56, INF, 56); i2 = Item(fo[1], 56, 62, 57, [(i1, 0)]); items += [i1, i2]
            sg.sitems.append((fo[3], ("after2", i2), None)); sg.sitems.append(([fo[4], fo[5]], ("after2", i2), None))
            sg.sitems.append((fo[6], ("after2", i2), None)); sg.sitems.append((fo[7], ("after2", i2), None))
        else:
            gaps[60].pre += fo
    if t == 1:
        ws = o_writes(1)[NW0:]
        W = chain(ws, [0.5 + 4 * i for i in range(len(ws))], 0, [b1 + pvpos(2 * ((NW0 + i) % 4), (NW0 + i) // 4) - 1 for i in range(len(ws))])
        chain(o_reads(1, -1), [16 + 2 * j for j in range(16)], 0, INF, dist=0, after=W[-1])
        al = lsite(); al.needs = "all"; gaps[ng - 1].sh.insert(1, al)
    if not first and ST_MAP.get(t):
        ks = ST_MAP[t]
        tg = {1: [cfg.stgap], 2: XT, 4: [36, 42, 48, 54]}[len(ks)] if t not in (0, 1) else ([50, 54] if t == 1 else [20])
        st = chain([o_stores(k // 8)[k % 8] for k in ks], tg, 18, 65 if t != 0 else 30)
        for k, it in zip(ks, st):
            if k % 8 == 0: sg.head += [s2("s_add_u32", "s%d" % sOb, "s%d" % sOa, "4096")]
            if k == 7: sg.sitems.append((s2("s_add_u32", "s%d" % sOa, "s%d" % sOa, "8192"), ("after", it), None))
            if k == 15:
                sg.sitems.append((s2("s_add_u32", "s%d" % sOa, "s%d" % sOa, str(USTRIDE - 8192)), ("after", it), None))
            if k == (15 if cfg.stmode == 0 else 15):
                sg.sitems.append((smov("s%d" % (sO_ + 2), "s%d" % sONR), ("after", it), None))
    for h, its in ((1 - cfg.pre, QA_IT), (cfg.pre, QB_IT)):
        if t in its:
            k = its.index(t)
            if k == 0:
                sg.head += [s2("s_add_u32", "s%d" % sQa, "s%d" % sQo, str(8192 * h)), s2("s_add_u32", "s%d" % sQb, "s%d" % sQo, str(8192 * h + 4096))]
            npi = 8 // len(its)
            chain(q_dmas(h, 1)[npi * k:npi * k + npi], XT if npi == 2 else [34, 40, 46, 52], cfg.xt - 2, 64)
            if its is QB_IT and k == len(its) - 1: sg.tail += [s2("s_add_u32", "s%d" % sQo, "s%d" % sQo, str(USTRIDE))]
    if cfg.wbl2 and t == cfg.wbl2:
        sg.head += [raw("s_cmp_lg_u32 s%d, 0" % sCNT), raw("s_cbranch_scc1 L_nowb"), raw("s_cmp_lg_u32 s%d, 0" % sW), raw("s_cbranch_scc1 L_nowb"),
                    raw("buffer_wbl2 sc1"), raw("L_nowb:")]
    if t == QRD:
        gaps[29].sh.append(vsite([("Q", 1 - cfg.pre, 1)]))
        for i, ins in enumerate(q_reads(AQN, 1, 1) if not cfg.pre else q_reads(QR, 0, 1, p="v")):
            items.append(Item(ins, 30, INF, 30 + 4 * i))
        al = lsite(); al.needs = "all"; gaps[ng - 1].sh.insert(1, al)
    if cfg.fakepre and 8 <= t <= 14:
        for i in range(23):
            r = 2 + (i % 4)
            op = [v2("v_and_b32", "v%d" % r, "0xffff0000", "v10"), v2("v_lshlrev_b32", "v%d" % r, "16", "v10"), mul_(r), mul_(r), cvt_(8, 2, 3)][i % 5]
            items.append(Item(op, 0, INF, 3 * i))
    if cfg.fakepre and t == 15:
        for i in range(32):
            sg.tail += [v2("v_and_b32", "v3", "0xffff0000", "v10"), v2("v_lshlrev_b32", "v2", "16", "v10"),
                        valu("v_pk_mul_f32 v[4:5], v[2:3], v[6:7]", [], [], "K"), cvt_(8, 4, 5), v1("v_accvgpr_write_b32", "a%d" % (AQN + i), "v8")]
    if cfg.pre and QRD < t < 15:
        n = 14 - QRD; lo_ = (t - QRD - 1) * 32 // n; hi_ = (t - QRD) * 32 // n
        last = {}
        for j, i in enumerate(range(lo_, hi_)):
            k = i % 3; p = last.get(k); base = j * (ng - 6.0) / (hi_ - lo_)
            for m, op in enumerate(pre_ops(i, k)):
                it = Item(op, 0, INF, base + 2.2 * m, [(p, 0)] if p else []); items.append(it); p = it
            last[k] = p
    if cfg.pre and t == 15:
        gaps[15].sh.append(vsite([("Q", 1, 1)]))
        Wr = [Item(v1("v_accvgpr_write_b32", "a%d" % (AQ + i), "v%d" % (QR + i)), 16, 56, 16 + i) for i in range(32)]
        items += Wr
        for i, ins in enumerate(q_reads(QR, 1, 1, p="v")):
            items.append(Item(ins, 16, ng - 6, 22 + 4.5 * i, [(w, 1) for w in Wr[4 * i:4 * i + 4]]))
        sg.tail += [lsite()] + pre_burst(None, writes=False)
    if t == 15 and not cfg.pre:
        gaps[15].sh.append(vsite([("Q", 0, 1)]))
        for i, ins in enumerate(q_reads(AQ, 0, 1)):
            items.append(Item(ins, 16, ng - 1 - LAT, 17 + 5 * i))
        for i in range(16):
            items.append(Item(v1("v_accvgpr_mov_b32", "a%d" % (AQ + 32 + i), "a%d" % (AQN + i)), b3, INF, b3 + i))
    schedule(gaps, items, "it%d%s" % (t, "f" if first else ""))
    for it, ops in sg.post: gaps[it.gap].va += ops
    sg.gaps = gaps
    return sg

def place_scalar(sg):
    gaps = sg.gaps
    def busy(G): return sum(1 for x in G.sh if (x.kind not in ("LSITE", "VSITE")) ) + (1 if any(x.kind in ("LSITE", "VSITE") and x.n is not None for x in G.sh) else 0)
    cur = None; lastx = -1
    for g, G in enumerate(gaps):
        if any("s_mov_b32 m0" in x.text for x in G.pre): cur = None; lastx = max(lastx, g - 1)
        if any(x.kind == "RAMP" for x in G.sh): cur = None; lastx = max(lastx, g)
        for x in G.ds:
            if x.kind == "X" and "m0" in x.rd:
                if cur != x.cmt:
                    cands = [k for k in range(max(lastx, 0) if lastx < 0 else lastx + 1, g)]
                    free = [k for k in cands if busy(gaps[k]) == 0]
                    if cands:
                        k = free[-1] if free else cands[-1]
                        gaps[k].sh.append(setm0(x.cmt))
                    elif any("s_mov_b32 m0" in y.text for y in G.pre):
                        G.pre.append(setm0(x.cmt))
                    else:
                        gaps[lastx].va.append(setm0(x.cmt))
                    cur = x.cmt
                lastx = g
    lastpos = {}
    ntail = 0
    for ins, (how, it), _ in sg.sitems:
        lst = ins if isinstance(ins, list) else [ins]
        c = [k for k in range(max(it.gap + (1 if how == "after2" else 0), lastpos.get(id(it), -1)) + 1, len(gaps)) if busy(gaps[k]) == 0]
        if c: gaps[c[0]].sh += lst; lastpos[id(it)] = c[0]
        else: sg.tail[ntail:ntail] = lst; ntail += len(lst); lastpos[id(it)] = len(gaps)

def flat(sg):
    L = list(sg.head)
    for G in sg.gaps: L += G.flat()
    return L + sg.tail

def prologue():
    L = []
    A = L.append
    A(raw("s_cmp_ge_u32 s2, 256")); A(raw("s_cbranch_scc1 L_end"))
    A(raw("s_load_dwordx4 s[36:39], s[0:1], 0")); A(raw("s_load_dwordx4 s[40:43], s[0:1], 16"))
    A(v2("v_lshrrev_b32", "v1", "6", "v0")); A(v2("v_and_b32", "v0", "63", "v0"))
    A(valu("v_readfirstlane_b32 s%d, v1" % sW, ["v1"], ["s%d" % sW]))
    A(v2("v_lshrrev_b32", "v2", "4", "v0"))
    A(v2("v_and_b32", "v3", "15", "v0"))
    if cfg.xmap == 0:
        A(raw("s_and_b32 s45, s2, 7")); A(raw("s_lshr_b32 s46, s2, 4")); A(raw("s_lshl_b32 s45, s45, 4")); A(raw("s_add_u32 s45, s45, s46"))
    else:
        A(raw("s_and_b32 s45, s2, 7")); A(raw("s_lshr_b32 s46, s2, 4")); A(raw("s_lshl_b32 s46, s46, 3")); A(raw("s_add_u32 s45, s45, s46"))
    if cfg.rot:
        A(raw("s_mul_i32 s%d, s45, %d" % (sKt, cfg.rot * 8192))); A(raw("s_and_b32 s%d, s%d, 0x1ffff" % (sKt, sKt))); A(smov("s%d" % sVt, "s%d" % sKt))
        A(smov("s%d" % sKb, "0")); A(smov("s%d" % sVb, "0"))
    A(raw("s_lshl_b32 s45, s45, %d" % (19 if cfg.hmap == 0 else 17)))
    A(raw("s_bfe_u32 s46, s2, 0x10003")); A(raw("s_lshl_b32 s46, s46, 16")); A(raw("s_add_u32 s46, s46, s45"))
    A(s2("s_lshl_b32", "s%d" % sMK, "s%d" % sW, "11"))
    A(v2("v_lshlrev_b32", "v4", "1", "v2")); A(v2("v_xor_b32", "v4", "v3", "v4")); A(v2("v_lshlrev_b32", "v4", "4", "v4"))
    A(v3("v_lshl_add_u32", "v%d" % DA, "v2", "8", "v4")); A(v2("v_xor_b32", "v%d" % DB, "0x80", "v%d" % DA))
    A(smov("s%d" % sMKn, "s%d" % sMK)); A(smov("s%d" % sMVn, "s%d" % sMK))
    if cfg.cpf:
        A(raw("s_lshr_b32 s%d, s2, 3" % sT)); A(raw("s_lshl_b32 s%d, s%d, 2" % (sT, sT))); A(raw("s_add_u32 s%d, s%d, s%d" % (sT, sT, sW)))
        A(raw("s_and_b32 s%d, s%d, 31" % (sT, sT))); A(raw("s_lshl_b32 s%d, s%d, 10" % (sT, sT)))
        A(raw("s_min_u32 s%d, s%d, L_end - L_pc - 1024" % (sT, sT)))
        A(v2("v_lshlrev_b32", "v5", "4", "v0")); A(v2("v_add_u32", "v5", "s%d" % sT, "v5"))
        A(raw("s_getpc_b64 s[58:59]\nL_pc:"))
        A(Ins("global_load_dwordx4 v[72:75], v5, s[58:59]", "X", ["v5"], R("v", 72, 4)))
    A(s2("s_lshl_b32", "s%d" % sMS, "s%d" % sW, "13")); A(s2("s_add_u32", "s%d" % sMS, "s%d" % sMS, str(LDS_S)))
    A(s2("s_lshl_b32", "s%d" % sQo, "s%d" % sW, "14"))
    A(s2("s_lshl_b32", "s%d" % sOa, "s%d" % sW, "14")); A(s2("s_sub_u32", "s%d" % sOa, "s%d" % sOa, str(USTRIDE)))
    for b in (sQ_, sK_, sV_, sO_): A(smov("s%d" % (b + 3), "0x20000"))
    A(smov("s%d" % (sK_ + 2), str(3 * USTRIDE + 131072))); A(smov("s%d" % (sV_ + 2), str(3 * USTRIDE + 131072)))
    A(smov("s%d" % (sQ_ + 2), str(3 * USTRIDE + 65536))); A(smov("s%d" % sONR, str(3 * USTRIDE + 65536))); A(smov("s%d" % (sO_ + 2), "0"))
    assert not cfg.rot and not cfg.flag_
    if cfg.kvmap == 0: A(s2("s_lshl_b32", "s%d" % sKo, "s%d" % sW, "11"))
    elif cfg.kvmap == 1: A(s2("s_lshl_b32", "s%d" % sKo, "s%d" % sW, "15"))
    else:
        A(s2("s_and_b32", "s%d" % sKo, "s%d" % sW, "1")); A(s2("s_lshl_b32", "s%d" % sKo, "s%d" % sKo, "11"))
        A(s2("s_lshr_b32", "s%d" % sVo, "s%d" % sW, "1")); A(s2("s_lshl_b32", "s%d" % sVo, "s%d" % sVo, "16")); A(s2("s_add_u32", "s%d" % sKo, "s%d" % sKo, "s%d" % sVo))
    A(smov("s%d" % sVo, "s%d" % sKo))
    A(raw("s_waitcnt lgkmcnt(0)"))
    if cfg.stamp2: L += stamp()
    for b, p, o in ((sK_, 38, 45), (sQ_, 36, 46), (sV_, 40, 45), (sO_, 42, 46)):
        A(salu("s_add_u32 s%d, s%d, s%d" % (b, p, o), [], ["s%d" % b])); A(salu("s_addc_u32 s%d, s%d, 0" % (b + 1, p + 1), [], ["s%d" % (b + 1)]))
    def issue(lst):
        cur = None
        for x in lst:
            if x.kind == "X" and cur != x.cmt:
                A(setm0(x.cmt)); A(nop(1)); cur = x.cmt
            A(x)
    A(smov("s%d" % sQa, "s%d" % sQo)); A(s2("s_add_u32", "s%d" % sQb, "s%d" % sQo, "4096"))
    k0 = kd(); v0 = vd() if cfg.early else None
    q0 = q_dmas(0, 0)
    if cfg.early:
        issue([k0[0], q0[0], v0[0], k0[1], v0[1]] + adv("K", False) + adv("V", False) + q0[1:])
    else:
        issue(k0 + adv("K", False) + q0)
    A(s2("s_add_u32", "s%d" % sQa, "s%d" % sQo, "8192")); A(s2("s_add_u32", "s%d" % sQb, "s%d" % sQo, str(8192 + 4096)))
    A(s2("s_sub_u32", "s%d" % sT, "s%d" % sMS, "32768"))
    issue(q_dmas(1, 0, msgpr=sT))
    if cfg.stamp2: L += stamp()
    A(s2("s_add_u32", "s%d" % sQo, "s%d" % sQo, str(USTRIDE)))
    A(v2("v_and_b32", "v5", "7", "v3")); A(v2("v_lshlrev_b32", "v6", "1", "v5"))
    for s in range(4):
        A(v2("v_add_u32", "v7", str(4 * s), "v2")); A(v2("v_xor_b32", "v7", "v7", "v6")); A(v2("v_lshlrev_b32", "v7", "4", "v7"))
        A(v3("v_lshl_add_u32", "v%d" % (KA + s), "v3", "8", "v7"))
        A(v2("v_add_u32", "v%d" % (QA + s), "s%d" % sMS, "v%d" % (KA + s)))
        A(v2("v_subrev_u32", "v%d" % (TM + s), "0x8000", "v%d" % (QA + s)))
    A(v2("v_lshrrev_b32", "v76", "2", "v0"))
    A(v2("v_and_b32", "v77", "7", "v76")); A(v2("v_lshlrev_b32", "v77", "1", "v77"))
    A(valu("v_bfe_u32 v78, v0, 1, 1", ["v0"], ["v78"]))
    A(v2("v_and_b32", "v79", "1", "v0")); A(v2("v_lshlrev_b32", "v79", "3", "v79"))
    A(v3("v_lshl_add_u32", "v79", "v76", "8", "v79")); A(v2("v_add_u32", "v79", str(LDS_V), "v79"))
    for b in range(8):
        A(v2("v_add_u32", "v7", str(2 * b), "v78")); A(v2("v_xor_b32", "v7", "v7", "v77"))
        A(v3("v_lshl_add_u32", "v%d" % (VA + b), "v7", "4", "v79"))
    A(v2("v_lshlrev_b32", "v79", "8", "v3")); A(v2("v_add_u32", "v79", "s%d" % sMS, "v79"))
    A(v2("v_xor_b32", "v78", "v2", "v5"))
    A(v3("v_lshl_add_u32", "v%d" % OW, "v78", "4", "v79")); A(v2("v_xor_b32", "v%d" % (OW + 1), "64", "v%d" % OW))
    A(v2("v_and_b32", "v78", "12", "v3")); A(v2("v_and_b32", "v70", "1", "v3")); A(v3("v_lshl_add_u32", "v78", "v70", "1", "v78"))
    A(v2("v_xor_b32", "v78", "v78", "v2")); A(v2("v_lshlrev_b32", "v78", "4", "v78")); A(v3("v_lshl_add_u32", "v78", "v2", "8", "v78"))
    A(v2("v_and_b32", "v70", "2", "v3")); A(v3("v_lshl_add_u32", "v78", "v70", "2", "v78"))
    A(v2("v_add_u32", "v%d" % OR_, "s%d" % sMS, "v78"))
    for i, x in enumerate((16, 64, 80)): A(v2("v_xor_b32", "v%d" % (OR_ + 1 + i), str(x), "v%d" % OR_))
    A(v2("v_lshlrev_b32", "v%d" % OS, "4", "v0"))
    A(v2("v_and_b32", "v7", "3", "v0")); A(valu("v_cmp_eq_u32 vcc, 0, v7", ["v7"], ["vcc"])); A(v1("v_mov_b32", "v76", "0x3f803f80")); A(v1("v_mov_b32", "v77", "0"))
    A(valu("v_cndmask_b32 v7, v77, v76, vcc", ["v76", "v77", "vcc"], ["v7"]))
    for i in range(4):
        A(v1("v_accvgpr_write_b32", "a%d" % (AONE + i), "v7")); A(v1("v_accvgpr_write_b32", "a%d" % (AZERO + i), "v77"))
    A(smov("s%d" % sC, "0x%08x" % SCALE)); A(smov("s%d" % sC2, "0x%08x" % SCALE)); A(smov("s%d" % (sC2 + 1), "0x%08x" % SCALE))
    if cfg.fakepre: L += [v1("v_mov_b32", "v%d" % i, "1.0") for i in range(2, 12)]
    A(smov("s%d" % sLO, "0x%08x" % LO_BITS)); A(smov("s%d" % sRG, "0x%08x" % (HI_BITS - LO_BITS)))
    A(smov("s%d" % sBAD, "0")); A(salu("s_mov_b64 s[%d:%d], 0" % (sACC, sACC + 1), [], R("s", sACC, 2)))
    A(smov("s%d" % sCNT, "3"))
    A(salu("s_mov_b64 vcc, %d" % (-1 if RAMP_IT else 0), [], ["vcc"]))
    A(s2("s_add_u32", "s%d" % sOb, "s%d" % sOa, "4096"))
    if cfg.stamp2: L += stamp()
    A(vsite([("K", 0), ("Q", 0, 0)]))
    if cfg.stamp2: L += stamp()
    A(bar())
    if cfg.pre:
        L += q_reads(QR, 0, 0, p="v") + [kread(f, 0, 0) for f in KORD] + [lsite()]
        b = pre_burst(AQ)
        for i in range(0, len(b), 20): L += b[i:i + 20] + [lsite()]
        return L + [nop(1), lsite()]
    qr = q_reads(AQ, 0, 0)
    seen = set()
    for kt, q, s in QKSEQ:
        if ("k", kt, s) not in seen: A(kread(4 * kt + s, 0, 0)); seen.add(("k", kt, s))
        if ("q", q, s) not in seen: A(qr[4 * q + s]); seen.add(("q", q, s))
    A(lsite())
    return L

def tail_seg():
    L = []
    for it in softmax_items(1, 0, lambda q, kt: 0, lambda q: 99, lo=(cfg.e0, cfg.e0, cfg.c0)):
        L.append(it.ins)
        if it.ins.kind == "T" and it.ins.text == exp_(S_(1, *GRP[3]) + 3).text: L.append(nop(1))
    if cfg.stmode == 1:
        L += [o_stores(1)[7], s2("s_add_u32", "s%d" % sOa, "s%d" % sOa, str(USTRIDE - 8192))]
    L.append(s2("s_add_u32", "s%d" % sOb, "s%d" % sOa, "4096"))
    L += epi_burst(0)
    gaps = [Gap(m) for m in pv_block(1, False)]
    for g, w in enumerate(o_writes(0)): gaps[g].ds.append(w)
    rd = o_reads(0, 0)
    for g in range(8): gaps[8 + g].ds += rd[2 * g:2 * g + 2]
    for G in gaps: L += G.flat()
    st = o_stores(0)
    L += [lsite()] + st[:4]
    b1 = epi_burst(1)
    k = [i for i, x in enumerate(b1) if x.kind == "K"][-1] + 1
    L += b1[:k] + [lsite()] + st[4:] + b1[k:]
    L += [s2("s_add_u32", "s%d" % sOa, "s%d" % sOa, "8192"), s2("s_add_u32", "s%d" % sOb, "s%d" % sOb, "8192")]
    w1 = o_writes(1); r1 = o_reads(1, 0); st = o_stores(1)
    L += w1[:4] + r1[:8] + w1[4:] + r1[8:]
    L += [lsite()] + st[:2] + [lsite()] + st[2:4] + [lsite()] + st[4:6] + [lsite()] + st[6:]
    L += flag_ops()
    return L

def slow_path():
    T = []
    A = T.append
    def emit(l):
        for x in l: A(x.text)
    def wait(): A("s_waitcnt vmcnt(0) lgkmcnt(0)");
    A("s_barrier")
    if cfg.force_slow: A("s_mov_b32 s%d, 15" % sBAD)
    A("s_cmp_eq_u32 s%d, 0" % sBAD); A("s_cbranch_scc1 L_end")
    A("s_lshl_b32 s45, s%d, 13" % sW)
    for i in range(4): A("v_add_u32 v%d, s45, v%d" % (KA + i, KA + i))
    for i in range(8): A("v_add_u32 v%d, s45, v%d" % (VA + i, VA + i))
    A("s_add_u32 s46, s45, %d" % LDS_V)
    A("s_lshl_b32 s%d, s%d, 14" % (sQo, sW))
    A("s_lshl_b32 s%d, s%d, 14" % (sOo, sW))
    A("v_mov_b32 v%d, v%d" % (TS + 4, DA)); A("v_mov_b32 v%d, v%d" % (TS + 5, DB))
    A("s_mov_b32 s%d, 0" % sCNT)
    A("L_slow_unit:")
    A("s_bitcmp1_b32 s%d, 3" % sBAD); A("s_cbranch_scc0 L_slow_next")
    wait()
    for h in range(2):
        A("s_add_u32 s%d, s%d, %d" % (sQa, sQo, h * 8192)); A("s_add_u32 s%d, s%d, 4096" % (sQb, sQa))
        cur = None
        for x in q_dmas(h, 0):
            if cur != x.cmt: A(setm0(x.cmt).text); A("s_nop 0"); cur = x.cmt
            A(x.text)
        wait(); emit(q_reads(AQ + 32 * h, h, 0)); wait()
    def tile_dma(sr, m0s):
        for i in range(8):
            if i % 4 == 0:
                A("s_add_u32 m0, s%d, %d" % (m0s, (i // 4) * 4096)); A("s_add_u32 s%d, s%d, %d" % (sT, sKo, (i // 4) * 4096))
            A("buffer_load_dwordx4 v%d, %s, s%d offen offset:%d lds" % (TS + 4 + i % 2, srd(sr), sT, (i % 4) * 1024))
    def qk_all():
        emit([kread(f, 0, 0) for f in range(8)]); wait()
        emit(qk_block(0) + qk_block(1)); A("s_nop 7"); A("s_nop 3")
    for i in range(4): A("v_mov_b32 v%d, 0xff800000" % (MX + i))
    A("s_mov_b32 s%d, s%d" % (sKo, sCNT)); A("s_add_u32 s%d, s%d, 131072" % (sVo, sCNT))
    A("L_slow_p1:")
    tile_dma(sK_, 45); wait(); qk_all()
    for h in range(2):
        for q in range(2):
            a = S_(h, q, 0)
            for i in range(4): A("v_max3_f32 v%d, v%d, v%d, v%d" % (MX + 2 * h + q, a + 2 * i, a + 2 * i + 1, MX + 2 * h + q))
    A("s_add_u32 s%d, s%d, 8192" % (sKo, sKo)); A("s_cmp_lt_u32 s%d, s%d" % (sKo, sVo)); A("s_cbranch_scc1 L_slow_p1")
    for op in ("v_permlane32_swap_b32", "v_permlane16_swap_b32"):
        for i in range(4): A("v_mov_b32 v%d, v%d" % (NM + i, MX + i))
        A("s_nop 1")
        for i in range(4): A("%s v%d, v%d" % (op, NM + i, MX + i))
        A("s_nop 1")
        for i in range(4): A("v_max_f32 v%d, v%d, v%d" % (MX + i, MX + i, NM + i))
    for i in range(4): A("v_mul_f32 v%d, s%d, v%d" % (NM + i, sC, MX + i))
    for i in range(128): A("v_mov_b32 v%d, 0" % (OB + i))
    for i in range(16): A("v_accvgpr_write_b32 a%d, 0" % (AL + i))
    A("s_mov_b32 s%d, s%d" % (sKo, sCNT))
    A("L_slow_p2:")
    tile_dma(sK_, 45); tile_dma(sV_, 46); wait(); qk_all()
    emit([vread(b, jj, 0, 0) for b in range(4) for jj in range(2)])
    for h in range(2):
        for q in range(2):
            a = S_(h, q, 0)
            for i in range(8): A("v_fma_f32 v%d, v%d, s%d, -v%d" % (a + i, a + i, sC, NM + 2 * h + q))
            for i in range(8): A("v_exp_f32 v%d, v%d" % (a + i, a + i))
            A("s_nop 0")
            for i in range(4): A(cvt_(P_(h, q) + i, a + 2 * i, a + 2 * i + 1).text)
    emit([vread(b, jj, 0, 0) for b in range(4, 8) for jj in range(2)])
    wait()
    emit(pv_block(0, False) + pv_block(1, False))
    A("s_add_u32 s%d, s%d, 8192" % (sKo, sKo)); A("s_cmp_lt_u32 s%d, s%d" % (sKo, sVo)); A("s_cbranch_scc1 L_slow_p2")
    A("s_nop 7"); A("s_nop 3")
    for h in range(2):
        emit(epi_burst(h, check=False)); emit(o_writes(h) + o_reads(h, 0))
        A("s_add_u32 s%d, s%d, %d" % (sOa, sOo, h * 8192)); A("s_add_u32 s%d, s%d, 4096" % (sOb, sOa))
        wait(); emit(o_stores(h)); wait()
    A("L_slow_next:")
    A("s_lshl_b32 s%d, s%d, 1" % (sBAD, sBAD)); A("s_and_b32 s%d, s%d, 15" % (sBAD, sBAD))
    for r in (sCNT, sQo, sOo): A("s_add_u32 s%d, s%d, %d" % (r, r, USTRIDE))
    A("s_cmp_lg_u32 s%d, 0" % sBAD); A("s_cbranch_scc1 L_slow_unit")
    return T

def stamp():
    if not cfg.stamp: return []
    return [raw("s_memtime s[58:59]"), raw("s_memrealtime s[62:63]"), raw("s_waitcnt lgkmcnt(0)"),
            raw("s_mov_b32 m0, s57"), raw("s_nop 0"), raw("v_writelane_b32 v38, s58, m0"), raw("v_writelane_b32 v39, s62, m0"), raw("s_add_u32 s57, s57, 1")]
def stamp_out():
    if not cfg.stamp: return []
    if cfg.dbgwg >= 0:
        return [x.text for x in stamp()] + ["s_cmp_lg_u32 s2, %d" % cfg.dbgwg, "s_cbranch_scc1 L_nodbg", "s_cmp_lg_u32 s%d, 0" % sW, "s_cbranch_scc1 L_nodbg",
            "s_load_dwordx2 s[36:37], s[0:1], 32", "s_waitcnt lgkmcnt(0)", "s_mov_b32 s38, 64", "s_mov_b32 s39, 0x20000",
            "v_readfirstlane_b32 s45, v39", "v_lshrrev_b32 v41, 2, v%d" % OS, "s_nop 1", "v_subrev_u32 v39, s45, v39",
            "buffer_store_dword v39, v41, s[36:39], 0 offen", "L_nodbg:"]
    return [x.text for x in stamp()] + ["s_load_dwordx2 s[36:37], s[0:1], 40", "s_waitcnt lgkmcnt(0)", "s_mov_b32 s38, 0x1000000", "s_mov_b32 s39, 0x20000",
            "s_lshl_b32 s45, s2, 2", "s_add_u32 s45, s45, s%d" % sW, "s_lshl_b32 s45, s45, 9", "v_lshrrev_b32 v41, 2, v%d" % OS,
            "buffer_store_dword v38, v41, s[36:39], s45 offen", "buffer_store_dword v39, v41, s[36:39], s45 offen offset:256"]
def main():
    sgs = {"it0f": build_iter(0, True)}
    for t in range(16): sgs["it%d" % t] = build_iter(t)
    def segs():
        d = {"pro": pro, "tail": tl}
        d.update(RAMPS)
        for k, s in sgs.items(): d[k] = flat(s)
        return d
    pro = prologue(); tl = tail_seg()
    if cfg.dbgspan:
        pro[2:2] = [raw("s_memrealtime s[60:61]"), raw("s_memtime s[62:63]"), raw("s_waitcnt lgkmcnt(0)"), raw("s_mov_b32 s56, s60"), raw("s_mov_b32 s57, s62")]
        i = [k for k, x in enumerate(pro) if x.kind == "BAR"][0]
        pro[i + 1:i + 1] = [raw("s_memrealtime s[58:59]")]
    if cfg.stamp:
        pro[2:2] = [raw("s_mov_b32 s57, 0")] + stamp()
        i = [k for k, x in enumerate(pro) if x.kind == "BAR"][0]
        pro[i + 1:i + 1] = stamp()
        for t in range(0, 16, cfg.stamp): sgs["it%d" % t].head[0:0] = stamp()
        tl[0:0] = stamp()
        if cfg.stamp3:
            G = sgs["it0"].gaps
            G[0].pre += stamp(); G[16].pre += stamp(); G[34].pre += stamp(); G[48].pre[0:0] = stamp(); G[48].pre += stamp()
            sgs["it1"].head[0:0] = stamp(); sgs["it1"].gaps[34].pre += stamp(); sgs["it2"].head[0:0] = stamp(); sgs["it3"].head[0:0] = stamp()
        if cfg.stamp2:
            sgs["it0f"].gaps[16].pre += stamp(); sgs["it0f"].gaps[cfg.fbar + 1].pre += stamp(); sgs["it0f"].tail[0:0] = stamp()
    traces = []
    for role in ("A", "B"):
        x = dict(role=role, lagK=cfg.flag_ if role == "B" else 0, lagV=cfg.flag_ if role == "A" else 0)
        trace = [("pro", dict(T=0, u=0, first=1, **x)), ("it0f", dict(T=0, u=0, first=1, **x))]
        for u in range(4):
            for t in range(16):
                if (u, t) != (0, 0): trace.append(("it%d" % t, dict(T=16 * u + t, u=u, first=(u == 0 and t < 8), **x)))
        trace.append(("tail", dict(T=64, u=3, **x)))
        traces.append(trace)
    sgs["it0f"].tail.append(raw("s_branch L_it1", "BR"))
    sgs["it15"].tail += [s2("s_sub_u32", "s%d" % sCNT, "s%d" % sCNT, "1"), raw("s_cbranch_scc0 L_it0", "BR")]
    insert_waits(segs(), traces)
    for k, s in sgs.items():
        br = [x for x in s.tail if x.kind == "BR" or "s_sub_u32 s%d" % sCNT in x.text]
        s.tail = [x for x in s.tail if x not in br]
        place_scalar(s)
        s.tail += br
    fs = {k: finalize(v) for k, v in segs().items()}
    errs = sum((verify(fs, tr, {"K": 8, "V": 16, "Q": 8, "O": 16}) for tr in traces), [])
    for e in errs[:40]: sys.stderr.write("ERR " + e + "\n")
    tot = 0
    for k in ["pro", "it0f"] + ["it%d" % t for t in range(16)] + ["tail"]:
        est = issue_estimate(fs[k]); sys.stderr.write("%s:%d " % (k, est))
        if k.startswith("it") and k != "it0f": tot += est
    if cfg.stamp3:
        for k in ("it0", "it1", "it2"):
            parts = [[]]
            for x in fs[k]:
                if "s_memtime" in x.text: parts.append([])
                parts[-1].append(x)
            sys.stderr.write("\n%s parts %s" % (k, [issue_estimate(p) for p in parts]))
    sys.stderr.write("\nunit estimate %d cycles, errors %d\n" % (tot, len(errs)))
    out = []
    hdr = open(os.path.join(os.path.dirname(os.path.abspath(__file__)), "..", "cdna_kernels", NAME + ".s.ref")).read().split("; Override")[0]
    out.append(hdr.rstrip())
    out.append("; @launch grid=(256,1,1) block=(256,1,1) lds=163840")
    out.append('.amdgcn_target "amdgcn-amd-amdhsa--gfx950"\n.text\n.globl %s_kernel\n.p2align 8\n.type %s_kernel,@function\n%s_kernel:' % (NAME, NAME, NAME))
    par = {}
    def dump(k):
        out.append("; ---- " + k)
        for x in fs[k]:
            if cfg.nocomp and k != "pro" and x.kind in ("M", "V", "T", "K", "D", "W"):
                par[x.kind] = par.get(x.kind, 0) + 1
                if cfg.nocomp == 1 or par[x.kind] % cfg.nocomp == 0: continue
            if cfg.nomem and k != "pro" and x.kind == "X" and (cfg.nomem == 1 or "store" in x.text): continue
            if cfg.nostore and x.kind == "X" and "store" in x.text: continue
            out.append("  " + x.text)
            if cfg.nocomp and "m0" in x.wr: out.append("  s_nop 0")
    dump("pro"); dump("it0f")
    for k in RAMPS: out.append("L_%s:" % k); dump(k)
    out.append(".p2align 6\nL_it0:"); dump("it0"); out.append("L_it1:")
    for t in range(1, 16): dump("it%d" % t)
    dump("tail")
    if cfg.dbgspan:
        out += ["  " + x for x in ["s_waitcnt vmcnt(0)", "s_memrealtime s[60:61]", "s_memtime s[62:63]", "s_load_dwordx2 s[36:37], s[0:1], 32", "s_waitcnt lgkmcnt(0)", "s_mov_b32 s38, 256", "s_mov_b32 s39, 0x20000",
            "s_not_b32 s45, s56", "v_mov_b32 v2, s45", "v_mov_b32 v3, s58", "v_mov_b32 v4, s60", "v_mov_b32 v5, s56", "s_not_b32 s45, s60", "v_mov_b32 v6, s45", "s_sub_u32 s45, s62, s57", "v_mov_b32 v7, s45", "v_mov_b32 v1, 0",
            "s_mov_b64 exec, 1",
            "buffer_atomic_umax v2, v1, s[36:39], 0 offen", "buffer_atomic_umax v3, v1, s[36:39], 0 offen offset:4", "buffer_atomic_umax v4, v1, s[36:39], 0 offen offset:8",
            "buffer_atomic_umax v5, v1, s[36:39], 0 offen offset:12", "buffer_atomic_umax v6, v1, s[36:39], 0 offen offset:16", "buffer_atomic_umax v7, v1, s[36:39], 0 offen offset:20", "s_mov_b64 exec, -1"]]
    if cfg.stamp:
        out.append("  s_waitcnt vmcnt(0)")
        out += [("  " + x if not x.endswith(":") else x) for x in stamp_out()]
    if cfg.nocomp or cfg.nomem or cfg.fakepre: out.append("  s_mov_b32 s%d, 0" % sBAD)
    out += ["  " + x if not x.endswith(":") else x for x in slow_path()]
    out.append("L_end:\n  s_endpgm")
    out.append('.section .rodata,"a"\n.p2align 6\n.amdhsa_kernel %s_kernel' % NAME)
    out.append("  .amdhsa_next_free_vgpr 512\n  .amdhsa_next_free_sgpr 64\n  .amdhsa_accum_offset 256\n  .amdhsa_group_segment_fixed_size 0\n  .amdhsa_kernarg_size 48\n  .amdhsa_user_sgpr_count 2\n  .amdhsa_user_sgpr_kernarg_segment_ptr 1\n  .amdhsa_system_sgpr_workgroup_id_x 1\n.end_amdhsa_kernel")
    open(sys.argv[1], "w").write("\n".join(out) + "\n")
    if errs: sys.exit(1)
main()
```

```python
import sys, os, struct, math
from core import *

class Cfg:
    barper = 2
    finchk = 1
    lat = 7
    k_aux = ""
    v_aux = ""
    kv_aux = "nt"
    q_aux = "nt"
    o_aux = "nt"
    e0 = 10; c0 = 4; f0 = 6
    force_slow = 0
    hmap = 1
    rot = 0
    xmap = 0
    stamp = 0
    dbgwg = -1
    stamp3 = 0
    stamp2 = 0
    nocomp = 0
    nomem = 0
    nostore = 0
    dbgspan = 0
    lag = 1.5
    lead = 6
    pre = 0
    wbl2 = 0
    kvmap = 2
    fakepre = 0
    x0 = 17
    x1 = 9
    xs = 8
    xts = 8
    xt = 52
    flag_ = 0
    stmode = 0
    qmaj = 0
    bargap = 14
    sm0 = 14
    qkord = 2
    kt0 = 54.0
    kts = 2.48
    vt0 = 18.0
    vts = 2.48
    stgap = 48
    l0 = 3
    cpf = 1
    qa0 = 2
    early = 1
    fbar = 22
    rdy = 5
cfg = Cfg()
for a in sys.argv[2:]:
    k, v = a.split("=")
    setattr(cfg, k, type(getattr(cfg, k))(v))

NAME = "standalone__mha_softmax__near_ridge"
KA = 16; VA = 20; DA = 28; DB = 29; QA = 30; OW = 34; OS = 40; OR_ = 8; QR = 48; PT = 2
ET = 42; ER = 44; EU = 36
MX = 50; NM = 54; TM = 12; TS = 58
PB = 80; SB = 96; OB = 128
def S_(h, q, kt): return SB + 16 * h + 8 * q + 4 * kt
def P_(h, q): return PB + 8 * h + 4 * q
def O_(qt, b): return OB + 32 * qt + 4 * b
AQ = 0; AQN = 64; AK = 96; AV = 128; AO = 160; AL = 224; AONE = 240; AZERO = 244; ACHK = 248
sQ_, sK_, sV_, sO_ = 4, 8, 12, 16
sW = 20; sKo = 21; sVo = 22; sMK = 23; sMV = 24; sQo = 25; sOo = 26; sC = 27; sBAD = 28; sUB = 29; sACC = 30; sCMP = 32
sLO = 34; sRG = 35; sMS = 44; sCNT = 47; sONR = 48; sQa = 50; sQb = 51; sOa = 52; sOb = 53; sT = 54; sKt = 55; sVt = 56; sKb = 62; sVb = 63; sMKn = 29; sMVn = 49; sC2 = 60
LDS_V = 65536; LDS_S = 131072
SCALE = struct.unpack("<I", struct.pack("<f", math.log2(math.e) / math.sqrt(128.0)))[0]
LO_BITS = (127 - (40 if cfg.finchk else 24)) << 23
HI_BITS = (127 + (126 if cfg.finchk else 24)) << 23

def srd(b): return "s[%d:%d]" % (b, b + 3)
def srdr(b): return R("s", b, 4)

def v2(op, d, a, b, kind="V"):
    rd = [x for x in (a, b) if isinstance(x, str) and x[0] in "vsa" and x[1:].isdigit()]
    return valu("%s %s, %s, %s" % (op, d, a, b), rd, [d], kind)
def v1(op, d, a, kind="V"):
    rd = [a] if isinstance(a, str) and a[0] in "vsa" and a[1:].isdigit() else []
    return valu("%s %s, %s" % (op, d, a), rd, [d], kind)
def v3(op, d, a, b, c):
    rd = [x for x in (a, b, c) if isinstance(x, str) and x[0] in "vsa" and x[1:].isdigit()]
    return valu("%s %s, %s, %s, %s" % (op, d, a, b, c), rd, [d])
def s2(op, d, a, b):
    rd = [x for x in (a, b) if isinstance(x, str) and (x[0] == "s" or x == "m0")]
    return salu("%s %s, %s, %s" % (op, d, a, b), rd, [d, "scc"])
def smov(d, a):
    return salu("s_mov_b32 %s, %s" % (d, a), [a] if isinstance(a, str) and a[0] == "s" else [], [d])
def mul_(r): return v2("v_mul_f32", "v%d" % r, "s%d" % sC, "v%d" % r)
def exp_(r): return v1("v_exp_f32", "v%d" % r, "v%d" % r, "T")
def cvt_(d, a, b): return v2("v_cvt_pk_bf16_f32", "v%d" % d, "v%d" % a, "v%d" % b)
def dsr128(dp, d, addr, off, tag):
    assert 0 <= off < 65536
    return Ins("ds_read_b128 %s, v%d offset:%d" % (rng(dp, d, 4), addr, off), "D", ["v%d" % addr], R(dp, d, 4), tag=tag)
def dstr(d, addr, off, tag):
    assert 0 <= off < 65536
    return Ins("ds_read_b64_tr_b16 %s, v%d offset:%d" % (rng("a", d, 2), addr, off), "D", ["v%d" % addr], R("a", d, 2), tag=tag)
def dsw64(addr, src, off):
    return Ins("ds_write_b64 v%d, %s offset:%d" % (addr, rng("v", src, 2), off), "W", ["v%d" % addr] + R("v", src, 2), [])
def dma(voff, sr, soff, off, tag, m0, aux=""):
    if sr == sK_ and cfg.k_aux: aux = cfg.k_aux
    if sr == sV_ and cfg.v_aux: aux = cfg.v_aux
    i = Ins("buffer_load_dwordx4 v%d, %s, s%d offen offset:%d %slds" % (voff, srd(sr), soff, off, aux + " " if aux else ""), "X",
            ["v%d" % voff, "s%d" % soff, "m0"] + srdr(sr), [], tag=tag)
    i.cmt = m0
    return i
def store(src, soff, off, tag=None):
    return Ins("buffer_store_dwordx4 %s, v%d, %s, s%d offen offset:%d%s" % (rng("a", src, 4), OS, srd(sO_), soff, off, " " + cfg.o_aux if cfg.o_aux else ""), "X",
               R("a", src, 4) + ["v%d" % OS, "s%d" % soff] + srdr(sO_), [], tag=tag)
def setm0(m0):
    return s2("s_add_u32", "m0", "s%d" % m0[0], str(m0[1]))

if cfg.qkord == 0:   QKSEQ = [(f // 4, q, f % 4) for f in range(8) for q in range(2)]
elif cfg.qkord == 1: QKSEQ = [(kt, q, s if q == 0 else 3 - s) for kt in range(2) for q in range(2) for s in range(4)]
else:                QKSEQ = [(c // 2, (0, 1, 1, 0)[c], s if c % 2 == 0 else 3 - s) for c in range(4) for s in range(4)]
def kfirst(f): return min(i for i, (kt, q, s) in enumerate(QKSEQ) if 4 * kt + s == f)
def klast(f): return max(i for i, (kt, q, s) in enumerate(QKSEQ) if 4 * kt + s == f)
def sdone(q, kt): return max(i for i, x in enumerate(QKSEQ) if x[:2] == (kt, q))
def qfirst(q, s): return min(i for i, x in enumerate(QKSEQ) if x[1:] == (q, s))
GRP = sorted([(q, kt) for q in range(2) for kt in range(2)], key=lambda g: sdone(*g))
KORD = sorted(range(8), key=kfirst)
def qk_block(h):
    L = []; seen = set()
    for kt, q, s in QKSEQ:
        L.append(mfma("v", S_(h, q, kt), "a", AK + 4 * (4 * kt + s), "a", AQ + 16 * (2 * h + q) + 4 * s, czero=((kt, q) not in seen)))
        seen.add((kt, q))
    return L
def pvpos(b, q):
    if cfg.qmaj: return 9 * q + 1 + b
    return 2 * b + q + (1 if b >= 3 else 0) + (1 if b >= 6 else 0)
def pfirst(q): return 9 * q if cfg.qmaj else q
def pv_block(h, first):
    L = []
    if cfg.qmaj:
        for q in range(2):
            L.append(mfma("a", AL + 4 * (2 * h + q), "a", AONE, "v", P_(h, q), czero=first))
            for b in range(8): L.append(mfma("v", O_(2 * h + q, b), "a", AV + 4 * b, "v", P_(h, q), czero=first))
        return L
    for b in range(8):
        for q in range(2):
            L.append(mfma("v", O_(2 * h + q, b), "a", AV + 4 * b, "v", P_(h, q), czero=first))
        if b in (2, 5):
            q = b // 4
            L.append(mfma("a", AL + 4 * (2 * h + q), "a", AONE, "v", P_(h, q), czero=first))
    return L

class Item:
    def __init__(self, ins, ready, dead, target, deps=()):
        self.ins = ins; self.ready = ready; self.dead = dead; self.target = target; self.deps = list(deps); self.gap = None
        k = ins.kind
        self.cost = 8 if k in ("T", "X", "W") else 4
class Gap:
    def __init__(self, m):
        self.pre = []; self.m = m; self.sh = [lsite()]; self.ds = []; self.va = []
    def flat(self): return self.pre + [self.m] + self.sh + self.ds + self.va

def schedule(gaps, items, name):
    n = len(gaps)
    todo = sorted(items, key=lambda i: (i.target, i.dead))
    for g in range(n):
        G = gaps[g]
        def ok(it):
            if it.ready > g: return False
            for d, dist in it.deps:
                if d.gap is None or d.gap + dist > g: return False
            return True
        def place(it):
            it.gap = g; todo.remove(it)
            (G.ds if it.ins.kind in ("D", "W", "X") else G.va).append(it.ins)
        def fits(it, used):
            k = it.ins.kind
            if any(x.kind == "X" for x in G.ds): return False
            if k == "X": return used == 0
            return True
        used = 0
        for it in [x for x in todo if x.dead <= g]:
            if ok(it) and fits(it, used): place(it); used += it.cost
        while used < 8:
            c = [it for it in todo if ok(it) and fits(it, used) and it.cost <= 8 - used]
            if not c: break
            it = c[0]
            if used == 0 and it.cost == 4:
                four = [x for x in c[1:] if x.cost == 4 or False]
                dep_next = [x for x in todo if x.cost == 4 and x is not it and x.ready <= g and all((d.gap is not None and d.gap + dist <= g) or (d is it and dist == 0) for d, dist in x.deps)]
                eight = [x for x in c if x.cost == 8]
                if not dep_next and eight and it.dead > g: it = eight[0]
            place(it); used += it.cost
        c = [it for it in todo if ok(it) and fits(it, used) and it.cost == 4 and it.target < g - cfg.lag]
        if c and used > 0:
            place(c[0]); used += 4
        while True:
            over = False
            dem = 0
            for it in sorted(todo, key=lambda i: min(i.dead, n - 1)):
                dem += 12 if it.ins.kind == "X" else it.cost
                d = min(it.dead, n - 1)
                if dem > 12 * (d - g): over = True; break
            if not over: break
            c = sorted([it for it in todo if ok(it) and fits(it, used)], key=lambda i: (min(i.dead, n - 1), i.target))
            if not c: break
            place(c[0]); used += c[0].cost
    if todo:
        raise Exception("%s: unscheduled items: %s" % (name, [(i.ins.text, i.ready, i.dead) for i in todo]))
    for it in items:
        if it.gap > it.dead: raise Exception("%s: deadline miss %s gap %d > %d" % (name, it.ins.text, it.gap, it.dead))

def softmax_items(h, base, rdy, dead, lo=(0, 0, 0), hi=(16, 16, 8), carry=None):
    its = []; M = {}; E = {}
    def reg(e):
        q, kt = GRP[e // 4]
        return q, kt, S_(h, q, kt) + e % 4
    for e in range(lo[0], hi[0] if not (cfg.fakepre or cfg.pre) else lo[0]):
        q, kt, r = reg(e)
        M[e] = Item(mul_(r), rdy(q, kt), dead(q) - 2, base + 2 * e); its.append(M[e])
    for e in range(lo[1], hi[1]):
        q, kt, r = reg(e)
        E[e] = Item(exp_(r), rdy(q, kt), dead(q) - 1, base + 2 * e + 1, [(M[e], 0)] if e in M else []); its.append(E[e])
    for j in range(lo[2], hi[2]):
        q, kt, r = reg(2 * j)
        deps = [(E[e], 1) for e in (2 * j, 2 * j + 1) if e in E]
        its.append(Item(cvt_(P_(h, q) + 2 * kt + j % 2, r, r + 1), rdy(q, kt), dead(q), base + 4 * j + 4, deps))
    return its

def kread(f, slot, dT):
    return dsr128("a", AK + 4 * f, KA + f % 4, slot * 8192 + (f // 4) * 4096, ("K", dT))
def vread(b, jj, slot, dT):
    return dstr(AV + 4 * b + 2 * jj, VA + b, slot * 8192 + jj * 4096, ("V", dT))
_uid = [0]
def kd(lead=None):
    _uid[0] += 1
    L = [dma(DA, sK_, sKo, 0, ("K", "a"), (sMKn, 0, _uid[0]), cfg.kv_aux), dma(DB, sK_, sKo, 1024, ("K", "b"), (sMKn, 0, _uid[0]), cfg.kv_aux)]
    for x in L: x.needs = lead
    return L
def vd(lead=None):
    _uid[0] += 1
    L = [dma(DA, sV_, sVo, 0, ("V", "a"), (sMVn, LDS_V, _uid[0]), cfg.kv_aux), dma(DB, sV_, sVo, 1024, ("V", "b"), (sMVn, LDS_V, _uid[0]), cfg.kv_aux)]
    for x in L: x.needs = lead
    return L
def kv_dmas(t, lead):
    return kd(lead + 1) + vd(lead)
def q_dmas(h, du, msgpr=sMS, mconst=0):
    return [dma(DA if i % 2 == 0 else DB, sQ_, sQa if i < 4 else sQb, (i % 4) * 1024, ("Q", h, du), (msgpr, mconst + (i // 4) * 4096), cfg.q_aux) for i in range(8)]
def q_reads(dst, h, du, addr=QA, p="a"):
    return [dsr128(p, dst + 16 * q + 4 * s, addr + s, q * 4096, ("Q", h, du)) for q in range(2) for s in range(4)]

def pre_ops(i, k):
    r = QR + i; a = PT + 2 * k
    return [v2("v_lshlrev_b32", "v%d" % a, "16", "v%d" % r), v2("v_and_b32", "v%d" % (a + 1), "0xffff0000", "v%d" % r), mul_(a), mul_(a + 1), cvt_(r, a, a + 1)]
def pre_burst(dst, writes=True):
    L = []
    def stage(i, n):
        r = QR + i; a = PT + 2 * (i % 3)
        if n == 0: return [v2("v_lshlrev_b32", "v%d" % a, "16", "v%d" % r), v2("v_and_b32", "v%d" % (a + 1), "0xffff0000", "v%d" % r)]
        if n == 1: return [valu("v_pk_mul_f32 v[%d:%d], v[%d:%d], s[%d:%d]" % (a, a + 1, a, a + 1, sC2, sC2 + 1), R("v", a, 2), R("v", a, 2), "K")]
        if n == 2: return [cvt_(r, a, a + 1)]
        return [v1("v_accvgpr_write_b32", "a%d" % (dst + i), "v%d" % r)] if writes else []
    for i in range(32 + 3):
        for n in (3, 2, 1, 0):
            if 0 <= i - n < 32: L += stage(i - n, n)
    return L
def epi_burst(h, check=True, defer=False):
    L = []
    for q in range(2): L.append(v1("v_accvgpr_read_b32", "v%d" % (ET + q), "a%d" % (AL + 4 * (2 * h + q))))
    for q in range(2): L.append(v1("v_rcp_f32", "v%d" % (ER + 2 * q), "v%d" % (ET + q), "T"))
    if check:
        for q in range(2): L.append(v2("v_subrev_u32", "v%d" % (EU + q), "s%d" % sLO, "v%d" % (ET + q)))
        L.append(valu("v_cmp_le_u32 vcc, s%d, v%d" % (sRG, EU), ["s%d" % sRG, "v%d" % EU], ["vcc"]))
        L.append(valu("v_cmp_le_u32 s[%d:%d], s%d, v%d" % (sCMP, sCMP + 1, sRG, EU + 1), ["s%d" % sRG, "v%d" % (EU + 1)], R("s", sCMP, 2)))
    else:
        L.append(nop(1))
    for q in range(2):
        for b in range(8):
            for i in range(2):
                a = O_(2 * h + q, b) + 2 * i
                L.append(valu("v_pk_mul_f32 v[%d:%d], v[%d:%d], v[%d:%d] op_sel_hi:[1,0]" % (a, a + 1, a, a + 1, ER + 2 * q, ER + 2 * q + 1),
                              R("v", a, 2) + ["v%d" % (ER + 2 * q)], R("v", a, 2), "K"))
    sor = []
    if check:
        sor = [salu("s_or_b64 s[%d:%d], s[%d:%d], vcc" % (sACC, sACC + 1, sACC, sACC + 1), ["vcc"] + R("s", sACC, 2), R("s", sACC, 2)),
               salu("s_or_b64 s[%d:%d], s[%d:%d], s[%d:%d]" % (sACC, sACC + 1, sACC, sACC + 1, sCMP, sCMP + 1), R("s", sCMP, 2) + R("s", sACC, 2), R("s", sACC, 2))]
        if not cfg.finchk: L += sor
    for q in range(2):
        for bp in range(4):
            a = O_(2 * h + q, 2 * bp)
            for i in range(4): L.append(cvt_(a + i, a + 2 * i, a + 2 * i + 1))
            if check and cfg.finchk and (q, bp) != (0, 0):
                pa = a - 8
                L.append(mfma("a", ACHK, "a", AZERO, "v", pa, czero=(h == 0 and (q, bp) == (0, 1))))
                if sor: L.append(sor.pop(0))
    last = [mfma("a", ACHK, "a", AZERO, "v", O_(2 * h + 1, 6))] if check and cfg.finchk else []
    if defer: LASTCHK[h] = last
    elif last: L += [nop(2)] + last
    return L
def flag_ops():
    L = []
    if cfg.finchk:
        L.append(v1("v_accvgpr_read_b32", "v%d" % ET, "a%d" % ACHK))
        L.append(valu("v_cmp_u_f32 vcc, v%d, v%d" % (ET, ET), ["v%d" % ET], ["vcc"]))
        L.append(nop(2))
        L.append(salu("s_or_b64 s[%d:%d], s[%d:%d], vcc" % (sACC, sACC + 1, sACC, sACC + 1), ["vcc"] + R("s", sACC, 2), R("s", sACC, 2)))
    L.append(salu("s_cmp_lg_u64 s[%d:%d], 0" % (sACC, sACC + 1), R("s", sACC, 2), ["scc"]))
    L.append(salu("s_addc_u32 s%d, s%d, s%d" % (sBAD, sBAD, sBAD), ["scc", "s%d" % sBAD], ["s%d" % sBAD]))
    L.append(salu("s_mov_b64 s[%d:%d], 0" % (sACC, sACC + 1), [], R("s", sACC, 2)))
    L.append(salu("s_mov_b64 vcc, 0", [], ["vcc"]))
    return L
def o_writes(h):
    L = []
    for q in range(2):
        for bp in range(4):
            a = O_(2 * h + q, 2 * bp); addr = OW + bp % 2
            L.append(Ins("ds_write_b128 v%d, %s offset:%d" % (addr, rng("v", a, 4), (bp // 2) * 128 + q * 4096), "W", ["v%d" % addr] + R("v", a, 4), []))
    return L
def o_reads(h, du):
    L = []
    for j in range(8):
        for i in range(2):
            d = AO + 32 * h + 4 * j + 2 * i; addr = OR_ + 2 * (j % 2) + i
            L.append(Ins("ds_read_b64 %s, v%d offset:%d" % (rng("a", d, 2), addr, j * 1024), "D", ["v%d" % addr], R("a", d, 2), tag=("O", h, du)))
    return L
def o_stores(h):
    return [store(AO + 32 * h + 4 * j, sOa if j < 4 else sOb, (j % 4) * 1024) for j in range(8)]
USTRIDE = 131072 if cfg.hmap == 0 else 128 * 131072
KSTEP = (8192, 2048, 4096)[cfg.kvmap]
def adv(which, cross):
    o, t, b = (sKo, sKt, sKb) if which == "K" else (sVo, sVt, sVb)
    m = sMKn if which == "K" else sMVn
    if cfg.flag_:
        assert not cfg.rot
        L = [s2("s_add_u32", "s%d" % o, "s%d" % o, "8192")]
        if USTRIDE != 131072:
            L += [s2("s_bfe_u32", "s%d" % t, "s%d" % o, "0x10011"), s2("s_mul_i32", "s%d" % t, "s%d" % t, str(USTRIDE - 131072)), s2("s_add_u32", "s%d" % o, "s%d" % o, "s%d" % t)]
        return L + [s2("s_add_u32", "s%d" % m, "s%d" % m, "8192"), s2("s_and_b32", "s%d" % m, "s%d" % m, "0xffff")]
    M = [s2("s_add_u32", "s%d" % m, "s%d" % m, "8192"), s2("s_and_b32", "s%d" % m, "s%d" % m, "0xffff")]
    if not cfg.rot:
        return M + [s2("s_add_u32", "s%d" % o, "s%d" % o, str(KSTEP + (USTRIDE - 16 * KSTEP if cross else 0)))]
    L = M + [s2("s_add_u32", "s%d" % t, "s%d" % t, "8192"), s2("s_and_b32", "s%d" % t, "s%d" % t, "0x1ffff")]
    if cross: L.append(s2("s_add_u32", "s%d" % b, "s%d" % b, str(USTRIDE)))
    L.append(s2("s_add_u32", "s%d" % o, "s%d" % b, "s%d" % t))
    return L

LEAD = cfg.lead
LAT = cfg.lat
B0, B1, B2, B3, NG = 0, 16, 34, 50, 68
NW0 = 5
LASTCHK = {}
RAMP_IT = [2, 4, 6][:cfg.lead - cfg.l0]
RAMPS = {}
QA_IT = [cfg.qa0 + i for i in range(4)]; QB_IT = [8, 9, 10, 11]; ST_IT = [1, 6, 7, 12, 13, 14, 15]
QRD = cfg.qa0 + 5; QB_IT = [QRD + 1 + i for i in range(4)] if QRD <= 7 else [QRD + 1, QRD + 2]
ST_IT = ([1] + [t for t in range(2, 16) if t not in QA_IT and t not in QB_IT] + [8])
ST_IT = sorted(ST_IT[:8])
ST_MAP = {t: [2 * i, 2 * i + 1] for i, t in enumerate(ST_IT)} if cfg.stmode == 0 else {(k + 1) % 16: [k] for k in range(16)}
if cfg.stmode == 2: ST_MAP = {6: [0, 1, 2, 3], 7: [4, 5, 6, 7], 12: [8, 9, 10, 11], 13: [12, 13, 14, 15]}
QCNT_A = [2, 2, 2, 2]; QCNT_B = [8 // len(QB_IT)] * len(QB_IT)
if cfg.stmode == 4:
    QA_IT = [2, 3, 4]; QCNT_A = [3, 3, 2]; QRD = 6; QB_IT = [7, 8]; QCNT_B = [4, 4]
    ST_MAP = {9: [0, 1], 10: [2, 3], 11: [4, 5], 12: [6, 7], 13: [8, 9, 10], 14: [11, 12, 13], 15: [14, 15]}
if cfg.stmode == 5:
    QA_IT = [2, 3, 4]; QCNT_A = [3, 3, 2]; QRD = 6; QB_IT = [7, 8, 9]; QCNT_B = [3, 3, 2]
    ST_MAP = {10: [0, 1, 2], 11: [3, 4, 5], 12: [6, 7], 13: [8, 9, 10], 14: [11, 12, 13], 15: [14, 15]}
if cfg.stmode == 3: ST_MAP = {12: [0, 1, 2, 3], 13: [4, 5, 6, 7], 14: [8, 9, 10, 11], 15: [12, 13, 14, 15]}

class Seg:
    def __init__(self): self.gaps = []; self.sitems = []; self.head = []; self.tail = []; self.post = []

def build_iter(t, first=False):
    sg = Seg()
    if first:
        b0, b1, b2, b3, ng = 0, None, 16, 32, 50
        mf = qk_block(0) + qk_block(1) + pv_block(0, True)
    else:
        b0, b1, b2, b3, ng = B0, B1, B2, B3, NG
        mf = qk_block(0) + pv_block(1, t == 1) + qk_block(1) + pv_block(0, t == 0)
    gaps = [Gap(m) for m in mf]
    items = []
    INF = 10 ** 6
    slot = t % 8; nslot = (t + 1) % 8
    isbar = (t % cfg.barper == 0)
    bar_gap = cfg.bargap
    if not first:
        items += softmax_items(1, cfg.sm0 + 34 - NG, lambda q, kt: 0, lambda q: b1 + pfirst(q) - 2, lo=(cfg.e0, cfg.e0, cfg.c0))
        for i in range(cfg.f0, 8):
            f = KORD[i]
            items.append(Item(kread(f, slot, 0), 0, kfirst(f) - LAT, cfg.kt0 + cfg.kts * i - NG))
    items += softmax_items(0, (cfg.sm0 if not first else 12), lambda q, kt: b0 + sdone(q, kt) + cfg.rdy, lambda q: b3 + pfirst(q) - 2)
    items += softmax_items(1, b3 - B3 + cfg.sm0 + 34, lambda q, kt: b2 + sdone(q, kt) + cfg.rdy, lambda q: INF, hi=(cfg.e0, cfg.e0, cfg.c0))
    for b in range(8):
        for jj in range(2):
            rdy = (b1 + pvpos(b, 1)) if not first else cfg.fbar + 1
            items.append(Item(vread(b, jj, slot, 0), max(rdy, bar_gap + 1), b3 + pvpos(b, 0) - LAT, (cfg.vt0 + cfg.vts * (2 * b + jj)) if not first else cfg.fbar + 1 + b + jj * 0.5))
    for i in range(cfg.f0):
        f = KORD[i]
        items.append(Item(kread(f, nslot, 1), max(b2 + klast(f), cfg.fbar + 1 if first else 0), min(ng - 1, ng + kfirst(f) - LAT), b3 - B3 + cfg.kt0 + cfg.kts * i))
    def chain(lst, targets, ready, dead=INF, dist=1, after=None):
        p = after; res = []
        for k, (ins, tgt) in enumerate(zip(lst, targets)):
            dd = dead[k] if isinstance(dead, list) else dead
            it = Item(ins, ready, dd, tgt, [(p, dist)] if p else []); items.append(it); p = it; res.append(it)
        return res
    if first:
        lst = []
        for n in range(cfg.l0 + 1): lst += [("V", vd()), ("K", kd())]
        if cfg.early: lst = lst[1:]
        p = None; tg = 1
        for k, (w, pr) in enumerate(lst):
            rdy = 1 if k < 8 - cfg.early else cfg.fbar + 2
            its = chain(pr, [tg, tg + 1], rdy, after=p, dist=1); p = its[1]; tg += 2 if k < 4 else 3
            sg.post.append((its[1], adv(w, False)))
        gaps[7].sh.append(vsite([("Q", 1, 0)]))
        if cfg.pre:
            for i, ins in enumerate(q_reads(QR, 1, 0, addr=TM, p="v")): items.append(Item(ins, 8, 11, 8 + 0.5 * i))
            gaps[16].pre += [lsite()] + pre_burst(AQ + 32) + [nop(1)]
        else:
          for i, ins in enumerate(q_reads(AQ + 32, 1, 0, addr=TM)):
            items.append(Item(ins, 8, 16 - LAT + qfirst(i // 4, i % 4) + 1, 8 + 0.5 * qfirst(i // 4, i % 4)))
        al = lsite(); al.needs = "all"
        gaps[cfg.fbar].sh += [al, vsite([("V", 0), ("K", 1)]), bar()]
        if cfg.barper == 2: gaps[ng - 1].va += [vsite([("V", 1), ("K", 2)]), bar()]
    else:
        dm = kv_dmas(t, LEAD)
        dmt = [cfg.x0 + cfg.xs * i for i in range(4)] if isbar else [cfg.x1 + cfg.xs * i for i in range(4)]
        kvits = chain(dm, dmt, (bar_gap + 2) if isbar else 1)
        for a in adv("K", (t + LEAD + 2) % 16 == 0): sg.sitems.append((a, ("after", kvits[1]), None))
        for a in adv("V", (t + LEAD + 1) % 16 == 0): sg.sitems.append((a, ("after", kvits[3]), None))
        if isbar:
            needs = [("V", 0), ("K", 1)] + ([("V", 1), ("K", 2)] if cfg.barper == 2 else [])
            if t in RAMP_IT:
                r = Ins("s_cbranch_vccnz L_ramp%dA\nL_back%d:" % (t, t), "RAMP", ["vcc"]); r.cmt = "ramp%d" % t
                gaps[bar_gap - 2].sh.append(r)
                k = RAMP_IT.index(t)
                for role in ("A", "B"):
                    L = [vsite(needs)]
                    for w, pr in (("V", vd()), ("K", kd())):
                        follower = (w == "V") == (role == "A")
                        if follower and k >= len(RAMP_IT) - cfg.flag_: continue
                        L += [setm0(pr[0].cmt), nop(1)] + pr + adv(w, False)
                    if t == RAMP_IT[-1]: L.append(salu("s_mov_b64 vcc, 0", [], ["vcc"]))
                    L.append(raw("s_branch L_back%d" % t, "BR"))
                    if role == "A": L[0:0] = [raw("s_bitcmp1_b32 s2, 3"), raw("s_cbranch_scc1 L_ramp%dB" % t)]
                    RAMPS["ramp%d%s" % (t, role)] = L
            gaps[bar_gap - 1].sh.append(vsite(needs))
            gaps[bar_gap].sh.append(bar())
    XT = [cfg.xt, cfg.xt + cfg.xts]
    if not first and t == 0:
        gaps[0].pre += epi_burst(0, defer=True)
        gaps[1].pre += LASTCHK[0]
        W = chain(o_writes(0), [1.5 + 3.5 * i for i in range(8)], 0, 38)
        chain(o_reads(0, -1), [29 + 1.1 * j for j in range(16)], 0, 47, dist=0, after=W[7])
        gaps[48].pre += epi_burst(1, defer=True)
        gaps[49].pre += LASTCHK[1]
        chain(o_writes(1)[:NW0], [49.5 + 4 * i for i in range(NW0)], 48)
        for i in range(16, 32) if not cfg.pre else []:
            items.append(Item(v1("v_accvgpr_mov_b32", "a%d" % (AQ + 32 + i), "a%d" % (AQN + i)), 0, b2 - 2, 2 * (i - 16)))
        for i in range(32) if cfg.pre else []:
            items.append(Item(v1("v_accvgpr_write_b32", "a%d" % (AQ + 32 + i), "v%d" % (QR + i)), 0, b2 - 2, i))
        fo = flag_ops()
        if cfg.finchk:
            i1 = Item(fo[0], 56, INF, 56); i2 = Item(fo[1], 56, 62, 57, [(i1, 0)]); items += [i1, i2]
            sg.sitems.append((fo[3], ("after2", i2), None)); sg.sitems.append(([fo[4], fo[5]], ("after2", i2), None))
            sg.sitems.append((fo[6], ("after2", i2), None)); sg.sitems.append((fo[7], ("after2", i2), None))
        else:
            gaps[60].pre += fo
    if t == 1:
        ws = o_writes(1)[NW0:]
        W = chain(ws, [0.5 + 4 * i for i in range(len(ws))], 0, [b1 + pvpos(2 * ((NW0 + i) % 4), (NW0 + i) // 4) - 1 for i in range(len(ws))])
        chain(o_reads(1, -1), [16 + 2 * j for j in range(16)], 0, INF, dist=0, after=W[-1])
        al = lsite(); al.needs = "all"; gaps[ng - 1].sh.insert(1, al)
    if not first and ST_MAP.get(t):
        ks = ST_MAP[t]
        tg = {1: [cfg.stgap], 2: XT, 3: [46, 53, 60], 4: [36, 42, 48, 54]}[len(ks)] if t not in (0, 1) else ([50, 54] if t == 1 else [20])
        st = chain([o_stores(k // 8)[k % 8] for k in ks], tg, 18, 65 if t != 0 else 30)
        for k, it in zip(ks, st):
            if k % 8 == 0: sg.head += [s2("s_add_u32", "s%d" % sOb, "s%d" % sOa, "4096")]
            if k == 7: sg.sitems.append((s2("s_add_u32", "s%d" % sOa, "s%d" % sOa, "8192"), ("after", it), None))
            if k == 15:
                sg.sitems.append((s2("s_add_u32", "s%d" % sOa, "s%d" % sOa, str(USTRIDE - 8192)), ("after", it), None))
            if k == (15 if cfg.stmode == 0 else 15):
                sg.sitems.append((smov("s%d" % (sO_ + 2), "s%d" % sONR), ("after", it), None))
    for h, its in ((1 - cfg.pre, QA_IT), (cfg.pre, QB_IT)):
        if t in its:
            k = its.index(t)
            if k == 0:
                sg.head += [s2("s_add_u32", "s%d" % sQa, "s%d" % sQo, str(8192 * h)), s2("s_add_u32", "s%d" % sQb, "s%d" % sQo, str(8192 * h + 4096))]
            cn = QCNT_A if its is QA_IT else QCNT_B
            npi = cn[k]; o = sum(cn[:k])
            chain(q_dmas(h, 1)[o:o + npi], {2: XT, 3: [46, 53, 60], 4: [44, 50, 56, 62]}[npi], 43, 65)
            if its is QB_IT and k == len(its) - 1: sg.tail += [s2("s_add_u32", "s%d" % sQo, "s%d" % sQo, str(USTRIDE))]
    if cfg.wbl2 and t == cfg.wbl2:
        sg.head += [raw("s_cmp_lg_u32 s%d, 0" % sCNT), raw("s_cbranch_scc1 L_nowb"), raw("s_cmp_lg_u32 s%d, 0" % sW), raw("s_cbranch_scc1 L_nowb"),
                    raw("buffer_wbl2 sc1"), raw("L_nowb:")]
    if t == QRD:
        gaps[29].sh.append(vsite([("Q", 1 - cfg.pre, 1)]))
        for i, ins in enumerate(q_reads(AQN, 1, 1) if not cfg.pre else q_reads(QR, 0, 1, p="v")):
            items.append(Item(ins, 30, INF, 30 + 4 * i))
        al = lsite(); al.needs = "all"; gaps[ng - 1].sh.insert(1, al)
    if cfg.fakepre and 8 <= t <= 14:
        for i in range(23):
            r = 2 + (i % 4)
            op = [v2("v_and_b32", "v%d" % r, "0xffff0000", "v10"), v2("v_lshlrev_b32", "v%d" % r, "16", "v10"), mul_(r), mul_(r), cvt_(8, 2, 3)][i % 5]
            items.append(Item(op, 0, INF, 3 * i))
    if cfg.fakepre and t == 15:
        for i in range(32):
            sg.tail += [v2("v_and_b32", "v3", "0xffff0000", "v10"), v2("v_lshlrev_b32", "v2", "16", "v10"),
                        valu("v_pk_mul_f32 v[4:5], v[2:3], v[6:7]", [], [], "K"), cvt_(8, 4, 5), v1("v_accvgpr_write_b32", "a%d" % (AQN + i), "v8")]
    if cfg.pre and QRD < t < 15:
        n = 14 - QRD; lo_ = (t - QRD - 1) * 32 // n; hi_ = (t - QRD) * 32 // n
        last = {}
        for j, i in enumerate(range(lo_, hi_)):
            k = i % 3; p = last.get(k); base = j * (ng - 6.0) / (hi_ - lo_)
            for m, op in enumerate(pre_ops(i, k)):
                it = Item(op, 0, INF, base + 2.2 * m, [(p, 0)] if p else []); items.append(it); p = it
            last[k] = p
    if cfg.pre and t == 15:
        gaps[15].sh.append(vsite([("Q", 1, 1)]))
        Wr = [Item(v1("v_accvgpr_write_b32", "a%d" % (AQ + i), "v%d" % (QR + i)), 16, 56, 16 + i) for i in range(32)]
        items += Wr
        for i, ins in enumerate(q_reads(QR, 1, 1, p="v")):
            items.append(Item(ins, 16, ng - 6, 22 + 4.5 * i, [(w, 1) for w in Wr[4 * i:4 * i + 4]]))
        sg.tail += [lsite()] + pre_burst(None, writes=False)
    if t == 15 and not cfg.pre:
        gaps[15].sh.append(vsite([("Q", 0, 1)]))
        for i, ins in enumerate(q_reads(AQ, 0, 1)):
            items.append(Item(ins, 16, ng - 1 - LAT, 17 + 5 * i))
        for i in range(16):
            items.append(Item(v1("v_accvgpr_mov_b32", "a%d" % (AQ + 32 + i), "a%d" % (AQN + i)), b3, INF, b3 + i))
    schedule(gaps, items, "it%d%s" % (t, "f" if first else ""))
    for it, ops in sg.post: gaps[it.gap].va += ops
    sg.gaps = gaps
    return sg

def place_scalar(sg):
    gaps = sg.gaps
    def busy(G): return sum(1 for x in G.sh if (x.kind not in ("LSITE", "VSITE")) ) + (1 if any(x.kind in ("LSITE", "VSITE") and x.n is not None for x in G.sh) else 0)
    cur = None; lastx = -1
    for g, G in enumerate(gaps):
        if any("s_mov_b32 m0" in x.text for x in G.pre): cur = None; lastx = max(lastx, g - 1)
        if any(x.kind == "RAMP" for x in G.sh): cur = None; lastx = max(lastx, g)
        for x in G.ds:
            if x.kind == "X" and "m0" in x.rd:
                if cur != x.cmt:
                    cands = [k for k in range(max(lastx, 0) if lastx < 0 else lastx + 1, g)]
                    free = [k for k in cands if busy(gaps[k]) == 0]
                    if cands:
                        k = free[-1] if free else cands[-1]
                        gaps[k].sh.append(setm0(x.cmt))
                    elif any("s_mov_b32 m0" in y.text for y in G.pre):
                        G.pre.append(setm0(x.cmt))
                    else:
                        gaps[lastx].va.append(setm0(x.cmt))
                    cur = x.cmt
                lastx = g
    lastpos = {}
    ntail = 0
    for ins, (how, it), _ in sg.sitems:
        lst = ins if isinstance(ins, list) else [ins]
        c = [k for k in range(max(it.gap + (1 if how == "after2" else 0), lastpos.get(id(it), -1)) + 1, len(gaps)) if busy(gaps[k]) == 0]
        if c: gaps[c[0]].sh += lst; lastpos[id(it)] = c[0]
        else: sg.tail[ntail:ntail] = lst; ntail += len(lst); lastpos[id(it)] = len(gaps)

def flat(sg):
    L = list(sg.head)
    for G in sg.gaps: L += G.flat()
    return L + sg.tail

def prologue():
    L = []
    A = L.append
    A(raw("s_cmp_ge_u32 s2, 256")); A(raw("s_cbranch_scc1 L_end"))
    A(raw("s_load_dwordx4 s[36:39], s[0:1], 0")); A(raw("s_load_dwordx4 s[40:43], s[0:1], 16"))
    A(v2("v_lshrrev_b32", "v1", "6", "v0")); A(v2("v_and_b32", "v0", "63", "v0"))
    A(valu("v_readfirstlane_b32 s%d, v1" % sW, ["v1"], ["s%d" % sW]))
    A(v2("v_lshrrev_b32", "v2", "4", "v0"))
    A(v2("v_and_b32", "v3", "15", "v0"))
    if cfg.xmap == 0:
        A(raw("s_and_b32 s45, s2, 7")); A(raw("s_lshr_b32 s46, s2, 4")); A(raw("s_lshl_b32 s45, s45, 4")); A(raw("s_add_u32 s45, s45, s46"))
    else:
        A(raw("s_and_b32 s45, s2, 7")); A(raw("s_lshr_b32 s46, s2, 4")); A(raw("s_lshl_b32 s46, s46, 3")); A(raw("s_add_u32 s45, s45, s46"))
    if cfg.rot:
        A(raw("s_mul_i32 s%d, s45, %d" % (sKt, cfg.rot * 8192))); A(raw("s_and_b32 s%d, s%d, 0x1ffff" % (sKt, sKt))); A(smov("s%d" % sVt, "s%d" % sKt))
        A(smov("s%d" % sKb, "0")); A(smov("s%d" % sVb, "0"))
    A(raw("s_lshl_b32 s45, s45, %d" % (19 if cfg.hmap == 0 else 17)))
    A(raw("s_bfe_u32 s46, s2, 0x10003")); A(raw("s_lshl_b32 s46, s46, 16")); A(raw("s_add_u32 s46, s46, s45"))
    A(s2("s_lshl_b32", "s%d" % sMK, "s%d" % sW, "11"))
    A(v2("v_lshlrev_b32", "v4", "1", "v2")); A(v2("v_xor_b32", "v4", "v3", "v4")); A(v2("v_lshlrev_b32", "v4", "4", "v4"))
    A(v3("v_lshl_add_u32", "v%d" % DA, "v2", "8", "v4")); A(v2("v_xor_b32", "v%d" % DB, "0x80", "v%d" % DA))
    A(smov("s%d" % sMKn, "s%d" % sMK)); A(smov("s%d" % sMVn, "s%d" % sMK))
    if cfg.cpf:
        A(raw("s_lshr_b32 s%d, s2, 3" % sT)); A(raw("s_lshl_b32 s%d, s%d, 2" % (sT, sT))); A(raw("s_add_u32 s%d, s%d, s%d" % (sT, sT, sW)))
        A(raw("s_and_b32 s%d, s%d, 31" % (sT, sT))); A(raw("s_lshl_b32 s%d, s%d, 10" % (sT, sT)))
        A(raw("s_min_u32 s%d, s%d, L_end - L_pc - 1024" % (sT, sT)))
        A(v2("v_lshlrev_b32", "v5", "4", "v0")); A(v2("v_add_u32", "v5", "s%d" % sT, "v5"))
        A(raw("s_getpc_b64 s[58:59]\nL_pc:"))
        A(Ins("global_load_dwordx4 v[72:75], v5, s[58:59]", "X", ["v5"], R("v", 72, 4)))
    A(s2("s_lshl_b32", "s%d" % sMS, "s%d" % sW, "13")); A(s2("s_add_u32", "s%d" % sMS, "s%d" % sMS, str(LDS_S)))
    A(s2("s_lshl_b32", "s%d" % sQo, "s%d" % sW, "14"))
    A(s2("s_lshl_b32", "s%d" % sOa, "s%d" % sW, "14")); A(s2("s_sub_u32", "s%d" % sOa, "s%d" % sOa, str(USTRIDE)))
    for b in (sQ_, sK_, sV_, sO_): A(smov("s%d" % (b + 3), "0x20000"))
    A(smov("s%d" % (sK_ + 2), str(3 * USTRIDE + 131072))); A(smov("s%d" % (sV_ + 2), str(3 * USTRIDE + 131072)))
    A(smov("s%d" % (sQ_ + 2), str(3 * USTRIDE + 65536))); A(smov("s%d" % sONR, str(3 * USTRIDE + 65536))); A(smov("s%d" % (sO_ + 2), "0"))
    assert not cfg.rot and not cfg.flag_
    if cfg.kvmap == 0: A(s2("s_lshl_b32", "s%d" % sKo, "s%d" % sW, "11"))
    elif cfg.kvmap == 1: A(s2("s_lshl_b32", "s%d" % sKo, "s%d" % sW, "15"))
    else:
        A(s2("s_and_b32", "s%d" % sKo, "s%d" % sW, "1")); A(s2("s_lshl_b32", "s%d" % sKo, "s%d" % sKo, "11"))
        A(s2("s_lshr_b32", "s%d" % sVo, "s%d" % sW, "1")); A(s2("s_lshl_b32", "s%d" % sVo, "s%d" % sVo, "16")); A(s2("s_add_u32", "s%d" % sKo, "s%d" % sKo, "s%d" % sVo))
    A(smov("s%d" % sVo, "s%d" % sKo))
    A(raw("s_waitcnt lgkmcnt(0)"))
    if cfg.stamp2: L += stamp()
    for b, p, o in ((sK_, 38, 45), (sQ_, 36, 46), (sV_, 40, 45), (sO_, 42, 46)):
        A(salu("s_add_u32 s%d, s%d, s%d" % (b, p, o), [], ["s%d" % b])); A(salu("s_addc_u32 s%d, s%d, 0" % (b + 1, p + 1), [], ["s%d" % (b + 1)]))
    def issue(lst):
        cur = None
        for x in lst:
            if x.kind == "X" and cur != x.cmt:
                A(setm0(x.cmt)); A(nop(1)); cur = x.cmt
            A(x)
    A(smov("s%d" % sQa, "s%d" % sQo)); A(s2("s_add_u32", "s%d" % sQb, "s%d" % sQo, "4096"))
    k0 = kd(); v0 = vd() if cfg.early else None
    q0 = q_dmas(0, 0)
    if cfg.early:
        issue([k0[0], q0[0], v0[0], k0[1], v0[1]] + adv("K", False) + adv("V", False) + q0[1:])
    else:
        issue(k0 + adv("K", False) + q0)
    A(s2("s_add_u32", "s%d" % sQa, "s%d" % sQo, "8192")); A(s2("s_add_u32", "s%d" % sQb, "s%d" % sQo, str(8192 + 4096)))
    A(s2("s_sub_u32", "s%d" % sT, "s%d" % sMS, "32768"))
    issue(q_dmas(1, 0, msgpr=sT))
    if cfg.stamp2: L += stamp()
    A(s2("s_add_u32", "s%d" % sQo, "s%d" % sQo, str(USTRIDE)))
    A(v2("v_and_b32", "v5", "7", "v3")); A(v2("v_lshlrev_b32", "v6", "1", "v5"))
    for s in range(4):
        A(v2("v_add_u32", "v7", str(4 * s), "v2")); A(v2("v_xor_b32", "v7", "v7", "v6")); A(v2("v_lshlrev_b32", "v7", "4", "v7"))
        A(v3("v_lshl_add_u32", "v%d" % (KA + s), "v3", "8", "v7"))
        A(v2("v_add_u32", "v%d" % (QA + s), "s%d" % sMS, "v%d" % (KA + s)))
        A(v2("v_subrev_u32", "v%d" % (TM + s), "0x8000", "v%d" % (QA + s)))
    A(v2("v_lshrrev_b32", "v76", "2", "v0"))
    A(v2("v_and_b32", "v77", "7", "v76")); A(v2("v_lshlrev_b32", "v77", "1", "v77"))
    A(valu("v_bfe_u32 v78, v0, 1, 1", ["v0"], ["v78"]))
    A(v2("v_and_b32", "v79", "1", "v0")); A(v2("v_lshlrev_b32", "v79", "3", "v79"))
    A(v3("v_lshl_add_u32", "v79", "v76", "8", "v79")); A(v2("v_add_u32", "v79", str(LDS_V), "v79"))
    for b in range(8):
        A(v2("v_add_u32", "v7", str(2 * b), "v78")); A(v2("v_xor_b32", "v7", "v7", "v77"))
        A(v3("v_lshl_add_u32", "v%d" % (VA + b), "v7", "4", "v79"))
    A(v2("v_lshlrev_b32", "v79", "8", "v3")); A(v2("v_add_u32", "v79", "s%d" % sMS, "v79"))
    A(v2("v_xor_b32", "v78", "v2", "v5"))
    A(v3("v_lshl_add_u32", "v%d" % OW, "v78", "4", "v79")); A(v2("v_xor_b32", "v%d" % (OW + 1), "64", "v%d" % OW))
    A(v2("v_and_b32", "v78", "12", "v3")); A(v2("v_and_b32", "v70", "1", "v3")); A(v3("v_lshl_add_u32", "v78", "v70", "1", "v78"))
    A(v2("v_xor_b32", "v78", "v78", "v2")); A(v2("v_lshlrev_b32", "v78", "4", "v78")); A(v3("v_lshl_add_u32", "v78", "v2", "8", "v78"))
    A(v2("v_and_b32", "v70", "2", "v3")); A(v3("v_lshl_add_u32", "v78", "v70", "2", "v78"))
    A(v2("v_add_u32", "v%d" % OR_, "s%d" % sMS, "v78"))
    for i, x in enumerate((16, 64, 80)): A(v2("v_xor_b32", "v%d" % (OR_ + 1 + i), str(x), "v%d" % OR_))
    A(v2("v_lshlrev_b32", "v%d" % OS, "4", "v0"))
    A(v2("v_and_b32", "v7", "3", "v0")); A(valu("v_cmp_eq_u32 vcc, 0, v7", ["v7"], ["vcc"])); A(v1("v_mov_b32", "v76", "0x3f803f80")); A(v1("v_mov_b32", "v77", "0"))
    A(valu("v_cndmask_b32 v7, v77, v76, vcc", ["v76", "v77", "vcc"], ["v7"]))
    for i in range(4):
        A(v1("v_accvgpr_write_b32", "a%d" % (AONE + i), "v7")); A(v1("v_accvgpr_write_b32", "a%d" % (AZERO + i), "v77"))
    A(smov("s%d" % sC, "0x%08x" % SCALE)); A(smov("s%d" % sC2, "0x%08x" % SCALE)); A(smov("s%d" % (sC2 + 1), "0x%08x" % SCALE))
    if cfg.fakepre: L += [v1("v_mov_b32", "v%d" % i, "1.0") for i in range(2, 12)]
    A(smov("s%d" % sLO, "0x%08x" % LO_BITS)); A(smov("s%d" % sRG, "0x%08x" % (HI_BITS - LO_BITS)))
    A(smov("s%d" % sBAD, "0")); A(salu("s_mov_b64 s[%d:%d], 0" % (sACC, sACC + 1), [], R("s", sACC, 2)))
    A(smov("s%d" % sCNT, "3"))
    A(salu("s_mov_b64 vcc, %d" % (-1 if RAMP_IT else 0), [], ["vcc"]))
    A(s2("s_add_u32", "s%d" % sOb, "s%d" % sOa, "4096"))
    if cfg.stamp2: L += stamp()
    A(vsite([("K", 0), ("Q", 0, 0)]))
    if cfg.stamp2: L += stamp()
    A(bar())
    if cfg.pre:
        L += q_reads(QR, 0, 0, p="v") + [kread(f, 0, 0) for f in KORD] + [lsite()]
        b = pre_burst(AQ)
        for i in range(0, len(b), 20): L += b[i:i + 20] + [lsite()]
        return L + [nop(1), lsite()]
    qr = q_reads(AQ, 0, 0)
    seen = set()
    for kt, q, s in QKSEQ:
        if ("k", kt, s) not in seen: A(kread(4 * kt + s, 0, 0)); seen.add(("k", kt, s))
        if ("q", q, s) not in seen: A(qr[4 * q + s]); seen.add(("q", q, s))
    A(lsite())
    return L

def tail_seg():
    L = []
    for it in softmax_items(1, 0, lambda q, kt: 0, lambda q: 99, lo=(cfg.e0, cfg.e0, cfg.c0)):
        L.append(it.ins)
        if it.ins.kind == "T" and it.ins.text == exp_(S_(1, *GRP[3]) + 3).text: L.append(nop(1))
    if cfg.stmode == 1:
        L += [o_stores(1)[7], s2("s_add_u32", "s%d" % sOa, "s%d" % sOa, str(USTRIDE - 8192))]
    L.append(s2("s_add_u32", "s%d" % sOb, "s%d" % sOa, "4096"))
    L += epi_burst(0)
    gaps = [Gap(m) for m in pv_block(1, False)]
    for g, w in enumerate(o_writes(0)): gaps[g].ds.append(w)
    rd = o_reads(0, 0)
    for g in range(8): gaps[8 + g].ds += rd[2 * g:2 * g + 2]
    for G in gaps: L += G.flat()
    st = o_stores(0)
    L += [lsite()] + st[:4]
    b1 = epi_burst(1)
    k = [i for i, x in enumerate(b1) if x.kind == "K"][-1] + 1
    L += b1[:k] + [lsite()] + st[4:] + b1[k:]
    L += [s2("s_add_u32", "s%d" % sOa, "s%d" % sOa, "8192"), s2("s_add_u32", "s%d" % sOb, "s%d" % sOb, "8192")]
    w1 = o_writes(1); r1 = o_reads(1, 0); st = o_stores(1)
    L += w1[:4] + r1[:8] + w1[4:] + r1[8:]
    L += [lsite()] + st[:2] + [lsite()] + st[2:4] + [lsite()] + st[4:6] + [lsite()] + st[6:]
    L += flag_ops()
    return L

def slow_path():
    T = []
    A = T.append
    def emit(l):
        for x in l: A(x.text)
    def wait(): A("s_waitcnt vmcnt(0) lgkmcnt(0)");
    A("s_barrier")
    if cfg.force_slow: A("s_mov_b32 s%d, 15" % sBAD)
    A("s_cmp_eq_u32 s%d, 0" % sBAD); A("s_cbranch_scc1 L_end")
    A("s_lshl_b32 s45, s%d, 13" % sW)
    for i in range(4): A("v_add_u32 v%d, s45, v%d" % (KA + i, KA + i))
    for i in range(8): A("v_add_u32 v%d, s45, v%d" % (VA + i, VA + i))
    A("s_add_u32 s46, s45, %d" % LDS_V)
    A("s_lshl_b32 s%d, s%d, 14" % (sQo, sW))
    A("s_lshl_b32 s%d, s%d, 14" % (sOo, sW))
    A("v_mov_b32 v%d, v%d" % (TS + 4, DA)); A("v_mov_b32 v%d, v%d" % (TS + 5, DB))
    A("s_mov_b32 s%d, 0" % sCNT)
    A("L_slow_unit:")
    A("s_bitcmp1_b32 s%d, 3" % sBAD); A("s_cbranch_scc0 L_slow_next")
    wait()
    for h in range(2):
        A("s_add_u32 s%d, s%d, %d" % (sQa, sQo, h * 8192)); A("s_add_u32 s%d, s%d, 4096" % (sQb, sQa))
        cur = None
        for x in q_dmas(h, 0):
            if cur != x.cmt: A(setm0(x.cmt).text); A("s_nop 0"); cur = x.cmt
            A(x.text)
        wait(); emit(q_reads(AQ + 32 * h, h, 0)); wait()
    def tile_dma(sr, m0s):
        for i in range(8):
            if i % 4 == 0:
                A("s_add_u32 m0, s%d, %d" % (m0s, (i // 4) * 4096)); A("s_add_u32 s%d, s%d, %d" % (sT, sKo, (i // 4) * 4096))
            A("buffer_load_dwordx4 v%d, %s, s%d offen offset:%d lds" % (TS + 4 + i % 2, srd(sr), sT, (i % 4) * 1024))
    def qk_all():
        emit([kread(f, 0, 0) for f in range(8)]); wait()
        emit(qk_block(0) + qk_block(1)); A("s_nop 7"); A("s_nop 3")
    for i in range(4): A("v_mov_b32 v%d, 0xff800000" % (MX + i))
    A("s_mov_b32 s%d, s%d" % (sKo, sCNT)); A("s_add_u32 s%d, s%d, 131072" % (sVo, sCNT))
    A("L_slow_p1:")
    tile_dma(sK_, 45); wait(); qk_all()
    for h in range(2):
        for q in range(2):
            a = S_(h, q, 0)
            for i in range(4): A("v_max3_f32 v%d, v%d, v%d, v%d" % (MX + 2 * h + q, a + 2 * i, a + 2 * i + 1, MX + 2 * h + q))
    A("s_add_u32 s%d, s%d, 8192" % (sKo, sKo)); A("s_cmp_lt_u32 s%d, s%d" % (sKo, sVo)); A("s_cbranch_scc1 L_slow_p1")
    for op in ("v_permlane32_swap_b32", "v_permlane16_swap_b32"):
        for i in range(4): A("v_mov_b32 v%d, v%d" % (NM + i, MX + i))
        A("s_nop 1")
        for i in range(4): A("%s v%d, v%d" % (op, NM + i, MX + i))
        A("s_nop 1")
        for i in range(4): A("v_max_f32 v%d, v%d, v%d" % (MX + i, MX + i, NM + i))
    for i in range(4): A("v_mul_f32 v%d, s%d, v%d" % (NM + i, sC, MX + i))
    for i in range(128): A("v_mov_b32 v%d, 0" % (OB + i))
    for i in range(16): A("v_accvgpr_write_b32 a%d, 0" % (AL + i))
    A("s_mov_b32 s%d, s%d" % (sKo, sCNT))
    A("L_slow_p2:")
    tile_dma(sK_, 45); tile_dma(sV_, 46); wait(); qk_all()
    emit([vread(b, jj, 0, 0) for b in range(4) for jj in range(2)])
    for h in range(2):
        for q in range(2):
            a = S_(h, q, 0)
            for i in range(8): A("v_fma_f32 v%d, v%d, s%d, -v%d" % (a + i, a + i, sC, NM + 2 * h + q))
            for i in range(8): A("v_exp_f32 v%d, v%d" % (a + i, a + i))
            A("s_nop 0")
            for i in range(4): A(cvt_(P_(h, q) + i, a + 2 * i, a + 2 * i + 1).text)
    emit([vread(b, jj, 0, 0) for b in range(4, 8) for jj in range(2)])
    wait()
    emit(pv_block(0, False) + pv_block(1, False))
    A("s_add_u32 s%d, s%d, 8192" % (sKo, sKo)); A("s_cmp_lt_u32 s%d, s%d" % (sKo, sVo)); A("s_cbranch_scc1 L_slow_p2")
    A("s_nop 7"); A("s_nop 3")
    for h in range(2):
        emit(epi_burst(h, check=False)); emit(o_writes(h) + o_reads(h, 0))
        A("s_add_u32 s%d, s%d, %d" % (sOa, sOo, h * 8192)); A("s_add_u32 s%d, s%d, 4096" % (sOb, sOa))
        wait(); emit(o_stores(h)); wait()
    A("L_slow_next:")
    A("s_lshl_b32 s%d, s%d, 1" % (sBAD, sBAD)); A("s_and_b32 s%d, s%d, 15" % (sBAD, sBAD))
    for r in (sCNT, sQo, sOo): A("s_add_u32 s%d, s%d, %d" % (r, r, USTRIDE))
    A("s_cmp_lg_u32 s%d, 0" % sBAD); A("s_cbranch_scc1 L_slow_unit")
    return T

def stamp():
    if not cfg.stamp: return []
    return [raw("s_memtime s[58:59]"), raw("s_memrealtime s[62:63]"), raw("s_waitcnt lgkmcnt(0)"),
            raw("s_mov_b32 m0, s57"), raw("s_nop 0"), raw("v_writelane_b32 v38, s58, m0"), raw("v_writelane_b32 v39, s62, m0"), raw("s_add_u32 s57, s57, 1")]
def stamp_out():
    if not cfg.stamp: return []
    if cfg.dbgwg >= 0:
        return [x.text for x in stamp()] + ["s_cmp_lg_u32 s2, %d" % cfg.dbgwg, "s_cbranch_scc1 L_nodbg", "s_cmp_lg_u32 s%d, 0" % sW, "s_cbranch_scc1 L_nodbg",
            "s_load_dwordx2 s[36:37], s[0:1], 32", "s_waitcnt lgkmcnt(0)", "s_mov_b32 s38, 64", "s_mov_b32 s39, 0x20000",
            "v_readfirstlane_b32 s45, v39", "v_lshrrev_b32 v41, 2, v%d" % OS, "s_nop 1", "v_subrev_u32 v39, s45, v39",
            "buffer_store_dword v39, v41, s[36:39], 0 offen", "L_nodbg:"]
    return [x.text for x in stamp()] + ["s_load_dwordx2 s[36:37], s[0:1], 40", "s_waitcnt lgkmcnt(0)", "s_mov_b32 s38, 0x1000000", "s_mov_b32 s39, 0x20000",
            "s_lshl_b32 s45, s2, 2", "s_add_u32 s45, s45, s%d" % sW, "s_lshl_b32 s45, s45, 9", "v_lshrrev_b32 v41, 2, v%d" % OS,
            "buffer_store_dword v38, v41, s[36:39], s45 offen", "buffer_store_dword v39, v41, s[36:39], s45 offen offset:256"]
def main():
    sgs = {"it0f": build_iter(0, True)}
    for t in range(16): sgs["it%d" % t] = build_iter(t)
    def segs():
        d = {"pro": pro, "tail": tl}
        d.update(RAMPS)
        for k, s in sgs.items(): d[k] = flat(s)
        return d
    pro = prologue(); tl = tail_seg()
    if cfg.dbgspan:
        pro[2:2] = [raw("s_memrealtime s[60:61]"), raw("s_memtime s[62:63]"), raw("s_waitcnt lgkmcnt(0)"), raw("s_mov_b32 s56, s60"), raw("s_mov_b32 s57, s62")]
        i = [k for k, x in enumerate(pro) if x.kind == "BAR"][0]
        pro[i + 1:i + 1] = [raw("s_memrealtime s[58:59]")]
    if cfg.stamp:
        pro[2:2] = [raw("s_mov_b32 s57, 0")] + stamp()
        i = [k for k, x in enumerate(pro) if x.kind == "BAR"][0]
        pro[i + 1:i + 1] = stamp()
        for t in range(0, 16, cfg.stamp): sgs["it%d" % t].head[0:0] = stamp()
        tl[0:0] = stamp()
        if cfg.stamp3:
            G = sgs["it0"].gaps
            G[0].pre += stamp(); G[16].pre += stamp(); G[34].pre += stamp(); G[48].pre[0:0] = stamp(); G[48].pre += stamp()
            sgs["it1"].head[0:0] = stamp(); sgs["it1"].gaps[34].pre += stamp(); sgs["it2"].head[0:0] = stamp(); sgs["it3"].head[0:0] = stamp()
        if cfg.stamp2:
            sgs["it0f"].gaps[16].pre += stamp(); sgs["it0f"].gaps[cfg.fbar + 1].pre += stamp(); sgs["it0f"].tail[0:0] = stamp()
    traces = []
    for role in ("A", "B"):
        x = dict(role=role, lagK=cfg.flag_ if role == "B" else 0, lagV=cfg.flag_ if role == "A" else 0)
        trace = [("pro", dict(T=0, u=0, first=1, **x)), ("it0f", dict(T=0, u=0, first=1, **x))]
        for u in range(4):
            for t in range(16):
                if (u, t) != (0, 0): trace.append(("it%d" % t, dict(T=16 * u + t, u=u, first=(u == 0 and t < 8), **x)))
        trace.append(("tail", dict(T=64, u=3, **x)))
        traces.append(trace)
    sgs["it0f"].tail.append(raw("s_branch L_it1", "BR"))
    sgs["it15"].tail += [s2("s_sub_u32", "s%d" % sCNT, "s%d" % sCNT, "1"), raw("s_cbranch_scc0 L_it0", "BR")]
    insert_waits(segs(), traces)
    for k, s in sgs.items():
        br = [x for x in s.tail if x.kind == "BR" or "s_sub_u32 s%d" % sCNT in x.text]
        s.tail = [x for x in s.tail if x not in br]
        place_scalar(s)
        s.tail += br
    fs = {k: finalize(v) for k, v in segs().items()}
    errs = sum((verify(fs, tr, {"K": 8, "V": 16, "Q": 8, "O": 16}) for tr in traces), [])
    for e in errs[:40]: sys.stderr.write("ERR " + e + "\n")
    tot = 0
    for k in ["pro", "it0f"] + ["it%d" % t for t in range(16)] + ["tail"]:
        est = issue_estimate(fs[k]); sys.stderr.write("%s:%d " % (k, est))
        if k.startswith("it") and k != "it0f": tot += est
    if cfg.stamp3:
        for k in ("it0", "it1", "it2"):
            parts = [[]]
            for x in fs[k]:
                if "s_memtime" in x.text: parts.append([])
                parts[-1].append(x)
            sys.stderr.write("\n%s parts %s" % (k, [issue_estimate(p) for p in parts]))
    sys.stderr.write("\nunit estimate %d cycles, errors %d\n" % (tot, len(errs)))
    out = []
    hdr = open(os.path.join(os.path.dirname(os.path.abspath(__file__)), "..", "cdna_kernels", NAME + ".s.ref")).read().split("; Override")[0]
    out.append(hdr.rstrip())
    out.append("; @launch grid=(256,1,1) block=(256,1,1) lds=163840")
    out.append('.amdgcn_target "amdgcn-amd-amdhsa--gfx950"\n.text\n.globl %s_kernel\n.p2align 8\n.type %s_kernel,@function\n%s_kernel:' % (NAME, NAME, NAME))
    par = {}
    def dump(k):
        out.append("; ---- " + k)
        for x in fs[k]:
            if cfg.nocomp and k != "pro" and x.kind in ("M", "V", "T", "K", "D", "W"):
                par[x.kind] = par.get(x.kind, 0) + 1
                if cfg.nocomp == 1 or par[x.kind] % cfg.nocomp == 0: continue
            if cfg.nomem and k != "pro" and x.kind == "X" and (cfg.nomem == 1 or "store" in x.text): continue
            if cfg.nostore and x.kind == "X" and "store" in x.text: continue
            out.append("  " + x.text)
            if cfg.nocomp and "m0" in x.wr: out.append("  s_nop 0")
    dump("pro"); dump("it0f")
    for k in RAMPS: out.append("L_%s:" % k); dump(k)
    out.append(".p2align 6\nL_it0:"); dump("it0"); out.append("L_it1:")
    for t in range(1, 16): dump("it%d" % t)
    dump("tail")
    if cfg.dbgspan:
        out += ["  " + x for x in ["s_waitcnt vmcnt(0)", "s_memrealtime s[60:61]", "s_memtime s[62:63]", "s_load_dwordx2 s[36:37], s[0:1], 32", "s_waitcnt lgkmcnt(0)", "s_mov_b32 s38, 256", "s_mov_b32 s39, 0x20000",
            "s_not_b32 s45, s56", "v_mov_b32 v2, s45", "v_mov_b32 v3, s58", "v_mov_b32 v4, s60", "v_mov_b32 v5, s56", "s_not_b32 s45, s60", "v_mov_b32 v6, s45", "s_sub_u32 s45, s62, s57", "v_mov_b32 v7, s45", "v_mov_b32 v1, 0",
            "s_mov_b64 exec, 1",
            "buffer_atomic_umax v2, v1, s[36:39], 0 offen", "buffer_atomic_umax v3, v1, s[36:39], 0 offen offset:4", "buffer_atomic_umax v4, v1, s[36:39], 0 offen offset:8",
            "buffer_atomic_umax v5, v1, s[36:39], 0 offen offset:12", "buffer_atomic_umax v6, v1, s[36:39], 0 offen offset:16", "buffer_atomic_umax v7, v1, s[36:39], 0 offen offset:20", "s_mov_b64 exec, -1"]]
    if cfg.stamp:
        out.append("  s_waitcnt vmcnt(0)")
        out += [("  " + x if not x.endswith(":") else x) for x in stamp_out()]
    if cfg.nocomp or cfg.nomem or cfg.fakepre: out.append("  s_mov_b32 s%d, 0" % sBAD)
    out += ["  " + x if not x.endswith(":") else x for x in slow_path()]
    out.append("L_end:\n  s_endpgm")
    out.append('.section .rodata,"a"\n.p2align 6\n.amdhsa_kernel %s_kernel' % NAME)
    out.append("  .amdhsa_next_free_vgpr 512\n  .amdhsa_next_free_sgpr 64\n  .amdhsa_accum_offset 256\n  .amdhsa_group_segment_fixed_size 0\n  .amdhsa_kernarg_size 48\n  .amdhsa_user_sgpr_count 2\n  .amdhsa_user_sgpr_kernarg_segment_ptr 1\n  .amdhsa_system_sgpr_workgroup_id_x 1\n.end_amdhsa_kernel")
    open(sys.argv[1], "w").write("\n".join(out) + "\n")
    if errs: sys.exit(1)
main()
```

```python
import sys, os, struct, math
from core import *

class Cfg:
    barper = 2
    finchk = 1
    lat = 7
    k_aux = ""
    v_aux = ""
    kv_aux = "nt"
    q_aux = "nt"
    o_aux = "nt"
    e0 = 10; c0 = 4; f0 = 6
    force_slow = 0
    hmap = 1
    rot = 0
    xmap = 0
    stamp = 0
    dbgwg = -1
    stamp3 = 0
    stamp2 = 0
    nocomp = 0
    nomem = 0
    nostore = 0
    dbgspan = 0
    lag = 1.5
    lead = 6
    qomap = 0
    pre = 0
    wbl2 = 0
    kvmap = 2
    fakepre = 0
    x0 = 17
    x1 = 9
    xs = 8
    xts = 8
    xt = 52
    flag_ = 0
    stmode = 0
    qmaj = 0
    bargap = 14
    sm0 = 14
    qkord = 2
    kt0 = 54.0
    kts = 2.48
    vt0 = 18.0
    vts = 2.48
    stgap = 48
    l0 = 3
    cpf = 1
    qa0 = 2
    early = 1
    fbar = 22
    rdy = 5
cfg = Cfg()
for a in sys.argv[2:]:
    k, v = a.split("=")
    setattr(cfg, k, type(getattr(cfg, k))(v))

NAME = "standalone__mha_softmax__near_ridge"
KA = 16; VA = 20; DA = 28; DB = 29; QA = 30; OW = 34; OS = 40; OR_ = 8; QR = 48; PT = 2
ET = 42; ER = 44; EU = 36
MX = 50; NM = 54; TM = 12; TS = 58
PB = 80; SB = 96; OB = 128
def S_(h, q, kt): return SB + 16 * h + 8 * q + 4 * kt
def P_(h, q): return PB + 8 * h + 4 * q
def O_(qt, b): return OB + 32 * qt + 4 * b
AQ = 0; AQN = 64; AK = 96; AV = 128; AO = 160; AL = 224; AONE = 240; AZERO = 244; ACHK = 248
sQ_, sK_, sV_, sO_ = 4, 8, 12, 16
sW = 20; sKo = 21; sVo = 22; sMK = 23; sMV = 24; sQo = 25; sOo = 26; sC = 27; sBAD = 28; sUB = 29; sACC = 30; sCMP = 32
sLO = 34; sRG = 35; sMS = 44; sCNT = 47; sONR = 48; sQa = 50; sQb = 51; sOa = 52; sOb = 53; sT = 54; sKt = 55; sVt = 56; sKb = 62; sVb = 63; sMKn = 29; sMVn = 49; sC2 = 60; sQT = 64; sOT = 72
WSH, PSTEP = ((14, 2048), (11, 8192))[cfg.qomap]
LDS_V = 65536; LDS_S = 131072
SCALE = struct.unpack("<I", struct.pack("<f", math.log2(math.e) / math.sqrt(128.0)))[0]
LO_BITS = (127 - (40 if cfg.finchk else 24)) << 23
HI_BITS = (127 + (126 if cfg.finchk else 24)) << 23

def srd(b): return "s[%d:%d]" % (b, b + 3)
def srdr(b): return R("s", b, 4)

def v2(op, d, a, b, kind="V"):
    rd = [x for x in (a, b) if isinstance(x, str) and x[0] in "vsa" and x[1:].isdigit()]
    return valu("%s %s, %s, %s" % (op, d, a, b), rd, [d], kind)
def v1(op, d, a, kind="V"):
    rd = [a] if isinstance(a, str) and a[0] in "vsa" and a[1:].isdigit() else []
    return valu("%s %s, %s" % (op, d, a), rd, [d], kind)
def v3(op, d, a, b, c):
    rd = [x for x in (a, b, c) if isinstance(x, str) and x[0] in "vsa" and x[1:].isdigit()]
    return valu("%s %s, %s, %s, %s" % (op, d, a, b, c), rd, [d])
def s2(op, d, a, b):
    rd = [x for x in (a, b) if isinstance(x, str) and (x[0] == "s" or x == "m0")]
    return salu("%s %s, %s, %s" % (op, d, a, b), rd, [d, "scc"])
def smov(d, a):
    return salu("s_mov_b32 %s, %s" % (d, a), [a] if isinstance(a, str) and a[0] == "s" else [], [d])
def mul_(r): return v2("v_mul_f32", "v%d" % r, "s%d" % sC, "v%d" % r)
def exp_(r): return v1("v_exp_f32", "v%d" % r, "v%d" % r, "T")
def cvt_(d, a, b): return v2("v_cvt_pk_bf16_f32", "v%d" % d, "v%d" % a, "v%d" % b)
def dsr128(dp, d, addr, off, tag):
    assert 0 <= off < 65536
    return Ins("ds_read_b128 %s, v%d offset:%d" % (rng(dp, d, 4), addr, off), "D", ["v%d" % addr], R(dp, d, 4), tag=tag)
def dstr(d, addr, off, tag):
    assert 0 <= off < 65536
    return Ins("ds_read_b64_tr_b16 %s, v%d offset:%d" % (rng("a", d, 2), addr, off), "D", ["v%d" % addr], R("a", d, 2), tag=tag)
def dsw64(addr, src, off):
    return Ins("ds_write_b64 v%d, %s offset:%d" % (addr, rng("v", src, 2), off), "W", ["v%d" % addr] + R("v", src, 2), [])
def dma(voff, sr, soff, off, tag, m0, aux=""):
    if sr == sK_ and cfg.k_aux: aux = cfg.k_aux
    if sr == sV_ and cfg.v_aux: aux = cfg.v_aux
    i = Ins("buffer_load_dwordx4 v%d, %s, s%d offen offset:%d %slds" % (voff, srd(sr), soff, off, aux + " " if aux else ""), "X",
            ["v%d" % voff, "s%d" % soff, "m0"] + srdr(sr), [], tag=tag)
    i.cmt = m0
    return i
def store(src, soff, off, tag=None):
    return Ins("buffer_store_dwordx4 %s, v%d, %s, s%d offen offset:%d%s" % (rng("a", src, 4), OS, srd(sO_), soff, off, " " + cfg.o_aux if cfg.o_aux else ""), "X",
               R("a", src, 4) + ["v%d" % OS, "s%d" % soff] + srdr(sO_), [], tag=tag)
def setm0(m0):
    return s2("s_add_u32", "m0", "s%d" % m0[0], str(m0[1]))

if cfg.qkord == 0:   QKSEQ = [(f // 4, q, f % 4) for f in range(8) for q in range(2)]
elif cfg.qkord == 1: QKSEQ = [(kt, q, s if q == 0 else 3 - s) for kt in range(2) for q in range(2) for s in range(4)]
else:                QKSEQ = [(c // 2, (0, 1, 1, 0)[c], s if c % 2 == 0 else 3 - s) for c in range(4) for s in range(4)]
def kfirst(f): return min(i for i, (kt, q, s) in enumerate(QKSEQ) if 4 * kt + s == f)
def klast(f): return max(i for i, (kt, q, s) in enumerate(QKSEQ) if 4 * kt + s == f)
def sdone(q, kt): return max(i for i, x in enumerate(QKSEQ) if x[:2] == (kt, q))
def qfirst(q, s): return min(i for i, x in enumerate(QKSEQ) if x[1:] == (q, s))
GRP = sorted([(q, kt) for q in range(2) for kt in range(2)], key=lambda g: sdone(*g))
KORD = sorted(range(8), key=kfirst)
def qk_block(h):
    L = []; seen = set()
    for kt, q, s in QKSEQ:
        L.append(mfma("v", S_(h, q, kt), "a", AK + 4 * (4 * kt + s), "a", AQ + 16 * (2 * h + q) + 4 * s, czero=((kt, q) not in seen)))
        seen.add((kt, q))
    return L
def pvpos(b, q):
    if cfg.qmaj: return 9 * q + 1 + b
    return 2 * b + q + (1 if b >= 3 else 0) + (1 if b >= 6 else 0)
def pfirst(q): return 9 * q if cfg.qmaj else q
def pv_block(h, first):
    L = []
    if cfg.qmaj:
        for q in range(2):
            L.append(mfma("a", AL + 4 * (2 * h + q), "a", AONE, "v", P_(h, q), czero=first))
            for b in range(8): L.append(mfma("v", O_(2 * h + q, b), "a", AV + 4 * b, "v", P_(h, q), czero=first))
        return L
    for b in range(8):
        for q in range(2):
            L.append(mfma("v", O_(2 * h + q, b), "a", AV + 4 * b, "v", P_(h, q), czero=first))
        if b in (2, 5):
            q = b // 4
            L.append(mfma("a", AL + 4 * (2 * h + q), "a", AONE, "v", P_(h, q), czero=first))
    return L

class Item:
    def __init__(self, ins, ready, dead, target, deps=()):
        self.ins = ins; self.ready = ready; self.dead = dead; self.target = target; self.deps = list(deps); self.gap = None
        k = ins.kind
        self.cost = 8 if k in ("T", "X", "W") else 4
class Gap:
    def __init__(self, m):
        self.pre = []; self.m = m; self.sh = [lsite()]; self.ds = []; self.va = []
    def flat(self): return self.pre + [self.m] + self.sh + self.ds + self.va

def schedule(gaps, items, name):
    n = len(gaps)
    todo = sorted(items, key=lambda i: (i.target, i.dead))
    for g in range(n):
        G = gaps[g]
        def ok(it):
            if it.ready > g: return False
            for d, dist in it.deps:
                if d.gap is None or d.gap + dist > g: return False
            return True
        def place(it):
            it.gap = g; todo.remove(it)
            (G.ds if it.ins.kind in ("D", "W", "X") else G.va).append(it.ins)
        def fits(it, used):
            k = it.ins.kind
            if any(x.kind == "X" for x in G.ds): return False
            if k == "X": return used == 0
            return True
        used = 0
        for it in [x for x in todo if x.dead <= g]:
            if ok(it) and fits(it, used): place(it); used += it.cost
        while used < 8:
            c = [it for it in todo if ok(it) and fits(it, used) and it.cost <= 8 - used]
            if not c: break
            it = c[0]
            if used == 0 and it.cost == 4:
                four = [x for x in c[1:] if x.cost == 4 or False]
                dep_next = [x for x in todo if x.cost == 4 and x is not it and x.ready <= g and all((d.gap is not None and d.gap + dist <= g) or (d is it and dist == 0) for d, dist in x.deps)]
                eight = [x for x in c if x.cost == 8]
                if not dep_next and eight and it.dead > g: it = eight[0]
            place(it); used += it.cost
        c = [it for it in todo if ok(it) and fits(it, used) and it.cost == 4 and it.target < g - cfg.lag]
        if c and used > 0:
            place(c[0]); used += 4
        while True:
            over = False
            dem = 0
            for it in sorted(todo, key=lambda i: min(i.dead, n - 1)):
                dem += 12 if it.ins.kind == "X" else it.cost
                d = min(it.dead, n - 1)
                if dem > 12 * (d - g): over = True; break
            if not over: break
            c = sorted([it for it in todo if ok(it) and fits(it, used)], key=lambda i: (min(i.dead, n - 1), i.target))
            if not c: break
            place(c[0]); used += c[0].cost
    if todo:
        raise Exception("%s: unscheduled items: %s" % (name, [(i.ins.text, i.ready, i.dead) for i in todo]))
    for it in items:
        if it.gap > it.dead: raise Exception("%s: deadline miss %s gap %d > %d" % (name, it.ins.text, it.gap, it.dead))

def softmax_items(h, base, rdy, dead, lo=(0, 0, 0), hi=(16, 16, 8), carry=None):
    its = []; M = {}; E = {}
    def reg(e):
        q, kt = GRP[e // 4]
        return q, kt, S_(h, q, kt) + e % 4
    for e in range(lo[0], hi[0] if not (cfg.fakepre or cfg.pre) else lo[0]):
        q, kt, r = reg(e)
        M[e] = Item(mul_(r), rdy(q, kt), dead(q) - 2, base + 2 * e); its.append(M[e])
    for e in range(lo[1], hi[1]):
        q, kt, r = reg(e)
        E[e] = Item(exp_(r), rdy(q, kt), dead(q) - 1, base + 2 * e + 1, [(M[e], 0)] if e in M else []); its.append(E[e])
    for j in range(lo[2], hi[2]):
        q, kt, r = reg(2 * j)
        deps = [(E[e], 1) for e in (2 * j, 2 * j + 1) if e in E]
        its.append(Item(cvt_(P_(h, q) + 2 * kt + j % 2, r, r + 1), rdy(q, kt), dead(q), base + 4 * j + 4, deps))
    return its

def kread(f, slot, dT):
    return dsr128("a", AK + 4 * f, KA + f % 4, slot * 8192 + (f // 4) * 4096, ("K", dT))
def vread(b, jj, slot, dT):
    return dstr(AV + 4 * b + 2 * jj, VA + b, slot * 8192 + jj * 4096, ("V", dT))
_uid = [0]
def kd(lead=None):
    _uid[0] += 1
    L = [dma(DA, sK_, sKo, 0, ("K", "a"), (sMKn, 0, _uid[0]), cfg.kv_aux), dma(DB, sK_, sKo, 1024, ("K", "b"), (sMKn, 0, _uid[0]), cfg.kv_aux)]
    for x in L: x.needs = lead
    return L
def vd(lead=None):
    _uid[0] += 1
    L = [dma(DA, sV_, sVo, 0, ("V", "a"), (sMVn, LDS_V, _uid[0]), cfg.kv_aux), dma(DB, sV_, sVo, 1024, ("V", "b"), (sMVn, LDS_V, _uid[0]), cfg.kv_aux)]
    for x in L: x.needs = lead
    return L
def kv_dmas(t, lead):
    return kd(lead + 1) + vd(lead)
def q_dmas(h, du, msgpr=sMS, mconst=0):
    return [dma(DA if i % 2 == 0 else DB, sQ_, sQT + 4 * h + i // 2, (i % 2) * 1024, ("Q", h, du), (msgpr, mconst + (i // 2) * 2048), cfg.q_aux) for i in range(8)]
def q_reads(dst, h, du, addr=QA, p="a"):
    return [dsr128(p, dst + 16 * q + 4 * s, addr + s, q * 4096, ("Q", h, du)) for q in range(2) for s in range(4)]

def pre_ops(i, k):
    r = QR + i; a = PT + 2 * k
    return [v2("v_lshlrev_b32", "v%d" % a, "16", "v%d" % r), v2("v_and_b32", "v%d" % (a + 1), "0xffff0000", "v%d" % r), mul_(a), mul_(a + 1), cvt_(r, a, a + 1)]
def pre_burst(dst, writes=True):
    L = []
    def stage(i, n):
        r = QR + i; a = PT + 2 * (i % 3)
        if n == 0: return [v2("v_lshlrev_b32", "v%d" % a, "16", "v%d" % r), v2("v_and_b32", "v%d" % (a + 1), "0xffff0000", "v%d" % r)]
        if n == 1: return [valu("v_pk_mul_f32 v[%d:%d], v[%d:%d], s[%d:%d]" % (a, a + 1, a, a + 1, sC2, sC2 + 1), R("v", a, 2), R("v", a, 2), "K")]
        if n == 2: return [cvt_(r, a, a + 1)]
        return [v1("v_accvgpr_write_b32", "a%d" % (dst + i), "v%d" % r)] if writes else []
    for i in range(32 + 3):
        for n in (3, 2, 1, 0):
            if 0 <= i - n < 32: L += stage(i - n, n)
    return L
def epi_burst(h, check=True, defer=False):
    L = []
    for q in range(2): L.append(v1("v_accvgpr_read_b32", "v%d" % (ET + q), "a%d" % (AL + 4 * (2 * h + q))))
    for q in range(2): L.append(v1("v_rcp_f32", "v%d" % (ER + 2 * q), "v%d" % (ET + q), "T"))
    if check:
        for q in range(2): L.append(v2("v_subrev_u32", "v%d" % (EU + q), "s%d" % sLO, "v%d" % (ET + q)))
        L.append(valu("v_cmp_le_u32 vcc, s%d, v%d" % (sRG, EU), ["s%d" % sRG, "v%d" % EU], ["vcc"]))
        L.append(valu("v_cmp_le_u32 s[%d:%d], s%d, v%d" % (sCMP, sCMP + 1, sRG, EU + 1), ["s%d" % sRG, "v%d" % (EU + 1)], R("s", sCMP, 2)))
    else:
        L.append(nop(1))
    for q in range(2):
        for b in range(8):
            for i in range(2):
                a = O_(2 * h + q, b) + 2 * i
                L.append(valu("v_pk_mul_f32 v[%d:%d], v[%d:%d], v[%d:%d] op_sel_hi:[1,0]" % (a, a + 1, a, a + 1, ER + 2 * q, ER + 2 * q + 1),
                              R("v", a, 2) + ["v%d" % (ER + 2 * q)], R("v", a, 2), "K"))
    sor = []
    if check:
        sor = [salu("s_or_b64 s[%d:%d], s[%d:%d], vcc" % (sACC, sACC + 1, sACC, sACC + 1), ["vcc"] + R("s", sACC, 2), R("s", sACC, 2)),
               salu("s_or_b64 s[%d:%d], s[%d:%d], s[%d:%d]" % (sACC, sACC + 1, sACC, sACC + 1, sCMP, sCMP + 1), R("s", sCMP, 2) + R("s", sACC, 2), R("s", sACC, 2))]
        if not cfg.finchk: L += sor
    for q in range(2):
        for bp in range(4):
            a = O_(2 * h + q, 2 * bp)
            for i in range(4): L.append(cvt_(a + i, a + 2 * i, a + 2 * i + 1))
            if check and cfg.finchk and (q, bp) != (0, 0):
                pa = a - 8
                L.append(mfma("a", ACHK, "a", AZERO, "v", pa, czero=(h == 0 and (q, bp) == (0, 1))))
                if sor: L.append(sor.pop(0))
    last = [mfma("a", ACHK, "a", AZERO, "v", O_(2 * h + 1, 6))] if check and cfg.finchk else []
    if defer: LASTCHK[h] = last
    elif last: L += [nop(2)] + last
    return L
def flag_ops():
    L = []
    if cfg.finchk:
        L.append(v1("v_accvgpr_read_b32", "v%d" % ET, "a%d" % ACHK))
        L.append(valu("v_cmp_u_f32 vcc, v%d, v%d" % (ET, ET), ["v%d" % ET], ["vcc"]))
        L.append(nop(2))
        L.append(salu("s_or_b64 s[%d:%d], s[%d:%d], vcc" % (sACC, sACC + 1, sACC, sACC + 1), ["vcc"] + R("s", sACC, 2), R("s", sACC, 2)))
    L.append(salu("s_cmp_lg_u64 s[%d:%d], 0" % (sACC, sACC + 1), R("s", sACC, 2), ["scc"]))
    L.append(salu("s_addc_u32 s%d, s%d, s%d" % (sBAD, sBAD, sBAD), ["scc", "s%d" % sBAD], ["s%d" % sBAD]))
    L.append(salu("s_mov_b64 s[%d:%d], 0" % (sACC, sACC + 1), [], R("s", sACC, 2)))
    L.append(salu("s_mov_b64 vcc, 0", [], ["vcc"]))
    return L
def o_writes(h):
    L = []
    for q in range(2):
        for bp in range(4):
            a = O_(2 * h + q, 2 * bp); addr = OW + bp % 2
            L.append(Ins("ds_write_b128 v%d, %s offset:%d" % (addr, rng("v", a, 4), (bp // 2) * 128 + q * 4096), "W", ["v%d" % addr] + R("v", a, 4), []))
    return L
def o_reads(h, du):
    L = []
    for j in range(8):
        for i in range(2):
            d = AO + 32 * h + 4 * j + 2 * i; addr = OR_ + 2 * (j % 2) + i
            L.append(Ins("ds_read_b64 %s, v%d offset:%d" % (rng("a", d, 2), addr, j * 1024), "D", ["v%d" % addr], R("a", d, 2), tag=("O", h, du)))
    return L
def tab_add(t): return [s2("s_add_u32", "s%d" % (t + i), "s%d" % (t + i), str(USTRIDE)) for i in range(8)]
def o_stores(h):
    return [store(AO + 32 * h + 4 * j, sOT + 4 * h + j // 2, (j % 2) * 1024) for j in range(8)]
USTRIDE = 131072 if cfg.hmap == 0 else 128 * 131072
KSTEP = (8192, 2048, 4096)[cfg.kvmap]
def adv(which, cross):
    o, t, b = (sKo, sKt, sKb) if which == "K" else (sVo, sVt, sVb)
    m = sMKn if which == "K" else sMVn
    if cfg.flag_:
        assert not cfg.rot
        L = [s2("s_add_u32", "s%d" % o, "s%d" % o, "8192")]
        if USTRIDE != 131072:
            L += [s2("s_bfe_u32", "s%d" % t, "s%d" % o, "0x10011"), s2("s_mul_i32", "s%d" % t, "s%d" % t, str(USTRIDE - 131072)), s2("s_add_u32", "s%d" % o, "s%d" % o, "s%d" % t)]
        return L + [s2("s_add_u32", "s%d" % m, "s%d" % m, "8192"), s2("s_and_b32", "s%d" % m, "s%d" % m, "0xffff")]
    M = [s2("s_add_u32", "s%d" % m, "s%d" % m, "8192"), s2("s_and_b32", "s%d" % m, "s%d" % m, "0xffff")]
    if not cfg.rot:
        return M + [s2("s_add_u32", "s%d" % o, "s%d" % o, str(KSTEP + (USTRIDE - 16 * KSTEP if cross else 0)))]
    L = M + [s2("s_add_u32", "s%d" % t, "s%d" % t, "8192"), s2("s_and_b32", "s%d" % t, "s%d" % t, "0x1ffff")]
    if cross: L.append(s2("s_add_u32", "s%d" % b, "s%d" % b, str(USTRIDE)))
    L.append(s2("s_add_u32", "s%d" % o, "s%d" % b, "s%d" % t))
    return L

LEAD = cfg.lead
LAT = cfg.lat
B0, B1, B2, B3, NG = 0, 16, 34, 50, 68
NW0 = 5
LASTCHK = {}
RAMP_IT = [2, 4, 6][:cfg.lead - cfg.l0]
RAMPS = {}
QA_IT = [cfg.qa0 + i for i in range(4)]; QB_IT = [8, 9, 10, 11]; ST_IT = [1, 6, 7, 12, 13, 14, 15]
QRD = cfg.qa0 + 5; QB_IT = [QRD + 1 + i for i in range(4)] if QRD <= 7 else [QRD + 1, QRD + 2]
ST_IT = ([1] + [t for t in range(2, 16) if t not in QA_IT and t not in QB_IT] + [8])
ST_IT = sorted(ST_IT[:8])
ST_MAP = {t: [2 * i, 2 * i + 1] for i, t in enumerate(ST_IT)} if cfg.stmode == 0 else {(k + 1) % 16: [k] for k in range(16)}
if cfg.stmode == 2: ST_MAP = {6: [0, 1, 2, 3], 7: [4, 5, 6, 7], 12: [8, 9, 10, 11], 13: [12, 13, 14, 15]}
QCNT_A = [2, 2, 2, 2]; QCNT_B = [8 // len(QB_IT)] * len(QB_IT)
if cfg.stmode == 4:
    QA_IT = [2, 3, 4]; QCNT_A = [3, 3, 2]; QRD = 6; QB_IT = [7, 8]; QCNT_B = [4, 4]
    ST_MAP = {9: [0, 1], 10: [2, 3], 11: [4, 5], 12: [6, 7], 13: [8, 9, 10], 14: [11, 12, 13], 15: [14, 15]}
if cfg.stmode == 5:
    QA_IT = [2, 3, 4]; QCNT_A = [3, 3, 2]; QRD = 6; QB_IT = [7, 8, 9]; QCNT_B = [3, 3, 2]
    ST_MAP = {10: [0, 1, 2], 11: [3, 4, 5], 12: [6, 7], 13: [8, 9, 10], 14: [11, 12, 13], 15: [14, 15]}
if cfg.stmode == 3: ST_MAP = {12: [0, 1, 2, 3], 13: [4, 5, 6, 7], 14: [8, 9, 10, 11], 15: [12, 13, 14, 15]}

class Seg:
    def __init__(self): self.gaps = []; self.sitems = []; self.head = []; self.tail = []; self.post = []

def build_iter(t, first=False):
    sg = Seg()
    if first:
        b0, b1, b2, b3, ng = 0, None, 16, 32, 50
        mf = qk_block(0) + qk_block(1) + pv_block(0, True)
    else:
        b0, b1, b2, b3, ng = B0, B1, B2, B3, NG
        mf = qk_block(0) + pv_block(1, t == 1) + qk_block(1) + pv_block(0, t == 0)
    gaps = [Gap(m) for m in mf]
    items = []
    INF = 10 ** 6
    slot = t % 8; nslot = (t + 1) % 8
    isbar = (t % cfg.barper == 0)
    bar_gap = cfg.bargap
    if not first:
        items += softmax_items(1, cfg.sm0 + 34 - NG, lambda q, kt: 0, lambda q: b1 + pfirst(q) - 2, lo=(cfg.e0, cfg.e0, cfg.c0))
        for i in range(cfg.f0, 8):
            f = KORD[i]
            items.append(Item(kread(f, slot, 0), 0, kfirst(f) - LAT, cfg.kt0 + cfg.kts * i - NG))
    items += softmax_items(0, (cfg.sm0 if not first else 12), lambda q, kt: b0 + sdone(q, kt) + cfg.rdy, lambda q: b3 + pfirst(q) - 2)
    items += softmax_items(1, b3 - B3 + cfg.sm0 + 34, lambda q, kt: b2 + sdone(q, kt) + cfg.rdy, lambda q: INF, hi=(cfg.e0, cfg.e0, cfg.c0))
    for b in range(8):
        for jj in range(2):
            rdy = (b1 + pvpos(b, 1)) if not first else cfg.fbar + 1
            items.append(Item(vread(b, jj, slot, 0), max(rdy, bar_gap + 1), b3 + pvpos(b, 0) - LAT, (cfg.vt0 + cfg.vts * (2 * b + jj)) if not first else cfg.fbar + 1 + b + jj * 0.5))
    for i in range(cfg.f0):
        f = KORD[i]
        items.append(Item(kread(f, nslot, 1), max(b2 + klast(f), cfg.fbar + 1 if first else 0), min(ng - 1, ng + kfirst(f) - LAT), b3 - B3 + cfg.kt0 + cfg.kts * i))
    def chain(lst, targets, ready, dead=INF, dist=1, after=None):
        p = after; res = []
        for k, (ins, tgt) in enumerate(zip(lst, targets)):
            dd = dead[k] if isinstance(dead, list) else dead
            it = Item(ins, ready, dd, tgt, [(p, dist)] if p else []); items.append(it); p = it; res.append(it)
        return res
    if first:
        lst = []
        for n in range(cfg.l0 + 1): lst += [("V", vd()), ("K", kd())]
        if cfg.early: lst = lst[1:]
        p = None; tg = 1
        for k, (w, pr) in enumerate(lst):
            rdy = 1 if k < 8 - cfg.early else cfg.fbar + 2
            its = chain(pr, [tg, tg + 1], rdy, after=p, dist=1); p = its[1]; tg += 2 if k < 4 else 3
            sg.post.append((its[1], adv(w, False)))
        gaps[7].sh.append(vsite([("Q", 1, 0)]))
        if cfg.pre:
            for i, ins in enumerate(q_reads(QR, 1, 0, addr=TM, p="v")): items.append(Item(ins, 8, 11, 8 + 0.5 * i))
            gaps[16].pre += [lsite()] + pre_burst(AQ + 32) + [nop(1)]
        else:
          for i, ins in enumerate(q_reads(AQ + 32, 1, 0, addr=TM)):
            items.append(Item(ins, 8, 16 - LAT + qfirst(i // 4, i % 4) + 1, 8 + 0.5 * qfirst(i // 4, i % 4)))
        al = lsite(); al.needs = "all"
        gaps[cfg.fbar].sh += [al, vsite([("V", 0), ("K", 1)]), bar()]
        if cfg.barper == 2: gaps[ng - 1].va += [vsite([("V", 1), ("K", 2)]), bar()]
    else:
        dm = kv_dmas(t, LEAD)
        dmt = [cfg.x0 + cfg.xs * i for i in range(4)] if isbar else [cfg.x1 + cfg.xs * i for i in range(4)]
        kvits = chain(dm, dmt, (bar_gap + 2) if isbar else 1)
        for a in adv("K", (t + LEAD + 2) % 16 == 0): sg.sitems.append((a, ("after", kvits[1]), None))
        for a in adv("V", (t + LEAD + 1) % 16 == 0): sg.sitems.append((a, ("after", kvits[3]), None))
        if isbar:
            needs = [("V", 0), ("K", 1)] + ([("V", 1), ("K", 2)] if cfg.barper == 2 else [])
            if t in RAMP_IT:
                r = Ins("s_cbranch_vccnz L_ramp%dA\nL_back%d:" % (t, t), "RAMP", ["vcc"]); r.cmt = "ramp%d" % t
                gaps[bar_gap - 2].sh.append(r)
                k = RAMP_IT.index(t)
                for role in ("A", "B"):
                    L = [vsite(needs)]
                    for w, pr in (("V", vd()), ("K", kd())):
                        follower = (w == "V") == (role == "A")
                        if follower and k >= len(RAMP_IT) - cfg.flag_: continue
                        L += [setm0(pr[0].cmt), nop(1)] + pr + adv(w, False)
                    if t == RAMP_IT[-1]: L.append(salu("s_mov_b64 vcc, 0", [], ["vcc"]))
                    L.append(raw("s_branch L_back%d" % t, "BR"))
                    if role == "A": L[0:0] = [raw("s_bitcmp1_b32 s2, 3"), raw("s_cbranch_scc1 L_ramp%dB" % t)]
                    RAMPS["ramp%d%s" % (t, role)] = L
            gaps[bar_gap - 1].sh.append(vsite(needs))
            gaps[bar_gap].sh.append(bar())
    XT = [cfg.xt, cfg.xt + cfg.xts]
    if not first and t == 0:
        gaps[0].pre += epi_burst(0, defer=True)
        gaps[1].pre += LASTCHK[0]
        W = chain(o_writes(0), [1.5 + 3.5 * i for i in range(8)], 0, 38)
        chain(o_reads(0, -1), [29 + 1.1 * j for j in range(16)], 0, 47, dist=0, after=W[7])
        gaps[48].pre += epi_burst(1, defer=True)
        gaps[49].pre += LASTCHK[1]
        chain(o_writes(1)[:NW0], [49.5 + 4 * i for i in range(NW0)], 48)
        for i in range(16, 32) if not cfg.pre else []:
            items.append(Item(v1("v_accvgpr_mov_b32", "a%d" % (AQ + 32 + i), "a%d" % (AQN + i)), 0, b2 - 2, 2 * (i - 16)))
        for i in range(32) if cfg.pre else []:
            items.append(Item(v1("v_accvgpr_write_b32", "a%d" % (AQ + 32 + i), "v%d" % (QR + i)), 0, b2 - 2, i))
        fo = flag_ops()
        if cfg.finchk:
            i1 = Item(fo[0], 56, INF, 56); i2 = Item(fo[1], 56, 62, 57, [(i1, 0)]); items += [i1, i2]
            sg.sitems.append((fo[3], ("after2", i2), None)); sg.sitems.append(([fo[4], fo[5]], ("after2", i2), None))
            sg.sitems.append((fo[6], ("after2", i2), None)); sg.sitems.append((fo[7], ("after2", i2), None))
        else:
            gaps[60].pre += fo
    if t == 1:
        ws = o_writes(1)[NW0:]
        W = chain(ws, [0.5 + 4 * i for i in range(len(ws))], 0, [b1 + pvpos(2 * ((NW0 + i) % 4), (NW0 + i) // 4) - 1 for i in range(len(ws))])
        chain(o_reads(1, -1), [16 + 2 * j for j in range(16)], 0, INF, dist=0, after=W[-1])
        al = lsite(); al.needs = "all"; gaps[ng - 1].sh.insert(1, al)
    if not first and ST_MAP.get(t):
        ks = ST_MAP[t]
        tg = {1: [cfg.stgap], 2: XT, 3: [46, 53, 60], 4: [36, 42, 48, 54]}[len(ks)] if t not in (0, 1) else ([50, 54] if t == 1 else [20])
        st = chain([o_stores(k // 8)[k % 8] for k in ks], tg, 18, 65 if t != 0 else 30)
        for k, it in zip(ks, st):
            if k == 15:
                for a in tab_add(sOT): sg.sitems.append((a, ("after", it), None))
            if k == (15 if cfg.stmode == 0 else 15):
                sg.sitems.append((smov("s%d" % (sO_ + 2), "s%d" % sONR), ("after", it), None))
    for h, its in ((1 - cfg.pre, QA_IT), (cfg.pre, QB_IT)):
        if t in its:
            k = its.index(t)
            if k == 0:
                pass
            cn = QCNT_A if its is QA_IT else QCNT_B
            npi = cn[k]; o = sum(cn[:k])
            qd = chain(q_dmas(h, 1)[o:o + npi], {2: XT, 3: [46, 53, 60], 4: [44, 50, 56, 62]}[npi], 43, 65)
    if t == QB_IT[-1] + 1:
        class Z: gap = -1
        for a in tab_add(sQT): sg.sitems.append((a, ("after", Z), None))
    if cfg.wbl2 and t == cfg.wbl2:
        sg.head += [raw("s_cmp_lg_u32 s%d, 0" % sCNT), raw("s_cbranch_scc1 L_nowb"), raw("s_cmp_lg_u32 s%d, 0" % sW), raw("s_cbranch_scc1 L_nowb"),
                    raw("buffer_wbl2 sc1"), raw("L_nowb:")]
    if t == QRD:
        gaps[29].sh.append(vsite([("Q", 1 - cfg.pre, 1)]))
        for i, ins in enumerate(q_reads(AQN, 1, 1) if not cfg.pre else q_reads(QR, 0, 1, p="v")):
            items.append(Item(ins, 30, INF, 30 + 4 * i))
        al = lsite(); al.needs = "all"; gaps[ng - 1].sh.insert(1, al)
    if cfg.fakepre and 8 <= t <= 14:
        for i in range(23):
            r = 2 + (i % 4)
            op = [v2("v_and_b32", "v%d" % r, "0xffff0000", "v10"), v2("v_lshlrev_b32", "v%d" % r, "16", "v10"), mul_(r), mul_(r), cvt_(8, 2, 3)][i % 5]
            items.append(Item(op, 0, INF, 3 * i))
    if cfg.fakepre and t == 15:
        for i in range(32):
            sg.tail += [v2("v_and_b32", "v3", "0xffff0000", "v10"), v2("v_lshlrev_b32", "v2", "16", "v10"),
                        valu("v_pk_mul_f32 v[4:5], v[2:3], v[6:7]", [], [], "K"), cvt_(8, 4, 5), v1("v_accvgpr_write_b32", "a%d" % (AQN + i), "v8")]
    if cfg.pre and QRD < t < 15:
        n = 14 - QRD; lo_ = (t - QRD - 1) * 32 // n; hi_ = (t - QRD) * 32 // n
        last = {}
        for j, i in enumerate(range(lo_, hi_)):
            k = i % 3; p = last.get(k); base = j * (ng - 6.0) / (hi_ - lo_)
            for m, op in enumerate(pre_ops(i, k)):
                it = Item(op, 0, INF, base + 2.2 * m, [(p, 0)] if p else []); items.append(it); p = it
            last[k] = p
    if cfg.pre and t == 15:
        gaps[15].sh.append(vsite([("Q", 1, 1)]))
        Wr = [Item(v1("v_accvgpr_write_b32", "a%d" % (AQ + i), "v%d" % (QR + i)), 16, 56, 16 + i) for i in range(32)]
        items += Wr
        for i, ins in enumerate(q_reads(QR, 1, 1, p="v")):
            items.append(Item(ins, 16, ng - 6, 22 + 4.5 * i, [(w, 1) for w in Wr[4 * i:4 * i + 4]]))
        sg.tail += [lsite()] + pre_burst(None, writes=False)
    if t == 15 and not cfg.pre:
        gaps[15].sh.append(vsite([("Q", 0, 1)]))
        for i, ins in enumerate(q_reads(AQ, 0, 1)):
            items.append(Item(ins, 16, ng - 1 - LAT, 17 + 5 * i))
        for i in range(16):
            items.append(Item(v1("v_accvgpr_mov_b32", "a%d" % (AQ + 32 + i), "a%d" % (AQN + i)), b3, INF, b3 + i))
    schedule(gaps, items, "it%d%s" % (t, "f" if first else ""))
    for it, ops in sg.post: gaps[it.gap].va += ops
    sg.gaps = gaps
    return sg

def place_scalar(sg):
    gaps = sg.gaps
    def busy(G): return sum(1 for x in G.sh if (x.kind not in ("LSITE", "VSITE")) ) + (1 if any(x.kind in ("LSITE", "VSITE") and x.n is not None for x in G.sh) else 0)
    cur = None; lastx = -1
    for g, G in enumerate(gaps):
        if any("s_mov_b32 m0" in x.text for x in G.pre): cur = None; lastx = max(lastx, g - 1)
        if any(x.kind == "RAMP" for x in G.sh): cur = None; lastx = max(lastx, g)
        for x in G.ds:
            if x.kind == "X" and "m0" in x.rd:
                if cur != x.cmt:
                    cands = [k for k in range(max(lastx, 0) if lastx < 0 else lastx + 1, g)]
                    free = [k for k in cands if busy(gaps[k]) == 0]
                    if cands:
                        k = free[-1] if free else cands[-1]
                        gaps[k].sh.append(setm0(x.cmt))
                    elif any("s_mov_b32 m0" in y.text for y in G.pre):
                        G.pre.append(setm0(x.cmt))
                    else:
                        gaps[lastx].va.append(setm0(x.cmt))
                    cur = x.cmt
                lastx = g
    lastpos = {}
    ntail = 0
    for ins, (how, it), _ in sg.sitems:
        lst = ins if isinstance(ins, list) else [ins]
        c = [k for k in range(max(it.gap + (1 if how == "after2" else 0), lastpos.get(id(it), -1)) + 1, len(gaps)) if busy(gaps[k]) == 0]
        if c: gaps[c[0]].sh += lst; lastpos[id(it)] = c[0]
        else: sg.tail[ntail:ntail] = lst; ntail += len(lst); lastpos[id(it)] = len(gaps)

def flat(sg):
    L = list(sg.head)
    for G in sg.gaps: L += G.flat()
    return L + sg.tail

def prologue():
    L = []
    A = L.append
    A(raw("s_cmp_ge_u32 s2, 256")); A(raw("s_cbranch_scc1 L_end"))
    A(raw("s_load_dwordx4 s[36:39], s[0:1], 0")); A(raw("s_load_dwordx4 s[40:43], s[0:1], 16"))
    A(v2("v_lshrrev_b32", "v1", "6", "v0")); A(v2("v_and_b32", "v0", "63", "v0"))
    A(valu("v_readfirstlane_b32 s%d, v1" % sW, ["v1"], ["s%d" % sW]))
    A(v2("v_lshrrev_b32", "v2", "4", "v0"))
    A(v2("v_and_b32", "v3", "15", "v0"))
    if cfg.xmap == 0:
        A(raw("s_and_b32 s45, s2, 7")); A(raw("s_lshr_b32 s46, s2, 4")); A(raw("s_lshl_b32 s45, s45, 4")); A(raw("s_add_u32 s45, s45, s46"))
    else:
        A(raw("s_and_b32 s45, s2, 7")); A(raw("s_lshr_b32 s46, s2, 4")); A(raw("s_lshl_b32 s46, s46, 3")); A(raw("s_add_u32 s45, s45, s46"))
    if cfg.rot:
        A(raw("s_mul_i32 s%d, s45, %d" % (sKt, cfg.rot * 8192))); A(raw("s_and_b32 s%d, s%d, 0x1ffff" % (sKt, sKt))); A(smov("s%d" % sVt, "s%d" % sKt))
        A(smov("s%d" % sKb, "0")); A(smov("s%d" % sVb, "0"))
    A(raw("s_lshl_b32 s45, s45, %d" % (19 if cfg.hmap == 0 else 17)))
    A(raw("s_bfe_u32 s46, s2, 0x10003")); A(raw("s_lshl_b32 s46, s46, 16")); A(raw("s_add_u32 s46, s46, s45"))
    A(s2("s_lshl_b32", "s%d" % sMK, "s%d" % sW, "11"))
    A(v2("v_lshlrev_b32", "v4", "1", "v2")); A(v2("v_xor_b32", "v4", "v3", "v4")); A(v2("v_lshlrev_b32", "v4", "4", "v4"))
    A(v3("v_lshl_add_u32", "v%d" % DA, "v2", "8", "v4")); A(v2("v_xor_b32", "v%d" % DB, "0x80", "v%d" % DA))
    A(smov("s%d" % sMKn, "s%d" % sMK)); A(smov("s%d" % sMVn, "s%d" % sMK))
    if cfg.cpf:
        A(raw("s_lshr_b32 s%d, s2, 3" % sT)); A(raw("s_lshl_b32 s%d, s%d, 2" % (sT, sT))); A(raw("s_add_u32 s%d, s%d, s%d" % (sT, sT, sW)))
        A(raw("s_and_b32 s%d, s%d, 31" % (sT, sT))); A(raw("s_lshl_b32 s%d, s%d, 10" % (sT, sT)))
        A(raw("s_min_u32 s%d, s%d, L_end - L_pc - 1024" % (sT, sT)))
        A(v2("v_lshlrev_b32", "v5", "4", "v0")); A(v2("v_add_u32", "v5", "s%d" % sT, "v5"))
        A(raw("s_getpc_b64 s[58:59]\nL_pc:"))
        A(Ins("global_load_dwordx4 v[72:75], v5, s[58:59]", "X", ["v5"], R("v", 72, 4)))
    A(s2("s_lshl_b32", "s%d" % sMS, "s%d" % sW, "13")); A(s2("s_add_u32", "s%d" % sMS, "s%d" % sMS, str(LDS_S)))
    A(s2("s_lshl_b32", "s%d" % sQo, "s%d" % sW, str(WSH)))
    for i in range(8): A(s2("s_add_u32", "s%d" % (sQT + i), "s%d" % sQo, str(i * PSTEP)))
    for b in (sQ_, sK_, sV_, sO_): A(smov("s%d" % (b + 3), "0x20000"))
    A(smov("s%d" % (sK_ + 2), str(3 * USTRIDE + 131072))); A(smov("s%d" % (sV_ + 2), str(3 * USTRIDE + 131072)))
    A(smov("s%d" % (sQ_ + 2), str(3 * USTRIDE + 65536))); A(smov("s%d" % sONR, str(3 * USTRIDE + 65536))); A(smov("s%d" % (sO_ + 2), "0"))
    assert not cfg.rot and not cfg.flag_
    if cfg.kvmap == 0: A(s2("s_lshl_b32", "s%d" % sKo, "s%d" % sW, "11"))
    elif cfg.kvmap == 1: A(s2("s_lshl_b32", "s%d" % sKo, "s%d" % sW, "15"))
    else:
        A(s2("s_and_b32", "s%d" % sKo, "s%d" % sW, "1")); A(s2("s_lshl_b32", "s%d" % sKo, "s%d" % sKo, "11"))
        A(s2("s_lshr_b32", "s%d" % sVo, "s%d" % sW, "1")); A(s2("s_lshl_b32", "s%d" % sVo, "s%d" % sVo, "16")); A(s2("s_add_u32", "s%d" % sKo, "s%d" % sKo, "s%d" % sVo))
    A(smov("s%d" % sVo, "s%d" % sKo))
    A(raw("s_waitcnt lgkmcnt(0)"))
    if cfg.stamp2: L += stamp()
    for b, p, o in ((sK_, 38, 45), (sQ_, 36, 46), (sV_, 40, 45), (sO_, 42, 46)):
        A(salu("s_add_u32 s%d, s%d, s%d" % (b, p, o), [], ["s%d" % b])); A(salu("s_addc_u32 s%d, s%d, 0" % (b + 1, p + 1), [], ["s%d" % (b + 1)]))
    def issue(lst):
        cur = None
        for x in lst:
            if x.kind == "X" and cur != x.cmt:
                A(setm0(x.cmt)); A(nop(1)); cur = x.cmt
            A(x)
    k0 = kd(); v0 = vd() if cfg.early else None
    q0 = q_dmas(0, 0)
    if cfg.early:
        issue([k0[0], q0[0], v0[0], k0[1], v0[1]] + adv("K", False) + adv("V", False) + q0[1:])
    else:
        issue(k0 + adv("K", False) + q0)
    A(s2("s_sub_u32", "s%d" % sT, "s%d" % sMS, "32768"))
    issue(q_dmas(1, 0, msgpr=sT))
    if cfg.stamp2: L += stamp()
    for i in range(8): A(s2("s_sub_u32", "s%d" % (sOT + i), "s%d" % (sQT + i), str(USTRIDE)))
    L += tab_add(sQT)
    A(v2("v_and_b32", "v5", "7", "v3")); A(v2("v_lshlrev_b32", "v6", "1", "v5"))
    for s in range(4):
        A(v2("v_add_u32", "v7", str(4 * s), "v2")); A(v2("v_xor_b32", "v7", "v7", "v6")); A(v2("v_lshlrev_b32", "v7", "4", "v7"))
        A(v3("v_lshl_add_u32", "v%d" % (KA + s), "v3", "8", "v7"))
        A(v2("v_add_u32", "v%d" % (QA + s), "s%d" % sMS, "v%d" % (KA + s)))
        A(v2("v_subrev_u32", "v%d" % (TM + s), "0x8000", "v%d" % (QA + s)))
    A(v2("v_lshrrev_b32", "v76", "2", "v0"))
    A(v2("v_and_b32", "v77", "7", "v76")); A(v2("v_lshlrev_b32", "v77", "1", "v77"))
    A(valu("v_bfe_u32 v78, v0, 1, 1", ["v0"], ["v78"]))
    A(v2("v_and_b32", "v79", "1", "v0")); A(v2("v_lshlrev_b32", "v79", "3", "v79"))
    A(v3("v_lshl_add_u32", "v79", "v76", "8", "v79")); A(v2("v_add_u32", "v79", str(LDS_V), "v79"))
    for b in range(8):
        A(v2("v_add_u32", "v7", str(2 * b), "v78")); A(v2("v_xor_b32", "v7", "v7", "v77"))
        A(v3("v_lshl_add_u32", "v%d" % (VA + b), "v7", "4", "v79"))
    A(v2("v_lshlrev_b32", "v79", "8", "v3")); A(v2("v_add_u32", "v79", "s%d" % sMS, "v79"))
    A(v2("v_xor_b32", "v78", "v2", "v5"))
    A(v3("v_lshl_add_u32", "v%d" % OW, "v78", "4", "v79")); A(v2("v_xor_b32", "v%d" % (OW + 1), "64", "v%d" % OW))
    A(v2("v_and_b32", "v78", "12", "v3")); A(v2("v_and_b32", "v70", "1", "v3")); A(v3("v_lshl_add_u32", "v78", "v70", "1", "v78"))
    A(v2("v_xor_b32", "v78", "v78", "v2")); A(v2("v_lshlrev_b32", "v78", "4", "v78")); A(v3("v_lshl_add_u32", "v78", "v2", "8", "v78"))
    A(v2("v_and_b32", "v70", "2", "v3")); A(v3("v_lshl_add_u32", "v78", "v70", "2", "v78"))
    A(v2("v_add_u32", "v%d" % OR_, "s%d" % sMS, "v78"))
    for i, x in enumerate((16, 64, 80)): A(v2("v_xor_b32", "v%d" % (OR_ + 1 + i), str(x), "v%d" % OR_))
    A(v2("v_lshlrev_b32", "v%d" % OS, "4", "v0"))
    A(v2("v_and_b32", "v7", "3", "v0")); A(valu("v_cmp_eq_u32 vcc, 0, v7", ["v7"], ["vcc"])); A(v1("v_mov_b32", "v76", "0x3f803f80")); A(v1("v_mov_b32", "v77", "0"))
    A(valu("v_cndmask_b32 v7, v77, v76, vcc", ["v76", "v77", "vcc"], ["v7"]))
    for i in range(4):
        A(v1("v_accvgpr_write_b32", "a%d" % (AONE + i), "v7")); A(v1("v_accvgpr_write_b32", "a%d" % (AZERO + i), "v77"))
    A(smov("s%d" % sC, "0x%08x" % SCALE)); A(smov("s%d" % sC2, "0x%08x" % SCALE)); A(smov("s%d" % (sC2 + 1), "0x%08x" % SCALE))
    if cfg.fakepre: L += [v1("v_mov_b32", "v%d" % i, "1.0") for i in range(2, 12)]
    A(smov("s%d" % sLO, "0x%08x" % LO_BITS)); A(smov("s%d" % sRG, "0x%08x" % (HI_BITS - LO_BITS)))
    A(smov("s%d" % sBAD, "0")); A(salu("s_mov_b64 s[%d:%d], 0" % (sACC, sACC + 1), [], R("s", sACC, 2)))
    A(smov("s%d" % sCNT, "3"))
    A(salu("s_mov_b64 vcc, %d" % (-1 if RAMP_IT else 0), [], ["vcc"]))
    if cfg.stamp2: L += stamp()
    A(vsite([("K", 0), ("Q", 0, 0)]))
    if cfg.stamp2: L += stamp()
    A(bar())
    if cfg.pre:
        L += q_reads(QR, 0, 0, p="v") + [kread(f, 0, 0) for f in KORD] + [lsite()]
        b = pre_burst(AQ)
        for i in range(0, len(b), 20): L += b[i:i + 20] + [lsite()]
        return L + [nop(1), lsite()]
    qr = q_reads(AQ, 0, 0)
    seen = set()
    for kt, q, s in QKSEQ:
        if ("k", kt, s) not in seen: A(kread(4 * kt + s, 0, 0)); seen.add(("k", kt, s))
        if ("q", q, s) not in seen: A(qr[4 * q + s]); seen.add(("q", q, s))
    A(lsite())
    return L

def tail_seg():
    L = []
    for it in softmax_items(1, 0, lambda q, kt: 0, lambda q: 99, lo=(cfg.e0, cfg.e0, cfg.c0)):
        L.append(it.ins)
        if it.ins.kind == "T" and it.ins.text == exp_(S_(1, *GRP[3]) + 3).text: L.append(nop(1))
    if cfg.stmode == 1:
        L += [o_stores(1)[7]] + tab_add(sOT)
    L += epi_burst(0)
    gaps = [Gap(m) for m in pv_block(1, False)]
    for g, w in enumerate(o_writes(0)): gaps[g].ds.append(w)
    rd = o_reads(0, 0)
    for g in range(8): gaps[8 + g].ds += rd[2 * g:2 * g + 2]
    for G in gaps: L += G.flat()
    st = o_stores(0)
    L += [lsite()] + st[:4]
    b1 = epi_burst(1)
    k = [i for i, x in enumerate(b1) if x.kind == "K"][-1] + 1
    L += b1[:k] + [lsite()] + st[4:] + b1[k:]
    w1 = o_writes(1); r1 = o_reads(1, 0); st = o_stores(1)
    L += w1[:4] + r1[:8] + w1[4:] + r1[8:]
    L += [lsite()] + st[:2] + [lsite()] + st[2:4] + [lsite()] + st[4:6] + [lsite()] + st[6:]
    L += flag_ops()
    return L

def slow_path():
    T = []
    A = T.append
    def emit(l):
        for x in l: A(x.text)
    def wait(): A("s_waitcnt vmcnt(0) lgkmcnt(0)");
    A("s_barrier")
    if cfg.force_slow: A("s_mov_b32 s%d, 15" % sBAD)
    A("s_cmp_eq_u32 s%d, 0" % sBAD); A("s_cbranch_scc1 L_end")
    A("s_lshl_b32 s45, s%d, 13" % sW)
    for i in range(4): A("v_add_u32 v%d, s45, v%d" % (KA + i, KA + i))
    for i in range(8): A("v_add_u32 v%d, s45, v%d" % (VA + i, VA + i))
    A("s_add_u32 s46, s45, %d" % LDS_V)
    A("s_lshl_b32 s%d, s%d, %d" % (sQo, sW, WSH))
    A("v_mov_b32 v%d, v%d" % (TS + 4, DA)); A("v_mov_b32 v%d, v%d" % (TS + 5, DB))
    A("s_mov_b32 s%d, 0" % sCNT)
    A("L_slow_unit:")
    A("s_bitcmp1_b32 s%d, 3" % sBAD); A("s_cbranch_scc0 L_slow_next")
    for i in range(8): A("s_add_u32 s%d, s%d, %d" % (sQT + i, sQo, i * PSTEP)); A("s_mov_b32 s%d, s%d" % (sOT + i, sQT + i))
    wait()
    for h in range(2):
        cur = None
        for x in q_dmas(h, 0):
            if cur != x.cmt: A(setm0(x.cmt).text); A("s_nop 0"); cur = x.cmt
            A(x.text)
        wait(); emit(q_reads(AQ + 32 * h, h, 0)); wait()
    def tile_dma(sr, m0s):
        for i in range(8):
            if i % 4 == 0:
                A("s_add_u32 m0, s%d, %d" % (m0s, (i // 4) * 4096)); A("s_add_u32 s%d, s%d, %d" % (sT, sKo, (i // 4) * 4096))
            A("buffer_load_dwordx4 v%d, %s, s%d offen offset:%d lds" % (TS + 4 + i % 2, srd(sr), sT, (i % 4) * 1024))
    def qk_all():
        emit([kread(f, 0, 0) for f in range(8)]); wait()
        emit(qk_block(0) + qk_block(1)); A("s_nop 7"); A("s_nop 3")
    for i in range(4): A("v_mov_b32 v%d, 0xff800000" % (MX + i))
    A("s_mov_b32 s%d, s%d" % (sKo, sCNT)); A("s_add_u32 s%d, s%d, 131072" % (sVo, sCNT))
    A("L_slow_p1:")
    tile_dma(sK_, 45); wait(); qk_all()
    for h in range(2):
        for q in range(2):
            a = S_(h, q, 0)
            for i in range(4): A("v_max3_f32 v%d, v%d, v%d, v%d" % (MX + 2 * h + q, a + 2 * i, a + 2 * i + 1, MX + 2 * h + q))
    A("s_add_u32 s%d, s%d, 8192" % (sKo, sKo)); A("s_cmp_lt_u32 s%d, s%d" % (sKo, sVo)); A("s_cbranch_scc1 L_slow_p1")
    for op in ("v_permlane32_swap_b32", "v_permlane16_swap_b32"):
        for i in range(4): A("v_mov_b32 v%d, v%d" % (NM + i, MX + i))
        A("s_nop 1")
        for i in range(4): A("%s v%d, v%d" % (op, NM + i, MX + i))
        A("s_nop 1")
        for i in range(4): A("v_max_f32 v%d, v%d, v%d" % (MX + i, MX + i, NM + i))
    for i in range(4): A("v_mul_f32 v%d, s%d, v%d" % (NM + i, sC, MX + i))
    for i in range(128): A("v_mov_b32 v%d, 0" % (OB + i))
    for i in range(16): A("v_accvgpr_write_b32 a%d, 0" % (AL + i))
    A("s_mov_b32 s%d, s%d" % (sKo, sCNT))
    A("L_slow_p2:")
    tile_dma(sK_, 45); tile_dma(sV_, 46); wait(); qk_all()
    emit([vread(b, jj, 0, 0) for b in range(4) for jj in range(2)])
    for h in range(2):
        for q in range(2):
            a = S_(h, q, 0)
            for i in range(8): A("v_fma_f32 v%d, v%d, s%d, -v%d" % (a + i, a + i, sC, NM + 2 * h + q))
            for i in range(8): A("v_exp_f32 v%d, v%d" % (a + i, a + i))
            A("s_nop 0")
            for i in range(4): A(cvt_(P_(h, q) + i, a + 2 * i, a + 2 * i + 1).text)
    emit([vread(b, jj, 0, 0) for b in range(4, 8) for jj in range(2)])
    wait()
    emit(pv_block(0, False) + pv_block(1, False))
    A("s_add_u32 s%d, s%d, 8192" % (sKo, sKo)); A("s_cmp_lt_u32 s%d, s%d" % (sKo, sVo)); A("s_cbranch_scc1 L_slow_p2")
    A("s_nop 7"); A("s_nop 3")
    for h in range(2):
        emit(epi_burst(h, check=False)); emit(o_writes(h) + o_reads(h, 0))
        wait(); emit(o_stores(h)); wait()
    A("L_slow_next:")
    A("s_lshl_b32 s%d, s%d, 1" % (sBAD, sBAD)); A("s_and_b32 s%d, s%d, 15" % (sBAD, sBAD))
    for r in (sCNT, sQo): A("s_add_u32 s%d, s%d, %d" % (r, r, USTRIDE))
    A("s_cmp_lg_u32 s%d, 0" % sBAD); A("s_cbranch_scc1 L_slow_unit")
    return T

def stamp():
    if not cfg.stamp: return []
    return [raw("s_memtime s[58:59]"), raw("s_memrealtime s[62:63]"), raw("s_waitcnt lgkmcnt(0)"),
            raw("s_mov_b32 m0, s57"), raw("s_nop 0"), raw("v_writelane_b32 v38, s58, m0"), raw("v_writelane_b32 v39, s62, m0"), raw("s_add_u32 s57, s57, 1")]
def stamp_out():
    if not cfg.stamp: return []
    if cfg.dbgwg >= 0:
        return [x.text for x in stamp()] + ["s_cmp_lg_u32 s2, %d" % cfg.dbgwg, "s_cbranch_scc1 L_nodbg", "s_cmp_lg_u32 s%d, 0" % sW, "s_cbranch_scc1 L_nodbg",
            "s_load_dwordx2 s[36:37], s[0:1], 32", "s_waitcnt lgkmcnt(0)", "s_mov_b32 s38, 64", "s_mov_b32 s39, 0x20000",
            "v_readfirstlane_b32 s45, v39", "v_lshrrev_b32 v41, 2, v%d" % OS, "s_nop 1", "v_subrev_u32 v39, s45, v39",
            "buffer_store_dword v39, v41, s[36:39], 0 offen", "L_nodbg:"]
    return [x.text for x in stamp()] + ["s_load_dwordx2 s[36:37], s[0:1], 40", "s_waitcnt lgkmcnt(0)", "s_mov_b32 s38, 0x1000000", "s_mov_b32 s39, 0x20000",
            "s_lshl_b32 s45, s2, 2", "s_add_u32 s45, s45, s%d" % sW, "s_lshl_b32 s45, s45, 9", "v_lshrrev_b32 v41, 2, v%d" % OS,
            "buffer_store_dword v38, v41, s[36:39], s45 offen", "buffer_store_dword v39, v41, s[36:39], s45 offen offset:256"]
def main():
    sgs = {"it0f": build_iter(0, True)}
    for t in range(16): sgs["it%d" % t] = build_iter(t)
    def segs():
        d = {"pro": pro, "tail": tl}
        d.update(RAMPS)
        for k, s in sgs.items(): d[k] = flat(s)
        return d
    pro = prologue(); tl = tail_seg()
    if cfg.dbgspan:
        pro[2:2] = [raw("s_memrealtime s[60:61]"), raw("s_memtime s[62:63]"), raw("s_waitcnt lgkmcnt(0)"), raw("s_mov_b32 s56, s60"), raw("s_mov_b32 s57, s62")]
        i = [k for k, x in enumerate(pro) if x.kind == "BAR"][0]
        pro[i + 1:i + 1] = [raw("s_memrealtime s[58:59]")]
    if cfg.stamp:
        pro[2:2] = [raw("s_mov_b32 s57, 0")] + stamp()
        i = [k for k, x in enumerate(pro) if x.kind == "BAR"][0]
        pro[i + 1:i + 1] = stamp()
        for t in range(0, 16, cfg.stamp): sgs["it%d" % t].head[0:0] = stamp()
        tl[0:0] = stamp()
        if cfg.stamp3:
            G = sgs["it0"].gaps
            G[0].pre += stamp(); G[16].pre += stamp(); G[34].pre += stamp(); G[48].pre[0:0] = stamp(); G[48].pre += stamp()
            sgs["it1"].head[0:0] = stamp(); sgs["it1"].gaps[34].pre += stamp(); sgs["it2"].head[0:0] = stamp(); sgs["it3"].head[0:0] = stamp()
        if cfg.stamp2:
            sgs["it0f"].gaps[16].pre += stamp(); sgs["it0f"].gaps[cfg.fbar + 1].pre += stamp(); sgs["it0f"].tail[0:0] = stamp()
    traces = []
    for role in ("A", "B"):
        x = dict(role=role, lagK=cfg.flag_ if role == "B" else 0, lagV=cfg.flag_ if role == "A" else 0)
        trace = [("pro", dict(T=0, u=0, first=1, **x)), ("it0f", dict(T=0, u=0, first=1, **x))]
        for u in range(4):
            for t in range(16):
                if (u, t) != (0, 0): trace.append(("it%d" % t, dict(T=16 * u + t, u=u, first=(u == 0 and t < 8), **x)))
        trace.append(("tail", dict(T=64, u=3, **x)))
        traces.append(trace)
    sgs["it0f"].tail.append(raw("s_branch L_it1", "BR"))
    sgs["it15"].tail += [s2("s_sub_u32", "s%d" % sCNT, "s%d" % sCNT, "1"), raw("s_cbranch_scc0 L_it0", "BR")]
    insert_waits(segs(), traces)
    for k, s in sgs.items():
        br = [x for x in s.tail if x.kind == "BR" or "s_sub_u32 s%d" % sCNT in x.text]
        s.tail = [x for x in s.tail if x not in br]
        place_scalar(s)
        s.tail += br
    fs = {k: finalize(v) for k, v in segs().items()}
    errs = sum((verify(fs, tr, {"K": 8, "V": 16, "Q": 8, "O": 16}) for tr in traces), [])
    for e in errs[:40]: sys.stderr.write("ERR " + e + "\n")
    tot = 0
    for k in ["pro", "it0f"] + ["it%d" % t for t in range(16)] + ["tail"]:
        est = issue_estimate(fs[k]); sys.stderr.write("%s:%d " % (k, est))
        if k.startswith("it") and k != "it0f": tot += est
    if cfg.stamp3:
        for k in ("it0", "it1", "it2"):
            parts = [[]]
            for x in fs[k]:
                if "s_memtime" in x.text: parts.append([])
                parts[-1].append(x)
            sys.stderr.write("\n%s parts %s" % (k, [issue_estimate(p) for p in parts]))
    sys.stderr.write("\nunit estimate %d cycles, errors %d\n" % (tot, len(errs)))
    out = []
    hdr = open(os.path.join(os.path.dirname(os.path.abspath(__file__)), "..", "cdna_kernels", NAME + ".s.ref")).read().split("; Override")[0]
    out.append(hdr.rstrip())
    out.append("; @launch grid=(256,1,1) block=(256,1,1) lds=163840")
    out.append('.amdgcn_target "amdgcn-amd-amdhsa--gfx950"\n.text\n.globl %s_kernel\n.p2align 8\n.type %s_kernel,@function\n%s_kernel:' % (NAME, NAME, NAME))
    par = {}
    def dump(k):
        out.append("; ---- " + k)
        for x in fs[k]:
            if cfg.nocomp and k != "pro" and x.kind in ("M", "V", "T", "K", "D", "W"):
                par[x.kind] = par.get(x.kind, 0) + 1
                if cfg.nocomp == 1 or par[x.kind] % cfg.nocomp == 0: continue
            if cfg.nomem and k != "pro" and x.kind == "X" and (cfg.nomem == 1 or "store" in x.text): continue
            if cfg.nostore and x.kind == "X" and "store" in x.text: continue
            out.append("  " + x.text)
            if cfg.nocomp and "m0" in x.wr: out.append("  s_nop 0")
    dump("pro"); dump("it0f")
    for k in RAMPS: out.append("L_%s:" % k); dump(k)
    out.append(".p2align 6\nL_it0:"); dump("it0"); out.append("L_it1:")
    for t in range(1, 16): dump("it%d" % t)
    dump("tail")
    if cfg.dbgspan:
        out += ["  " + x for x in ["s_waitcnt vmcnt(0)", "s_memrealtime s[60:61]", "s_memtime s[62:63]", "s_load_dwordx2 s[36:37], s[0:1], 32", "s_waitcnt lgkmcnt(0)", "s_mov_b32 s38, 256", "s_mov_b32 s39, 0x20000",
            "s_not_b32 s45, s56", "v_mov_b32 v2, s45", "v_mov_b32 v3, s58", "v_mov_b32 v4, s60", "v_mov_b32 v5, s56", "s_not_b32 s45, s60", "v_mov_b32 v6, s45", "s_sub_u32 s45, s62, s57", "v_mov_b32 v7, s45", "v_mov_b32 v1, 0",
            "s_mov_b64 exec, 1",
            "buffer_atomic_umax v2, v1, s[36:39], 0 offen", "buffer_atomic_umax v3, v1, s[36:39], 0 offen offset:4", "buffer_atomic_umax v4, v1, s[36:39], 0 offen offset:8",
            "buffer_atomic_umax v5, v1, s[36:39], 0 offen offset:12", "buffer_atomic_umax v6, v1, s[36:39], 0 offen offset:16", "buffer_atomic_umax v7, v1, s[36:39], 0 offen offset:20", "s_mov_b64 exec, -1"]]
    if cfg.stamp:
        out.append("  s_waitcnt vmcnt(0)")
        out += [("  " + x if not x.endswith(":") else x) for x in stamp_out()]
    if cfg.nocomp or cfg.nomem or cfg.fakepre: out.append("  s_mov_b32 s%d, 0" % sBAD)
    out += ["  " + x if not x.endswith(":") else x for x in slow_path()]
    out.append("L_end:\n  s_endpgm")
    out.append('.section .rodata,"a"\n.p2align 6\n.amdhsa_kernel %s_kernel' % NAME)
    out.append("  .amdhsa_next_free_vgpr 512\n  .amdhsa_next_free_sgpr 80\n  .amdhsa_accum_offset 256\n  .amdhsa_group_segment_fixed_size 0\n  .amdhsa_kernarg_size 48\n  .amdhsa_user_sgpr_count 2\n  .amdhsa_user_sgpr_kernarg_segment_ptr 1\n  .amdhsa_system_sgpr_workgroup_id_x 1\n.end_amdhsa_kernel")
    open(sys.argv[1], "w").write("\n".join(out) + "\n")
    if errs: sys.exit(1)
main()
```

```python
import sys, os, struct, math
from core import *

class Cfg:
    barper = 2
    finchk = 1
    lat = 7
    k_aux = ""
    v_aux = ""
    kv_aux = "nt"
    q_aux = "nt"
    o_aux = "nt"
    e0 = 10; c0 = 4; f0 = 6
    force_slow = 0
    hmap = 1
    rot = 5
    xmap = 0
    stamp = 0
    dbgwg = -1
    stamp3 = 0
    stamp2 = 0
    nocomp = 0
    nomem = 0
    nostore = 0
    dbgspan = 0
    lag = 1.5
    lead = 6
    rotq = 3
    qomap = 0
    pre = 0
    wbl2 = 0
    kvmap = 1
    fakepre = 0
    x0 = 17
    x1 = 9
    xs = 8
    xts = 8
    xt = 52
    flag_ = 0
    stmode = 0
    qmaj = 0
    bargap = 14
    sm0 = 14
    qkord = 2
    kt0 = 54.0
    kts = 2.48
    vt0 = 18.0
    vts = 2.48
    stgap = 48
    l0 = 3
    cpf = 1
    qa0 = 2
    early = 1
    fbar = 22
    rdy = 5
cfg = Cfg()
for a in sys.argv[2:]:
    k, v = a.split("=")
    setattr(cfg, k, type(getattr(cfg, k))(v))

NAME = "standalone__mha_softmax__near_ridge"
KA = 16; VA = 20; DA = 28; DB = 29; QA = 30; OW = 34; OS = 40; OR_ = 8; QR = 48; PT = 2
ET = 42; ER = 44; EU = 36
MX = 50; NM = 54; TM = 12; TS = 58
PB = 80; SB = 96; OB = 128
def S_(h, q, kt): return SB + 16 * h + 8 * q + 4 * kt
def P_(h, q): return PB + 8 * h + 4 * q
def O_(qt, b): return OB + 32 * qt + 4 * b
AQ = 0; AQN = 64; AK = 96; AV = 128; AO = 160; AL = 224; AONE = 240; AZERO = 244; ACHK = 248
sQ_, sK_, sV_, sO_ = 4, 8, 12, 16
sW = 20; sKo = 21; sVo = 22; sMK = 23; sMV = 24; sQo = 25; sOo = 26; sC = 27; sBAD = 28; sUB = 29; sACC = 30; sCMP = 32
sLO = 34; sRG = 35; sMS = 44; sCNT = 47; sONR = 48; sQa = 50; sQb = 51; sOa = 52; sOb = 53; sT = 54; sKt = 55; sVt = 56; sKb = 80; sVb = 81; sMKn = 29; sMVn = 49; sC2 = 60; sQT = 64; sOT = 72
WSH, PSTEP = ((14, 2048), (11, 8192))[cfg.qomap]
LDS_V = 65536; LDS_S = 131072
SCALE = struct.unpack("<I", struct.pack("<f", math.log2(math.e) / math.sqrt(128.0)))[0]
LO_BITS = (127 - (40 if cfg.finchk else 24)) << 23
HI_BITS = (127 + (126 if cfg.finchk else 24)) << 23

def srd(b): return "s[%d:%d]" % (b, b + 3)
def srdr(b): return R("s", b, 4)

def v2(op, d, a, b, kind="V"):
    rd = [x for x in (a, b) if isinstance(x, str) and x[0] in "vsa" and x[1:].isdigit()]
    return valu("%s %s, %s, %s" % (op, d, a, b), rd, [d], kind)
def v1(op, d, a, kind="V"):
    rd = [a] if isinstance(a, str) and a[0] in "vsa" and a[1:].isdigit() else []
    return valu("%s %s, %s" % (op, d, a), rd, [d], kind)
def v3(op, d, a, b, c):
    rd = [x for x in (a, b, c) if isinstance(x, str) and x[0] in "vsa" and x[1:].isdigit()]
    return valu("%s %s, %s, %s, %s" % (op, d, a, b, c), rd, [d])
def s2(op, d, a, b):
    rd = [x for x in (a, b) if isinstance(x, str) and (x[0] == "s" or x == "m0")]
    return salu("%s %s, %s, %s" % (op, d, a, b), rd, [d, "scc"])
def smov(d, a):
    return salu("s_mov_b32 %s, %s" % (d, a), [a] if isinstance(a, str) and a[0] == "s" else [], [d])
def mul_(r): return v2("v_mul_f32", "v%d" % r, "s%d" % sC, "v%d" % r)
def exp_(r): return v1("v_exp_f32", "v%d" % r, "v%d" % r, "T")
def cvt_(d, a, b): return v2("v_cvt_pk_bf16_f32", "v%d" % d, "v%d" % a, "v%d" % b)
def dsr128(dp, d, addr, off, tag):
    assert 0 <= off < 65536
    return Ins("ds_read_b128 %s, v%d offset:%d" % (rng(dp, d, 4), addr, off), "D", ["v%d" % addr], R(dp, d, 4), tag=tag)
def dstr(d, addr, off, tag):
    assert 0 <= off < 65536
    return Ins("ds_read_b64_tr_b16 %s, v%d offset:%d" % (rng("a", d, 2), addr, off), "D", ["v%d" % addr], R("a", d, 2), tag=tag)
def dsw64(addr, src, off):
    return Ins("ds_write_b64 v%d, %s offset:%d" % (addr, rng("v", src, 2), off), "W", ["v%d" % addr] + R("v", src, 2), [])
def dma(voff, sr, soff, off, tag, m0, aux=""):
    if sr == sK_ and cfg.k_aux: aux = cfg.k_aux
    if sr == sV_ and cfg.v_aux: aux = cfg.v_aux
    i = Ins("buffer_load_dwordx4 v%d, %s, s%d offen offset:%d %slds" % (voff, srd(sr), soff, off, aux + " " if aux else ""), "X",
            ["v%d" % voff, "s%d" % soff, "m0"] + srdr(sr), [], tag=tag)
    i.cmt = m0
    return i
def store(src, soff, off, tag=None):
    return Ins("buffer_store_dwordx4 %s, v%d, %s, s%d offen offset:%d%s" % (rng("a", src, 4), OS, srd(sO_), soff, off, " " + cfg.o_aux if cfg.o_aux else ""), "X",
               R("a", src, 4) + ["v%d" % OS, "s%d" % soff] + srdr(sO_), [], tag=tag)
def setm0(m0):
    return s2("s_add_u32", "m0", "s%d" % m0[0], str(m0[1]))

if cfg.qkord == 0:   QKSEQ = [(f // 4, q, f % 4) for f in range(8) for q in range(2)]
elif cfg.qkord == 1: QKSEQ = [(kt, q, s if q == 0 else 3 - s) for kt in range(2) for q in range(2) for s in range(4)]
else:                QKSEQ = [(c // 2, (0, 1, 1, 0)[c], s if c % 2 == 0 else 3 - s) for c in range(4) for s in range(4)]
def kfirst(f): return min(i for i, (kt, q, s) in enumerate(QKSEQ) if 4 * kt + s == f)
def klast(f): return max(i for i, (kt, q, s) in enumerate(QKSEQ) if 4 * kt + s == f)
def sdone(q, kt): return max(i for i, x in enumerate(QKSEQ) if x[:2] == (kt, q))
def qfirst(q, s): return min(i for i, x in enumerate(QKSEQ) if x[1:] == (q, s))
GRP = sorted([(q, kt) for q in range(2) for kt in range(2)], key=lambda g: sdone(*g))
KORD = sorted(range(8), key=kfirst)
def qk_block(h):
    L = []; seen = set()
    for kt, q, s in QKSEQ:
        L.append(mfma("v", S_(h, q, kt), "a", AK + 4 * (4 * kt + s), "a", AQ + 16 * (2 * h + q) + 4 * s, czero=((kt, q) not in seen)))
        seen.add((kt, q))
    return L
def pvpos(b, q):
    if cfg.qmaj: return 9 * q + 1 + b
    return 2 * b + q + (1 if b >= 3 else 0) + (1 if b >= 6 else 0)
def pfirst(q): return 9 * q if cfg.qmaj else q
def pv_block(h, first):
    L = []
    if cfg.qmaj:
        for q in range(2):
            L.append(mfma("a", AL + 4 * (2 * h + q), "a", AONE, "v", P_(h, q), czero=first))
            for b in range(8): L.append(mfma("v", O_(2 * h + q, b), "a", AV + 4 * b, "v", P_(h, q), czero=first))
        return L
    for b in range(8):
        for q in range(2):
            L.append(mfma("v", O_(2 * h + q, b), "a", AV + 4 * b, "v", P_(h, q), czero=first))
        if b in (2, 5):
            q = b // 4
            L.append(mfma("a", AL + 4 * (2 * h + q), "a", AONE, "v", P_(h, q), czero=first))
    return L

class Item:
    def __init__(self, ins, ready, dead, target, deps=()):
        self.ins = ins; self.ready = ready; self.dead = dead; self.target = target; self.deps = list(deps); self.gap = None
        k = ins.kind
        self.cost = 8 if k in ("T", "X", "W") else 4
class Gap:
    def __init__(self, m):
        self.pre = []; self.m = m; self.sh = [lsite()]; self.ds = []; self.va = []
    def flat(self): return self.pre + [self.m] + self.sh + self.ds + self.va

def schedule(gaps, items, name):
    n = len(gaps)
    todo = sorted(items, key=lambda i: (i.target, i.dead))
    for g in range(n):
        G = gaps[g]
        def ok(it):
            if it.ready > g: return False
            for d, dist in it.deps:
                if d.gap is None or d.gap + dist > g: return False
            return True
        def place(it):
            it.gap = g; todo.remove(it)
            (G.ds if it.ins.kind in ("D", "W", "X") else G.va).append(it.ins)
        def fits(it, used):
            k = it.ins.kind
            if any(x.kind == "X" for x in G.ds): return False
            if k == "X": return used == 0
            return True
        used = 0
        for it in [x for x in todo if x.dead <= g]:
            if ok(it) and fits(it, used): place(it); used += it.cost
        while used < 8:
            c = [it for it in todo if ok(it) and fits(it, used) and it.cost <= 8 - used]
            if not c: break
            it = c[0]
            if used == 0 and it.cost == 4:
                four = [x for x in c[1:] if x.cost == 4 or False]
                dep_next = [x for x in todo if x.cost == 4 and x is not it and x.ready <= g and all((d.gap is not None and d.gap + dist <= g) or (d is it and dist == 0) for d, dist in x.deps)]
                eight = [x for x in c if x.cost == 8]
                if not dep_next and eight and it.dead > g: it = eight[0]
            place(it); used += it.cost
        c = [it for it in todo if ok(it) and fits(it, used) and it.cost == 4 and it.target < g - cfg.lag]
        if c and used > 0:
            place(c[0]); used += 4
        while True:
            over = False
            dem = 0
            for it in sorted(todo, key=lambda i: min(i.dead, n - 1)):
                dem += 12 if it.ins.kind == "X" else it.cost
                d = min(it.dead, n - 1)
                if dem > 12 * (d - g): over = True; break
            if not over: break
            c = sorted([it for it in todo if ok(it) and fits(it, used)], key=lambda i: (min(i.dead, n - 1), i.target))
            if not c: break
            place(c[0]); used += c[0].cost
    if todo:
        raise Exception("%s: unscheduled items: %s" % (name, [(i.ins.text, i.ready, i.dead) for i in todo]))
    for it in items:
        if it.gap > it.dead: raise Exception("%s: deadline miss %s gap %d > %d" % (name, it.ins.text, it.gap, it.dead))

def softmax_items(h, base, rdy, dead, lo=(0, 0, 0), hi=(16, 16, 8), carry=None):
    its = []; M = {}; E = {}
    def reg(e):
        q, kt = GRP[e // 4]
        return q, kt, S_(h, q, kt) + e % 4
    for e in range(lo[0], hi[0] if not (cfg.fakepre or cfg.pre) else lo[0]):
        q, kt, r = reg(e)
        M[e] = Item(mul_(r), rdy(q, kt), dead(q) - 2, base + 2 * e); its.append(M[e])
    for e in range(lo[1], hi[1]):
        q, kt, r = reg(e)
        E[e] = Item(exp_(r), rdy(q, kt), dead(q) - 1, base + 2 * e + 1, [(M[e], 0)] if e in M else []); its.append(E[e])
    for j in range(lo[2], hi[2]):
        q, kt, r = reg(2 * j)
        deps = [(E[e], 1) for e in (2 * j, 2 * j + 1) if e in E]
        its.append(Item(cvt_(P_(h, q) + 2 * kt + j % 2, r, r + 1), rdy(q, kt), dead(q), base + 4 * j + 4, deps))
    return its

def kread(f, slot, dT):
    return dsr128("a", AK + 4 * f, KA + f % 4, slot * 8192 + (f // 4) * 4096, ("K", dT))
def vread(b, jj, slot, dT):
    return dstr(AV + 4 * b + 2 * jj, VA + b, slot * 8192 + jj * 4096, ("V", dT))
_uid = [0]
def kd(lead=None):
    _uid[0] += 1
    L = [dma(DA, sK_, sKo, 0, ("K", "a"), (sMKn, 0, _uid[0]), cfg.kv_aux), dma(DB, sK_, sKo, 1024, ("K", "b"), (sMKn, 0, _uid[0]), cfg.kv_aux)]
    for x in L: x.needs = lead
    return L
def vd(lead=None):
    _uid[0] += 1
    L = [dma(DA, sV_, sVo, 0, ("V", "a"), (sMVn, LDS_V, _uid[0]), cfg.kv_aux), dma(DB, sV_, sVo, 1024, ("V", "b"), (sMVn, LDS_V, _uid[0]), cfg.kv_aux)]
    for x in L: x.needs = lead
    return L
def kv_dmas(t, lead):
    return kd(lead + 1) + vd(lead)
def q_dmas(h, du, msgpr=sMS, mconst=0):
    return [dma(DA if i % 2 == 0 else DB, sQ_, sQT + 4 * h + i // 2, (i % 2) * 1024, ("Q", h, du), (msgpr, mconst + (i // 2) * 2048), cfg.q_aux) for i in range(8)]
def q_reads(dst, h, du, addr=QA, p="a"):
    return [dsr128(p, dst + 16 * q + 4 * s, addr + s, q * 4096, ("Q", h, du)) for q in range(2) for s in range(4)]

def pre_ops(i, k):
    r = QR + i; a = PT + 2 * k
    return [v2("v_lshlrev_b32", "v%d" % a, "16", "v%d" % r), v2("v_and_b32", "v%d" % (a + 1), "0xffff0000", "v%d" % r), mul_(a), mul_(a + 1), cvt_(r, a, a + 1)]
def pre_burst(dst, writes=True):
    L = []
    def stage(i, n):
        r = QR + i; a = PT + 2 * (i % 3)
        if n == 0: return [v2("v_lshlrev_b32", "v%d" % a, "16", "v%d" % r), v2("v_and_b32", "v%d" % (a + 1), "0xffff0000", "v%d" % r)]
        if n == 1: return [valu("v_pk_mul_f32 v[%d:%d], v[%d:%d], s[%d:%d]" % (a, a + 1, a, a + 1, sC2, sC2 + 1), R("v", a, 2), R("v", a, 2), "K")]
        if n == 2: return [cvt_(r, a, a + 1)]
        return [v1("v_accvgpr_write_b32", "a%d" % (dst + i), "v%d" % r)] if writes else []
    for i in range(32 + 3):
        for n in (3, 2, 1, 0):
            if 0 <= i - n < 32: L += stage(i - n, n)
    return L
def epi_burst(h, check=True, defer=False):
    L = []
    for q in range(2): L.append(v1("v_accvgpr_read_b32", "v%d" % (ET + q), "a%d" % (AL + 4 * (2 * h + q))))
    for q in range(2): L.append(v1("v_rcp_f32", "v%d" % (ER + 2 * q), "v%d" % (ET + q), "T"))
    if check:
        for q in range(2): L.append(v2("v_subrev_u32", "v%d" % (EU + q), "s%d" % sLO, "v%d" % (ET + q)))
        L.append(valu("v_cmp_le_u32 vcc, s%d, v%d" % (sRG, EU), ["s%d" % sRG, "v%d" % EU], ["vcc"]))
        L.append(valu("v_cmp_le_u32 s[%d:%d], s%d, v%d" % (sCMP, sCMP + 1, sRG, EU + 1), ["s%d" % sRG, "v%d" % (EU + 1)], R("s", sCMP, 2)))
    else:
        L.append(nop(1))
    for q in range(2):
        for b in range(8):
            for i in range(2):
                a = O_(2 * h + q, b) + 2 * i
                L.append(valu("v_pk_mul_f32 v[%d:%d], v[%d:%d], v[%d:%d] op_sel_hi:[1,0]" % (a, a + 1, a, a + 1, ER + 2 * q, ER + 2 * q + 1),
                              R("v", a, 2) + ["v%d" % (ER + 2 * q)], R("v", a, 2), "K"))
    sor = []
    if check:
        sor = [salu("s_or_b64 s[%d:%d], s[%d:%d], vcc" % (sACC, sACC + 1, sACC, sACC + 1), ["vcc"] + R("s", sACC, 2), R("s", sACC, 2)),
               salu("s_or_b64 s[%d:%d], s[%d:%d], s[%d:%d]" % (sACC, sACC + 1, sACC, sACC + 1, sCMP, sCMP + 1), R("s", sCMP, 2) + R("s", sACC, 2), R("s", sACC, 2))]
        if not cfg.finchk: L += sor
    for q in range(2):
        for bp in range(4):
            a = O_(2 * h + q, 2 * bp)
            for i in range(4): L.append(cvt_(a + i, a + 2 * i, a + 2 * i + 1))
            if check and cfg.finchk and (q, bp) != (0, 0):
                pa = a - 8
                L.append(mfma("a", ACHK, "a", AZERO, "v", pa, czero=(h == 0 and (q, bp) == (0, 1))))
                if sor: L.append(sor.pop(0))
    last = [mfma("a", ACHK, "a", AZERO, "v", O_(2 * h + 1, 6))] if check and cfg.finchk else []
    if defer: LASTCHK[h] = last
    elif last: L += [nop(2)] + last
    return L
def flag_ops():
    L = []
    if cfg.finchk:
        L.append(v1("v_accvgpr_read_b32", "v%d" % ET, "a%d" % ACHK))
        L.append(valu("v_cmp_u_f32 vcc, v%d, v%d" % (ET, ET), ["v%d" % ET], ["vcc"]))
        L.append(nop(2))
        L.append(salu("s_or_b64 s[%d:%d], s[%d:%d], vcc" % (sACC, sACC + 1, sACC, sACC + 1), ["vcc"] + R("s", sACC, 2), R("s", sACC, 2)))
    L.append(salu("s_cmp_lg_u64 s[%d:%d], 0" % (sACC, sACC + 1), R("s", sACC, 2), ["scc"]))
    L.append(salu("s_addc_u32 s%d, s%d, s%d" % (sBAD, sBAD, sBAD), ["scc", "s%d" % sBAD], ["s%d" % sBAD]))
    L.append(salu("s_mov_b64 s[%d:%d], 0" % (sACC, sACC + 1), [], R("s", sACC, 2)))
    L.append(salu("s_mov_b64 vcc, 0", [], ["vcc"]))
    return L
def o_writes(h):
    L = []
    for q in range(2):
        for bp in range(4):
            a = O_(2 * h + q, 2 * bp); addr = OW + bp % 2
            L.append(Ins("ds_write_b128 v%d, %s offset:%d" % (addr, rng("v", a, 4), (bp // 2) * 128 + q * 4096), "W", ["v%d" % addr] + R("v", a, 4), []))
    return L
def o_reads(h, du):
    L = []
    for j in range(8):
        for i in range(2):
            d = AO + 32 * h + 4 * j + 2 * i; addr = OR_ + 2 * (j % 2) + i
            L.append(Ins("ds_read_b64 %s, v%d offset:%d" % (rng("a", d, 2), addr, j * 1024), "D", ["v%d" % addr], R("a", d, 2), tag=("O", h, du)))
    return L
def tab_add(t): return [s2("s_add_u32", "s%d" % (t + i), "s%d" % (t + i), str(USTRIDE)) for i in range(8)]
def o_stores(h):
    return [store(AO + 32 * h + 4 * j, sOT + 4 * h + j // 2, (j % 2) * 1024) for j in range(8)]
USTRIDE = 131072 if cfg.hmap == 0 else 128 * 131072
KSTEP = (8192, 2048, 4096)[cfg.kvmap]
def adv(which, cross):
    o, t, b = (sKo, sKt, sKb) if which == "K" else (sVo, sVt, sVb)
    m = sMKn if which == "K" else sMVn
    if cfg.flag_:
        assert not cfg.rot
        L = [s2("s_add_u32", "s%d" % o, "s%d" % o, "8192")]
        if USTRIDE != 131072:
            L += [s2("s_bfe_u32", "s%d" % t, "s%d" % o, "0x10011"), s2("s_mul_i32", "s%d" % t, "s%d" % t, str(USTRIDE - 131072)), s2("s_add_u32", "s%d" % o, "s%d" % o, "s%d" % t)]
        return L + [s2("s_add_u32", "s%d" % m, "s%d" % m, "8192"), s2("s_and_b32", "s%d" % m, "s%d" % m, "0xffff")]
    M = [s2("s_add_u32", "s%d" % m, "s%d" % m, "8192"), s2("s_and_b32", "s%d" % m, "s%d" % m, "0xffff")]
    if not cfg.rot:
        return M + [s2("s_add_u32", "s%d" % o, "s%d" % o, str(KSTEP + (USTRIDE - 16 * KSTEP if cross else 0)))]
    L = M + [s2("s_add_u32", "s%d" % t, "s%d" % t, str(KSTEP)), s2("s_and_b32", "s%d" % t, "s%d" % t, str(16 * KSTEP - 1))]
    if cross: L.append(s2("s_add_u32", "s%d" % b, "s%d" % b, str(USTRIDE)))
    L.append(s2("s_add_u32", "s%d" % o, "s%d" % b, "s%d" % t))
    return L

LEAD = cfg.lead
LAT = cfg.lat
B0, B1, B2, B3, NG = 0, 16, 34, 50, 68
NW0 = 5
LASTCHK = {}
RAMP_IT = [2, 4, 6][:cfg.lead - cfg.l0]
RAMPS = {}
QA_IT = [cfg.qa0 + i for i in range(4)]; QB_IT = [8, 9, 10, 11]; ST_IT = [1, 6, 7, 12, 13, 14, 15]
QRD = cfg.qa0 + 5; QB_IT = [QRD + 1 + i for i in range(4)] if QRD <= 7 else [QRD + 1, QRD + 2]
ST_IT = ([1] + [t for t in range(2, 16) if t not in QA_IT and t not in QB_IT] + [8])
ST_IT = sorted(ST_IT[:8])
ST_MAP = {t: [2 * i, 2 * i + 1] for i, t in enumerate(ST_IT)} if cfg.stmode == 0 else {(k + 1) % 16: [k] for k in range(16)}
if cfg.stmode == 2: ST_MAP = {6: [0, 1, 2, 3], 7: [4, 5, 6, 7], 12: [8, 9, 10, 11], 13: [12, 13, 14, 15]}
QCNT_A = [2, 2, 2, 2]; QCNT_B = [8 // len(QB_IT)] * len(QB_IT)
if cfg.stmode == 4:
    QA_IT = [2, 3, 4]; QCNT_A = [3, 3, 2]; QRD = 6; QB_IT = [7, 8]; QCNT_B = [4, 4]
    ST_MAP = {9: [0, 1], 10: [2, 3], 11: [4, 5], 12: [6, 7], 13: [8, 9, 10], 14: [11, 12, 13], 15: [14, 15]}
if cfg.stmode == 5:
    QA_IT = [2, 3, 4]; QCNT_A = [3, 3, 2]; QRD = 6; QB_IT = [7, 8, 9]; QCNT_B = [3, 3, 2]
    ST_MAP = {10: [0, 1, 2], 11: [3, 4, 5], 12: [6, 7], 13: [8, 9, 10], 14: [11, 12, 13], 15: [14, 15]}
if cfg.stmode == 3: ST_MAP = {12: [0, 1, 2, 3], 13: [4, 5, 6, 7], 14: [8, 9, 10, 11], 15: [12, 13, 14, 15]}

class Seg:
    def __init__(self): self.gaps = []; self.sitems = []; self.head = []; self.tail = []; self.post = []

def build_iter(t, first=False):
    sg = Seg()
    if first:
        b0, b1, b2, b3, ng = 0, None, 16, 32, 50
        mf = qk_block(0) + qk_block(1) + pv_block(0, True)
    else:
        b0, b1, b2, b3, ng = B0, B1, B2, B3, NG
        mf = qk_block(0) + pv_block(1, t == 1) + qk_block(1) + pv_block(0, t == 0)
    gaps = [Gap(m) for m in mf]
    items = []
    INF = 10 ** 6
    slot = t % 8; nslot = (t + 1) % 8
    isbar = (t % cfg.barper == 0)
    bar_gap = cfg.bargap
    if not first:
        items += softmax_items(1, cfg.sm0 + 34 - NG, lambda q, kt: 0, lambda q: b1 + pfirst(q) - 2, lo=(cfg.e0, cfg.e0, cfg.c0))
        for i in range(cfg.f0, 8):
            f = KORD[i]
            items.append(Item(kread(f, slot, 0), 0, kfirst(f) - LAT, cfg.kt0 + cfg.kts * i - NG))
    items += softmax_items(0, (cfg.sm0 if not first else 12), lambda q, kt: b0 + sdone(q, kt) + cfg.rdy, lambda q: b3 + pfirst(q) - 2)
    items += softmax_items(1, b3 - B3 + cfg.sm0 + 34, lambda q, kt: b2 + sdone(q, kt) + cfg.rdy, lambda q: INF, hi=(cfg.e0, cfg.e0, cfg.c0))
    for b in range(8):
        for jj in range(2):
            rdy = (b1 + pvpos(b, 1)) if not first else cfg.fbar + 1
            items.append(Item(vread(b, jj, slot, 0), max(rdy, bar_gap + 1), b3 + pvpos(b, 0) - LAT, (cfg.vt0 + cfg.vts * (2 * b + jj)) if not first else cfg.fbar + 1 + b + jj * 0.5))
    for i in range(cfg.f0):
        f = KORD[i]
        items.append(Item(kread(f, nslot, 1), max(b2 + klast(f), cfg.fbar + 1 if first else 0), min(ng - 1, ng + kfirst(f) - LAT), b3 - B3 + cfg.kt0 + cfg.kts * i))
    def chain(lst, targets, ready, dead=INF, dist=1, after=None):
        p = after; res = []
        for k, (ins, tgt) in enumerate(zip(lst, targets)):
            dd = dead[k] if isinstance(dead, list) else dead
            it = Item(ins, ready, dd, tgt, [(p, dist)] if p else []); items.append(it); p = it; res.append(it)
        return res
    if first:
        lst = []
        for n in range(cfg.l0 + 1): lst += [("V", vd()), ("K", kd())]
        if cfg.early: lst = lst[1:]
        p = None; tg = 1
        for k, (w, pr) in enumerate(lst):
            rdy = 1 if k < 8 - cfg.early else cfg.fbar + 2
            its = chain(pr, [tg, tg + 1], rdy, after=p, dist=1); p = its[1]; tg += 2 if k < 4 else 3
            sg.post.append((its[1], adv(w, False)))
        gaps[7].sh.append(vsite([("Q", 1, 0)]))
        if cfg.pre:
            for i, ins in enumerate(q_reads(QR, 1, 0, addr=TM, p="v")): items.append(Item(ins, 8, 11, 8 + 0.5 * i))
            gaps[16].pre += [lsite()] + pre_burst(AQ + 32) + [nop(1)]
        else:
          for i, ins in enumerate(q_reads(AQ + 32, 1, 0, addr=TM)):
            items.append(Item(ins, 8, 16 - LAT + qfirst(i // 4, i % 4) + 1, 8 + 0.5 * qfirst(i // 4, i % 4)))
        al = lsite(); al.needs = "all"
        gaps[cfg.fbar].sh += [al, vsite([("V", 0), ("K", 1)]), bar()]
        if cfg.barper == 2: gaps[ng - 1].va += [vsite([("V", 1), ("K", 2)]), bar()]
    else:
        dm = kv_dmas(t, LEAD)
        dmt = [cfg.x0 + cfg.xs * i for i in range(4)] if isbar else [cfg.x1 + cfg.xs * i for i in range(4)]
        kvits = chain(dm, dmt, (bar_gap + 2) if isbar else 1)
        for a in adv("K", (t + LEAD + 2) % 16 == 0): sg.sitems.append((a, ("after", kvits[1]), None))
        for a in adv("V", (t + LEAD + 1) % 16 == 0): sg.sitems.append((a, ("after", kvits[3]), None))
        if isbar:
            needs = [("V", 0), ("K", 1)] + ([("V", 1), ("K", 2)] if cfg.barper == 2 else [])
            if t in RAMP_IT:
                r = Ins("s_cbranch_vccnz L_ramp%dA\nL_back%d:" % (t, t), "RAMP", ["vcc"]); r.cmt = "ramp%d" % t
                gaps[bar_gap - 2].sh.append(r)
                k = RAMP_IT.index(t)
                for role in ("A", "B"):
                    L = [vsite(needs)]
                    for w, pr in (("V", vd()), ("K", kd())):
                        follower = (w == "V") == (role == "A")
                        if follower and k >= len(RAMP_IT) - cfg.flag_: continue
                        L += [setm0(pr[0].cmt), nop(1)] + pr + adv(w, False)
                    if t == RAMP_IT[-1]: L.append(salu("s_mov_b64 vcc, 0", [], ["vcc"]))
                    L.append(raw("s_branch L_back%d" % t, "BR"))
                    if role == "A": L[0:0] = [raw("s_bitcmp1_b32 s2, 3"), raw("s_cbranch_scc1 L_ramp%dB" % t)]
                    RAMPS["ramp%d%s" % (t, role)] = L
            gaps[bar_gap - 1].sh.append(vsite(needs))
            gaps[bar_gap].sh.append(bar())
    XT = [cfg.xt, cfg.xt + cfg.xts]
    if not first and t == 0:
        gaps[0].pre += epi_burst(0, defer=True)
        gaps[1].pre += LASTCHK[0]
        W = chain(o_writes(0), [1.5 + 3.5 * i for i in range(8)], 0, 38)
        chain(o_reads(0, -1), [29 + 1.1 * j for j in range(16)], 0, 47, dist=0, after=W[7])
        gaps[48].pre += epi_burst(1, defer=True)
        gaps[49].pre += LASTCHK[1]
        chain(o_writes(1)[:NW0], [49.5 + 4 * i for i in range(NW0)], 48)
        for i in range(16, 32) if not cfg.pre else []:
            items.append(Item(v1("v_accvgpr_mov_b32", "a%d" % (AQ + 32 + i), "a%d" % (AQN + i)), 0, b2 - 2, 2 * (i - 16)))
        for i in range(32) if cfg.pre else []:
            items.append(Item(v1("v_accvgpr_write_b32", "a%d" % (AQ + 32 + i), "v%d" % (QR + i)), 0, b2 - 2, i))
        fo = flag_ops()
        if cfg.finchk:
            i1 = Item(fo[0], 56, INF, 56); i2 = Item(fo[1], 56, 62, 57, [(i1, 0)]); items += [i1, i2]
            sg.sitems.append((fo[3], ("after2", i2), None)); sg.sitems.append(([fo[4], fo[5]], ("after2", i2), None))
            sg.sitems.append((fo[6], ("after2", i2), None)); sg.sitems.append((fo[7], ("after2", i2), None))
        else:
            gaps[60].pre += fo
    if t == 1:
        ws = o_writes(1)[NW0:]
        W = chain(ws, [0.5 + 4 * i for i in range(len(ws))], 0, [b1 + pvpos(2 * ((NW0 + i) % 4), (NW0 + i) // 4) - 1 for i in range(len(ws))])
        chain(o_reads(1, -1), [16 + 2 * j for j in range(16)], 0, INF, dist=0, after=W[-1])
        al = lsite(); al.needs = "all"; gaps[ng - 1].sh.insert(1, al)
    if not first and ST_MAP.get(t):
        ks = ST_MAP[t]
        tg = {1: [cfg.stgap], 2: XT, 3: [46, 53, 60], 4: [36, 42, 48, 54]}[len(ks)] if t not in (0, 1) else ([50, 54] if t == 1 else [20])
        st = chain([o_stores(k // 8)[k % 8] for k in ks], tg, 18, 65 if t != 0 else 30)
        for k, it in zip(ks, st):
            if k == 15:
                for a in tab_add(sOT): sg.sitems.append((a, ("after", it), None))
            if k == (15 if cfg.stmode == 0 else 15):
                sg.sitems.append((smov("s%d" % (sO_ + 2), "s%d" % sONR), ("after", it), None))
    for h, its in ((1 - cfg.pre, QA_IT), (cfg.pre, QB_IT)):
        if t in its:
            k = its.index(t)
            if k == 0:
                pass
            cn = QCNT_A if its is QA_IT else QCNT_B
            npi = cn[k]; o = sum(cn[:k])
            qd = chain(q_dmas(h, 1)[o:o + npi], {2: XT, 3: [46, 53, 60], 4: [44, 50, 56, 62]}[npi], 43, 65)
    if t == QB_IT[-1] + 1:
        class Z: gap = -1
        for a in tab_add(sQT): sg.sitems.append((a, ("after", Z), None))
    if cfg.wbl2 and t == cfg.wbl2:
        sg.head += [raw("s_cmp_lg_u32 s%d, 0" % sCNT), raw("s_cbranch_scc1 L_nowb"), raw("s_cmp_lg_u32 s%d, 0" % sW), raw("s_cbranch_scc1 L_nowb"),
                    raw("buffer_wbl2 sc1"), raw("L_nowb:")]
    if t == QRD:
        gaps[29].sh.append(vsite([("Q", 1 - cfg.pre, 1)]))
        for i, ins in enumerate(q_reads(AQN, 1, 1) if not cfg.pre else q_reads(QR, 0, 1, p="v")):
            items.append(Item(ins, 30, INF, 30 + 4 * i))
        al = lsite(); al.needs = "all"; gaps[ng - 1].sh.insert(1, al)
    if cfg.fakepre and 8 <= t <= 14:
        for i in range(23):
            r = 2 + (i % 4)
            op = [v2("v_and_b32", "v%d" % r, "0xffff0000", "v10"), v2("v_lshlrev_b32", "v%d" % r, "16", "v10"), mul_(r), mul_(r), cvt_(8, 2, 3)][i % 5]
            items.append(Item(op, 0, INF, 3 * i))
    if cfg.fakepre and t == 15:
        for i in range(32):
            sg.tail += [v2("v_and_b32", "v3", "0xffff0000", "v10"), v2("v_lshlrev_b32", "v2", "16", "v10"),
                        valu("v_pk_mul_f32 v[4:5], v[2:3], v[6:7]", [], [], "K"), cvt_(8, 4, 5), v1("v_accvgpr_write_b32", "a%d" % (AQN + i), "v8")]
    if cfg.pre and QRD < t < 15:
        n = 14 - QRD; lo_ = (t - QRD - 1) * 32 // n; hi_ = (t - QRD) * 32 // n
        last = {}
        for j, i in enumerate(range(lo_, hi_)):
            k = i % 3; p = last.get(k); base = j * (ng - 6.0) / (hi_ - lo_)
            for m, op in enumerate(pre_ops(i, k)):
                it = Item(op, 0, INF, base + 2.2 * m, [(p, 0)] if p else []); items.append(it); p = it
            last[k] = p
    if cfg.pre and t == 15:
        gaps[15].sh.append(vsite([("Q", 1, 1)]))
        Wr = [Item(v1("v_accvgpr_write_b32", "a%d" % (AQ + i), "v%d" % (QR + i)), 16, 56, 16 + i) for i in range(32)]
        items += Wr
        for i, ins in enumerate(q_reads(QR, 1, 1, p="v")):
            items.append(Item(ins, 16, ng - 6, 22 + 4.5 * i, [(w, 1) for w in Wr[4 * i:4 * i + 4]]))
        sg.tail += [lsite()] + pre_burst(None, writes=False)
    if t == 15 and not cfg.pre:
        gaps[15].sh.append(vsite([("Q", 0, 1)]))
        for i, ins in enumerate(q_reads(AQ, 0, 1)):
            items.append(Item(ins, 16, ng - 1 - LAT, 17 + 5 * i))
        for i in range(16):
            items.append(Item(v1("v_accvgpr_mov_b32", "a%d" % (AQ + 32 + i), "a%d" % (AQN + i)), b3, INF, b3 + i))
    schedule(gaps, items, "it%d%s" % (t, "f" if first else ""))
    for it, ops in sg.post: gaps[it.gap].va += ops
    sg.gaps = gaps
    return sg

def place_scalar(sg):
    gaps = sg.gaps
    def busy(G): return sum(1 for x in G.sh if (x.kind not in ("LSITE", "VSITE")) ) + (1 if any(x.kind in ("LSITE", "VSITE") and x.n is not None for x in G.sh) else 0)
    cur = None; lastx = -1
    for g, G in enumerate(gaps):
        if any("s_mov_b32 m0" in x.text for x in G.pre): cur = None; lastx = max(lastx, g - 1)
        if any(x.kind == "RAMP" for x in G.sh): cur = None; lastx = max(lastx, g)
        for x in G.ds:
            if x.kind == "X" and "m0" in x.rd:
                if cur != x.cmt:
                    cands = [k for k in range(max(lastx, 0) if lastx < 0 else lastx + 1, g)]
                    free = [k for k in cands if busy(gaps[k]) == 0]
                    if cands:
                        k = free[-1] if free else cands[-1]
                        gaps[k].sh.append(setm0(x.cmt))
                    elif any("s_mov_b32 m0" in y.text for y in G.pre):
                        G.pre.append(setm0(x.cmt))
                    else:
                        gaps[lastx].va.append(setm0(x.cmt))
                    cur = x.cmt
                lastx = g
    lastpos = {}
    ntail = 0
    for ins, (how, it), _ in sg.sitems:
        lst = ins if isinstance(ins, list) else [ins]
        c = [k for k in range(max(it.gap + (1 if how == "after2" else 0), lastpos.get(id(it), -1)) + 1, len(gaps)) if busy(gaps[k]) == 0]
        if c: gaps[c[0]].sh += lst; lastpos[id(it)] = c[0]
        else: sg.tail[ntail:ntail] = lst; ntail += len(lst); lastpos[id(it)] = len(gaps)

def flat(sg):
    L = list(sg.head)
    for G in sg.gaps: L += G.flat()
    return L + sg.tail

def prologue():
    L = []
    A = L.append
    A(raw("s_cmp_ge_u32 s2, 256")); A(raw("s_cbranch_scc1 L_end"))
    A(raw("s_load_dwordx4 s[36:39], s[0:1], 0")); A(raw("s_load_dwordx4 s[40:43], s[0:1], 16"))
    A(v2("v_lshrrev_b32", "v1", "6", "v0")); A(v2("v_and_b32", "v0", "63", "v0"))
    A(valu("v_readfirstlane_b32 s%d, v1" % sW, ["v1"], ["s%d" % sW]))
    A(v2("v_lshrrev_b32", "v2", "4", "v0"))
    A(v2("v_and_b32", "v3", "15", "v0"))
    if cfg.xmap == 0:
        A(raw("s_and_b32 s45, s2, 7")); A(raw("s_lshr_b32 s46, s2, 4")); A(raw("s_lshl_b32 s45, s45, 4")); A(raw("s_add_u32 s45, s45, s46"))
    else:
        A(raw("s_and_b32 s45, s2, 7")); A(raw("s_lshr_b32 s46, s2, 4")); A(raw("s_lshl_b32 s46, s46, 3")); A(raw("s_add_u32 s45, s45, s46"))
    if cfg.rot:
        A(raw("s_mul_i32 s%d, s45, %d" % (sKt, cfg.rot * KSTEP))); A(raw("s_and_b32 s%d, s%d, %d" % (sKt, sKt, 16 * KSTEP - 1))); A(smov("s%d" % sVt, "s%d" % sKt))
    if cfg.rotq: A(raw("s_mul_i32 s82, s45, %d" % (cfg.rotq * PSTEP)))
    A(raw("s_lshl_b32 s45, s45, %d" % (19 if cfg.hmap == 0 else 17)))
    A(raw("s_bfe_u32 s46, s2, 0x10003")); A(raw("s_lshl_b32 s46, s46, 16")); A(raw("s_add_u32 s46, s46, s45"))
    A(s2("s_lshl_b32", "s%d" % sMK, "s%d" % sW, "11"))
    A(v2("v_lshlrev_b32", "v4", "1", "v2")); A(v2("v_xor_b32", "v4", "v3", "v4")); A(v2("v_lshlrev_b32", "v4", "4", "v4"))
    A(v3("v_lshl_add_u32", "v%d" % DA, "v2", "8", "v4")); A(v2("v_xor_b32", "v%d" % DB, "0x80", "v%d" % DA))
    A(smov("s%d" % sMKn, "s%d" % sMK)); A(smov("s%d" % sMVn, "s%d" % sMK))
    if cfg.cpf:
        A(raw("s_lshr_b32 s%d, s2, 3" % sT)); A(raw("s_lshl_b32 s%d, s%d, 2" % (sT, sT))); A(raw("s_add_u32 s%d, s%d, s%d" % (sT, sT, sW)))
        A(raw("s_and_b32 s%d, s%d, 31" % (sT, sT))); A(raw("s_lshl_b32 s%d, s%d, 10" % (sT, sT)))
        A(raw("s_min_u32 s%d, s%d, L_end - L_pc - 1024" % (sT, sT)))
        A(v2("v_lshlrev_b32", "v5", "4", "v0")); A(v2("v_add_u32", "v5", "s%d" % sT, "v5"))
        A(raw("s_getpc_b64 s[58:59]\nL_pc:"))
        A(Ins("global_load_dwordx4 v[72:75], v5, s[58:59]", "X", ["v5"], R("v", 72, 4)))
    A(s2("s_lshl_b32", "s%d" % sMS, "s%d" % sW, "13")); A(s2("s_add_u32", "s%d" % sMS, "s%d" % sMS, str(LDS_S)))
    A(s2("s_lshl_b32", "s%d" % sQo, "s%d" % sW, str(WSH)))
    for i in range(8):
        if cfg.rotq:
            A(s2("s_add_u32", "s%d" % (sQT + i), "s82", str(i * PSTEP))); A(s2("s_and_b32", "s%d" % (sQT + i), "s%d" % (sQT + i), str(8 * PSTEP - 1)))
            A(s2("s_add_u32", "s%d" % (sQT + i), "s%d" % (sQT + i), "s%d" % sQo))
        else: A(s2("s_add_u32", "s%d" % (sQT + i), "s%d" % sQo, str(i * PSTEP)))
    for b in (sQ_, sK_, sV_, sO_): A(smov("s%d" % (b + 3), "0x20000"))
    A(smov("s%d" % (sK_ + 2), str(3 * USTRIDE + 131072))); A(smov("s%d" % (sV_ + 2), str(3 * USTRIDE + 131072)))
    A(smov("s%d" % (sQ_ + 2), str(3 * USTRIDE + 65536))); A(smov("s%d" % sONR, str(3 * USTRIDE + 65536))); A(smov("s%d" % (sO_ + 2), "0"))
    assert not cfg.flag_
    if cfg.kvmap == 0: A(s2("s_lshl_b32", "s%d" % sKo, "s%d" % sW, "11"))
    elif cfg.kvmap == 1: A(s2("s_lshl_b32", "s%d" % sKo, "s%d" % sW, "15"))
    else:
        A(s2("s_and_b32", "s%d" % sKo, "s%d" % sW, "1")); A(s2("s_lshl_b32", "s%d" % sKo, "s%d" % sKo, "11"))
        A(s2("s_lshr_b32", "s%d" % sVo, "s%d" % sW, "1")); A(s2("s_lshl_b32", "s%d" % sVo, "s%d" % sVo, "16")); A(s2("s_add_u32", "s%d" % sKo, "s%d" % sKo, "s%d" % sVo))
    if cfg.rot:
        A(smov("s%d" % sKb, "s%d" % sKo)); A(smov("s%d" % sVb, "s%d" % sKo)); A(s2("s_add_u32", "s%d" % sKo, "s%d" % sKo, "s%d" % sKt))
    A(smov("s%d" % sVo, "s%d" % sKo))
    A(raw("s_waitcnt lgkmcnt(0)"))
    if cfg.stamp2: L += stamp()
    for b, p, o in ((sK_, 38, 45), (sQ_, 36, 46), (sV_, 40, 45), (sO_, 42, 46)):
        A(salu("s_add_u32 s%d, s%d, s%d" % (b, p, o), [], ["s%d" % b])); A(salu("s_addc_u32 s%d, s%d, 0" % (b + 1, p + 1), [], ["s%d" % (b + 1)]))
    def issue(lst):
        cur = None
        for x in lst:
            if x.kind == "X" and cur != x.cmt:
                A(setm0(x.cmt)); A(nop(1)); cur = x.cmt
            A(x)
    k0 = kd(); v0 = vd() if cfg.early else None
    q0 = q_dmas(0, 0)
    if cfg.early:
        issue([k0[0], q0[0], v0[0], k0[1], v0[1]] + adv("K", False) + adv("V", False) + q0[1:])
    else:
        issue(k0 + adv("K", False) + q0)
    A(s2("s_sub_u32", "s%d" % sT, "s%d" % sMS, "32768"))
    issue(q_dmas(1, 0, msgpr=sT))
    if cfg.stamp2: L += stamp()
    for i in range(8): A(s2("s_sub_u32", "s%d" % (sOT + i), "s%d" % (sQT + i), str(USTRIDE)))
    L += tab_add(sQT)
    A(v2("v_and_b32", "v5", "7", "v3")); A(v2("v_lshlrev_b32", "v6", "1", "v5"))
    for s in range(4):
        A(v2("v_add_u32", "v7", str(4 * s), "v2")); A(v2("v_xor_b32", "v7", "v7", "v6")); A(v2("v_lshlrev_b32", "v7", "4", "v7"))
        A(v3("v_lshl_add_u32", "v%d" % (KA + s), "v3", "8", "v7"))
        A(v2("v_add_u32", "v%d" % (QA + s), "s%d" % sMS, "v%d" % (KA + s)))
        A(v2("v_subrev_u32", "v%d" % (TM + s), "0x8000", "v%d" % (QA + s)))
    A(v2("v_lshrrev_b32", "v76", "2", "v0"))
    A(v2("v_and_b32", "v77", "7", "v76")); A(v2("v_lshlrev_b32", "v77", "1", "v77"))
    A(valu("v_bfe_u32 v78, v0, 1, 1", ["v0"], ["v78"]))
    A(v2("v_and_b32", "v79", "1", "v0")); A(v2("v_lshlrev_b32", "v79", "3", "v79"))
    A(v3("v_lshl_add_u32", "v79", "v76", "8", "v79")); A(v2("v_add_u32", "v79", str(LDS_V), "v79"))
    for b in range(8):
        A(v2("v_add_u32", "v7", str(2 * b), "v78")); A(v2("v_xor_b32", "v7", "v7", "v77"))
        A(v3("v_lshl_add_u32", "v%d" % (VA + b), "v7", "4", "v79"))
    A(v2("v_lshlrev_b32", "v79", "8", "v3")); A(v2("v_add_u32", "v79", "s%d" % sMS, "v79"))
    A(v2("v_xor_b32", "v78", "v2", "v5"))
    A(v3("v_lshl_add_u32", "v%d" % OW, "v78", "4", "v79")); A(v2("v_xor_b32", "v%d" % (OW + 1), "64", "v%d" % OW))
    A(v2("v_and_b32", "v78", "12", "v3")); A(v2("v_and_b32", "v70", "1", "v3")); A(v3("v_lshl_add_u32", "v78", "v70", "1", "v78"))
    A(v2("v_xor_b32", "v78", "v78", "v2")); A(v2("v_lshlrev_b32", "v78", "4", "v78")); A(v3("v_lshl_add_u32", "v78", "v2", "8", "v78"))
    A(v2("v_and_b32", "v70", "2", "v3")); A(v3("v_lshl_add_u32", "v78", "v70", "2", "v78"))
    A(v2("v_add_u32", "v%d" % OR_, "s%d" % sMS, "v78"))
    for i, x in enumerate((16, 64, 80)): A(v2("v_xor_b32", "v%d" % (OR_ + 1 + i), str(x), "v%d" % OR_))
    A(v2("v_lshlrev_b32", "v%d" % OS, "4", "v0"))
    A(v2("v_and_b32", "v7", "3", "v0")); A(valu("v_cmp_eq_u32 vcc, 0, v7", ["v7"], ["vcc"])); A(v1("v_mov_b32", "v76", "0x3f803f80")); A(v1("v_mov_b32", "v77", "0"))
    A(valu("v_cndmask_b32 v7, v77, v76, vcc", ["v76", "v77", "vcc"], ["v7"]))
    for i in range(4):
        A(v1("v_accvgpr_write_b32", "a%d" % (AONE + i), "v7")); A(v1("v_accvgpr_write_b32", "a%d" % (AZERO + i), "v77"))
    A(smov("s%d" % sC, "0x%08x" % SCALE)); A(smov("s%d" % sC2, "0x%08x" % SCALE)); A(smov("s%d" % (sC2 + 1), "0x%08x" % SCALE))
    if cfg.fakepre: L += [v1("v_mov_b32", "v%d" % i, "1.0") for i in range(2, 12)]
    A(smov("s%d" % sLO, "0x%08x" % LO_BITS)); A(smov("s%d" % sRG, "0x%08x" % (HI_BITS - LO_BITS)))
    A(smov("s%d" % sBAD, "0")); A(salu("s_mov_b64 s[%d:%d], 0" % (sACC, sACC + 1), [], R("s", sACC, 2)))
    A(smov("s%d" % sCNT, "3"))
    A(salu("s_mov_b64 vcc, %d" % (-1 if RAMP_IT else 0), [], ["vcc"]))
    if cfg.stamp2: L += stamp()
    A(vsite([("K", 0), ("Q", 0, 0)]))
    if cfg.stamp2: L += stamp()
    A(bar())
    if cfg.pre:
        L += q_reads(QR, 0, 0, p="v") + [kread(f, 0, 0) for f in KORD] + [lsite()]
        b = pre_burst(AQ)
        for i in range(0, len(b), 20): L += b[i:i + 20] + [lsite()]
        return L + [nop(1), lsite()]
    qr = q_reads(AQ, 0, 0)
    seen = set()
    for kt, q, s in QKSEQ:
        if ("k", kt, s) not in seen: A(kread(4 * kt + s, 0, 0)); seen.add(("k", kt, s))
        if ("q", q, s) not in seen: A(qr[4 * q + s]); seen.add(("q", q, s))
    A(lsite())
    return L

def tail_seg():
    L = []
    for it in softmax_items(1, 0, lambda q, kt: 0, lambda q: 99, lo=(cfg.e0, cfg.e0, cfg.c0)):
        L.append(it.ins)
        if it.ins.kind == "T" and it.ins.text == exp_(S_(1, *GRP[3]) + 3).text: L.append(nop(1))
    if cfg.stmode == 1:
        L += [o_stores(1)[7]] + tab_add(sOT)
    L += epi_burst(0)
    gaps = [Gap(m) for m in pv_block(1, False)]
    for g, w in enumerate(o_writes(0)): gaps[g].ds.append(w)
    rd = o_reads(0, 0)
    for g in range(8): gaps[8 + g].ds += rd[2 * g:2 * g + 2]
    for G in gaps: L += G.flat()
    st = o_stores(0)
    L += [lsite()] + st[:4]
    b1 = epi_burst(1)
    k = [i for i, x in enumerate(b1) if x.kind == "K"][-1] + 1
    L += b1[:k] + [lsite()] + st[4:] + b1[k:]
    w1 = o_writes(1); r1 = o_reads(1, 0); st = o_stores(1)
    L += w1[:4] + r1[:8] + w1[4:] + r1[8:]
    L += [lsite()] + st[:2] + [lsite()] + st[2:4] + [lsite()] + st[4:6] + [lsite()] + st[6:]
    L += flag_ops()
    return L

def slow_path():
    T = []
    A = T.append
    def emit(l):
        for x in l: A(x.text)
    def wait(): A("s_waitcnt vmcnt(0) lgkmcnt(0)");
    A("s_barrier")
    if cfg.force_slow: A("s_mov_b32 s%d, 15" % sBAD)
    A("s_cmp_eq_u32 s%d, 0" % sBAD); A("s_cbranch_scc1 L_end")
    A("s_lshl_b32 s45, s%d, 13" % sW)
    for i in range(4): A("v_add_u32 v%d, s45, v%d" % (KA + i, KA + i))
    for i in range(8): A("v_add_u32 v%d, s45, v%d" % (VA + i, VA + i))
    A("s_add_u32 s46, s45, %d" % LDS_V)
    A("s_lshl_b32 s%d, s%d, %d" % (sQo, sW, WSH))
    A("v_mov_b32 v%d, v%d" % (TS + 4, DA)); A("v_mov_b32 v%d, v%d" % (TS + 5, DB))
    A("s_mov_b32 s%d, 0" % sCNT)
    A("L_slow_unit:")
    A("s_bitcmp1_b32 s%d, 3" % sBAD); A("s_cbranch_scc0 L_slow_next")
    for i in range(8): A("s_add_u32 s%d, s%d, %d" % (sQT + i, sQo, i * PSTEP)); A("s_mov_b32 s%d, s%d" % (sOT + i, sQT + i))
    wait()
    for h in range(2):
        cur = None
        for x in q_dmas(h, 0):
            if cur != x.cmt: A(setm0(x.cmt).text); A("s_nop 0"); cur = x.cmt
            A(x.text)
        wait(); emit(q_reads(AQ + 32 * h, h, 0)); wait()
    def tile_dma(sr, m0s):
        for i in range(8):
            if i % 4 == 0:
                A("s_add_u32 m0, s%d, %d" % (m0s, (i // 4) * 4096)); A("s_add_u32 s%d, s%d, %d" % (sT, sKo, (i // 4) * 4096))
            A("buffer_load_dwordx4 v%d, %s, s%d offen offset:%d lds" % (TS + 4 + i % 2, srd(sr), sT, (i % 4) * 1024))
    def qk_all():
        emit([kread(f, 0, 0) for f in range(8)]); wait()
        emit(qk_block(0) + qk_block(1)); A("s_nop 7"); A("s_nop 3")
    for i in range(4): A("v_mov_b32 v%d, 0xff800000" % (MX + i))
    A("s_mov_b32 s%d, s%d" % (sKo, sCNT)); A("s_add_u32 s%d, s%d, 131072" % (sVo, sCNT))
    A("L_slow_p1:")
    tile_dma(sK_, 45); wait(); qk_all()
    for h in range(2):
        for q in range(2):
            a = S_(h, q, 0)
            for i in range(4): A("v_max3_f32 v%d, v%d, v%d, v%d" % (MX + 2 * h + q, a + 2 * i, a + 2 * i + 1, MX + 2 * h + q))
    A("s_add_u32 s%d, s%d, 8192" % (sKo, sKo)); A("s_cmp_lt_u32 s%d, s%d" % (sKo, sVo)); A("s_cbranch_scc1 L_slow_p1")
    for op in ("v_permlane32_swap_b32", "v_permlane16_swap_b32"):
        for i in range(4): A("v_mov_b32 v%d, v%d" % (NM + i, MX + i))
        A("s_nop 1")
        for i in range(4): A("%s v%d, v%d" % (op, NM + i, MX + i))
        A("s_nop 1")
        for i in range(4): A("v_max_f32 v%d, v%d, v%d" % (MX + i, MX + i, NM + i))
    for i in range(4): A("v_mul_f32 v%d, s%d, v%d" % (NM + i, sC, MX + i))
    for i in range(128): A("v_mov_b32 v%d, 0" % (OB + i))
    for i in range(16): A("v_accvgpr_write_b32 a%d, 0" % (AL + i))
    A("s_mov_b32 s%d, s%d" % (sKo, sCNT))
    A("L_slow_p2:")
    tile_dma(sK_, 45); tile_dma(sV_, 46); wait(); qk_all()
    emit([vread(b, jj, 0, 0) for b in range(4) for jj in range(2)])
    for h in range(2):
        for q in range(2):
            a = S_(h, q, 0)
            for i in range(8): A("v_fma_f32 v%d, v%d, s%d, -v%d" % (a + i, a + i, sC, NM + 2 * h + q))
            for i in range(8): A("v_exp_f32 v%d, v%d" % (a + i, a + i))
            A("s_nop 0")
            for i in range(4): A(cvt_(P_(h, q) + i, a + 2 * i, a + 2 * i + 1).text)
    emit([vread(b, jj, 0, 0) for b in range(4, 8) for jj in range(2)])
    wait()
    emit(pv_block(0, False) + pv_block(1, False))
    A("s_add_u32 s%d, s%d, 8192" % (sKo, sKo)); A("s_cmp_lt_u32 s%d, s%d" % (sKo, sVo)); A("s_cbranch_scc1 L_slow_p2")
    A("s_nop 7"); A("s_nop 3")
    for h in range(2):
        emit(epi_burst(h, check=False)); emit(o_writes(h) + o_reads(h, 0))
        wait(); emit(o_stores(h)); wait()
    A("L_slow_next:")
    A("s_lshl_b32 s%d, s%d, 1" % (sBAD, sBAD)); A("s_and_b32 s%d, s%d, 15" % (sBAD, sBAD))
    for r in (sCNT, sQo): A("s_add_u32 s%d, s%d, %d" % (r, r, USTRIDE))
    A("s_cmp_lg_u32 s%d, 0" % sBAD); A("s_cbranch_scc1 L_slow_unit")
    return T

def stamp():
    if not cfg.stamp: return []
    return [raw("s_memtime s[58:59]"), raw("s_memrealtime s[62:63]"), raw("s_waitcnt lgkmcnt(0)"),
            raw("s_mov_b32 m0, s57"), raw("s_nop 0"), raw("v_writelane_b32 v38, s58, m0"), raw("v_writelane_b32 v39, s62, m0"), raw("s_add_u32 s57, s57, 1")]
def stamp_out():
    if not cfg.stamp: return []
    if cfg.dbgwg >= 0:
        return [x.text for x in stamp()] + ["s_cmp_lg_u32 s2, %d" % cfg.dbgwg, "s_cbranch_scc1 L_nodbg", "s_cmp_lg_u32 s%d, 0" % sW, "s_cbranch_scc1 L_nodbg",
            "s_load_dwordx2 s[36:37], s[0:1], 32", "s_waitcnt lgkmcnt(0)", "s_mov_b32 s38, 64", "s_mov_b32 s39, 0x20000",
            "v_readfirstlane_b32 s45, v39", "v_lshrrev_b32 v41, 2, v%d" % OS, "s_nop 1", "v_subrev_u32 v39, s45, v39",
            "buffer_store_dword v39, v41, s[36:39], 0 offen", "L_nodbg:"]
    return [x.text for x in stamp()] + ["s_load_dwordx2 s[36:37], s[0:1], 40", "s_waitcnt lgkmcnt(0)", "s_mov_b32 s38, 0x1000000", "s_mov_b32 s39, 0x20000",
            "s_lshl_b32 s45, s2, 2", "s_add_u32 s45, s45, s%d" % sW, "s_lshl_b32 s45, s45, 9", "v_lshrrev_b32 v41, 2, v%d" % OS,
            "buffer_store_dword v38, v41, s[36:39], s45 offen", "buffer_store_dword v39, v41, s[36:39], s45 offen offset:256"]
def main():
    sgs = {"it0f": build_iter(0, True)}
    for t in range(16): sgs["it%d" % t] = build_iter(t)
    def segs():
        d = {"pro": pro, "tail": tl}
        d.update(RAMPS)
        for k, s in sgs.items(): d[k] = flat(s)
        return d
    pro = prologue(); tl = tail_seg()
    if cfg.dbgspan:
        pro[2:2] = [raw("s_memrealtime s[60:61]"), raw("s_memtime s[62:63]"), raw("s_waitcnt lgkmcnt(0)"), raw("s_mov_b32 s56, s60"), raw("s_mov_b32 s57, s62")]
        i = [k for k, x in enumerate(pro) if x.kind == "BAR"][0]
        pro[i + 1:i + 1] = [raw("s_memrealtime s[58:59]")]
    if cfg.stamp:
        pro[2:2] = [raw("s_mov_b32 s57, 0")] + stamp()
        i = [k for k, x in enumerate(pro) if x.kind == "BAR"][0]
        pro[i + 1:i + 1] = stamp()
        for t in range(0, 16, cfg.stamp): sgs["it%d" % t].head[0:0] = stamp()
        tl[0:0] = stamp()
        if cfg.stamp3:
            G = sgs["it0"].gaps
            G[0].pre += stamp(); G[16].pre += stamp(); G[34].pre += stamp(); G[48].pre[0:0] = stamp(); G[48].pre += stamp()
            sgs["it1"].head[0:0] = stamp(); sgs["it1"].gaps[34].pre += stamp(); sgs["it2"].head[0:0] = stamp(); sgs["it3"].head[0:0] = stamp()
        if cfg.stamp2:
            sgs["it0f"].gaps[16].pre += stamp(); sgs["it0f"].gaps[cfg.fbar + 1].pre += stamp(); sgs["it0f"].tail[0:0] = stamp()
    traces = []
    for role in ("A", "B"):
        x = dict(role=role, lagK=cfg.flag_ if role == "B" else 0, lagV=cfg.flag_ if role == "A" else 0)
        trace = [("pro", dict(T=0, u=0, first=1, **x)), ("it0f", dict(T=0, u=0, first=1, **x))]
        for u in range(4):
            for t in range(16):
                if (u, t) != (0, 0): trace.append(("it%d" % t, dict(T=16 * u + t, u=u, first=(u == 0 and t < 8), **x)))
        trace.append(("tail", dict(T=64, u=3, **x)))
        traces.append(trace)
    sgs["it0f"].tail.append(raw("s_branch L_it1", "BR"))
    sgs["it15"].tail += [s2("s_sub_u32", "s%d" % sCNT, "s%d" % sCNT, "1"), raw("s_cbranch_scc0 L_it0", "BR")]
    insert_waits(segs(), traces)
    for k, s in sgs.items():
        br = [x for x in s.tail if x.kind == "BR" or "s_sub_u32 s%d" % sCNT in x.text]
        s.tail = [x for x in s.tail if x not in br]
        place_scalar(s)
        s.tail += br
    fs = {k: finalize(v) for k, v in segs().items()}
    errs = sum((verify(fs, tr, {"K": 8, "V": 16, "Q": 8, "O": 16}) for tr in traces), [])
    for e in errs[:40]: sys.stderr.write("ERR " + e + "\n")
    tot = 0
    for k in ["pro", "it0f"] + ["it%d" % t for t in range(16)] + ["tail"]:
        est = issue_estimate(fs[k]); sys.stderr.write("%s:%d " % (k, est))
        if k.startswith("it") and k != "it0f": tot += est
    if cfg.stamp3:
        for k in ("it0", "it1", "it2"):
            parts = [[]]
            for x in fs[k]:
                if "s_memtime" in x.text: parts.append([])
                parts[-1].append(x)
            sys.stderr.write("\n%s parts %s" % (k, [issue_estimate(p) for p in parts]))
    sys.stderr.write("\nunit estimate %d cycles, errors %d\n" % (tot, len(errs)))
    out = []
    hdr = open(os.path.join(os.path.dirname(os.path.abspath(__file__)), "..", "cdna_kernels", NAME + ".s.ref")).read().split("; Override")[0]
    out.append(hdr.rstrip())
    out.append("; @launch grid=(256,1,1) block=(256,1,1) lds=163840")
    out.append('.amdgcn_target "amdgcn-amd-amdhsa--gfx950"\n.text\n.globl %s_kernel\n.p2align 8\n.type %s_kernel,@function\n%s_kernel:' % (NAME, NAME, NAME))
    par = {}
    def dump(k):
        out.append("; ---- " + k)
        for x in fs[k]:
            if cfg.nocomp and k != "pro" and x.kind in ("M", "V", "T", "K", "D", "W"):
                par[x.kind] = par.get(x.kind, 0) + 1
                if cfg.nocomp == 1 or par[x.kind] % cfg.nocomp == 0: continue
            if cfg.nomem and k != "pro" and x.kind == "X" and (cfg.nomem == 1 or "store" in x.text): continue
            if cfg.nostore and x.kind == "X" and "store" in x.text: continue
            out.append("  " + x.text)
            if cfg.nocomp and "m0" in x.wr: out.append("  s_nop 0")
    dump("pro"); dump("it0f")
    for k in RAMPS: out.append("L_%s:" % k); dump(k)
    out.append(".p2align 6\nL_it0:"); dump("it0"); out.append("L_it1:")
    for t in range(1, 16): dump("it%d" % t)
    dump("tail")
    if cfg.dbgspan:
        out += ["  " + x for x in ["s_waitcnt vmcnt(0)", "s_memrealtime s[60:61]", "s_memtime s[62:63]", "s_load_dwordx2 s[36:37], s[0:1], 32", "s_waitcnt lgkmcnt(0)", "s_mov_b32 s38, 256", "s_mov_b32 s39, 0x20000",
            "s_not_b32 s45, s56", "v_mov_b32 v2, s45", "v_mov_b32 v3, s58", "v_mov_b32 v4, s60", "v_mov_b32 v5, s56", "s_not_b32 s45, s60", "v_mov_b32 v6, s45", "s_sub_u32 s45, s62, s57", "v_mov_b32 v7, s45", "v_mov_b32 v1, 0",
            "s_mov_b64 exec, 1",
            "buffer_atomic_umax v2, v1, s[36:39], 0 offen", "buffer_atomic_umax v3, v1, s[36:39], 0 offen offset:4", "buffer_atomic_umax v4, v1, s[36:39], 0 offen offset:8",
            "buffer_atomic_umax v5, v1, s[36:39], 0 offen offset:12", "buffer_atomic_umax v6, v1, s[36:39], 0 offen offset:16", "buffer_atomic_umax v7, v1, s[36:39], 0 offen offset:20", "s_mov_b64 exec, -1"]]
    if cfg.stamp:
        out.append("  s_waitcnt vmcnt(0)")
        out += [("  " + x if not x.endswith(":") else x) for x in stamp_out()]
    if cfg.nocomp or cfg.nomem or cfg.fakepre: out.append("  s_mov_b32 s%d, 0" % sBAD)
    out += ["  " + x if not x.endswith(":") else x for x in slow_path()]
    out.append("L_end:\n  s_endpgm")
    out.append('.section .rodata,"a"\n.p2align 6\n.amdhsa_kernel %s_kernel' % NAME)
    out.append("  .amdhsa_next_free_vgpr 512\n  .amdhsa_next_free_sgpr 84\n  .amdhsa_accum_offset 256\n  .amdhsa_group_segment_fixed_size 0\n  .amdhsa_kernarg_size 48\n  .amdhsa_user_sgpr_count 2\n  .amdhsa_user_sgpr_kernarg_segment_ptr 1\n  .amdhsa_system_sgpr_workgroup_id_x 1\n.end_amdhsa_kernel")
    open(sys.argv[1], "w").write("\n".join(out) + "\n")
    if errs: sys.exit(1)
main()
```

```python
import sys, os, struct, math
from core import *

class Cfg:
    barper = 2
    finchk = 1
    lat = 7
    k_aux = ""
    v_aux = ""
    kv_aux = "nt"
    q_aux = "nt"
    o_aux = "nt"
    e0 = 10; c0 = 4; f0 = 6
    force_slow = 0
    hmap = 1
    rot = 5
    xmap = 0
    stamp = 0
    dbgwg = -1
    stamp3 = 0
    stamp2 = 0
    nocomp = 0
    nomem = 0
    nostore = 0
    dbgspan = 0
    lag = 1.5
    lead = 6
    rskip = 0
    front = 0
    rotq = 3
    qomap = 0
    pre = 0
    wbl2 = 0
    kvmap = 1
    fakepre = 0
    x0 = 17
    x1 = 9
    xs = 8
    xts = 8
    fxs = 6
    xt = 52
    flag_ = 0
    stmode = 0
    qmaj = 0
    bargap = 14
    sm0 = 14
    qkord = 2
    kt0 = 54.0
    kts = 2.48
    vt0 = 18.0
    vts = 2.48
    stgap = 48
    l0 = 3
    cpf = 1
    qa0 = 2
    early = 1
    fbar = 22
    rdy = 5
cfg = Cfg()
for a in sys.argv[2:]:
    k, v = a.split("=")
    setattr(cfg, k, type(getattr(cfg, k))(v))

NAME = "standalone__mha_softmax__near_ridge"
KA = 16; VA = 20; DA = 28; DB = 29; QA = 30; OW = 34; OS = 40; OR_ = 8; QR = 48; PT = 2
ET = 42; ER = 44; EU = 36
MX = 50; NM = 54; TM = 12; TS = 58
PB = 80; SB = 96; OB = 128
def S_(h, q, kt): return SB + 16 * h + 8 * q + 4 * kt
def P_(h, q): return PB + 8 * h + 4 * q
def O_(qt, b): return OB + 32 * qt + 4 * b
AQ = 0; AQN = 64; AK = 96; AV = 128; AO = 160; AL = 224; AONE = 240; AZERO = 244; ACHK = 248
sQ_, sK_, sV_, sO_ = 4, 8, 12, 16
sW = 20; sKo = 21; sVo = 22; sMK = 23; sMV = 24; sQo = 25; sOo = 26; sC = 27; sBAD = 28; sUB = 29; sACC = 30; sCMP = 32
sLO = 34; sRG = 35; sMS = 44; sCNT = 47; sONR = 48; sQa = 50; sQb = 51; sOa = 52; sOb = 53; sT = 54; sKt = 55; sVt = 56; sKb = 80; sVb = 81; sMKn = 29; sMVn = 49; sC2 = 60; sQT = 64; sOT = 72
WSH, PSTEP = ((14, 2048), (11, 8192))[cfg.qomap]
LDS_V = 65536; LDS_S = 131072
SCALE = struct.unpack("<I", struct.pack("<f", math.log2(math.e) / math.sqrt(128.0)))[0]
LO_BITS = (127 - (40 if cfg.finchk else 24)) << 23
HI_BITS = (127 + (126 if cfg.finchk else 24)) << 23

def srd(b): return "s[%d:%d]" % (b, b + 3)
def srdr(b): return R("s", b, 4)

def v2(op, d, a, b, kind="V"):
    rd = [x for x in (a, b) if isinstance(x, str) and x[0] in "vsa" and x[1:].isdigit()]
    return valu("%s %s, %s, %s" % (op, d, a, b), rd, [d], kind)
def v1(op, d, a, kind="V"):
    rd = [a] if isinstance(a, str) and a[0] in "vsa" and a[1:].isdigit() else []
    return valu("%s %s, %s" % (op, d, a), rd, [d], kind)
def v3(op, d, a, b, c):
    rd = [x for x in (a, b, c) if isinstance(x, str) and x[0] in "vsa" and x[1:].isdigit()]
    return valu("%s %s, %s, %s, %s" % (op, d, a, b, c), rd, [d])
def s2(op, d, a, b):
    rd = [x for x in (a, b) if isinstance(x, str) and (x[0] == "s" or x == "m0")]
    return salu("%s %s, %s, %s" % (op, d, a, b), rd, [d, "scc"])
def smov(d, a):
    return salu("s_mov_b32 %s, %s" % (d, a), [a] if isinstance(a, str) and a[0] == "s" else [], [d])
def mul_(r): return v2("v_mul_f32", "v%d" % r, "s%d" % sC, "v%d" % r)
def exp_(r): return v1("v_exp_f32", "v%d" % r, "v%d" % r, "T")
def cvt_(d, a, b): return v2("v_cvt_pk_bf16_f32", "v%d" % d, "v%d" % a, "v%d" % b)
def dsr128(dp, d, addr, off, tag):
    assert 0 <= off < 65536
    return Ins("ds_read_b128 %s, v%d offset:%d" % (rng(dp, d, 4), addr, off), "D", ["v%d" % addr], R(dp, d, 4), tag=tag)
def dstr(d, addr, off, tag):
    assert 0 <= off < 65536
    return Ins("ds_read_b64_tr_b16 %s, v%d offset:%d" % (rng("a", d, 2), addr, off), "D", ["v%d" % addr], R("a", d, 2), tag=tag)
def dsw64(addr, src, off):
    return Ins("ds_write_b64 v%d, %s offset:%d" % (addr, rng("v", src, 2), off), "W", ["v%d" % addr] + R("v", src, 2), [])
def dma(voff, sr, soff, off, tag, m0, aux=""):
    if sr == sK_ and cfg.k_aux: aux = cfg.k_aux
    if sr == sV_ and cfg.v_aux: aux = cfg.v_aux
    i = Ins("buffer_load_dwordx4 v%d, %s, s%d offen offset:%d %slds" % (voff, srd(sr), soff, off, aux + " " if aux else ""), "X",
            ["v%d" % voff, "s%d" % soff, "m0"] + srdr(sr), [], tag=tag)
    i.cmt = m0
    return i
def store(src, soff, off, tag=None):
    return Ins("buffer_store_dwordx4 %s, v%d, %s, s%d offen offset:%d%s" % (rng("a", src, 4), OS, srd(sO_), soff, off, " " + cfg.o_aux if cfg.o_aux else ""), "X",
               R("a", src, 4) + ["v%d" % OS, "s%d" % soff] + srdr(sO_), [], tag=tag)
def setm0(m0):
    return s2("s_add_u32", "m0", "s%d" % m0[0], str(m0[1]))

if cfg.qkord == 0:   QKSEQ = [(f // 4, q, f % 4) for f in range(8) for q in range(2)]
elif cfg.qkord == 1: QKSEQ = [(kt, q, s if q == 0 else 3 - s) for kt in range(2) for q in range(2) for s in range(4)]
else:                QKSEQ = [(c // 2, (0, 1, 1, 0)[c], s if c % 2 == 0 else 3 - s) for c in range(4) for s in range(4)]
def kfirst(f): return min(i for i, (kt, q, s) in enumerate(QKSEQ) if 4 * kt + s == f)
def klast(f): return max(i for i, (kt, q, s) in enumerate(QKSEQ) if 4 * kt + s == f)
def sdone(q, kt): return max(i for i, x in enumerate(QKSEQ) if x[:2] == (kt, q))
def qfirst(q, s): return min(i for i, x in enumerate(QKSEQ) if x[1:] == (q, s))
GRP = sorted([(q, kt) for q in range(2) for kt in range(2)], key=lambda g: sdone(*g))
KORD = sorted(range(8), key=kfirst)
def qk_block(h):
    L = []; seen = set()
    for kt, q, s in QKSEQ:
        L.append(mfma("v", S_(h, q, kt), "a", AK + 4 * (4 * kt + s), "a", AQ + 16 * (2 * h + q) + 4 * s, czero=((kt, q) not in seen)))
        seen.add((kt, q))
    return L
def pvpos(b, q):
    if cfg.qmaj: return 9 * q + 1 + b
    return 2 * b + q + (1 if b >= 3 else 0) + (1 if b >= 6 else 0)
def pfirst(q): return 9 * q if cfg.qmaj else q
def pv_block(h, first):
    L = []
    if cfg.qmaj:
        for q in range(2):
            L.append(mfma("a", AL + 4 * (2 * h + q), "a", AONE, "v", P_(h, q), czero=first))
            for b in range(8): L.append(mfma("v", O_(2 * h + q, b), "a", AV + 4 * b, "v", P_(h, q), czero=first))
        return L
    for b in range(8):
        for q in range(2):
            L.append(mfma("v", O_(2 * h + q, b), "a", AV + 4 * b, "v", P_(h, q), czero=first))
        if b in (2, 5):
            q = b // 4
            L.append(mfma("a", AL + 4 * (2 * h + q), "a", AONE, "v", P_(h, q), czero=first))
    return L

class Item:
    def __init__(self, ins, ready, dead, target, deps=()):
        self.ins = ins; self.ready = ready; self.dead = dead; self.target = target; self.deps = list(deps); self.gap = None
        k = ins.kind
        self.cost = 8 if k in ("T", "X", "W") else 4
class Gap:
    def __init__(self, m):
        self.pre = []; self.m = m; self.sh = [lsite()]; self.ds = []; self.va = []
    def flat(self): return self.pre + [self.m] + self.sh + self.ds + self.va

def schedule(gaps, items, name):
    n = len(gaps)
    todo = sorted(items, key=lambda i: (i.target, i.dead))
    for g in range(n):
        G = gaps[g]
        def ok(it):
            if it.ready > g: return False
            for d, dist in it.deps:
                if d.gap is None or d.gap + dist > g: return False
            return True
        def place(it):
            it.gap = g; todo.remove(it)
            (G.ds if it.ins.kind in ("D", "W", "X") else G.va).append(it.ins)
        def fits(it, used):
            k = it.ins.kind
            if any(x.kind == "X" for x in G.ds): return False
            if k == "X": return used == 0
            return True
        used = 0
        for it in [x for x in todo if x.dead <= g]:
            if ok(it) and fits(it, used): place(it); used += it.cost
        while used < 8:
            c = [it for it in todo if ok(it) and fits(it, used) and it.cost <= 8 - used]
            if not c: break
            it = c[0]
            if used == 0 and it.cost == 4:
                four = [x for x in c[1:] if x.cost == 4 or False]
                dep_next = [x for x in todo if x.cost == 4 and x is not it and x.ready <= g and all((d.gap is not None and d.gap + dist <= g) or (d is it and dist == 0) for d, dist in x.deps)]
                eight = [x for x in c if x.cost == 8]
                if not dep_next and eight and it.dead > g: it = eight[0]
            place(it); used += it.cost
        c = [it for it in todo if ok(it) and fits(it, used) and it.cost == 4 and it.target < g - cfg.lag]
        if c and used > 0:
            place(c[0]); used += 4
        while True:
            over = False
            dem = 0
            for it in sorted(todo, key=lambda i: min(i.dead, n - 1)):
                dem += 12 if it.ins.kind == "X" else it.cost
                d = min(it.dead, n - 1)
                if dem > 12 * (d - g): over = True; break
            if not over: break
            c = sorted([it for it in todo if ok(it) and fits(it, used)], key=lambda i: (min(i.dead, n - 1), i.target))
            if not c: break
            place(c[0]); used += c[0].cost
    if todo:
        raise Exception("%s: unscheduled items: %s" % (name, [(i.ins.text, i.ready, i.dead) for i in todo]))
    for it in items:
        if it.gap > it.dead: raise Exception("%s: deadline miss %s gap %d > %d" % (name, it.ins.text, it.gap, it.dead))

def softmax_items(h, base, rdy, dead, lo=(0, 0, 0), hi=(16, 16, 8), carry=None):
    its = []; M = {}; E = {}
    def reg(e):
        q, kt = GRP[e // 4]
        return q, kt, S_(h, q, kt) + e % 4
    for e in range(lo[0], hi[0] if not (cfg.fakepre or cfg.pre) else lo[0]):
        q, kt, r = reg(e)
        M[e] = Item(mul_(r), rdy(q, kt), dead(q) - 2, base + 2 * e); its.append(M[e])
    for e in range(lo[1], hi[1]):
        q, kt, r = reg(e)
        E[e] = Item(exp_(r), rdy(q, kt), dead(q) - 1, base + 2 * e + 1, [(M[e], 0)] if e in M else []); its.append(E[e])
    for j in range(lo[2], hi[2]):
        q, kt, r = reg(2 * j)
        deps = [(E[e], 1) for e in (2 * j, 2 * j + 1) if e in E]
        its.append(Item(cvt_(P_(h, q) + 2 * kt + j % 2, r, r + 1), rdy(q, kt), dead(q), base + 4 * j + 4, deps))
    return its

def kread(f, slot, dT):
    return dsr128("a", AK + 4 * f, KA + f % 4, slot * 8192 + (f // 4) * 4096, ("K", dT))
def vread(b, jj, slot, dT):
    return dstr(AV + 4 * b + 2 * jj, VA + b, slot * 8192 + jj * 4096, ("V", dT))
_uid = [0]
def kd(lead=None):
    _uid[0] += 1
    L = [dma(DA, sK_, sKo, 0, ("K", "a"), (sMKn, 0, _uid[0]), cfg.kv_aux), dma(DB, sK_, sKo, 1024, ("K", "b"), (sMKn, 0, _uid[0]), cfg.kv_aux)]
    for x in L: x.needs = lead
    return L
def vd(lead=None):
    _uid[0] += 1
    L = [dma(DA, sV_, sVo, 0, ("V", "a"), (sMVn, LDS_V, _uid[0]), cfg.kv_aux), dma(DB, sV_, sVo, 1024, ("V", "b"), (sMVn, LDS_V, _uid[0]), cfg.kv_aux)]
    for x in L: x.needs = lead
    return L
def kv_dmas(t, lead):
    return kd(lead + 1) + vd(lead)
def q_dmas(h, du, msgpr=sMS, mconst=0):
    return [dma(DA if i % 2 == 0 else DB, sQ_, sQT + 4 * h + i // 2, (i % 2) * 1024, ("Q", h, du), (msgpr, mconst + (i // 2) * 2048), cfg.q_aux) for i in range(8)]
def q_reads(dst, h, du, addr=QA, p="a"):
    return [dsr128(p, dst + 16 * q + 4 * s, addr + s, q * 4096, ("Q", h, du)) for q in range(2) for s in range(4)]

def pre_ops(i, k):
    r = QR + i; a = PT + 2 * k
    return [v2("v_lshlrev_b32", "v%d" % a, "16", "v%d" % r), v2("v_and_b32", "v%d" % (a + 1), "0xffff0000", "v%d" % r), mul_(a), mul_(a + 1), cvt_(r, a, a + 1)]
def pre_burst(dst, writes=True):
    L = []
    def stage(i, n):
        r = QR + i; a = PT + 2 * (i % 3)
        if n == 0: return [v2("v_lshlrev_b32", "v%d" % a, "16", "v%d" % r), v2("v_and_b32", "v%d" % (a + 1), "0xffff0000", "v%d" % r)]
        if n == 1: return [valu("v_pk_mul_f32 v[%d:%d], v[%d:%d], s[%d:%d]" % (a, a + 1, a, a + 1, sC2, sC2 + 1), R("v", a, 2), R("v", a, 2), "K")]
        if n == 2: return [cvt_(r, a, a + 1)]
        return [v1("v_accvgpr_write_b32", "a%d" % (dst + i), "v%d" % r)] if writes else []
    for i in range(32 + 3):
        for n in (3, 2, 1, 0):
            if 0 <= i - n < 32: L += stage(i - n, n)
    return L
def epi_burst(h, check=True, defer=False):
    L = []
    for q in range(2): L.append(v1("v_accvgpr_read_b32", "v%d" % (ET + q), "a%d" % (AL + 4 * (2 * h + q))))
    for q in range(2): L.append(v1("v_rcp_f32", "v%d" % (ER + 2 * q), "v%d" % (ET + q), "T"))
    if check:
        for q in range(2): L.append(v2("v_subrev_u32", "v%d" % (EU + q), "s%d" % sLO, "v%d" % (ET + q)))
        L.append(valu("v_cmp_le_u32 vcc, s%d, v%d" % (sRG, EU), ["s%d" % sRG, "v%d" % EU], ["vcc"]))
        L.append(valu("v_cmp_le_u32 s[%d:%d], s%d, v%d" % (sCMP, sCMP + 1, sRG, EU + 1), ["s%d" % sRG, "v%d" % (EU + 1)], R("s", sCMP, 2)))
    else:
        L.append(nop(1))
    for q in range(2):
        for b in range(8):
            for i in range(2):
                a = O_(2 * h + q, b) + 2 * i
                L.append(valu("v_pk_mul_f32 v[%d:%d], v[%d:%d], v[%d:%d] op_sel_hi:[1,0]" % (a, a + 1, a, a + 1, ER + 2 * q, ER + 2 * q + 1),
                              R("v", a, 2) + ["v%d" % (ER + 2 * q)], R("v", a, 2), "K"))
    sor = []
    if check:
        sor = [salu("s_or_b64 s[%d:%d], s[%d:%d], vcc" % (sACC, sACC + 1, sACC, sACC + 1), ["vcc"] + R("s", sACC, 2), R("s", sACC, 2)),
               salu("s_or_b64 s[%d:%d], s[%d:%d], s[%d:%d]" % (sACC, sACC + 1, sACC, sACC + 1, sCMP, sCMP + 1), R("s", sCMP, 2) + R("s", sACC, 2), R("s", sACC, 2))]
        if not cfg.finchk: L += sor
    for q in range(2):
        for bp in range(4):
            a = O_(2 * h + q, 2 * bp)
            for i in range(4): L.append(cvt_(a + i, a + 2 * i, a + 2 * i + 1))
            if check and cfg.finchk and (q, bp) != (0, 0):
                pa = a - 8
                L.append(mfma("a", ACHK, "a", AZERO, "v", pa, czero=(h == 0 and (q, bp) == (0, 1))))
                if sor: L.append(sor.pop(0))
    last = [mfma("a", ACHK, "a", AZERO, "v", O_(2 * h + 1, 6))] if check and cfg.finchk else []
    if defer: LASTCHK[h] = last
    elif last: L += [nop(2)] + last
    return L
def flag_ops():
    L = []
    if cfg.finchk:
        L.append(v1("v_accvgpr_read_b32", "v%d" % ET, "a%d" % ACHK))
        L.append(valu("v_cmp_u_f32 vcc, v%d, v%d" % (ET, ET), ["v%d" % ET], ["vcc"]))
        L.append(nop(2))
        L.append(salu("s_or_b64 s[%d:%d], s[%d:%d], vcc" % (sACC, sACC + 1, sACC, sACC + 1), ["vcc"] + R("s", sACC, 2), R("s", sACC, 2)))
    L.append(salu("s_cmp_lg_u64 s[%d:%d], 0" % (sACC, sACC + 1), R("s", sACC, 2), ["scc"]))
    L.append(salu("s_addc_u32 s%d, s%d, s%d" % (sBAD, sBAD, sBAD), ["scc", "s%d" % sBAD], ["s%d" % sBAD]))
    L.append(salu("s_mov_b64 s[%d:%d], 0" % (sACC, sACC + 1), [], R("s", sACC, 2)))
    L.append(salu("s_mov_b64 vcc, 0", [], ["vcc"]))
    return L
def o_writes(h):
    L = []
    for q in range(2):
        for bp in range(4):
            a = O_(2 * h + q, 2 * bp); addr = OW + bp % 2
            L.append(Ins("ds_write_b128 v%d, %s offset:%d" % (addr, rng("v", a, 4), (bp // 2) * 128 + q * 4096), "W", ["v%d" % addr] + R("v", a, 4), []))
    return L
def o_reads(h, du):
    L = []
    for j in range(8):
        for i in range(2):
            d = AO + 32 * h + 4 * j + 2 * i; addr = OR_ + 2 * (j % 2) + i
            L.append(Ins("ds_read_b64 %s, v%d offset:%d" % (rng("a", d, 2), addr, j * 1024), "D", ["v%d" % addr], R("a", d, 2), tag=("O", h, du)))
    return L
def tab_add(t): return [s2("s_add_u32", "s%d" % (t + i), "s%d" % (t + i), str(USTRIDE)) for i in range(8)]
def o_stores(h):
    return [store(AO + 32 * h + 4 * j, sOT + 4 * h + j // 2, (j % 2) * 1024) for j in range(8)]
USTRIDE = 131072 if cfg.hmap == 0 else 128 * 131072
KSTEP = (8192, 2048, 4096)[cfg.kvmap]
def adv(which, cross):
    o, t, b = (sKo, sKt, sKb) if which == "K" else (sVo, sVt, sVb)
    m = sMKn if which == "K" else sMVn
    if cfg.flag_:
        assert not cfg.rot
        L = [s2("s_add_u32", "s%d" % o, "s%d" % o, "8192")]
        if USTRIDE != 131072:
            L += [s2("s_bfe_u32", "s%d" % t, "s%d" % o, "0x10011"), s2("s_mul_i32", "s%d" % t, "s%d" % t, str(USTRIDE - 131072)), s2("s_add_u32", "s%d" % o, "s%d" % o, "s%d" % t)]
        return L + [s2("s_add_u32", "s%d" % m, "s%d" % m, "8192"), s2("s_and_b32", "s%d" % m, "s%d" % m, "0xffff")]
    M = [s2("s_add_u32", "s%d" % m, "s%d" % m, "8192"), s2("s_and_b32", "s%d" % m, "s%d" % m, "0xffff")]
    if not cfg.rot:
        return M + [s2("s_add_u32", "s%d" % o, "s%d" % o, str(KSTEP + (USTRIDE - 16 * KSTEP if cross else 0)))]
    L = M + [s2("s_add_u32", "s%d" % t, "s%d" % t, str(KSTEP)), s2("s_and_b32", "s%d" % t, "s%d" % t, str(16 * KSTEP - 1))]
    if cross: L.append(s2("s_add_u32", "s%d" % b, "s%d" % b, str(USTRIDE)))
    L.append(s2("s_add_u32", "s%d" % o, "s%d" % b, "s%d" % t))
    return L

LEAD = cfg.lead
LAT = cfg.lat
B0, B1, B2, B3, NG = 0, 16, 34, 50, 68
NW0 = 5
LASTCHK = {}
RAMP_IT = [2, 4, 6, 8][cfg.rskip:cfg.rskip + cfg.lead - cfg.l0]
RAMPS = {}
QA_IT = [cfg.qa0 + i for i in range(4)]; QB_IT = [8, 9, 10, 11]; ST_IT = [1, 6, 7, 12, 13, 14, 15]
QRD = cfg.qa0 + 5; QB_IT = [QRD + 1 + i for i in range(4)] if QRD <= 7 else [QRD + 1, QRD + 2]
ST_IT = ([1] + [t for t in range(2, 16) if t not in QA_IT and t not in QB_IT] + [8])
ST_IT = sorted(ST_IT[:8])
ST_MAP = {t: [2 * i, 2 * i + 1] for i, t in enumerate(ST_IT)} if cfg.stmode == 0 else {(k + 1) % 16: [k] for k in range(16)}
if cfg.stmode == 2: ST_MAP = {6: [0, 1, 2, 3], 7: [4, 5, 6, 7], 12: [8, 9, 10, 11], 13: [12, 13, 14, 15]}
QCNT_A = [2, 2, 2, 2]; QCNT_B = [8 // len(QB_IT)] * len(QB_IT)
if cfg.stmode == 4:
    QA_IT = [2, 3, 4]; QCNT_A = [3, 3, 2]; QRD = 6; QB_IT = [7, 8]; QCNT_B = [4, 4]
    ST_MAP = {9: [0, 1], 10: [2, 3], 11: [4, 5], 12: [6, 7], 13: [8, 9, 10], 14: [11, 12, 13], 15: [14, 15]}
if cfg.stmode == 5:
    QA_IT = [2, 3, 4]; QCNT_A = [3, 3, 2]; QRD = 6; QB_IT = [7, 8, 9]; QCNT_B = [3, 3, 2]
    ST_MAP = {10: [0, 1, 2], 11: [3, 4, 5], 12: [6, 7], 13: [8, 9, 10], 14: [11, 12, 13], 15: [14, 15]}
if cfg.stmode == 3: ST_MAP = {12: [0, 1, 2, 3], 13: [4, 5, 6, 7], 14: [8, 9, 10, 11], 15: [12, 13, 14, 15]}

class Seg:
    def __init__(self): self.gaps = []; self.sitems = []; self.head = []; self.tail = []; self.post = []

def build_iter(t, first=False):
    sg = Seg()
    if first:
        b0, b1, b2, b3, ng = 0, None, 16, 32, 50
        mf = qk_block(0) + qk_block(1) + pv_block(0, True)
    else:
        b0, b1, b2, b3, ng = B0, B1, B2, B3, NG
        mf = qk_block(0) + pv_block(1, t == 1) + qk_block(1) + pv_block(0, t == 0)
    gaps = [Gap(m) for m in mf]
    items = []
    INF = 10 ** 6
    slot = t % 8; nslot = (t + 1) % 8
    isbar = (t % cfg.barper == 0)
    bar_gap = cfg.bargap
    if not first:
        items += softmax_items(1, cfg.sm0 + 34 - NG, lambda q, kt: 0, lambda q: b1 + pfirst(q) - 2, lo=(cfg.e0, cfg.e0, cfg.c0))
        for i in range(cfg.f0, 8):
            f = KORD[i]
            items.append(Item(kread(f, slot, 0), 0, kfirst(f) - LAT, cfg.kt0 + cfg.kts * i - NG))
    items += softmax_items(0, (cfg.sm0 if not first else 12), lambda q, kt: b0 + sdone(q, kt) + cfg.rdy, lambda q: b3 + pfirst(q) - 2)
    items += softmax_items(1, b3 - B3 + cfg.sm0 + 34, lambda q, kt: b2 + sdone(q, kt) + cfg.rdy, lambda q: INF, hi=(cfg.e0, cfg.e0, cfg.c0))
    for b in range(8):
        for jj in range(2):
            rdy = (b1 + pvpos(b, 1)) if not first else cfg.fbar + 1
            items.append(Item(vread(b, jj, slot, 0), max(rdy, bar_gap + 1), b3 + pvpos(b, 0) - LAT, (cfg.vt0 + cfg.vts * (2 * b + jj)) if not first else cfg.fbar + 1 + b + jj * 0.5))
    for i in range(cfg.f0):
        f = KORD[i]
        items.append(Item(kread(f, nslot, 1), max(b2 + klast(f), cfg.fbar + 1 if first else 0), min(ng - 1, ng + kfirst(f) - LAT), b3 - B3 + cfg.kt0 + cfg.kts * i))
    def chain(lst, targets, ready, dead=INF, dist=1, after=None):
        p = after; res = []
        for k, (ins, tgt) in enumerate(zip(lst, targets)):
            dd = dead[k] if isinstance(dead, list) else dead
            it = Item(ins, ready, dd, tgt, [(p, dist)] if p else []); items.append(it); p = it; res.append(it)
        return res
    if first:
        lst = []
        for n in range(cfg.l0 + 1 + cfg.front): lst += [("V", vd()), ("K", kd())]
        if cfg.early: lst = lst[1:]
        p = None; tg = 1
        for k, (w, pr) in enumerate(lst):
            rdy = 1 if k < 8 - cfg.early else cfg.fbar + 2
            its = chain(pr, [tg, tg + 1], rdy, after=p, dist=1); p = its[1]; tg += 2 if k < 4 else 3
            sg.post.append((its[1], adv(w, False)))
        gaps[7].sh.append(vsite([("Q", 1, 0)]))
        if cfg.pre:
            for i, ins in enumerate(q_reads(QR, 1, 0, addr=TM, p="v")): items.append(Item(ins, 8, 11, 8 + 0.5 * i))
            gaps[16].pre += [lsite()] + pre_burst(AQ + 32) + [nop(1)]
        else:
          for i, ins in enumerate(q_reads(AQ + 32, 1, 0, addr=TM)):
            items.append(Item(ins, 8, 16 - LAT + qfirst(i // 4, i % 4) + 1, 8 + 0.5 * qfirst(i // 4, i % 4)))
        al = lsite(); al.needs = "all"
        gaps[cfg.fbar].sh += [al, vsite([("V", 0), ("K", 1)]), bar()]
        if cfg.barper == 2: gaps[ng - 1].va += [vsite([("V", 1), ("K", 2)]), bar()]
    else:
        if cfg.front:
            assert cfg.barper == 2
            if isbar:
                p = None
                for j in range(2):
                    dm = kv_dmas(t, LEAD + j)
                    kvits = chain(dm, [cfg.x0 + cfg.fxs * (4 * j + i) for i in range(4)], bar_gap + 2, after=p, dist=cfg.fxs - 1)
                    p = kvits[3]
                    sg.post.append((kvits[1], adv("K", (t + j + LEAD + 2) % 16 == 0)) if j == 0 else None) if False else None
                    for a in adv("K", (t + j + LEAD + 2) % 16 == 0): sg.sitems.append((a, ("after", kvits[1]), None))
                    for a in adv("V", (t + j + LEAD + 1) % 16 == 0): sg.sitems.append((a, ("after", kvits[3]), None))
        else:
            dm = kv_dmas(t, LEAD)
            dmt = [cfg.x0 + cfg.xs * i for i in range(4)] if isbar else [cfg.x1 + cfg.xs * i for i in range(4)]
            kvits = chain(dm, dmt, (bar_gap + 2) if isbar else 1)
            for a in adv("K", (t + LEAD + 2) % 16 == 0): sg.sitems.append((a, ("after", kvits[1]), None))
            for a in adv("V", (t + LEAD + 1) % 16 == 0): sg.sitems.append((a, ("after", kvits[3]), None))
        if isbar:
            needs = [("V", 0), ("K", 1)] + ([("V", 1), ("K", 2)] if cfg.barper == 2 else [])
            if t in RAMP_IT:
                r = Ins("s_cbranch_vccnz L_ramp%dA\nL_back%d:" % (t, t), "RAMP", ["vcc"]); r.cmt = "ramp%d" % t
                gaps[bar_gap - 2].sh.append(r)
                k = RAMP_IT.index(t)
                for role in ("A", "B"):
                    L = [vsite(needs)]
                    for w, pr in (("V", vd()), ("K", kd())):
                        follower = (w == "V") == (role == "A")
                        if follower and k >= len(RAMP_IT) - cfg.flag_: continue
                        L += [setm0(pr[0].cmt), nop(1)] + pr + adv(w, False)
                    if t == RAMP_IT[-1]: L.append(salu("s_mov_b64 vcc, 0", [], ["vcc"]))
                    L.append(raw("s_branch L_back%d" % t, "BR"))
                    if role == "A": L[0:0] = [raw("s_bitcmp1_b32 s2, 3"), raw("s_cbranch_scc1 L_ramp%dB" % t)]
                    RAMPS["ramp%d%s" % (t, role)] = L
            gaps[bar_gap - 1].sh.append(vsite(needs))
            gaps[bar_gap].sh.append(bar())
    XT = [cfg.xt, cfg.xt + cfg.xts]
    if not first and t == 0:
        gaps[0].pre += epi_burst(0, defer=True)
        gaps[1].pre += LASTCHK[0]
        W = chain(o_writes(0), [1.5 + 3.5 * i for i in range(8)], 0, 38)
        chain(o_reads(0, -1), [29 + 1.1 * j for j in range(16)], 0, 47, dist=0, after=W[7])
        gaps[48].pre += epi_burst(1, defer=True)
        gaps[49].pre += LASTCHK[1]
        chain(o_writes(1)[:NW0], [49.5 + 4 * i for i in range(NW0)], 48)
        for i in range(16, 32) if not cfg.pre else []:
            items.append(Item(v1("v_accvgpr_mov_b32", "a%d" % (AQ + 32 + i), "a%d" % (AQN + i)), 0, b2 - 2, 2 * (i - 16)))
        for i in range(32) if cfg.pre else []:
            items.append(Item(v1("v_accvgpr_write_b32", "a%d" % (AQ + 32 + i), "v%d" % (QR + i)), 0, b2 - 2, i))
        fo = flag_ops()
        if cfg.finchk:
            i1 = Item(fo[0], 56, INF, 56); i2 = Item(fo[1], 56, 62, 57, [(i1, 0)]); items += [i1, i2]
            sg.sitems.append((fo[3], ("after2", i2), None)); sg.sitems.append(([fo[4], fo[5]], ("after2", i2), None))
            sg.sitems.append((fo[6], ("after2", i2), None)); sg.sitems.append((fo[7], ("after2", i2), None))
        else:
            gaps[60].pre += fo
    if t == 1:
        ws = o_writes(1)[NW0:]
        W = chain(ws, [0.5 + 4 * i for i in range(len(ws))], 0, [b1 + pvpos(2 * ((NW0 + i) % 4), (NW0 + i) // 4) - 1 for i in range(len(ws))])
        chain(o_reads(1, -1), [16 + 2 * j for j in range(16)], 0, INF, dist=0, after=W[-1])
        al = lsite(); al.needs = "all"; gaps[ng - 1].sh.insert(1, al)
    if not first and ST_MAP.get(t):
        ks = ST_MAP[t]
        tg = {1: [cfg.stgap], 2: XT, 3: [46, 53, 60], 4: [36, 42, 48, 54]}[len(ks)] if t not in (0, 1) else ([50, 54] if t == 1 else [20])
        st = chain([o_stores(k // 8)[k % 8] for k in ks], tg, 18, 65 if t != 0 else 30)
        for k, it in zip(ks, st):
            if k == 15:
                for a in tab_add(sOT): sg.sitems.append((a, ("after", it), None))
            if k == (15 if cfg.stmode == 0 else 15):
                sg.sitems.append((smov("s%d" % (sO_ + 2), "s%d" % sONR), ("after", it), None))
    for h, its in ((1 - cfg.pre, QA_IT), (cfg.pre, QB_IT)):
        if t in its:
            k = its.index(t)
            if k == 0:
                pass
            cn = QCNT_A if its is QA_IT else QCNT_B
            npi = cn[k]; o = sum(cn[:k])
            qd = chain(q_dmas(h, 1)[o:o + npi], {2: XT, 3: [46, 53, 60], 4: [44, 50, 56, 62]}[npi], 43, 65)
    if t == QB_IT[-1] + 1:
        class Z: gap = -1
        for a in tab_add(sQT): sg.sitems.append((a, ("after", Z), None))
    if cfg.wbl2 and t == cfg.wbl2:
        sg.head += [raw("s_cmp_lg_u32 s%d, 0" % sCNT), raw("s_cbranch_scc1 L_nowb"), raw("s_cmp_lg_u32 s%d, 0" % sW), raw("s_cbranch_scc1 L_nowb"),
                    raw("buffer_wbl2 sc1"), raw("L_nowb:")]
    if t == QRD:
        gaps[29].sh.append(vsite([("Q", 1 - cfg.pre, 1)]))
        for i, ins in enumerate(q_reads(AQN, 1, 1) if not cfg.pre else q_reads(QR, 0, 1, p="v")):
            items.append(Item(ins, 30, INF, 30 + 4 * i))
        al = lsite(); al.needs = "all"; gaps[ng - 1].sh.insert(1, al)
    if cfg.fakepre and 8 <= t <= 14:
        for i in range(23):
            r = 2 + (i % 4)
            op = [v2("v_and_b32", "v%d" % r, "0xffff0000", "v10"), v2("v_lshlrev_b32", "v%d" % r, "16", "v10"), mul_(r), mul_(r), cvt_(8, 2, 3)][i % 5]
            items.append(Item(op, 0, INF, 3 * i))
    if cfg.fakepre and t == 15:
        for i in range(32):
            sg.tail += [v2("v_and_b32", "v3", "0xffff0000", "v10"), v2("v_lshlrev_b32", "v2", "16", "v10"),
                        valu("v_pk_mul_f32 v[4:5], v[2:3], v[6:7]", [], [], "K"), cvt_(8, 4, 5), v1("v_accvgpr_write_b32", "a%d" % (AQN + i), "v8")]
    if cfg.pre and QRD < t < 15:
        n = 14 - QRD; lo_ = (t - QRD - 1) * 32 // n; hi_ = (t - QRD) * 32 // n
        last = {}
        for j, i in enumerate(range(lo_, hi_)):
            k = i % 3; p = last.get(k); base = j * (ng - 6.0) / (hi_ - lo_)
            for m, op in enumerate(pre_ops(i, k)):
                it = Item(op, 0, INF, base + 2.2 * m, [(p, 0)] if p else []); items.append(it); p = it
            last[k] = p
    if cfg.pre and t == 15:
        gaps[15].sh.append(vsite([("Q", 1, 1)]))
        Wr = [Item(v1("v_accvgpr_write_b32", "a%d" % (AQ + i), "v%d" % (QR + i)), 16, 56, 16 + i) for i in range(32)]
        items += Wr
        for i, ins in enumerate(q_reads(QR, 1, 1, p="v")):
            items.append(Item(ins, 16, ng - 6, 22 + 4.5 * i, [(w, 1) for w in Wr[4 * i:4 * i + 4]]))
        sg.tail += [lsite()] + pre_burst(None, writes=False)
    if t == 15 and not cfg.pre:
        gaps[15].sh.append(vsite([("Q", 0, 1)]))
        for i, ins in enumerate(q_reads(AQ, 0, 1)):
            items.append(Item(ins, 16, ng - 1 - LAT, 17 + 5 * i))
        for i in range(16):
            items.append(Item(v1("v_accvgpr_mov_b32", "a%d" % (AQ + 32 + i), "a%d" % (AQN + i)), b3, INF, b3 + i))
    schedule(gaps, items, "it%d%s" % (t, "f" if first else ""))
    for it, ops in sg.post: gaps[it.gap].va += ops
    sg.gaps = gaps
    return sg

def place_scalar(sg):
    gaps = sg.gaps
    def busy(G): return sum(1 for x in G.sh if (x.kind not in ("LSITE", "VSITE")) ) + (1 if any(x.kind in ("LSITE", "VSITE") and x.n is not None for x in G.sh) else 0)
    lastpos = {}
    ntail = 0
    for ins, (how, it), _ in sg.sitems:
        lst = ins if isinstance(ins, list) else [ins]
        lo = max(it.gap + (1 if how == "after2" else 0), lastpos.get(id(it), -1)) + 1
        hi = len(gaps)
        for k in range(it.gap + 1, len(gaps)):
            if any(x.kind == "X" and ((x.rd & lst[0].wr) - {"scc"} or (x.cmt and "s%d" % x.cmt[0] in lst[0].wr)) for x in gaps[k].ds): hi = k - 1; break
        c = [k for k in range(lo, hi) if busy(gaps[k]) == 0]
        if c: gaps[c[0]].sh += lst; lastpos[id(it)] = c[0]
        elif hi < len(gaps):
            k = max(lo - 1, min(hi - 1, lo)); gaps[k].sh += lst; lastpos[id(it)] = k - 1
        else: sg.tail[ntail:ntail] = lst; ntail += len(lst); lastpos[id(it)] = len(gaps)
    cur = None; lastx = -1
    for g, G in enumerate(gaps):
        if any("s_mov_b32 m0" in x.text for x in G.pre): cur = None; lastx = max(lastx, g - 1)
        if any(x.kind == "RAMP" for x in G.sh): cur = None; lastx = max(lastx, g)
        for x in G.ds:
            if x.kind == "X" and "m0" in x.rd:
                if cur != x.cmt:
                    src = "s%d" % x.cmt[0]
                    lw = max([k for k in range(g) if any(src in y.wr for y in gaps[k].sh + gaps[k].va)] + [-1])
                    cands = [k for k in range(max(lastx + 1, lw), g)]
                    free = [k for k in cands if busy(gaps[k]) == 0]
                    if cands:
                        k = free[-1] if free else cands[-1]
                        gaps[k].sh.append(setm0(x.cmt))
                    elif any("s_mov_b32 m0" in y.text for y in G.pre):
                        G.pre.append(setm0(x.cmt))
                    else:
                        gaps[lastx].va.append(setm0(x.cmt))
                    cur = x.cmt
                lastx = g

def flat(sg):
    L = list(sg.head)
    for G in sg.gaps: L += G.flat()
    return L + sg.tail

def prologue():
    L = []
    A = L.append
    A(raw("s_cmp_ge_u32 s2, 256")); A(raw("s_cbranch_scc1 L_end"))
    A(raw("s_load_dwordx4 s[36:39], s[0:1], 0")); A(raw("s_load_dwordx4 s[40:43], s[0:1], 16"))
    A(v2("v_lshrrev_b32", "v1", "6", "v0")); A(v2("v_and_b32", "v0", "63", "v0"))
    A(valu("v_readfirstlane_b32 s%d, v1" % sW, ["v1"], ["s%d" % sW]))
    A(v2("v_lshrrev_b32", "v2", "4", "v0"))
    A(v2("v_and_b32", "v3", "15", "v0"))
    if cfg.xmap == 0:
        A(raw("s_and_b32 s45, s2, 7")); A(raw("s_lshr_b32 s46, s2, 4")); A(raw("s_lshl_b32 s45, s45, 4")); A(raw("s_add_u32 s45, s45, s46"))
    else:
        A(raw("s_and_b32 s45, s2, 7")); A(raw("s_lshr_b32 s46, s2, 4")); A(raw("s_lshl_b32 s46, s46, 3")); A(raw("s_add_u32 s45, s45, s46"))
    if cfg.rot:
        A(raw("s_mul_i32 s%d, s45, %d" % (sKt, cfg.rot * KSTEP))); A(raw("s_and_b32 s%d, s%d, %d" % (sKt, sKt, 16 * KSTEP - 1))); A(smov("s%d" % sVt, "s%d" % sKt))
    if cfg.rotq: A(raw("s_mul_i32 s82, s45, %d" % (cfg.rotq * PSTEP)))
    A(raw("s_lshl_b32 s45, s45, %d" % (19 if cfg.hmap == 0 else 17)))
    A(raw("s_bfe_u32 s46, s2, 0x10003")); A(raw("s_lshl_b32 s46, s46, 16")); A(raw("s_add_u32 s46, s46, s45"))
    A(s2("s_lshl_b32", "s%d" % sMK, "s%d" % sW, "11"))
    A(v2("v_lshlrev_b32", "v4", "1", "v2")); A(v2("v_xor_b32", "v4", "v3", "v4")); A(v2("v_lshlrev_b32", "v4", "4", "v4"))
    A(v3("v_lshl_add_u32", "v%d" % DA, "v2", "8", "v4")); A(v2("v_xor_b32", "v%d" % DB, "0x80", "v%d" % DA))
    A(smov("s%d" % sMKn, "s%d" % sMK)); A(smov("s%d" % sMVn, "s%d" % sMK))
    if cfg.cpf:
        A(raw("s_lshr_b32 s%d, s2, 3" % sT)); A(raw("s_lshl_b32 s%d, s%d, 2" % (sT, sT))); A(raw("s_add_u32 s%d, s%d, s%d" % (sT, sT, sW)))
        A(raw("s_and_b32 s%d, s%d, 31" % (sT, sT))); A(raw("s_lshl_b32 s%d, s%d, 10" % (sT, sT)))
        A(raw("s_min_u32 s%d, s%d, L_end - L_pc - 1024" % (sT, sT)))
        A(v2("v_lshlrev_b32", "v5", "4", "v0")); A(v2("v_add_u32", "v5", "s%d" % sT, "v5"))
        A(raw("s_getpc_b64 s[58:59]\nL_pc:"))
        A(Ins("global_load_dwordx4 v[72:75], v5, s[58:59]", "X", ["v5"], R("v", 72, 4)))
    A(s2("s_lshl_b32", "s%d" % sMS, "s%d" % sW, "13")); A(s2("s_add_u32", "s%d" % sMS, "s%d" % sMS, str(LDS_S)))
    A(s2("s_lshl_b32", "s%d" % sQo, "s%d" % sW, str(WSH)))
    for i in range(8):
        if cfg.rotq:
            A(s2("s_add_u32", "s%d" % (sQT + i), "s82", str(i * PSTEP))); A(s2("s_and_b32", "s%d" % (sQT + i), "s%d" % (sQT + i), str(8 * PSTEP - 1)))
            A(s2("s_add_u32", "s%d" % (sQT + i), "s%d" % (sQT + i), "s%d" % sQo))
        else: A(s2("s_add_u32", "s%d" % (sQT + i), "s%d" % sQo, str(i * PSTEP)))
    for b in (sQ_, sK_, sV_, sO_): A(smov("s%d" % (b + 3), "0x20000"))
    A(smov("s%d" % (sK_ + 2), str(3 * USTRIDE + 131072))); A(smov("s%d" % (sV_ + 2), str(3 * USTRIDE + 131072)))
    A(smov("s%d" % (sQ_ + 2), str(3 * USTRIDE + 65536))); A(smov("s%d" % sONR, str(3 * USTRIDE + 65536))); A(smov("s%d" % (sO_ + 2), "0"))
    assert not cfg.flag_
    if cfg.kvmap == 0: A(s2("s_lshl_b32", "s%d" % sKo, "s%d" % sW, "11"))
    elif cfg.kvmap == 1: A(s2("s_lshl_b32", "s%d" % sKo, "s%d" % sW, "15"))
    else:
        A(s2("s_and_b32", "s%d" % sKo, "s%d" % sW, "1")); A(s2("s_lshl_b32", "s%d" % sKo, "s%d" % sKo, "11"))
        A(s2("s_lshr_b32", "s%d" % sVo, "s%d" % sW, "1")); A(s2("s_lshl_b32", "s%d" % sVo, "s%d" % sVo, "16")); A(s2("s_add_u32", "s%d" % sKo, "s%d" % sKo, "s%d" % sVo))
    if cfg.rot:
        A(smov("s%d" % sKb, "s%d" % sKo)); A(smov("s%d" % sVb, "s%d" % sKo)); A(s2("s_add_u32", "s%d" % sKo, "s%d" % sKo, "s%d" % sKt))
    A(smov("s%d" % sVo, "s%d" % sKo))
    A(raw("s_waitcnt lgkmcnt(0)"))
    if cfg.stamp2: L += stamp()
    for b, p, o in ((sK_, 38, 45), (sQ_, 36, 46), (sV_, 40, 45), (sO_, 42, 46)):
        A(salu("s_add_u32 s%d, s%d, s%d" % (b, p, o), [], ["s%d" % b])); A(salu("s_addc_u32 s%d, s%d, 0" % (b + 1, p + 1), [], ["s%d" % (b + 1)]))
    def issue(lst):
        cur = None
        for x in lst:
            if x.kind == "X" and cur != x.cmt:
                A(setm0(x.cmt)); A(nop(1)); cur = x.cmt
            A(x)
    k0 = kd(); v0 = vd() if cfg.early else None
    q0 = q_dmas(0, 0)
    if cfg.early:
        issue([k0[0], q0[0], v0[0], k0[1], v0[1]] + adv("K", False) + adv("V", False) + q0[1:])
    else:
        issue(k0 + adv("K", False) + q0)
    A(s2("s_sub_u32", "s%d" % sT, "s%d" % sMS, "32768"))
    issue(q_dmas(1, 0, msgpr=sT))
    if cfg.stamp2: L += stamp()
    for i in range(8): A(s2("s_sub_u32", "s%d" % (sOT + i), "s%d" % (sQT + i), str(USTRIDE)))
    L += tab_add(sQT)
    A(v2("v_and_b32", "v5", "7", "v3")); A(v2("v_lshlrev_b32", "v6", "1", "v5"))
    for s in range(4):
        A(v2("v_add_u32", "v7", str(4 * s), "v2")); A(v2("v_xor_b32", "v7", "v7", "v6")); A(v2("v_lshlrev_b32", "v7", "4", "v7"))
        A(v3("v_lshl_add_u32", "v%d" % (KA + s), "v3", "8", "v7"))
        A(v2("v_add_u32", "v%d" % (QA + s), "s%d" % sMS, "v%d" % (KA + s)))
        A(v2("v_subrev_u32", "v%d" % (TM + s), "0x8000", "v%d" % (QA + s)))
    A(v2("v_lshrrev_b32", "v76", "2", "v0"))
    A(v2("v_and_b32", "v77", "7", "v76")); A(v2("v_lshlrev_b32", "v77", "1", "v77"))
    A(valu("v_bfe_u32 v78, v0, 1, 1", ["v0"], ["v78"]))
    A(v2("v_and_b32", "v79", "1", "v0")); A(v2("v_lshlrev_b32", "v79", "3", "v79"))
    A(v3("v_lshl_add_u32", "v79", "v76", "8", "v79")); A(v2("v_add_u32", "v79", str(LDS_V), "v79"))
    for b in range(8):
        A(v2("v_add_u32", "v7", str(2 * b), "v78")); A(v2("v_xor_b32", "v7", "v7", "v77"))
        A(v3("v_lshl_add_u32", "v%d" % (VA + b), "v7", "4", "v79"))
    A(v2("v_lshlrev_b32", "v79", "8", "v3")); A(v2("v_add_u32", "v79", "s%d" % sMS, "v79"))
    A(v2("v_xor_b32", "v78", "v2", "v5"))
    A(v3("v_lshl_add_u32", "v%d" % OW, "v78", "4", "v79")); A(v2("v_xor_b32", "v%d" % (OW + 1), "64", "v%d" % OW))
    A(v2("v_and_b32", "v78", "12", "v3")); A(v2("v_and_b32", "v70", "1", "v3")); A(v3("v_lshl_add_u32", "v78", "v70", "1", "v78"))
    A(v2("v_xor_b32", "v78", "v78", "v2")); A(v2("v_lshlrev_b32", "v78", "4", "v78")); A(v3("v_lshl_add_u32", "v78", "v2", "8", "v78"))
    A(v2("v_and_b32", "v70", "2", "v3")); A(v3("v_lshl_add_u32", "v78", "v70", "2", "v78"))
    A(v2("v_add_u32", "v%d" % OR_, "s%d" % sMS, "v78"))
    for i, x in enumerate((16, 64, 80)): A(v2("v_xor_b32", "v%d" % (OR_ + 1 + i), str(x), "v%d" % OR_))
    A(v2("v_lshlrev_b32", "v%d" % OS, "4", "v0"))
    A(v2("v_and_b32", "v7", "3", "v0")); A(valu("v_cmp_eq_u32 vcc, 0, v7", ["v7"], ["vcc"])); A(v1("v_mov_b32", "v76", "0x3f803f80")); A(v1("v_mov_b32", "v77", "0"))
    A(valu("v_cndmask_b32 v7, v77, v76, vcc", ["v76", "v77", "vcc"], ["v7"]))
    for i in range(4):
        A(v1("v_accvgpr_write_b32", "a%d" % (AONE + i), "v7")); A(v1("v_accvgpr_write_b32", "a%d" % (AZERO + i), "v77"))
    A(smov("s%d" % sC, "0x%08x" % SCALE)); A(smov("s%d" % sC2, "0x%08x" % SCALE)); A(smov("s%d" % (sC2 + 1), "0x%08x" % SCALE))
    if cfg.fakepre: L += [v1("v_mov_b32", "v%d" % i, "1.0") for i in range(2, 12)]
    A(smov("s%d" % sLO, "0x%08x" % LO_BITS)); A(smov("s%d" % sRG, "0x%08x" % (HI_BITS - LO_BITS)))
    A(smov("s%d" % sBAD, "0")); A(salu("s_mov_b64 s[%d:%d], 0" % (sACC, sACC + 1), [], R("s", sACC, 2)))
    A(smov("s%d" % sCNT, "3"))
    A(salu("s_mov_b64 vcc, %d" % (-1 if RAMP_IT else 0), [], ["vcc"]))
    if cfg.stamp2: L += stamp()
    A(vsite([("K", 0), ("Q", 0, 0)]))
    if cfg.stamp2: L += stamp()
    A(bar())
    if cfg.pre:
        L += q_reads(QR, 0, 0, p="v") + [kread(f, 0, 0) for f in KORD] + [lsite()]
        b = pre_burst(AQ)
        for i in range(0, len(b), 20): L += b[i:i + 20] + [lsite()]
        return L + [nop(1), lsite()]
    qr = q_reads(AQ, 0, 0)
    seen = set()
    for kt, q, s in QKSEQ:
        if ("k", kt, s) not in seen: A(kread(4 * kt + s, 0, 0)); seen.add(("k", kt, s))
        if ("q", q, s) not in seen: A(qr[4 * q + s]); seen.add(("q", q, s))
    A(lsite())
    return L

def tail_seg():
    L = []
    for it in softmax_items(1, 0, lambda q, kt: 0, lambda q: 99, lo=(cfg.e0, cfg.e0, cfg.c0)):
        L.append(it.ins)
        if it.ins.kind == "T" and it.ins.text == exp_(S_(1, *GRP[3]) + 3).text: L.append(nop(1))
    if cfg.stmode == 1:
        L += [o_stores(1)[7]] + tab_add(sOT)
    L += epi_burst(0)
    gaps = [Gap(m) for m in pv_block(1, False)]
    for g, w in enumerate(o_writes(0)): gaps[g].ds.append(w)
    rd = o_reads(0, 0)
    for g in range(8): gaps[8 + g].ds += rd[2 * g:2 * g + 2]
    for G in gaps: L += G.flat()
    st = o_stores(0)
    L += [lsite()] + st[:4]
    b1 = epi_burst(1)
    k = [i for i, x in enumerate(b1) if x.kind == "K"][-1] + 1
    L += b1[:k] + [lsite()] + st[4:] + b1[k:]
    w1 = o_writes(1); r1 = o_reads(1, 0); st = o_stores(1)
    L += w1[:4] + r1[:8] + w1[4:] + r1[8:]
    L += [lsite()] + st[:2] + [lsite()] + st[2:4] + [lsite()] + st[4:6] + [lsite()] + st[6:]
    L += flag_ops()
    return L

def slow_path():
    T = []
    A = T.append
    def emit(l):
        for x in l: A(x.text)
    def wait(): A("s_waitcnt vmcnt(0) lgkmcnt(0)");
    A("s_barrier")
    if cfg.force_slow: A("s_mov_b32 s%d, 15" % sBAD)
    A("s_cmp_eq_u32 s%d, 0" % sBAD); A("s_cbranch_scc1 L_end")
    A("s_lshl_b32 s45, s%d, 13" % sW)
    for i in range(4): A("v_add_u32 v%d, s45, v%d" % (KA + i, KA + i))
    for i in range(8): A("v_add_u32 v%d, s45, v%d" % (VA + i, VA + i))
    A("s_add_u32 s46, s45, %d" % LDS_V)
    A("s_lshl_b32 s%d, s%d, %d" % (sQo, sW, WSH))
    A("v_mov_b32 v%d, v%d" % (TS + 4, DA)); A("v_mov_b32 v%d, v%d" % (TS + 5, DB))
    A("s_mov_b32 s%d, 0" % sCNT)
    A("L_slow_unit:")
    A("s_bitcmp1_b32 s%d, 3" % sBAD); A("s_cbranch_scc0 L_slow_next")
    for i in range(8): A("s_add_u32 s%d, s%d, %d" % (sQT + i, sQo, i * PSTEP)); A("s_mov_b32 s%d, s%d" % (sOT + i, sQT + i))
    wait()
    for h in range(2):
        cur = None
        for x in q_dmas(h, 0):
            if cur != x.cmt: A(setm0(x.cmt).text); A("s_nop 0"); cur = x.cmt
            A(x.text)
        wait(); emit(q_reads(AQ + 32 * h, h, 0)); wait()
    def tile_dma(sr, m0s):
        for i in range(8):
            if i % 4 == 0:
                A("s_add_u32 m0, s%d, %d" % (m0s, (i // 4) * 4096)); A("s_add_u32 s%d, s%d, %d" % (sT, sKo, (i // 4) * 4096))
            A("buffer_load_dwordx4 v%d, %s, s%d offen offset:%d lds" % (TS + 4 + i % 2, srd(sr), sT, (i % 4) * 1024))
    def qk_all():
        emit([kread(f, 0, 0) for f in range(8)]); wait()
        emit(qk_block(0) + qk_block(1)); A("s_nop 7"); A("s_nop 3")
    for i in range(4): A("v_mov_b32 v%d, 0xff800000" % (MX + i))
    A("s_mov_b32 s%d, s%d" % (sKo, sCNT)); A("s_add_u32 s%d, s%d, 131072" % (sVo, sCNT))
    A("L_slow_p1:")
    tile_dma(sK_, 45); wait(); qk_all()
    for h in range(2):
        for q in range(2):
            a = S_(h, q, 0)
            for i in range(4): A("v_max3_f32 v%d, v%d, v%d, v%d" % (MX + 2 * h + q, a + 2 * i, a + 2 * i + 1, MX + 2 * h + q))
    A("s_add_u32 s%d, s%d, 8192" % (sKo, sKo)); A("s_cmp_lt_u32 s%d, s%d" % (sKo, sVo)); A("s_cbranch_scc1 L_slow_p1")
    for op in ("v_permlane32_swap_b32", "v_permlane16_swap_b32"):
        for i in range(4): A("v_mov_b32 v%d, v%d" % (NM + i, MX + i))
        A("s_nop 1")
        for i in range(4): A("%s v%d, v%d" % (op, NM + i, MX + i))
        A("s_nop 1")
        for i in range(4): A("v_max_f32 v%d, v%d, v%d" % (MX + i, MX + i, NM + i))
    for i in range(4): A("v_mul_f32 v%d, s%d, v%d" % (NM + i, sC, MX + i))
    for i in range(128): A("v_mov_b32 v%d, 0" % (OB + i))
    for i in range(16): A("v_accvgpr_write_b32 a%d, 0" % (AL + i))
    A("s_mov_b32 s%d, s%d" % (sKo, sCNT))
    A("L_slow_p2:")
    tile_dma(sK_, 45); tile_dma(sV_, 46); wait(); qk_all()
    emit([vread(b, jj, 0, 0) for b in range(4) for jj in range(2)])
    for h in range(2):
        for q in range(2):
            a = S_(h, q, 0)
            for i in range(8): A("v_fma_f32 v%d, v%d, s%d, -v%d" % (a + i, a + i, sC, NM + 2 * h + q))
            for i in range(8): A("v_exp_f32 v%d, v%d" % (a + i, a + i))
            A("s_nop 0")
            for i in range(4): A(cvt_(P_(h, q) + i, a + 2 * i, a + 2 * i + 1).text)
    emit([vread(b, jj, 0, 0) for b in range(4, 8) for jj in range(2)])
    wait()
    emit(pv_block(0, False) + pv_block(1, False))
    A("s_add_u32 s%d, s%d, 8192" % (sKo, sKo)); A("s_cmp_lt_u32 s%d, s%d" % (sKo, sVo)); A("s_cbranch_scc1 L_slow_p2")
    A("s_nop 7"); A("s_nop 3")
    for h in range(2):
        emit(epi_burst(h, check=False)); emit(o_writes(h) + o_reads(h, 0))
        wait(); emit(o_stores(h)); wait()
    A("L_slow_next:")
    A("s_lshl_b32 s%d, s%d, 1" % (sBAD, sBAD)); A("s_and_b32 s%d, s%d, 15" % (sBAD, sBAD))
    for r in (sCNT, sQo): A("s_add_u32 s%d, s%d, %d" % (r, r, USTRIDE))
    A("s_cmp_lg_u32 s%d, 0" % sBAD); A("s_cbranch_scc1 L_slow_unit")
    return T

def stamp():
    if not cfg.stamp: return []
    return [raw("s_memtime s[58:59]"), raw("s_memrealtime s[62:63]"), raw("s_waitcnt lgkmcnt(0)"),
            raw("s_mov_b32 m0, s57"), raw("s_nop 0"), raw("v_writelane_b32 v38, s58, m0"), raw("v_writelane_b32 v39, s62, m0"), raw("s_add_u32 s57, s57, 1")]
def stamp_out():
    if not cfg.stamp: return []
    if cfg.dbgwg >= 0:
        return [x.text for x in stamp()] + ["s_cmp_lg_u32 s2, %d" % cfg.dbgwg, "s_cbranch_scc1 L_nodbg", "s_cmp_lg_u32 s%d, 0" % sW, "s_cbranch_scc1 L_nodbg",
            "s_load_dwordx2 s[36:37], s[0:1], 32", "s_waitcnt lgkmcnt(0)", "s_mov_b32 s38, 64", "s_mov_b32 s39, 0x20000",
            "v_readfirstlane_b32 s45, v39", "v_lshrrev_b32 v41, 2, v%d" % OS, "s_nop 1", "v_subrev_u32 v39, s45, v39",
            "buffer_store_dword v39, v41, s[36:39], 0 offen", "L_nodbg:"]
    return [x.text for x in stamp()] + ["s_load_dwordx2 s[36:37], s[0:1], 40", "s_waitcnt lgkmcnt(0)", "s_mov_b32 s38, 0x1000000", "s_mov_b32 s39, 0x20000",
            "s_lshl_b32 s45, s2, 2", "s_add_u32 s45, s45, s%d" % sW, "s_lshl_b32 s45, s45, 9", "v_lshrrev_b32 v41, 2, v%d" % OS,
            "buffer_store_dword v38, v41, s[36:39], s45 offen", "buffer_store_dword v39, v41, s[36:39], s45 offen offset:256"]
def main():
    sgs = {"it0f": build_iter(0, True)}
    for t in range(16): sgs["it%d" % t] = build_iter(t)
    def segs():
        d = {"pro": pro, "tail": tl}
        d.update(RAMPS)
        for k, s in sgs.items(): d[k] = flat(s)
        return d
    pro = prologue(); tl = tail_seg()
    if cfg.dbgspan:
        pro[2:2] = [raw("s_memrealtime s[60:61]"), raw("s_memtime s[62:63]"), raw("s_waitcnt lgkmcnt(0)"), raw("s_mov_b32 s56, s60"), raw("s_mov_b32 s57, s62")]
        i = [k for k, x in enumerate(pro) if x.kind == "BAR"][0]
        pro[i + 1:i + 1] = [raw("s_memrealtime s[58:59]")]
    if cfg.stamp:
        pro[2:2] = [raw("s_mov_b32 s57, 0")] + stamp()
        i = [k for k, x in enumerate(pro) if x.kind == "BAR"][0]
        pro[i + 1:i + 1] = stamp()
        for t in range(0, 16, cfg.stamp): sgs["it%d" % t].head[0:0] = stamp()
        tl[0:0] = stamp()
        if cfg.stamp3:
            G = sgs["it0"].gaps
            G[0].pre += stamp(); G[16].pre += stamp(); G[34].pre += stamp(); G[48].pre[0:0] = stamp(); G[48].pre += stamp()
            sgs["it1"].head[0:0] = stamp(); sgs["it1"].gaps[34].pre += stamp(); sgs["it2"].head[0:0] = stamp(); sgs["it3"].head[0:0] = stamp()
        if cfg.stamp2:
            sgs["it0f"].gaps[16].pre += stamp(); sgs["it0f"].gaps[cfg.fbar + 1].pre += stamp(); sgs["it0f"].tail[0:0] = stamp()
    traces = []
    for role in ("A", "B"):
        x = dict(role=role, lagK=cfg.flag_ if role == "B" else 0, lagV=cfg.flag_ if role == "A" else 0)
        trace = [("pro", dict(T=0, u=0, first=1, **x)), ("it0f", dict(T=0, u=0, first=1, **x))]
        for u in range(4):
            for t in range(16):
                if (u, t) != (0, 0): trace.append(("it%d" % t, dict(T=16 * u + t, u=u, first=(u == 0 and t < 9), **x)))
        trace.append(("tail", dict(T=64, u=3, **x)))
        traces.append(trace)
    sgs["it0f"].tail.append(raw("s_branch L_it1", "BR"))
    sgs["it15"].tail += [s2("s_sub_u32", "s%d" % sCNT, "s%d" % sCNT, "1"), raw("s_cbranch_scc0 L_it0", "BR")]
    insert_waits(segs(), traces)
    for k, s in sgs.items():
        br = [x for x in s.tail if x.kind == "BR" or "s_sub_u32 s%d" % sCNT in x.text]
        s.tail = [x for x in s.tail if x not in br]
        place_scalar(s)
        s.tail += br
    fs = {k: finalize(v) for k, v in segs().items()}
    errs = sum((verify(fs, tr, {"K": 8, "V": 16, "Q": 8, "O": 16}) for tr in traces), [])
    for e in errs[:40]: sys.stderr.write("ERR " + e + "\n")
    tot = 0
    for k in ["pro", "it0f"] + ["it%d" % t for t in range(16)] + ["tail"]:
        est = issue_estimate(fs[k]); sys.stderr.write("%s:%d " % (k, est))
        if k.startswith("it") and k != "it0f": tot += est
    if cfg.stamp3:
        for k in ("it0", "it1", "it2"):
            parts = [[]]
            for x in fs[k]:
                if "s_memtime" in x.text: parts.append([])
                parts[-1].append(x)
            sys.stderr.write("\n%s parts %s" % (k, [issue_estimate(p) for p in parts]))
    sys.stderr.write("\nunit estimate %d cycles, errors %d\n" % (tot, len(errs)))
    out = []
    hdr = open(os.path.join(os.path.dirname(os.path.abspath(__file__)), "..", "cdna_kernels", NAME + ".s.ref")).read().split("; Override")[0]
    out.append(hdr.rstrip())
    out.append("; @launch grid=(256,1,1) block=(256,1,1) lds=163840")
    out.append('.amdgcn_target "amdgcn-amd-amdhsa--gfx950"\n.text\n.globl %s_kernel\n.p2align 8\n.type %s_kernel,@function\n%s_kernel:' % (NAME, NAME, NAME))
    par = {}
    def dump(k):
        out.append("; ---- " + k)
        for x in fs[k]:
            if cfg.nocomp and k != "pro" and x.kind in ("M", "V", "T", "K", "D", "W"):
                par[x.kind] = par.get(x.kind, 0) + 1
                if cfg.nocomp == 1 or par[x.kind] % cfg.nocomp == 0: continue
            if cfg.nomem and k != "pro" and x.kind == "X" and (cfg.nomem == 1 or "store" in x.text): continue
            if cfg.nostore and x.kind == "X" and "store" in x.text: continue
            out.append("  " + x.text)
            if cfg.nocomp and "m0" in x.wr: out.append("  s_nop 0")
    dump("pro"); dump("it0f")
    for k in RAMPS: out.append("L_%s:" % k); dump(k)
    out.append(".p2align 6\nL_it0:"); dump("it0"); out.append("L_it1:")
    for t in range(1, 16): dump("it%d" % t)
    dump("tail")
    if cfg.dbgspan:
        out += ["  " + x for x in ["s_waitcnt vmcnt(0)", "s_memrealtime s[60:61]", "s_memtime s[62:63]", "s_load_dwordx2 s[36:37], s[0:1], 32", "s_waitcnt lgkmcnt(0)", "s_mov_b32 s38, 256", "s_mov_b32 s39, 0x20000",
            "s_not_b32 s45, s56", "v_mov_b32 v2, s45", "v_mov_b32 v3, s58", "v_mov_b32 v4, s60", "v_mov_b32 v5, s56", "s_not_b32 s45, s60", "v_mov_b32 v6, s45", "s_sub_u32 s45, s62, s57", "v_mov_b32 v7, s45", "v_mov_b32 v1, 0",
            "s_mov_b64 exec, 1",
            "buffer_atomic_umax v2, v1, s[36:39], 0 offen", "buffer_atomic_umax v3, v1, s[36:39], 0 offen offset:4", "buffer_atomic_umax v4, v1, s[36:39], 0 offen offset:8",
            "buffer_atomic_umax v5, v1, s[36:39], 0 offen offset:12", "buffer_atomic_umax v6, v1, s[36:39], 0 offen offset:16", "buffer_atomic_umax v7, v1, s[36:39], 0 offen offset:20", "s_mov_b64 exec, -1"]]
    if cfg.stamp:
        out.append("  s_waitcnt vmcnt(0)")
        out += [("  " + x if not x.endswith(":") else x) for x in stamp_out()]
    if cfg.nocomp or cfg.nomem or cfg.fakepre: out.append("  s_mov_b32 s%d, 0" % sBAD)
    out += ["  " + x if not x.endswith(":") else x for x in slow_path()]
    out.append("L_end:\n  s_endpgm")
    out.append('.section .rodata,"a"\n.p2align 6\n.amdhsa_kernel %s_kernel' % NAME)
    out.append("  .amdhsa_next_free_vgpr 512\n  .amdhsa_next_free_sgpr 84\n  .amdhsa_accum_offset 256\n  .amdhsa_group_segment_fixed_size 0\n  .amdhsa_kernarg_size 48\n  .amdhsa_user_sgpr_count 2\n  .amdhsa_user_sgpr_kernarg_segment_ptr 1\n  .amdhsa_system_sgpr_workgroup_id_x 1\n.end_amdhsa_kernel")
    open(sys.argv[1], "w").write("\n".join(out) + "\n")
    if errs: sys.exit(1)
main()
```

```python
import sys, os, struct, math
from core import *

class Cfg:
    barper = 2
    finchk = 1
    lat = 7
    k_aux = ""
    v_aux = ""
    kv_aux = "nt"
    q_aux = "nt"
    o_aux = "nt"
    e0 = 10; c0 = 4; f0 = 6
    force_slow = 0
    hmap = 1
    rot = 5
    xmap = 0
    stamp = 0
    dbgwg = -1
    stamp3 = 0
    stamp2 = 0
    nocomp = 0
    nomem = 0
    nostore = 0
    dbgspan = 0
    lag = 1.5
    lead = 6
    rskip = 0
    front = 0
    rotq = 3
    qomap = 0
    pre = 0
    wbl2 = 0
    kvmap = 1
    fakepre = 0
    x0 = 17
    x1 = 9
    xs = 8
    xts = 8
    fxs = 6
    xt = 52
    flag_ = 0
    stmode = 0
    qmaj = 0
    bargap = 14
    sm0 = 14
    qkord = 2
    kt0 = 54.0
    kts = 2.48
    vt0 = 18.0
    vts = 2.48
    stgap = 48
    l0 = 2
    cpf = 1
    qa0 = 2
    early = 1
    fbar = 24
    rdy = 5
cfg = Cfg()
for a in sys.argv[2:]:
    k, v = a.split("=")
    setattr(cfg, k, type(getattr(cfg, k))(v))

NAME = "standalone__mha_softmax__near_ridge"
KA = 16; VA = 20; DA = 28; DB = 29; QA = 30; OW = 34; OS = 40; OR_ = 8; QR = 48; PT = 2
ET = 42; ER = 44; EU = 36
MX = 50; NM = 54; TM = 12; TS = 58
PB = 80; SB = 96; OB = 128
def S_(h, q, kt): return SB + 16 * h + 8 * q + 4 * kt
def P_(h, q): return PB + 8 * h + 4 * q
def O_(qt, b): return OB + 32 * qt + 4 * b
AQ = 0; AQN = 64; AK = 96; AV = 128; AO = 160; AL = 224; AONE = 240; AZERO = 244; ACHK = 248
sQ_, sK_, sV_, sO_ = 4, 8, 12, 16
sW = 20; sKo = 21; sVo = 22; sMK = 23; sMV = 24; sQo = 25; sOo = 26; sC = 27; sBAD = 28; sUB = 29; sACC = 30; sCMP = 32
sLO = 34; sRG = 35; sMS = 44; sCNT = 47; sONR = 48; sQa = 50; sQb = 51; sOa = 52; sOb = 53; sT = 54; sKt = 55; sVt = 56; sKb = 80; sVb = 81; sMKn = 29; sMVn = 49; sC2 = 60; sQT = 64; sOT = 72
WSH, PSTEP, HSH, QEND = ((14, 2048, 16, 65536), (11, 8192, 16, 65536), (15, 2048, 14, 114688))[cfg.qomap]
LDS_V = 65536; LDS_S = 131072
SCALE = struct.unpack("<I", struct.pack("<f", math.log2(math.e) / math.sqrt(128.0)))[0]
LO_BITS = (127 - (40 if cfg.finchk else 24)) << 23
HI_BITS = (127 + (126 if cfg.finchk else 24)) << 23

def srd(b): return "s[%d:%d]" % (b, b + 3)
def srdr(b): return R("s", b, 4)

def v2(op, d, a, b, kind="V"):
    rd = [x for x in (a, b) if isinstance(x, str) and x[0] in "vsa" and x[1:].isdigit()]
    return valu("%s %s, %s, %s" % (op, d, a, b), rd, [d], kind)
def v1(op, d, a, kind="V"):
    rd = [a] if isinstance(a, str) and a[0] in "vsa" and a[1:].isdigit() else []
    return valu("%s %s, %s" % (op, d, a), rd, [d], kind)
def v3(op, d, a, b, c):
    rd = [x for x in (a, b, c) if isinstance(x, str) and x[0] in "vsa" and x[1:].isdigit()]
    return valu("%s %s, %s, %s, %s" % (op, d, a, b, c), rd, [d])
def s2(op, d, a, b):
    rd = [x for x in (a, b) if isinstance(x, str) and (x[0] == "s" or x == "m0")]
    return salu("%s %s, %s, %s" % (op, d, a, b), rd, [d, "scc"])
def smov(d, a):
    return salu("s_mov_b32 %s, %s" % (d, a), [a] if isinstance(a, str) and a[0] == "s" else [], [d])
def mul_(r): return v2("v_mul_f32", "v%d" % r, "s%d" % sC, "v%d" % r)
def exp_(r): return v1("v_exp_f32", "v%d" % r, "v%d" % r, "T")
def cvt_(d, a, b): return v2("v_cvt_pk_bf16_f32", "v%d" % d, "v%d" % a, "v%d" % b)
def dsr128(dp, d, addr, off, tag):
    assert 0 <= off < 65536
    return Ins("ds_read_b128 %s, v%d offset:%d" % (rng(dp, d, 4), addr, off), "D", ["v%d" % addr], R(dp, d, 4), tag=tag)
def dstr(d, addr, off, tag):
    assert 0 <= off < 65536
    return Ins("ds_read_b64_tr_b16 %s, v%d offset:%d" % (rng("a", d, 2), addr, off), "D", ["v%d" % addr], R("a", d, 2), tag=tag)
def dsw64(addr, src, off):
    return Ins("ds_write_b64 v%d, %s offset:%d" % (addr, rng("v", src, 2), off), "W", ["v%d" % addr] + R("v", src, 2), [])
def dma(voff, sr, soff, off, tag, m0, aux=""):
    if sr == sK_ and cfg.k_aux: aux = cfg.k_aux
    if sr == sV_ and cfg.v_aux: aux = cfg.v_aux
    i = Ins("buffer_load_dwordx4 v%d, %s, s%d offen offset:%d %slds" % (voff, srd(sr), soff, off, aux + " " if aux else ""), "X",
            ["v%d" % voff, "s%d" % soff, "m0"] + srdr(sr), [], tag=tag)
    i.cmt = m0
    return i
def store(src, soff, off, tag=None):
    return Ins("buffer_store_dwordx4 %s, v%d, %s, s%d offen offset:%d%s" % (rng("a", src, 4), OS, srd(sO_), soff, off, " " + cfg.o_aux if cfg.o_aux else ""), "X",
               R("a", src, 4) + ["v%d" % OS, "s%d" % soff] + srdr(sO_), [], tag=tag)
def setm0(m0):
    return s2("s_add_u32", "m0", "s%d" % m0[0], str(m0[1]))

if cfg.qkord == 0:   QKSEQ = [(f // 4, q, f % 4) for f in range(8) for q in range(2)]
elif cfg.qkord == 1: QKSEQ = [(kt, q, s if q == 0 else 3 - s) for kt in range(2) for q in range(2) for s in range(4)]
else:                QKSEQ = [(c // 2, (0, 1, 1, 0)[c], s if c % 2 == 0 else 3 - s) for c in range(4) for s in range(4)]
def kfirst(f): return min(i for i, (kt, q, s) in enumerate(QKSEQ) if 4 * kt + s == f)
def klast(f): return max(i for i, (kt, q, s) in enumerate(QKSEQ) if 4 * kt + s == f)
def sdone(q, kt): return max(i for i, x in enumerate(QKSEQ) if x[:2] == (kt, q))
def qfirst(q, s): return min(i for i, x in enumerate(QKSEQ) if x[1:] == (q, s))
GRP = sorted([(q, kt) for q in range(2) for kt in range(2)], key=lambda g: sdone(*g))
KORD = sorted(range(8), key=kfirst)
def qk_block(h):
    L = []; seen = set()
    for kt, q, s in QKSEQ:
        L.append(mfma("v", S_(h, q, kt), "a", AK + 4 * (4 * kt + s), "a", AQ + 16 * (2 * h + q) + 4 * s, czero=((kt, q) not in seen)))
        seen.add((kt, q))
    return L
def pvpos(b, q):
    if cfg.qmaj: return 9 * q + 1 + b
    return 2 * b + q + (1 if b >= 3 else 0) + (1 if b >= 6 else 0)
def pfirst(q): return 9 * q if cfg.qmaj else q
def pv_block(h, first):
    L = []
    if cfg.qmaj:
        for q in range(2):
            L.append(mfma("a", AL + 4 * (2 * h + q), "a", AONE, "v", P_(h, q), czero=first))
            for b in range(8): L.append(mfma("v", O_(2 * h + q, b), "a", AV + 4 * b, "v", P_(h, q), czero=first))
        return L
    for b in range(8):
        for q in range(2):
            L.append(mfma("v", O_(2 * h + q, b), "a", AV + 4 * b, "v", P_(h, q), czero=first))
        if b in (2, 5):
            q = b // 4
            L.append(mfma("a", AL + 4 * (2 * h + q), "a", AONE, "v", P_(h, q), czero=first))
    return L

class Item:
    def __init__(self, ins, ready, dead, target, deps=()):
        self.ins = ins; self.ready = ready; self.dead = dead; self.target = target; self.deps = list(deps); self.gap = None
        k = ins.kind
        self.cost = 8 if k in ("T", "X", "W") else 4
class Gap:
    def __init__(self, m):
        self.pre = []; self.m = m; self.sh = [lsite()]; self.ds = []; self.va = []
    def flat(self): return self.pre + [self.m] + self.sh + self.ds + self.va

def schedule(gaps, items, name):
    n = len(gaps)
    todo = sorted(items, key=lambda i: (i.target, i.dead))
    for g in range(n):
        G = gaps[g]
        def ok(it):
            if it.ready > g: return False
            for d, dist in it.deps:
                if d.gap is None or d.gap + dist > g: return False
            return True
        def place(it):
            it.gap = g; todo.remove(it)
            (G.ds if it.ins.kind in ("D", "W", "X") else G.va).append(it.ins)
        def fits(it, used):
            k = it.ins.kind
            if any(x.kind == "X" for x in G.ds): return False
            if k == "X": return used == 0
            return True
        used = 0
        for it in [x for x in todo if x.dead <= g]:
            if ok(it) and fits(it, used): place(it); used += it.cost
        while used < 8:
            c = [it for it in todo if ok(it) and fits(it, used) and it.cost <= 8 - used]
            if not c: break
            it = c[0]
            if used == 0 and it.cost == 4:
                four = [x for x in c[1:] if x.cost == 4 or False]
                dep_next = [x for x in todo if x.cost == 4 and x is not it and x.ready <= g and all((d.gap is not None and d.gap + dist <= g) or (d is it and dist == 0) for d, dist in x.deps)]
                eight = [x for x in c if x.cost == 8]
                if not dep_next and eight and it.dead > g: it = eight[0]
            place(it); used += it.cost
        c = [it for it in todo if ok(it) and fits(it, used) and it.cost == 4 and it.target < g - cfg.lag]
        if c and used > 0:
            place(c[0]); used += 4
        while True:
            over = False
            dem = 0
            for it in sorted(todo, key=lambda i: min(i.dead, n - 1)):
                dem += 12 if it.ins.kind == "X" else it.cost
                d = min(it.dead, n - 1)
                if dem > 12 * (d - g): over = True; break
            if not over: break
            c = sorted([it for it in todo if ok(it) and fits(it, used)], key=lambda i: (min(i.dead, n - 1), i.target))
            if not c: break
            place(c[0]); used += c[0].cost
    if todo:
        raise Exception("%s: unscheduled items: %s" % (name, [(i.ins.text, i.ready, i.dead) for i in todo]))
    for it in items:
        if it.gap > it.dead: raise Exception("%s: deadline miss %s gap %d > %d" % (name, it.ins.text, it.gap, it.dead))

def softmax_items(h, base, rdy, dead, lo=(0, 0, 0), hi=(16, 16, 8), carry=None):
    its = []; M = {}; E = {}
    def reg(e):
        q, kt = GRP[e // 4]
        return q, kt, S_(h, q, kt) + e % 4
    for e in range(lo[0], hi[0] if not (cfg.fakepre or cfg.pre) else lo[0]):
        q, kt, r = reg(e)
        M[e] = Item(mul_(r), rdy(q, kt), dead(q) - 2, base + 2 * e); its.append(M[e])
    for e in range(lo[1], hi[1]):
        q, kt, r = reg(e)
        E[e] = Item(exp_(r), rdy(q, kt), dead(q) - 1, base + 2 * e + 1, [(M[e], 0)] if e in M else []); its.append(E[e])
    for j in range(lo[2], hi[2]):
        q, kt, r = reg(2 * j)
        deps = [(E[e], 1) for e in (2 * j, 2 * j + 1) if e in E]
        its.append(Item(cvt_(P_(h, q) + 2 * kt + j % 2, r, r + 1), rdy(q, kt), dead(q), base + 4 * j + 4, deps))
    return its

def kread(f, slot, dT):
    return dsr128("a", AK + 4 * f, KA + f % 4, slot * 8192 + (f // 4) * 4096, ("K", dT))
def vread(b, jj, slot, dT):
    return dstr(AV + 4 * b + 2 * jj, VA + b, slot * 8192 + jj * 4096, ("V", dT))
_uid = [0]
def kd(lead=None):
    _uid[0] += 1
    L = [dma(DA, sK_, sKo, 0, ("K", "a"), (sMKn, 0, _uid[0]), cfg.kv_aux), dma(DB, sK_, sKo, 1024, ("K", "b"), (sMKn, 0, _uid[0]), cfg.kv_aux)]
    for x in L: x.needs = lead
    return L
def vd(lead=None):
    _uid[0] += 1
    L = [dma(DA, sV_, sVo, 0, ("V", "a"), (sMVn, LDS_V, _uid[0]), cfg.kv_aux), dma(DB, sV_, sVo, 1024, ("V", "b"), (sMVn, LDS_V, _uid[0]), cfg.kv_aux)]
    for x in L: x.needs = lead
    return L
def kv_dmas(t, lead):
    return kd(lead + 1) + vd(lead)
def q_dmas(h, du, msgpr=sMS, mconst=0):
    return [dma(DA if i % 2 == 0 else DB, sQ_, sQT + 4 * h + i // 2, (i % 2) * 1024, ("Q", h, du), (msgpr, mconst + (i // 2) * 2048), cfg.q_aux) for i in range(8)]
def q_reads(dst, h, du, addr=QA, p="a"):
    return [dsr128(p, dst + 16 * q + 4 * s, addr + s, q * 4096, ("Q", h, du)) for q in range(2) for s in range(4)]

def pre_ops(i, k):
    r = QR + i; a = PT + 2 * k
    return [v2("v_lshlrev_b32", "v%d" % a, "16", "v%d" % r), v2("v_and_b32", "v%d" % (a + 1), "0xffff0000", "v%d" % r), mul_(a), mul_(a + 1), cvt_(r, a, a + 1)]
def pre_burst(dst, writes=True):
    L = []
    def stage(i, n):
        r = QR + i; a = PT + 2 * (i % 3)
        if n == 0: return [v2("v_lshlrev_b32", "v%d" % a, "16", "v%d" % r), v2("v_and_b32", "v%d" % (a + 1), "0xffff0000", "v%d" % r)]
        if n == 1: return [valu("v_pk_mul_f32 v[%d:%d], v[%d:%d], s[%d:%d]" % (a, a + 1, a, a + 1, sC2, sC2 + 1), R("v", a, 2), R("v", a, 2), "K")]
        if n == 2: return [cvt_(r, a, a + 1)]
        return [v1("v_accvgpr_write_b32", "a%d" % (dst + i), "v%d" % r)] if writes else []
    for i in range(32 + 3):
        for n in (3, 2, 1, 0):
            if 0 <= i - n < 32: L += stage(i - n, n)
    return L
def epi_burst(h, check=True, defer=False):
    L = []
    for q in range(2): L.append(v1("v_accvgpr_read_b32", "v%d" % (ET + q), "a%d" % (AL + 4 * (2 * h + q))))
    for q in range(2): L.append(v1("v_rcp_f32", "v%d" % (ER + 2 * q), "v%d" % (ET + q), "T"))
    if check:
        for q in range(2): L.append(v2("v_subrev_u32", "v%d" % (EU + q), "s%d" % sLO, "v%d" % (ET + q)))
        L.append(valu("v_cmp_le_u32 vcc, s%d, v%d" % (sRG, EU), ["s%d" % sRG, "v%d" % EU], ["vcc"]))
        L.append(valu("v_cmp_le_u32 s[%d:%d], s%d, v%d" % (sCMP, sCMP + 1, sRG, EU + 1), ["s%d" % sRG, "v%d" % (EU + 1)], R("s", sCMP, 2)))
    else:
        L.append(nop(1))
    for q in range(2):
        for b in range(8):
            for i in range(2):
                a = O_(2 * h + q, b) + 2 * i
                L.append(valu("v_pk_mul_f32 v[%d:%d], v[%d:%d], v[%d:%d] op_sel_hi:[1,0]" % (a, a + 1, a, a + 1, ER + 2 * q, ER + 2 * q + 1),
                              R("v", a, 2) + ["v%d" % (ER + 2 * q)], R("v", a, 2), "K"))
    sor = []
    if check:
        sor = [salu("s_or_b64 s[%d:%d], s[%d:%d], vcc" % (sACC, sACC + 1, sACC, sACC + 1), ["vcc"] + R("s", sACC, 2), R("s", sACC, 2)),
               salu("s_or_b64 s[%d:%d], s[%d:%d], s[%d:%d]" % (sACC, sACC + 1, sACC, sACC + 1, sCMP, sCMP + 1), R("s", sCMP, 2) + R("s", sACC, 2), R("s", sACC, 2))]
        if not cfg.finchk: L += sor
    for q in range(2):
        for bp in range(4):
            a = O_(2 * h + q, 2 * bp)
            for i in range(4): L.append(cvt_(a + i, a + 2 * i, a + 2 * i + 1))
            if check and cfg.finchk and (q, bp) != (0, 0):
                pa = a - 8
                L.append(mfma("a", ACHK, "a", AZERO, "v", pa, czero=(h == 0 and (q, bp) == (0, 1))))
                if sor: L.append(sor.pop(0))
    last = [mfma("a", ACHK, "a", AZERO, "v", O_(2 * h + 1, 6))] if check and cfg.finchk else []
    if defer: LASTCHK[h] = last
    elif last: L += [nop(2)] + last
    return L
def flag_ops():
    L = []
    if cfg.finchk:
        L.append(v1("v_accvgpr_read_b32", "v%d" % ET, "a%d" % ACHK))
        L.append(valu("v_cmp_u_f32 vcc, v%d, v%d" % (ET, ET), ["v%d" % ET], ["vcc"]))
        L.append(nop(2))
        L.append(salu("s_or_b64 s[%d:%d], s[%d:%d], vcc" % (sACC, sACC + 1, sACC, sACC + 1), ["vcc"] + R("s", sACC, 2), R("s", sACC, 2)))
    L.append(salu("s_cmp_lg_u64 s[%d:%d], 0" % (sACC, sACC + 1), R("s", sACC, 2), ["scc"]))
    L.append(salu("s_addc_u32 s%d, s%d, s%d" % (sBAD, sBAD, sBAD), ["scc", "s%d" % sBAD], ["s%d" % sBAD]))
    L.append(salu("s_mov_b64 s[%d:%d], 0" % (sACC, sACC + 1), [], R("s", sACC, 2)))
    L.append(salu("s_mov_b64 vcc, 0", [], ["vcc"]))
    return L
def o_writes(h):
    L = []
    for q in range(2):
        for bp in range(4):
            a = O_(2 * h + q, 2 * bp); addr = OW + bp % 2
            L.append(Ins("ds_write_b128 v%d, %s offset:%d" % (addr, rng("v", a, 4), (bp // 2) * 128 + q * 4096), "W", ["v%d" % addr] + R("v", a, 4), []))
    return L
def o_reads(h, du):
    L = []
    for j in range(8):
        for i in range(2):
            d = AO + 32 * h + 4 * j + 2 * i; addr = OR_ + 2 * (j % 2) + i
            L.append(Ins("ds_read_b64 %s, v%d offset:%d" % (rng("a", d, 2), addr, j * 1024), "D", ["v%d" % addr], R("a", d, 2), tag=("O", h, du)))
    return L
def tab_add(t): return [s2("s_add_u32", "s%d" % (t + i), "s%d" % (t + i), str(USTRIDE)) for i in range(8)]
def o_stores(h):
    return [store(AO + 32 * h + 4 * j, sOT + 4 * h + j // 2, (j % 2) * 1024) for j in range(8)]
USTRIDE = 131072 if cfg.hmap == 0 else 128 * 131072
KSTEP = (8192, 2048, 4096)[cfg.kvmap]
def adv(which, cross):
    o, t, b = (sKo, sKt, sKb) if which == "K" else (sVo, sVt, sVb)
    m = sMKn if which == "K" else sMVn
    if cfg.flag_:
        assert not cfg.rot
        L = [s2("s_add_u32", "s%d" % o, "s%d" % o, "8192")]
        if USTRIDE != 131072:
            L += [s2("s_bfe_u32", "s%d" % t, "s%d" % o, "0x10011"), s2("s_mul_i32", "s%d" % t, "s%d" % t, str(USTRIDE - 131072)), s2("s_add_u32", "s%d" % o, "s%d" % o, "s%d" % t)]
        return L + [s2("s_add_u32", "s%d" % m, "s%d" % m, "8192"), s2("s_and_b32", "s%d" % m, "s%d" % m, "0xffff")]
    M = [s2("s_add_u32", "s%d" % m, "s%d" % m, "8192"), s2("s_and_b32", "s%d" % m, "s%d" % m, "0xffff")]
    if not cfg.rot:
        return M + [s2("s_add_u32", "s%d" % o, "s%d" % o, str(KSTEP + (USTRIDE - 16 * KSTEP if cross else 0)))]
    L = M + [s2("s_add_u32", "s%d" % t, "s%d" % t, str(KSTEP)), s2("s_and_b32", "s%d" % t, "s%d" % t, str(16 * KSTEP - 1))]
    if cross: L.append(s2("s_add_u32", "s%d" % b, "s%d" % b, str(USTRIDE)))
    L.append(s2("s_add_u32", "s%d" % o, "s%d" % b, "s%d" % t))
    return L

LEAD = cfg.lead
LAT = cfg.lat
B0, B1, B2, B3, NG = 0, 16, 34, 50, 68
NW0 = 5
LASTCHK = {}
RAMP_IT = [2, 4, 6, 8][cfg.rskip:cfg.rskip + cfg.lead - cfg.l0]
RAMPS = {}
QA_IT = [cfg.qa0 + i for i in range(4)]; QB_IT = [8, 9, 10, 11]; ST_IT = [1, 6, 7, 12, 13, 14, 15]
QRD = cfg.qa0 + 5; QB_IT = [QRD + 1 + i for i in range(4)] if QRD <= 7 else [QRD + 1, QRD + 2]
ST_IT = ([1] + [t for t in range(2, 16) if t not in QA_IT and t not in QB_IT] + [8])
ST_IT = sorted(ST_IT[:8])
ST_MAP = {t: [2 * i, 2 * i + 1] for i, t in enumerate(ST_IT)} if cfg.stmode == 0 else {(k + 1) % 16: [k] for k in range(16)}
if cfg.stmode == 2: ST_MAP = {6: [0, 1, 2, 3], 7: [4, 5, 6, 7], 12: [8, 9, 10, 11], 13: [12, 13, 14, 15]}
QCNT_A = [2, 2, 2, 2]; QCNT_B = [8 // len(QB_IT)] * len(QB_IT)
if cfg.stmode == 4:
    QA_IT = [2, 3, 4]; QCNT_A = [3, 3, 2]; QRD = 6; QB_IT = [7, 8]; QCNT_B = [4, 4]
    ST_MAP = {9: [0, 1], 10: [2, 3], 11: [4, 5], 12: [6, 7], 13: [8, 9, 10], 14: [11, 12, 13], 15: [14, 15]}
if cfg.stmode == 5:
    QA_IT = [2, 3, 4]; QCNT_A = [3, 3, 2]; QRD = 6; QB_IT = [7, 8, 9]; QCNT_B = [3, 3, 2]
    ST_MAP = {10: [0, 1, 2], 11: [3, 4, 5], 12: [6, 7], 13: [8, 9, 10], 14: [11, 12, 13], 15: [14, 15]}
if cfg.stmode == 3: ST_MAP = {12: [0, 1, 2, 3], 13: [4, 5, 6, 7], 14: [8, 9, 10, 11], 15: [12, 13, 14, 15]}

class Seg:
    def __init__(self): self.gaps = []; self.sitems = []; self.head = []; self.tail = []; self.post = []

def build_iter(t, first=False):
    sg = Seg()
    if first:
        b0, b1, b2, b3, ng = 0, None, 16, 32, 50
        mf = qk_block(0) + qk_block(1) + pv_block(0, True)
    else:
        b0, b1, b2, b3, ng = B0, B1, B2, B3, NG
        mf = qk_block(0) + pv_block(1, t == 1) + qk_block(1) + pv_block(0, t == 0)
    gaps = [Gap(m) for m in mf]
    items = []
    INF = 10 ** 6
    slot = t % 8; nslot = (t + 1) % 8
    isbar = (t % cfg.barper == 0)
    bar_gap = cfg.bargap
    if not first:
        items += softmax_items(1, cfg.sm0 + 34 - NG, lambda q, kt: 0, lambda q: b1 + pfirst(q) - 2, lo=(cfg.e0, cfg.e0, cfg.c0))
        for i in range(cfg.f0, 8):
            f = KORD[i]
            items.append(Item(kread(f, slot, 0), 0, kfirst(f) - LAT, cfg.kt0 + cfg.kts * i - NG))
    items += softmax_items(0, (cfg.sm0 if not first else 12), lambda q, kt: b0 + sdone(q, kt) + cfg.rdy, lambda q: b3 + pfirst(q) - 2)
    items += softmax_items(1, b3 - B3 + cfg.sm0 + 34, lambda q, kt: b2 + sdone(q, kt) + cfg.rdy, lambda q: INF, hi=(cfg.e0, cfg.e0, cfg.c0))
    for b in range(8):
        for jj in range(2):
            rdy = (b1 + pvpos(b, 1)) if not first else cfg.fbar + 1
            items.append(Item(vread(b, jj, slot, 0), max(rdy, bar_gap + 1), b3 + pvpos(b, 0) - LAT, (cfg.vt0 + cfg.vts * (2 * b + jj)) if not first else cfg.fbar + 1 + b + jj * 0.5))
    for i in range(cfg.f0):
        f = KORD[i]
        items.append(Item(kread(f, nslot, 1), max(b2 + klast(f), cfg.fbar + 1 if first else 0), min(ng - 1, ng + kfirst(f) - LAT), b3 - B3 + cfg.kt0 + cfg.kts * i))
    def chain(lst, targets, ready, dead=INF, dist=1, after=None):
        p = after; res = []
        for k, (ins, tgt) in enumerate(zip(lst, targets)):
            dd = dead[k] if isinstance(dead, list) else dead
            it = Item(ins, ready, dd, tgt, [(p, dist)] if p else []); items.append(it); p = it; res.append(it)
        return res
    if first:
        lst = []
        for n in range(cfg.l0 + 1 + cfg.front): lst += [("V", vd()), ("K", kd())]
        if cfg.early: lst = lst[1:]
        p = None; tg = 1
        for k, (w, pr) in enumerate(lst):
            rdy = 1 if k < 8 - cfg.early else cfg.fbar + 2
            its = chain(pr, [tg, tg + 1], rdy, after=p, dist=1); p = its[1]; tg += 2 if k < 4 else 3
            sg.post.append((its[1], adv(w, False)))
        gaps[7].sh.append(vsite([("Q", 1, 0)]))
        if cfg.pre:
            for i, ins in enumerate(q_reads(QR, 1, 0, addr=TM, p="v")): items.append(Item(ins, 8, 11, 8 + 0.5 * i))
            gaps[16].pre += [lsite()] + pre_burst(AQ + 32) + [nop(1)]
        else:
          for i, ins in enumerate(q_reads(AQ + 32, 1, 0, addr=TM)):
            items.append(Item(ins, 8, 16 - LAT + qfirst(i // 4, i % 4) + 1, 8 + 0.5 * qfirst(i // 4, i % 4)))
        al = lsite(); al.needs = "all"
        gaps[cfg.fbar].sh += [al, vsite([("V", 0), ("K", 1)]), bar()]
        if cfg.barper == 2: gaps[ng - 1].va += [vsite([("V", 1), ("K", 2)]), bar()]
    else:
        if cfg.front:
            assert cfg.barper == 2
            if isbar:
                p = None
                for j in range(2):
                    dm = kv_dmas(t, LEAD + j)
                    kvits = chain(dm, [cfg.x0 + cfg.fxs * (4 * j + i) for i in range(4)], bar_gap + 2, after=p, dist=cfg.fxs - 1)
                    p = kvits[3]
                    sg.post.append((kvits[1], adv("K", (t + j + LEAD + 2) % 16 == 0)) if j == 0 else None) if False else None
                    for a in adv("K", (t + j + LEAD + 2) % 16 == 0): sg.sitems.append((a, ("after", kvits[1]), None))
                    for a in adv("V", (t + j + LEAD + 1) % 16 == 0): sg.sitems.append((a, ("after", kvits[3]), None))
        else:
            dm = kv_dmas(t, LEAD)
            dmt = [cfg.x0 + cfg.xs * i for i in range(4)] if isbar else [cfg.x1 + cfg.xs * i for i in range(4)]
            kvits = chain(dm, dmt, (bar_gap + 2) if isbar else 1)
            for a in adv("K", (t + LEAD + 2) % 16 == 0): sg.sitems.append((a, ("after", kvits[1]), None))
            for a in adv("V", (t + LEAD + 1) % 16 == 0): sg.sitems.append((a, ("after", kvits[3]), None))
        if isbar:
            needs = [("V", 0), ("K", 1)] + ([("V", 1), ("K", 2)] if cfg.barper == 2 else [])
            if t in RAMP_IT:
                r = Ins("s_cbranch_vccnz L_ramp%dA\nL_back%d:" % (t, t), "RAMP", ["vcc"]); r.cmt = "ramp%d" % t
                gaps[bar_gap - 2].sh.append(r)
                k = RAMP_IT.index(t)
                for role in ("A", "B"):
                    L = [vsite(needs)]
                    for w, pr in (("V", vd()), ("K", kd())):
                        follower = (w == "V") == (role == "A")
                        if follower and k >= len(RAMP_IT) - cfg.flag_: continue
                        L += [setm0(pr[0].cmt), nop(1)] + pr + adv(w, False)
                    if t == RAMP_IT[-1]: L.append(salu("s_mov_b64 vcc, 0", [], ["vcc"]))
                    L.append(raw("s_branch L_back%d" % t, "BR"))
                    if role == "A": L[0:0] = [raw("s_bitcmp1_b32 s2, 3"), raw("s_cbranch_scc1 L_ramp%dB" % t)]
                    RAMPS["ramp%d%s" % (t, role)] = L
            gaps[bar_gap - 1].sh.append(vsite(needs))
            gaps[bar_gap].sh.append(bar())
    XT = [cfg.xt, cfg.xt + cfg.xts]
    if not first and t == 0:
        gaps[0].pre += epi_burst(0, defer=True)
        gaps[1].pre += LASTCHK[0]
        W = chain(o_writes(0), [1.5 + 3.5 * i for i in range(8)], 0, 38)
        chain(o_reads(0, -1), [29 + 1.1 * j for j in range(16)], 0, 47, dist=0, after=W[7])
        gaps[48].pre += epi_burst(1, defer=True)
        gaps[49].pre += LASTCHK[1]
        chain(o_writes(1)[:NW0], [49.5 + 4 * i for i in range(NW0)], 48)
        for i in range(16, 32) if not cfg.pre else []:
            items.append(Item(v1("v_accvgpr_mov_b32", "a%d" % (AQ + 32 + i), "a%d" % (AQN + i)), 0, b2 - 2, 2 * (i - 16)))
        for i in range(32) if cfg.pre else []:
            items.append(Item(v1("v_accvgpr_write_b32", "a%d" % (AQ + 32 + i), "v%d" % (QR + i)), 0, b2 - 2, i))
        fo = flag_ops()
        if cfg.finchk:
            i1 = Item(fo[0], 56, INF, 56); i2 = Item(fo[1], 56, 62, 57, [(i1, 0)]); items += [i1, i2]
            sg.sitems.append((fo[3], ("after2", i2), None)); sg.sitems.append(([fo[4], fo[5]], ("after2", i2), None))
            sg.sitems.append((fo[6], ("after2", i2), None)); sg.sitems.append((fo[7], ("after2", i2), None))
        else:
            gaps[60].pre += fo
    if t == 1:
        ws = o_writes(1)[NW0:]
        W = chain(ws, [0.5 + 4 * i for i in range(len(ws))], 0, [b1 + pvpos(2 * ((NW0 + i) % 4), (NW0 + i) // 4) - 1 for i in range(len(ws))])
        chain(o_reads(1, -1), [16 + 2 * j for j in range(16)], 0, INF, dist=0, after=W[-1])
        al = lsite(); al.needs = "all"; gaps[ng - 1].sh.insert(1, al)
    if not first and ST_MAP.get(t):
        ks = ST_MAP[t]
        tg = {1: [cfg.stgap], 2: XT, 3: [46, 53, 60], 4: [36, 42, 48, 54]}[len(ks)] if t not in (0, 1) else ([50, 54] if t == 1 else [20])
        st = chain([o_stores(k // 8)[k % 8] for k in ks], tg, 18, 65 if t != 0 else 30)
        for k, it in zip(ks, st):
            if k == 15:
                for a in tab_add(sOT): sg.sitems.append((a, ("after", it), None))
            if k == (15 if cfg.stmode == 0 else 15):
                sg.sitems.append((smov("s%d" % (sO_ + 2), "s%d" % sONR), ("after", it), None))
    for h, its in ((1 - cfg.pre, QA_IT), (cfg.pre, QB_IT)):
        if t in its:
            k = its.index(t)
            if k == 0:
                pass
            cn = QCNT_A if its is QA_IT else QCNT_B
            npi = cn[k]; o = sum(cn[:k])
            qd = chain(q_dmas(h, 1)[o:o + npi], {2: XT, 3: [46, 53, 60], 4: [44, 50, 56, 62]}[npi], 43, 65)
    if t == QB_IT[-1] + 1:
        class Z: gap = -1
        for a in tab_add(sQT): sg.sitems.append((a, ("after", Z), None))
    if cfg.wbl2 and t == cfg.wbl2:
        sg.head += [raw("s_cmp_lg_u32 s%d, 0" % sCNT), raw("s_cbranch_scc1 L_nowb"), raw("s_cmp_lg_u32 s%d, 0" % sW), raw("s_cbranch_scc1 L_nowb"),
                    raw("buffer_wbl2 sc1"), raw("L_nowb:")]
    if t == QRD:
        gaps[29].sh.append(vsite([("Q", 1 - cfg.pre, 1)]))
        for i, ins in enumerate(q_reads(AQN, 1, 1) if not cfg.pre else q_reads(QR, 0, 1, p="v")):
            items.append(Item(ins, 30, INF, 30 + 4 * i))
        al = lsite(); al.needs = "all"; gaps[ng - 1].sh.insert(1, al)
    if cfg.fakepre and 8 <= t <= 14:
        for i in range(23):
            r = 2 + (i % 4)
            op = [v2("v_and_b32", "v%d" % r, "0xffff0000", "v10"), v2("v_lshlrev_b32", "v%d" % r, "16", "v10"), mul_(r), mul_(r), cvt_(8, 2, 3)][i % 5]
            items.append(Item(op, 0, INF, 3 * i))
    if cfg.fakepre and t == 15:
        for i in range(32):
            sg.tail += [v2("v_and_b32", "v3", "0xffff0000", "v10"), v2("v_lshlrev_b32", "v2", "16", "v10"),
                        valu("v_pk_mul_f32 v[4:5], v[2:3], v[6:7]", [], [], "K"), cvt_(8, 4, 5), v1("v_accvgpr_write_b32", "a%d" % (AQN + i), "v8")]
    if cfg.pre and QRD < t < 15:
        n = 14 - QRD; lo_ = (t - QRD - 1) * 32 // n; hi_ = (t - QRD) * 32 // n
        last = {}
        for j, i in enumerate(range(lo_, hi_)):
            k = i % 3; p = last.get(k); base = j * (ng - 6.0) / (hi_ - lo_)
            for m, op in enumerate(pre_ops(i, k)):
                it = Item(op, 0, INF, base + 2.2 * m, [(p, 0)] if p else []); items.append(it); p = it
            last[k] = p
    if cfg.pre and t == 15:
        gaps[15].sh.append(vsite([("Q", 1, 1)]))
        Wr = [Item(v1("v_accvgpr_write_b32", "a%d" % (AQ + i), "v%d" % (QR + i)), 16, 56, 16 + i) for i in range(32)]
        items += Wr
        for i, ins in enumerate(q_reads(QR, 1, 1, p="v")):
            items.append(Item(ins, 16, ng - 6, 22 + 4.5 * i, [(w, 1) for w in Wr[4 * i:4 * i + 4]]))
        sg.tail += [lsite()] + pre_burst(None, writes=False)
    if t == 15 and not cfg.pre:
        gaps[15].sh.append(vsite([("Q", 0, 1)]))
        for i, ins in enumerate(q_reads(AQ, 0, 1)):
            items.append(Item(ins, 16, ng - 1 - LAT, 17 + 5 * i))
        for i in range(16):
            items.append(Item(v1("v_accvgpr_mov_b32", "a%d" % (AQ + 32 + i), "a%d" % (AQN + i)), b3, INF, b3 + i))
    schedule(gaps, items, "it%d%s" % (t, "f" if first else ""))
    for it, ops in sg.post: gaps[it.gap].va += ops
    sg.gaps = gaps
    return sg

def place_scalar(sg):
    gaps = sg.gaps
    def busy(G): return sum(1 for x in G.sh if (x.kind not in ("LSITE", "VSITE")) ) + (1 if any(x.kind in ("LSITE", "VSITE") and x.n is not None for x in G.sh) else 0)
    lastpos = {}
    ntail = 0
    for ins, (how, it), _ in sg.sitems:
        lst = ins if isinstance(ins, list) else [ins]
        lo = max(it.gap + (1 if how == "after2" else 0), lastpos.get(id(it), -1)) + 1
        hi = len(gaps)
        for k in range(it.gap + 1, len(gaps)):
            if any(x.kind == "X" and ((x.rd & lst[0].wr) - {"scc"} or (x.cmt and "s%d" % x.cmt[0] in lst[0].wr)) for x in gaps[k].ds): hi = k - 1; break
        c = [k for k in range(lo, hi) if busy(gaps[k]) == 0]
        if c: gaps[c[0]].sh += lst; lastpos[id(it)] = c[0]
        elif hi < len(gaps):
            k = max(lo - 1, min(hi - 1, lo)); gaps[k].sh += lst; lastpos[id(it)] = k - 1
        else: sg.tail[ntail:ntail] = lst; ntail += len(lst); lastpos[id(it)] = len(gaps)
    cur = None; lastx = -1
    for g, G in enumerate(gaps):
        if any("s_mov_b32 m0" in x.text for x in G.pre): cur = None; lastx = max(lastx, g - 1)
        if any(x.kind == "RAMP" for x in G.sh): cur = None; lastx = max(lastx, g)
        for x in G.ds:
            if x.kind == "X" and "m0" in x.rd:
                if cur != x.cmt:
                    src = "s%d" % x.cmt[0]
                    lw = max([k for k in range(g) if any(src in y.wr for y in gaps[k].sh + gaps[k].va)] + [-1])
                    cands = [k for k in range(max(lastx + 1, lw), g)]
                    free = [k for k in cands if busy(gaps[k]) == 0]
                    if cands:
                        k = free[-1] if free else cands[-1]
                        gaps[k].sh.append(setm0(x.cmt))
                    elif any("s_mov_b32 m0" in y.text for y in G.pre):
                        G.pre.append(setm0(x.cmt))
                    else:
                        gaps[lastx].va.append(setm0(x.cmt))
                    cur = x.cmt
                lastx = g

def flat(sg):
    L = list(sg.head)
    for G in sg.gaps: L += G.flat()
    return L + sg.tail

def prologue():
    L = []
    A = L.append
    A(raw("s_cmp_ge_u32 s2, 256")); A(raw("s_cbranch_scc1 L_end"))
    A(raw("s_load_dwordx4 s[36:39], s[0:1], 0")); A(raw("s_load_dwordx4 s[40:43], s[0:1], 16"))
    A(v2("v_lshrrev_b32", "v1", "6", "v0")); A(v2("v_and_b32", "v0", "63", "v0"))
    A(valu("v_readfirstlane_b32 s%d, v1" % sW, ["v1"], ["s%d" % sW]))
    A(v2("v_lshrrev_b32", "v2", "4", "v0"))
    A(v2("v_and_b32", "v3", "15", "v0"))
    if cfg.xmap == 0:
        A(raw("s_and_b32 s45, s2, 7")); A(raw("s_lshr_b32 s46, s2, 4")); A(raw("s_lshl_b32 s45, s45, 4")); A(raw("s_add_u32 s45, s45, s46"))
    else:
        A(raw("s_and_b32 s45, s2, 7")); A(raw("s_lshr_b32 s46, s2, 4")); A(raw("s_lshl_b32 s46, s46, 3")); A(raw("s_add_u32 s45, s45, s46"))
    if cfg.rot:
        A(raw("s_mul_i32 s%d, s45, %d" % (sKt, cfg.rot * KSTEP))); A(raw("s_and_b32 s%d, s%d, %d" % (sKt, sKt, 16 * KSTEP - 1))); A(smov("s%d" % sVt, "s%d" % sKt))
    if cfg.rotq: A(raw("s_mul_i32 s82, s45, %d" % (cfg.rotq * PSTEP)))
    A(raw("s_lshl_b32 s45, s45, %d" % (19 if cfg.hmap == 0 else 17)))
    A(raw("s_bfe_u32 s46, s2, 0x10003")); A(raw("s_lshl_b32 s46, s46, %d" % HSH)); A(raw("s_add_u32 s46, s46, s45"))
    A(s2("s_lshl_b32", "s%d" % sMK, "s%d" % sW, "11"))
    A(v2("v_lshlrev_b32", "v4", "1", "v2")); A(v2("v_xor_b32", "v4", "v3", "v4")); A(v2("v_lshlrev_b32", "v4", "4", "v4"))
    A(v3("v_lshl_add_u32", "v%d" % DA, "v2", "8", "v4")); A(v2("v_xor_b32", "v%d" % DB, "0x80", "v%d" % DA))
    A(smov("s%d" % sMKn, "s%d" % sMK)); A(smov("s%d" % sMVn, "s%d" % sMK))
    if cfg.cpf:
        A(raw("s_lshr_b32 s%d, s2, 3" % sT)); A(raw("s_lshl_b32 s%d, s%d, 2" % (sT, sT))); A(raw("s_add_u32 s%d, s%d, s%d" % (sT, sT, sW)))
        A(raw("s_and_b32 s%d, s%d, 31" % (sT, sT))); A(raw("s_lshl_b32 s%d, s%d, 10" % (sT, sT)))
        A(raw("s_min_u32 s%d, s%d, L_end - L_pc - 1024" % (sT, sT)))
        A(v2("v_lshlrev_b32", "v5", "4", "v0")); A(v2("v_add_u32", "v5", "s%d" % sT, "v5"))
        A(raw("s_getpc_b64 s[58:59]\nL_pc:"))
        A(Ins("global_load_dwordx4 v[72:75], v5, s[58:59]", "X", ["v5"], R("v", 72, 4)))
    A(s2("s_lshl_b32", "s%d" % sMS, "s%d" % sW, "13")); A(s2("s_add_u32", "s%d" % sMS, "s%d" % sMS, str(LDS_S)))
    A(s2("s_lshl_b32", "s%d" % sQo, "s%d" % sW, str(WSH)))
    for i in range(8):
        if cfg.rotq:
            A(s2("s_add_u32", "s%d" % (sQT + i), "s82", str(i * PSTEP))); A(s2("s_and_b32", "s%d" % (sQT + i), "s%d" % (sQT + i), str(8 * PSTEP - 1)))
            A(s2("s_add_u32", "s%d" % (sQT + i), "s%d" % (sQT + i), "s%d" % sQo))
        else: A(s2("s_add_u32", "s%d" % (sQT + i), "s%d" % sQo, str(i * PSTEP)))
    for b in (sQ_, sK_, sV_, sO_): A(smov("s%d" % (b + 3), "0x20000"))
    A(smov("s%d" % (sK_ + 2), str(3 * USTRIDE + 131072))); A(smov("s%d" % (sV_ + 2), str(3 * USTRIDE + 131072)))
    A(smov("s%d" % (sQ_ + 2), str(3 * USTRIDE + QEND))); A(smov("s%d" % sONR, str(3 * USTRIDE + QEND))); A(smov("s%d" % (sO_ + 2), "0"))
    assert not cfg.flag_
    if cfg.kvmap == 0: A(s2("s_lshl_b32", "s%d" % sKo, "s%d" % sW, "11"))
    elif cfg.kvmap == 1: A(s2("s_lshl_b32", "s%d" % sKo, "s%d" % sW, "15"))
    else:
        A(s2("s_and_b32", "s%d" % sKo, "s%d" % sW, "1")); A(s2("s_lshl_b32", "s%d" % sKo, "s%d" % sKo, "11"))
        A(s2("s_lshr_b32", "s%d" % sVo, "s%d" % sW, "1")); A(s2("s_lshl_b32", "s%d" % sVo, "s%d" % sVo, "16")); A(s2("s_add_u32", "s%d" % sKo, "s%d" % sKo, "s%d" % sVo))
    if cfg.rot:
        A(smov("s%d" % sKb, "s%d" % sKo)); A(smov("s%d" % sVb, "s%d" % sKo)); A(s2("s_add_u32", "s%d" % sKo, "s%d" % sKo, "s%d" % sKt))
    A(smov("s%d" % sVo, "s%d" % sKo))
    A(raw("s_waitcnt lgkmcnt(0)"))
    if cfg.stamp2: L += stamp()
    for b, p, o in ((sK_, 38, 45), (sQ_, 36, 46), (sV_, 40, 45), (sO_, 42, 46)):
        A(salu("s_add_u32 s%d, s%d, s%d" % (b, p, o), [], ["s%d" % b])); A(salu("s_addc_u32 s%d, s%d, 0" % (b + 1, p + 1), [], ["s%d" % (b + 1)]))
    def issue(lst):
        cur = None
        for x in lst:
            if x.kind == "X" and cur != x.cmt:
                A(setm0(x.cmt)); A(nop(1)); cur = x.cmt
            A(x)
    k0 = kd(); v0 = vd() if cfg.early else None
    q0 = q_dmas(0, 0)
    if cfg.early:
        issue([k0[0], q0[0], v0[0], k0[1], v0[1]] + adv("K", False) + adv("V", False) + q0[1:])
    else:
        issue(k0 + adv("K", False) + q0)
    A(s2("s_sub_u32", "s%d" % sT, "s%d" % sMS, "32768"))
    issue(q_dmas(1, 0, msgpr=sT))
    if cfg.stamp2: L += stamp()
    for i in range(8): A(s2("s_sub_u32", "s%d" % (sOT + i), "s%d" % (sQT + i), str(USTRIDE)))
    L += tab_add(sQT)
    A(v2("v_and_b32", "v5", "7", "v3")); A(v2("v_lshlrev_b32", "v6", "1", "v5"))
    for s in range(4):
        A(v2("v_add_u32", "v7", str(4 * s), "v2")); A(v2("v_xor_b32", "v7", "v7", "v6")); A(v2("v_lshlrev_b32", "v7", "4", "v7"))
        A(v3("v_lshl_add_u32", "v%d" % (KA + s), "v3", "8", "v7"))
        A(v2("v_add_u32", "v%d" % (QA + s), "s%d" % sMS, "v%d" % (KA + s)))
        A(v2("v_subrev_u32", "v%d" % (TM + s), "0x8000", "v%d" % (QA + s)))
    A(v2("v_lshrrev_b32", "v76", "2", "v0"))
    A(v2("v_and_b32", "v77", "7", "v76")); A(v2("v_lshlrev_b32", "v77", "1", "v77"))
    A(valu("v_bfe_u32 v78, v0, 1, 1", ["v0"], ["v78"]))
    A(v2("v_and_b32", "v79", "1", "v0")); A(v2("v_lshlrev_b32", "v79", "3", "v79"))
    A(v3("v_lshl_add_u32", "v79", "v76", "8", "v79")); A(v2("v_add_u32", "v79", str(LDS_V), "v79"))
    for b in range(8):
        A(v2("v_add_u32", "v7", str(2 * b), "v78")); A(v2("v_xor_b32", "v7", "v7", "v77"))
        A(v3("v_lshl_add_u32", "v%d" % (VA + b), "v7", "4", "v79"))
    A(v2("v_lshlrev_b32", "v79", "8", "v3")); A(v2("v_add_u32", "v79", "s%d" % sMS, "v79"))
    A(v2("v_xor_b32", "v78", "v2", "v5"))
    A(v3("v_lshl_add_u32", "v%d" % OW, "v78", "4", "v79")); A(v2("v_xor_b32", "v%d" % (OW + 1), "64", "v%d" % OW))
    A(v2("v_and_b32", "v78", "12", "v3")); A(v2("v_and_b32", "v70", "1", "v3")); A(v3("v_lshl_add_u32", "v78", "v70", "1", "v78"))
    A(v2("v_xor_b32", "v78", "v78", "v2")); A(v2("v_lshlrev_b32", "v78", "4", "v78")); A(v3("v_lshl_add_u32", "v78", "v2", "8", "v78"))
    A(v2("v_and_b32", "v70", "2", "v3")); A(v3("v_lshl_add_u32", "v78", "v70", "2", "v78"))
    A(v2("v_add_u32", "v%d" % OR_, "s%d" % sMS, "v78"))
    for i, x in enumerate((16, 64, 80)): A(v2("v_xor_b32", "v%d" % (OR_ + 1 + i), str(x), "v%d" % OR_))
    A(v2("v_lshlrev_b32", "v%d" % OS, "4", "v0"))
    A(v2("v_and_b32", "v7", "3", "v0")); A(valu("v_cmp_eq_u32 vcc, 0, v7", ["v7"], ["vcc"])); A(v1("v_mov_b32", "v76", "0x3f803f80")); A(v1("v_mov_b32", "v77", "0"))
    A(valu("v_cndmask_b32 v7, v77, v76, vcc", ["v76", "v77", "vcc"], ["v7"]))
    for i in range(4):
        A(v1("v_accvgpr_write_b32", "a%d" % (AONE + i), "v7")); A(v1("v_accvgpr_write_b32", "a%d" % (AZERO + i), "v77"))
    A(smov("s%d" % sC, "0x%08x" % SCALE)); A(smov("s%d" % sC2, "0x%08x" % SCALE)); A(smov("s%d" % (sC2 + 1), "0x%08x" % SCALE))
    if cfg.fakepre: L += [v1("v_mov_b32", "v%d" % i, "1.0") for i in range(2, 12)]
    A(smov("s%d" % sLO, "0x%08x" % LO_BITS)); A(smov("s%d" % sRG, "0x%08x" % (HI_BITS - LO_BITS)))
    A(smov("s%d" % sBAD, "0")); A(salu("s_mov_b64 s[%d:%d], 0" % (sACC, sACC + 1), [], R("s", sACC, 2)))
    A(smov("s%d" % sCNT, "3"))
    A(salu("s_mov_b64 vcc, %d" % (-1 if RAMP_IT else 0), [], ["vcc"]))
    if cfg.stamp2: L += stamp()
    A(vsite([("K", 0), ("Q", 0, 0)]))
    if cfg.stamp2: L += stamp()
    A(bar())
    if cfg.pre:
        L += q_reads(QR, 0, 0, p="v") + [kread(f, 0, 0) for f in KORD] + [lsite()]
        b = pre_burst(AQ)
        for i in range(0, len(b), 20): L += b[i:i + 20] + [lsite()]
        return L + [nop(1), lsite()]
    qr = q_reads(AQ, 0, 0)
    seen = set()
    for kt, q, s in QKSEQ:
        if ("k", kt, s) not in seen: A(kread(4 * kt + s, 0, 0)); seen.add(("k", kt, s))
        if ("q", q, s) not in seen: A(qr[4 * q + s]); seen.add(("q", q, s))
    A(lsite())
    return L

def tail_seg():
    L = []
    for it in softmax_items(1, 0, lambda q, kt: 0, lambda q: 99, lo=(cfg.e0, cfg.e0, cfg.c0)):
        L.append(it.ins)
        if it.ins.kind == "T" and it.ins.text == exp_(S_(1, *GRP[3]) + 3).text: L.append(nop(1))
    if cfg.stmode == 1:
        L += [o_stores(1)[7]] + tab_add(sOT)
    L += epi_burst(0)
    gaps = [Gap(m) for m in pv_block(1, False)]
    for g, w in enumerate(o_writes(0)): gaps[g].ds.append(w)
    rd = o_reads(0, 0)
    for g in range(8): gaps[8 + g].ds += rd[2 * g:2 * g + 2]
    for G in gaps: L += G.flat()
    st = o_stores(0)
    L += [lsite()] + st[:4]
    b1 = epi_burst(1)
    k = [i for i, x in enumerate(b1) if x.kind == "K"][-1] + 1
    L += b1[:k] + [lsite()] + st[4:] + b1[k:]
    w1 = o_writes(1); r1 = o_reads(1, 0); st = o_stores(1)
    L += w1[:4] + r1[:8] + w1[4:] + r1[8:]
    L += [lsite()] + st[:2] + [lsite()] + st[2:4] + [lsite()] + st[4:6] + [lsite()] + st[6:]
    L += flag_ops()
    return L

def slow_path():
    T = []
    A = T.append
    def emit(l):
        for x in l: A(x.text)
    def wait(): A("s_waitcnt vmcnt(0) lgkmcnt(0)");
    A("s_barrier")
    if cfg.force_slow: A("s_mov_b32 s%d, 15" % sBAD)
    A("s_cmp_eq_u32 s%d, 0" % sBAD); A("s_cbranch_scc1 L_end")
    A("s_lshl_b32 s45, s%d, 13" % sW)
    for i in range(4): A("v_add_u32 v%d, s45, v%d" % (KA + i, KA + i))
    for i in range(8): A("v_add_u32 v%d, s45, v%d" % (VA + i, VA + i))
    A("s_add_u32 s46, s45, %d" % LDS_V)
    A("s_lshl_b32 s%d, s%d, %d" % (sQo, sW, WSH))
    A("v_mov_b32 v%d, v%d" % (TS + 4, DA)); A("v_mov_b32 v%d, v%d" % (TS + 5, DB))
    A("s_mov_b32 s%d, 0" % sCNT)
    A("L_slow_unit:")
    A("s_bitcmp1_b32 s%d, 3" % sBAD); A("s_cbranch_scc0 L_slow_next")
    for i in range(8): A("s_add_u32 s%d, s%d, %d" % (sQT + i, sQo, i * PSTEP)); A("s_mov_b32 s%d, s%d" % (sOT + i, sQT + i))
    wait()
    for h in range(2):
        cur = None
        for x in q_dmas(h, 0):
            if cur != x.cmt: A(setm0(x.cmt).text); A("s_nop 0"); cur = x.cmt
            A(x.text)
        wait(); emit(q_reads(AQ + 32 * h, h, 0)); wait()
    def tile_dma(sr, m0s):
        for i in range(8):
            if i % 4 == 0:
                A("s_add_u32 m0, s%d, %d" % (m0s, (i // 4) * 4096)); A("s_add_u32 s%d, s%d, %d" % (sT, sKo, (i // 4) * 4096))
            A("buffer_load_dwordx4 v%d, %s, s%d offen offset:%d lds" % (TS + 4 + i % 2, srd(sr), sT, (i % 4) * 1024))
    def qk_all():
        emit([kread(f, 0, 0) for f in range(8)]); wait()
        emit(qk_block(0) + qk_block(1)); A("s_nop 7"); A("s_nop 3")
    for i in range(4): A("v_mov_b32 v%d, 0xff800000" % (MX + i))
    A("s_mov_b32 s%d, s%d" % (sKo, sCNT)); A("s_add_u32 s%d, s%d, 131072" % (sVo, sCNT))
    A("L_slow_p1:")
    tile_dma(sK_, 45); wait(); qk_all()
    for h in range(2):
        for q in range(2):
            a = S_(h, q, 0)
            for i in range(4): A("v_max3_f32 v%d, v%d, v%d, v%d" % (MX + 2 * h + q, a + 2 * i, a + 2 * i + 1, MX + 2 * h + q))
    A("s_add_u32 s%d, s%d, 8192" % (sKo, sKo)); A("s_cmp_lt_u32 s%d, s%d" % (sKo, sVo)); A("s_cbranch_scc1 L_slow_p1")
    for op in ("v_permlane32_swap_b32", "v_permlane16_swap_b32"):
        for i in range(4): A("v_mov_b32 v%d, v%d" % (NM + i, MX + i))
        A("s_nop 1")
        for i in range(4): A("%s v%d, v%d" % (op, NM + i, MX + i))
        A("s_nop 1")
        for i in range(4): A("v_max_f32 v%d, v%d, v%d" % (MX + i, MX + i, NM + i))
    for i in range(4): A("v_mul_f32 v%d, s%d, v%d" % (NM + i, sC, MX + i))
    for i in range(128): A("v_mov_b32 v%d, 0" % (OB + i))
    for i in range(16): A("v_accvgpr_write_b32 a%d, 0" % (AL + i))
    A("s_mov_b32 s%d, s%d" % (sKo, sCNT))
    A("L_slow_p2:")
    tile_dma(sK_, 45); tile_dma(sV_, 46); wait(); qk_all()
    emit([vread(b, jj, 0, 0) for b in range(4) for jj in range(2)])
    for h in range(2):
        for q in range(2):
            a = S_(h, q, 0)
            for i in range(8): A("v_fma_f32 v%d, v%d, s%d, -v%d" % (a + i, a + i, sC, NM + 2 * h + q))
            for i in range(8): A("v_exp_f32 v%d, v%d" % (a + i, a + i))
            A("s_nop 0")
            for i in range(4): A(cvt_(P_(h, q) + i, a + 2 * i, a + 2 * i + 1).text)
    emit([vread(b, jj, 0, 0) for b in range(4, 8) for jj in range(2)])
    wait()
    emit(pv_block(0, False) + pv_block(1, False))
    A("s_add_u32 s%d, s%d, 8192" % (sKo, sKo)); A("s_cmp_lt_u32 s%d, s%d" % (sKo, sVo)); A("s_cbranch_scc1 L_slow_p2")
    A("s_nop 7"); A("s_nop 3")
    for h in range(2):
        emit(epi_burst(h, check=False)); emit(o_writes(h) + o_reads(h, 0))
        wait(); emit(o_stores(h)); wait()
    A("L_slow_next:")
    A("s_lshl_b32 s%d, s%d, 1" % (sBAD, sBAD)); A("s_and_b32 s%d, s%d, 15" % (sBAD, sBAD))
    for r in (sCNT, sQo): A("s_add_u32 s%d, s%d, %d" % (r, r, USTRIDE))
    A("s_cmp_lg_u32 s%d, 0" % sBAD); A("s_cbranch_scc1 L_slow_unit")
    return T

def stamp():
    if not cfg.stamp: return []
    return [raw("s_memtime s[58:59]"), raw("s_memrealtime s[62:63]"), raw("s_waitcnt lgkmcnt(0)"),
            raw("s_mov_b32 m0, s57"), raw("s_nop 0"), raw("v_writelane_b32 v38, s58, m0"), raw("v_writelane_b32 v39, s62, m0"), raw("s_add_u32 s57, s57, 1")]
def stamp_out():
    if not cfg.stamp: return []
    if cfg.dbgwg >= 0:
        return [x.text for x in stamp()] + ["s_cmp_lg_u32 s2, %d" % cfg.dbgwg, "s_cbranch_scc1 L_nodbg", "s_cmp_lg_u32 s%d, 0" % sW, "s_cbranch_scc1 L_nodbg",
            "s_load_dwordx2 s[36:37], s[0:1], 32", "s_waitcnt lgkmcnt(0)", "s_mov_b32 s38, 64", "s_mov_b32 s39, 0x20000",
            "v_readfirstlane_b32 s45, v39", "v_lshrrev_b32 v41, 2, v%d" % OS, "s_nop 1", "v_subrev_u32 v39, s45, v39",
            "buffer_store_dword v39, v41, s[36:39], 0 offen", "L_nodbg:"]
    return [x.text for x in stamp()] + ["s_load_dwordx2 s[36:37], s[0:1], 40", "s_waitcnt lgkmcnt(0)", "s_mov_b32 s38, 0x1000000", "s_mov_b32 s39, 0x20000",
            "s_lshl_b32 s45, s2, 2", "s_add_u32 s45, s45, s%d" % sW, "s_lshl_b32 s45, s45, 9", "v_lshrrev_b32 v41, 2, v%d" % OS,
            "buffer_store_dword v38, v41, s[36:39], s45 offen", "buffer_store_dword v39, v41, s[36:39], s45 offen offset:256"]
def main():
    sgs = {"it0f": build_iter(0, True)}
    for t in range(16): sgs["it%d" % t] = build_iter(t)
    def segs():
        d = {"pro": pro, "tail": tl}
        d.update(RAMPS)
        for k, s in sgs.items(): d[k] = flat(s)
        return d
    pro = prologue(); tl = tail_seg()
    if cfg.dbgspan:
        pro[2:2] = [raw("s_memrealtime s[60:61]"), raw("s_memtime s[62:63]"), raw("s_waitcnt lgkmcnt(0)"), raw("s_mov_b32 s56, s60"), raw("s_mov_b32 s57, s62")]
        i = [k for k, x in enumerate(pro) if x.kind == "BAR"][0]
        pro[i + 1:i + 1] = [raw("s_memrealtime s[58:59]")]
    if cfg.stamp:
        pro[2:2] = [raw("s_mov_b32 s57, 0")] + stamp()
        i = [k for k, x in enumerate(pro) if x.kind == "BAR"][0]
        pro[i + 1:i + 1] = stamp()
        for t in range(0, 16, cfg.stamp): sgs["it%d" % t].head[0:0] = stamp()
        tl[0:0] = stamp()
        if cfg.stamp3:
            G = sgs["it0"].gaps
            G[0].pre += stamp(); G[16].pre += stamp(); G[34].pre += stamp(); G[48].pre[0:0] = stamp(); G[48].pre += stamp()
            sgs["it1"].head[0:0] = stamp(); sgs["it1"].gaps[34].pre += stamp(); sgs["it2"].head[0:0] = stamp(); sgs["it3"].head[0:0] = stamp()
        if cfg.stamp2:
            sgs["it0f"].gaps[16].pre += stamp(); sgs["it0f"].gaps[cfg.fbar + 1].pre += stamp(); sgs["it0f"].tail[0:0] = stamp()
    traces = []
    for role in ("A", "B"):
        x = dict(role=role, lagK=cfg.flag_ if role == "B" else 0, lagV=cfg.flag_ if role == "A" else 0)
        trace = [("pro", dict(T=0, u=0, first=1, **x)), ("it0f", dict(T=0, u=0, first=1, **x))]
        for u in range(4):
            for t in range(16):
                if (u, t) != (0, 0): trace.append(("it%d" % t, dict(T=16 * u + t, u=u, first=(u == 0 and t < 9), **x)))
        trace.append(("tail", dict(T=64, u=3, **x)))
        traces.append(trace)
    sgs["it0f"].tail.append(raw("s_branch L_it1", "BR"))
    sgs["it15"].tail += [s2("s_sub_u32", "s%d" % sCNT, "s%d" % sCNT, "1"), raw("s_cbranch_scc0 L_it0", "BR")]
    insert_waits(segs(), traces)
    for k, s in sgs.items():
        br = [x for x in s.tail if x.kind == "BR" or "s_sub_u32 s%d" % sCNT in x.text]
        s.tail = [x for x in s.tail if x not in br]
        place_scalar(s)
        s.tail += br
    fs = {k: finalize(v) for k, v in segs().items()}
    errs = sum((verify(fs, tr, {"K": 8, "V": 16, "Q": 8, "O": 16}) for tr in traces), [])
    for e in errs[:40]: sys.stderr.write("ERR " + e + "\n")
    tot = 0
    for k in ["pro", "it0f"] + ["it%d" % t for t in range(16)] + ["tail"]:
        est = issue_estimate(fs[k]); sys.stderr.write("%s:%d " % (k, est))
        if k.startswith("it") and k != "it0f": tot += est
    if cfg.stamp3:
        for k in ("it0", "it1", "it2"):
            parts = [[]]
            for x in fs[k]:
                if "s_memtime" in x.text: parts.append([])
                parts[-1].append(x)
            sys.stderr.write("\n%s parts %s" % (k, [issue_estimate(p) for p in parts]))
    sys.stderr.write("\nunit estimate %d cycles, errors %d\n" % (tot, len(errs)))
    out = []
    hdr = open(os.path.join(os.path.dirname(os.path.abspath(__file__)), "..", "cdna_kernels", NAME + ".s.ref")).read().split("; Override")[0]
    out.append(hdr.rstrip())
    out.append("; @launch grid=(256,1,1) block=(256,1,1) lds=163840")
    out.append('.amdgcn_target "amdgcn-amd-amdhsa--gfx950"\n.text\n.globl %s_kernel\n.p2align 8\n.type %s_kernel,@function\n%s_kernel:' % (NAME, NAME, NAME))
    par = {}
    def dump(k):
        out.append("; ---- " + k)
        for x in fs[k]:
            if cfg.nocomp and k != "pro" and x.kind in ("M", "V", "T", "K", "D", "W"):
                par[x.kind] = par.get(x.kind, 0) + 1
                if cfg.nocomp == 1 or par[x.kind] % cfg.nocomp == 0: continue
            if cfg.nomem and k != "pro" and x.kind == "X" and (cfg.nomem == 1 or "store" in x.text): continue
            if cfg.nostore and x.kind == "X" and "store" in x.text: continue
            out.append("  " + x.text)
            if cfg.nocomp and "m0" in x.wr: out.append("  s_nop 0")
    dump("pro"); dump("it0f")
    for k in RAMPS: out.append("L_%s:" % k); dump(k)
    out.append(".p2align 6\nL_it0:"); dump("it0"); out.append("L_it1:")
    for t in range(1, 16): dump("it%d" % t)
    dump("tail")
    if cfg.dbgspan:
        out += ["  " + x for x in ["s_waitcnt vmcnt(0)", "s_memrealtime s[60:61]", "s_memtime s[62:63]", "s_load_dwordx2 s[36:37], s[0:1], 32", "s_waitcnt lgkmcnt(0)", "s_mov_b32 s38, 256", "s_mov_b32 s39, 0x20000",
            "s_not_b32 s45, s56", "v_mov_b32 v2, s45", "v_mov_b32 v3, s58", "v_mov_b32 v4, s60", "v_mov_b32 v5, s56", "s_not_b32 s45, s60", "v_mov_b32 v6, s45", "s_sub_u32 s45, s62, s57", "v_mov_b32 v7, s45", "v_mov_b32 v1, 0",
            "s_mov_b64 exec, 1",
            "buffer_atomic_umax v2, v1, s[36:39], 0 offen", "buffer_atomic_umax v3, v1, s[36:39], 0 offen offset:4", "buffer_atomic_umax v4, v1, s[36:39], 0 offen offset:8",
            "buffer_atomic_umax v5, v1, s[36:39], 0 offen offset:12", "buffer_atomic_umax v6, v1, s[36:39], 0 offen offset:16", "buffer_atomic_umax v7, v1, s[36:39], 0 offen offset:20", "s_mov_b64 exec, -1"]]
    if cfg.stamp:
        out.append("  s_waitcnt vmcnt(0)")
        out += [("  " + x if not x.endswith(":") else x) for x in stamp_out()]
    if cfg.nocomp or cfg.nomem or cfg.fakepre: out.append("  s_mov_b32 s%d, 0" % sBAD)
    out += ["  " + x if not x.endswith(":") else x for x in slow_path()]
    out.append("L_end:\n  s_endpgm")
    out.append('.section .rodata,"a"\n.p2align 6\n.amdhsa_kernel %s_kernel' % NAME)
    out.append("  .amdhsa_next_free_vgpr 512\n  .amdhsa_next_free_sgpr 84\n  .amdhsa_accum_offset 256\n  .amdhsa_group_segment_fixed_size 0\n  .amdhsa_kernarg_size 48\n  .amdhsa_user_sgpr_count 2\n  .amdhsa_user_sgpr_kernarg_segment_ptr 1\n  .amdhsa_system_sgpr_workgroup_id_x 1\n.end_amdhsa_kernel")
    open(sys.argv[1], "w").write("\n".join(out) + "\n")
    if errs: sys.exit(1)
main()
```

```python
import sys, os, struct, math
from core import *

class Cfg:
    barper = 2
    finchk = 1
    lat = 7
    k_aux = ""
    v_aux = ""
    kv_aux = "nt"
    q_aux = "nt"
    o_aux = "nt"
    e0 = 10; c0 = 4; f0 = 6
    force_slow = 0
    hmap = 1
    rot = 5
    xmap = 0
    stamp = 0
    jitter = 0
    dbgwg = -1
    stamp3 = 0
    stamp2 = 0
    nocomp = 0
    nomem = 0
    nostore = 0
    dbgspan = 0
    lag = 1.5
    lead = 6
    park = 0
    rskip = 0
    front = 0
    rotq = 3
    qomap = 0
    pre = 0
    wbl2 = 0
    kvmap = 1
    fakepre = 0
    x0 = 17
    x1 = 9
    xs = 8
    xts = 8
    fxs = 6
    xt = 52
    flag_ = 0
    stmode = 0
    qmaj = 0
    bargap = 14
    sm0 = 14
    qkord = 2
    kt0 = 54.0
    kts = 2.48
    vt0 = 18.0
    vts = 2.48
    stgap = 48
    l0 = 2
    cpf = 1
    qa0 = 2
    early = 1
    fbar = 24
    rdy = 5
cfg = Cfg()
for a in sys.argv[2:]:
    k, v = a.split("=")
    setattr(cfg, k, type(getattr(cfg, k))(v))

NAME = "standalone__mha_softmax__near_ridge"
KA = 16; VA = 20; DA = 28; DB = 29; QA = 30; OW = 34; OS = 40; OR_ = 8; QR = 48; PT = 2
ET = 42; ER = 44; EU = 36
MX = 50; NM = 54; TM = 12; TS = 58
PB = 80; SB = 96; OB = 128
def S_(h, q, kt): return SB + 16 * h + 8 * q + 4 * kt
def P_(h, q): return PB + 8 * h + 4 * q
def O_(qt, b): return OB + 32 * qt + 4 * b
AQ = 0; AQN = 64; AK = 96; AV = 128; AO = 160; AL = 224; AONE = 240; AZERO = 244; ACHK = 248
sQ_, sK_, sV_, sO_ = 4, 8, 12, 16
sW = 20; sKo = 21; sVo = 22; sMK = 23; sMV = 24; sQo = 25; sOo = 26; sC = 27; sBAD = 28; sUB = 29; sACC = 30; sCMP = 32
sLO = 34; sRG = 35; sMS = 44; sCNT = 47; sONR = 48; sQa = 50; sQb = 51; sOa = 52; sOb = 53; sT = 54; sKt = 55; sVt = 56; sKb = 80; sVb = 81; sMKn = 29; sMVn = 49; sC2 = 60; sQT = 64; sOT = 72; sO2 = 84; sLT = 88
WSH, PSTEP, HSH, QEND = ((14, 2048, 16, 65536), (11, 8192, 16, 65536), (15, 2048, 14, 114688))[cfg.qomap]
LDS_V = 65536; LDS_S = 131072
SCALE = struct.unpack("<I", struct.pack("<f", math.log2(math.e) / math.sqrt(128.0)))[0]
LO_BITS = (127 - (40 if cfg.finchk else 24)) << 23
HI_BITS = (127 + (126 if cfg.finchk else 24)) << 23

def srd(b): return "s[%d:%d]" % (b, b + 3)
def srdr(b): return R("s", b, 4)

def v2(op, d, a, b, kind="V"):
    rd = [x for x in (a, b) if isinstance(x, str) and x[0] in "vsa" and x[1:].isdigit()]
    return valu("%s %s, %s, %s" % (op, d, a, b), rd, [d], kind)
def v1(op, d, a, kind="V"):
    rd = [a] if isinstance(a, str) and a[0] in "vsa" and a[1:].isdigit() else []
    return valu("%s %s, %s" % (op, d, a), rd, [d], kind)
def v3(op, d, a, b, c):
    rd = [x for x in (a, b, c) if isinstance(x, str) and x[0] in "vsa" and x[1:].isdigit()]
    return valu("%s %s, %s, %s, %s" % (op, d, a, b, c), rd, [d])
def s2(op, d, a, b):
    rd = [x for x in (a, b) if isinstance(x, str) and (x[0] == "s" or x == "m0")]
    return salu("%s %s, %s, %s" % (op, d, a, b), rd, [d, "scc"])
def smov(d, a):
    return salu("s_mov_b32 %s, %s" % (d, a), [a] if isinstance(a, str) and a[0] == "s" else [], [d])
def mul_(r): return v2("v_mul_f32", "v%d" % r, "s%d" % sC, "v%d" % r)
def exp_(r): return v1("v_exp_f32", "v%d" % r, "v%d" % r, "T")
def cvt_(d, a, b): return v2("v_cvt_pk_bf16_f32", "v%d" % d, "v%d" % a, "v%d" % b)
def dsr128(dp, d, addr, off, tag):
    assert 0 <= off < 65536
    return Ins("ds_read_b128 %s, v%d offset:%d" % (rng(dp, d, 4), addr, off), "D", ["v%d" % addr], R(dp, d, 4), tag=tag)
def dstr(d, addr, off, tag):
    assert 0 <= off < 65536
    return Ins("ds_read_b64_tr_b16 %s, v%d offset:%d" % (rng("a", d, 2), addr, off), "D", ["v%d" % addr], R("a", d, 2), tag=tag)
def dsw64(addr, src, off):
    return Ins("ds_write_b64 v%d, %s offset:%d" % (addr, rng("v", src, 2), off), "W", ["v%d" % addr] + R("v", src, 2), [])
def dma(voff, sr, soff, off, tag, m0, aux=""):
    if sr == sK_ and cfg.k_aux: aux = cfg.k_aux
    if sr == sV_ and cfg.v_aux: aux = cfg.v_aux
    i = Ins("buffer_load_dwordx4 v%d, %s, s%d offen offset:%d %slds" % (voff, srd(sr), soff, off, aux + " " if aux else ""), "X",
            ["v%d" % voff, "s%d" % soff, "m0"] + srdr(sr), [], tag=tag)
    i.cmt = m0
    return i
def store(src, soff, off, tag=None, p="a", sr=sO_):
    return Ins("buffer_store_dwordx4 %s, v%d, %s, s%d offen offset:%d%s" % (rng(p, src, 4), OS, srd(sr), soff, off, " " + cfg.o_aux if cfg.o_aux else ""), "X",
               R(p, src, 4) + ["v%d" % OS, "s%d" % soff] + srdr(sr), [], tag=tag)
def setm0(m0):
    return s2("s_add_u32", "m0", "s%d" % m0[0], str(m0[1]))

if cfg.qkord == 0:   QKSEQ = [(f // 4, q, f % 4) for f in range(8) for q in range(2)]
elif cfg.qkord == 1: QKSEQ = [(kt, q, s if q == 0 else 3 - s) for kt in range(2) for q in range(2) for s in range(4)]
else:                QKSEQ = [(c // 2, (0, 1, 1, 0)[c], s if c % 2 == 0 else 3 - s) for c in range(4) for s in range(4)]
def kfirst(f): return min(i for i, (kt, q, s) in enumerate(QKSEQ) if 4 * kt + s == f)
def klast(f): return max(i for i, (kt, q, s) in enumerate(QKSEQ) if 4 * kt + s == f)
def sdone(q, kt): return max(i for i, x in enumerate(QKSEQ) if x[:2] == (kt, q))
def qfirst(q, s): return min(i for i, x in enumerate(QKSEQ) if x[1:] == (q, s))
GRP = sorted([(q, kt) for q in range(2) for kt in range(2)], key=lambda g: sdone(*g))
KORD = sorted(range(8), key=kfirst)
def qk_block(h):
    L = []; seen = set()
    for kt, q, s in QKSEQ:
        L.append(mfma("v", S_(h, q, kt), "a", AK + 4 * (4 * kt + s), "a", AQ + 16 * (2 * h + q) + 4 * s, czero=((kt, q) not in seen)))
        seen.add((kt, q))
    return L
def pvpos(b, q):
    if cfg.qmaj: return 9 * q + 1 + b
    return 2 * b + q + (1 if b >= 3 else 0) + (1 if b >= 6 else 0)
def pfirst(q): return 9 * q if cfg.qmaj else q
def pv_block(h, first):
    L = []
    if cfg.qmaj:
        for q in range(2):
            L.append(mfma("a", AL + 4 * (2 * h + q), "a", AONE, "v", P_(h, q), czero=first))
            for b in range(8): L.append(mfma("v", O_(2 * h + q, b), "a", AV + 4 * b, "v", P_(h, q), czero=first))
        return L
    for b in range(8):
        for q in range(2):
            L.append(mfma("v", O_(2 * h + q, b), "a", AV + 4 * b, "v", P_(h, q), czero=first))
        if b in (2, 5):
            q = b // 4
            L.append(mfma("a", AL + 4 * (2 * h + q), "a", AONE, "v", P_(h, q), czero=first))
    return L

class Item:
    def __init__(self, ins, ready, dead, target, deps=()):
        self.ins = ins; self.ready = ready; self.dead = dead; self.target = target; self.deps = list(deps); self.gap = None
        k = ins.kind
        self.cost = 8 if k in ("T", "X", "W") else 4
class Gap:
    def __init__(self, m):
        self.pre = []; self.m = m; self.sh = [lsite()]; self.ds = []; self.va = []
    def flat(self): return self.pre + [self.m] + self.sh + self.ds + self.va

def schedule(gaps, items, name):
    n = len(gaps)
    todo = sorted(items, key=lambda i: (i.target, i.dead))
    for g in range(n):
        G = gaps[g]
        def ok(it):
            if it.ready > g: return False
            for d, dist in it.deps:
                if d.gap is None or d.gap + dist > g: return False
            return True
        def place(it):
            it.gap = g; todo.remove(it)
            (G.ds if it.ins.kind in ("D", "W", "X") else G.va).append(it.ins)
        def fits(it, used):
            k = it.ins.kind
            if any(x.kind == "X" for x in G.ds): return False
            if k == "X": return used == 0
            return True
        used = 0
        for it in [x for x in todo if x.dead <= g]:
            if ok(it) and fits(it, used): place(it); used += it.cost
        while used < 8:
            c = [it for it in todo if ok(it) and fits(it, used) and it.cost <= 8 - used]
            if not c: break
            it = c[0]
            if used == 0 and it.cost == 4:
                four = [x for x in c[1:] if x.cost == 4 or False]
                dep_next = [x for x in todo if x.cost == 4 and x is not it and x.ready <= g and all((d.gap is not None and d.gap + dist <= g) or (d is it and dist == 0) for d, dist in x.deps)]
                eight = [x for x in c if x.cost == 8]
                if not dep_next and eight and it.dead > g: it = eight[0]
            place(it); used += it.cost
        c = [it for it in todo if ok(it) and fits(it, used) and it.cost == 4 and it.target < g - cfg.lag]
        if c and used > 0:
            place(c[0]); used += 4
        while True:
            over = False
            dem = 0
            for it in sorted(todo, key=lambda i: min(i.dead, n - 1)):
                dem += 12 if it.ins.kind == "X" else it.cost
                d = min(it.dead, n - 1)
                if dem > 12 * (d - g): over = True; break
            if not over: break
            c = sorted([it for it in todo if ok(it) and fits(it, used)], key=lambda i: (min(i.dead, n - 1), i.target))
            if not c: break
            place(c[0]); used += c[0].cost
    if todo:
        raise Exception("%s: unscheduled items: %s" % (name, [(i.ins.text, i.ready, i.dead) for i in todo]))
    for it in items:
        if it.gap > it.dead: raise Exception("%s: deadline miss %s gap %d > %d" % (name, it.ins.text, it.gap, it.dead))

def softmax_items(h, base, rdy, dead, lo=(0, 0, 0), hi=(16, 16, 8), carry=None):
    its = []; M = {}; E = {}
    def reg(e):
        q, kt = GRP[e // 4]
        return q, kt, S_(h, q, kt) + e % 4
    for e in range(lo[0], hi[0] if not (cfg.fakepre or cfg.pre) else lo[0]):
        q, kt, r = reg(e)
        M[e] = Item(mul_(r), rdy(q, kt), dead(q) - 2, base + 2 * e); its.append(M[e])
    for e in range(lo[1], hi[1]):
        q, kt, r = reg(e)
        E[e] = Item(exp_(r), rdy(q, kt), dead(q) - 1, base + 2 * e + 1, [(M[e], 0)] if e in M else []); its.append(E[e])
    for j in range(lo[2], hi[2]):
        q, kt, r = reg(2 * j)
        deps = [(E[e], 1) for e in (2 * j, 2 * j + 1) if e in E]
        its.append(Item(cvt_(P_(h, q) + 2 * kt + j % 2, r, r + 1), rdy(q, kt), dead(q), base + 4 * j + 4, deps))
    return its

def kread(f, slot, dT):
    return dsr128("a", AK + 4 * f, KA + f % 4, slot * 8192 + (f // 4) * 4096, ("K", dT))
def vread(b, jj, slot, dT):
    return dstr(AV + 4 * b + 2 * jj, VA + b, slot * 8192 + jj * 4096, ("V", dT))
_uid = [0]
def kd(lead=None):
    _uid[0] += 1
    L = [dma(DA, sK_, sKo, 0, ("K", "a"), (sMKn, 0, _uid[0]), cfg.kv_aux), dma(DB, sK_, sKo, 1024, ("K", "b"), (sMKn, 0, _uid[0]), cfg.kv_aux)]
    for x in L: x.needs = lead
    return L
def vd(lead=None):
    _uid[0] += 1
    L = [dma(DA, sV_, sVo, 0, ("V", "a"), (sMVn, LDS_V, _uid[0]), cfg.kv_aux), dma(DB, sV_, sVo, 1024, ("V", "b"), (sMVn, LDS_V, _uid[0]), cfg.kv_aux)]
    for x in L: x.needs = lead
    return L
def kv_dmas(t, lead):
    return kd(lead + 1) + vd(lead)
def q_dmas(h, du, msgpr=sMS, mconst=0):
    return [dma(DA if i % 2 == 0 else DB, sQ_, sQT + 4 * h + i // 2, (i % 2) * 1024, ("Q", h, du), (msgpr, mconst + (i // 2) * 2048), cfg.q_aux) for i in range(8)]
def q_reads(dst, h, du, addr=QA, p="a"):
    return [dsr128(p, dst + 16 * q + 4 * s, addr + s, q * 4096, ("Q", h, du)) for q in range(2) for s in range(4)]

def pre_ops(i, k):
    r = QR + i; a = PT + 2 * k
    return [v2("v_lshlrev_b32", "v%d" % a, "16", "v%d" % r), v2("v_and_b32", "v%d" % (a + 1), "0xffff0000", "v%d" % r), mul_(a), mul_(a + 1), cvt_(r, a, a + 1)]
def pre_burst(dst, writes=True):
    L = []
    def stage(i, n):
        r = QR + i; a = PT + 2 * (i % 3)
        if n == 0: return [v2("v_lshlrev_b32", "v%d" % a, "16", "v%d" % r), v2("v_and_b32", "v%d" % (a + 1), "0xffff0000", "v%d" % r)]
        if n == 1: return [valu("v_pk_mul_f32 v[%d:%d], v[%d:%d], s[%d:%d]" % (a, a + 1, a, a + 1, sC2, sC2 + 1), R("v", a, 2), R("v", a, 2), "K")]
        if n == 2: return [cvt_(r, a, a + 1)]
        return [v1("v_accvgpr_write_b32", "a%d" % (dst + i), "v%d" % r)] if writes else []
    for i in range(32 + 3):
        for n in (3, 2, 1, 0):
            if 0 <= i - n < 32: L += stage(i - n, n)
    return L
def epi_burst(h, check=True, defer=False):
    L = []
    for q in range(2): L.append(v1("v_accvgpr_read_b32", "v%d" % (ET + q), "a%d" % (AL + 4 * (2 * h + q))))
    for q in range(2): L.append(v1("v_rcp_f32", "v%d" % (ER + 2 * q), "v%d" % (ET + q), "T"))
    if check:
        for q in range(2): L.append(v2("v_subrev_u32", "v%d" % (EU + q), "s%d" % sLO, "v%d" % (ET + q)))
        L.append(valu("v_cmp_le_u32 vcc, s%d, v%d" % (sRG, EU), ["s%d" % sRG, "v%d" % EU], ["vcc"]))
        L.append(valu("v_cmp_le_u32 s[%d:%d], s%d, v%d" % (sCMP, sCMP + 1, sRG, EU + 1), ["s%d" % sRG, "v%d" % (EU + 1)], R("s", sCMP, 2)))
    else:
        L.append(nop(1))
    for q in range(2):
        for b in range(8):
            for i in range(2):
                a = O_(2 * h + q, b) + 2 * i
                L.append(valu("v_pk_mul_f32 v[%d:%d], v[%d:%d], v[%d:%d] op_sel_hi:[1,0]" % (a, a + 1, a, a + 1, ER + 2 * q, ER + 2 * q + 1),
                              R("v", a, 2) + ["v%d" % (ER + 2 * q)], R("v", a, 2), "K"))
    sor = []
    if check:
        sor = [salu("s_or_b64 s[%d:%d], s[%d:%d], vcc" % (sACC, sACC + 1, sACC, sACC + 1), ["vcc"] + R("s", sACC, 2), R("s", sACC, 2)),
               salu("s_or_b64 s[%d:%d], s[%d:%d], s[%d:%d]" % (sACC, sACC + 1, sACC, sACC + 1, sCMP, sCMP + 1), R("s", sCMP, 2) + R("s", sACC, 2), R("s", sACC, 2))]
        if not cfg.finchk: L += sor
    for q in range(2):
        for bp in range(4):
            a = O_(2 * h + q, 2 * bp)
            for i in range(4): L.append(cvt_(a + i, a + 2 * i, a + 2 * i + 1))
            if check and cfg.finchk and (q, bp) != (0, 0):
                pa = a - 8
                L.append(mfma("a", ACHK, "a", AZERO, "v", pa, czero=(h == 0 and (q, bp) == (0, 1))))
                if sor: L.append(sor.pop(0))
    last = [mfma("a", ACHK, "a", AZERO, "v", O_(2 * h + 1, 6))] if check and cfg.finchk else []
    if defer: LASTCHK[h] = last
    elif last: L += [nop(2)] + last
    return L
def flag_ops():
    L = []
    if cfg.finchk:
        L.append(v1("v_accvgpr_read_b32", "v%d" % ET, "a%d" % ACHK))
        L.append(valu("v_cmp_u_f32 vcc, v%d, v%d" % (ET, ET), ["v%d" % ET], ["vcc"]))
        L.append(nop(2))
        L.append(salu("s_or_b64 s[%d:%d], s[%d:%d], vcc" % (sACC, sACC + 1, sACC, sACC + 1), ["vcc"] + R("s", sACC, 2), R("s", sACC, 2)))
    L.append(salu("s_cmp_lg_u64 s[%d:%d], 0" % (sACC, sACC + 1), R("s", sACC, 2), ["scc"]))
    L.append(salu("s_addc_u32 s%d, s%d, s%d" % (sBAD, sBAD, sBAD), ["scc", "s%d" % sBAD], ["s%d" % sBAD]))
    L.append(salu("s_mov_b64 s[%d:%d], 0" % (sACC, sACC + 1), [], R("s", sACC, 2)))
    L.append(salu("s_mov_b64 vcc, 0", [], ["vcc"]))
    return L
def o_writes(h):
    L = []
    for q in range(2):
        for bp in range(4):
            a = O_(2 * h + q, 2 * bp); addr = OW + bp % 2
            L.append(Ins("ds_write_b128 v%d, %s offset:%d" % (addr, rng("v", a, 4), (bp // 2) * 128 + q * 4096), "W", ["v%d" % addr] + R("v", a, 4), []))
    return L
def o_reads(h, du):
    L = []
    for j in range(8):
        for i in range(2):
            d = AO + 32 * h + 4 * j + 2 * i; addr = OR_ + 2 * (j % 2) + i
            L.append(Ins("ds_read_b64 %s, v%d offset:%d" % (rng("a", d, 2), addr, j * 1024), "D", ["v%d" % addr], R("a", d, 2), tag=("O", h, du)))
    return L
def tab_add(t): return [s2("s_add_u32", "s%d" % (t + i), "s%d" % (t + i), str(USTRIDE)) for i in range(8)]
def o_stores(h):
    return [store(AO + 32 * h + 4 * j, sOT + 4 * h + j // 2, (j % 2) * 1024) for j in range(8)]
def park_stores():
    return [store(QR + 4 * j, sOT + 4 + j // 2, (j % 2) * 1024, p="v", sr=sO2) for j in range(8)]
USTRIDE = 131072 if cfg.hmap == 0 else 128 * 131072
KSTEP = (8192, 2048, 4096)[cfg.kvmap]
def adv(which, cross):
    o, t, b = (sKo, sKt, sKb) if which == "K" else (sVo, sVt, sVb)
    m = sMKn if which == "K" else sMVn
    if cfg.flag_:
        assert not cfg.rot
        L = [s2("s_add_u32", "s%d" % o, "s%d" % o, "8192")]
        if USTRIDE != 131072:
            L += [s2("s_bfe_u32", "s%d" % t, "s%d" % o, "0x10011"), s2("s_mul_i32", "s%d" % t, "s%d" % t, str(USTRIDE - 131072)), s2("s_add_u32", "s%d" % o, "s%d" % o, "s%d" % t)]
        return L + [s2("s_add_u32", "s%d" % m, "s%d" % m, "8192"), s2("s_and_b32", "s%d" % m, "s%d" % m, "0xffff")]
    M = [s2("s_add_u32", "s%d" % m, "s%d" % m, "8192"), s2("s_and_b32", "s%d" % m, "s%d" % m, "0xffff")]
    if not cfg.rot:
        return M + [s2("s_add_u32", "s%d" % o, "s%d" % o, str(KSTEP + (USTRIDE - 16 * KSTEP if cross else 0)))]
    L = M + [s2("s_add_u32", "s%d" % t, "s%d" % t, str(KSTEP)), s2("s_and_b32", "s%d" % t, "s%d" % t, str(16 * KSTEP - 1))]
    if cross: L.append(s2("s_add_u32", "s%d" % b, "s%d" % b, str(USTRIDE)))
    L.append(s2("s_add_u32", "s%d" % o, "s%d" % b, "s%d" % t))
    return L

LEAD = cfg.lead
LAT = cfg.lat
B0, B1, B2, B3, NG = 0, 16, 34, 50, 68
NW0 = 5
LASTCHK = {}
RAMP_IT = [2, 4, 6, 8][cfg.rskip:cfg.rskip + cfg.lead - cfg.l0]
RAMPS = {}
QA_IT = [cfg.qa0 + i for i in range(4)]; QB_IT = [8, 9, 10, 11]; ST_IT = [1, 6, 7, 12, 13, 14, 15]
QRD = cfg.qa0 + 5; QB_IT = [QRD + 1 + i for i in range(4)] if QRD <= 7 else [QRD + 1, QRD + 2]
ST_IT = ([1] + [t for t in range(2, 16) if t not in QA_IT and t not in QB_IT] + [8])
ST_IT = sorted(ST_IT[:8])
ST_MAP = {t: [2 * i, 2 * i + 1] for i, t in enumerate(ST_IT)} if cfg.stmode == 0 else {(k + 1) % 16: [k] for k in range(16)}
if cfg.stmode == 2: ST_MAP = {6: [0, 1, 2, 3], 7: [4, 5, 6, 7], 12: [8, 9, 10, 11], 13: [12, 13, 14, 15]}
QCNT_A = [2, 2, 2, 2]; QCNT_B = [8 // len(QB_IT)] * len(QB_IT)
if cfg.stmode == 4:
    QA_IT = [2, 3, 4]; QCNT_A = [3, 3, 2]; QRD = 6; QB_IT = [7, 8]; QCNT_B = [4, 4]
    ST_MAP = {9: [0, 1], 10: [2, 3], 11: [4, 5], 12: [6, 7], 13: [8, 9, 10], 14: [11, 12, 13], 15: [14, 15]}
if cfg.stmode == 5:
    QA_IT = [2, 3, 4]; QCNT_A = [3, 3, 2]; QRD = 6; QB_IT = [7, 8, 9]; QCNT_B = [3, 3, 2]
    ST_MAP = {10: [0, 1, 2], 11: [3, 4, 5], 12: [6, 7], 13: [8, 9, 10], 14: [11, 12, 13], 15: [14, 15]}
if cfg.park:
    assert cfg.stmode == 0 and not cfg.pre
    ST_MAP = {1: [0, 1], 6: [8, 9], 7: [10, 11], 8: [12, 13], 12: [14, 15], 13: [2, 3], 14: [4, 5], 15: [6, 7]}
if cfg.stmode == 3: ST_MAP = {12: [0, 1, 2, 3], 13: [4, 5, 6, 7], 14: [8, 9, 10, 11], 15: [12, 13, 14, 15]}

class Seg:
    def __init__(self): self.gaps = []; self.sitems = []; self.head = []; self.tail = []; self.post = []

def build_iter(t, first=False):
    sg = Seg()
    if first:
        b0, b1, b2, b3, ng = 0, None, 16, 32, 50
        mf = qk_block(0) + qk_block(1) + pv_block(0, True)
    else:
        b0, b1, b2, b3, ng = B0, B1, B2, B3, NG
        mf = qk_block(0) + pv_block(1, t == 1) + qk_block(1) + pv_block(0, t == 0)
    gaps = [Gap(m) for m in mf]
    items = []
    INF = 10 ** 6
    slot = t % 8; nslot = (t + 1) % 8
    isbar = (t % cfg.barper == 0)
    bar_gap = cfg.bargap
    if not first:
        items += softmax_items(1, cfg.sm0 + 34 - NG, lambda q, kt: 0, lambda q: b1 + pfirst(q) - 2, lo=(cfg.e0, cfg.e0, cfg.c0))
        for i in range(cfg.f0, 8):
            f = KORD[i]
            items.append(Item(kread(f, slot, 0), 0, kfirst(f) - LAT, cfg.kt0 + cfg.kts * i - NG))
    items += softmax_items(0, (cfg.sm0 if not first else 12), lambda q, kt: b0 + sdone(q, kt) + cfg.rdy, lambda q: b3 + pfirst(q) - 2)
    items += softmax_items(1, b3 - B3 + cfg.sm0 + 34, lambda q, kt: b2 + sdone(q, kt) + cfg.rdy, lambda q: INF, hi=(cfg.e0, cfg.e0, cfg.c0))
    for b in range(8):
        for jj in range(2):
            rdy = (b1 + pvpos(b, 1)) if not first else cfg.fbar + 1
            items.append(Item(vread(b, jj, slot, 0), max(rdy, bar_gap + 1), b3 + pvpos(b, 0) - LAT, (cfg.vt0 + cfg.vts * (2 * b + jj)) if not first else cfg.fbar + 1 + b + jj * 0.5))
    for i in range(cfg.f0):
        f = KORD[i]
        items.append(Item(kread(f, nslot, 1), max(b2 + klast(f), cfg.fbar + 1 if first else 0), min(ng - 1, ng + kfirst(f) - LAT), b3 - B3 + cfg.kt0 + cfg.kts * i))
    def chain(lst, targets, ready, dead=INF, dist=1, after=None):
        p = after; res = []
        for k, (ins, tgt) in enumerate(zip(lst, targets)):
            dd = dead[k] if isinstance(dead, list) else dead
            it = Item(ins, ready, dd, tgt, [(p, dist)] if p else []); items.append(it); p = it; res.append(it)
        return res
    if first:
        lst = []
        for n in range(cfg.l0 + 1 + cfg.front): lst += [("V", vd()), ("K", kd())]
        if cfg.early: lst = lst[1:]
        p = None; tg = 1
        for k, (w, pr) in enumerate(lst):
            rdy = 1 if k < 8 - cfg.early else cfg.fbar + 2
            its = chain(pr, [tg, tg + 1], rdy, after=p, dist=1); p = its[1]; tg += 2 if k < 4 else 3
            sg.post.append((its[1], adv(w, False)))
        gaps[7].sh.append(vsite([("Q", 1, 0)]))
        if cfg.pre:
            for i, ins in enumerate(q_reads(QR, 1, 0, addr=TM, p="v")): items.append(Item(ins, 8, 11, 8 + 0.5 * i))
            gaps[16].pre += [lsite()] + pre_burst(AQ + 32) + [nop(1)]
        else:
          for i, ins in enumerate(q_reads(AQ + 32, 1, 0, addr=TM)):
            items.append(Item(ins, 8, 16 - LAT + qfirst(i // 4, i % 4) + 1, 8 + 0.5 * qfirst(i // 4, i % 4)))
        al = lsite(); al.needs = "all"
        gaps[cfg.fbar].sh += [al, vsite([("V", 0), ("K", 1)]), bar()]
        if cfg.barper == 2: gaps[ng - 1].va += [vsite([("V", 1), ("K", 2)]), bar()]
    else:
        if cfg.front:
            assert cfg.barper == 2
            if isbar:
                p = None
                for j in range(2):
                    dm = kv_dmas(t, LEAD + j)
                    kvits = chain(dm, [cfg.x0 + cfg.fxs * (4 * j + i) for i in range(4)], bar_gap + 2, after=p, dist=cfg.fxs - 1)
                    p = kvits[3]
                    sg.post.append((kvits[1], adv("K", (t + j + LEAD + 2) % 16 == 0)) if j == 0 else None) if False else None
                    for a in adv("K", (t + j + LEAD + 2) % 16 == 0): sg.sitems.append((a, ("after", kvits[1]), None))
                    for a in adv("V", (t + j + LEAD + 1) % 16 == 0): sg.sitems.append((a, ("after", kvits[3]), None))
        else:
            dm = kv_dmas(t, LEAD)
            dmt = [cfg.x0 + cfg.xs * i for i in range(4)] if isbar else [cfg.x1 + cfg.xs * i for i in range(4)]
            kvits = chain(dm, dmt, (bar_gap + 2) if isbar else 1)
            for a in adv("K", (t + LEAD + 2) % 16 == 0): sg.sitems.append((a, ("after", kvits[1]), None))
            for a in adv("V", (t + LEAD + 1) % 16 == 0): sg.sitems.append((a, ("after", kvits[3]), None))
        if isbar:
            needs = [("V", 0), ("K", 1)] + ([("V", 1), ("K", 2)] if cfg.barper == 2 else [])
            if t in RAMP_IT:
                r = Ins("s_cbranch_vccnz L_ramp%dA\nL_back%d:" % (t, t), "RAMP", ["vcc"]); r.cmt = "ramp%d" % t
                gaps[bar_gap - 2].sh.append(r)
                k = RAMP_IT.index(t)
                for role in ("A", "B"):
                    L = [vsite(needs)]
                    for w, pr in (("V", vd()), ("K", kd())):
                        follower = (w == "V") == (role == "A")
                        if follower and k >= len(RAMP_IT) - cfg.flag_: continue
                        L += [setm0(pr[0].cmt), nop(1)] + pr + adv(w, False)
                    if t == RAMP_IT[-1]: L.append(salu("s_mov_b64 vcc, 0", [], ["vcc"]))
                    L.append(raw("s_branch L_back%d" % t, "BR"))
                    if role == "A": L[0:0] = [raw("s_bitcmp1_b32 s2, 3"), raw("s_cbranch_scc1 L_ramp%dB" % t)]
                    RAMPS["ramp%d%s" % (t, role)] = L
            gaps[bar_gap - 1].sh.append(vsite(needs))
            gaps[bar_gap].sh.append(bar())
    XT = [cfg.xt, cfg.xt + cfg.xts]
    if not first and t == 0:
        gaps[0].pre += epi_burst(0, defer=True)
        gaps[1].pre += LASTCHK[0]
        W = chain(o_writes(0), [1.5 + 3.5 * i for i in range(8)], 0, 38)
        chain(o_reads(0, -1), [29 + 1.1 * j for j in range(16)], 0, 47, dist=0, after=W[7])
        gaps[48].pre += epi_burst(1, defer=True)
        gaps[49].pre += LASTCHK[1]
        chain(o_writes(1)[:NW0], [49.5 + 4 * i for i in range(NW0)], 48)
        for i in range(16, 32) if not cfg.pre else []:
            items.append(Item(v1("v_accvgpr_mov_b32", "a%d" % (AQ + 32 + i), "a%d" % (AQN + i)), 0, b2 - 2, 2 * (i - 16)))
        for i in range(32) if cfg.pre else []:
            items.append(Item(v1("v_accvgpr_write_b32", "a%d" % (AQ + 32 + i), "v%d" % (QR + i)), 0, b2 - 2, i))
        fo = flag_ops()
        if cfg.finchk:
            i1 = Item(fo[0], 56, INF, 56); i2 = Item(fo[1], 56, 62, 57, [(i1, 0)]); items += [i1, i2]
            sg.sitems.append((fo[3], ("after2", i2), None)); sg.sitems.append(([fo[4], fo[5]], ("after2", i2), None))
            sg.sitems.append((fo[6], ("after2", i2), None)); sg.sitems.append((fo[7], ("after2", i2), None))
        else:
            gaps[60].pre += fo
    if t == 1:
        ws = o_writes(1)[NW0:]
        W = chain(ws, [0.5 + 4 * i for i in range(len(ws))], 0, [b1 + pvpos(2 * ((NW0 + i) % 4), (NW0 + i) // 4) - 1 for i in range(len(ws))])
        chain(o_reads(1, -1), [16 + 2 * j for j in range(16)], 0, INF, dist=0, after=W[-1])
        al = lsite(); al.needs = "all"; gaps[ng - 1].sh.insert(1, al)
    if not first and ST_MAP.get(t):
        ks = ST_MAP[t]
        tg = {1: [cfg.stgap], 2: XT, 3: [46, 53, 60], 4: [36, 42, 48, 54]}[len(ks)] if t not in (0, 1) else ([50, 54] if t == 1 else [20])
        st = chain([(park_stores() if cfg.park and k >= 8 else o_stores(k // 8))[k % 8] for k in ks], tg, 18, 65 if t != 0 else 30)
        for k, it in zip(ks, st):
            if k == (7 if cfg.park else 15):
                if cfg.park: sg.sitems.append((smov("s%d" % (sO2 + 2), "s%d" % (sO_ + 2)), ("after", it), None))
                for a in tab_add(sOT): sg.sitems.append((a, ("after", it), None))
            if k == (7 if cfg.park else 15):
                sg.sitems.append((smov("s%d" % (sO_ + 2), "s%d" % sONR), ("after", it), None))
    for h, its in ((1 - cfg.pre, QA_IT), (cfg.pre, QB_IT)):
        if t in its:
            k = its.index(t)
            if k == 0:
                pass
            cn = QCNT_A if its is QA_IT else QCNT_B
            npi = cn[k]; o = sum(cn[:k])
            qd = chain(q_dmas(h, 1)[o:o + npi], {2: XT, 3: [46, 53, 60], 4: [44, 50, 56, 62]}[npi], 43, 65)
    if t == QB_IT[-1] + 1:
        class Z: gap = -1
        for a in tab_add(sQT): sg.sitems.append((a, ("after", Z), None))
    if cfg.wbl2 and t == cfg.wbl2:
        sg.head += [raw("s_cmp_lg_u32 s%d, 0" % sCNT), raw("s_cbranch_scc1 L_nowb"), raw("s_cmp_lg_u32 s%d, 0" % sW), raw("s_cbranch_scc1 L_nowb"),
                    raw("buffer_wbl2 sc1"), raw("L_nowb:")]
    if cfg.park and t in (13, 14):
        for i in range(16):
            r = 16 * (t - 13) + i
            items.append(Item(v1("v_accvgpr_read_b32", "v%d" % (QR + r), "a%d" % (AO + 32 + r)), 0, INF, 2 + 4 * i))
    if cfg.park and t == 10:
        r = Ins("s_cbranch_scc1 L_last\nL_lastback:", "LAST", ["scc"]); r.cmt = "last"
        sg.head += [raw("s_cmp_eq_u32 s%d, 0" % sCNT), r]
        L = [s2("s_add_u32", "s%d" % (sLT + i), "s%d" % (sOT + 4 + i), str(USTRIDE)) for i in range(4)]
        L += [store(AO + 32 + 4 * j, sLT + j // 2, (j % 2) * 1024) for j in range(8)] + [raw("s_branch L_lastback", "BR")]
        RAMPS["last"] = L
    if t == QRD:
        gaps[29].sh.append(vsite([("Q", 1 - cfg.pre, 1)]))
        for i, ins in enumerate(q_reads(AQN, 1, 1) if not cfg.pre else q_reads(QR, 0, 1, p="v")):
            items.append(Item(ins, 30, INF, 30 + 4 * i))
        al = lsite(); al.needs = "all"; gaps[ng - 1].sh.insert(1, al)
    if cfg.fakepre and 8 <= t <= 14:
        for i in range(23):
            r = 2 + (i % 4)
            op = [v2("v_and_b32", "v%d" % r, "0xffff0000", "v10"), v2("v_lshlrev_b32", "v%d" % r, "16", "v10"), mul_(r), mul_(r), cvt_(8, 2, 3)][i % 5]
            items.append(Item(op, 0, INF, 3 * i))
    if cfg.fakepre and t == 15:
        for i in range(32):
            sg.tail += [v2("v_and_b32", "v3", "0xffff0000", "v10"), v2("v_lshlrev_b32", "v2", "16", "v10"),
                        valu("v_pk_mul_f32 v[4:5], v[2:3], v[6:7]", [], [], "K"), cvt_(8, 4, 5), v1("v_accvgpr_write_b32", "a%d" % (AQN + i), "v8")]
    if cfg.pre and QRD < t < 15:
        n = 14 - QRD; lo_ = (t - QRD - 1) * 32 // n; hi_ = (t - QRD) * 32 // n
        last = {}
        for j, i in enumerate(range(lo_, hi_)):
            k = i % 3; p = last.get(k); base = j * (ng - 6.0) / (hi_ - lo_)
            for m, op in enumerate(pre_ops(i, k)):
                it = Item(op, 0, INF, base + 2.2 * m, [(p, 0)] if p else []); items.append(it); p = it
            last[k] = p
    if cfg.pre and t == 15:
        gaps[15].sh.append(vsite([("Q", 1, 1)]))
        Wr = [Item(v1("v_accvgpr_write_b32", "a%d" % (AQ + i), "v%d" % (QR + i)), 16, 56, 16 + i) for i in range(32)]
        items += Wr
        for i, ins in enumerate(q_reads(QR, 1, 1, p="v")):
            items.append(Item(ins, 16, ng - 6, 22 + 4.5 * i, [(w, 1) for w in Wr[4 * i:4 * i + 4]]))
        sg.tail += [lsite()] + pre_burst(None, writes=False)
    if t == 15 and not cfg.pre:
        gaps[15].sh.append(vsite([("Q", 0, 1)]))
        for i, ins in enumerate(q_reads(AQ, 0, 1)):
            items.append(Item(ins, 16, ng - 1 - LAT, 17 + 5 * i))
        for i in range(16):
            items.append(Item(v1("v_accvgpr_mov_b32", "a%d" % (AQ + 32 + i), "a%d" % (AQN + i)), b3, INF, b3 + i))
    schedule(gaps, items, "it%d%s" % (t, "f" if first else ""))
    for it, ops in sg.post: gaps[it.gap].va += ops
    sg.gaps = gaps
    return sg

def place_scalar(sg):
    gaps = sg.gaps
    def busy(G): return sum(1 for x in G.sh if (x.kind not in ("LSITE", "VSITE")) ) + (1 if any(x.kind in ("LSITE", "VSITE") and x.n is not None for x in G.sh) else 0)
    lastpos = {}
    ntail = 0
    for ins, (how, it), _ in sg.sitems:
        lst = ins if isinstance(ins, list) else [ins]
        lo = max(it.gap + (1 if how == "after2" else 0), lastpos.get(id(it), -1)) + 1
        hi = len(gaps)
        for k in range(it.gap + 1, len(gaps)):
            if any(x.kind == "X" and ((x.rd & lst[0].wr) - {"scc"} or (x.cmt and "s%d" % x.cmt[0] in lst[0].wr)) for x in gaps[k].ds): hi = k - 1; break
        c = [k for k in range(lo, hi) if busy(gaps[k]) == 0]
        if c: gaps[c[0]].sh += lst; lastpos[id(it)] = c[0]
        elif hi < len(gaps):
            k = max(lo - 1, min(hi - 1, lo)); gaps[k].sh += lst; lastpos[id(it)] = k - 1
        else: sg.tail[ntail:ntail] = lst; ntail += len(lst); lastpos[id(it)] = len(gaps)
    cur = None; lastx = -1
    for g, G in enumerate(gaps):
        if any("s_mov_b32 m0" in x.text for x in G.pre): cur = None; lastx = max(lastx, g - 1)
        if any(x.kind == "RAMP" for x in G.sh): cur = None; lastx = max(lastx, g)
        for x in G.ds:
            if x.kind == "X" and "m0" in x.rd:
                if cur != x.cmt:
                    src = "s%d" % x.cmt[0]
                    lw = max([k for k in range(g) if any(src in y.wr for y in gaps[k].sh + gaps[k].va)] + [-1])
                    cands = [k for k in range(max(lastx + 1, lw), g)]
                    free = [k for k in cands if busy(gaps[k]) == 0]
                    if cands:
                        k = free[-1] if free else cands[-1]
                        gaps[k].sh.append(setm0(x.cmt))
                    elif any("s_mov_b32 m0" in y.text for y in G.pre):
                        G.pre.append(setm0(x.cmt))
                    else:
                        gaps[lastx].va.append(setm0(x.cmt))
                    cur = x.cmt
                lastx = g

def flat(sg):
    L = list(sg.head)
    for G in sg.gaps: L += G.flat()
    return L + sg.tail

def prologue():
    L = []
    A = L.append
    A(raw("s_cmp_ge_u32 s2, 256")); A(raw("s_cbranch_scc1 L_end"))
    A(raw("s_load_dwordx4 s[36:39], s[0:1], 0")); A(raw("s_load_dwordx4 s[40:43], s[0:1], 16"))
    A(v2("v_lshrrev_b32", "v1", "6", "v0")); A(v2("v_and_b32", "v0", "63", "v0"))
    A(valu("v_readfirstlane_b32 s%d, v1" % sW, ["v1"], ["s%d" % sW]))
    A(v2("v_lshrrev_b32", "v2", "4", "v0"))
    A(v2("v_and_b32", "v3", "15", "v0"))
    if cfg.xmap == 0:
        A(raw("s_and_b32 s45, s2, 7")); A(raw("s_lshr_b32 s46, s2, 4")); A(raw("s_lshl_b32 s45, s45, 4")); A(raw("s_add_u32 s45, s45, s46"))
    else:
        A(raw("s_and_b32 s45, s2, 7")); A(raw("s_lshr_b32 s46, s2, 4")); A(raw("s_lshl_b32 s46, s46, 3")); A(raw("s_add_u32 s45, s45, s46"))
    if cfg.rot:
        A(raw("s_mul_i32 s%d, s45, %d" % (sKt, cfg.rot * KSTEP))); A(raw("s_and_b32 s%d, s%d, %d" % (sKt, sKt, 16 * KSTEP - 1))); A(smov("s%d" % sVt, "s%d" % sKt))
    if cfg.rotq: A(raw("s_mul_i32 s82, s45, %d" % (cfg.rotq * PSTEP)))
    A(raw("s_lshl_b32 s45, s45, %d" % (19 if cfg.hmap == 0 else 17)))
    A(raw("s_bfe_u32 s46, s2, 0x10003")); A(raw("s_lshl_b32 s46, s46, %d" % HSH)); A(raw("s_add_u32 s46, s46, s45"))
    A(s2("s_lshl_b32", "s%d" % sMK, "s%d" % sW, "11"))
    A(v2("v_lshlrev_b32", "v4", "1", "v2")); A(v2("v_xor_b32", "v4", "v3", "v4")); A(v2("v_lshlrev_b32", "v4", "4", "v4"))
    A(v3("v_lshl_add_u32", "v%d" % DA, "v2", "8", "v4")); A(v2("v_xor_b32", "v%d" % DB, "0x80", "v%d" % DA))
    A(smov("s%d" % sMKn, "s%d" % sMK)); A(smov("s%d" % sMVn, "s%d" % sMK))
    if cfg.cpf:
        A(raw("s_lshr_b32 s%d, s2, 3" % sT)); A(raw("s_lshl_b32 s%d, s%d, 2" % (sT, sT))); A(raw("s_add_u32 s%d, s%d, s%d" % (sT, sT, sW)))
        A(raw("s_and_b32 s%d, s%d, 31" % (sT, sT))); A(raw("s_lshl_b32 s%d, s%d, 10" % (sT, sT)))
        A(raw("s_min_u32 s%d, s%d, L_end - L_pc - 1024" % (sT, sT)))
        A(v2("v_lshlrev_b32", "v5", "4", "v0")); A(v2("v_add_u32", "v5", "s%d" % sT, "v5"))
        A(raw("s_getpc_b64 s[58:59]\nL_pc:"))
        A(Ins("global_load_dwordx4 v[72:75], v5, s[58:59]", "X", ["v5"], R("v", 72, 4)))
    A(s2("s_lshl_b32", "s%d" % sMS, "s%d" % sW, "13")); A(s2("s_add_u32", "s%d" % sMS, "s%d" % sMS, str(LDS_S)))
    A(s2("s_lshl_b32", "s%d" % sQo, "s%d" % sW, str(WSH)))
    for i in range(8):
        if cfg.rotq:
            A(s2("s_add_u32", "s%d" % (sQT + i), "s82", str(i * PSTEP))); A(s2("s_and_b32", "s%d" % (sQT + i), "s%d" % (sQT + i), str(8 * PSTEP - 1)))
            A(s2("s_add_u32", "s%d" % (sQT + i), "s%d" % (sQT + i), "s%d" % sQo))
        else: A(s2("s_add_u32", "s%d" % (sQT + i), "s%d" % sQo, str(i * PSTEP)))
    for b in (sQ_, sK_, sV_, sO_): A(smov("s%d" % (b + 3), "0x20000"))
    A(smov("s%d" % (sK_ + 2), str(3 * USTRIDE + 131072))); A(smov("s%d" % (sV_ + 2), str(3 * USTRIDE + 131072)))
    A(smov("s%d" % (sQ_ + 2), str(3 * USTRIDE + QEND))); A(smov("s%d" % sONR, str(3 * USTRIDE + QEND))); A(smov("s%d" % (sO_ + 2), "0"))
    assert not cfg.flag_
    if cfg.kvmap == 0: A(s2("s_lshl_b32", "s%d" % sKo, "s%d" % sW, "11"))
    elif cfg.kvmap == 1: A(s2("s_lshl_b32", "s%d" % sKo, "s%d" % sW, "15"))
    else:
        A(s2("s_and_b32", "s%d" % sKo, "s%d" % sW, "1")); A(s2("s_lshl_b32", "s%d" % sKo, "s%d" % sKo, "11"))
        A(s2("s_lshr_b32", "s%d" % sVo, "s%d" % sW, "1")); A(s2("s_lshl_b32", "s%d" % sVo, "s%d" % sVo, "16")); A(s2("s_add_u32", "s%d" % sKo, "s%d" % sKo, "s%d" % sVo))
    if cfg.rot:
        A(smov("s%d" % sKb, "s%d" % sKo)); A(smov("s%d" % sVb, "s%d" % sKo)); A(s2("s_add_u32", "s%d" % sKo, "s%d" % sKo, "s%d" % sKt))
    A(smov("s%d" % sVo, "s%d" % sKo))
    A(raw("s_waitcnt lgkmcnt(0)"))
    if cfg.stamp2: L += stamp()
    for b, p, o in ((sK_, 38, 45), (sQ_, 36, 46), (sV_, 40, 45), (sO_, 42, 46)):
        A(salu("s_add_u32 s%d, s%d, s%d" % (b, p, o), [], ["s%d" % b])); A(salu("s_addc_u32 s%d, s%d, 0" % (b + 1, p + 1), [], ["s%d" % (b + 1)]))
    def issue(lst):
        cur = None
        for x in lst:
            if x.kind == "X" and cur != x.cmt:
                A(setm0(x.cmt)); A(nop(1)); cur = x.cmt
            A(x)
    k0 = kd(); v0 = vd() if cfg.early else None
    q0 = q_dmas(0, 0)
    if cfg.early:
        issue([k0[0], q0[0], v0[0], k0[1], v0[1]] + adv("K", False) + adv("V", False) + q0[1:])
    else:
        issue(k0 + adv("K", False) + q0)
    A(s2("s_sub_u32", "s%d" % sT, "s%d" % sMS, "32768"))
    issue(q_dmas(1, 0, msgpr=sT))
    if cfg.stamp2: L += stamp()
    for i in range(8): A(s2("s_sub_u32", "s%d" % (sOT + i), "s%d" % (sQT + i), str(USTRIDE * (2 if cfg.park and i >= 4 else 1))))
    if cfg.park:
        A(smov("s%d" % sO2, "s%d" % sO_)); A(smov("s%d" % (sO2 + 1), "s%d" % (sO_ + 1))); A(smov("s%d" % (sO2 + 2), "0")); A(smov("s%d" % (sO2 + 3), "0x20000"))
    L += tab_add(sQT)
    A(v2("v_and_b32", "v5", "7", "v3")); A(v2("v_lshlrev_b32", "v6", "1", "v5"))
    for s in range(4):
        A(v2("v_add_u32", "v7", str(4 * s), "v2")); A(v2("v_xor_b32", "v7", "v7", "v6")); A(v2("v_lshlrev_b32", "v7", "4", "v7"))
        A(v3("v_lshl_add_u32", "v%d" % (KA + s), "v3", "8", "v7"))
        A(v2("v_add_u32", "v%d" % (QA + s), "s%d" % sMS, "v%d" % (KA + s)))
        A(v2("v_subrev_u32", "v%d" % (TM + s), "0x8000", "v%d" % (QA + s)))
    A(v2("v_lshrrev_b32", "v76", "2", "v0"))
    A(v2("v_and_b32", "v77", "7", "v76")); A(v2("v_lshlrev_b32", "v77", "1", "v77"))
    A(valu("v_bfe_u32 v78, v0, 1, 1", ["v0"], ["v78"]))
    A(v2("v_and_b32", "v79", "1", "v0")); A(v2("v_lshlrev_b32", "v79", "3", "v79"))
    A(v3("v_lshl_add_u32", "v79", "v76", "8", "v79")); A(v2("v_add_u32", "v79", str(LDS_V), "v79"))
    for b in range(8):
        A(v2("v_add_u32", "v7", str(2 * b), "v78")); A(v2("v_xor_b32", "v7", "v7", "v77"))
        A(v3("v_lshl_add_u32", "v%d" % (VA + b), "v7", "4", "v79"))
    A(v2("v_lshlrev_b32", "v79", "8", "v3")); A(v2("v_add_u32", "v79", "s%d" % sMS, "v79"))
    A(v2("v_xor_b32", "v78", "v2", "v5"))
    A(v3("v_lshl_add_u32", "v%d" % OW, "v78", "4", "v79")); A(v2("v_xor_b32", "v%d" % (OW + 1), "64", "v%d" % OW))
    A(v2("v_and_b32", "v78", "12", "v3")); A(v2("v_and_b32", "v70", "1", "v3")); A(v3("v_lshl_add_u32", "v78", "v70", "1", "v78"))
    A(v2("v_xor_b32", "v78", "v78", "v2")); A(v2("v_lshlrev_b32", "v78", "4", "v78")); A(v3("v_lshl_add_u32", "v78", "v2", "8", "v78"))
    A(v2("v_and_b32", "v70", "2", "v3")); A(v3("v_lshl_add_u32", "v78", "v70", "2", "v78"))
    A(v2("v_add_u32", "v%d" % OR_, "s%d" % sMS, "v78"))
    for i, x in enumerate((16, 64, 80)): A(v2("v_xor_b32", "v%d" % (OR_ + 1 + i), str(x), "v%d" % OR_))
    A(v2("v_lshlrev_b32", "v%d" % OS, "4", "v0"))
    A(v2("v_and_b32", "v7", "3", "v0")); A(valu("v_cmp_eq_u32 vcc, 0, v7", ["v7"], ["vcc"])); A(v1("v_mov_b32", "v76", "0x3f803f80")); A(v1("v_mov_b32", "v77", "0"))
    A(valu("v_cndmask_b32 v7, v77, v76, vcc", ["v76", "v77", "vcc"], ["v7"]))
    for i in range(4):
        A(v1("v_accvgpr_write_b32", "a%d" % (AONE + i), "v7")); A(v1("v_accvgpr_write_b32", "a%d" % (AZERO + i), "v77"))
    A(smov("s%d" % sC, "0x%08x" % SCALE)); A(smov("s%d" % sC2, "0x%08x" % SCALE)); A(smov("s%d" % (sC2 + 1), "0x%08x" % SCALE))
    if cfg.fakepre: L += [v1("v_mov_b32", "v%d" % i, "1.0") for i in range(2, 12)]
    A(smov("s%d" % sLO, "0x%08x" % LO_BITS)); A(smov("s%d" % sRG, "0x%08x" % (HI_BITS - LO_BITS)))
    A(smov("s%d" % sBAD, "0")); A(salu("s_mov_b64 s[%d:%d], 0" % (sACC, sACC + 1), [], R("s", sACC, 2)))
    A(smov("s%d" % sCNT, "3"))
    A(salu("s_mov_b64 vcc, %d" % (-1 if RAMP_IT else 0), [], ["vcc"]))
    if cfg.stamp2: L += stamp()
    A(vsite([("K", 0), ("Q", 0, 0)]))
    if cfg.stamp2: L += stamp()
    A(bar())
    if cfg.pre:
        L += q_reads(QR, 0, 0, p="v") + [kread(f, 0, 0) for f in KORD] + [lsite()]
        b = pre_burst(AQ)
        for i in range(0, len(b), 20): L += b[i:i + 20] + [lsite()]
        return L + [nop(1), lsite()]
    qr = q_reads(AQ, 0, 0)
    seen = set()
    for kt, q, s in QKSEQ:
        if ("k", kt, s) not in seen: A(kread(4 * kt + s, 0, 0)); seen.add(("k", kt, s))
        if ("q", q, s) not in seen: A(qr[4 * q + s]); seen.add(("q", q, s))
    A(lsite())
    return L

def tail_seg():
    L = []
    for it in softmax_items(1, 0, lambda q, kt: 0, lambda q: 99, lo=(cfg.e0, cfg.e0, cfg.c0)):
        L.append(it.ins)
        if it.ins.kind == "T" and it.ins.text == exp_(S_(1, *GRP[3]) + 3).text: L.append(nop(1))
    if cfg.stmode == 1:
        L += [o_stores(1)[7]] + tab_add(sOT)
    if cfg.park: L += tab_add(sOT)[4:]
    L += epi_burst(0)
    gaps = [Gap(m) for m in pv_block(1, False)]
    for g, w in enumerate(o_writes(0)): gaps[g].ds.append(w)
    rd = o_reads(0, 0)
    for g in range(8): gaps[8 + g].ds += rd[2 * g:2 * g + 2]
    for G in gaps: L += G.flat()
    st = o_stores(0)
    L += [lsite()] + st[:4]
    b1 = epi_burst(1)
    k = [i for i, x in enumerate(b1) if x.kind == "K"][-1] + 1
    L += b1[:k] + [lsite()] + st[4:] + b1[k:]
    w1 = o_writes(1); r1 = o_reads(1, 0); st = o_stores(1)
    L += w1[:4] + r1[:8] + w1[4:] + r1[8:]
    L += [lsite()] + st[:2] + [lsite()] + st[2:4] + [lsite()] + st[4:6] + [lsite()] + st[6:]
    L += flag_ops()
    return L

def slow_path():
    T = []
    A = T.append
    def emit(l):
        for x in l: A(x.text)
    def wait(): A("s_waitcnt vmcnt(0) lgkmcnt(0)");
    A("s_barrier")
    if cfg.force_slow: A("s_mov_b32 s%d, 15" % sBAD)
    A("s_cmp_eq_u32 s%d, 0" % sBAD); A("s_cbranch_scc1 L_end")
    A("s_lshl_b32 s45, s%d, 13" % sW)
    for i in range(4): A("v_add_u32 v%d, s45, v%d" % (KA + i, KA + i))
    for i in range(8): A("v_add_u32 v%d, s45, v%d" % (VA + i, VA + i))
    A("s_add_u32 s46, s45, %d" % LDS_V)
    A("s_lshl_b32 s%d, s%d, %d" % (sQo, sW, WSH))
    A("v_mov_b32 v%d, v%d" % (TS + 4, DA)); A("v_mov_b32 v%d, v%d" % (TS + 5, DB))
    A("s_mov_b32 s%d, 0" % sCNT)
    A("L_slow_unit:")
    A("s_bitcmp1_b32 s%d, 3" % sBAD); A("s_cbranch_scc0 L_slow_next")
    for i in range(8): A("s_add_u32 s%d, s%d, %d" % (sQT + i, sQo, i * PSTEP)); A("s_mov_b32 s%d, s%d" % (sOT + i, sQT + i))
    wait()
    for h in range(2):
        cur = None
        for x in q_dmas(h, 0):
            if cur != x.cmt: A(setm0(x.cmt).text); A("s_nop 0"); cur = x.cmt
            A(x.text)
        wait(); emit(q_reads(AQ + 32 * h, h, 0)); wait()
    def tile_dma(sr, m0s):
        for i in range(8):
            if i % 4 == 0:
                A("s_add_u32 m0, s%d, %d" % (m0s, (i // 4) * 4096)); A("s_add_u32 s%d, s%d, %d" % (sT, sKo, (i // 4) * 4096))
            A("buffer_load_dwordx4 v%d, %s, s%d offen offset:%d lds" % (TS + 4 + i % 2, srd(sr), sT, (i % 4) * 1024))
    def qk_all():
        emit([kread(f, 0, 0) for f in range(8)]); wait()
        emit(qk_block(0) + qk_block(1)); A("s_nop 7"); A("s_nop 3")
    for i in range(4): A("v_mov_b32 v%d, 0xff800000" % (MX + i))
    A("s_mov_b32 s%d, s%d" % (sKo, sCNT)); A("s_add_u32 s%d, s%d, 131072" % (sVo, sCNT))
    A("L_slow_p1:")
    tile_dma(sK_, 45); wait(); qk_all()
    for h in range(2):
        for q in range(2):
            a = S_(h, q, 0)
            for i in range(4): A("v_max3_f32 v%d, v%d, v%d, v%d" % (MX + 2 * h + q, a + 2 * i, a + 2 * i + 1, MX + 2 * h + q))
    A("s_add_u32 s%d, s%d, 8192" % (sKo, sKo)); A("s_cmp_lt_u32 s%d, s%d" % (sKo, sVo)); A("s_cbranch_scc1 L_slow_p1")
    for op in ("v_permlane32_swap_b32", "v_permlane16_swap_b32"):
        for i in range(4): A("v_mov_b32 v%d, v%d" % (NM + i, MX + i))
        A("s_nop 1")
        for i in range(4): A("%s v%d, v%d" % (op, NM + i, MX + i))
        A("s_nop 1")
        for i in range(4): A("v_max_f32 v%d, v%d, v%d" % (MX + i, MX + i, NM + i))
    for i in range(4): A("v_mul_f32 v%d, s%d, v%d" % (NM + i, sC, MX + i))
    for i in range(128): A("v_mov_b32 v%d, 0" % (OB + i))
    for i in range(16): A("v_accvgpr_write_b32 a%d, 0" % (AL + i))
    A("s_mov_b32 s%d, s%d" % (sKo, sCNT))
    A("L_slow_p2:")
    tile_dma(sK_, 45); tile_dma(sV_, 46); wait(); qk_all()
    emit([vread(b, jj, 0, 0) for b in range(4) for jj in range(2)])
    for h in range(2):
        for q in range(2):
            a = S_(h, q, 0)
            for i in range(8): A("v_fma_f32 v%d, v%d, s%d, -v%d" % (a + i, a + i, sC, NM + 2 * h + q))
            for i in range(8): A("v_exp_f32 v%d, v%d" % (a + i, a + i))
            A("s_nop 0")
            for i in range(4): A(cvt_(P_(h, q) + i, a + 2 * i, a + 2 * i + 1).text)
    emit([vread(b, jj, 0, 0) for b in range(4, 8) for jj in range(2)])
    wait()
    emit(pv_block(0, False) + pv_block(1, False))
    A("s_add_u32 s%d, s%d, 8192" % (sKo, sKo)); A("s_cmp_lt_u32 s%d, s%d" % (sKo, sVo)); A("s_cbranch_scc1 L_slow_p2")
    A("s_nop 7"); A("s_nop 3")
    for h in range(2):
        emit(epi_burst(h, check=False)); emit(o_writes(h) + o_reads(h, 0))
        wait(); emit(o_stores(h)); wait()
    A("L_slow_next:")
    A("s_lshl_b32 s%d, s%d, 1" % (sBAD, sBAD)); A("s_and_b32 s%d, s%d, 15" % (sBAD, sBAD))
    for r in (sCNT, sQo): A("s_add_u32 s%d, s%d, %d" % (r, r, USTRIDE))
    A("s_cmp_lg_u32 s%d, 0" % sBAD); A("s_cbranch_scc1 L_slow_unit")
    return T

def stamp():
    if not cfg.stamp: return []
    return [raw("s_memtime s[58:59]"), raw("s_memrealtime s[62:63]"), raw("s_waitcnt lgkmcnt(0)"),
            raw("s_mov_b32 m0, s57"), raw("s_nop 0"), raw("v_writelane_b32 v38, s58, m0"), raw("v_writelane_b32 v39, s62, m0"), raw("s_add_u32 s57, s57, 1")]
def stamp_out():
    if not cfg.stamp: return []
    if cfg.dbgwg >= 0:
        return [x.text for x in stamp()] + ["s_cmp_lg_u32 s2, %d" % cfg.dbgwg, "s_cbranch_scc1 L_nodbg", "s_cmp_lg_u32 s%d, 0" % sW, "s_cbranch_scc1 L_nodbg",
            "s_load_dwordx2 s[36:37], s[0:1], 32", "s_waitcnt lgkmcnt(0)", "s_mov_b32 s38, 64", "s_mov_b32 s39, 0x20000",
            "v_readfirstlane_b32 s45, v39", "v_lshrrev_b32 v41, 2, v%d" % OS, "s_nop 1", "v_subrev_u32 v39, s45, v39",
            "buffer_store_dword v39, v41, s[36:39], 0 offen", "L_nodbg:"]
    return [x.text for x in stamp()] + ["s_load_dwordx2 s[36:37], s[0:1], 40", "s_waitcnt lgkmcnt(0)", "s_mov_b32 s38, 0x1000000", "s_mov_b32 s39, 0x20000",
            "s_lshl_b32 s45, s2, 2", "s_add_u32 s45, s45, s%d" % sW, "s_lshl_b32 s45, s45, 9", "v_lshrrev_b32 v41, 2, v%d" % OS,
            "buffer_store_dword v38, v41, s[36:39], s45 offen", "buffer_store_dword v39, v41, s[36:39], s45 offen offset:256"]
DOC = """; Generated by a scheduling script (hand-written instruction templates, list-scheduled into MFMA gaps).
;   wave = 64 q rows. S^T = K Q^T and O^T += V^T P^T with 16x16x32 bf16 MFMA, so P feeds the second product
;   sums the row (l) with one more MFMA. Every row is then checked at run time: l must lie in [2^-40, 2^126) and every
;   output must be finite (zero-operand MFMA turns any inf/NaN into NaN). A wave with a row that fails recomputes that
;   block at the end of the kernel with the true row max (two-pass fallback, label L_slow_unit)."""
def main():
    sgs = {"it0f": build_iter(0, True)}
    for t in range(16): sgs["it%d" % t] = build_iter(t)
    def segs():
        d = {"pro": pro, "tail": tl}
        d.update(RAMPS)
        for k, s in sgs.items(): d[k] = flat(s)
        return d
    pro = prologue(); tl = tail_seg()
    if cfg.jitter:
        for t in range(16):
            g = (t * 11 + cfg.jitter * 7) % 60
            sgs["it%d" % t].gaps[g].pre[0:0] = [raw("s_cmp_eq_u32 s%d, %d" % (sW, (t * cfg.jitter + t // 4) % 4)), raw("s_cbranch_scc0 L_j%d" % t), raw("s_sleep %d" % (8 + 5 * (t % 5))), raw("L_j%d:" % t)]
    if cfg.dbgspan:
        pro[2:2] = [raw("s_memrealtime s[60:61]"), raw("s_memtime s[62:63]"), raw("s_waitcnt lgkmcnt(0)"), raw("s_mov_b32 s56, s60"), raw("s_mov_b32 s57, s62")]
        i = [k for k, x in enumerate(pro) if x.kind == "BAR"][0]
        pro[i + 1:i + 1] = [raw("s_memrealtime s[58:59]")]
    if cfg.stamp:
        pro[2:2] = [raw("s_mov_b32 s57, 0")] + stamp()
        i = [k for k, x in enumerate(pro) if x.kind == "BAR"][0]
        pro[i + 1:i + 1] = stamp()
        for t in range(0, 16, cfg.stamp): sgs["it%d" % t].head[0:0] = stamp()
        tl[0:0] = stamp()
        if cfg.stamp3:
            G = sgs["it0"].gaps
            G[0].pre += stamp(); G[16].pre += stamp(); G[34].pre += stamp(); G[48].pre[0:0] = stamp(); G[48].pre += stamp()
            sgs["it1"].head[0:0] = stamp(); sgs["it1"].gaps[34].pre += stamp(); sgs["it2"].head[0:0] = stamp(); sgs["it3"].head[0:0] = stamp()
        if cfg.stamp2:
            sgs["it0f"].gaps[16].pre += stamp(); sgs["it0f"].gaps[cfg.fbar + 1].pre += stamp(); sgs["it0f"].tail[0:0] = stamp()
    traces = []
    for role in ("A", "B"):
        x = dict(role=role, lagK=cfg.flag_ if role == "B" else 0, lagV=cfg.flag_ if role == "A" else 0)
        trace = [("pro", dict(T=0, u=0, first=1, **x)), ("it0f", dict(T=0, u=0, first=1, **x))]
        for u in range(4):
            for t in range(16):
                if (u, t) != (0, 0): trace.append(("it%d" % t, dict(T=16 * u + t, u=u, first=(u == 0 and t < 9), **x)))
        trace.append(("tail", dict(T=64, u=3, **x)))
        traces.append(trace)
    sgs["it0f"].tail.append(raw("s_branch L_it1", "BR"))
    sgs["it15"].tail += [s2("s_sub_u32", "s%d" % sCNT, "s%d" % sCNT, "1"), raw("s_cbranch_scc0 L_it0", "BR")]
    insert_waits(segs(), traces)
    for k, s in sgs.items():
        br = [x for x in s.tail if x.kind == "BR" or "s_sub_u32 s%d" % sCNT in x.text]
        s.tail = [x for x in s.tail if x not in br]
        place_scalar(s)
        s.tail += br
    fs = {k: finalize(v) for k, v in segs().items()}
    errs = sum((verify(fs, tr, {"K": 8, "V": 16, "Q": 8, "O": 16}) for tr in traces), [])
    for e in errs[:40]: sys.stderr.write("ERR " + e + "\n")
    tot = 0
    for k in ["pro", "it0f"] + ["it%d" % t for t in range(16)] + ["tail"]:
        est = issue_estimate(fs[k]); sys.stderr.write("%s:%d " % (k, est))
        if k.startswith("it") and k != "it0f": tot += est
    if cfg.stamp3:
        for k in ("it0", "it1", "it2"):
            parts = [[]]
            for x in fs[k]:
                if "s_memtime" in x.text: parts.append([])
                parts[-1].append(x)
            sys.stderr.write("\n%s parts %s" % (k, [issue_estimate(p) for p in parts]))
    sys.stderr.write("\nunit estimate %d cycles, errors %d\n" % (tot, len(errs)))
    out = []
    hdr = open(os.path.join(os.path.dirname(os.path.abspath(__file__)), "..", "cdna_kernels", NAME + ".s.ref")).read().split("; Override")[0]
    out.append(hdr.rstrip())
    out.append("; @launch grid=(256,1,1) block=(256,1,1) lds=163840")
    out.append(DOC)
    out.append('.amdgcn_target "amdgcn-amd-amdhsa--gfx950"\n.text\n.globl %s_kernel\n.p2align 8\n.type %s_kernel,@function\n%s_kernel:' % (NAME, NAME, NAME))
    par = {}
    def dump(k):
        out.append("; ---- " + k)
        for x in fs[k]:
            if cfg.nocomp and k != "pro" and x.kind in ("M", "V", "T", "K", "D", "W"):
                par[x.kind] = par.get(x.kind, 0) + 1
                if cfg.nocomp == 1 or par[x.kind] % cfg.nocomp == 0: continue
            if cfg.nomem and k != "pro" and x.kind == "X" and (cfg.nomem == 1 or "store" in x.text): continue
            if cfg.nostore and x.kind == "X" and "store" in x.text: continue
            out.append("  " + x.text)
            if cfg.nocomp and "m0" in x.wr: out.append("  s_nop 0")
    dump("pro"); dump("it0f")
    for k in RAMPS: out.append("L_%s:" % k); dump(k)
    out.append(".p2align 6\nL_it0:"); dump("it0"); out.append("L_it1:")
    for t in range(1, 16): dump("it%d" % t)
    dump("tail")
    if cfg.dbgspan:
        out += ["  " + x for x in ["s_waitcnt vmcnt(0)", "s_memrealtime s[60:61]", "s_memtime s[62:63]", "s_load_dwordx2 s[36:37], s[0:1], 32", "s_waitcnt lgkmcnt(0)", "s_mov_b32 s38, 256", "s_mov_b32 s39, 0x20000",
            "s_not_b32 s45, s56", "v_mov_b32 v2, s45", "v_mov_b32 v3, s58", "v_mov_b32 v4, s60", "v_mov_b32 v5, s56", "s_not_b32 s45, s60", "v_mov_b32 v6, s45", "s_sub_u32 s45, s62, s57", "v_mov_b32 v7, s45", "v_mov_b32 v1, 0",
            "s_mov_b64 exec, 1",
            "buffer_atomic_umax v2, v1, s[36:39], 0 offen", "buffer_atomic_umax v3, v1, s[36:39], 0 offen offset:4", "buffer_atomic_umax v4, v1, s[36:39], 0 offen offset:8",
            "buffer_atomic_umax v5, v1, s[36:39], 0 offen offset:12", "buffer_atomic_umax v6, v1, s[36:39], 0 offen offset:16", "buffer_atomic_umax v7, v1, s[36:39], 0 offen offset:20", "s_mov_b64 exec, -1"]]
    if cfg.stamp:
        out.append("  s_waitcnt vmcnt(0)")
        out += [("  " + x if not x.endswith(":") else x) for x in stamp_out()]
    if cfg.nocomp or cfg.nomem or cfg.fakepre: out.append("  s_mov_b32 s%d, 0" % sBAD)
    out += ["  " + x if not x.endswith(":") else x for x in slow_path()]
    out.append("L_end:\n  s_endpgm")
    out.append('.section .rodata,"a"\n.p2align 6\n.amdhsa_kernel %s_kernel' % NAME)
    out.append("  .amdhsa_next_free_vgpr 512\n  .amdhsa_next_free_sgpr 96\n  .amdhsa_accum_offset 256\n  .amdhsa_group_segment_fixed_size 0\n  .amdhsa_kernarg_size 48\n  .amdhsa_user_sgpr_count 2\n  .amdhsa_user_sgpr_kernarg_segment_ptr 1\n  .amdhsa_system_sgpr_workgroup_id_x 1\n.end_amdhsa_kernel")
    open(sys.argv[1], "w").write("\n".join(out) + "\n")
    if errs: sys.exit(1)
main()
```

```python
import sys, os, struct, math
from core import *

class Cfg:
    barper = 2
    finchk = 1
    lat = 7
    k_aux = ""
    v_aux = ""
    kv_aux = "nt"
    q_aux = "nt"
    o_aux = "nt"
    e0 = 10; c0 = 4; f0 = 6
    force_slow = 0
    hmap = 1
    rot = 5
    xmap = 0
    stamp = 0
    tailv = 1
    jitter = 0
    dbgwg = -1
    stamp3 = 0
    stamp2 = 0
    nocomp = 0
    nomem = 0
    nostore = 0
    dbgspan = 0
    lag = 1.5
    lead = 6
    park = 0
    rskip = 0
    front = 0
    rotq = 3
    qomap = 0
    pre = 0
    wbl2 = 0
    kvmap = 1
    fakepre = 0
    x0 = 17
    x1 = 9
    xs = 8
    xts = 8
    fxs = 6
    xt = 52
    flag_ = 0
    stmode = 0
    qmaj = 0
    bargap = 14
    sm0 = 14
    qkord = 2
    kt0 = 54.0
    kts = 2.48
    vt0 = 18.0
    vts = 2.48
    stgap = 48
    l0 = 2
    cpf = 1
    qa0 = 2
    early = 1
    fbar = 24
    rdy = 5
cfg = Cfg()
for a in sys.argv[2:]:
    k, v = a.split("=")
    setattr(cfg, k, type(getattr(cfg, k))(v))

NAME = "standalone__mha_softmax__near_ridge"
KA = 16; VA = 20; DA = 28; DB = 29; QA = 30; OW = 34; OS = 40; OR_ = 8; QR = 48; PT = 2
ET = 42; ER = 44; EU = 36
MX = 50; NM = 54; TM = 12; TS = 58
PB = 80; SB = 96; OB = 128
def S_(h, q, kt): return SB + 16 * h + 8 * q + 4 * kt
def P_(h, q): return PB + 8 * h + 4 * q
def O_(qt, b): return OB + 32 * qt + 4 * b
AQ = 0; AQN = 64; AK = 96; AV = 128; AO = 160; AL = 224; AONE = 240; AZERO = 244; ACHK = 248
sQ_, sK_, sV_, sO_ = 4, 8, 12, 16
sW = 20; sKo = 21; sVo = 22; sMK = 23; sMV = 24; sQo = 25; sOo = 26; sC = 27; sBAD = 28; sUB = 29; sACC = 30; sCMP = 32
sLO = 34; sRG = 35; sMS = 44; sCNT = 47; sONR = 48; sQa = 50; sQb = 51; sOa = 52; sOb = 53; sT = 54; sKt = 55; sVt = 56; sKb = 80; sVb = 81; sMKn = 29; sMVn = 49; sC2 = 60; sQT = 64; sOT = 72; sO2 = 84; sLT = 88
WSH, PSTEP, HSH, QEND = ((14, 2048, 16, 65536), (11, 8192, 16, 65536), (15, 2048, 14, 114688))[cfg.qomap]
LDS_V = 65536; LDS_S = 131072
SCALE = struct.unpack("<I", struct.pack("<f", math.log2(math.e) / math.sqrt(128.0)))[0]
LO_BITS = (127 - (40 if cfg.finchk else 24)) << 23
HI_BITS = (127 + (126 if cfg.finchk else 24)) << 23

def srd(b): return "s[%d:%d]" % (b, b + 3)
def srdr(b): return R("s", b, 4)

def v2(op, d, a, b, kind="V"):
    rd = [x for x in (a, b) if isinstance(x, str) and x[0] in "vsa" and x[1:].isdigit()]
    return valu("%s %s, %s, %s" % (op, d, a, b), rd, [d], kind)
def v1(op, d, a, kind="V"):
    rd = [a] if isinstance(a, str) and a[0] in "vsa" and a[1:].isdigit() else []
    return valu("%s %s, %s" % (op, d, a), rd, [d], kind)
def v3(op, d, a, b, c):
    rd = [x for x in (a, b, c) if isinstance(x, str) and x[0] in "vsa" and x[1:].isdigit()]
    return valu("%s %s, %s, %s, %s" % (op, d, a, b, c), rd, [d])
def s2(op, d, a, b):
    rd = [x for x in (a, b) if isinstance(x, str) and (x[0] == "s" or x == "m0")]
    return salu("%s %s, %s, %s" % (op, d, a, b), rd, [d, "scc"])
def smov(d, a):
    return salu("s_mov_b32 %s, %s" % (d, a), [a] if isinstance(a, str) and a[0] == "s" else [], [d])
def mul_(r): return v2("v_mul_f32", "v%d" % r, "s%d" % sC, "v%d" % r)
def exp_(r): return v1("v_exp_f32", "v%d" % r, "v%d" % r, "T")
def cvt_(d, a, b): return v2("v_cvt_pk_bf16_f32", "v%d" % d, "v%d" % a, "v%d" % b)
def dsr128(dp, d, addr, off, tag):
    assert 0 <= off < 65536
    return Ins("ds_read_b128 %s, v%d offset:%d" % (rng(dp, d, 4), addr, off), "D", ["v%d" % addr], R(dp, d, 4), tag=tag)
def dstr(d, addr, off, tag):
    assert 0 <= off < 65536
    return Ins("ds_read_b64_tr_b16 %s, v%d offset:%d" % (rng("a", d, 2), addr, off), "D", ["v%d" % addr], R("a", d, 2), tag=tag)
def dsw64(addr, src, off):
    return Ins("ds_write_b64 v%d, %s offset:%d" % (addr, rng("v", src, 2), off), "W", ["v%d" % addr] + R("v", src, 2), [])
def dma(voff, sr, soff, off, tag, m0, aux=""):
    if sr == sK_ and cfg.k_aux: aux = cfg.k_aux
    if sr == sV_ and cfg.v_aux: aux = cfg.v_aux
    i = Ins("buffer_load_dwordx4 v%d, %s, s%d offen offset:%d %slds" % (voff, srd(sr), soff, off, aux + " " if aux else ""), "X",
            ["v%d" % voff, "s%d" % soff, "m0"] + srdr(sr), [], tag=tag)
    i.cmt = m0
    return i
def store(src, soff, off, tag=None, p="a", sr=sO_):
    return Ins("buffer_store_dwordx4 %s, v%d, %s, s%d offen offset:%d%s" % (rng(p, src, 4), OS, srd(sr), soff, off, " " + cfg.o_aux if cfg.o_aux else ""), "X",
               R(p, src, 4) + ["v%d" % OS, "s%d" % soff] + srdr(sr), [], tag=tag)
def setm0(m0):
    return s2("s_add_u32", "m0", "s%d" % m0[0], str(m0[1]))

if cfg.qkord == 0:   QKSEQ = [(f // 4, q, f % 4) for f in range(8) for q in range(2)]
elif cfg.qkord == 1: QKSEQ = [(kt, q, s if q == 0 else 3 - s) for kt in range(2) for q in range(2) for s in range(4)]
else:                QKSEQ = [(c // 2, (0, 1, 1, 0)[c], s if c % 2 == 0 else 3 - s) for c in range(4) for s in range(4)]
def kfirst(f): return min(i for i, (kt, q, s) in enumerate(QKSEQ) if 4 * kt + s == f)
def klast(f): return max(i for i, (kt, q, s) in enumerate(QKSEQ) if 4 * kt + s == f)
def sdone(q, kt): return max(i for i, x in enumerate(QKSEQ) if x[:2] == (kt, q))
def qfirst(q, s): return min(i for i, x in enumerate(QKSEQ) if x[1:] == (q, s))
GRP = sorted([(q, kt) for q in range(2) for kt in range(2)], key=lambda g: sdone(*g))
KORD = sorted(range(8), key=kfirst)
def qk_block(h):
    L = []; seen = set()
    for kt, q, s in QKSEQ:
        L.append(mfma("v", S_(h, q, kt), "a", AK + 4 * (4 * kt + s), "a", AQ + 16 * (2 * h + q) + 4 * s, czero=((kt, q) not in seen)))
        seen.add((kt, q))
    return L
def pvpos(b, q):
    if cfg.qmaj: return 9 * q + 1 + b
    return 2 * b + q + (1 if b >= 3 else 0) + (1 if b >= 6 else 0)
def pfirst(q): return 9 * q if cfg.qmaj else q
def pv_block(h, first):
    L = []
    if cfg.qmaj:
        for q in range(2):
            L.append(mfma("a", AL + 4 * (2 * h + q), "a", AONE, "v", P_(h, q), czero=first))
            for b in range(8): L.append(mfma("v", O_(2 * h + q, b), "a", AV + 4 * b, "v", P_(h, q), czero=first))
        return L
    for b in range(8):
        for q in range(2):
            L.append(mfma("v", O_(2 * h + q, b), "a", AV + 4 * b, "v", P_(h, q), czero=first))
        if b in (2, 5):
            q = b // 4
            L.append(mfma("a", AL + 4 * (2 * h + q), "a", AONE, "v", P_(h, q), czero=first))
    return L

class Item:
    def __init__(self, ins, ready, dead, target, deps=()):
        self.ins = ins; self.ready = ready; self.dead = dead; self.target = target; self.deps = list(deps); self.gap = None
        k = ins.kind
        self.cost = 8 if k in ("T", "X", "W") else 4
class Gap:
    def __init__(self, m):
        self.pre = []; self.m = m; self.sh = [lsite()]; self.ds = []; self.va = []
    def flat(self): return self.pre + [self.m] + self.sh + self.ds + self.va

def schedule(gaps, items, name):
    n = len(gaps)
    todo = sorted(items, key=lambda i: (i.target, i.dead))
    for g in range(n):
        G = gaps[g]
        def ok(it):
            if it.ready > g: return False
            for d, dist in it.deps:
                if d.gap is None or d.gap + dist > g: return False
            return True
        def place(it):
            it.gap = g; todo.remove(it)
            (G.ds if it.ins.kind in ("D", "W", "X") else G.va).append(it.ins)
        def fits(it, used):
            k = it.ins.kind
            if any(x.kind == "X" for x in G.ds): return False
            if k == "X": return used == 0
            return True
        used = 0
        for it in [x for x in todo if x.dead <= g]:
            if ok(it) and fits(it, used): place(it); used += it.cost
        while used < 8:
            c = [it for it in todo if ok(it) and fits(it, used) and it.cost <= 8 - used]
            if not c: break
            it = c[0]
            if used == 0 and it.cost == 4:
                four = [x for x in c[1:] if x.cost == 4 or False]
                dep_next = [x for x in todo if x.cost == 4 and x is not it and x.ready <= g and all((d.gap is not None and d.gap + dist <= g) or (d is it and dist == 0) for d, dist in x.deps)]
                eight = [x for x in c if x.cost == 8]
                if not dep_next and eight and it.dead > g: it = eight[0]
            place(it); used += it.cost
        c = [it for it in todo if ok(it) and fits(it, used) and it.cost == 4 and it.target < g - cfg.lag]
        if c and used > 0:
            place(c[0]); used += 4
        while True:
            over = False
            dem = 0
            for it in sorted(todo, key=lambda i: min(i.dead, n - 1)):
                dem += 12 if it.ins.kind == "X" else it.cost
                d = min(it.dead, n - 1)
                if dem > 12 * (d - g): over = True; break
            if not over: break
            c = sorted([it for it in todo if ok(it) and fits(it, used)], key=lambda i: (min(i.dead, n - 1), i.target))
            if not c: break
            place(c[0]); used += c[0].cost
    if todo:
        raise Exception("%s: unscheduled items: %s" % (name, [(i.ins.text, i.ready, i.dead) for i in todo]))
    for it in items:
        if it.gap > it.dead: raise Exception("%s: deadline miss %s gap %d > %d" % (name, it.ins.text, it.gap, it.dead))

def softmax_items(h, base, rdy, dead, lo=(0, 0, 0), hi=(16, 16, 8), carry=None):
    its = []; M = {}; E = {}
    def reg(e):
        q, kt = GRP[e // 4]
        return q, kt, S_(h, q, kt) + e % 4
    for e in range(lo[0], hi[0] if not (cfg.fakepre or cfg.pre) else lo[0]):
        q, kt, r = reg(e)
        M[e] = Item(mul_(r), rdy(q, kt), dead(q) - 2, base + 2 * e); its.append(M[e])
    for e in range(lo[1], hi[1]):
        q, kt, r = reg(e)
        E[e] = Item(exp_(r), rdy(q, kt), dead(q) - 1, base + 2 * e + 1, [(M[e], 0)] if e in M else []); its.append(E[e])
    for j in range(lo[2], hi[2]):
        q, kt, r = reg(2 * j)
        deps = [(E[e], 1) for e in (2 * j, 2 * j + 1) if e in E]
        its.append(Item(cvt_(P_(h, q) + 2 * kt + j % 2, r, r + 1), rdy(q, kt), dead(q), base + 4 * j + 4, deps))
    return its

def kread(f, slot, dT):
    return dsr128("a", AK + 4 * f, KA + f % 4, slot * 8192 + (f // 4) * 4096, ("K", dT))
def vread(b, jj, slot, dT):
    return dstr(AV + 4 * b + 2 * jj, VA + b, slot * 8192 + jj * 4096, ("V", dT))
_uid = [0]
def kd(lead=None):
    _uid[0] += 1
    L = [dma(DA, sK_, sKo, 0, ("K", "a"), (sMKn, 0, _uid[0]), cfg.kv_aux), dma(DB, sK_, sKo, 1024, ("K", "b"), (sMKn, 0, _uid[0]), cfg.kv_aux)]
    for x in L: x.needs = lead
    return L
def vd(lead=None):
    _uid[0] += 1
    L = [dma(DA, sV_, sVo, 0, ("V", "a"), (sMVn, LDS_V, _uid[0]), cfg.kv_aux), dma(DB, sV_, sVo, 1024, ("V", "b"), (sMVn, LDS_V, _uid[0]), cfg.kv_aux)]
    for x in L: x.needs = lead
    return L
def kv_dmas(t, lead):
    return kd(lead + 1) + vd(lead)
def q_dmas(h, du, msgpr=sMS, mconst=0):
    return [dma(DA if i % 2 == 0 else DB, sQ_, sQT + 4 * h + i // 2, (i % 2) * 1024, ("Q", h, du), (msgpr, mconst + (i // 2) * 2048), cfg.q_aux) for i in range(8)]
def q_reads(dst, h, du, addr=QA, p="a"):
    return [dsr128(p, dst + 16 * q + 4 * s, addr + s, q * 4096, ("Q", h, du)) for q in range(2) for s in range(4)]

def pre_ops(i, k):
    r = QR + i; a = PT + 2 * k
    return [v2("v_lshlrev_b32", "v%d" % a, "16", "v%d" % r), v2("v_and_b32", "v%d" % (a + 1), "0xffff0000", "v%d" % r), mul_(a), mul_(a + 1), cvt_(r, a, a + 1)]
def pre_burst(dst, writes=True):
    L = []
    def stage(i, n):
        r = QR + i; a = PT + 2 * (i % 3)
        if n == 0: return [v2("v_lshlrev_b32", "v%d" % a, "16", "v%d" % r), v2("v_and_b32", "v%d" % (a + 1), "0xffff0000", "v%d" % r)]
        if n == 1: return [valu("v_pk_mul_f32 v[%d:%d], v[%d:%d], s[%d:%d]" % (a, a + 1, a, a + 1, sC2, sC2 + 1), R("v", a, 2), R("v", a, 2), "K")]
        if n == 2: return [cvt_(r, a, a + 1)]
        return [v1("v_accvgpr_write_b32", "a%d" % (dst + i), "v%d" % r)] if writes else []
    for i in range(32 + 3):
        for n in (3, 2, 1, 0):
            if 0 <= i - n < 32: L += stage(i - n, n)
    return L
def epi_burst(h, check=True, defer=False):
    L = []
    for q in range(2): L.append(v1("v_accvgpr_read_b32", "v%d" % (ET + q), "a%d" % (AL + 4 * (2 * h + q))))
    for q in range(2): L.append(v1("v_rcp_f32", "v%d" % (ER + 2 * q), "v%d" % (ET + q), "T"))
    if check:
        for q in range(2): L.append(v2("v_subrev_u32", "v%d" % (EU + q), "s%d" % sLO, "v%d" % (ET + q)))
        L.append(valu("v_cmp_le_u32 vcc, s%d, v%d" % (sRG, EU), ["s%d" % sRG, "v%d" % EU], ["vcc"]))
        L.append(valu("v_cmp_le_u32 s[%d:%d], s%d, v%d" % (sCMP, sCMP + 1, sRG, EU + 1), ["s%d" % sRG, "v%d" % (EU + 1)], R("s", sCMP, 2)))
    else:
        L.append(nop(1))
    for q in range(2):
        for b in range(8):
            for i in range(2):
                a = O_(2 * h + q, b) + 2 * i
                L.append(valu("v_pk_mul_f32 v[%d:%d], v[%d:%d], v[%d:%d] op_sel_hi:[1,0]" % (a, a + 1, a, a + 1, ER + 2 * q, ER + 2 * q + 1),
                              R("v", a, 2) + ["v%d" % (ER + 2 * q)], R("v", a, 2), "K"))
    sor = []
    if check:
        sor = [salu("s_or_b64 s[%d:%d], s[%d:%d], vcc" % (sACC, sACC + 1, sACC, sACC + 1), ["vcc"] + R("s", sACC, 2), R("s", sACC, 2)),
               salu("s_or_b64 s[%d:%d], s[%d:%d], s[%d:%d]" % (sACC, sACC + 1, sACC, sACC + 1, sCMP, sCMP + 1), R("s", sCMP, 2) + R("s", sACC, 2), R("s", sACC, 2))]
        if not cfg.finchk: L += sor
    for q in range(2):
        for bp in range(4):
            a = O_(2 * h + q, 2 * bp)
            for i in range(4): L.append(cvt_(a + i, a + 2 * i, a + 2 * i + 1))
            if check and cfg.finchk and (q, bp) != (0, 0):
                pa = a - 8
                L.append(mfma("a", ACHK, "a", AZERO, "v", pa, czero=(h == 0 and (q, bp) == (0, 1))))
                if sor: L.append(sor.pop(0))
    last = [mfma("a", ACHK, "a", AZERO, "v", O_(2 * h + 1, 6))] if check and cfg.finchk else []
    if defer: LASTCHK[h] = last
    elif last: L += [nop(2)] + last
    return L
def flag_ops():
    L = []
    if cfg.finchk:
        L.append(v1("v_accvgpr_read_b32", "v%d" % ET, "a%d" % ACHK))
        L.append(valu("v_cmp_u_f32 vcc, v%d, v%d" % (ET, ET), ["v%d" % ET], ["vcc"]))
        L.append(nop(2))
        L.append(salu("s_or_b64 s[%d:%d], s[%d:%d], vcc" % (sACC, sACC + 1, sACC, sACC + 1), ["vcc"] + R("s", sACC, 2), R("s", sACC, 2)))
    L.append(salu("s_cmp_lg_u64 s[%d:%d], 0" % (sACC, sACC + 1), R("s", sACC, 2), ["scc"]))
    L.append(salu("s_addc_u32 s%d, s%d, s%d" % (sBAD, sBAD, sBAD), ["scc", "s%d" % sBAD], ["s%d" % sBAD]))
    L.append(salu("s_mov_b64 s[%d:%d], 0" % (sACC, sACC + 1), [], R("s", sACC, 2)))
    L.append(salu("s_mov_b64 vcc, 0", [], ["vcc"]))
    return L
def o_writes(h):
    L = []
    for q in range(2):
        for bp in range(4):
            a = O_(2 * h + q, 2 * bp); addr = OW + bp % 2
            L.append(Ins("ds_write_b128 v%d, %s offset:%d" % (addr, rng("v", a, 4), (bp // 2) * 128 + q * 4096), "W", ["v%d" % addr] + R("v", a, 4), []))
    return L
def o_reads(h, du):
    L = []
    for j in range(8):
        for i in range(2):
            d = AO + 32 * h + 4 * j + 2 * i; addr = OR_ + 2 * (j % 2) + i
            L.append(Ins("ds_read_b64 %s, v%d offset:%d" % (rng("a", d, 2), addr, j * 1024), "D", ["v%d" % addr], R("a", d, 2), tag=("O", h, du)))
    return L
def tab_add(t): return [s2("s_add_u32", "s%d" % (t + i), "s%d" % (t + i), str(USTRIDE)) for i in range(8)]
def o_stores(h):
    return [store(AO + 32 * h + 4 * j, sOT + 4 * h + j // 2, (j % 2) * 1024) for j in range(8)]
def park_stores():
    return [store(QR + 4 * j, sOT + 4 + j // 2, (j % 2) * 1024, p="v", sr=sO2) for j in range(8)]
USTRIDE = 131072 if cfg.hmap == 0 else 128 * 131072
KSTEP = (8192, 2048, 4096)[cfg.kvmap]
def adv(which, cross):
    o, t, b = (sKo, sKt, sKb) if which == "K" else (sVo, sVt, sVb)
    m = sMKn if which == "K" else sMVn
    if cfg.flag_:
        assert not cfg.rot
        L = [s2("s_add_u32", "s%d" % o, "s%d" % o, "8192")]
        if USTRIDE != 131072:
            L += [s2("s_bfe_u32", "s%d" % t, "s%d" % o, "0x10011"), s2("s_mul_i32", "s%d" % t, "s%d" % t, str(USTRIDE - 131072)), s2("s_add_u32", "s%d" % o, "s%d" % o, "s%d" % t)]
        return L + [s2("s_add_u32", "s%d" % m, "s%d" % m, "8192"), s2("s_and_b32", "s%d" % m, "s%d" % m, "0xffff")]
    M = [s2("s_add_u32", "s%d" % m, "s%d" % m, "8192"), s2("s_and_b32", "s%d" % m, "s%d" % m, "0xffff")]
    if not cfg.rot:
        return M + [s2("s_add_u32", "s%d" % o, "s%d" % o, str(KSTEP + (USTRIDE - 16 * KSTEP if cross else 0)))]
    L = M + [s2("s_add_u32", "s%d" % t, "s%d" % t, str(KSTEP)), s2("s_and_b32", "s%d" % t, "s%d" % t, str(16 * KSTEP - 1))]
    if cross: L.append(s2("s_add_u32", "s%d" % b, "s%d" % b, str(USTRIDE)))
    L.append(s2("s_add_u32", "s%d" % o, "s%d" % b, "s%d" % t))
    return L

LEAD = cfg.lead
LAT = cfg.lat
B0, B1, B2, B3, NG = 0, 16, 34, 50, 68
NW0 = 5
LASTCHK = {}
RAMP_IT = [2, 4, 6, 8][cfg.rskip:cfg.rskip + cfg.lead - cfg.l0]
RAMPS = {}
QA_IT = [cfg.qa0 + i for i in range(4)]; QB_IT = [8, 9, 10, 11]; ST_IT = [1, 6, 7, 12, 13, 14, 15]
QRD = cfg.qa0 + 5; QB_IT = [QRD + 1 + i for i in range(4)] if QRD <= 7 else [QRD + 1, QRD + 2]
ST_IT = ([1] + [t for t in range(2, 16) if t not in QA_IT and t not in QB_IT] + [8])
ST_IT = sorted(ST_IT[:8])
ST_MAP = {t: [2 * i, 2 * i + 1] for i, t in enumerate(ST_IT)} if cfg.stmode == 0 else {(k + 1) % 16: [k] for k in range(16)}
if cfg.stmode == 2: ST_MAP = {6: [0, 1, 2, 3], 7: [4, 5, 6, 7], 12: [8, 9, 10, 11], 13: [12, 13, 14, 15]}
QCNT_A = [2, 2, 2, 2]; QCNT_B = [8 // len(QB_IT)] * len(QB_IT)
if cfg.stmode == 4:
    QA_IT = [2, 3, 4]; QCNT_A = [3, 3, 2]; QRD = 6; QB_IT = [7, 8]; QCNT_B = [4, 4]
    ST_MAP = {9: [0, 1], 10: [2, 3], 11: [4, 5], 12: [6, 7], 13: [8, 9, 10], 14: [11, 12, 13], 15: [14, 15]}
if cfg.stmode == 5:
    QA_IT = [2, 3, 4]; QCNT_A = [3, 3, 2]; QRD = 6; QB_IT = [7, 8, 9]; QCNT_B = [3, 3, 2]
    ST_MAP = {10: [0, 1, 2], 11: [3, 4, 5], 12: [6, 7], 13: [8, 9, 10], 14: [11, 12, 13], 15: [14, 15]}
if cfg.park:
    assert cfg.stmode == 0 and not cfg.pre
    ST_MAP = {1: [0, 1], 6: [8, 9], 7: [10, 11], 8: [12, 13], 12: [14, 15], 13: [2, 3], 14: [4, 5], 15: [6, 7]}
if cfg.stmode == 3: ST_MAP = {12: [0, 1, 2, 3], 13: [4, 5, 6, 7], 14: [8, 9, 10, 11], 15: [12, 13, 14, 15]}

class Seg:
    def __init__(self): self.gaps = []; self.sitems = []; self.head = []; self.tail = []; self.post = []

def build_iter(t, first=False):
    sg = Seg()
    if first:
        b0, b1, b2, b3, ng = 0, None, 16, 32, 50
        mf = qk_block(0) + qk_block(1) + pv_block(0, True)
    else:
        b0, b1, b2, b3, ng = B0, B1, B2, B3, NG
        mf = qk_block(0) + pv_block(1, t == 1) + qk_block(1) + pv_block(0, t == 0)
    gaps = [Gap(m) for m in mf]
    items = []
    INF = 10 ** 6
    slot = t % 8; nslot = (t + 1) % 8
    isbar = (t % cfg.barper == 0)
    bar_gap = cfg.bargap
    if not first:
        items += softmax_items(1, cfg.sm0 + 34 - NG, lambda q, kt: 0, lambda q: b1 + pfirst(q) - 2, lo=(cfg.e0, cfg.e0, cfg.c0))
        for i in range(cfg.f0, 8):
            f = KORD[i]
            items.append(Item(kread(f, slot, 0), 0, kfirst(f) - LAT, cfg.kt0 + cfg.kts * i - NG))
    items += softmax_items(0, (cfg.sm0 if not first else 12), lambda q, kt: b0 + sdone(q, kt) + cfg.rdy, lambda q: b3 + pfirst(q) - 2)
    items += softmax_items(1, b3 - B3 + cfg.sm0 + 34, lambda q, kt: b2 + sdone(q, kt) + cfg.rdy, lambda q: INF, hi=(cfg.e0, cfg.e0, cfg.c0))
    for b in range(8):
        for jj in range(2):
            rdy = (b1 + pvpos(b, 1)) if not first else cfg.fbar + 1
            items.append(Item(vread(b, jj, slot, 0), max(rdy, bar_gap + 1), b3 + pvpos(b, 0) - LAT, (cfg.vt0 + cfg.vts * (2 * b + jj)) if not first else cfg.fbar + 1 + b + jj * 0.5))
    for i in range(cfg.f0):
        f = KORD[i]
        items.append(Item(kread(f, nslot, 1), max(b2 + klast(f), cfg.fbar + 1 if first else 0), min(ng - 1, ng + kfirst(f) - LAT), b3 - B3 + cfg.kt0 + cfg.kts * i))
    def chain(lst, targets, ready, dead=INF, dist=1, after=None):
        p = after; res = []
        for k, (ins, tgt) in enumerate(zip(lst, targets)):
            dd = dead[k] if isinstance(dead, list) else dead
            it = Item(ins, ready, dd, tgt, [(p, dist)] if p else []); items.append(it); p = it; res.append(it)
        return res
    if first:
        lst = []
        for n in range(cfg.l0 + 1 + cfg.front): lst += [("V", vd()), ("K", kd())]
        if cfg.early: lst = lst[1:]
        p = None; tg = 1
        for k, (w, pr) in enumerate(lst):
            rdy = 1 if k < 8 - cfg.early else cfg.fbar + 2
            its = chain(pr, [tg, tg + 1], rdy, after=p, dist=1); p = its[1]; tg += 2 if k < 4 else 3
            sg.post.append((its[1], adv(w, False)))
        gaps[7].sh.append(vsite([("Q", 1, 0)]))
        if cfg.pre:
            for i, ins in enumerate(q_reads(QR, 1, 0, addr=TM, p="v")): items.append(Item(ins, 8, 11, 8 + 0.5 * i))
            gaps[16].pre += [lsite()] + pre_burst(AQ + 32) + [nop(1)]
        else:
          for i, ins in enumerate(q_reads(AQ + 32, 1, 0, addr=TM)):
            items.append(Item(ins, 8, 16 - LAT + qfirst(i // 4, i % 4) + 1, 8 + 0.5 * qfirst(i // 4, i % 4)))
        al = lsite(); al.needs = "all"
        gaps[cfg.fbar].sh += [al, vsite([("V", 0), ("K", 1)]), bar()]
        if cfg.barper == 2: gaps[ng - 1].va += [vsite([("V", 1), ("K", 2)]), bar()]
    else:
        if cfg.front:
            assert cfg.barper == 2
            if isbar:
                p = None
                for j in range(2):
                    dm = kv_dmas(t, LEAD + j)
                    kvits = chain(dm, [cfg.x0 + cfg.fxs * (4 * j + i) for i in range(4)], bar_gap + 2, after=p, dist=cfg.fxs - 1)
                    p = kvits[3]
                    sg.post.append((kvits[1], adv("K", (t + j + LEAD + 2) % 16 == 0)) if j == 0 else None) if False else None
                    for a in adv("K", (t + j + LEAD + 2) % 16 == 0): sg.sitems.append((a, ("after", kvits[1]), None))
                    for a in adv("V", (t + j + LEAD + 1) % 16 == 0): sg.sitems.append((a, ("after", kvits[3]), None))
        else:
            dm = kv_dmas(t, LEAD)
            dmt = [cfg.x0 + cfg.xs * i for i in range(4)] if isbar else [cfg.x1 + cfg.xs * i for i in range(4)]
            kvits = chain(dm, dmt, (bar_gap + 2) if isbar else 1)
            for a in adv("K", (t + LEAD + 2) % 16 == 0): sg.sitems.append((a, ("after", kvits[1]), None))
            for a in adv("V", (t + LEAD + 1) % 16 == 0): sg.sitems.append((a, ("after", kvits[3]), None))
        if isbar:
            needs = [("V", 0), ("K", 1)] + ([("V", 1), ("K", 2)] if cfg.barper == 2 else [])
            if t in RAMP_IT:
                r = Ins("s_cbranch_vccnz L_ramp%dA\nL_back%d:" % (t, t), "RAMP", ["vcc"]); r.cmt = "ramp%d" % t
                gaps[bar_gap - 2].sh.append(r)
                k = RAMP_IT.index(t)
                for role in ("A", "B"):
                    L = [vsite(needs)]
                    for w, pr in (("V", vd()), ("K", kd())):
                        follower = (w == "V") == (role == "A")
                        if follower and k >= len(RAMP_IT) - cfg.flag_: continue
                        L += [setm0(pr[0].cmt), nop(1)] + pr + adv(w, False)
                    if t == RAMP_IT[-1]: L.append(salu("s_mov_b64 vcc, 0", [], ["vcc"]))
                    L.append(raw("s_branch L_back%d" % t, "BR"))
                    if role == "A": L[0:0] = [raw("s_bitcmp1_b32 s2, 3"), raw("s_cbranch_scc1 L_ramp%dB" % t)]
                    RAMPS["ramp%d%s" % (t, role)] = L
            gaps[bar_gap - 1].sh.append(vsite(needs))
            gaps[bar_gap].sh.append(bar())
    XT = [cfg.xt, cfg.xt + cfg.xts]
    if not first and t == 0:
        gaps[0].pre += epi_burst(0, defer=True)
        gaps[1].pre += LASTCHK[0]
        W = chain(o_writes(0), [1.5 + 3.5 * i for i in range(8)], 0, 38)
        chain(o_reads(0, -1), [29 + 1.1 * j for j in range(16)], 0, 47, dist=0, after=W[7])
        gaps[48].pre += epi_burst(1, defer=True)
        gaps[49].pre += LASTCHK[1]
        chain(o_writes(1)[:NW0], [49.5 + 4 * i for i in range(NW0)], 48)
        for i in range(16, 32) if not cfg.pre else []:
            items.append(Item(v1("v_accvgpr_mov_b32", "a%d" % (AQ + 32 + i), "a%d" % (AQN + i)), 0, b2 - 2, 2 * (i - 16)))
        for i in range(32) if cfg.pre else []:
            items.append(Item(v1("v_accvgpr_write_b32", "a%d" % (AQ + 32 + i), "v%d" % (QR + i)), 0, b2 - 2, i))
        fo = flag_ops()
        if cfg.finchk:
            i1 = Item(fo[0], 56, INF, 56); i2 = Item(fo[1], 56, 62, 57, [(i1, 0)]); items += [i1, i2]
            sg.sitems.append((fo[3], ("after2", i2), None)); sg.sitems.append(([fo[4], fo[5]], ("after2", i2), None))
            sg.sitems.append((fo[6], ("after2", i2), None)); sg.sitems.append((fo[7], ("after2", i2), None))
        else:
            gaps[60].pre += fo
    if t == 1:
        ws = o_writes(1)[NW0:]
        W = chain(ws, [0.5 + 4 * i for i in range(len(ws))], 0, [b1 + pvpos(2 * ((NW0 + i) % 4), (NW0 + i) // 4) - 1 for i in range(len(ws))])
        chain(o_reads(1, -1), [16 + 2 * j for j in range(16)], 0, INF, dist=0, after=W[-1])
        al = lsite(); al.needs = "all"; gaps[ng - 1].sh.insert(1, al)
    if not first and ST_MAP.get(t):
        ks = ST_MAP[t]
        tg = {1: [cfg.stgap], 2: XT, 3: [46, 53, 60], 4: [36, 42, 48, 54]}[len(ks)] if t not in (0, 1) else ([50, 54] if t == 1 else [20])
        st = chain([(park_stores() if cfg.park and k >= 8 else o_stores(k // 8))[k % 8] for k in ks], tg, 18, 65 if t != 0 else 30)
        for k, it in zip(ks, st):
            if k == (7 if cfg.park else 15):
                if cfg.park: sg.sitems.append((smov("s%d" % (sO2 + 2), "s%d" % (sO_ + 2)), ("after", it), None))
                for a in tab_add(sOT): sg.sitems.append((a, ("after", it), None))
            if k == (7 if cfg.park else 15):
                sg.sitems.append((smov("s%d" % (sO_ + 2), "s%d" % sONR), ("after", it), None))
    for h, its in ((1 - cfg.pre, QA_IT), (cfg.pre, QB_IT)):
        if t in its:
            k = its.index(t)
            if k == 0:
                pass
            cn = QCNT_A if its is QA_IT else QCNT_B
            npi = cn[k]; o = sum(cn[:k])
            qd = chain(q_dmas(h, 1)[o:o + npi], {2: XT, 3: [46, 53, 60], 4: [44, 50, 56, 62]}[npi], 43, 65)
    if t == QB_IT[-1] + 1:
        class Z: gap = -1
        for a in tab_add(sQT): sg.sitems.append((a, ("after", Z), None))
    if cfg.wbl2 and t == cfg.wbl2:
        sg.head += [raw("s_cmp_lg_u32 s%d, 0" % sCNT), raw("s_cbranch_scc1 L_nowb"), raw("s_cmp_lg_u32 s%d, 0" % sW), raw("s_cbranch_scc1 L_nowb"),
                    raw("buffer_wbl2 sc1"), raw("L_nowb:")]
    if cfg.park and t in (13, 14):
        for i in range(16):
            r = 16 * (t - 13) + i
            items.append(Item(v1("v_accvgpr_read_b32", "v%d" % (QR + r), "a%d" % (AO + 32 + r)), 0, INF, 2 + 4 * i))
    if cfg.park and t == 10:
        r = Ins("s_cbranch_scc1 L_last\nL_lastback:", "LAST", ["scc"]); r.cmt = "last"
        sg.head += [raw("s_cmp_eq_u32 s%d, 0" % sCNT), r]
        L = [s2("s_add_u32", "s%d" % (sLT + i), "s%d" % (sOT + 4 + i), str(USTRIDE)) for i in range(4)]
        L += [store(AO + 32 + 4 * j, sLT + j // 2, (j % 2) * 1024) for j in range(8)] + [raw("s_branch L_lastback", "BR")]
        RAMPS["last"] = L
    if t == QRD:
        gaps[29].sh.append(vsite([("Q", 1 - cfg.pre, 1)]))
        for i, ins in enumerate(q_reads(AQN, 1, 1) if not cfg.pre else q_reads(QR, 0, 1, p="v")):
            items.append(Item(ins, 30, INF, 30 + 4 * i))
        al = lsite(); al.needs = "all"; gaps[ng - 1].sh.insert(1, al)
    if cfg.fakepre and 8 <= t <= 14:
        for i in range(23):
            r = 2 + (i % 4)
            op = [v2("v_and_b32", "v%d" % r, "0xffff0000", "v10"), v2("v_lshlrev_b32", "v%d" % r, "16", "v10"), mul_(r), mul_(r), cvt_(8, 2, 3)][i % 5]
            items.append(Item(op, 0, INF, 3 * i))
    if cfg.fakepre and t == 15:
        for i in range(32):
            sg.tail += [v2("v_and_b32", "v3", "0xffff0000", "v10"), v2("v_lshlrev_b32", "v2", "16", "v10"),
                        valu("v_pk_mul_f32 v[4:5], v[2:3], v[6:7]", [], [], "K"), cvt_(8, 4, 5), v1("v_accvgpr_write_b32", "a%d" % (AQN + i), "v8")]
    if cfg.pre and QRD < t < 15:
        n = 14 - QRD; lo_ = (t - QRD - 1) * 32 // n; hi_ = (t - QRD) * 32 // n
        last = {}
        for j, i in enumerate(range(lo_, hi_)):
            k = i % 3; p = last.get(k); base = j * (ng - 6.0) / (hi_ - lo_)
            for m, op in enumerate(pre_ops(i, k)):
                it = Item(op, 0, INF, base + 2.2 * m, [(p, 0)] if p else []); items.append(it); p = it
            last[k] = p
    if cfg.pre and t == 15:
        gaps[15].sh.append(vsite([("Q", 1, 1)]))
        Wr = [Item(v1("v_accvgpr_write_b32", "a%d" % (AQ + i), "v%d" % (QR + i)), 16, 56, 16 + i) for i in range(32)]
        items += Wr
        for i, ins in enumerate(q_reads(QR, 1, 1, p="v")):
            items.append(Item(ins, 16, ng - 6, 22 + 4.5 * i, [(w, 1) for w in Wr[4 * i:4 * i + 4]]))
        sg.tail += [lsite()] + pre_burst(None, writes=False)
    if t == 15 and not cfg.pre:
        gaps[15].sh.append(vsite([("Q", 0, 1)]))
        for i, ins in enumerate(q_reads(AQ, 0, 1)):
            items.append(Item(ins, 16, ng - 1 - LAT, 17 + 5 * i))
        for i in range(16):
            items.append(Item(v1("v_accvgpr_mov_b32", "a%d" % (AQ + 32 + i), "a%d" % (AQN + i)), b3, INF, b3 + i))
    schedule(gaps, items, "it%d%s" % (t, "f" if first else ""))
    for it, ops in sg.post: gaps[it.gap].va += ops
    sg.gaps = gaps
    return sg

def place_scalar(sg):
    gaps = sg.gaps
    def busy(G): return sum(1 for x in G.sh if (x.kind not in ("LSITE", "VSITE")) ) + (1 if any(x.kind in ("LSITE", "VSITE") and x.n is not None for x in G.sh) else 0)
    lastpos = {}
    ntail = 0
    for ins, (how, it), _ in sg.sitems:
        lst = ins if isinstance(ins, list) else [ins]
        lo = max(it.gap + (1 if how == "after2" else 0), lastpos.get(id(it), -1)) + 1
        hi = len(gaps)
        for k in range(it.gap + 1, len(gaps)):
            if any(x.kind == "X" and ((x.rd & lst[0].wr) - {"scc"} or (x.cmt and "s%d" % x.cmt[0] in lst[0].wr)) for x in gaps[k].ds): hi = k - 1; break
        c = [k for k in range(lo, hi) if busy(gaps[k]) == 0]
        if c: gaps[c[0]].sh += lst; lastpos[id(it)] = c[0]
        elif hi < len(gaps):
            k = max(lo - 1, min(hi - 1, lo)); gaps[k].sh += lst; lastpos[id(it)] = k - 1
        else: sg.tail[ntail:ntail] = lst; ntail += len(lst); lastpos[id(it)] = len(gaps)
    cur = None; lastx = -1
    for g, G in enumerate(gaps):
        if any("s_mov_b32 m0" in x.text for x in G.pre): cur = None; lastx = max(lastx, g - 1)
        if any(x.kind == "RAMP" for x in G.sh): cur = None; lastx = max(lastx, g)
        for x in G.ds:
            if x.kind == "X" and "m0" in x.rd:
                if cur != x.cmt:
                    src = "s%d" % x.cmt[0]
                    lw = max([k for k in range(g) if any(src in y.wr for y in gaps[k].sh + gaps[k].va)] + [-1])
                    cands = [k for k in range(max(lastx + 1, lw), g)]
                    free = [k for k in cands if busy(gaps[k]) == 0]
                    if cands:
                        k = free[-1] if free else cands[-1]
                        gaps[k].sh.append(setm0(x.cmt))
                    elif any("s_mov_b32 m0" in y.text for y in G.pre):
                        G.pre.append(setm0(x.cmt))
                    else:
                        gaps[lastx].va.append(setm0(x.cmt))
                    cur = x.cmt
                lastx = g

def flat(sg):
    L = list(sg.head)
    for G in sg.gaps: L += G.flat()
    return L + sg.tail

def prologue():
    L = []
    A = L.append
    A(raw("s_cmp_ge_u32 s2, 256")); A(raw("s_cbranch_scc1 L_end"))
    A(raw("s_load_dwordx4 s[36:39], s[0:1], 0")); A(raw("s_load_dwordx4 s[40:43], s[0:1], 16"))
    A(v2("v_lshrrev_b32", "v1", "6", "v0")); A(v2("v_and_b32", "v0", "63", "v0"))
    A(valu("v_readfirstlane_b32 s%d, v1" % sW, ["v1"], ["s%d" % sW]))
    A(v2("v_lshrrev_b32", "v2", "4", "v0"))
    A(v2("v_and_b32", "v3", "15", "v0"))
    if cfg.xmap == 0:
        A(raw("s_and_b32 s45, s2, 7")); A(raw("s_lshr_b32 s46, s2, 4")); A(raw("s_lshl_b32 s45, s45, 4")); A(raw("s_add_u32 s45, s45, s46"))
    else:
        A(raw("s_and_b32 s45, s2, 7")); A(raw("s_lshr_b32 s46, s2, 4")); A(raw("s_lshl_b32 s46, s46, 3")); A(raw("s_add_u32 s45, s45, s46"))
    if cfg.rot:
        A(raw("s_mul_i32 s%d, s45, %d" % (sKt, cfg.rot * KSTEP))); A(raw("s_and_b32 s%d, s%d, %d" % (sKt, sKt, 16 * KSTEP - 1))); A(smov("s%d" % sVt, "s%d" % sKt))
    if cfg.rotq: A(raw("s_mul_i32 s82, s45, %d" % (cfg.rotq * PSTEP)))
    A(raw("s_lshl_b32 s45, s45, %d" % (19 if cfg.hmap == 0 else 17)))
    A(raw("s_bfe_u32 s46, s2, 0x10003")); A(raw("s_lshl_b32 s46, s46, %d" % HSH)); A(raw("s_add_u32 s46, s46, s45"))
    A(s2("s_lshl_b32", "s%d" % sMK, "s%d" % sW, "11"))
    A(v2("v_lshlrev_b32", "v4", "1", "v2")); A(v2("v_xor_b32", "v4", "v3", "v4")); A(v2("v_lshlrev_b32", "v4", "4", "v4"))
    A(v3("v_lshl_add_u32", "v%d" % DA, "v2", "8", "v4")); A(v2("v_xor_b32", "v%d" % DB, "0x80", "v%d" % DA))
    A(smov("s%d" % sMKn, "s%d" % sMK)); A(smov("s%d" % sMVn, "s%d" % sMK))
    if cfg.cpf:
        A(raw("s_lshr_b32 s%d, s2, 3" % sT)); A(raw("s_lshl_b32 s%d, s%d, 2" % (sT, sT))); A(raw("s_add_u32 s%d, s%d, s%d" % (sT, sT, sW)))
        A(raw("s_and_b32 s%d, s%d, 31" % (sT, sT))); A(raw("s_lshl_b32 s%d, s%d, 10" % (sT, sT)))
        A(raw("s_min_u32 s%d, s%d, L_end - L_pc - 1024" % (sT, sT)))
        A(v2("v_lshlrev_b32", "v5", "4", "v0")); A(v2("v_add_u32", "v5", "s%d" % sT, "v5"))
        A(raw("s_getpc_b64 s[58:59]\nL_pc:"))
        A(Ins("global_load_dwordx4 v[72:75], v5, s[58:59]", "X", ["v5"], R("v", 72, 4)))
    A(s2("s_lshl_b32", "s%d" % sMS, "s%d" % sW, "13")); A(s2("s_add_u32", "s%d" % sMS, "s%d" % sMS, str(LDS_S)))
    A(s2("s_lshl_b32", "s%d" % sQo, "s%d" % sW, str(WSH)))
    for i in range(8):
        if cfg.rotq:
            A(s2("s_add_u32", "s%d" % (sQT + i), "s82", str(i * PSTEP))); A(s2("s_and_b32", "s%d" % (sQT + i), "s%d" % (sQT + i), str(8 * PSTEP - 1)))
            A(s2("s_add_u32", "s%d" % (sQT + i), "s%d" % (sQT + i), "s%d" % sQo))
        else: A(s2("s_add_u32", "s%d" % (sQT + i), "s%d" % sQo, str(i * PSTEP)))
    for b in (sQ_, sK_, sV_, sO_): A(smov("s%d" % (b + 3), "0x20000"))
    A(smov("s%d" % (sK_ + 2), str(3 * USTRIDE + 131072))); A(smov("s%d" % (sV_ + 2), str(3 * USTRIDE + 131072)))
    A(smov("s%d" % (sQ_ + 2), str(3 * USTRIDE + QEND))); A(smov("s%d" % sONR, str(3 * USTRIDE + QEND))); A(smov("s%d" % (sO_ + 2), "0"))
    assert not cfg.flag_
    if cfg.kvmap == 0: A(s2("s_lshl_b32", "s%d" % sKo, "s%d" % sW, "11"))
    elif cfg.kvmap == 1: A(s2("s_lshl_b32", "s%d" % sKo, "s%d" % sW, "15"))
    else:
        A(s2("s_and_b32", "s%d" % sKo, "s%d" % sW, "1")); A(s2("s_lshl_b32", "s%d" % sKo, "s%d" % sKo, "11"))
        A(s2("s_lshr_b32", "s%d" % sVo, "s%d" % sW, "1")); A(s2("s_lshl_b32", "s%d" % sVo, "s%d" % sVo, "16")); A(s2("s_add_u32", "s%d" % sKo, "s%d" % sKo, "s%d" % sVo))
    if cfg.rot:
        A(smov("s%d" % sKb, "s%d" % sKo)); A(smov("s%d" % sVb, "s%d" % sKo)); A(s2("s_add_u32", "s%d" % sKo, "s%d" % sKo, "s%d" % sKt))
    A(smov("s%d" % sVo, "s%d" % sKo))
    A(raw("s_waitcnt lgkmcnt(0)"))
    if cfg.stamp2: L += stamp()
    for b, p, o in ((sK_, 38, 45), (sQ_, 36, 46), (sV_, 40, 45), (sO_, 42, 46)):
        A(salu("s_add_u32 s%d, s%d, s%d" % (b, p, o), [], ["s%d" % b])); A(salu("s_addc_u32 s%d, s%d, 0" % (b + 1, p + 1), [], ["s%d" % (b + 1)]))
    def issue(lst):
        cur = None
        for x in lst:
            if x.kind == "X" and cur != x.cmt:
                A(setm0(x.cmt)); A(nop(1)); cur = x.cmt
            A(x)
    k0 = kd(); v0 = vd() if cfg.early else None
    q0 = q_dmas(0, 0)
    if cfg.early:
        issue([k0[0], q0[0], v0[0], k0[1], v0[1]] + adv("K", False) + adv("V", False) + q0[1:])
    else:
        issue(k0 + adv("K", False) + q0)
    A(s2("s_sub_u32", "s%d" % sT, "s%d" % sMS, "32768"))
    issue(q_dmas(1, 0, msgpr=sT))
    if cfg.stamp2: L += stamp()
    for i in range(8): A(s2("s_sub_u32", "s%d" % (sOT + i), "s%d" % (sQT + i), str(USTRIDE * (2 if cfg.park and i >= 4 else 1))))
    if cfg.park:
        A(smov("s%d" % sO2, "s%d" % sO_)); A(smov("s%d" % (sO2 + 1), "s%d" % (sO_ + 1))); A(smov("s%d" % (sO2 + 2), "0")); A(smov("s%d" % (sO2 + 3), "0x20000"))
    L += tab_add(sQT)
    A(v2("v_and_b32", "v5", "7", "v3")); A(v2("v_lshlrev_b32", "v6", "1", "v5"))
    for s in range(4):
        A(v2("v_add_u32", "v7", str(4 * s), "v2")); A(v2("v_xor_b32", "v7", "v7", "v6")); A(v2("v_lshlrev_b32", "v7", "4", "v7"))
        A(v3("v_lshl_add_u32", "v%d" % (KA + s), "v3", "8", "v7"))
        A(v2("v_add_u32", "v%d" % (QA + s), "s%d" % sMS, "v%d" % (KA + s)))
        A(v2("v_subrev_u32", "v%d" % (TM + s), "0x8000", "v%d" % (QA + s)))
    A(v2("v_lshrrev_b32", "v76", "2", "v0"))
    A(v2("v_and_b32", "v77", "7", "v76")); A(v2("v_lshlrev_b32", "v77", "1", "v77"))
    A(valu("v_bfe_u32 v78, v0, 1, 1", ["v0"], ["v78"]))
    A(v2("v_and_b32", "v79", "1", "v0")); A(v2("v_lshlrev_b32", "v79", "3", "v79"))
    A(v3("v_lshl_add_u32", "v79", "v76", "8", "v79")); A(v2("v_add_u32", "v79", str(LDS_V), "v79"))
    for b in range(8):
        A(v2("v_add_u32", "v7", str(2 * b), "v78")); A(v2("v_xor_b32", "v7", "v7", "v77"))
        A(v3("v_lshl_add_u32", "v%d" % (VA + b), "v7", "4", "v79"))
    A(v2("v_lshlrev_b32", "v79", "8", "v3")); A(v2("v_add_u32", "v79", "s%d" % sMS, "v79"))
    A(v2("v_xor_b32", "v78", "v2", "v5"))
    A(v3("v_lshl_add_u32", "v%d" % OW, "v78", "4", "v79")); A(v2("v_xor_b32", "v%d" % (OW + 1), "64", "v%d" % OW))
    A(v2("v_and_b32", "v78", "12", "v3")); A(v2("v_and_b32", "v70", "1", "v3")); A(v3("v_lshl_add_u32", "v78", "v70", "1", "v78"))
    A(v2("v_xor_b32", "v78", "v78", "v2")); A(v2("v_lshlrev_b32", "v78", "4", "v78")); A(v3("v_lshl_add_u32", "v78", "v2", "8", "v78"))
    A(v2("v_and_b32", "v70", "2", "v3")); A(v3("v_lshl_add_u32", "v78", "v70", "2", "v78"))
    A(v2("v_add_u32", "v%d" % OR_, "s%d" % sMS, "v78"))
    for i, x in enumerate((16, 64, 80)): A(v2("v_xor_b32", "v%d" % (OR_ + 1 + i), str(x), "v%d" % OR_))
    A(v2("v_lshlrev_b32", "v%d" % OS, "4", "v0"))
    A(v2("v_and_b32", "v7", "3", "v0")); A(valu("v_cmp_eq_u32 vcc, 0, v7", ["v7"], ["vcc"])); A(v1("v_mov_b32", "v76", "0x3f803f80")); A(v1("v_mov_b32", "v77", "0"))
    A(valu("v_cndmask_b32 v7, v77, v76, vcc", ["v76", "v77", "vcc"], ["v7"]))
    for i in range(4):
        A(v1("v_accvgpr_write_b32", "a%d" % (AONE + i), "v7")); A(v1("v_accvgpr_write_b32", "a%d" % (AZERO + i), "v77"))
    A(smov("s%d" % sC, "0x%08x" % SCALE)); A(smov("s%d" % sC2, "0x%08x" % SCALE)); A(smov("s%d" % (sC2 + 1), "0x%08x" % SCALE))
    if cfg.fakepre: L += [v1("v_mov_b32", "v%d" % i, "1.0") for i in range(2, 12)]
    A(smov("s%d" % sLO, "0x%08x" % LO_BITS)); A(smov("s%d" % sRG, "0x%08x" % (HI_BITS - LO_BITS)))
    A(smov("s%d" % sBAD, "0")); A(salu("s_mov_b64 s[%d:%d], 0" % (sACC, sACC + 1), [], R("s", sACC, 2)))
    A(smov("s%d" % sCNT, "3"))
    A(salu("s_mov_b64 vcc, %d" % (-1 if RAMP_IT else 0), [], ["vcc"]))
    if cfg.stamp2: L += stamp()
    A(vsite([("K", 0), ("Q", 0, 0)]))
    if cfg.stamp2: L += stamp()
    A(bar())
    if cfg.pre:
        L += q_reads(QR, 0, 0, p="v") + [kread(f, 0, 0) for f in KORD] + [lsite()]
        b = pre_burst(AQ)
        for i in range(0, len(b), 20): L += b[i:i + 20] + [lsite()]
        return L + [nop(1), lsite()]
    qr = q_reads(AQ, 0, 0)
    seen = set()
    for kt, q, s in QKSEQ:
        if ("k", kt, s) not in seen: A(kread(4 * kt + s, 0, 0)); seen.add(("k", kt, s))
        if ("q", q, s) not in seen: A(qr[4 * q + s]); seen.add(("q", q, s))
    A(lsite())
    return L

def tail_seg():
    L = []
    sm = []
    for it in softmax_items(1, 0, lambda q, kt: 0, lambda q: 99, lo=(cfg.e0, cfg.e0, cfg.c0)):
        sm.append(it.ins)
        if it.ins.kind == "T" and it.ins.text == exp_(S_(1, *GRP[3]) + 3).text: sm.append(nop(1))
    if cfg.stmode == 1:
        L += [o_stores(1)[7]] + tab_add(sOT)
    if cfg.park: L += tab_add(sOT)[4:]
    gaps = [Gap(m) for m in pv_block(1, False)]
    st = o_stores(0)
    if cfg.tailv == 0:
        L += sm + epi_burst(0)
        for g, w in enumerate(o_writes(0)): gaps[g].ds.append(w)
        rd = o_reads(0, 0)
        for g in range(8): gaps[8 + g].ds += rd[2 * g:2 * g + 2]
        for G in gaps: L += G.flat()
        L += [lsite()] + st[:4]
    else:
        w0 = o_writes(0); r0 = o_reads(0, 0)
        L += [nop(2)] + epi_burst(0) + w0[:4] + r0[:8] + w0[4:] + r0[8:] + sm + [nop(2)]
        for j in range(8): gaps[1 + 2 * j].ds.append(st[j])
        for G in gaps: L += G.flat()
        L += [nop(4)]
        st = [None] * 4
    b1 = epi_burst(1)
    w1 = o_writes(1); r1 = o_reads(1, 0)
    if cfg.tailv < 2:
        k = [i for i, x in enumerate(b1) if x.kind == "K"][-1] + 1
        L += b1[:k] + [lsite()] + st[4:] + b1[k:]
        st = o_stores(1)
        L += w1[:4] + r1[:8] + w1[4:] + r1[8:]
        L += [lsite()] + st[:2] + [lsite()] + st[2:4] + [lsite()] + st[4:6] + [lsite()] + st[6:]
    else:
        head = [x for x in b1 if x.kind not in ("K", "M") and "v_cvt" not in x.text and "s_or" not in x.text and x.kind != "N"]
        pk = [x for x in b1 if x.kind == "K"]; cv = [x for x in b1 if "v_cvt" in x.text]
        mm = [x for x in b1 if x.kind == "M"]; so = [x for x in b1 if "s_or" in x.text]
        st = o_stores(1)
        L += head + pk[:16] + cv[:16] + w1[:4] + r1[:8] + pk[16:] + [lsite()] + st[:4] + cv[16:] + w1[4:] + r1[8:] + so + mm
        L += [lsite()] + st[4:6] + [lsite()] + st[6:] + [nop(6)]
    L += flag_ops()
    return L

def slow_path():
    T = []
    A = T.append
    def emit(l):
        for x in l: A(x.text)
    def wait(): A("s_waitcnt vmcnt(0) lgkmcnt(0)");
    A("s_barrier")
    if cfg.force_slow: A("s_mov_b32 s%d, 15" % sBAD)
    A("s_cmp_eq_u32 s%d, 0" % sBAD); A("s_cbranch_scc1 L_end")
    A("s_lshl_b32 s45, s%d, 13" % sW)
    for i in range(4): A("v_add_u32 v%d, s45, v%d" % (KA + i, KA + i))
    for i in range(8): A("v_add_u32 v%d, s45, v%d" % (VA + i, VA + i))
    A("s_add_u32 s46, s45, %d" % LDS_V)
    A("s_lshl_b32 s%d, s%d, %d" % (sQo, sW, WSH))
    A("v_mov_b32 v%d, v%d" % (TS + 4, DA)); A("v_mov_b32 v%d, v%d" % (TS + 5, DB))
    A("s_mov_b32 s%d, 0" % sCNT)
    A("L_slow_unit:")
    A("s_bitcmp1_b32 s%d, 3" % sBAD); A("s_cbranch_scc0 L_slow_next")
    for i in range(8): A("s_add_u32 s%d, s%d, %d" % (sQT + i, sQo, i * PSTEP)); A("s_mov_b32 s%d, s%d" % (sOT + i, sQT + i))
    wait()
    for h in range(2):
        cur = None
        for x in q_dmas(h, 0):
            if cur != x.cmt: A(setm0(x.cmt).text); A("s_nop 0"); cur = x.cmt
            A(x.text)
        wait(); emit(q_reads(AQ + 32 * h, h, 0)); wait()
    def tile_dma(sr, m0s):
        for i in range(8):
            if i % 4 == 0:
                A("s_add_u32 m0, s%d, %d" % (m0s, (i // 4) * 4096)); A("s_add_u32 s%d, s%d, %d" % (sT, sKo, (i // 4) * 4096))
            A("buffer_load_dwordx4 v%d, %s, s%d offen offset:%d lds" % (TS + 4 + i % 2, srd(sr), sT, (i % 4) * 1024))
    def qk_all():
        emit([kread(f, 0, 0) for f in range(8)]); wait()
        emit(qk_block(0) + qk_block(1)); A("s_nop 7"); A("s_nop 3")
    for i in range(4): A("v_mov_b32 v%d, 0xff800000" % (MX + i))
    A("s_mov_b32 s%d, s%d" % (sKo, sCNT)); A("s_add_u32 s%d, s%d, 131072" % (sVo, sCNT))
    A("L_slow_p1:")
    tile_dma(sK_, 45); wait(); qk_all()
    for h in range(2):
        for q in range(2):
            a = S_(h, q, 0)
            for i in range(4): A("v_max3_f32 v%d, v%d, v%d, v%d" % (MX + 2 * h + q, a + 2 * i, a + 2 * i + 1, MX + 2 * h + q))
    A("s_add_u32 s%d, s%d, 8192" % (sKo, sKo)); A("s_cmp_lt_u32 s%d, s%d" % (sKo, sVo)); A("s_cbranch_scc1 L_slow_p1")
    for op in ("v_permlane32_swap_b32", "v_permlane16_swap_b32"):
        for i in range(4): A("v_mov_b32 v%d, v%d" % (NM + i, MX + i))
        A("s_nop 1")
        for i in range(4): A("%s v%d, v%d" % (op, NM + i, MX + i))
        A("s_nop 1")
        for i in range(4): A("v_max_f32 v%d, v%d, v%d" % (MX + i, MX + i, NM + i))
    for i in range(4): A("v_mul_f32 v%d, s%d, v%d" % (NM + i, sC, MX + i))
    for i in range(128): A("v_mov_b32 v%d, 0" % (OB + i))
    for i in range(16): A("v_accvgpr_write_b32 a%d, 0" % (AL + i))
    A("s_mov_b32 s%d, s%d" % (sKo, sCNT))
    A("L_slow_p2:")
    tile_dma(sK_, 45); tile_dma(sV_, 46); wait(); qk_all()
    emit([vread(b, jj, 0, 0) for b in range(4) for jj in range(2)])
    for h in range(2):
        for q in range(2):
            a = S_(h, q, 0)
            for i in range(8): A("v_fma_f32 v%d, v%d, s%d, -v%d" % (a + i, a + i, sC, NM + 2 * h + q))
            for i in range(8): A("v_exp_f32 v%d, v%d" % (a + i, a + i))
            A("s_nop 0")
            for i in range(4): A(cvt_(P_(h, q) + i, a + 2 * i, a + 2 * i + 1).text)
    emit([vread(b, jj, 0, 0) for b in range(4, 8) for jj in range(2)])
    wait()
    emit(pv_block(0, False) + pv_block(1, False))
    A("s_add_u32 s%d, s%d, 8192" % (sKo, sKo)); A("s_cmp_lt_u32 s%d, s%d" % (sKo, sVo)); A("s_cbranch_scc1 L_slow_p2")
    A("s_nop 7"); A("s_nop 3")
    for h in range(2):
        emit(epi_burst(h, check=False)); emit(o_writes(h) + o_reads(h, 0))
        wait(); emit(o_stores(h)); wait()
    A("L_slow_next:")
    A("s_lshl_b32 s%d, s%d, 1" % (sBAD, sBAD)); A("s_and_b32 s%d, s%d, 15" % (sBAD, sBAD))
    for r in (sCNT, sQo): A("s_add_u32 s%d, s%d, %d" % (r, r, USTRIDE))
    A("s_cmp_lg_u32 s%d, 0" % sBAD); A("s_cbranch_scc1 L_slow_unit")
    return T

def stamp():
    if not cfg.stamp: return []
    return [raw("s_memtime s[58:59]"), raw("s_memrealtime s[62:63]"), raw("s_waitcnt lgkmcnt(0)"),
            raw("s_mov_b32 m0, s57"), raw("s_nop 0"), raw("v_writelane_b32 v38, s58, m0"), raw("v_writelane_b32 v39, s62, m0"), raw("s_add_u32 s57, s57, 1")]
def stamp_out():
    if not cfg.stamp: return []
    if cfg.dbgwg >= 0:
        return [x.text for x in stamp()] + ["s_cmp_lg_u32 s2, %d" % cfg.dbgwg, "s_cbranch_scc1 L_nodbg", "s_cmp_lg_u32 s%d, 0" % sW, "s_cbranch_scc1 L_nodbg",
            "s_load_dwordx2 s[36:37], s[0:1], 32", "s_waitcnt lgkmcnt(0)", "s_mov_b32 s38, 64", "s_mov_b32 s39, 0x20000",
            "v_readfirstlane_b32 s45, v39", "v_lshrrev_b32 v41, 2, v%d" % OS, "s_nop 1", "v_subrev_u32 v39, s45, v39",
            "buffer_store_dword v39, v41, s[36:39], 0 offen", "L_nodbg:"]
    return [x.text for x in stamp()] + ["s_load_dwordx2 s[36:37], s[0:1], 40", "s_waitcnt lgkmcnt(0)", "s_mov_b32 s38, 0x1000000", "s_mov_b32 s39, 0x20000",
            "s_lshl_b32 s45, s2, 2", "s_add_u32 s45, s45, s%d" % sW, "s_lshl_b32 s45, s45, 9", "v_lshrrev_b32 v41, 2, v%d" % OS,
            "buffer_store_dword v38, v41, s[36:39], s45 offen", "buffer_store_dword v39, v41, s[36:39], s45 offen offset:256"]
DOC = """; Generated by a scheduling script (hand-written instruction templates, list-scheduled into MFMA gaps).
;   wave = 64 q rows. S^T = K Q^T and O^T += V^T P^T with 16x16x32 bf16 MFMA, so P feeds the second product
;   sums the row (l) with one more MFMA. Every row is then checked at run time: l must lie in [2^-40, 2^126) and every
;   output must be finite (zero-operand MFMA turns any inf/NaN into NaN). A wave with a row that fails recomputes that
;   block at the end of the kernel with the true row max (two-pass fallback, label L_slow_unit)."""
def main():
    sgs = {"it0f": build_iter(0, True)}
    for t in range(16): sgs["it%d" % t] = build_iter(t)
    def segs():
        d = {"pro": pro, "tail": tl}
        d.update(RAMPS)
        for k, s in sgs.items(): d[k] = flat(s)
        return d
    pro = prologue(); tl = tail_seg()
    if cfg.jitter:
        for t in range(16):
            g = (t * 11 + cfg.jitter * 7) % 60
            sgs["it%d" % t].gaps[g].pre[0:0] = [raw("s_cmp_eq_u32 s%d, %d" % (sW, (t * cfg.jitter + t // 4) % 4)), raw("s_cbranch_scc0 L_j%d" % t), raw("s_sleep %d" % (8 + 5 * (t % 5))), raw("L_j%d:" % t)]
    if cfg.dbgspan:
        pro[2:2] = [raw("s_memrealtime s[60:61]"), raw("s_memtime s[62:63]"), raw("s_waitcnt lgkmcnt(0)"), raw("s_mov_b32 s56, s60"), raw("s_mov_b32 s57, s62")]
        i = [k for k, x in enumerate(pro) if x.kind == "BAR"][0]
        pro[i + 1:i + 1] = [raw("s_memrealtime s[58:59]")]
    if cfg.stamp:
        pro[2:2] = [raw("s_mov_b32 s57, 0")] + stamp()
        i = [k for k, x in enumerate(pro) if x.kind == "BAR"][0]
        pro[i + 1:i + 1] = stamp()
        for t in range(0, 16, cfg.stamp): sgs["it%d" % t].head[0:0] = stamp()
        tl[0:0] = stamp()
        if cfg.stamp3:
            G = sgs["it0"].gaps
            G[0].pre += stamp(); G[16].pre += stamp(); G[34].pre += stamp(); G[48].pre[0:0] = stamp(); G[48].pre += stamp()
            sgs["it1"].head[0:0] = stamp(); sgs["it1"].gaps[34].pre += stamp(); sgs["it2"].head[0:0] = stamp(); sgs["it3"].head[0:0] = stamp()
        if cfg.stamp2:
            sgs["it0f"].gaps[16].pre += stamp(); sgs["it0f"].gaps[cfg.fbar + 1].pre += stamp(); sgs["it0f"].tail[0:0] = stamp()
    traces = []
    for role in ("A", "B"):
        x = dict(role=role, lagK=cfg.flag_ if role == "B" else 0, lagV=cfg.flag_ if role == "A" else 0)
        trace = [("pro", dict(T=0, u=0, first=1, **x)), ("it0f", dict(T=0, u=0, first=1, **x))]
        for u in range(4):
            for t in range(16):
                if (u, t) != (0, 0): trace.append(("it%d" % t, dict(T=16 * u + t, u=u, first=(u == 0 and t < 9), **x)))
        trace.append(("tail", dict(T=64, u=3, **x)))
        traces.append(trace)
    sgs["it0f"].tail.append(raw("s_branch L_it1", "BR"))
    sgs["it15"].tail += [s2("s_sub_u32", "s%d" % sCNT, "s%d" % sCNT, "1"), raw("s_cbranch_scc0 L_it0", "BR")]
    insert_waits(segs(), traces)
    for k, s in sgs.items():
        br = [x for x in s.tail if x.kind == "BR" or "s_sub_u32 s%d" % sCNT in x.text]
        s.tail = [x for x in s.tail if x not in br]
        place_scalar(s)
        s.tail += br
    fs = {k: finalize(v) for k, v in segs().items()}
    errs = sum((verify(fs, tr, {"K": 8, "V": 16, "Q": 8, "O": 16}) for tr in traces), [])
    for e in errs[:40]: sys.stderr.write("ERR " + e + "\n")
    tot = 0
    for k in ["pro", "it0f"] + ["it%d" % t for t in range(16)] + ["tail"]:
        est = issue_estimate(fs[k]); sys.stderr.write("%s:%d " % (k, est))
        if k.startswith("it") and k != "it0f": tot += est
    if cfg.stamp3:
        for k in ("it0", "it1", "it2"):
            parts = [[]]
            for x in fs[k]:
                if "s_memtime" in x.text: parts.append([])
                parts[-1].append(x)
            sys.stderr.write("\n%s parts %s" % (k, [issue_estimate(p) for p in parts]))
    sys.stderr.write("\nunit estimate %d cycles, errors %d\n" % (tot, len(errs)))
    out = []
    hdr = open(os.path.join(os.path.dirname(os.path.abspath(__file__)), "..", "cdna_kernels", NAME + ".s.ref")).read().split("; Override")[0]
    out.append(hdr.rstrip())
    out.append("; @launch grid=(256,1,1) block=(256,1,1) lds=163840")
    out.append(DOC)
    out.append('.amdgcn_target "amdgcn-amd-amdhsa--gfx950"\n.text\n.globl %s_kernel\n.p2align 8\n.type %s_kernel,@function\n%s_kernel:' % (NAME, NAME, NAME))
    par = {}
    def dump(k):
        out.append("; ---- " + k)
        for x in fs[k]:
            if cfg.nocomp and k != "pro" and x.kind in ("M", "V", "T", "K", "D", "W"):
                par[x.kind] = par.get(x.kind, 0) + 1
                if cfg.nocomp == 1 or par[x.kind] % cfg.nocomp == 0: continue
            if cfg.nomem and k != "pro" and x.kind == "X" and (cfg.nomem == 1 or "store" in x.text): continue
            if cfg.nostore and x.kind == "X" and "store" in x.text: continue
            out.append("  " + x.text)
            if cfg.nocomp and "m0" in x.wr: out.append("  s_nop 0")
    dump("pro"); dump("it0f")
    for k in RAMPS: out.append("L_%s:" % k); dump(k)
    out.append(".p2align 6\nL_it0:"); dump("it0"); out.append("L_it1:")
    for t in range(1, 16): dump("it%d" % t)
    dump("tail")
    if cfg.dbgspan:
        out += ["  " + x for x in ["s_waitcnt vmcnt(0)", "s_memrealtime s[60:61]", "s_memtime s[62:63]", "s_load_dwordx2 s[36:37], s[0:1], 32", "s_waitcnt lgkmcnt(0)", "s_mov_b32 s38, 256", "s_mov_b32 s39, 0x20000",
            "s_not_b32 s45, s56", "v_mov_b32 v2, s45", "v_mov_b32 v3, s58", "v_mov_b32 v4, s60", "v_mov_b32 v5, s56", "s_not_b32 s45, s60", "v_mov_b32 v6, s45", "s_sub_u32 s45, s62, s57", "v_mov_b32 v7, s45", "v_mov_b32 v1, 0",
            "s_mov_b64 exec, 1",
            "buffer_atomic_umax v2, v1, s[36:39], 0 offen", "buffer_atomic_umax v3, v1, s[36:39], 0 offen offset:4", "buffer_atomic_umax v4, v1, s[36:39], 0 offen offset:8",
            "buffer_atomic_umax v5, v1, s[36:39], 0 offen offset:12", "buffer_atomic_umax v6, v1, s[36:39], 0 offen offset:16", "buffer_atomic_umax v7, v1, s[36:39], 0 offen offset:20", "s_mov_b64 exec, -1"]]
    if cfg.stamp:
        out.append("  s_waitcnt vmcnt(0)")
        out += [("  " + x if not x.endswith(":") else x) for x in stamp_out()]
    if cfg.nocomp or cfg.nomem or cfg.fakepre: out.append("  s_mov_b32 s%d, 0" % sBAD)
    out += ["  " + x if not x.endswith(":") else x for x in slow_path()]
    out.append("L_end:\n  s_endpgm")
    out.append('.section .rodata,"a"\n.p2align 6\n.amdhsa_kernel %s_kernel' % NAME)
    out.append("  .amdhsa_next_free_vgpr 512\n  .amdhsa_next_free_sgpr 96\n  .amdhsa_accum_offset 256\n  .amdhsa_group_segment_fixed_size 0\n  .amdhsa_kernarg_size 48\n  .amdhsa_user_sgpr_count 2\n  .amdhsa_user_sgpr_kernarg_segment_ptr 1\n  .amdhsa_system_sgpr_workgroup_id_x 1\n.end_amdhsa_kernel")
    open(sys.argv[1], "w").write("\n".join(out) + "\n")
    if errs: sys.exit(1)
main()
```

```python
import sys

class Ins:
    __slots__ = ("text", "kind", "rd", "wr", "tag", "needs", "n", "states", "used", "cmt", "srcc", "frees")
    def __init__(self, text, kind, rd=(), wr=(), tag=None, needs=None, states=1, srcc=(), cmt=""):
        self.text = text; self.kind = kind; self.rd = frozenset(rd); self.wr = frozenset(wr)
        self.tag = tag; self.needs = needs; self.n = None; self.states = states; self.cmt = cmt
        self.srcc = frozenset(srcc)

def R(p, a, n=1):
    return [p + str(a + i) for i in range(n)]
def rng(p, a, n):
    return "%s%d" % (p, a) if n == 1 else "%s[%d:%d]" % (p, a, a + n - 1)

def mfma(dp, d, ap, a, bp, b, czero=False):
    c = "0" if czero else rng(dp, d, 4)
    rd = R(ap, a, 4) + R(bp, b, 4) + ([] if czero else R(dp, d, 4))
    return Ins("v_mfma_f32_16x16x32_bf16 %s, %s, %s, %s" % (rng(dp, d, 4), rng(ap, a, 4), rng(bp, b, 4), c), "M", rd, R(dp, d, 4),
               srcc=[] if czero else R(dp, d, 4))
def valu(text, rd, wr, kind="V"):
    return Ins(text, kind, rd, wr)
def salu(text, rd=(), wr=()):
    return Ins(text, "S", rd, wr)
def nop(n):
    return Ins("s_nop %d" % (n - 1), "N", states=n)
def lsite():
    return Ins("", "LSITE")
def vsite(needs):
    return Ins("", "VSITE", needs=needs)
def bar():
    return Ins("s_barrier", "BAR")
def label(name):
    return Ins(name + ":", "LBL", states=0)
def raw(text, kind="S"):
    return Ins(text, kind)

VALU_KINDS = ("V", "T", "K")

def resolve(tag, ctx):
    if tag is None: return None
    if tag[0] in ("K", "V"): return (tag[0], ctx["T"] + tag[1])
    if tag[0] in ("Q", "O"): return (tag[0], tag[1], ctx["u"] + tag[2])
    return tag

def walk(segs, trace):
    cnt = {"K": -1, "V": -1}
    def one(seg, ctx):
        for ins in segs[seg]:
            t = ins.tag
            if ins.kind == "X" and t is not None and t[0] in "KV" and t[1] in ("a", "b"):
                if t[1] == "a": cnt[t[0]] += 1
                t = (t[0], cnt[t[0]])
                if ins.needs is not None and not ctx.get("first"):
                    assert t[1] == ctx["T"] + ins.needs - ctx.get("lag" + t[0], 0), (seg, t, ctx)
            else:
                t = resolve(t, ctx)
            yield ins, ctx, seg, t
            if ins.kind == "LAST" and ctx.get("u") == 3:
                for x in one(ins.cmt, ctx): yield x
            if ins.kind == "RAMP" and ctx.get("first"):
                for x in one(ins.cmt + ctx.get("role", ""), ctx): yield x
    for seg, ctx in trace:
        for x in one(seg, ctx): yield x

def insert_waits(segs, traces):
    for rounds in range(4):
        ch = False
        for tr in traces: ch |= insert_waits1(segs, tr)
        if not ch: return
    raise Exception("no convergence over traces")

def insert_waits1(segs, trace):
    anyc = False
    for it in range(8):
        changed = False
        ds_issued = 0; ds_known = 0; ds_wr = {}
        vm_issued = 0; vm_known = 0; vm_tag = {}; vm_wr = {}
        last_site = None; last_site_issued = 0
        for once in (0,):
            for ins, ctx, seg, rtag in walk(segs, trace):
                k = ins.kind
                if k == "LSITE":
                    last_site = ins; last_site_issued = ds_issued
                    if ins.needs == "all":
                        if ds_known < ds_issued and ins.n != 0: ins.n = 0; changed = True
                    if ins.n is not None: ds_known = max(ds_known, ds_issued - ins.n)
                    continue
                if k == "VSITE":
                    need = -1
                    for t in ins.needs:
                        t = resolve(t, ctx)
                        if t in vm_tag: need = max(need, vm_tag[t])
                        elif not ctx.get("allow_missing"): raise Exception("vsite needs unknown tag %s in %s" % (t, seg))
                    if need >= vm_known:
                        n = min(63, vm_issued - (need + 1))
                        if ins.n is None or n < ins.n: ins.n = n; changed = True
                    if ins.n is not None: vm_known = max(vm_known, vm_issued - ins.n)
                    continue
                if k == "WAITALL":
                    ds_known = ds_issued; vm_known = vm_issued; continue
                for r in (ins.rd | (ins.wr if k != "D" else frozenset())):
                    if r in ds_wr and ds_wr[r] >= ds_known:
                        need = ds_wr[r]
                        if last_site is None or need >= last_site_issued:
                            raise Exception("no lgkm site for %s (reg %s) in %s" % (ins.text, r, seg))
                        n = min(15, last_site_issued - (need + 1))
                        if last_site.n is None or n < last_site.n: last_site.n = n; changed = True
                        ds_known = max(ds_known, last_site_issued - last_site.n)
                if k in ("D", "W"):
                    for r in ins.wr: ds_wr[r] = ds_issued
                    ds_issued += 1
                if k == "X":
                    if ins.tag is not None: vm_tag[rtag] = vm_issued
                    vm_issued += 1
        if not changed: break
        anyc = True
    else:
        raise Exception("wait insertion did not converge")
    return anyc

def finalize(lst):
    out = []
    i = 0
    while i < len(lst):
        ins = lst[i]
        if ins.kind in ("LSITE", "VSITE"):
            l = v = None
            while i < len(lst) and lst[i].kind in ("LSITE", "VSITE"):
                if lst[i].n is not None:
                    if lst[i].kind == "LSITE": l = lst[i].n if l is None else min(l, lst[i].n)
                    else: v = lst[i].n if v is None else min(v, lst[i].n)
                i += 1
            if l is not None or v is not None:
                t = "s_waitcnt" + ("" if v is None else " vmcnt(%d)" % v) + ("" if l is None else " lgkmcnt(%d)" % l)
                w = Ins(t, "WAIT"); w.n = (v, l); out.append(w)
            continue
        out.append(ins); i += 1
    return out

def verify(fsegs, trace, nreads):
    errs = []
    hist = []
    ds_issued = ds_known = 0; ds_wr = {}; rd_idx = {}
    vm_issued = vm_known = 0; vm_idx = {}
    visible = set(); freed = set()
    def dist_check(ins, seg):
        d = 0
        for p in reversed(hist):
            if d >= 12: break
            def need(n, why):
                if d < n: errs.append("%s: hazard %s: '%s' -> '%s' dist %d < %d" % (seg, why, p.text, ins.text, d, n))
            pk = p.kind; k = ins.kind
            if pk in VALU_KINDS:
                vw = {r for r in p.wr if r[0] in "va" and r != "vcc"}
                sw = p.wr - vw
                if k == "M" and vw & ins.rd: need(2, "valu->mfma")
                if pk == "T" and k in ("V", "K") and vw & ins.rd: need(1, "trans->valu")
                if pk == "T" and k in ("W", "X") and vw & ins.rd: need(1, "trans->mem")
                if "permlane" in ins.text and vw & (ins.rd | ins.wr): need(2, "valu->permlane")
                if "readfirstlane" in ins.text and vw & ins.rd: need(1, "valu->readlane")
                if sw & ins.rd:
                    if k == "X": need(5, "valu sgpr->vmem")
                    elif k in VALU_KINDS: need(2, "valu sgpr->valu")
                    else: need(2, "valu sgpr->salu")
            if pk == "M":
                if k == "M":
                    ab = ins.rd - ins.srcc
                    if p.wr & ab: need(8, "mfma->mfma ab")
                    if p.wr & ins.srcc and p.wr != ins.srcc: need(6, "mfma->mfma c overlap")
                elif k in VALU_KINDS:
                    if p.wr & (ins.rd | ins.wr): need(8, "mfma->valu")
                    if p.srcc & ins.wr: need(3, "mfma srcc war")
                elif k in ("W", "X", "D"):
                    if p.wr & (ins.rd | ins.wr): need(8, "mfma->mem")
            if pk == "S" and "m0" in p.wr and k == "X" and "m0" in ins.rd: need(1, "m0->dma")
            if pk == "X" and "store" in p.text and k in VALU_KINDS + ("M", "D") and (p.rd & ins.wr): need(2, "store data war")
            d += p.states
    for once in (0,):
        for ins, ctx, seg, rtag in walk(fsegs, trace):
            k = ins.kind
            if k == "LBL": continue
            dist_check(ins, seg)
            if k == "WAIT":
                v, l = ins.n
                if v is not None: vm_known = max(vm_known, vm_issued - v)
                if l is not None: ds_known = max(ds_known, ds_issued - l)
            elif k == "WAITALL":
                vm_known = vm_issued; ds_known = ds_issued
            elif k == "BAR":
                for t, idx in vm_idx.items():
                    if max(idx) < vm_known: visible.add(t)
                for t, idx in rd_idx.items():
                    if len(idx) == nreads[t[0]] and max(idx) < ds_known: freed.add(t)
            for r in (ins.rd | (ins.wr if k != "D" else frozenset())):
                if r in ds_wr and ds_wr[r] >= ds_known: errs.append("%s: DS result %s not waited for '%s'" % (seg, r, ins.text))
            if k in ("D", "W"):
                t = rtag
                if k == "D" and t is not None:
                    if t[0] in "KV":
                        if t not in visible: errs.append("%s: read of %s not visible: %s" % (seg, t, ins.text))
                    elif t[0] == "Q":
                        if t not in vm_idx or max(vm_idx[t]) >= vm_known: errs.append("%s: read of %s before landed" % (seg, t))
                    rd_idx.setdefault(t, []).append(ds_issued)
                for r in ins.wr: ds_wr[r] = ds_issued
                ds_issued += 1
                if ds_issued - ds_known > 15 and False: errs.append("%s: >15 DS outstanding" % seg)
            if k == "X":
                t = rtag
                if t is not None and "lds" in ins.text:
                    if t[0] in "KV":
                        prev = (t[0], t[1] - 8)
                        if t[1] >= 8 and prev not in freed: errs.append("%s: DMA %s before %s freed" % (seg, t, prev))
                        if t[0] == "V" and 4 <= t[1] < 8 and ("Q", 1, 0) not in freed: errs.append("%s: DMA %s before first Q h1 freed" % (seg, t))
                    else:
                        for tt, idx in rd_idx.items():
                            if tt[0] in "QO" and max(idx) >= ds_known: errs.append("%s: staging DMA %s before reads of %s done" % (seg, t, tt))
                    vm_idx.setdefault(t, []).append(vm_issued)
                vm_issued += 1
                if vm_issued - vm_known > 63: errs.append("%s: >63 VMEM outstanding at %s" % (seg, ins.text))
            hist.append(ins)
            if len(hist) > 16: hist.pop(0)
    return errs

def issue_estimate(lst):
    t = 0; mfma_free = 0; last = None; vec_free = 0; last2 = None
    for ins in lst:
        k = ins.kind
        if k == "LBL": continue
        if k == "M":
            t = max(t, mfma_free, vec_free); mfma_free = t + 16; vec_free = t + 8; t += 4
            last2 = last
        elif k in ("V", "K"):
            t = max(t, vec_free)
            if k == "K": t = max(t, mfma_free + 4)
            t += 8 if "permlane" in ins.text else 4
        elif k == "T":
            t = max(t, vec_free) + 8
        elif k in ("D", "W"):
            t = max(t, vec_free) + (4 if k == "D" else 20 if "b128" in ins.text else 12) + (8 if last in VALU_KINDS else 0)
        elif k == "X":
            t = max(t, vec_free)
            if "store" in ins.text:
                mfma_free = max(mfma_free, t + 21); t += 9
            else:
                t += 12 + (24 if last in VALU_KINDS else 0) + (8 if last in ("D", "W") else 0) + (4 if last2 in VALU_KINDS else 0)
        elif k == "N":
            t += 4 * ins.states
        else:
            t += 4
        if k not in ("S", "WAIT", "BAR", "RAMP", "LAST"): last = k
    return t
```

```python
import sys, os, struct, math
from core import *

class Cfg:
    barper = 2
    finchk = 1
    lat = 7
    k_aux = ""
    v_aux = ""
    kv_aux = "nt"
    q_aux = "nt"
    o_aux = "nt"
    e0 = 10; c0 = 4; f0 = 6
    force_slow = 0
    hmap = 1
    rot = 5
    xmap = 0
    stamp = 0
    tailv = 0
    jitter = 0
    dbgwg = -1
    stamp3 = 0
    stamp2 = 0
    nocomp = 0
    nomem = 0
    nostore = 0
    dbgspan = 0
    lag = 1.5
    lead = 6
    stcap = 12
    xopt = 2
    park = 0
    rskip = 0
    front = 0
    rotq = 3
    qomap = 0
    pre = 0
    wbl2 = 0
    kvmap = 1
    fakepre = 0
    x0 = 17
    x1 = 9
    xs = 8
    xts = 8
    fxs = 6
    xt = 52
    flag_ = 0
    stmode = 0
    qmaj = 0
    bargap = 14
    sm0 = 14
    qkord = 2
    kt0 = 54.0
    kts = 2.48
    vt0 = 18.0
    vts = 2.48
    stgap = 48
    l0 = 2
    cpf = 1
    qa0 = 2
    early = 1
    fbar = 24
    rdy = 5
cfg = Cfg()
for a in sys.argv[2:]:
    k, v = a.split("=")
    setattr(cfg, k, type(getattr(cfg, k))(v))

NAME = "standalone__mha_softmax__near_ridge"
KA = 16; VA = 20; DA = 28; DB = 29; QA = 30; OW = 34; OS = 40; OR_ = 8; QR = 48; PT = 2
ET = 42; ER = 44; EU = 36
MX = 50; NM = 54; TM = 12; TS = 58
PB = 80; SB = 96; OB = 128
def S_(h, q, kt): return SB + 16 * h + 8 * q + 4 * kt
def P_(h, q): return PB + 8 * h + 4 * q
def O_(qt, b): return OB + 32 * qt + 4 * b
AQ = 0; AQN = 64; AK = 96; AV = 128; AO = 160; AL = 224; AONE = 240; AZERO = 244; ACHK = 248
sQ_, sK_, sV_, sO_ = 4, 8, 12, 16
sW = 20; sKo = 21; sVo = 22; sMK = 23; sMV = 24; sQo = 25; sOo = 26; sC = 27; sBAD = 28; sUB = 29; sACC = 30; sCMP = 32
sLO = 34; sRG = 35; sMS = 44; sCNT = 47; sONR = 48; sQa = 50; sQb = 51; sOa = 52; sOb = 53; sT = 54; sKt = 55; sVt = 56; sKb = 80; sVb = 81; sMKn = 29; sMVn = 49; sC2 = 60; sQT = 64; sOT = 72; sO2 = 84; sLT = 88
WSH, PSTEP, HSH, QEND = ((14, 2048, 16, 65536), (11, 8192, 16, 65536), (15, 2048, 14, 114688))[cfg.qomap]
LDS_V = 65536; LDS_S = 131072
SCALE = struct.unpack("<I", struct.pack("<f", math.log2(math.e) / math.sqrt(128.0)))[0]
LO_BITS = (127 - (40 if cfg.finchk else 24)) << 23
HI_BITS = (127 + (126 if cfg.finchk else 24)) << 23

def srd(b): return "s[%d:%d]" % (b, b + 3)
def srdr(b): return R("s", b, 4)

def v2(op, d, a, b, kind="V"):
    rd = [x for x in (a, b) if isinstance(x, str) and x[0] in "vsa" and x[1:].isdigit()]
    return valu("%s %s, %s, %s" % (op, d, a, b), rd, [d], kind)
def v1(op, d, a, kind="V"):
    rd = [a] if isinstance(a, str) and a[0] in "vsa" and a[1:].isdigit() else []
    return valu("%s %s, %s" % (op, d, a), rd, [d], kind)
def v3(op, d, a, b, c):
    rd = [x for x in (a, b, c) if isinstance(x, str) and x[0] in "vsa" and x[1:].isdigit()]
    return valu("%s %s, %s, %s, %s" % (op, d, a, b, c), rd, [d])
def s2(op, d, a, b):
    rd = [x for x in (a, b) if isinstance(x, str) and (x[0] == "s" or x == "m0")]
    return salu("%s %s, %s, %s" % (op, d, a, b), rd, [d, "scc"])
def smov(d, a):
    return salu("s_mov_b32 %s, %s" % (d, a), [a] if isinstance(a, str) and a[0] == "s" else [], [d])
def mul_(r): return v2("v_mul_f32", "v%d" % r, "s%d" % sC, "v%d" % r)
def exp_(r): return v1("v_exp_f32", "v%d" % r, "v%d" % r, "T")
def cvt_(d, a, b): return v2("v_cvt_pk_bf16_f32", "v%d" % d, "v%d" % a, "v%d" % b)
def dsr128(dp, d, addr, off, tag):
    assert 0 <= off < 65536
    return Ins("ds_read_b128 %s, v%d offset:%d" % (rng(dp, d, 4), addr, off), "D", ["v%d" % addr], R(dp, d, 4), tag=tag)
def dstr(d, addr, off, tag):
    assert 0 <= off < 65536
    return Ins("ds_read_b64_tr_b16 %s, v%d offset:%d" % (rng("a", d, 2), addr, off), "D", ["v%d" % addr], R("a", d, 2), tag=tag)
def dsw64(addr, src, off):
    return Ins("ds_write_b64 v%d, %s offset:%d" % (addr, rng("v", src, 2), off), "W", ["v%d" % addr] + R("v", src, 2), [])
def dma(voff, sr, soff, off, tag, m0, aux=""):
    if sr == sK_ and cfg.k_aux: aux = cfg.k_aux
    if sr == sV_ and cfg.v_aux: aux = cfg.v_aux
    i = Ins("buffer_load_dwordx4 v%d, %s, s%d offen offset:%d %slds" % (voff, srd(sr), soff, off, aux + " " if aux else ""), "X",
            ["v%d" % voff, "s%d" % soff, "m0"] + srdr(sr), [], tag=tag)
    i.cmt = m0
    return i
def store(src, soff, off, tag=None, p="a", sr=sO_):
    return Ins("buffer_store_dwordx4 %s, v%d, %s, s%d offen offset:%d%s" % (rng(p, src, 4), OS, srd(sr), soff, off, " " + cfg.o_aux if cfg.o_aux else ""), "X",
               R(p, src, 4) + ["v%d" % OS, "s%d" % soff] + srdr(sr), [], tag=tag)
def setm0(m0):
    return s2("s_add_u32", "m0", "s%d" % m0[0], str(m0[1]))

if cfg.qkord == 0:   QKSEQ = [(f // 4, q, f % 4) for f in range(8) for q in range(2)]
elif cfg.qkord == 1: QKSEQ = [(kt, q, s if q == 0 else 3 - s) for kt in range(2) for q in range(2) for s in range(4)]
else:                QKSEQ = [(c // 2, (0, 1, 1, 0)[c], s if c % 2 == 0 else 3 - s) for c in range(4) for s in range(4)]
def kfirst(f): return min(i for i, (kt, q, s) in enumerate(QKSEQ) if 4 * kt + s == f)
def klast(f): return max(i for i, (kt, q, s) in enumerate(QKSEQ) if 4 * kt + s == f)
def sdone(q, kt): return max(i for i, x in enumerate(QKSEQ) if x[:2] == (kt, q))
def qfirst(q, s): return min(i for i, x in enumerate(QKSEQ) if x[1:] == (q, s))
GRP = sorted([(q, kt) for q in range(2) for kt in range(2)], key=lambda g: sdone(*g))
KORD = sorted(range(8), key=kfirst)
def qk_block(h):
    L = []; seen = set()
    for kt, q, s in QKSEQ:
        L.append(mfma("v", S_(h, q, kt), "a", AK + 4 * (4 * kt + s), "a", AQ + 16 * (2 * h + q) + 4 * s, czero=((kt, q) not in seen)))
        seen.add((kt, q))
    return L
def pvpos(b, q):
    if cfg.qmaj: return 9 * q + 1 + b
    return 2 * b + q + (1 if b >= 3 else 0) + (1 if b >= 6 else 0)
def pfirst(q): return 9 * q if cfg.qmaj else q
def pv_block(h, first):
    L = []
    if cfg.qmaj:
        for q in range(2):
            L.append(mfma("a", AL + 4 * (2 * h + q), "a", AONE, "v", P_(h, q), czero=first))
            for b in range(8): L.append(mfma("v", O_(2 * h + q, b), "a", AV + 4 * b, "v", P_(h, q), czero=first))
        return L
    for b in range(8):
        for q in range(2):
            L.append(mfma("v", O_(2 * h + q, b), "a", AV + 4 * b, "v", P_(h, q), czero=first))
        if b in (2, 5):
            q = b // 4
            L.append(mfma("a", AL + 4 * (2 * h + q), "a", AONE, "v", P_(h, q), czero=first))
    return L

class Item:
    def __init__(self, ins, ready, dead, target, deps=()):
        self.ins = ins; self.ready = ready; self.dead = dead; self.target = target; self.deps = list(deps); self.gap = None
        k = ins.kind
        self.cost = 8 if k in ("T", "X", "W") else 4
class Gap:
    def __init__(self, m):
        self.pre = []; self.m = m; self.sh = [lsite()]; self.ds = []; self.va = []
    def flat(self): return self.pre + [self.m] + self.sh + self.ds + self.va

def schedule(gaps, items, name):
    n = len(gaps)
    todo = sorted(items, key=lambda i: (i.target, i.dead))
    for g in range(n):
        G = gaps[g]
        def ok(it):
            if it.ready > g: return False
            for d, dist in it.deps:
                if d.gap is None or d.gap + dist > g: return False
            return True
        def place(it):
            it.gap = g; todo.remove(it)
            (G.ds if it.ins.kind in ("D", "W", "X") else G.va).append(it.ins)
        def isst(ins): return ins.kind == "X" and "store" in ins.text
        def fits(it, used):
            k = it.ins.kind
            if any(x.kind == "X" and not (cfg.xopt and isst(x)) for x in G.ds): return False
            if k == "X": return used == 0 and not G.ds
            return True
        used = 0
        cap = 8
        for it in [x for x in todo if x.dead <= g]:
            if ok(it) and fits(it, used): place(it); used += it.cost
        if cfg.xopt and used == 0:
            xs = [it for it in todo if it.ins.kind == "X" and ok(it) and it.target <= g]
            nx = [it for it in todo if it.ins.kind == "X" and not isst(it.ins) and it.target <= g + 1 and it.ready <= g + 1
                  and all(d.gap is not None and d.gap + dist <= g + 1 for d, dist in it.deps)]
            if xs:
                place(xs[0])
                if isst(xs[0].ins): cap = cfg.stcap
                else: used = 8
            elif nx and cfg.xopt == 1:
                ds = [it for it in todo if it.ins.kind == "D" and ok(it)]
                if len(ds) >= 2:
                    place(ds[0]); place(ds[1]); used = 8
        while used < cap:
            c = [it for it in todo if ok(it) and fits(it, used) and it.cost <= cap - used and not (cfg.xopt and it.ins.kind == "X")]
            if not c: break
            it = c[0]
            if used == 0 and it.cost == 4:
                dep_next = [x for x in todo if x.cost == 4 and x is not it and x.ready <= g and all((d.gap is not None and d.gap + dist <= g) or (d is it and dist == 0) for d, dist in x.deps)]
                eight = [x for x in c if x.cost == 8]
                if not dep_next and eight and it.dead > g: it = eight[0]
            place(it); used += it.cost
        c = [it for it in todo if ok(it) and fits(it, used) and it.cost == 4 and it.target < g - cfg.lag]
        if c and used > 0 and not (cfg.xopt == 1 and G.ds and not G.va and len(G.ds) == 2):
            place(c[0]); used += 4
        while True:
            over = False
            dem = 0
            for it in sorted(todo, key=lambda i: min(i.dead, n - 1)):
                dem += 12 if it.ins.kind == "X" else it.cost
                d = min(it.dead, n - 1)
                if dem > 12 * (d - g): over = True; break
            if not over: break
            c = sorted([it for it in todo if ok(it) and fits(it, used)], key=lambda i: (min(i.dead, n - 1), i.target))
            if not c: break
            place(c[0]); used += c[0].cost
    if todo:
        raise Exception("%s: unscheduled items: %s" % (name, [(i.ins.text, i.ready, i.dead) for i in todo]))
    for it in items:
        if it.gap > it.dead: raise Exception("%s: deadline miss %s gap %d > %d" % (name, it.ins.text, it.gap, it.dead))

def softmax_items(h, base, rdy, dead, lo=(0, 0, 0), hi=(16, 16, 8), carry=None):
    its = []; M = {}; E = {}
    def reg(e):
        q, kt = GRP[e // 4]
        return q, kt, S_(h, q, kt) + e % 4
    for e in range(lo[0], hi[0] if not (cfg.fakepre or cfg.pre) else lo[0]):
        q, kt, r = reg(e)
        M[e] = Item(mul_(r), rdy(q, kt), dead(q) - 2, base + 2 * e); its.append(M[e])
    for e in range(lo[1], hi[1]):
        q, kt, r = reg(e)
        E[e] = Item(exp_(r), rdy(q, kt), dead(q) - 1, base + 2 * e + 1, [(M[e], 0)] if e in M else []); its.append(E[e])
    for j in range(lo[2], hi[2]):
        q, kt, r = reg(2 * j)
        deps = [(E[e], 1) for e in (2 * j, 2 * j + 1) if e in E]
        its.append(Item(cvt_(P_(h, q) + 2 * kt + j % 2, r, r + 1), rdy(q, kt), dead(q), base + 4 * j + 4, deps))
    return its

def kread(f, slot, dT):
    return dsr128("a", AK + 4 * f, KA + f % 4, slot * 8192 + (f // 4) * 4096, ("K", dT))
def vread(b, jj, slot, dT):
    return dstr(AV + 4 * b + 2 * jj, VA + b, slot * 8192 + jj * 4096, ("V", dT))
_uid = [0]
def kd(lead=None):
    _uid[0] += 1
    L = [dma(DA, sK_, sKo, 0, ("K", "a"), (sMKn, 0, _uid[0]), cfg.kv_aux), dma(DB, sK_, sKo, 1024, ("K", "b"), (sMKn, 0, _uid[0]), cfg.kv_aux)]
    for x in L: x.needs = lead
    return L
def vd(lead=None):
    _uid[0] += 1
    L = [dma(DA, sV_, sVo, 0, ("V", "a"), (sMVn, LDS_V, _uid[0]), cfg.kv_aux), dma(DB, sV_, sVo, 1024, ("V", "b"), (sMVn, LDS_V, _uid[0]), cfg.kv_aux)]
    for x in L: x.needs = lead
    return L
def kv_dmas(t, lead):
    return kd(lead + 1) + vd(lead)
def q_dmas(h, du, msgpr=sMS, mconst=0):
    return [dma(DA if i % 2 == 0 else DB, sQ_, sQT + 4 * h + i // 2, (i % 2) * 1024, ("Q", h, du), (msgpr, mconst + (i // 2) * 2048), cfg.q_aux) for i in range(8)]
def q_reads(dst, h, du, addr=QA, p="a"):
    return [dsr128(p, dst + 16 * q + 4 * s, addr + s, q * 4096, ("Q", h, du)) for q in range(2) for s in range(4)]

def pre_ops(i, k):
    r = QR + i; a = PT + 2 * k
    return [v2("v_lshlrev_b32", "v%d" % a, "16", "v%d" % r), v2("v_and_b32", "v%d" % (a + 1), "0xffff0000", "v%d" % r), mul_(a), mul_(a + 1), cvt_(r, a, a + 1)]
def pre_burst(dst, writes=True):
    L = []
    def stage(i, n):
        r = QR + i; a = PT + 2 * (i % 3)
        if n == 0: return [v2("v_lshlrev_b32", "v%d" % a, "16", "v%d" % r), v2("v_and_b32", "v%d" % (a + 1), "0xffff0000", "v%d" % r)]
        if n == 1: return [valu("v_pk_mul_f32 v[%d:%d], v[%d:%d], s[%d:%d]" % (a, a + 1, a, a + 1, sC2, sC2 + 1), R("v", a, 2), R("v", a, 2), "K")]
        if n == 2: return [cvt_(r, a, a + 1)]
        return [v1("v_accvgpr_write_b32", "a%d" % (dst + i), "v%d" % r)] if writes else []
    for i in range(32 + 3):
        for n in (3, 2, 1, 0):
            if 0 <= i - n < 32: L += stage(i - n, n)
    return L
def epi_burst(h, check=True, defer=False):
    L = []
    for q in range(2): L.append(v1("v_accvgpr_read_b32", "v%d" % (ET + q), "a%d" % (AL + 4 * (2 * h + q))))
    for q in range(2): L.append(v1("v_rcp_f32", "v%d" % (ER + 2 * q), "v%d" % (ET + q), "T"))
    if check:
        for q in range(2): L.append(v2("v_subrev_u32", "v%d" % (EU + q), "s%d" % sLO, "v%d" % (ET + q)))
        L.append(valu("v_cmp_le_u32 vcc, s%d, v%d" % (sRG, EU), ["s%d" % sRG, "v%d" % EU], ["vcc"]))
        L.append(valu("v_cmp_le_u32 s[%d:%d], s%d, v%d" % (sCMP, sCMP + 1, sRG, EU + 1), ["s%d" % sRG, "v%d" % (EU + 1)], R("s", sCMP, 2)))
    else:
        L.append(nop(1))
    for q in range(2):
        for b in range(8):
            for i in range(2):
                a = O_(2 * h + q, b) + 2 * i
                L.append(valu("v_pk_mul_f32 v[%d:%d], v[%d:%d], v[%d:%d] op_sel_hi:[1,0]" % (a, a + 1, a, a + 1, ER + 2 * q, ER + 2 * q + 1),
                              R("v", a, 2) + ["v%d" % (ER + 2 * q)], R("v", a, 2), "K"))
    sor = []
    if check:
        sor = [salu("s_or_b64 s[%d:%d], s[%d:%d], vcc" % (sACC, sACC + 1, sACC, sACC + 1), ["vcc"] + R("s", sACC, 2), R("s", sACC, 2)),
               salu("s_or_b64 s[%d:%d], s[%d:%d], s[%d:%d]" % (sACC, sACC + 1, sACC, sACC + 1, sCMP, sCMP + 1), R("s", sCMP, 2) + R("s", sACC, 2), R("s", sACC, 2))]
        if not cfg.finchk: L += sor
    for q in range(2):
        for bp in range(4):
            a = O_(2 * h + q, 2 * bp)
            for i in range(4): L.append(cvt_(a + i, a + 2 * i, a + 2 * i + 1))
            if check and cfg.finchk and (q, bp) != (0, 0):
                pa = a - 8
                L.append(mfma("a", ACHK, "a", AZERO, "v", pa, czero=(h == 0 and (q, bp) == (0, 1))))
                if sor: L.append(sor.pop(0))
    last = [mfma("a", ACHK, "a", AZERO, "v", O_(2 * h + 1, 6))] if check and cfg.finchk else []
    if defer: LASTCHK[h] = last
    elif last: L += [nop(2)] + last
    return L
def flag_ops():
    L = []
    if cfg.finchk:
        L.append(v1("v_accvgpr_read_b32", "v%d" % ET, "a%d" % ACHK))
        L.append(valu("v_cmp_u_f32 vcc, v%d, v%d" % (ET, ET), ["v%d" % ET], ["vcc"]))
        L.append(nop(2))
        L.append(salu("s_or_b64 s[%d:%d], s[%d:%d], vcc" % (sACC, sACC + 1, sACC, sACC + 1), ["vcc"] + R("s", sACC, 2), R("s", sACC, 2)))
    L.append(salu("s_cmp_lg_u64 s[%d:%d], 0" % (sACC, sACC + 1), R("s", sACC, 2), ["scc"]))
    L.append(salu("s_addc_u32 s%d, s%d, s%d" % (sBAD, sBAD, sBAD), ["scc", "s%d" % sBAD], ["s%d" % sBAD]))
    L.append(salu("s_mov_b64 s[%d:%d], 0" % (sACC, sACC + 1), [], R("s", sACC, 2)))
    L.append(salu("s_mov_b64 vcc, 0", [], ["vcc"]))
    return L
def o_writes(h):
    L = []
    for q in range(2):
        for bp in range(4):
            a = O_(2 * h + q, 2 * bp); addr = OW + bp % 2
            L.append(Ins("ds_write_b128 v%d, %s offset:%d" % (addr, rng("v", a, 4), (bp // 2) * 128 + q * 4096), "W", ["v%d" % addr] + R("v", a, 4), []))
    return L
def o_reads(h, du):
    L = []
    for j in range(8):
        for i in range(2):
            d = AO + 32 * h + 4 * j + 2 * i; addr = OR_ + 2 * (j % 2) + i
            L.append(Ins("ds_read_b64 %s, v%d offset:%d" % (rng("a", d, 2), addr, j * 1024), "D", ["v%d" % addr], R("a", d, 2), tag=("O", h, du)))
    return L
def tab_add(t): return [s2("s_add_u32", "s%d" % (t + i), "s%d" % (t + i), str(USTRIDE)) for i in range(8)]
def o_stores(h):
    return [store(AO + 32 * h + 4 * j, sOT + 4 * h + j // 2, (j % 2) * 1024) for j in range(8)]
def park_stores():
    return [store(QR + 4 * j, sOT + 4 + j // 2, (j % 2) * 1024, p="v", sr=sO2) for j in range(8)]
USTRIDE = 131072 if cfg.hmap == 0 else 128 * 131072
KSTEP = (8192, 2048, 4096)[cfg.kvmap]
def adv(which, cross):
    o, t, b = (sKo, sKt, sKb) if which == "K" else (sVo, sVt, sVb)
    m = sMKn if which == "K" else sMVn
    if cfg.flag_:
        assert not cfg.rot
        L = [s2("s_add_u32", "s%d" % o, "s%d" % o, "8192")]
        if USTRIDE != 131072:
            L += [s2("s_bfe_u32", "s%d" % t, "s%d" % o, "0x10011"), s2("s_mul_i32", "s%d" % t, "s%d" % t, str(USTRIDE - 131072)), s2("s_add_u32", "s%d" % o, "s%d" % o, "s%d" % t)]
        return L + [s2("s_add_u32", "s%d" % m, "s%d" % m, "8192"), s2("s_and_b32", "s%d" % m, "s%d" % m, "0xffff")]
    M = [s2("s_add_u32", "s%d" % m, "s%d" % m, "8192"), s2("s_and_b32", "s%d" % m, "s%d" % m, "0xffff")]
    if not cfg.rot:
        return M + [s2("s_add_u32", "s%d" % o, "s%d" % o, str(KSTEP + (USTRIDE - 16 * KSTEP if cross else 0)))]
    L = M + [s2("s_add_u32", "s%d" % t, "s%d" % t, str(KSTEP)), s2("s_and_b32", "s%d" % t, "s%d" % t, str(16 * KSTEP - 1))]
    if cross: L.append(s2("s_add_u32", "s%d" % b, "s%d" % b, str(USTRIDE)))
    L.append(s2("s_add_u32", "s%d" % o, "s%d" % b, "s%d" % t))
    return L

LEAD = cfg.lead
LAT = cfg.lat
B0, B1, B2, B3, NG = 0, 16, 34, 50, 68
NW0 = 5
LASTCHK = {}
RAMP_IT = [2, 4, 6, 8][cfg.rskip:cfg.rskip + cfg.lead - cfg.l0]
RAMPS = {}
QA_IT = [cfg.qa0 + i for i in range(4)]; QB_IT = [8, 9, 10, 11]; ST_IT = [1, 6, 7, 12, 13, 14, 15]
QRD = cfg.qa0 + 5; QB_IT = [QRD + 1 + i for i in range(4)] if QRD <= 7 else [QRD + 1, QRD + 2]
ST_IT = ([1] + [t for t in range(2, 16) if t not in QA_IT and t not in QB_IT] + [8])
ST_IT = sorted(ST_IT[:8])
ST_MAP = {t: [2 * i, 2 * i + 1] for i, t in enumerate(ST_IT)} if cfg.stmode == 0 else {(k + 1) % 16: [k] for k in range(16)}
if cfg.stmode == 2: ST_MAP = {6: [0, 1, 2, 3], 7: [4, 5, 6, 7], 12: [8, 9, 10, 11], 13: [12, 13, 14, 15]}
QCNT_A = [2, 2, 2, 2]; QCNT_B = [8 // len(QB_IT)] * len(QB_IT)
if cfg.stmode == 4:
    QA_IT = [2, 3, 4]; QCNT_A = [3, 3, 2]; QRD = 6; QB_IT = [7, 8]; QCNT_B = [4, 4]
    ST_MAP = {9: [0, 1], 10: [2, 3], 11: [4, 5], 12: [6, 7], 13: [8, 9, 10], 14: [11, 12, 13], 15: [14, 15]}
if cfg.stmode == 5:
    QA_IT = [2, 3, 4]; QCNT_A = [3, 3, 2]; QRD = 6; QB_IT = [7, 8, 9]; QCNT_B = [3, 3, 2]
    ST_MAP = {10: [0, 1, 2], 11: [3, 4, 5], 12: [6, 7], 13: [8, 9, 10], 14: [11, 12, 13], 15: [14, 15]}
if cfg.park:
    assert cfg.stmode == 0 and not cfg.pre
    ST_MAP = {1: [0, 1], 6: [8, 9], 7: [10, 11], 8: [12, 13], 12: [14, 15], 13: [2, 3], 14: [4, 5], 15: [6, 7]}
if cfg.stmode == 3: ST_MAP = {12: [0, 1, 2, 3], 13: [4, 5, 6, 7], 14: [8, 9, 10, 11], 15: [12, 13, 14, 15]}

class Seg:
    def __init__(self): self.gaps = []; self.sitems = []; self.head = []; self.tail = []; self.post = []

def build_iter(t, first=False):
    sg = Seg()
    if first:
        b0, b1, b2, b3, ng = 0, None, 16, 32, 50
        mf = qk_block(0) + qk_block(1) + pv_block(0, True)
    else:
        b0, b1, b2, b3, ng = B0, B1, B2, B3, NG
        mf = qk_block(0) + pv_block(1, t == 1) + qk_block(1) + pv_block(0, t == 0)
    gaps = [Gap(m) for m in mf]
    items = []
    INF = 10 ** 6
    slot = t % 8; nslot = (t + 1) % 8
    isbar = (t % cfg.barper == 0)
    bar_gap = cfg.bargap
    if not first:
        items += softmax_items(1, cfg.sm0 + 34 - NG, lambda q, kt: 0, lambda q: b1 + pfirst(q) - 2, lo=(cfg.e0, cfg.e0, cfg.c0))
        for i in range(cfg.f0, 8):
            f = KORD[i]
            items.append(Item(kread(f, slot, 0), 0, kfirst(f) - LAT, cfg.kt0 + cfg.kts * i - NG))
    items += softmax_items(0, (cfg.sm0 if not first else 12), lambda q, kt: b0 + sdone(q, kt) + cfg.rdy, lambda q: b3 + pfirst(q) - 2)
    items += softmax_items(1, b3 - B3 + cfg.sm0 + 34, lambda q, kt: b2 + sdone(q, kt) + cfg.rdy, lambda q: INF, hi=(cfg.e0, cfg.e0, cfg.c0))
    for b in range(8):
        for jj in range(2):
            rdy = (b1 + pvpos(b, 1)) if not first else cfg.fbar + 1
            items.append(Item(vread(b, jj, slot, 0), max(rdy, bar_gap + 1), b3 + pvpos(b, 0) - LAT, (cfg.vt0 + cfg.vts * (2 * b + jj)) if not first else cfg.fbar + 1 + b + jj * 0.5))
    for i in range(cfg.f0):
        f = KORD[i]
        items.append(Item(kread(f, nslot, 1), max(b2 + klast(f), cfg.fbar + 1 if first else 0), min(ng - 1, ng + kfirst(f) - LAT), b3 - B3 + cfg.kt0 + cfg.kts * i))
    def chain(lst, targets, ready, dead=INF, dist=1, after=None):
        p = after; res = []
        for k, (ins, tgt) in enumerate(zip(lst, targets)):
            dd = dead[k] if isinstance(dead, list) else dead
            it = Item(ins, ready, dd, tgt, [(p, dist)] if p else []); items.append(it); p = it; res.append(it)
        return res
    if first:
        lst = []
        for n in range(cfg.l0 + 1 + cfg.front): lst += [("V", vd()), ("K", kd())]
        if cfg.early: lst = lst[1:]
        p = None; tg = 1
        for k, (w, pr) in enumerate(lst):
            rdy = 1 if k < 8 - cfg.early else cfg.fbar + 2
            its = chain(pr, [tg, tg + 1], rdy, after=p, dist=1); p = its[1]; tg += 2 if k < 4 else 3
            sg.post.append((its[1], adv(w, False)))
        gaps[7].sh.append(vsite([("Q", 1, 0)]))
        if cfg.pre:
            for i, ins in enumerate(q_reads(QR, 1, 0, addr=TM, p="v")): items.append(Item(ins, 8, 11, 8 + 0.5 * i))
            gaps[16].pre += [lsite()] + pre_burst(AQ + 32) + [nop(1)]
        else:
          for i, ins in enumerate(q_reads(AQ + 32, 1, 0, addr=TM)):
            items.append(Item(ins, 8, 16 - LAT + qfirst(i // 4, i % 4) + 1, 8 + 0.5 * qfirst(i // 4, i % 4)))
        al = lsite(); al.needs = "all"
        gaps[cfg.fbar].sh += [al, vsite([("V", 0), ("K", 1)]), bar()]
        if cfg.barper == 2: gaps[ng - 1].va += [vsite([("V", 1), ("K", 2)]), bar()]
    else:
        if cfg.front:
            assert cfg.barper == 2
            if isbar:
                p = None
                for j in range(2):
                    dm = kv_dmas(t, LEAD + j)
                    kvits = chain(dm, [cfg.x0 + cfg.fxs * (4 * j + i) for i in range(4)], bar_gap + 2, after=p, dist=cfg.fxs - 1)
                    p = kvits[3]
                    sg.post.append((kvits[1], adv("K", (t + j + LEAD + 2) % 16 == 0)) if j == 0 else None) if False else None
                    for a in adv("K", (t + j + LEAD + 2) % 16 == 0): sg.sitems.append((a, ("after", kvits[1]), None))
                    for a in adv("V", (t + j + LEAD + 1) % 16 == 0): sg.sitems.append((a, ("after", kvits[3]), None))
        else:
            dm = kv_dmas(t, LEAD)
            dmt = [cfg.x0 + cfg.xs * i for i in range(4)] if isbar else [cfg.x1 + cfg.xs * i for i in range(4)]
            kvits = chain(dm, dmt, (bar_gap + 2) if isbar else 1)
            for a in adv("K", (t + LEAD + 2) % 16 == 0): sg.sitems.append((a, ("after", kvits[1]), None))
            for a in adv("V", (t + LEAD + 1) % 16 == 0): sg.sitems.append((a, ("after", kvits[3]), None))
        if isbar:
            needs = [("V", 0), ("K", 1)] + ([("V", 1), ("K", 2)] if cfg.barper == 2 else [])
            if t in RAMP_IT:
                r = Ins("s_cbranch_vccnz L_ramp%dA\nL_back%d:" % (t, t), "RAMP", ["vcc"]); r.cmt = "ramp%d" % t
                gaps[bar_gap - 2].sh.append(r)
                k = RAMP_IT.index(t)
                for role in ("A", "B"):
                    L = [vsite(needs)]
                    for w, pr in (("V", vd()), ("K", kd())):
                        follower = (w == "V") == (role == "A")
                        if follower and k >= len(RAMP_IT) - cfg.flag_: continue
                        L += [setm0(pr[0].cmt), nop(1)] + pr + adv(w, False)
                    if t == RAMP_IT[-1]: L.append(salu("s_mov_b64 vcc, 0", [], ["vcc"]))
                    L.append(raw("s_branch L_back%d" % t, "BR"))
                    if role == "A": L[0:0] = [raw("s_bitcmp1_b32 s2, 3"), raw("s_cbranch_scc1 L_ramp%dB" % t)]
                    RAMPS["ramp%d%s" % (t, role)] = L
            gaps[bar_gap - 1].sh.append(vsite(needs))
            gaps[bar_gap].sh.append(bar())
    XT = [cfg.xt, cfg.xt + cfg.xts]
    if not first and t == 0:
        gaps[0].pre += epi_burst(0, defer=True)
        gaps[1].pre += LASTCHK[0]
        W = chain(o_writes(0), [1.5 + 3.5 * i for i in range(8)], 0, 38)
        chain(o_reads(0, -1), [29 + 1.1 * j for j in range(16)], 0, 47, dist=0, after=W[7])
        gaps[48].pre += epi_burst(1, defer=True)
        gaps[49].pre += LASTCHK[1]
        chain(o_writes(1)[:NW0], [49.5 + 4 * i for i in range(NW0)], 48)
        for i in range(16, 32) if not cfg.pre else []:
            items.append(Item(v1("v_accvgpr_mov_b32", "a%d" % (AQ + 32 + i), "a%d" % (AQN + i)), 0, b2 - 2, 2 * (i - 16)))
        for i in range(32) if cfg.pre else []:
            items.append(Item(v1("v_accvgpr_write_b32", "a%d" % (AQ + 32 + i), "v%d" % (QR + i)), 0, b2 - 2, i))
        fo = flag_ops()
        if cfg.finchk:
            i1 = Item(fo[0], 56, INF, 56); i2 = Item(fo[1], 56, 62, 57, [(i1, 0)]); items += [i1, i2]
            sg.sitems.append((fo[3], ("after2", i2), None)); sg.sitems.append(([fo[4], fo[5]], ("after2", i2), None))
            sg.sitems.append((fo[6], ("after2", i2), None)); sg.sitems.append((fo[7], ("after2", i2), None))
        else:
            gaps[60].pre += fo
    if t == 1:
        ws = o_writes(1)[NW0:]
        W = chain(ws, [0.5 + 4 * i for i in range(len(ws))], 0, [b1 + pvpos(2 * ((NW0 + i) % 4), (NW0 + i) // 4) - 1 for i in range(len(ws))])
        chain(o_reads(1, -1), [16 + 2 * j for j in range(16)], 0, INF, dist=0, after=W[-1])
        al = lsite(); al.needs = "all"; gaps[ng - 1].sh.insert(1, al)
    if not first and ST_MAP.get(t):
        ks = ST_MAP[t]
        tg = {1: [cfg.stgap], 2: XT, 3: [46, 53, 60], 4: [36, 42, 48, 54]}[len(ks)] if t not in (0, 1) else ([50, 54] if t == 1 else [20])
        st = chain([(park_stores() if cfg.park and k >= 8 else o_stores(k // 8))[k % 8] for k in ks], tg, 18, 65 if t != 0 else 30)
        for k, it in zip(ks, st):
            if k == (7 if cfg.park else 15):
                if cfg.park: sg.sitems.append((smov("s%d" % (sO2 + 2), "s%d" % (sO_ + 2)), ("after", it), None))
                for a in tab_add(sOT): sg.sitems.append((a, ("after", it), None))
            if k == (7 if cfg.park else 15):
                sg.sitems.append((smov("s%d" % (sO_ + 2), "s%d" % sONR), ("after", it), None))
    for h, its in ((1 - cfg.pre, QA_IT), (cfg.pre, QB_IT)):
        if t in its:
            k = its.index(t)
            if k == 0:
                pass
            cn = QCNT_A if its is QA_IT else QCNT_B
            npi = cn[k]; o = sum(cn[:k])
            qd = chain(q_dmas(h, 1)[o:o + npi], {2: XT, 3: [46, 53, 60], 4: [44, 50, 56, 62]}[npi], 43, 65)
    if t == QB_IT[-1] + 1:
        class Z: gap = -1
        for a in tab_add(sQT): sg.sitems.append((a, ("after", Z), None))
    if cfg.wbl2 and t == cfg.wbl2:
        sg.head += [raw("s_cmp_lg_u32 s%d, 0" % sCNT), raw("s_cbranch_scc1 L_nowb"), raw("s_cmp_lg_u32 s%d, 0" % sW), raw("s_cbranch_scc1 L_nowb"),
                    raw("buffer_wbl2 sc1"), raw("L_nowb:")]
    if cfg.park and t in (13, 14):
        for i in range(16):
            r = 16 * (t - 13) + i
            items.append(Item(v1("v_accvgpr_read_b32", "v%d" % (QR + r), "a%d" % (AO + 32 + r)), 0, INF, 2 + 4 * i))
    if cfg.park and t == 10:
        r = Ins("s_cbranch_scc1 L_last\nL_lastback:", "LAST", ["scc"]); r.cmt = "last"
        sg.head += [raw("s_cmp_eq_u32 s%d, 0" % sCNT), r]
        L = [s2("s_add_u32", "s%d" % (sLT + i), "s%d" % (sOT + 4 + i), str(USTRIDE)) for i in range(4)]
        L += [store(AO + 32 + 4 * j, sLT + j // 2, (j % 2) * 1024) for j in range(8)] + [raw("s_branch L_lastback", "BR")]
        RAMPS["last"] = L
    if t == QRD:
        gaps[29].sh.append(vsite([("Q", 1 - cfg.pre, 1)]))
        for i, ins in enumerate(q_reads(AQN, 1, 1) if not cfg.pre else q_reads(QR, 0, 1, p="v")):
            items.append(Item(ins, 30, INF, 30 + 4 * i))
        al = lsite(); al.needs = "all"; gaps[ng - 1].sh.insert(1, al)
    if cfg.fakepre and 8 <= t <= 14:
        for i in range(23):
            r = 2 + (i % 4)
            op = [v2("v_and_b32", "v%d" % r, "0xffff0000", "v10"), v2("v_lshlrev_b32", "v%d" % r, "16", "v10"), mul_(r), mul_(r), cvt_(8, 2, 3)][i % 5]
            items.append(Item(op, 0, INF, 3 * i))
    if cfg.fakepre and t == 15:
        for i in range(32):
            sg.tail += [v2("v_and_b32", "v3", "0xffff0000", "v10"), v2("v_lshlrev_b32", "v2", "16", "v10"),
                        valu("v_pk_mul_f32 v[4:5], v[2:3], v[6:7]", [], [], "K"), cvt_(8, 4, 5), v1("v_accvgpr_write_b32", "a%d" % (AQN + i), "v8")]
    if cfg.pre and QRD < t < 15:
        n = 14 - QRD; lo_ = (t - QRD - 1) * 32 // n; hi_ = (t - QRD) * 32 // n
        last = {}
        for j, i in enumerate(range(lo_, hi_)):
            k = i % 3; p = last.get(k); base = j * (ng - 6.0) / (hi_ - lo_)
            for m, op in enumerate(pre_ops(i, k)):
                it = Item(op, 0, INF, base + 2.2 * m, [(p, 0)] if p else []); items.append(it); p = it
            last[k] = p
    if cfg.pre and t == 15:
        gaps[15].sh.append(vsite([("Q", 1, 1)]))
        Wr = [Item(v1("v_accvgpr_write_b32", "a%d" % (AQ + i), "v%d" % (QR + i)), 16, 56, 16 + i) for i in range(32)]
        items += Wr
        for i, ins in enumerate(q_reads(QR, 1, 1, p="v")):
            items.append(Item(ins, 16, ng - 6, 22 + 4.5 * i, [(w, 1) for w in Wr[4 * i:4 * i + 4]]))
        sg.tail += [lsite()] + pre_burst(None, writes=False)
    if t == 15 and not cfg.pre:
        gaps[15].sh.append(vsite([("Q", 0, 1)]))
        for i, ins in enumerate(q_reads(AQ, 0, 1)):
            items.append(Item(ins, 16, ng - 1 - LAT, 17 + 5 * i))
        for i in range(16):
            items.append(Item(v1("v_accvgpr_mov_b32", "a%d" % (AQ + 32 + i), "a%d" % (AQN + i)), b3, INF, b3 + i))
    schedule(gaps, items, "it%d%s" % (t, "f" if first else ""))
    for it, ops in sg.post: gaps[it.gap].va += ops
    sg.gaps = gaps
    return sg

def place_scalar(sg):
    gaps = sg.gaps
    def busy(G): return sum(1 for x in G.sh if (x.kind not in ("LSITE", "VSITE")) ) + (1 if any(x.kind in ("LSITE", "VSITE") and x.n is not None for x in G.sh) else 0)
    lastpos = {}
    ntail = 0
    for ins, (how, it), _ in sg.sitems:
        lst = ins if isinstance(ins, list) else [ins]
        lo = max(it.gap + (1 if how == "after2" else 0), lastpos.get(id(it), -1)) + 1
        hi = len(gaps)
        for k in range(it.gap + 1, len(gaps)):
            if any(x.kind == "X" and ((x.rd & lst[0].wr) - {"scc"} or (x.cmt and "s%d" % x.cmt[0] in lst[0].wr)) for x in gaps[k].ds): hi = k - 1; break
        c = [k for k in range(lo, hi) if busy(gaps[k]) == 0]
        if c: gaps[c[0]].sh += lst; lastpos[id(it)] = c[0]
        elif hi < len(gaps):
            k = max(lo - 1, min(hi - 1, lo)); gaps[k].sh += lst; lastpos[id(it)] = k - 1
        else: sg.tail[ntail:ntail] = lst; ntail += len(lst); lastpos[id(it)] = len(gaps)
    cur = None; lastx = -1
    for g, G in enumerate(gaps):
        if any("s_mov_b32 m0" in x.text for x in G.pre): cur = None; lastx = max(lastx, g - 1)
        if any(x.kind == "RAMP" for x in G.sh): cur = None; lastx = max(lastx, g)
        for x in G.ds:
            if x.kind == "X" and "m0" in x.rd:
                if cur != x.cmt:
                    src = "s%d" % x.cmt[0]
                    lw = max([k for k in range(g) if any(src in y.wr for y in gaps[k].sh + gaps[k].va)] + [-1])
                    cands = [k for k in range(max(lastx + 1, lw), g)]
                    free = [k for k in cands if busy(gaps[k]) == 0]
                    if cands:
                        k = free[-1] if free else cands[-1]
                        gaps[k].sh.append(setm0(x.cmt))
                    elif any("s_mov_b32 m0" in y.text for y in G.pre):
                        G.pre.append(setm0(x.cmt))
                    else:
                        gaps[lastx].va.append(setm0(x.cmt))
                    cur = x.cmt
                lastx = g

def flat(sg):
    L = list(sg.head)
    for G in sg.gaps: L += G.flat()
    return L + sg.tail

def prologue():
    L = []
    A = L.append
    A(raw("s_cmp_ge_u32 s2, 256")); A(raw("s_cbranch_scc1 L_end"))
    A(raw("s_load_dwordx4 s[36:39], s[0:1], 0")); A(raw("s_load_dwordx4 s[40:43], s[0:1], 16"))
    A(v2("v_lshrrev_b32", "v1", "6", "v0")); A(v2("v_and_b32", "v0", "63", "v0"))
    A(valu("v_readfirstlane_b32 s%d, v1" % sW, ["v1"], ["s%d" % sW]))
    A(v2("v_lshrrev_b32", "v2", "4", "v0"))
    A(v2("v_and_b32", "v3", "15", "v0"))
    if cfg.xmap == 0:
        A(raw("s_and_b32 s45, s2, 7")); A(raw("s_lshr_b32 s46, s2, 4")); A(raw("s_lshl_b32 s45, s45, 4")); A(raw("s_add_u32 s45, s45, s46"))
    else:
        A(raw("s_and_b32 s45, s2, 7")); A(raw("s_lshr_b32 s46, s2, 4")); A(raw("s_lshl_b32 s46, s46, 3")); A(raw("s_add_u32 s45, s45, s46"))
    if cfg.rot:
        A(raw("s_mul_i32 s%d, s45, %d" % (sKt, cfg.rot * KSTEP))); A(raw("s_and_b32 s%d, s%d, %d" % (sKt, sKt, 16 * KSTEP - 1))); A(smov("s%d" % sVt, "s%d" % sKt))
    if cfg.rotq: A(raw("s_mul_i32 s82, s45, %d" % (cfg.rotq * PSTEP)))
    A(raw("s_lshl_b32 s45, s45, %d" % (19 if cfg.hmap == 0 else 17)))
    A(raw("s_bfe_u32 s46, s2, 0x10003")); A(raw("s_lshl_b32 s46, s46, %d" % HSH)); A(raw("s_add_u32 s46, s46, s45"))
    A(s2("s_lshl_b32", "s%d" % sMK, "s%d" % sW, "11"))
    A(v2("v_lshlrev_b32", "v4", "1", "v2")); A(v2("v_xor_b32", "v4", "v3", "v4")); A(v2("v_lshlrev_b32", "v4", "4", "v4"))
    A(v3("v_lshl_add_u32", "v%d" % DA, "v2", "8", "v4")); A(v2("v_xor_b32", "v%d" % DB, "0x80", "v%d" % DA))
    A(smov("s%d" % sMKn, "s%d" % sMK)); A(smov("s%d" % sMVn, "s%d" % sMK))
    if cfg.cpf:
        A(raw("s_lshr_b32 s%d, s2, 3" % sT)); A(raw("s_lshl_b32 s%d, s%d, 2" % (sT, sT))); A(raw("s_add_u32 s%d, s%d, s%d" % (sT, sT, sW)))
        A(raw("s_and_b32 s%d, s%d, 31" % (sT, sT))); A(raw("s_lshl_b32 s%d, s%d, 10" % (sT, sT)))
        A(raw("s_min_u32 s%d, s%d, L_end - L_pc - 1024" % (sT, sT)))
        A(v2("v_lshlrev_b32", "v5", "4", "v0")); A(v2("v_add_u32", "v5", "s%d" % sT, "v5"))
        A(raw("s_getpc_b64 s[58:59]\nL_pc:"))
        A(Ins("global_load_dwordx4 v[72:75], v5, s[58:59]", "X", ["v5"], R("v", 72, 4)))
    A(s2("s_lshl_b32", "s%d" % sMS, "s%d" % sW, "13")); A(s2("s_add_u32", "s%d" % sMS, "s%d" % sMS, str(LDS_S)))
    A(s2("s_lshl_b32", "s%d" % sQo, "s%d" % sW, str(WSH)))
    for i in range(8):
        if cfg.rotq:
            A(s2("s_add_u32", "s%d" % (sQT + i), "s82", str(i * PSTEP))); A(s2("s_and_b32", "s%d" % (sQT + i), "s%d" % (sQT + i), str(8 * PSTEP - 1)))
            A(s2("s_add_u32", "s%d" % (sQT + i), "s%d" % (sQT + i), "s%d" % sQo))
        else: A(s2("s_add_u32", "s%d" % (sQT + i), "s%d" % sQo, str(i * PSTEP)))
    for b in (sQ_, sK_, sV_, sO_): A(smov("s%d" % (b + 3), "0x20000"))
    A(smov("s%d" % (sK_ + 2), str(3 * USTRIDE + 131072))); A(smov("s%d" % (sV_ + 2), str(3 * USTRIDE + 131072)))
    A(smov("s%d" % (sQ_ + 2), str(3 * USTRIDE + QEND))); A(smov("s%d" % sONR, str(3 * USTRIDE + QEND))); A(smov("s%d" % (sO_ + 2), "0"))
    assert not cfg.flag_
    if cfg.kvmap == 0: A(s2("s_lshl_b32", "s%d" % sKo, "s%d" % sW, "11"))
    elif cfg.kvmap == 1: A(s2("s_lshl_b32", "s%d" % sKo, "s%d" % sW, "15"))
    else:
        A(s2("s_and_b32", "s%d" % sKo, "s%d" % sW, "1")); A(s2("s_lshl_b32", "s%d" % sKo, "s%d" % sKo, "11"))
        A(s2("s_lshr_b32", "s%d" % sVo, "s%d" % sW, "1")); A(s2("s_lshl_b32", "s%d" % sVo, "s%d" % sVo, "16")); A(s2("s_add_u32", "s%d" % sKo, "s%d" % sKo, "s%d" % sVo))
    if cfg.rot:
        A(smov("s%d" % sKb, "s%d" % sKo)); A(smov("s%d" % sVb, "s%d" % sKo)); A(s2("s_add_u32", "s%d" % sKo, "s%d" % sKo, "s%d" % sKt))
    A(smov("s%d" % sVo, "s%d" % sKo))
    A(raw("s_waitcnt lgkmcnt(0)"))
    if cfg.stamp2: L += stamp()
    for b, p, o in ((sK_, 38, 45), (sQ_, 36, 46), (sV_, 40, 45), (sO_, 42, 46)):
        A(salu("s_add_u32 s%d, s%d, s%d" % (b, p, o), [], ["s%d" % b])); A(salu("s_addc_u32 s%d, s%d, 0" % (b + 1, p + 1), [], ["s%d" % (b + 1)]))
    def issue(lst):
        cur = None
        for x in lst:
            if x.kind == "X" and cur != x.cmt:
                A(setm0(x.cmt)); A(nop(1)); cur = x.cmt
            A(x)
    k0 = kd(); v0 = vd() if cfg.early else None
    q0 = q_dmas(0, 0)
    if cfg.early:
        issue([k0[0], q0[0], v0[0], k0[1], v0[1]] + adv("K", False) + adv("V", False) + q0[1:])
    else:
        issue(k0 + adv("K", False) + q0)
    A(s2("s_sub_u32", "s%d" % sT, "s%d" % sMS, "32768"))
    issue(q_dmas(1, 0, msgpr=sT))
    if cfg.stamp2: L += stamp()
    for i in range(8): A(s2("s_sub_u32", "s%d" % (sOT + i), "s%d" % (sQT + i), str(USTRIDE * (2 if cfg.park and i >= 4 else 1))))
    if cfg.park:
        A(smov("s%d" % sO2, "s%d" % sO_)); A(smov("s%d" % (sO2 + 1), "s%d" % (sO_ + 1))); A(smov("s%d" % (sO2 + 2), "0")); A(smov("s%d" % (sO2 + 3), "0x20000"))
    L += tab_add(sQT)
    A(v2("v_and_b32", "v5", "7", "v3")); A(v2("v_lshlrev_b32", "v6", "1", "v5"))
    for s in range(4):
        A(v2("v_add_u32", "v7", str(4 * s), "v2")); A(v2("v_xor_b32", "v7", "v7", "v6")); A(v2("v_lshlrev_b32", "v7", "4", "v7"))
        A(v3("v_lshl_add_u32", "v%d" % (KA + s), "v3", "8", "v7"))
        A(v2("v_add_u32", "v%d" % (QA + s), "s%d" % sMS, "v%d" % (KA + s)))
        A(v2("v_subrev_u32", "v%d" % (TM + s), "0x8000", "v%d" % (QA + s)))
    A(v2("v_lshrrev_b32", "v76", "2", "v0"))
    A(v2("v_and_b32", "v77", "7", "v76")); A(v2("v_lshlrev_b32", "v77", "1", "v77"))
    A(valu("v_bfe_u32 v78, v0, 1, 1", ["v0"], ["v78"]))
    A(v2("v_and_b32", "v79", "1", "v0")); A(v2("v_lshlrev_b32", "v79", "3", "v79"))
    A(v3("v_lshl_add_u32", "v79", "v76", "8", "v79")); A(v2("v_add_u32", "v79", str(LDS_V), "v79"))
    for b in range(8):
        A(v2("v_add_u32", "v7", str(2 * b), "v78")); A(v2("v_xor_b32", "v7", "v7", "v77"))
        A(v3("v_lshl_add_u32", "v%d" % (VA + b), "v7", "4", "v79"))
    A(v2("v_lshlrev_b32", "v79", "8", "v3")); A(v2("v_add_u32", "v79", "s%d" % sMS, "v79"))
    A(v2("v_xor_b32", "v78", "v2", "v5"))
    A(v3("v_lshl_add_u32", "v%d" % OW, "v78", "4", "v79")); A(v2("v_xor_b32", "v%d" % (OW + 1), "64", "v%d" % OW))
    A(v2("v_and_b32", "v78", "12", "v3")); A(v2("v_and_b32", "v70", "1", "v3")); A(v3("v_lshl_add_u32", "v78", "v70", "1", "v78"))
    A(v2("v_xor_b32", "v78", "v78", "v2")); A(v2("v_lshlrev_b32", "v78", "4", "v78")); A(v3("v_lshl_add_u32", "v78", "v2", "8", "v78"))
    A(v2("v_and_b32", "v70", "2", "v3")); A(v3("v_lshl_add_u32", "v78", "v70", "2", "v78"))
    A(v2("v_add_u32", "v%d" % OR_, "s%d" % sMS, "v78"))
    for i, x in enumerate((16, 64, 80)): A(v2("v_xor_b32", "v%d" % (OR_ + 1 + i), str(x), "v%d" % OR_))
    A(v2("v_lshlrev_b32", "v%d" % OS, "4", "v0"))
    A(v2("v_and_b32", "v7", "3", "v0")); A(valu("v_cmp_eq_u32 vcc, 0, v7", ["v7"], ["vcc"])); A(v1("v_mov_b32", "v76", "0x3f803f80")); A(v1("v_mov_b32", "v77", "0"))
    A(valu("v_cndmask_b32 v7, v77, v76, vcc", ["v76", "v77", "vcc"], ["v7"]))
    for i in range(4):
        A(v1("v_accvgpr_write_b32", "a%d" % (AONE + i), "v7")); A(v1("v_accvgpr_write_b32", "a%d" % (AZERO + i), "v77"))
    A(smov("s%d" % sC, "0x%08x" % SCALE)); A(smov("s%d" % sC2, "0x%08x" % SCALE)); A(smov("s%d" % (sC2 + 1), "0x%08x" % SCALE))
    if cfg.fakepre: L += [v1("v_mov_b32", "v%d" % i, "1.0") for i in range(2, 12)]
    A(smov("s%d" % sLO, "0x%08x" % LO_BITS)); A(smov("s%d" % sRG, "0x%08x" % (HI_BITS - LO_BITS)))
    A(smov("s%d" % sBAD, "0")); A(salu("s_mov_b64 s[%d:%d], 0" % (sACC, sACC + 1), [], R("s", sACC, 2)))
    A(smov("s%d" % sCNT, "3"))
    A(salu("s_mov_b64 vcc, %d" % (-1 if RAMP_IT else 0), [], ["vcc"]))
    if cfg.stamp2: L += stamp()
    A(vsite([("K", 0), ("Q", 0, 0)]))
    if cfg.stamp2: L += stamp()
    A(bar())
    if cfg.pre:
        L += q_reads(QR, 0, 0, p="v") + [kread(f, 0, 0) for f in KORD] + [lsite()]
        b = pre_burst(AQ)
        for i in range(0, len(b), 20): L += b[i:i + 20] + [lsite()]
        return L + [nop(1), lsite()]
    qr = q_reads(AQ, 0, 0)
    seen = set()
    for kt, q, s in QKSEQ:
        if ("k", kt, s) not in seen: A(kread(4 * kt + s, 0, 0)); seen.add(("k", kt, s))
        if ("q", q, s) not in seen: A(qr[4 * q + s]); seen.add(("q", q, s))
    A(lsite())
    return L

def tail_seg():
    L = []
    sm = []
    for it in softmax_items(1, 0, lambda q, kt: 0, lambda q: 99, lo=(cfg.e0, cfg.e0, cfg.c0)):
        sm.append(it.ins)
        if it.ins.kind == "T" and it.ins.text == exp_(S_(1, *GRP[3]) + 3).text: sm.append(nop(1))
    if cfg.stmode == 1:
        L += [o_stores(1)[7]] + tab_add(sOT)
    if cfg.park: L += tab_add(sOT)[4:]
    gaps = [Gap(m) for m in pv_block(1, False)]
    st = o_stores(0)
    if cfg.tailv == 0:
        L += sm + epi_burst(0)
        for g, w in enumerate(o_writes(0)): gaps[g].ds.append(w)
        rd = o_reads(0, 0)
        for g in range(8): gaps[8 + g].ds += rd[2 * g:2 * g + 2]
        for G in gaps: L += G.flat()
        L += [lsite()] + st[:4]
    else:
        w0 = o_writes(0); r0 = o_reads(0, 0)
        L += [nop(2)] + epi_burst(0) + w0[:4] + r0[:8] + w0[4:] + r0[8:] + sm + [nop(2)]
        for j in range(8): gaps[1 + 2 * j].ds.append(st[j])
        for G in gaps: L += G.flat()
        L += [nop(4)]
        st = [None] * 4
    b1 = epi_burst(1)
    w1 = o_writes(1); r1 = o_reads(1, 0)
    if cfg.tailv < 2:
        k = [i for i, x in enumerate(b1) if x.kind == "K"][-1] + 1
        L += b1[:k] + [lsite()] + st[4:] + b1[k:]
        st = o_stores(1)
        L += w1[:4] + r1[:8] + w1[4:] + r1[8:]
        L += [lsite()] + st[:2] + [lsite()] + st[2:4] + [lsite()] + st[4:6] + [lsite()] + st[6:]
    else:
        head = [x for x in b1 if x.kind not in ("K", "M") and "v_cvt" not in x.text and "s_or" not in x.text and x.kind != "N"]
        pk = [x for x in b1 if x.kind == "K"]; cv = [x for x in b1 if "v_cvt" in x.text]
        mm = [x for x in b1 if x.kind == "M"]; so = [x for x in b1 if "s_or" in x.text]
        st = o_stores(1)
        L += head + pk[:16] + cv[:16] + w1[:4] + r1[:8] + pk[16:] + [lsite()] + st[:4] + cv[16:] + w1[4:] + r1[8:] + so + mm
        L += [lsite()] + st[4:6] + [lsite()] + st[6:] + [nop(6)]
    L += flag_ops()
    return L

def slow_path():
    T = []
    A = T.append
    def emit(l):
        for x in l: A(x.text)
    def wait(): A("s_waitcnt vmcnt(0) lgkmcnt(0)");
    A("s_barrier")
    if cfg.force_slow: A("s_mov_b32 s%d, 15" % sBAD)
    A("s_cmp_eq_u32 s%d, 0" % sBAD); A("s_cbranch_scc1 L_end")
    A("s_lshl_b32 s45, s%d, 13" % sW)
    for i in range(4): A("v_add_u32 v%d, s45, v%d" % (KA + i, KA + i))
    for i in range(8): A("v_add_u32 v%d, s45, v%d" % (VA + i, VA + i))
    A("s_add_u32 s46, s45, %d" % LDS_V)
    A("s_lshl_b32 s%d, s%d, %d" % (sQo, sW, WSH))
    A("v_mov_b32 v%d, v%d" % (TS + 4, DA)); A("v_mov_b32 v%d, v%d" % (TS + 5, DB))
    A("s_mov_b32 s%d, 0" % sCNT)
    A("L_slow_unit:")
    A("s_bitcmp1_b32 s%d, 3" % sBAD); A("s_cbranch_scc0 L_slow_next")
    for i in range(8): A("s_add_u32 s%d, s%d, %d" % (sQT + i, sQo, i * PSTEP)); A("s_mov_b32 s%d, s%d" % (sOT + i, sQT + i))
    wait()
    for h in range(2):
        cur = None
        for x in q_dmas(h, 0):
            if cur != x.cmt: A(setm0(x.cmt).text); A("s_nop 0"); cur = x.cmt
            A(x.text)
        wait(); emit(q_reads(AQ + 32 * h, h, 0)); wait()
    def tile_dma(sr, m0s):
        for i in range(8):
            if i % 4 == 0:
                A("s_add_u32 m0, s%d, %d" % (m0s, (i // 4) * 4096)); A("s_add_u32 s%d, s%d, %d" % (sT, sKo, (i // 4) * 4096))
            A("buffer_load_dwordx4 v%d, %s, s%d offen offset:%d lds" % (TS + 4 + i % 2, srd(sr), sT, (i % 4) * 1024))
    def qk_all():
        emit([kread(f, 0, 0) for f in range(8)]); wait()
        emit(qk_block(0) + qk_block(1)); A("s_nop 7"); A("s_nop 3")
    for i in range(4): A("v_mov_b32 v%d, 0xff800000" % (MX + i))
    A("s_mov_b32 s%d, s%d" % (sKo, sCNT)); A("s_add_u32 s%d, s%d, 131072" % (sVo, sCNT))
    A("L_slow_p1:")
    tile_dma(sK_, 45); wait(); qk_all()
    for h in range(2):
        for q in range(2):
            a = S_(h, q, 0)
            for i in range(4): A("v_max3_f32 v%d, v%d, v%d, v%d" % (MX + 2 * h + q, a + 2 * i, a + 2 * i + 1, MX + 2 * h + q))
    A("s_add_u32 s%d, s%d, 8192" % (sKo, sKo)); A("s_cmp_lt_u32 s%d, s%d" % (sKo, sVo)); A("s_cbranch_scc1 L_slow_p1")
    for op in ("v_permlane32_swap_b32", "v_permlane16_swap_b32"):
        for i in range(4): A("v_mov_b32 v%d, v%d" % (NM + i, MX + i))
        A("s_nop 1")
        for i in range(4): A("%s v%d, v%d" % (op, NM + i, MX + i))
        A("s_nop 1")
        for i in range(4): A("v_max_f32 v%d, v%d, v%d" % (MX + i, MX + i, NM + i))
    for i in range(4): A("v_mul_f32 v%d, s%d, v%d" % (NM + i, sC, MX + i))
    for i in range(128): A("v_mov_b32 v%d, 0" % (OB + i))
    for i in range(16): A("v_accvgpr_write_b32 a%d, 0" % (AL + i))
    A("s_mov_b32 s%d, s%d" % (sKo, sCNT))
    A("L_slow_p2:")
    tile_dma(sK_, 45); tile_dma(sV_, 46); wait(); qk_all()
    emit([vread(b, jj, 0, 0) for b in range(4) for jj in range(2)])
    for h in range(2):
        for q in range(2):
            a = S_(h, q, 0)
            for i in range(8): A("v_fma_f32 v%d, v%d, s%d, -v%d" % (a + i, a + i, sC, NM + 2 * h + q))
            for i in range(8): A("v_exp_f32 v%d, v%d" % (a + i, a + i))
            A("s_nop 0")
            for i in range(4): A(cvt_(P_(h, q) + i, a + 2 * i, a + 2 * i + 1).text)
    emit([vread(b, jj, 0, 0) for b in range(4, 8) for jj in range(2)])
    wait()
    emit(pv_block(0, False) + pv_block(1, False))
    A("s_add_u32 s%d, s%d, 8192" % (sKo, sKo)); A("s_cmp_lt_u32 s%d, s%d" % (sKo, sVo)); A("s_cbranch_scc1 L_slow_p2")
    A("s_nop 7"); A("s_nop 3")
    for h in range(2):
        emit(epi_burst(h, check=False)); emit(o_writes(h) + o_reads(h, 0))
        wait(); emit(o_stores(h)); wait()
    A("L_slow_next:")
    A("s_lshl_b32 s%d, s%d, 1" % (sBAD, sBAD)); A("s_and_b32 s%d, s%d, 15" % (sBAD, sBAD))
    for r in (sCNT, sQo): A("s_add_u32 s%d, s%d, %d" % (r, r, USTRIDE))
    A("s_cmp_lg_u32 s%d, 0" % sBAD); A("s_cbranch_scc1 L_slow_unit")
    return T

def stamp():
    if not cfg.stamp: return []
    return [raw("s_memtime s[58:59]"), raw("s_memrealtime s[62:63]"), raw("s_waitcnt lgkmcnt(0)"),
            raw("s_mov_b32 m0, s57"), raw("s_nop 0"), raw("v_writelane_b32 v38, s58, m0"), raw("v_writelane_b32 v39, s62, m0"), raw("s_add_u32 s57, s57, 1")]
def stamp_out():
    if not cfg.stamp: return []
    if cfg.dbgwg >= 0:
        return [x.text for x in stamp()] + ["s_cmp_lg_u32 s2, %d" % cfg.dbgwg, "s_cbranch_scc1 L_nodbg", "s_cmp_lg_u32 s%d, 0" % sW, "s_cbranch_scc1 L_nodbg",
            "s_load_dwordx2 s[36:37], s[0:1], 32", "s_waitcnt lgkmcnt(0)", "s_mov_b32 s38, 64", "s_mov_b32 s39, 0x20000",
            "v_readfirstlane_b32 s45, v39", "v_lshrrev_b32 v41, 2, v%d" % OS, "s_nop 1", "v_subrev_u32 v39, s45, v39",
            "buffer_store_dword v39, v41, s[36:39], 0 offen", "L_nodbg:"]
    return [x.text for x in stamp()] + ["s_load_dwordx2 s[36:37], s[0:1], 40", "s_waitcnt lgkmcnt(0)", "s_mov_b32 s38, 0x1000000", "s_mov_b32 s39, 0x20000",
            "s_lshl_b32 s45, s2, 2", "s_add_u32 s45, s45, s%d" % sW, "s_lshl_b32 s45, s45, 9", "v_lshrrev_b32 v41, 2, v%d" % OS,
            "buffer_store_dword v38, v41, s[36:39], s45 offen", "buffer_store_dword v39, v41, s[36:39], s45 offen offset:256"]
DOC = """; Generated by a scheduling script (hand-written instruction templates, list-scheduled into MFMA gaps).
;   wave = 64 q rows. S^T = K Q^T and O^T += V^T P^T with 16x16x32 bf16 MFMA, so P feeds the second product
;   sums the row (l) with one more MFMA. Every row is then checked at run time: l must lie in [2^-40, 2^126) and every
;   output must be finite (zero-operand MFMA turns any inf/NaN into NaN). A wave with a row that fails recomputes that
;   block at the end of the kernel with the true row max (two-pass fallback, label L_slow_unit)."""
def main():
    sgs = {"it0f": build_iter(0, True)}
    for t in range(16): sgs["it%d" % t] = build_iter(t)
    def segs():
        d = {"pro": pro, "tail": tl}
        d.update(RAMPS)
        for k, s in sgs.items(): d[k] = flat(s)
        return d
    pro = prologue(); tl = tail_seg()
    if cfg.jitter:
        for t in range(16):
            g = (t * 11 + cfg.jitter * 7) % 60
            sgs["it%d" % t].gaps[g].pre[0:0] = [raw("s_cmp_eq_u32 s%d, %d" % (sW, (t * cfg.jitter + t // 4) % 4)), raw("s_cbranch_scc0 L_j%d" % t), raw("s_sleep %d" % (8 + 5 * (t % 5))), raw("L_j%d:" % t)]
    if cfg.dbgspan:
        pro[2:2] = [raw("s_memrealtime s[60:61]"), raw("s_memtime s[62:63]"), raw("s_waitcnt lgkmcnt(0)"), raw("s_mov_b32 s56, s60"), raw("s_mov_b32 s57, s62")]
        i = [k for k, x in enumerate(pro) if x.kind == "BAR"][0]
        pro[i + 1:i + 1] = [raw("s_memrealtime s[58:59]")]
    if cfg.stamp:
        pro[2:2] = [raw("s_mov_b32 s57, 0")] + stamp()
        i = [k for k, x in enumerate(pro) if x.kind == "BAR"][0]
        pro[i + 1:i + 1] = stamp()
        for t in range(0, 16, cfg.stamp): sgs["it%d" % t].head[0:0] = stamp()
        tl[0:0] = stamp()
        if cfg.stamp3:
            G = sgs["it0"].gaps
            G[0].pre += stamp(); G[16].pre += stamp(); G[34].pre += stamp(); G[48].pre[0:0] = stamp(); G[48].pre += stamp()
            sgs["it1"].head[0:0] = stamp(); sgs["it1"].gaps[34].pre += stamp(); sgs["it2"].head[0:0] = stamp(); sgs["it3"].head[0:0] = stamp()
        if cfg.stamp2:
            sgs["it0f"].gaps[16].pre += stamp(); sgs["it0f"].gaps[cfg.fbar + 1].pre += stamp(); sgs["it0f"].tail[0:0] = stamp()
    traces = []
    for role in ("A", "B"):
        x = dict(role=role, lagK=cfg.flag_ if role == "B" else 0, lagV=cfg.flag_ if role == "A" else 0)
        trace = [("pro", dict(T=0, u=0, first=1, **x)), ("it0f", dict(T=0, u=0, first=1, **x))]
        for u in range(4):
            for t in range(16):
                if (u, t) != (0, 0): trace.append(("it%d" % t, dict(T=16 * u + t, u=u, first=(u == 0 and t < 9), **x)))
        trace.append(("tail", dict(T=64, u=3, **x)))
        traces.append(trace)
    sgs["it0f"].tail.append(raw("s_branch L_it1", "BR"))
    sgs["it15"].tail += [s2("s_sub_u32", "s%d" % sCNT, "s%d" % sCNT, "1"), raw("s_cbranch_scc0 L_it0", "BR")]
    insert_waits(segs(), traces)
    for k, s in sgs.items():
        br = [x for x in s.tail if x.kind == "BR" or "s_sub_u32 s%d" % sCNT in x.text]
        s.tail = [x for x in s.tail if x not in br]
        place_scalar(s)
        s.tail += br
    fs = {k: finalize(v) for k, v in segs().items()}
    errs = sum((verify(fs, tr, {"K": 8, "V": 16, "Q": 8, "O": 16}) for tr in traces), [])
    for e in errs[:40]: sys.stderr.write("ERR " + e + "\n")
    tot = 0
    for k in ["pro", "it0f"] + ["it%d" % t for t in range(16)] + ["tail"]:
        est = issue_estimate(fs[k]); sys.stderr.write("%s:%d " % (k, est))
        if k.startswith("it") and k != "it0f": tot += est
    if cfg.stamp3:
        for k in ("it0", "it1", "it2"):
            parts = [[]]
            for x in fs[k]:
                if "s_memtime" in x.text: parts.append([])
                parts[-1].append(x)
            sys.stderr.write("\n%s parts %s" % (k, [issue_estimate(p) for p in parts]))
    sys.stderr.write("\nunit estimate %d cycles, errors %d\n" % (tot, len(errs)))
    out = []
    hdr = open(os.path.join(os.path.dirname(os.path.abspath(__file__)), "..", "cdna_kernels", NAME + ".s.ref")).read().split("; Override")[0]
    out.append(hdr.rstrip())
    out.append("; @launch grid=(256,1,1) block=(256,1,1) lds=163840")
    out.append(DOC)
    out.append('.amdgcn_target "amdgcn-amd-amdhsa--gfx950"\n.text\n.globl %s_kernel\n.p2align 8\n.type %s_kernel,@function\n%s_kernel:' % (NAME, NAME, NAME))
    par = {}
    def dump(k):
        out.append("; ---- " + k)
        for x in fs[k]:
            if cfg.nocomp and k != "pro" and x.kind in ("M", "V", "T", "K", "D", "W"):
                par[x.kind] = par.get(x.kind, 0) + 1
                if cfg.nocomp == 1 or par[x.kind] % cfg.nocomp == 0: continue
            if cfg.nomem and k != "pro" and x.kind == "X" and (cfg.nomem == 1 or "store" in x.text): continue
            if cfg.nostore and x.kind == "X" and "store" in x.text: continue
            out.append("  " + x.text)
            if cfg.nocomp and "m0" in x.wr: out.append("  s_nop 0")
    dump("pro"); dump("it0f")
    for k in RAMPS: out.append("L_%s:" % k); dump(k)
    out.append(".p2align 6\nL_it0:"); dump("it0"); out.append("L_it1:")
    for t in range(1, 16): dump("it%d" % t)
    dump("tail")
    if cfg.dbgspan:
        out += ["  " + x for x in ["s_waitcnt vmcnt(0)", "s_memrealtime s[60:61]", "s_memtime s[62:63]", "s_load_dwordx2 s[36:37], s[0:1], 32", "s_waitcnt lgkmcnt(0)", "s_mov_b32 s38, 256", "s_mov_b32 s39, 0x20000",
            "s_not_b32 s45, s56", "v_mov_b32 v2, s45", "v_mov_b32 v3, s58", "v_mov_b32 v4, s60", "v_mov_b32 v5, s56", "s_not_b32 s45, s60", "v_mov_b32 v6, s45", "s_sub_u32 s45, s62, s57", "v_mov_b32 v7, s45", "v_mov_b32 v1, 0",
            "s_mov_b64 exec, 1",
            "buffer_atomic_umax v2, v1, s[36:39], 0 offen", "buffer_atomic_umax v3, v1, s[36:39], 0 offen offset:4", "buffer_atomic_umax v4, v1, s[36:39], 0 offen offset:8",
            "buffer_atomic_umax v5, v1, s[36:39], 0 offen offset:12", "buffer_atomic_umax v6, v1, s[36:39], 0 offen offset:16", "buffer_atomic_umax v7, v1, s[36:39], 0 offen offset:20", "s_mov_b64 exec, -1"]]
    if cfg.stamp:
        out.append("  s_waitcnt vmcnt(0)")
        out += [("  " + x if not x.endswith(":") else x) for x in stamp_out()]
    if cfg.nocomp or cfg.nomem or cfg.fakepre: out.append("  s_mov_b32 s%d, 0" % sBAD)
    out += ["  " + x if not x.endswith(":") else x for x in slow_path()]
    out.append("L_end:\n  s_endpgm")
    out.append('.section .rodata,"a"\n.p2align 6\n.amdhsa_kernel %s_kernel' % NAME)
    out.append("  .amdhsa_next_free_vgpr 512\n  .amdhsa_next_free_sgpr 96\n  .amdhsa_accum_offset 256\n  .amdhsa_group_segment_fixed_size 0\n  .amdhsa_kernarg_size 48\n  .amdhsa_user_sgpr_count 2\n  .amdhsa_user_sgpr_kernarg_segment_ptr 1\n  .amdhsa_system_sgpr_workgroup_id_x 1\n.end_amdhsa_kernel")
    open(sys.argv[1], "w").write("\n".join(out) + "\n")
    if errs: sys.exit(1)
main()
```

```python
import sys, os, struct, math
from core import *

class Cfg:
    barper = 2
    finchk = 1
    lat = 7
    k_aux = ""
    v_aux = ""
    kv_aux = "nt"
    q_aux = "nt"
    o_aux = "nt"
    e0 = 10; c0 = 4; f0 = 6
    force_slow = 0
    hmap = 1
    rot = 5
    xmap = 0
    stamp = 0
    tailv = 0
    jitter = 0
    dbgwg = -1
    stamp3 = 0
    stamp2 = 0
    nocomp = 0
    nomem = 0
    nostore = 0
    dbgspan = 0
    lag = 1.5
    lead = 4
    bars = ""
    stcap = 12
    xpair = 0
    xopt = 2
    park = 0
    rskip = 0
    front = 0
    rotq = 3
    qomap = 0
    pre = 0
    wbl2 = 0
    kvmap = 1
    fakepre = 0
    x0 = 17
    x1 = 9
    xs = 8
    xts = 8
    fxs = 6
    xt = 52
    flag_ = 0
    stmode = 0
    qmaj = 0
    bargap = 14
    sm0 = 14
    qkord = 2
    kt0 = 54.0
    kts = 2.48
    vt0 = 18.0
    vts = 2.48
    stgap = 48
    l0 = 2
    cpf = 1
    qa0 = 2
    early = 1
    fbar = 24
    rdy = 5
cfg = Cfg()
for a in sys.argv[2:]:
    k, v = a.split("=")
    setattr(cfg, k, type(getattr(cfg, k))(v))

NAME = "standalone__mha_softmax__near_ridge"
KA = 16; VA = 20; DA = 28; DB = 29; QA = 30; OW = 34; OS = 40; OR_ = 8; QR = 48; PT = 2
ET = 42; ER = 44; EU = 36
MX = 50; NM = 54; TM = 12; TS = 58
PB = 80; SB = 96; OB = 128
def S_(h, q, kt): return SB + 16 * h + 8 * q + 4 * kt
def P_(h, q): return PB + 8 * h + 4 * q
def O_(qt, b): return OB + 32 * qt + 4 * b
AQ = 0; AQN = 64; AK = 96; AV = 128; AO = 160; AL = 224; AONE = 240; AZERO = 244; ACHK = 248
sQ_, sK_, sV_, sO_ = 4, 8, 12, 16
sW = 20; sKo = 21; sVo = 22; sMK = 23; sMV = 24; sQo = 25; sOo = 26; sC = 27; sBAD = 28; sUB = 29; sACC = 30; sCMP = 32
sLO = 34; sRG = 35; sMS = 44; sCNT = 47; sONR = 48; sQa = 50; sQb = 51; sOa = 52; sOb = 53; sT = 54; sKt = 55; sVt = 56; sKb = 80; sVb = 81; sMKn = 29; sMVn = 49; sC2 = 60; sQT = 64; sOT = 72; sO2 = 84; sLT = 88
WSH, PSTEP, HSH, QEND = ((14, 2048, 16, 65536), (11, 8192, 16, 65536), (15, 2048, 14, 114688))[cfg.qomap]
LDS_V = 65536; LDS_S = 131072
SCALE = struct.unpack("<I", struct.pack("<f", math.log2(math.e) / math.sqrt(128.0)))[0]
LO_BITS = (127 - (40 if cfg.finchk else 24)) << 23
HI_BITS = (127 + (126 if cfg.finchk else 24)) << 23

def srd(b): return "s[%d:%d]" % (b, b + 3)
def srdr(b): return R("s", b, 4)

def v2(op, d, a, b, kind="V"):
    rd = [x for x in (a, b) if isinstance(x, str) and x[0] in "vsa" and x[1:].isdigit()]
    return valu("%s %s, %s, %s" % (op, d, a, b), rd, [d], kind)
def v1(op, d, a, kind="V"):
    rd = [a] if isinstance(a, str) and a[0] in "vsa" and a[1:].isdigit() else []
    return valu("%s %s, %s" % (op, d, a), rd, [d], kind)
def v3(op, d, a, b, c):
    rd = [x for x in (a, b, c) if isinstance(x, str) and x[0] in "vsa" and x[1:].isdigit()]
    return valu("%s %s, %s, %s, %s" % (op, d, a, b, c), rd, [d])
def s2(op, d, a, b):
    rd = [x for x in (a, b) if isinstance(x, str) and (x[0] == "s" or x == "m0")]
    return salu("%s %s, %s, %s" % (op, d, a, b), rd, [d, "scc"])
def smov(d, a):
    return salu("s_mov_b32 %s, %s" % (d, a), [a] if isinstance(a, str) and a[0] == "s" else [], [d])
def mul_(r): return v2("v_mul_f32", "v%d" % r, "s%d" % sC, "v%d" % r)
def exp_(r): return v1("v_exp_f32", "v%d" % r, "v%d" % r, "T")
def cvt_(d, a, b): return v2("v_cvt_pk_bf16_f32", "v%d" % d, "v%d" % a, "v%d" % b)
def dsr128(dp, d, addr, off, tag):
    assert 0 <= off < 65536
    return Ins("ds_read_b128 %s, v%d offset:%d" % (rng(dp, d, 4), addr, off), "D", ["v%d" % addr], R(dp, d, 4), tag=tag)
def dstr(d, addr, off, tag):
    assert 0 <= off < 65536
    return Ins("ds_read_b64_tr_b16 %s, v%d offset:%d" % (rng("a", d, 2), addr, off), "D", ["v%d" % addr], R("a", d, 2), tag=tag)
def dsw64(addr, src, off):
    return Ins("ds_write_b64 v%d, %s offset:%d" % (addr, rng("v", src, 2), off), "W", ["v%d" % addr] + R("v", src, 2), [])
def dma(voff, sr, soff, off, tag, m0, aux=""):
    if sr == sK_ and cfg.k_aux: aux = cfg.k_aux
    if sr == sV_ and cfg.v_aux: aux = cfg.v_aux
    i = Ins("buffer_load_dwordx4 v%d, %s, s%d offen offset:%d %slds" % (voff, srd(sr), soff, off, aux + " " if aux else ""), "X",
            ["v%d" % voff, "s%d" % soff, "m0"] + srdr(sr), [], tag=tag)
    i.cmt = m0
    return i
def store(src, soff, off, tag=None, p="a", sr=sO_):
    return Ins("buffer_store_dwordx4 %s, v%d, %s, s%d offen offset:%d%s" % (rng(p, src, 4), OS, srd(sr), soff, off, " " + cfg.o_aux if cfg.o_aux else ""), "X",
               R(p, src, 4) + ["v%d" % OS, "s%d" % soff] + srdr(sr), [], tag=tag)
def setm0(m0):
    return s2("s_add_u32", "m0", "s%d" % m0[0], str(m0[1]))

if cfg.qkord == 0:   QKSEQ = [(f // 4, q, f % 4) for f in range(8) for q in range(2)]
elif cfg.qkord == 1: QKSEQ = [(kt, q, s if q == 0 else 3 - s) for kt in range(2) for q in range(2) for s in range(4)]
else:                QKSEQ = [(c // 2, (0, 1, 1, 0)[c], s if c % 2 == 0 else 3 - s) for c in range(4) for s in range(4)]
def kfirst(f): return min(i for i, (kt, q, s) in enumerate(QKSEQ) if 4 * kt + s == f)
def klast(f): return max(i for i, (kt, q, s) in enumerate(QKSEQ) if 4 * kt + s == f)
def sdone(q, kt): return max(i for i, x in enumerate(QKSEQ) if x[:2] == (kt, q))
def qfirst(q, s): return min(i for i, x in enumerate(QKSEQ) if x[1:] == (q, s))
GRP = sorted([(q, kt) for q in range(2) for kt in range(2)], key=lambda g: sdone(*g))
KORD = sorted(range(8), key=kfirst)
def qk_block(h):
    L = []; seen = set()
    for kt, q, s in QKSEQ:
        L.append(mfma("v", S_(h, q, kt), "a", AK + 4 * (4 * kt + s), "a", AQ + 16 * (2 * h + q) + 4 * s, czero=((kt, q) not in seen)))
        seen.add((kt, q))
    return L
def pvpos(b, q):
    if cfg.qmaj: return 9 * q + 1 + b
    return 2 * b + q + (1 if b >= 3 else 0) + (1 if b >= 6 else 0)
def pfirst(q): return 9 * q if cfg.qmaj else q
def pv_block(h, first):
    L = []
    if cfg.qmaj:
        for q in range(2):
            L.append(mfma("a", AL + 4 * (2 * h + q), "a", AONE, "v", P_(h, q), czero=first))
            for b in range(8): L.append(mfma("v", O_(2 * h + q, b), "a", AV + 4 * b, "v", P_(h, q), czero=first))
        return L
    for b in range(8):
        for q in range(2):
            L.append(mfma("v", O_(2 * h + q, b), "a", AV + 4 * b, "v", P_(h, q), czero=first))
        if b in (2, 5):
            q = b // 4
            L.append(mfma("a", AL + 4 * (2 * h + q), "a", AONE, "v", P_(h, q), czero=first))
    return L

class Item:
    def __init__(self, ins, ready, dead, target, deps=()):
        self.ins = ins; self.ready = ready; self.dead = dead; self.target = target; self.deps = list(deps); self.gap = None
        k = ins.kind
        self.cost = 8 if k in ("T", "X", "W") else 4
class Gap:
    def __init__(self, m):
        self.pre = []; self.m = m; self.sh = [lsite()]; self.ds = []; self.va = []
    def flat(self): return self.pre + [self.m] + self.sh + self.ds + self.va

def schedule(gaps, items, name):
    n = len(gaps)
    todo = sorted(items, key=lambda i: (i.target, i.dead))
    for g in range(n):
        G = gaps[g]
        def ok(it):
            if it.ready > g: return False
            for d, dist in it.deps:
                if d.gap is None or d.gap + dist > g: return False
            return True
        def place(it):
            it.gap = g; todo.remove(it)
            (G.ds if it.ins.kind in ("D", "W", "X") else G.va).append(it.ins)
        def isst(ins): return ins.kind == "X" and "store" in ins.text
        def fits(it, used):
            k = it.ins.kind
            if any(x.kind == "X" and not (cfg.xopt and isst(x)) for x in G.ds): return False
            if k == "X": return used == 0 and not G.ds
            return True
        used = 0
        cap = 8
        for it in [x for x in todo if x.dead <= g]:
            if ok(it) and fits(it, used): place(it); used += it.cost
        if cfg.xopt and used == 0:
            xs = [it for it in todo if it.ins.kind == "X" and ok(it) and it.target <= g]
            nx = [it for it in todo if it.ins.kind == "X" and not isst(it.ins) and it.target <= g + 1 and it.ready <= g + 1
                  and all(d.gap is not None and d.gap + dist <= g + 1 for d, dist in it.deps)]
            if xs:
                place(xs[0])
                if isst(xs[0].ins): cap = cfg.stcap
                else: used = 8
            elif nx and cfg.xopt == 1:
                ds = [it for it in todo if it.ins.kind == "D" and ok(it)]
                if len(ds) >= 2:
                    place(ds[0]); place(ds[1]); used = 8
        while used < cap:
            c = [it for it in todo if ok(it) and fits(it, used) and it.cost <= cap - used and not (cfg.xopt and it.ins.kind == "X")]
            if not c: break
            it = c[0]
            if used == 0 and it.cost == 4:
                dep_next = [x for x in todo if x.cost == 4 and x is not it and x.ready <= g and all((d.gap is not None and d.gap + dist <= g) or (d is it and dist == 0) for d, dist in x.deps)]
                eight = [x for x in c if x.cost == 8]
                if not dep_next and eight and it.dead > g: it = eight[0]
            place(it); used += it.cost
        c = [it for it in todo if ok(it) and fits(it, used) and it.cost == 4 and it.target < g - cfg.lag]
        if c and used > 0 and not (cfg.xopt == 1 and G.ds and not G.va and len(G.ds) == 2):
            place(c[0]); used += 4
        while True:
            over = False
            dem = 0
            for it in sorted(todo, key=lambda i: min(i.dead, n - 1)):
                dem += 12 if it.ins.kind == "X" else it.cost
                d = min(it.dead, n - 1)
                if dem > 12 * (d - g): over = True; break
            if not over: break
            c = sorted([it for it in todo if ok(it) and fits(it, used)], key=lambda i: (min(i.dead, n - 1), i.target))
            if not c: break
            place(c[0]); used += c[0].cost
    if todo:
        raise Exception("%s: unscheduled items: %s" % (name, [(i.ins.text, i.ready, i.dead) for i in todo]))
    for it in items:
        if it.gap > it.dead: raise Exception("%s: deadline miss %s gap %d > %d" % (name, it.ins.text, it.gap, it.dead))

def softmax_items(h, base, rdy, dead, lo=(0, 0, 0), hi=(16, 16, 8), carry=None):
    its = []; M = {}; E = {}
    def reg(e):
        q, kt = GRP[e // 4]
        return q, kt, S_(h, q, kt) + e % 4
    for e in range(lo[0], hi[0] if not (cfg.fakepre or cfg.pre) else lo[0]):
        q, kt, r = reg(e)
        M[e] = Item(mul_(r), rdy(q, kt), dead(q) - 2, base + 2 * e); its.append(M[e])
    for e in range(lo[1], hi[1]):
        q, kt, r = reg(e)
        E[e] = Item(exp_(r), rdy(q, kt), dead(q) - 1, base + 2 * e + 1, [(M[e], 0)] if e in M else []); its.append(E[e])
    for j in range(lo[2], hi[2]):
        q, kt, r = reg(2 * j)
        deps = [(E[e], 1) for e in (2 * j, 2 * j + 1) if e in E]
        its.append(Item(cvt_(P_(h, q) + 2 * kt + j % 2, r, r + 1), rdy(q, kt), dead(q), base + 4 * j + 4, deps))
    return its

def kread(f, slot, dT):
    return dsr128("a", AK + 4 * f, KA + f % 4, slot * 8192 + (f // 4) * 4096, ("K", dT))
def vread(b, jj, slot, dT):
    return dstr(AV + 4 * b + 2 * jj, VA + b, slot * 8192 + jj * 4096, ("V", dT))
_uid = [0]
def kd(lead=None):
    _uid[0] += 1
    L = [dma(DA, sK_, sKo, 0, ("K", "a"), (sMKn, 0, _uid[0]), cfg.kv_aux), dma(DB, sK_, sKo, 1024, ("K", "b"), (sMKn, 0, _uid[0]), cfg.kv_aux)]
    for x in L: x.needs = lead
    return L
def vd(lead=None):
    _uid[0] += 1
    L = [dma(DA, sV_, sVo, 0, ("V", "a"), (sMVn, LDS_V, _uid[0]), cfg.kv_aux), dma(DB, sV_, sVo, 1024, ("V", "b"), (sMVn, LDS_V, _uid[0]), cfg.kv_aux)]
    for x in L: x.needs = lead
    return L
def kv_dmas(t, lead):
    return kd(lead + 1) + vd(lead)
def q_dmas(h, du, msgpr=sMS, mconst=0):
    return [dma(DA if i % 2 == 0 else DB, sQ_, sQT + 4 * h + i // 2, (i % 2) * 1024, ("Q", h, du), (msgpr, mconst + (i // 2) * 2048), cfg.q_aux) for i in range(8)]
def q_reads(dst, h, du, addr=QA, p="a"):
    return [dsr128(p, dst + 16 * q + 4 * s, addr + s, q * 4096, ("Q", h, du)) for q in range(2) for s in range(4)]

def pre_ops(i, k):
    r = QR + i; a = PT + 2 * k
    return [v2("v_lshlrev_b32", "v%d" % a, "16", "v%d" % r), v2("v_and_b32", "v%d" % (a + 1), "0xffff0000", "v%d" % r), mul_(a), mul_(a + 1), cvt_(r, a, a + 1)]
def pre_burst(dst, writes=True):
    L = []
    def stage(i, n):
        r = QR + i; a = PT + 2 * (i % 3)
        if n == 0: return [v2("v_lshlrev_b32", "v%d" % a, "16", "v%d" % r), v2("v_and_b32", "v%d" % (a + 1), "0xffff0000", "v%d" % r)]
        if n == 1: return [valu("v_pk_mul_f32 v[%d:%d], v[%d:%d], s[%d:%d]" % (a, a + 1, a, a + 1, sC2, sC2 + 1), R("v", a, 2), R("v", a, 2), "K")]
        if n == 2: return [cvt_(r, a, a + 1)]
        return [v1("v_accvgpr_write_b32", "a%d" % (dst + i), "v%d" % r)] if writes else []
    for i in range(32 + 3):
        for n in (3, 2, 1, 0):
            if 0 <= i - n < 32: L += stage(i - n, n)
    return L
def epi_burst(h, check=True, defer=False):
    L = []
    for q in range(2): L.append(v1("v_accvgpr_read_b32", "v%d" % (ET + q), "a%d" % (AL + 4 * (2 * h + q))))
    for q in range(2): L.append(v1("v_rcp_f32", "v%d" % (ER + 2 * q), "v%d" % (ET + q), "T"))
    if check:
        for q in range(2): L.append(v2("v_subrev_u32", "v%d" % (EU + q), "s%d" % sLO, "v%d" % (ET + q)))
        L.append(valu("v_cmp_le_u32 vcc, s%d, v%d" % (sRG, EU), ["s%d" % sRG, "v%d" % EU], ["vcc"]))
        L.append(valu("v_cmp_le_u32 s[%d:%d], s%d, v%d" % (sCMP, sCMP + 1, sRG, EU + 1), ["s%d" % sRG, "v%d" % (EU + 1)], R("s", sCMP, 2)))
    else:
        L.append(nop(1))
    for q in range(2):
        for b in range(8):
            for i in range(2):
                a = O_(2 * h + q, b) + 2 * i
                L.append(valu("v_pk_mul_f32 v[%d:%d], v[%d:%d], v[%d:%d] op_sel_hi:[1,0]" % (a, a + 1, a, a + 1, ER + 2 * q, ER + 2 * q + 1),
                              R("v", a, 2) + ["v%d" % (ER + 2 * q)], R("v", a, 2), "K"))
    sor = []
    if check:
        sor = [salu("s_or_b64 s[%d:%d], s[%d:%d], vcc" % (sACC, sACC + 1, sACC, sACC + 1), ["vcc"] + R("s", sACC, 2), R("s", sACC, 2)),
               salu("s_or_b64 s[%d:%d], s[%d:%d], s[%d:%d]" % (sACC, sACC + 1, sACC, sACC + 1, sCMP, sCMP + 1), R("s", sCMP, 2) + R("s", sACC, 2), R("s", sACC, 2))]
        if not cfg.finchk: L += sor
    for q in range(2):
        for bp in range(4):
            a = O_(2 * h + q, 2 * bp)
            for i in range(4): L.append(cvt_(a + i, a + 2 * i, a + 2 * i + 1))
            if check and cfg.finchk and (q, bp) != (0, 0):
                pa = a - 8
                L.append(mfma("a", ACHK, "a", AZERO, "v", pa, czero=(h == 0 and (q, bp) == (0, 1))))
                if sor: L.append(sor.pop(0))
    last = [mfma("a", ACHK, "a", AZERO, "v", O_(2 * h + 1, 6))] if check and cfg.finchk else []
    if defer: LASTCHK[h] = last
    elif last: L += [nop(2)] + last
    return L
def flag_ops():
    L = []
    if cfg.finchk:
        L.append(v1("v_accvgpr_read_b32", "v%d" % ET, "a%d" % ACHK))
        L.append(valu("v_cmp_u_f32 vcc, v%d, v%d" % (ET, ET), ["v%d" % ET], ["vcc"]))
        L.append(nop(2))
        L.append(salu("s_or_b64 s[%d:%d], s[%d:%d], vcc" % (sACC, sACC + 1, sACC, sACC + 1), ["vcc"] + R("s", sACC, 2), R("s", sACC, 2)))
    L.append(salu("s_cmp_lg_u64 s[%d:%d], 0" % (sACC, sACC + 1), R("s", sACC, 2), ["scc"]))
    L.append(salu("s_addc_u32 s%d, s%d, s%d" % (sBAD, sBAD, sBAD), ["scc", "s%d" % sBAD], ["s%d" % sBAD]))
    L.append(salu("s_mov_b64 s[%d:%d], 0" % (sACC, sACC + 1), [], R("s", sACC, 2)))
    L.append(salu("s_mov_b64 vcc, 0", [], ["vcc"]))
    return L
def o_writes(h):
    L = []
    for q in range(2):
        for bp in range(4):
            a = O_(2 * h + q, 2 * bp); addr = OW + bp % 2
            L.append(Ins("ds_write_b128 v%d, %s offset:%d" % (addr, rng("v", a, 4), (bp // 2) * 128 + q * 4096), "W", ["v%d" % addr] + R("v", a, 4), []))
    return L
def o_reads(h, du):
    L = []
    for j in range(8):
        for i in range(2):
            d = AO + 32 * h + 4 * j + 2 * i; addr = OR_ + 2 * (j % 2) + i
            L.append(Ins("ds_read_b64 %s, v%d offset:%d" % (rng("a", d, 2), addr, j * 1024), "D", ["v%d" % addr], R("a", d, 2), tag=("O", h, du)))
    return L
def tab_add(t): return [s2("s_add_u32", "s%d" % (t + i), "s%d" % (t + i), str(USTRIDE)) for i in range(8)]
def o_stores(h):
    return [store(AO + 32 * h + 4 * j, sOT + 4 * h + j // 2, (j % 2) * 1024) for j in range(8)]
def park_stores():
    return [store(QR + 4 * j, sOT + 4 + j // 2, (j % 2) * 1024, p="v", sr=sO2) for j in range(8)]
USTRIDE = 131072 if cfg.hmap == 0 else 128 * 131072
KSTEP = (8192, 2048, 4096)[cfg.kvmap]
def adv(which, cross):
    o, t, b = (sKo, sKt, sKb) if which == "K" else (sVo, sVt, sVb)
    m = sMKn if which == "K" else sMVn
    if cfg.flag_:
        assert not cfg.rot
        L = [s2("s_add_u32", "s%d" % o, "s%d" % o, "8192")]
        if USTRIDE != 131072:
            L += [s2("s_bfe_u32", "s%d" % t, "s%d" % o, "0x10011"), s2("s_mul_i32", "s%d" % t, "s%d" % t, str(USTRIDE - 131072)), s2("s_add_u32", "s%d" % o, "s%d" % o, "s%d" % t)]
        return L + [s2("s_add_u32", "s%d" % m, "s%d" % m, "8192"), s2("s_and_b32", "s%d" % m, "s%d" % m, "0xffff")]
    M = [s2("s_add_u32", "s%d" % m, "s%d" % m, "8192"), s2("s_and_b32", "s%d" % m, "s%d" % m, "0xffff")]
    if not cfg.rot:
        return M + [s2("s_add_u32", "s%d" % o, "s%d" % o, str(KSTEP + (USTRIDE - 16 * KSTEP if cross else 0)))]
    L = M + [s2("s_add_u32", "s%d" % t, "s%d" % t, str(KSTEP)), s2("s_and_b32", "s%d" % t, "s%d" % t, str(16 * KSTEP - 1))]
    if cross: L.append(s2("s_add_u32", "s%d" % b, "s%d" % b, str(USTRIDE)))
    L.append(s2("s_add_u32", "s%d" % o, "s%d" % b, "s%d" % t))
    return L

LEAD = cfg.lead
LAT = cfg.lat
B0, B1, B2, B3, NG = 0, 16, 34, 50, 68
BARS = [int(x) for x in cfg.bars.split(',')] if cfg.bars else list(range(0, 16, cfg.barper))
NW0 = 5
LASTCHK = {}
RAMP_IT = BARS[1:][cfg.rskip:cfg.rskip + cfg.lead - cfg.l0]
RAMPS = {}
QA_IT = [cfg.qa0 + i for i in range(4)]; QB_IT = [8, 9, 10, 11]; ST_IT = [1, 6, 7, 12, 13, 14, 15]
QRD = cfg.qa0 + 5; QB_IT = [QRD + 1 + i for i in range(4)] if QRD <= 7 else [QRD + 1, QRD + 2]
ST_IT = ([1] + [t for t in range(2, 16) if t not in QA_IT and t not in QB_IT] + [8])
ST_IT = sorted(ST_IT[:8])
ST_MAP = {t: [2 * i, 2 * i + 1] for i, t in enumerate(ST_IT)} if cfg.stmode == 0 else {(k + 1) % 16: [k] for k in range(16)}
if cfg.stmode == 2: ST_MAP = {6: [0, 1, 2, 3], 7: [4, 5, 6, 7], 12: [8, 9, 10, 11], 13: [12, 13, 14, 15]}
QCNT_A = [2, 2, 2, 2]; QCNT_B = [8 // len(QB_IT)] * len(QB_IT)
if cfg.stmode == 4:
    QA_IT = [2, 3, 4]; QCNT_A = [3, 3, 2]; QRD = 6; QB_IT = [7, 8]; QCNT_B = [4, 4]
    ST_MAP = {9: [0, 1], 10: [2, 3], 11: [4, 5], 12: [6, 7], 13: [8, 9, 10], 14: [11, 12, 13], 15: [14, 15]}
if cfg.stmode == 5:
    QA_IT = [2, 3, 4]; QCNT_A = [3, 3, 2]; QRD = 6; QB_IT = [7, 8, 9]; QCNT_B = [3, 3, 2]
    ST_MAP = {10: [0, 1, 2], 11: [3, 4, 5], 12: [6, 7], 13: [8, 9, 10], 14: [11, 12, 13], 15: [14, 15]}
if cfg.park:
    assert cfg.stmode == 0 and not cfg.pre
    ST_MAP = {1: [0, 1], 6: [8, 9], 7: [10, 11], 8: [12, 13], 12: [14, 15], 13: [2, 3], 14: [4, 5], 15: [6, 7]}
if cfg.stmode == 3: ST_MAP = {12: [0, 1, 2, 3], 13: [4, 5, 6, 7], 14: [8, 9, 10, 11], 15: [12, 13, 14, 15]}

class Seg:
    def __init__(self): self.gaps = []; self.sitems = []; self.head = []; self.tail = []; self.post = []

def build_iter(t, first=False):
    sg = Seg()
    if first:
        b0, b1, b2, b3, ng = 0, None, 16, 32, 50
        mf = qk_block(0) + qk_block(1) + pv_block(0, True)
    else:
        b0, b1, b2, b3, ng = B0, B1, B2, B3, NG
        mf = qk_block(0) + pv_block(1, t == 1) + qk_block(1) + pv_block(0, t == 0)
    gaps = [Gap(m) for m in mf]
    items = []
    INF = 10 ** 6
    slot = t % 8; nslot = (t + 1) % 8
    isbar = t in BARS
    nextbar = min([x for x in BARS if x > t] + [16])
    bar_gap = cfg.bargap
    if not first:
        items += softmax_items(1, cfg.sm0 + 34 - NG, lambda q, kt: 0, lambda q: b1 + pfirst(q) - 2, lo=(cfg.e0, cfg.e0, cfg.c0))
        for i in range(cfg.f0, 8):
            f = KORD[i]
            items.append(Item(kread(f, slot, 0), 0, kfirst(f) - LAT, cfg.kt0 + cfg.kts * i - NG))
    items += softmax_items(0, (cfg.sm0 if not first else 12), lambda q, kt: b0 + sdone(q, kt) + cfg.rdy, lambda q: b3 + pfirst(q) - 2)
    items += softmax_items(1, b3 - B3 + cfg.sm0 + 34, lambda q, kt: b2 + sdone(q, kt) + cfg.rdy, lambda q: INF, hi=(cfg.e0, cfg.e0, cfg.c0))
    for b in range(8):
        for jj in range(2):
            rdy = (b1 + pvpos(b, 1)) if not first else cfg.fbar + 1
            items.append(Item(vread(b, jj, slot, 0), max(rdy, bar_gap + 1), b3 + pvpos(b, 0) - LAT, (cfg.vt0 + cfg.vts * (2 * b + jj)) if not first else cfg.fbar + 1 + b + jj * 0.5))
    for i in range(cfg.f0):
        f = KORD[i]
        items.append(Item(kread(f, nslot, 1), max(b2 + klast(f), cfg.fbar + 1 if first else 0), min(ng - 1, ng + kfirst(f) - LAT), b3 - B3 + cfg.kt0 + cfg.kts * i))
    def chain(lst, targets, ready, dead=INF, dist=1, after=None):
        p = after; res = []
        for k, (ins, tgt) in enumerate(zip(lst, targets)):
            dd = dead[k] if isinstance(dead, list) else dead
            it = Item(ins, ready, dd, tgt, [(p, dist)] if p else []); items.append(it); p = it; res.append(it)
        return res
    if first:
        lst = []
        for n in range(cfg.l0 + 1 + cfg.front): lst += [("V", vd()), ("K", kd())]
        if cfg.early: lst = lst[1:]
        p = None; tg = 1
        for k, (w, pr) in enumerate(lst):
            rdy = 1 if k < 8 - cfg.early else cfg.fbar + 2
            its = chain(pr, [tg, tg + 1], rdy, after=p, dist=1); p = its[1]; tg += 2 if k < 4 else 3
            sg.post.append((its[1], adv(w, False)))
        gaps[7].sh.append(vsite([("Q", 1, 0)]))
        if cfg.pre:
            for i, ins in enumerate(q_reads(QR, 1, 0, addr=TM, p="v")): items.append(Item(ins, 8, 11, 8 + 0.5 * i))
            gaps[16].pre += [lsite()] + pre_burst(AQ + 32) + [nop(1)]
        else:
          for i, ins in enumerate(q_reads(AQ + 32, 1, 0, addr=TM)):
            items.append(Item(ins, 8, 16 - LAT + qfirst(i // 4, i % 4) + 1, 8 + 0.5 * qfirst(i // 4, i % 4)))
        al = lsite(); al.needs = "all"
        gaps[cfg.fbar].sh += [al, vsite([("V", 0), ("K", 1)]), bar()]
        if nextbar > 1: gaps[ng - 1].va += [vsite([x for i in range(1, nextbar) for x in (("V", i), ("K", i + 1))]), bar()]
    else:
        if cfg.front:
            assert cfg.barper == 2
            if isbar:
                p = None
                for j in range(2):
                    dm = kv_dmas(t, LEAD + j)
                    kvits = chain(dm, [cfg.x0 + cfg.fxs * (4 * j + i) for i in range(4)], bar_gap + 2, after=p, dist=cfg.fxs - 1)
                    p = kvits[3]
                    sg.post.append((kvits[1], adv("K", (t + j + LEAD + 2) % 16 == 0)) if j == 0 else None) if False else None
                    for a in adv("K", (t + j + LEAD + 2) % 16 == 0): sg.sitems.append((a, ("after", kvits[1]), None))
                    for a in adv("V", (t + j + LEAD + 1) % 16 == 0): sg.sitems.append((a, ("after", kvits[3]), None))
        else:
            dm = kv_dmas(t, LEAD)
            dmt = [cfg.x0 + cfg.xs * i for i in range(4)] if isbar else [cfg.x1 + cfg.xs * i for i in range(4)]
            if cfg.xpair: dmt = [dmt[0], dmt[0] + 1, dmt[0] + cfg.xpair, dmt[0] + cfg.xpair + 1]
            kvits = chain(dm, dmt, (bar_gap + 2) if isbar else 1)
            for a in adv("K", (t + LEAD + 2) % 16 == 0): sg.sitems.append((a, ("after", kvits[1]), None))
            for a in adv("V", (t + LEAD + 1) % 16 == 0): sg.sitems.append((a, ("after", kvits[3]), None))
        if isbar:
            needs = [x for i in range(nextbar - t) for x in (("V", i), ("K", i + 1))]
            if t in RAMP_IT:
                r = Ins("s_cbranch_vccnz L_ramp%dA\nL_back%d:" % (t, t), "RAMP", ["vcc"]); r.cmt = "ramp%d" % t
                gaps[bar_gap - 2].sh.append(r)
                k = RAMP_IT.index(t)
                for role in ("A", "B"):
                    L = [vsite(needs)]
                    for w, pr in (("V", vd()), ("K", kd())):
                        follower = (w == "V") == (role == "A")
                        if follower and k >= len(RAMP_IT) - cfg.flag_: continue
                        L += [setm0(pr[0].cmt), nop(1)] + pr + adv(w, False)
                    if t == RAMP_IT[-1]: L.append(salu("s_mov_b64 vcc, 0", [], ["vcc"]))
                    L.append(raw("s_branch L_back%d" % t, "BR"))
                    if role == "A": L[0:0] = [raw("s_bitcmp1_b32 s2, 3"), raw("s_cbranch_scc1 L_ramp%dB" % t)]
                    RAMPS["ramp%d%s" % (t, role)] = L
            gaps[bar_gap - 1].sh.append(vsite(needs))
            gaps[bar_gap].sh.append(bar())
    XT = [cfg.xt, cfg.xt + cfg.xts]
    if not first and t == 0:
        gaps[0].pre += epi_burst(0, defer=True)
        gaps[1].pre += LASTCHK[0]
        W = chain(o_writes(0), [1.5 + 3.5 * i for i in range(8)], 0, 38)
        chain(o_reads(0, -1), [29 + 1.1 * j for j in range(16)], 0, 47, dist=0, after=W[7])
        gaps[48].pre += epi_burst(1, defer=True)
        gaps[49].pre += LASTCHK[1]
        chain(o_writes(1)[:NW0], [49.5 + 4 * i for i in range(NW0)], 48)
        for i in range(16, 32) if not cfg.pre else []:
            items.append(Item(v1("v_accvgpr_mov_b32", "a%d" % (AQ + 32 + i), "a%d" % (AQN + i)), 0, b2 - 2, 2 * (i - 16)))
        for i in range(32) if cfg.pre else []:
            items.append(Item(v1("v_accvgpr_write_b32", "a%d" % (AQ + 32 + i), "v%d" % (QR + i)), 0, b2 - 2, i))
        fo = flag_ops()
        if cfg.finchk:
            i1 = Item(fo[0], 56, INF, 56); i2 = Item(fo[1], 56, 62, 57, [(i1, 0)]); items += [i1, i2]
            sg.sitems.append((fo[3], ("after2", i2), None)); sg.sitems.append(([fo[4], fo[5]], ("after2", i2), None))
            sg.sitems.append((fo[6], ("after2", i2), None)); sg.sitems.append((fo[7], ("after2", i2), None))
        else:
            gaps[60].pre += fo
    if t == 1:
        ws = o_writes(1)[NW0:]
        W = chain(ws, [0.5 + 4 * i for i in range(len(ws))], 0, [b1 + pvpos(2 * ((NW0 + i) % 4), (NW0 + i) // 4) - 1 for i in range(len(ws))])
        chain(o_reads(1, -1), [16 + 2 * j for j in range(16)], 0, INF, dist=0, after=W[-1])
        al = lsite(); al.needs = "all"; gaps[ng - 1].sh.insert(1, al)
    if not first and ST_MAP.get(t):
        ks = ST_MAP[t]
        tg = {1: [cfg.stgap], 2: XT, 3: [46, 53, 60], 4: [36, 42, 48, 54]}[len(ks)] if t not in (0, 1) else ([50, 54] if t == 1 else [20])
        st = chain([(park_stores() if cfg.park and k >= 8 else o_stores(k // 8))[k % 8] for k in ks], tg, 18, 65 if t != 0 else 30)
        for k, it in zip(ks, st):
            if k == (7 if cfg.park else 15):
                if cfg.park: sg.sitems.append((smov("s%d" % (sO2 + 2), "s%d" % (sO_ + 2)), ("after", it), None))
                for a in tab_add(sOT): sg.sitems.append((a, ("after", it), None))
            if k == (7 if cfg.park else 15):
                sg.sitems.append((smov("s%d" % (sO_ + 2), "s%d" % sONR), ("after", it), None))
    for h, its in ((1 - cfg.pre, QA_IT), (cfg.pre, QB_IT)):
        if t in its:
            k = its.index(t)
            if k == 0:
                pass
            cn = QCNT_A if its is QA_IT else QCNT_B
            npi = cn[k]; o = sum(cn[:k])
            qd = chain(q_dmas(h, 1)[o:o + npi], {2: XT if not cfg.xpair else [cfg.xt, cfg.xt + 1], 3: [46, 53, 60], 4: [44, 50, 56, 62]}[npi], 43, 65)
    if t == QB_IT[-1] + 1:
        class Z: gap = -1
        for a in tab_add(sQT): sg.sitems.append((a, ("after", Z), None))
    if cfg.wbl2 and t == cfg.wbl2:
        sg.head += [raw("s_cmp_lg_u32 s%d, 0" % sCNT), raw("s_cbranch_scc1 L_nowb"), raw("s_cmp_lg_u32 s%d, 0" % sW), raw("s_cbranch_scc1 L_nowb"),
                    raw("buffer_wbl2 sc1"), raw("L_nowb:")]
    if cfg.park and t in (13, 14):
        for i in range(16):
            r = 16 * (t - 13) + i
            items.append(Item(v1("v_accvgpr_read_b32", "v%d" % (QR + r), "a%d" % (AO + 32 + r)), 0, INF, 2 + 4 * i))
    if cfg.park and t == 10:
        r = Ins("s_cbranch_scc1 L_last\nL_lastback:", "LAST", ["scc"]); r.cmt = "last"
        sg.head += [raw("s_cmp_eq_u32 s%d, 0" % sCNT), r]
        L = [s2("s_add_u32", "s%d" % (sLT + i), "s%d" % (sOT + 4 + i), str(USTRIDE)) for i in range(4)]
        L += [store(AO + 32 + 4 * j, sLT + j // 2, (j % 2) * 1024) for j in range(8)] + [raw("s_branch L_lastback", "BR")]
        RAMPS["last"] = L
    if t == QRD:
        gaps[29].sh.append(vsite([("Q", 1 - cfg.pre, 1)]))
        for i, ins in enumerate(q_reads(AQN, 1, 1) if not cfg.pre else q_reads(QR, 0, 1, p="v")):
            items.append(Item(ins, 30, INF, 30 + 4 * i))
        al = lsite(); al.needs = "all"; gaps[ng - 1].sh.insert(1, al)
    if cfg.fakepre and 8 <= t <= 14:
        for i in range(23):
            r = 2 + (i % 4)
            op = [v2("v_and_b32", "v%d" % r, "0xffff0000", "v10"), v2("v_lshlrev_b32", "v%d" % r, "16", "v10"), mul_(r), mul_(r), cvt_(8, 2, 3)][i % 5]
            items.append(Item(op, 0, INF, 3 * i))
    if cfg.fakepre and t == 15:
        for i in range(32):
            sg.tail += [v2("v_and_b32", "v3", "0xffff0000", "v10"), v2("v_lshlrev_b32", "v2", "16", "v10"),
                        valu("v_pk_mul_f32 v[4:5], v[2:3], v[6:7]", [], [], "K"), cvt_(8, 4, 5), v1("v_accvgpr_write_b32", "a%d" % (AQN + i), "v8")]
    if cfg.pre and QRD < t < 15:
        n = 14 - QRD; lo_ = (t - QRD - 1) * 32 // n; hi_ = (t - QRD) * 32 // n
        last = {}
        for j, i in enumerate(range(lo_, hi_)):
            k = i % 3; p = last.get(k); base = j * (ng - 6.0) / (hi_ - lo_)
            for m, op in enumerate(pre_ops(i, k)):
                it = Item(op, 0, INF, base + 2.2 * m, [(p, 0)] if p else []); items.append(it); p = it
            last[k] = p
    if cfg.pre and t == 15:
        gaps[15].sh.append(vsite([("Q", 1, 1)]))
        Wr = [Item(v1("v_accvgpr_write_b32", "a%d" % (AQ + i), "v%d" % (QR + i)), 16, 56, 16 + i) for i in range(32)]
        items += Wr
        for i, ins in enumerate(q_reads(QR, 1, 1, p="v")):
            items.append(Item(ins, 16, ng - 6, 22 + 4.5 * i, [(w, 1) for w in Wr[4 * i:4 * i + 4]]))
        sg.tail += [lsite()] + pre_burst(None, writes=False)
    if t == 15 and not cfg.pre:
        gaps[15].sh.append(vsite([("Q", 0, 1)]))
        for i, ins in enumerate(q_reads(AQ, 0, 1)):
            items.append(Item(ins, 16, ng - 1 - LAT, 17 + 5 * i))
        for i in range(16):
            items.append(Item(v1("v_accvgpr_mov_b32", "a%d" % (AQ + 32 + i), "a%d" % (AQN + i)), b3, INF, b3 + i))
    schedule(gaps, items, "it%d%s" % (t, "f" if first else ""))
    for it, ops in sg.post: gaps[it.gap].va += ops
    sg.gaps = gaps
    return sg

def place_scalar(sg):
    gaps = sg.gaps
    def busy(G): return sum(1 for x in G.sh if (x.kind not in ("LSITE", "VSITE")) ) + (1 if any(x.kind in ("LSITE", "VSITE") and x.n is not None for x in G.sh) else 0)
    lastpos = {}
    ntail = 0
    for ins, (how, it), _ in sg.sitems:
        lst = ins if isinstance(ins, list) else [ins]
        lo = max(it.gap + (1 if how == "after2" else 0), lastpos.get(id(it), -1)) + 1
        hi = len(gaps)
        for k in range(it.gap + 1, len(gaps)):
            if any(x.kind == "X" and ((x.rd & lst[0].wr) - {"scc"} or (x.cmt and "s%d" % x.cmt[0] in lst[0].wr)) for x in gaps[k].ds): hi = k - 1; break
        c = [k for k in range(lo, hi) if busy(gaps[k]) == 0]
        if c: gaps[c[0]].sh += lst; lastpos[id(it)] = c[0]
        elif hi < len(gaps):
            k = max(lo - 1, min(hi - 1, lo)); gaps[k].sh += lst; lastpos[id(it)] = k - 1
        else: sg.tail[ntail:ntail] = lst; ntail += len(lst); lastpos[id(it)] = len(gaps)
    cur = None; lastx = -1
    for g, G in enumerate(gaps):
        if any("s_mov_b32 m0" in x.text for x in G.pre): cur = None; lastx = max(lastx, g - 1)
        if any(x.kind == "RAMP" for x in G.sh): cur = None; lastx = max(lastx, g)
        for x in G.ds:
            if x.kind == "X" and "m0" in x.rd:
                if cur != x.cmt:
                    src = "s%d" % x.cmt[0]
                    lw = max([k for k in range(g) if any(src in y.wr for y in gaps[k].sh + gaps[k].va)] + [-1])
                    cands = [k for k in range(max(lastx + 1, lw), g)]
                    free = [k for k in cands if busy(gaps[k]) == 0]
                    if cands:
                        k = free[-1] if free else cands[-1]
                        gaps[k].sh.append(setm0(x.cmt))
                    elif any("s_mov_b32 m0" in y.text for y in G.pre):
                        G.pre.append(setm0(x.cmt))
                    else:
                        gaps[lastx].va.append(setm0(x.cmt))
                    cur = x.cmt
                lastx = g

def flat(sg):
    L = list(sg.head)
    for G in sg.gaps: L += G.flat()
    return L + sg.tail

def prologue():
    L = []
    A = L.append
    A(raw("s_cmp_ge_u32 s2, 256")); A(raw("s_cbranch_scc1 L_end"))
    A(raw("s_load_dwordx4 s[36:39], s[0:1], 0")); A(raw("s_load_dwordx4 s[40:43], s[0:1], 16"))
    A(v2("v_lshrrev_b32", "v1", "6", "v0")); A(v2("v_and_b32", "v0", "63", "v0"))
    A(valu("v_readfirstlane_b32 s%d, v1" % sW, ["v1"], ["s%d" % sW]))
    A(v2("v_lshrrev_b32", "v2", "4", "v0"))
    A(v2("v_and_b32", "v3", "15", "v0"))
    if cfg.xmap == 0:
        A(raw("s_and_b32 s45, s2, 7")); A(raw("s_lshr_b32 s46, s2, 4")); A(raw("s_lshl_b32 s45, s45, 4")); A(raw("s_add_u32 s45, s45, s46"))
    else:
        A(raw("s_and_b32 s45, s2, 7")); A(raw("s_lshr_b32 s46, s2, 4")); A(raw("s_lshl_b32 s46, s46, 3")); A(raw("s_add_u32 s45, s45, s46"))
    if cfg.rot:
        A(raw("s_mul_i32 s%d, s45, %d" % (sKt, cfg.rot * KSTEP))); A(raw("s_and_b32 s%d, s%d, %d" % (sKt, sKt, 16 * KSTEP - 1))); A(smov("s%d" % sVt, "s%d" % sKt))
    if cfg.rotq: A(raw("s_mul_i32 s82, s45, %d" % (cfg.rotq * PSTEP)))
    A(raw("s_lshl_b32 s45, s45, %d" % (19 if cfg.hmap == 0 else 17)))
    A(raw("s_bfe_u32 s46, s2, 0x10003")); A(raw("s_lshl_b32 s46, s46, %d" % HSH)); A(raw("s_add_u32 s46, s46, s45"))
    A(s2("s_lshl_b32", "s%d" % sMK, "s%d" % sW, "11"))
    A(v2("v_lshlrev_b32", "v4", "1", "v2")); A(v2("v_xor_b32", "v4", "v3", "v4")); A(v2("v_lshlrev_b32", "v4", "4", "v4"))
    A(v3("v_lshl_add_u32", "v%d" % DA, "v2", "8", "v4")); A(v2("v_xor_b32", "v%d" % DB, "0x80", "v%d" % DA))
    A(smov("s%d" % sMKn, "s%d" % sMK)); A(smov("s%d" % sMVn, "s%d" % sMK))
    if cfg.cpf:
        A(raw("s_lshr_b32 s%d, s2, 3" % sT)); A(raw("s_lshl_b32 s%d, s%d, 2" % (sT, sT))); A(raw("s_add_u32 s%d, s%d, s%d" % (sT, sT, sW)))
        A(raw("s_and_b32 s%d, s%d, 31" % (sT, sT))); A(raw("s_lshl_b32 s%d, s%d, 10" % (sT, sT)))
        A(raw("s_min_u32 s%d, s%d, L_end - L_pc - 1024" % (sT, sT)))
        A(v2("v_lshlrev_b32", "v5", "4", "v0")); A(v2("v_add_u32", "v5", "s%d" % sT, "v5"))
        A(raw("s_getpc_b64 s[58:59]\nL_pc:"))
        A(Ins("global_load_dwordx4 v[72:75], v5, s[58:59]", "X", ["v5"], R("v", 72, 4)))
    A(s2("s_lshl_b32", "s%d" % sMS, "s%d" % sW, "13")); A(s2("s_add_u32", "s%d" % sMS, "s%d" % sMS, str(LDS_S)))
    A(s2("s_lshl_b32", "s%d" % sQo, "s%d" % sW, str(WSH)))
    for i in range(8):
        if cfg.rotq:
            A(s2("s_add_u32", "s%d" % (sQT + i), "s82", str(i * PSTEP))); A(s2("s_and_b32", "s%d" % (sQT + i), "s%d" % (sQT + i), str(8 * PSTEP - 1)))
            A(s2("s_add_u32", "s%d" % (sQT + i), "s%d" % (sQT + i), "s%d" % sQo))
        else: A(s2("s_add_u32", "s%d" % (sQT + i), "s%d" % sQo, str(i * PSTEP)))
    for b in (sQ_, sK_, sV_, sO_): A(smov("s%d" % (b + 3), "0x20000"))
    A(smov("s%d" % (sK_ + 2), str(3 * USTRIDE + 131072))); A(smov("s%d" % (sV_ + 2), str(3 * USTRIDE + 131072)))
    A(smov("s%d" % (sQ_ + 2), str(3 * USTRIDE + QEND))); A(smov("s%d" % sONR, str(3 * USTRIDE + QEND))); A(smov("s%d" % (sO_ + 2), "0"))
    assert not cfg.flag_
    if cfg.kvmap == 0: A(s2("s_lshl_b32", "s%d" % sKo, "s%d" % sW, "11"))
    elif cfg.kvmap == 1: A(s2("s_lshl_b32", "s%d" % sKo, "s%d" % sW, "15"))
    else:
        A(s2("s_and_b32", "s%d" % sKo, "s%d" % sW, "1")); A(s2("s_lshl_b32", "s%d" % sKo, "s%d" % sKo, "11"))
        A(s2("s_lshr_b32", "s%d" % sVo, "s%d" % sW, "1")); A(s2("s_lshl_b32", "s%d" % sVo, "s%d" % sVo, "16")); A(s2("s_add_u32", "s%d" % sKo, "s%d" % sKo, "s%d" % sVo))
    if cfg.rot:
        A(smov("s%d" % sKb, "s%d" % sKo)); A(smov("s%d" % sVb, "s%d" % sKo)); A(s2("s_add_u32", "s%d" % sKo, "s%d" % sKo, "s%d" % sKt))
    A(smov("s%d" % sVo, "s%d" % sKo))
    A(raw("s_waitcnt lgkmcnt(0)"))
    if cfg.stamp2: L += stamp()
    for b, p, o in ((sK_, 38, 45), (sQ_, 36, 46), (sV_, 40, 45), (sO_, 42, 46)):
        A(salu("s_add_u32 s%d, s%d, s%d" % (b, p, o), [], ["s%d" % b])); A(salu("s_addc_u32 s%d, s%d, 0" % (b + 1, p + 1), [], ["s%d" % (b + 1)]))
    def issue(lst):
        cur = None
        for x in lst:
            if x.kind == "X" and cur != x.cmt:
                A(setm0(x.cmt)); A(nop(1)); cur = x.cmt
            A(x)
    k0 = kd(); v0 = vd() if cfg.early else None
    q0 = q_dmas(0, 0)
    if cfg.early:
        issue([k0[0], q0[0], v0[0], k0[1], v0[1]] + adv("K", False) + adv("V", False) + q0[1:])
    else:
        issue(k0 + adv("K", False) + q0)
    A(s2("s_sub_u32", "s%d" % sT, "s%d" % sMS, "32768"))
    issue(q_dmas(1, 0, msgpr=sT))
    if cfg.stamp2: L += stamp()
    for i in range(8): A(s2("s_sub_u32", "s%d" % (sOT + i), "s%d" % (sQT + i), str(USTRIDE * (2 if cfg.park and i >= 4 else 1))))
    if cfg.park:
        A(smov("s%d" % sO2, "s%d" % sO_)); A(smov("s%d" % (sO2 + 1), "s%d" % (sO_ + 1))); A(smov("s%d" % (sO2 + 2), "0")); A(smov("s%d" % (sO2 + 3), "0x20000"))
    L += tab_add(sQT)
    A(v2("v_and_b32", "v5", "7", "v3")); A(v2("v_lshlrev_b32", "v6", "1", "v5"))
    for s in range(4):
        A(v2("v_add_u32", "v7", str(4 * s), "v2")); A(v2("v_xor_b32", "v7", "v7", "v6")); A(v2("v_lshlrev_b32", "v7", "4", "v7"))
        A(v3("v_lshl_add_u32", "v%d" % (KA + s), "v3", "8", "v7"))
        A(v2("v_add_u32", "v%d" % (QA + s), "s%d" % sMS, "v%d" % (KA + s)))
        A(v2("v_subrev_u32", "v%d" % (TM + s), "0x8000", "v%d" % (QA + s)))
    A(v2("v_lshrrev_b32", "v76", "2", "v0"))
    A(v2("v_and_b32", "v77", "7", "v76")); A(v2("v_lshlrev_b32", "v77", "1", "v77"))
    A(valu("v_bfe_u32 v78, v0, 1, 1", ["v0"], ["v78"]))
    A(v2("v_and_b32", "v79", "1", "v0")); A(v2("v_lshlrev_b32", "v79", "3", "v79"))
    A(v3("v_lshl_add_u32", "v79", "v76", "8", "v79")); A(v2("v_add_u32", "v79", str(LDS_V), "v79"))
    for b in range(8):
        A(v2("v_add_u32", "v7", str(2 * b), "v78")); A(v2("v_xor_b32", "v7", "v7", "v77"))
        A(v3("v_lshl_add_u32", "v%d" % (VA + b), "v7", "4", "v79"))
    A(v2("v_lshlrev_b32", "v79", "8", "v3")); A(v2("v_add_u32", "v79", "s%d" % sMS, "v79"))
    A(v2("v_xor_b32", "v78", "v2", "v5"))
    A(v3("v_lshl_add_u32", "v%d" % OW, "v78", "4", "v79")); A(v2("v_xor_b32", "v%d" % (OW + 1), "64", "v%d" % OW))
    A(v2("v_and_b32", "v78", "12", "v3")); A(v2("v_and_b32", "v70", "1", "v3")); A(v3("v_lshl_add_u32", "v78", "v70", "1", "v78"))
    A(v2("v_xor_b32", "v78", "v78", "v2")); A(v2("v_lshlrev_b32", "v78", "4", "v78")); A(v3("v_lshl_add_u32", "v78", "v2", "8", "v78"))
    A(v2("v_and_b32", "v70", "2", "v3")); A(v3("v_lshl_add_u32", "v78", "v70", "2", "v78"))
    A(v2("v_add_u32", "v%d" % OR_, "s%d" % sMS, "v78"))
    for i, x in enumerate((16, 64, 80)): A(v2("v_xor_b32", "v%d" % (OR_ + 1 + i), str(x), "v%d" % OR_))
    A(v2("v_lshlrev_b32", "v%d" % OS, "4", "v0"))
    A(v2("v_and_b32", "v7", "3", "v0")); A(valu("v_cmp_eq_u32 vcc, 0, v7", ["v7"], ["vcc"])); A(v1("v_mov_b32", "v76", "0x3f803f80")); A(v1("v_mov_b32", "v77", "0"))
    A(valu("v_cndmask_b32 v7, v77, v76, vcc", ["v76", "v77", "vcc"], ["v7"]))
    for i in range(4):
        A(v1("v_accvgpr_write_b32", "a%d" % (AONE + i), "v7")); A(v1("v_accvgpr_write_b32", "a%d" % (AZERO + i), "v77"))
    A(smov("s%d" % sC, "0x%08x" % SCALE)); A(smov("s%d" % sC2, "0x%08x" % SCALE)); A(smov("s%d" % (sC2 + 1), "0x%08x" % SCALE))
    if cfg.fakepre: L += [v1("v_mov_b32", "v%d" % i, "1.0") for i in range(2, 12)]
    A(smov("s%d" % sLO, "0x%08x" % LO_BITS)); A(smov("s%d" % sRG, "0x%08x" % (HI_BITS - LO_BITS)))
    A(smov("s%d" % sBAD, "0")); A(salu("s_mov_b64 s[%d:%d], 0" % (sACC, sACC + 1), [], R("s", sACC, 2)))
    A(smov("s%d" % sCNT, "3"))
    A(salu("s_mov_b64 vcc, %d" % (-1 if RAMP_IT else 0), [], ["vcc"]))
    if cfg.stamp2: L += stamp()
    A(vsite([("K", 0), ("Q", 0, 0)]))
    if cfg.stamp2: L += stamp()
    A(bar())
    if cfg.pre:
        L += q_reads(QR, 0, 0, p="v") + [kread(f, 0, 0) for f in KORD] + [lsite()]
        b = pre_burst(AQ)
        for i in range(0, len(b), 20): L += b[i:i + 20] + [lsite()]
        return L + [nop(1), lsite()]
    qr = q_reads(AQ, 0, 0)
    seen = set()
    for kt, q, s in QKSEQ:
        if ("k", kt, s) not in seen: A(kread(4 * kt + s, 0, 0)); seen.add(("k", kt, s))
        if ("q", q, s) not in seen: A(qr[4 * q + s]); seen.add(("q", q, s))
    A(lsite())
    return L

def tail_seg():
    L = []
    sm = []
    for it in softmax_items(1, 0, lambda q, kt: 0, lambda q: 99, lo=(cfg.e0, cfg.e0, cfg.c0)):
        sm.append(it.ins)
        if it.ins.kind == "T" and it.ins.text == exp_(S_(1, *GRP[3]) + 3).text: sm.append(nop(1))
    if cfg.stmode == 1:
        L += [o_stores(1)[7]] + tab_add(sOT)
    if cfg.park: L += tab_add(sOT)[4:]
    gaps = [Gap(m) for m in pv_block(1, False)]
    st = o_stores(0)
    if cfg.tailv == 0:
        L += sm + epi_burst(0)
        for g, w in enumerate(o_writes(0)): gaps[g].ds.append(w)
        rd = o_reads(0, 0)
        for g in range(8): gaps[8 + g].ds += rd[2 * g:2 * g + 2]
        for G in gaps: L += G.flat()
        L += [lsite()] + st[:4]
    else:
        w0 = o_writes(0); r0 = o_reads(0, 0)
        L += [nop(2)] + epi_burst(0) + w0[:4] + r0[:8] + w0[4:] + r0[8:] + sm + [nop(2)]
        for j in range(8): gaps[1 + 2 * j].ds.append(st[j])
        for G in gaps: L += G.flat()
        L += [nop(4)]
        st = [None] * 4
    b1 = epi_burst(1)
    w1 = o_writes(1); r1 = o_reads(1, 0)
    if cfg.tailv < 2:
        k = [i for i, x in enumerate(b1) if x.kind == "K"][-1] + 1
        L += b1[:k] + [lsite()] + st[4:] + b1[k:]
        st = o_stores(1)
        L += w1[:4] + r1[:8] + w1[4:] + r1[8:]
        L += [lsite()] + st[:2] + [lsite()] + st[2:4] + [lsite()] + st[4:6] + [lsite()] + st[6:]
    else:
        head = [x for x in b1 if x.kind not in ("K", "M") and "v_cvt" not in x.text and "s_or" not in x.text and x.kind != "N"]
        pk = [x for x in b1 if x.kind == "K"]; cv = [x for x in b1 if "v_cvt" in x.text]
        mm = [x for x in b1 if x.kind == "M"]; so = [x for x in b1 if "s_or" in x.text]
        st = o_stores(1)
        L += head + pk[:16] + cv[:16] + w1[:4] + r1[:8] + pk[16:] + [lsite()] + st[:4] + cv[16:] + w1[4:] + r1[8:] + so + mm
        L += [lsite()] + st[4:6] + [lsite()] + st[6:] + [nop(6)]
    L += flag_ops()
    return L

def slow_path():
    T = []
    A = T.append
    def emit(l):
        for x in l: A(x.text)
    def wait(): A("s_waitcnt vmcnt(0) lgkmcnt(0)");
    A("s_barrier")
    if cfg.force_slow: A("s_mov_b32 s%d, 15" % sBAD)
    A("s_cmp_eq_u32 s%d, 0" % sBAD); A("s_cbranch_scc1 L_end")
    A("s_lshl_b32 s45, s%d, 13" % sW)
    for i in range(4): A("v_add_u32 v%d, s45, v%d" % (KA + i, KA + i))
    for i in range(8): A("v_add_u32 v%d, s45, v%d" % (VA + i, VA + i))
    A("s_add_u32 s46, s45, %d" % LDS_V)
    A("s_lshl_b32 s%d, s%d, %d" % (sQo, sW, WSH))
    A("v_mov_b32 v%d, v%d" % (TS + 4, DA)); A("v_mov_b32 v%d, v%d" % (TS + 5, DB))
    A("s_mov_b32 s%d, 0" % sCNT)
    A("L_slow_unit:")
    A("s_bitcmp1_b32 s%d, 3" % sBAD); A("s_cbranch_scc0 L_slow_next")
    for i in range(8): A("s_add_u32 s%d, s%d, %d" % (sQT + i, sQo, i * PSTEP)); A("s_mov_b32 s%d, s%d" % (sOT + i, sQT + i))
    wait()
    for h in range(2):
        cur = None
        for x in q_dmas(h, 0):
            if cur != x.cmt: A(setm0(x.cmt).text); A("s_nop 0"); cur = x.cmt
            A(x.text)
        wait(); emit(q_reads(AQ + 32 * h, h, 0)); wait()
    def tile_dma(sr, m0s):
        for i in range(8):
            if i % 4 == 0:
                A("s_add_u32 m0, s%d, %d" % (m0s, (i // 4) * 4096)); A("s_add_u32 s%d, s%d, %d" % (sT, sKo, (i // 4) * 4096))
            A("buffer_load_dwordx4 v%d, %s, s%d offen offset:%d lds" % (TS + 4 + i % 2, srd(sr), sT, (i % 4) * 1024))
    def qk_all():
        emit([kread(f, 0, 0) for f in range(8)]); wait()
        emit(qk_block(0) + qk_block(1)); A("s_nop 7"); A("s_nop 3")
    for i in range(4): A("v_mov_b32 v%d, 0xff800000" % (MX + i))
    A("s_mov_b32 s%d, s%d" % (sKo, sCNT)); A("s_add_u32 s%d, s%d, 131072" % (sVo, sCNT))
    A("L_slow_p1:")
    tile_dma(sK_, 45); wait(); qk_all()
    for h in range(2):
        for q in range(2):
            a = S_(h, q, 0)
            for i in range(4): A("v_max3_f32 v%d, v%d, v%d, v%d" % (MX + 2 * h + q, a + 2 * i, a + 2 * i + 1, MX + 2 * h + q))
    A("s_add_u32 s%d, s%d, 8192" % (sKo, sKo)); A("s_cmp_lt_u32 s%d, s%d" % (sKo, sVo)); A("s_cbranch_scc1 L_slow_p1")
    for op in ("v_permlane32_swap_b32", "v_permlane16_swap_b32"):
        for i in range(4): A("v_mov_b32 v%d, v%d" % (NM + i, MX + i))
        A("s_nop 1")
        for i in range(4): A("%s v%d, v%d" % (op, NM + i, MX + i))
        A("s_nop 1")
        for i in range(4): A("v_max_f32 v%d, v%d, v%d" % (MX + i, MX + i, NM + i))
    for i in range(4): A("v_mul_f32 v%d, s%d, v%d" % (NM + i, sC, MX + i))
    for i in range(128): A("v_mov_b32 v%d, 0" % (OB + i))
    for i in range(16): A("v_accvgpr_write_b32 a%d, 0" % (AL + i))
    A("s_mov_b32 s%d, s%d" % (sKo, sCNT))
    A("L_slow_p2:")
    tile_dma(sK_, 45); tile_dma(sV_, 46); wait(); qk_all()
    emit([vread(b, jj, 0, 0) for b in range(4) for jj in range(2)])
    for h in range(2):
        for q in range(2):
            a = S_(h, q, 0)
            for i in range(8): A("v_fma_f32 v%d, v%d, s%d, -v%d" % (a + i, a + i, sC, NM + 2 * h + q))
            for i in range(8): A("v_exp_f32 v%d, v%d" % (a + i, a + i))
            A("s_nop 0")
            for i in range(4): A(cvt_(P_(h, q) + i, a + 2 * i, a + 2 * i + 1).text)
    emit([vread(b, jj, 0, 0) for b in range(4, 8) for jj in range(2)])
    wait()
    emit(pv_block(0, False) + pv_block(1, False))
    A("s_add_u32 s%d, s%d, 8192" % (sKo, sKo)); A("s_cmp_lt_u32 s%d, s%d" % (sKo, sVo)); A("s_cbranch_scc1 L_slow_p2")
    A("s_nop 7"); A("s_nop 3")
    for h in range(2):
        emit(epi_burst(h, check=False)); emit(o_writes(h) + o_reads(h, 0))
        wait(); emit(o_stores(h)); wait()
    A("L_slow_next:")
    A("s_lshl_b32 s%d, s%d, 1" % (sBAD, sBAD)); A("s_and_b32 s%d, s%d, 15" % (sBAD, sBAD))
    for r in (sCNT, sQo): A("s_add_u32 s%d, s%d, %d" % (r, r, USTRIDE))
    A("s_cmp_lg_u32 s%d, 0" % sBAD); A("s_cbranch_scc1 L_slow_unit")
    return T

def stamp():
    if not cfg.stamp: return []
    return [raw("s_memtime s[58:59]"), raw("s_memrealtime s[62:63]"), raw("s_waitcnt lgkmcnt(0)"),
            raw("s_mov_b32 m0, s57"), raw("s_nop 0"), raw("v_writelane_b32 v38, s58, m0"), raw("v_writelane_b32 v39, s62, m0"), raw("s_add_u32 s57, s57, 1")]
def stamp_out():
    if not cfg.stamp: return []
    if cfg.dbgwg >= 0:
        return [x.text for x in stamp()] + ["s_cmp_lg_u32 s2, %d" % cfg.dbgwg, "s_cbranch_scc1 L_nodbg", "s_cmp_lg_u32 s%d, 0" % sW, "s_cbranch_scc1 L_nodbg",
            "s_load_dwordx2 s[36:37], s[0:1], 32", "s_waitcnt lgkmcnt(0)", "s_mov_b32 s38, 64", "s_mov_b32 s39, 0x20000",
            "v_readfirstlane_b32 s45, v39", "v_lshrrev_b32 v41, 2, v%d" % OS, "s_nop 1", "v_subrev_u32 v39, s45, v39",
            "buffer_store_dword v39, v41, s[36:39], 0 offen", "L_nodbg:"]
    return [x.text for x in stamp()] + ["s_load_dwordx2 s[36:37], s[0:1], 40", "s_waitcnt lgkmcnt(0)", "s_mov_b32 s38, 0x1000000", "s_mov_b32 s39, 0x20000",
            "s_lshl_b32 s45, s2, 2", "s_add_u32 s45, s45, s%d" % sW, "s_lshl_b32 s45, s45, 9", "v_lshrrev_b32 v41, 2, v%d" % OS,
            "buffer_store_dword v38, v41, s[36:39], s45 offen", "buffer_store_dword v39, v41, s[36:39], s45 offen offset:256"]
DOC = """; Generated by a scheduling script (hand-written instruction templates, list-scheduled into MFMA gaps).
;   wave = 64 q rows. S^T = K Q^T and O^T += V^T P^T with 16x16x32 bf16 MFMA, so P feeds the second product
;   sums the row (l) with one more MFMA. Every row is then checked at run time: l must lie in [2^-40, 2^126) and every
;   output must be finite (zero-operand MFMA turns any inf/NaN into NaN). A wave with a row that fails recomputes that
;   block at the end of the kernel with the true row max (two-pass fallback, label L_slow_unit)."""
def main():
    sgs = {"it0f": build_iter(0, True)}
    for t in range(16): sgs["it%d" % t] = build_iter(t)
    def segs():
        d = {"pro": pro, "tail": tl}
        d.update(RAMPS)
        for k, s in sgs.items(): d[k] = flat(s)
        return d
    pro = prologue(); tl = tail_seg()
    if cfg.jitter:
        for t in range(16):
            g = (t * 11 + cfg.jitter * 7) % 60
            sgs["it%d" % t].gaps[g].pre[0:0] = [raw("s_cmp_eq_u32 s%d, %d" % (sW, (t * cfg.jitter + t // 4) % 4)), raw("s_cbranch_scc0 L_j%d" % t), raw("s_sleep %d" % (8 + 5 * (t % 5))), raw("L_j%d:" % t)]
    if cfg.dbgspan:
        pro[2:2] = [raw("s_memrealtime s[60:61]"), raw("s_memtime s[62:63]"), raw("s_waitcnt lgkmcnt(0)"), raw("s_mov_b32 s56, s60"), raw("s_mov_b32 s57, s62")]
        i = [k for k, x in enumerate(pro) if x.kind == "BAR"][0]
        pro[i + 1:i + 1] = [raw("s_memrealtime s[58:59]")]
    if cfg.stamp:
        pro[2:2] = [raw("s_mov_b32 s57, 0")] + stamp()
        i = [k for k, x in enumerate(pro) if x.kind == "BAR"][0]
        pro[i + 1:i + 1] = stamp()
        for t in range(0, 16, cfg.stamp): sgs["it%d" % t].head[0:0] = stamp()
        tl[0:0] = stamp()
        if cfg.stamp3:
            G = sgs["it0"].gaps
            G[0].pre += stamp(); G[16].pre += stamp(); G[34].pre += stamp(); G[48].pre[0:0] = stamp(); G[48].pre += stamp()
            sgs["it1"].head[0:0] = stamp(); sgs["it1"].gaps[34].pre += stamp(); sgs["it2"].head[0:0] = stamp(); sgs["it3"].head[0:0] = stamp()
        if cfg.stamp2:
            sgs["it0f"].gaps[16].pre += stamp(); sgs["it0f"].gaps[cfg.fbar + 1].pre += stamp(); sgs["it0f"].tail[0:0] = stamp()
    traces = []
    for role in ("A", "B"):
        x = dict(role=role, lagK=cfg.flag_ if role == "B" else 0, lagV=cfg.flag_ if role == "A" else 0)
        trace = [("pro", dict(T=0, u=0, first=1, **x)), ("it0f", dict(T=0, u=0, first=1, **x))]
        for u in range(4):
            for t in range(16):
                if (u, t) != (0, 0): trace.append(("it%d" % t, dict(T=16 * u + t, u=u, first=(u == 0 and t <= (RAMP_IT[-1] if RAMP_IT else 0)), **x)))
        trace.append(("tail", dict(T=64, u=3, **x)))
        traces.append(trace)
    sgs["it0f"].tail.append(raw("s_branch L_it1", "BR"))
    sgs["it15"].tail += [s2("s_sub_u32", "s%d" % sCNT, "s%d" % sCNT, "1"), raw("s_cbranch_scc0 L_it0", "BR")]
    insert_waits(segs(), traces)
    for k, s in sgs.items():
        br = [x for x in s.tail if x.kind == "BR" or "s_sub_u32 s%d" % sCNT in x.text]
        s.tail = [x for x in s.tail if x not in br]
        place_scalar(s)
        s.tail += br
    fs = {k: finalize(v) for k, v in segs().items()}
    errs = sum((verify(fs, tr, {"K": 8, "V": 16, "Q": 8, "O": 16}) for tr in traces), [])
    for e in errs[:40]: sys.stderr.write("ERR " + e + "\n")
    tot = 0
    for k in ["pro", "it0f"] + ["it%d" % t for t in range(16)] + ["tail"]:
        est = issue_estimate(fs[k]); sys.stderr.write("%s:%d " % (k, est))
        if k.startswith("it") and k != "it0f": tot += est
    if cfg.stamp3:
        for k in ("it0", "it1", "it2"):
            parts = [[]]
            for x in fs[k]:
                if "s_memtime" in x.text: parts.append([])
                parts[-1].append(x)
            sys.stderr.write("\n%s parts %s" % (k, [issue_estimate(p) for p in parts]))
    sys.stderr.write("\nunit estimate %d cycles, errors %d\n" % (tot, len(errs)))
    out = []
    hdr = open(os.path.join(os.path.dirname(os.path.abspath(__file__)), "..", "cdna_kernels", NAME + ".s.ref")).read().split("; Override")[0]
    out.append(hdr.rstrip())
    out.append("; @launch grid=(256,1,1) block=(256,1,1) lds=163840")
    out.append(DOC)
    out.append('.amdgcn_target "amdgcn-amd-amdhsa--gfx950"\n.text\n.globl %s_kernel\n.p2align 8\n.type %s_kernel,@function\n%s_kernel:' % (NAME, NAME, NAME))
    par = {}
    def dump(k):
        out.append("; ---- " + k)
        for x in fs[k]:
            if cfg.nocomp and k != "pro" and x.kind in ("M", "V", "T", "K", "D", "W"):
                par[x.kind] = par.get(x.kind, 0) + 1
                if cfg.nocomp == 1 or par[x.kind] % cfg.nocomp == 0: continue
            if cfg.nomem and k != "pro" and x.kind == "X" and (cfg.nomem == 1 or "store" in x.text): continue
            if cfg.nostore and x.kind == "X" and "store" in x.text: continue
            out.append("  " + x.text)
            if cfg.nocomp and "m0" in x.wr: out.append("  s_nop 0")
    dump("pro"); dump("it0f")
    for k in RAMPS: out.append("L_%s:" % k); dump(k)
    out.append(".p2align 6\nL_it0:"); dump("it0"); out.append("L_it1:")
    for t in range(1, 16): dump("it%d" % t)
    dump("tail")
    if cfg.dbgspan:
        out += ["  " + x for x in ["s_waitcnt vmcnt(0)", "s_memrealtime s[60:61]", "s_memtime s[62:63]", "s_load_dwordx2 s[36:37], s[0:1], 32", "s_waitcnt lgkmcnt(0)", "s_mov_b32 s38, 256", "s_mov_b32 s39, 0x20000",
            "s_not_b32 s45, s56", "v_mov_b32 v2, s45", "v_mov_b32 v3, s58", "v_mov_b32 v4, s60", "v_mov_b32 v5, s56", "s_not_b32 s45, s60", "v_mov_b32 v6, s45", "s_sub_u32 s45, s62, s57", "v_mov_b32 v7, s45", "v_mov_b32 v1, 0",
            "s_mov_b64 exec, 1",
            "buffer_atomic_umax v2, v1, s[36:39], 0 offen", "buffer_atomic_umax v3, v1, s[36:39], 0 offen offset:4", "buffer_atomic_umax v4, v1, s[36:39], 0 offen offset:8",
            "buffer_atomic_umax v5, v1, s[36:39], 0 offen offset:12", "buffer_atomic_umax v6, v1, s[36:39], 0 offen offset:16", "buffer_atomic_umax v7, v1, s[36:39], 0 offen offset:20", "s_mov_b64 exec, -1"]]
    if cfg.stamp:
        out.append("  s_waitcnt vmcnt(0)")
        out += [("  " + x if not x.endswith(":") else x) for x in stamp_out()]
    if cfg.nocomp or cfg.nomem or cfg.fakepre: out.append("  s_mov_b32 s%d, 0" % sBAD)
    out += ["  " + x if not x.endswith(":") else x for x in slow_path()]
    out.append("L_end:\n  s_endpgm")
    out.append('.section .rodata,"a"\n.p2align 6\n.amdhsa_kernel %s_kernel' % NAME)
    out.append("  .amdhsa_next_free_vgpr 512\n  .amdhsa_next_free_sgpr 96\n  .amdhsa_accum_offset 256\n  .amdhsa_group_segment_fixed_size 0\n  .amdhsa_kernarg_size 48\n  .amdhsa_user_sgpr_count 2\n  .amdhsa_user_sgpr_kernarg_segment_ptr 1\n  .amdhsa_system_sgpr_workgroup_id_x 1\n.end_amdhsa_kernel")
    open(sys.argv[1], "w").write("\n".join(out) + "\n")
    if errs: sys.exit(1)
main()
```

```python
import sys, os, struct, math
from core import *

class Cfg:
    barper = 2
    finchk = 1
    lat = 7
    k_aux = ""
    v_aux = ""
    kv_aux = "nt"
    q_aux = "nt"
    o_aux = "nt"
    e0 = 10; c0 = 4; f0 = 6
    force_slow = 0
    hmap = 1
    rot = 5
    xmap = 0
    stamp = 0
    tailv = 0
    jitter = 0
    dbgwg = -1
    stamp3 = 0
    stamp2 = 0
    nocomp = 0
    nomem = 0
    nostore = 0
    dbgspan = 0
    lag = 1.5
    lead = 4
    bars = ""
    stcap = 12
    ftg = 1
    ftgs = 2
    fhold = 99
    fgap = 0
    qw = 7
    xpair = 0
    xopt = 2
    park = 0
    rskip = 0
    front = 0
    rotq = 3
    qomap = 0
    pre = 0
    wbl2 = 0
    kvmap = 1
    fakepre = 0
    x0 = 17
    x1 = 9
    xs = 8
    xts = 8
    fxs = 6
    xt = 52
    flag_ = 0
    stmode = 0
    qmaj = 0
    bargap = 14
    sm0 = 14
    qkord = 2
    kt0 = 54.0
    kts = 2.48
    vt0 = 18.0
    vts = 2.48
    stgap = 48
    l0 = 2
    cpf = 1
    qa0 = 2
    early = 1
    fbar = 24
    rdy = 5
cfg = Cfg()
for a in sys.argv[2:]:
    k, v = a.split("=")
    setattr(cfg, k, type(getattr(cfg, k))(v))

NAME = "standalone__mha_softmax__near_ridge"
KA = 16; VA = 20; DA = 28; DB = 29; QA = 30; OW = 34; OS = 40; OR_ = 8; QR = 48; PT = 2
ET = 42; ER = 44; EU = 36
MX = 50; NM = 54; TM = 12; TS = 58
PB = 80; SB = 96; OB = 128
def S_(h, q, kt): return SB + 16 * h + 8 * q + 4 * kt
def P_(h, q): return PB + 8 * h + 4 * q
def O_(qt, b): return OB + 32 * qt + 4 * b
AQ = 0; AQN = 64; AK = 96; AV = 128; AO = 160; AL = 224; AONE = 240; AZERO = 244; ACHK = 248
sQ_, sK_, sV_, sO_ = 4, 8, 12, 16
sW = 20; sKo = 21; sVo = 22; sMK = 23; sMV = 24; sQo = 25; sOo = 26; sC = 27; sBAD = 28; sUB = 29; sACC = 30; sCMP = 32
sLO = 34; sRG = 35; sMS = 44; sCNT = 47; sONR = 48; sQa = 50; sQb = 51; sOa = 52; sOb = 53; sT = 54; sKt = 55; sVt = 56; sKb = 80; sVb = 81; sMKn = 29; sMVn = 49; sC2 = 60; sQT = 64; sOT = 72; sO2 = 84; sLT = 88
WSH, PSTEP, HSH, QEND = ((14, 2048, 16, 65536), (11, 8192, 16, 65536), (15, 2048, 14, 114688))[cfg.qomap]
LDS_V = 65536; LDS_S = 131072
SCALE = struct.unpack("<I", struct.pack("<f", math.log2(math.e) / math.sqrt(128.0)))[0]
LO_BITS = (127 - (40 if cfg.finchk else 24)) << 23
HI_BITS = (127 + (126 if cfg.finchk else 24)) << 23

def srd(b): return "s[%d:%d]" % (b, b + 3)
def srdr(b): return R("s", b, 4)

def v2(op, d, a, b, kind="V"):
    rd = [x for x in (a, b) if isinstance(x, str) and x[0] in "vsa" and x[1:].isdigit()]
    return valu("%s %s, %s, %s" % (op, d, a, b), rd, [d], kind)
def v1(op, d, a, kind="V"):
    rd = [a] if isinstance(a, str) and a[0] in "vsa" and a[1:].isdigit() else []
    return valu("%s %s, %s" % (op, d, a), rd, [d], kind)
def v3(op, d, a, b, c):
    rd = [x for x in (a, b, c) if isinstance(x, str) and x[0] in "vsa" and x[1:].isdigit()]
    return valu("%s %s, %s, %s, %s" % (op, d, a, b, c), rd, [d])
def s2(op, d, a, b):
    rd = [x for x in (a, b) if isinstance(x, str) and (x[0] == "s" or x == "m0")]
    return salu("%s %s, %s, %s" % (op, d, a, b), rd, [d, "scc"])
def smov(d, a):
    return salu("s_mov_b32 %s, %s" % (d, a), [a] if isinstance(a, str) and a[0] == "s" else [], [d])
def mul_(r): return v2("v_mul_f32", "v%d" % r, "s%d" % sC, "v%d" % r)
def exp_(r): return v1("v_exp_f32", "v%d" % r, "v%d" % r, "T")
def cvt_(d, a, b): return v2("v_cvt_pk_bf16_f32", "v%d" % d, "v%d" % a, "v%d" % b)
def dsr128(dp, d, addr, off, tag):
    assert 0 <= off < 65536
    return Ins("ds_read_b128 %s, v%d offset:%d" % (rng(dp, d, 4), addr, off), "D", ["v%d" % addr], R(dp, d, 4), tag=tag)
def dstr(d, addr, off, tag):
    assert 0 <= off < 65536
    return Ins("ds_read_b64_tr_b16 %s, v%d offset:%d" % (rng("a", d, 2), addr, off), "D", ["v%d" % addr], R("a", d, 2), tag=tag)
def dsw64(addr, src, off):
    return Ins("ds_write_b64 v%d, %s offset:%d" % (addr, rng("v", src, 2), off), "W", ["v%d" % addr] + R("v", src, 2), [])
def dma(voff, sr, soff, off, tag, m0, aux=""):
    if sr == sK_ and cfg.k_aux: aux = cfg.k_aux
    if sr == sV_ and cfg.v_aux: aux = cfg.v_aux
    i = Ins("buffer_load_dwordx4 v%d, %s, s%d offen offset:%d %slds" % (voff, srd(sr), soff, off, aux + " " if aux else ""), "X",
            ["v%d" % voff, "s%d" % soff, "m0"] + srdr(sr), [], tag=tag)
    i.cmt = m0
    return i
def store(src, soff, off, tag=None, p="a", sr=sO_):
    return Ins("buffer_store_dwordx4 %s, v%d, %s, s%d offen offset:%d%s" % (rng(p, src, 4), OS, srd(sr), soff, off, " " + cfg.o_aux if cfg.o_aux else ""), "X",
               R(p, src, 4) + ["v%d" % OS, "s%d" % soff] + srdr(sr), [], tag=tag)
def setm0(m0):
    return s2("s_add_u32", "m0", "s%d" % m0[0], str(m0[1]))

if cfg.qkord == 0:   QKSEQ = [(f // 4, q, f % 4) for f in range(8) for q in range(2)]
elif cfg.qkord == 1: QKSEQ = [(kt, q, s if q == 0 else 3 - s) for kt in range(2) for q in range(2) for s in range(4)]
else:                QKSEQ = [(c // 2, (0, 1, 1, 0)[c], s if c % 2 == 0 else 3 - s) for c in range(4) for s in range(4)]
def kfirst(f): return min(i for i, (kt, q, s) in enumerate(QKSEQ) if 4 * kt + s == f)
def klast(f): return max(i for i, (kt, q, s) in enumerate(QKSEQ) if 4 * kt + s == f)
def sdone(q, kt): return max(i for i, x in enumerate(QKSEQ) if x[:2] == (kt, q))
def qfirst(q, s): return min(i for i, x in enumerate(QKSEQ) if x[1:] == (q, s))
GRP = sorted([(q, kt) for q in range(2) for kt in range(2)], key=lambda g: sdone(*g))
KORD = sorted(range(8), key=kfirst)
def qk_block(h):
    L = []; seen = set()
    for kt, q, s in QKSEQ:
        L.append(mfma("v", S_(h, q, kt), "a", AK + 4 * (4 * kt + s), "a", AQ + 16 * (2 * h + q) + 4 * s, czero=((kt, q) not in seen)))
        seen.add((kt, q))
    return L
def pvpos(b, q):
    if cfg.qmaj: return 9 * q + 1 + b
    return 2 * b + q + (1 if b >= 3 else 0) + (1 if b >= 6 else 0)
def pfirst(q): return 9 * q if cfg.qmaj else q
def pv_block(h, first):
    L = []
    if cfg.qmaj:
        for q in range(2):
            L.append(mfma("a", AL + 4 * (2 * h + q), "a", AONE, "v", P_(h, q), czero=first))
            for b in range(8): L.append(mfma("v", O_(2 * h + q, b), "a", AV + 4 * b, "v", P_(h, q), czero=first))
        return L
    for b in range(8):
        for q in range(2):
            L.append(mfma("v", O_(2 * h + q, b), "a", AV + 4 * b, "v", P_(h, q), czero=first))
        if b in (2, 5):
            q = b // 4
            L.append(mfma("a", AL + 4 * (2 * h + q), "a", AONE, "v", P_(h, q), czero=first))
    return L

class Item:
    def __init__(self, ins, ready, dead, target, deps=()):
        self.ins = ins; self.ready = ready; self.dead = dead; self.target = target; self.deps = list(deps); self.gap = None
        k = ins.kind
        self.cost = 8 if k in ("T", "X", "W") else 4
class Gap:
    def __init__(self, m):
        self.pre = []; self.m = m; self.sh = [lsite()]; self.ds = []; self.va = []
    def flat(self): return self.pre + [self.m] + self.sh + self.ds + self.va

def schedule(gaps, items, name):
    n = len(gaps)
    todo = sorted(items, key=lambda i: (i.target, i.dead))
    for g in range(n):
        G = gaps[g]
        def ok(it):
            if it.ready > g: return False
            for d, dist in it.deps:
                if d.gap is None or d.gap + dist > g: return False
            return True
        def place(it):
            it.gap = g; todo.remove(it)
            (G.ds if it.ins.kind in ("D", "W", "X") else G.va).append(it.ins)
        def isst(ins): return ins.kind == "X" and "store" in ins.text
        def fits(it, used):
            k = it.ins.kind
            if any(x.kind == "X" and not (cfg.xopt and isst(x)) for x in G.ds): return False
            if k == "X": return used == 0 and not G.ds
            return True
        used = 0
        cap = 8
        for it in [x for x in todo if x.dead <= g]:
            if ok(it) and fits(it, used): place(it); used += it.cost
        if cfg.xopt and used == 0:
            xs = [it for it in todo if it.ins.kind == "X" and ok(it) and it.target <= g]
            nx = [it for it in todo if it.ins.kind == "X" and not isst(it.ins) and it.target <= g + 1 and it.ready <= g + 1
                  and all(d.gap is not None and d.gap + dist <= g + 1 for d, dist in it.deps)]
            if xs:
                place(xs[0])
                if isst(xs[0].ins): cap = cfg.stcap
                else: used = 8
            elif nx and cfg.xopt == 1:
                ds = [it for it in todo if it.ins.kind == "D" and ok(it)]
                if len(ds) >= 2:
                    place(ds[0]); place(ds[1]); used = 8
        while used < cap:
            c = [it for it in todo if ok(it) and fits(it, used) and it.cost <= cap - used and not (cfg.xopt and it.ins.kind == "X")]
            if not c: break
            it = c[0]
            if used == 0 and it.cost == 4:
                dep_next = [x for x in todo if x.cost == 4 and x is not it and x.ready <= g and all((d.gap is not None and d.gap + dist <= g) or (d is it and dist == 0) for d, dist in x.deps)]
                eight = [x for x in c if x.cost == 8]
                if not dep_next and eight and it.dead > g: it = eight[0]
            place(it); used += it.cost
        c = [it for it in todo if ok(it) and fits(it, used) and it.cost == 4 and it.target < g - cfg.lag]
        if c and used > 0 and not (cfg.xopt == 1 and G.ds and not G.va and len(G.ds) == 2):
            place(c[0]); used += 4
        while True:
            over = False
            dem = 0
            for it in sorted(todo, key=lambda i: min(i.dead, n - 1)):
                dem += 12 if it.ins.kind == "X" else it.cost
                d = min(it.dead, n - 1)
                if dem > 12 * (d - g): over = True; break
            if not over: break
            c = sorted([it for it in todo if ok(it) and fits(it, used)], key=lambda i: (min(i.dead, n - 1), i.target))
            if not c: break
            place(c[0]); used += c[0].cost
    if todo:
        raise Exception("%s: unscheduled items: %s" % (name, [(i.ins.text, i.ready, i.dead) for i in todo]))
    for it in items:
        if it.gap > it.dead: raise Exception("%s: deadline miss %s gap %d > %d" % (name, it.ins.text, it.gap, it.dead))

def softmax_items(h, base, rdy, dead, lo=(0, 0, 0), hi=(16, 16, 8), carry=None):
    its = []; M = {}; E = {}
    def reg(e):
        q, kt = GRP[e // 4]
        return q, kt, S_(h, q, kt) + e % 4
    for e in range(lo[0], hi[0] if not (cfg.fakepre or cfg.pre) else lo[0]):
        q, kt, r = reg(e)
        M[e] = Item(mul_(r), rdy(q, kt), dead(q) - 2, base + 2 * e); its.append(M[e])
    for e in range(lo[1], hi[1]):
        q, kt, r = reg(e)
        E[e] = Item(exp_(r), rdy(q, kt), dead(q) - 1, base + 2 * e + 1, [(M[e], 0)] if e in M else []); its.append(E[e])
    for j in range(lo[2], hi[2]):
        q, kt, r = reg(2 * j)
        deps = [(E[e], 1) for e in (2 * j, 2 * j + 1) if e in E]
        its.append(Item(cvt_(P_(h, q) + 2 * kt + j % 2, r, r + 1), rdy(q, kt), dead(q), base + 4 * j + 4, deps))
    return its

def kread(f, slot, dT):
    return dsr128("a", AK + 4 * f, KA + f % 4, slot * 8192 + (f // 4) * 4096, ("K", dT))
def vread(b, jj, slot, dT):
    return dstr(AV + 4 * b + 2 * jj, VA + b, slot * 8192 + jj * 4096, ("V", dT))
_uid = [0]
def kd(lead=None):
    _uid[0] += 1
    L = [dma(DA, sK_, sKo, 0, ("K", "a"), (sMKn, 0, _uid[0]), cfg.kv_aux), dma(DB, sK_, sKo, 1024, ("K", "b"), (sMKn, 0, _uid[0]), cfg.kv_aux)]
    for x in L: x.needs = lead
    return L
def vd(lead=None):
    _uid[0] += 1
    L = [dma(DA, sV_, sVo, 0, ("V", "a"), (sMVn, LDS_V, _uid[0]), cfg.kv_aux), dma(DB, sV_, sVo, 1024, ("V", "b"), (sMVn, LDS_V, _uid[0]), cfg.kv_aux)]
    for x in L: x.needs = lead
    return L
def kv_dmas(t, lead):
    return kd(lead + 1) + vd(lead)
def q_dmas(h, du, msgpr=sMS, mconst=0):
    return [dma(DA if i % 2 == 0 else DB, sQ_, sQT + 4 * h + i // 2, (i % 2) * 1024, ("Q", h, du), (msgpr, mconst + (i // 2) * 2048), cfg.q_aux) for i in range(8)]
def q_reads(dst, h, du, addr=QA, p="a"):
    return [dsr128(p, dst + 16 * q + 4 * s, addr + s, q * 4096, ("Q", h, du)) for q in range(2) for s in range(4)]

def pre_ops(i, k):
    r = QR + i; a = PT + 2 * k
    return [v2("v_lshlrev_b32", "v%d" % a, "16", "v%d" % r), v2("v_and_b32", "v%d" % (a + 1), "0xffff0000", "v%d" % r), mul_(a), mul_(a + 1), cvt_(r, a, a + 1)]
def pre_burst(dst, writes=True):
    L = []
    def stage(i, n):
        r = QR + i; a = PT + 2 * (i % 3)
        if n == 0: return [v2("v_lshlrev_b32", "v%d" % a, "16", "v%d" % r), v2("v_and_b32", "v%d" % (a + 1), "0xffff0000", "v%d" % r)]
        if n == 1: return [valu("v_pk_mul_f32 v[%d:%d], v[%d:%d], s[%d:%d]" % (a, a + 1, a, a + 1, sC2, sC2 + 1), R("v", a, 2), R("v", a, 2), "K")]
        if n == 2: return [cvt_(r, a, a + 1)]
        return [v1("v_accvgpr_write_b32", "a%d" % (dst + i), "v%d" % r)] if writes else []
    for i in range(32 + 3):
        for n in (3, 2, 1, 0):
            if 0 <= i - n < 32: L += stage(i - n, n)
    return L
def epi_burst(h, check=True, defer=False):
    L = []
    for q in range(2): L.append(v1("v_accvgpr_read_b32", "v%d" % (ET + q), "a%d" % (AL + 4 * (2 * h + q))))
    for q in range(2): L.append(v1("v_rcp_f32", "v%d" % (ER + 2 * q), "v%d" % (ET + q), "T"))
    if check:
        for q in range(2): L.append(v2("v_subrev_u32", "v%d" % (EU + q), "s%d" % sLO, "v%d" % (ET + q)))
        L.append(valu("v_cmp_le_u32 vcc, s%d, v%d" % (sRG, EU), ["s%d" % sRG, "v%d" % EU], ["vcc"]))
        L.append(valu("v_cmp_le_u32 s[%d:%d], s%d, v%d" % (sCMP, sCMP + 1, sRG, EU + 1), ["s%d" % sRG, "v%d" % (EU + 1)], R("s", sCMP, 2)))
    else:
        L.append(nop(1))
    for q in range(2):
        for b in range(8):
            for i in range(2):
                a = O_(2 * h + q, b) + 2 * i
                L.append(valu("v_pk_mul_f32 v[%d:%d], v[%d:%d], v[%d:%d] op_sel_hi:[1,0]" % (a, a + 1, a, a + 1, ER + 2 * q, ER + 2 * q + 1),
                              R("v", a, 2) + ["v%d" % (ER + 2 * q)], R("v", a, 2), "K"))
    sor = []
    if check:
        sor = [salu("s_or_b64 s[%d:%d], s[%d:%d], vcc" % (sACC, sACC + 1, sACC, sACC + 1), ["vcc"] + R("s", sACC, 2), R("s", sACC, 2)),
               salu("s_or_b64 s[%d:%d], s[%d:%d], s[%d:%d]" % (sACC, sACC + 1, sACC, sACC + 1, sCMP, sCMP + 1), R("s", sCMP, 2) + R("s", sACC, 2), R("s", sACC, 2))]
        if not cfg.finchk: L += sor
    for q in range(2):
        for bp in range(4):
            a = O_(2 * h + q, 2 * bp)
            for i in range(4): L.append(cvt_(a + i, a + 2 * i, a + 2 * i + 1))
            if check and cfg.finchk and (q, bp) != (0, 0):
                pa = a - 8
                L.append(mfma("a", ACHK, "a", AZERO, "v", pa, czero=(h == 0 and (q, bp) == (0, 1))))
                if sor: L.append(sor.pop(0))
    last = [mfma("a", ACHK, "a", AZERO, "v", O_(2 * h + 1, 6))] if check and cfg.finchk else []
    if defer: LASTCHK[h] = last
    elif last: L += [nop(2)] + last
    return L
def flag_ops():
    L = []
    if cfg.finchk:
        L.append(v1("v_accvgpr_read_b32", "v%d" % ET, "a%d" % ACHK))
        L.append(valu("v_cmp_u_f32 vcc, v%d, v%d" % (ET, ET), ["v%d" % ET], ["vcc"]))
        L.append(nop(2))
        L.append(salu("s_or_b64 s[%d:%d], s[%d:%d], vcc" % (sACC, sACC + 1, sACC, sACC + 1), ["vcc"] + R("s", sACC, 2), R("s", sACC, 2)))
    L.append(salu("s_cmp_lg_u64 s[%d:%d], 0" % (sACC, sACC + 1), R("s", sACC, 2), ["scc"]))
    L.append(salu("s_addc_u32 s%d, s%d, s%d" % (sBAD, sBAD, sBAD), ["scc", "s%d" % sBAD], ["s%d" % sBAD]))
    L.append(salu("s_mov_b64 s[%d:%d], 0" % (sACC, sACC + 1), [], R("s", sACC, 2)))
    L.append(salu("s_mov_b64 vcc, 0", [], ["vcc"]))
    return L
def o_writes(h):
    L = []
    for q in range(2):
        for bp in range(4):
            a = O_(2 * h + q, 2 * bp); addr = OW + bp % 2
            L.append(Ins("ds_write_b128 v%d, %s offset:%d" % (addr, rng("v", a, 4), (bp // 2) * 128 + q * 4096), "W", ["v%d" % addr] + R("v", a, 4), []))
    return L
def o_reads(h, du):
    L = []
    for j in range(8):
        for i in range(2):
            d = AO + 32 * h + 4 * j + 2 * i; addr = OR_ + 2 * (j % 2) + i
            L.append(Ins("ds_read_b64 %s, v%d offset:%d" % (rng("a", d, 2), addr, j * 1024), "D", ["v%d" % addr], R("a", d, 2), tag=("O", h, du)))
    return L
def tab_add(t): return [s2("s_add_u32", "s%d" % (t + i), "s%d" % (t + i), str(USTRIDE)) for i in range(8)]
def o_stores(h):
    return [store(AO + 32 * h + 4 * j, sOT + 4 * h + j // 2, (j % 2) * 1024) for j in range(8)]
def park_stores():
    return [store(QR + 4 * j, sOT + 4 + j // 2, (j % 2) * 1024, p="v", sr=sO2) for j in range(8)]
USTRIDE = 131072 if cfg.hmap == 0 else 128 * 131072
KSTEP = (8192, 2048, 4096)[cfg.kvmap]
def adv(which, cross):
    o, t, b = (sKo, sKt, sKb) if which == "K" else (sVo, sVt, sVb)
    m = sMKn if which == "K" else sMVn
    if cfg.flag_:
        assert not cfg.rot
        L = [s2("s_add_u32", "s%d" % o, "s%d" % o, "8192")]
        if USTRIDE != 131072:
            L += [s2("s_bfe_u32", "s%d" % t, "s%d" % o, "0x10011"), s2("s_mul_i32", "s%d" % t, "s%d" % t, str(USTRIDE - 131072)), s2("s_add_u32", "s%d" % o, "s%d" % o, "s%d" % t)]
        return L + [s2("s_add_u32", "s%d" % m, "s%d" % m, "8192"), s2("s_and_b32", "s%d" % m, "s%d" % m, "0xffff")]
    M = [s2("s_add_u32", "s%d" % m, "s%d" % m, "8192"), s2("s_and_b32", "s%d" % m, "s%d" % m, "0xffff")]
    if not cfg.rot:
        return M + [s2("s_add_u32", "s%d" % o, "s%d" % o, str(KSTEP + (USTRIDE - 16 * KSTEP if cross else 0)))]
    L = M + [s2("s_add_u32", "s%d" % t, "s%d" % t, str(KSTEP)), s2("s_and_b32", "s%d" % t, "s%d" % t, str(16 * KSTEP - 1))]
    if cross: L.append(s2("s_add_u32", "s%d" % b, "s%d" % b, str(USTRIDE)))
    L.append(s2("s_add_u32", "s%d" % o, "s%d" % b, "s%d" % t))
    return L

LEAD = cfg.lead
LAT = cfg.lat
B0, B1, B2, B3, NG = 0, 16, 34, 50, 68
BARS = [int(x) for x in cfg.bars.split(',')] if cfg.bars else list(range(0, 16, cfg.barper))
NW0 = 5
LASTCHK = {}
RAMP_IT = BARS[1:][cfg.rskip:cfg.rskip + cfg.lead - cfg.l0]
RAMPS = {}
QA_IT = [cfg.qa0 + i for i in range(4)]; QB_IT = [8, 9, 10, 11]; ST_IT = [1, 6, 7, 12, 13, 14, 15]
QRD = cfg.qa0 + 5; QB_IT = [QRD + 1 + i for i in range(4)] if QRD <= 7 else [QRD + 1, QRD + 2]
ST_IT = ([1] + [t for t in range(2, 16) if t not in QA_IT and t not in QB_IT] + [8])
ST_IT = sorted(ST_IT[:8])
ST_MAP = {t: [2 * i, 2 * i + 1] for i, t in enumerate(ST_IT)} if cfg.stmode == 0 else {(k + 1) % 16: [k] for k in range(16)}
if cfg.stmode == 2: ST_MAP = {6: [0, 1, 2, 3], 7: [4, 5, 6, 7], 12: [8, 9, 10, 11], 13: [12, 13, 14, 15]}
QCNT_A = [2, 2, 2, 2]; QCNT_B = [8 // len(QB_IT)] * len(QB_IT)
if cfg.stmode == 4:
    QA_IT = [2, 3, 4]; QCNT_A = [3, 3, 2]; QRD = 6; QB_IT = [7, 8]; QCNT_B = [4, 4]
    ST_MAP = {9: [0, 1], 10: [2, 3], 11: [4, 5], 12: [6, 7], 13: [8, 9, 10], 14: [11, 12, 13], 15: [14, 15]}
if cfg.stmode == 5:
    QA_IT = [2, 3, 4]; QCNT_A = [3, 3, 2]; QRD = 6; QB_IT = [7, 8, 9]; QCNT_B = [3, 3, 2]
    ST_MAP = {10: [0, 1, 2], 11: [3, 4, 5], 12: [6, 7], 13: [8, 9, 10], 14: [11, 12, 13], 15: [14, 15]}
if cfg.park:
    assert cfg.stmode == 0 and not cfg.pre
    ST_MAP = {1: [0, 1], 6: [8, 9], 7: [10, 11], 8: [12, 13], 12: [14, 15], 13: [2, 3], 14: [4, 5], 15: [6, 7]}
if cfg.stmode == 3: ST_MAP = {12: [0, 1, 2, 3], 13: [4, 5, 6, 7], 14: [8, 9, 10, 11], 15: [12, 13, 14, 15]}

class Seg:
    def __init__(self): self.gaps = []; self.sitems = []; self.head = []; self.tail = []; self.post = []

def build_iter(t, first=False):
    sg = Seg()
    if first:
        b0, b1, b2, b3, ng = 0, None, 16, 32, 50
        mf = qk_block(0) + qk_block(1) + pv_block(0, True)
    else:
        b0, b1, b2, b3, ng = B0, B1, B2, B3, NG
        mf = qk_block(0) + pv_block(1, t == 1) + qk_block(1) + pv_block(0, t == 0)
    gaps = [Gap(m) for m in mf]
    items = []
    INF = 10 ** 6
    slot = t % 8; nslot = (t + 1) % 8
    isbar = t in BARS
    nextbar = min([x for x in BARS if x > t] + [16])
    bar_gap = cfg.bargap
    if not first:
        items += softmax_items(1, cfg.sm0 + 34 - NG, lambda q, kt: 0, lambda q: b1 + pfirst(q) - 2, lo=(cfg.e0, cfg.e0, cfg.c0))
        for i in range(cfg.f0, 8):
            f = KORD[i]
            items.append(Item(kread(f, slot, 0), 0, kfirst(f) - LAT, cfg.kt0 + cfg.kts * i - NG))
    items += softmax_items(0, (cfg.sm0 if not first else 12), lambda q, kt: b0 + sdone(q, kt) + cfg.rdy, lambda q: b3 + pfirst(q) - 2)
    items += softmax_items(1, b3 - B3 + cfg.sm0 + 34, lambda q, kt: b2 + sdone(q, kt) + cfg.rdy, lambda q: INF, hi=(cfg.e0, cfg.e0, cfg.c0))
    for b in range(8):
        for jj in range(2):
            rdy = (b1 + pvpos(b, 1)) if not first else cfg.fbar + 1
            items.append(Item(vread(b, jj, slot, 0), max(rdy, bar_gap + 1), b3 + pvpos(b, 0) - LAT, (cfg.vt0 + cfg.vts * (2 * b + jj)) if not first else cfg.fbar + 1 + b + jj * 0.5))
    for i in range(cfg.f0):
        f = KORD[i]
        items.append(Item(kread(f, nslot, 1), max(b2 + klast(f), cfg.fbar + 1 if first else 0), min(ng - 1, ng + kfirst(f) - LAT), b3 - B3 + cfg.kt0 + cfg.kts * i))
    def chain(lst, targets, ready, dead=INF, dist=1, after=None):
        p = after; res = []
        for k, (ins, tgt) in enumerate(zip(lst, targets)):
            dd = dead[k] if isinstance(dead, list) else dead
            it = Item(ins, ready, dd, tgt, [(p, dist)] if p else []); items.append(it); p = it; res.append(it)
        return res
    if first:
        lst = []
        for n in range(cfg.l0 + 1 + cfg.front): lst += [("V", vd()), ("K", kd())]
        if cfg.early: lst = lst[1:]
        p = None; tg = cfg.ftg
        for k, (w, pr) in enumerate(lst):
            rdy = tg if k < 8 - cfg.early else max(tg, cfg.fbar + 2)
            its = chain(pr, [tg, tg + 1], rdy, after=p, dist=1); p = its[1]; tg += cfg.ftgs if k + 1 != cfg.fhold else cfg.fgap
            sg.post.append((its[1], adv(w, False)))
        gaps[cfg.qw].sh.append(vsite([("Q", 1, 0)]))
        if cfg.pre:
            for i, ins in enumerate(q_reads(QR, 1, 0, addr=TM, p="v")): items.append(Item(ins, 8, 11, 8 + 0.5 * i))
            gaps[16].pre += [lsite()] + pre_burst(AQ + 32) + [nop(1)]
        else:
          for i, ins in enumerate(q_reads(AQ + 32, 1, 0, addr=TM)):
            items.append(Item(ins, 8, 16 - LAT + qfirst(i // 4, i % 4) + 1, 8 + 0.5 * qfirst(i // 4, i % 4)))
        al = lsite(); al.needs = "all"
        gaps[cfg.fbar].sh += [al, vsite([("V", 0), ("K", 1)]), bar()]
        if nextbar > 1: gaps[ng - 1].va += [vsite([x for i in range(1, nextbar) for x in (("V", i), ("K", i + 1))]), bar()]
    else:
        if cfg.front:
            assert cfg.barper == 2
            if isbar:
                p = None
                for j in range(2):
                    dm = kv_dmas(t, LEAD + j)
                    kvits = chain(dm, [cfg.x0 + cfg.fxs * (4 * j + i) for i in range(4)], bar_gap + 2, after=p, dist=cfg.fxs - 1)
                    p = kvits[3]
                    sg.post.append((kvits[1], adv("K", (t + j + LEAD + 2) % 16 == 0)) if j == 0 else None) if False else None
                    for a in adv("K", (t + j + LEAD + 2) % 16 == 0): sg.sitems.append((a, ("after", kvits[1]), None))
                    for a in adv("V", (t + j + LEAD + 1) % 16 == 0): sg.sitems.append((a, ("after", kvits[3]), None))
        else:
            dm = kv_dmas(t, LEAD)
            dmt = [cfg.x0 + cfg.xs * i for i in range(4)] if isbar else [cfg.x1 + cfg.xs * i for i in range(4)]
            if cfg.xpair: dmt = [dmt[0], dmt[0] + 1, dmt[0] + cfg.xpair, dmt[0] + cfg.xpair + 1]
            kvits = chain(dm, dmt, (bar_gap + 2) if isbar else 1)
            for a in adv("K", (t + LEAD + 2) % 16 == 0): sg.sitems.append((a, ("after", kvits[1]), None))
            for a in adv("V", (t + LEAD + 1) % 16 == 0): sg.sitems.append((a, ("after", kvits[3]), None))
        if isbar:
            needs = [x for i in range(nextbar - t) for x in (("V", i), ("K", i + 1))]
            if t in RAMP_IT:
                r = Ins("s_cbranch_vccnz L_ramp%dA\nL_back%d:" % (t, t), "RAMP", ["vcc"]); r.cmt = "ramp%d" % t
                gaps[bar_gap - 2].sh.append(r)
                k = RAMP_IT.index(t)
                for role in ("A", "B"):
                    L = [vsite(needs)]
                    for w, pr in (("V", vd()), ("K", kd())):
                        follower = (w == "V") == (role == "A")
                        if follower and k >= len(RAMP_IT) - cfg.flag_: continue
                        L += [setm0(pr[0].cmt), nop(1)] + pr + adv(w, False)
                    if t == RAMP_IT[-1]: L.append(salu("s_mov_b64 vcc, 0", [], ["vcc"]))
                    L.append(raw("s_branch L_back%d" % t, "BR"))
                    if role == "A": L[0:0] = [raw("s_bitcmp1_b32 s2, 3"), raw("s_cbranch_scc1 L_ramp%dB" % t)]
                    RAMPS["ramp%d%s" % (t, role)] = L
            gaps[bar_gap - 1].sh.append(vsite(needs))
            gaps[bar_gap].sh.append(bar())
    XT = [cfg.xt, cfg.xt + cfg.xts]
    if not first and t == 0:
        gaps[0].pre += epi_burst(0, defer=True)
        gaps[1].pre += LASTCHK[0]
        W = chain(o_writes(0), [1.5 + 3.5 * i for i in range(8)], 0, 38)
        chain(o_reads(0, -1), [29 + 1.1 * j for j in range(16)], 0, 47, dist=0, after=W[7])
        gaps[48].pre += epi_burst(1, defer=True)
        gaps[49].pre += LASTCHK[1]
        chain(o_writes(1)[:NW0], [49.5 + 4 * i for i in range(NW0)], 48)
        for i in range(16, 32) if not cfg.pre else []:
            items.append(Item(v1("v_accvgpr_mov_b32", "a%d" % (AQ + 32 + i), "a%d" % (AQN + i)), 0, b2 - 2, 2 * (i - 16)))
        for i in range(32) if cfg.pre else []:
            items.append(Item(v1("v_accvgpr_write_b32", "a%d" % (AQ + 32 + i), "v%d" % (QR + i)), 0, b2 - 2, i))
        fo = flag_ops()
        if cfg.finchk:
            i1 = Item(fo[0], 56, INF, 56); i2 = Item(fo[1], 56, 62, 57, [(i1, 0)]); items += [i1, i2]
            sg.sitems.append((fo[3], ("after2", i2), None)); sg.sitems.append(([fo[4], fo[5]], ("after2", i2), None))
            sg.sitems.append((fo[6], ("after2", i2), None)); sg.sitems.append((fo[7], ("after2", i2), None))
        else:
            gaps[60].pre += fo
    if t == 1:
        ws = o_writes(1)[NW0:]
        W = chain(ws, [0.5 + 4 * i for i in range(len(ws))], 0, [b1 + pvpos(2 * ((NW0 + i) % 4), (NW0 + i) // 4) - 1 for i in range(len(ws))])
        chain(o_reads(1, -1), [16 + 2 * j for j in range(16)], 0, INF, dist=0, after=W[-1])
        al = lsite(); al.needs = "all"; gaps[ng - 1].sh.insert(1, al)
    if not first and ST_MAP.get(t):
        ks = ST_MAP[t]
        tg = {1: [cfg.stgap], 2: XT, 3: [46, 53, 60], 4: [36, 42, 48, 54]}[len(ks)] if t not in (0, 1) else ([50, 54] if t == 1 else [20])
        st = chain([(park_stores() if cfg.park and k >= 8 else o_stores(k // 8))[k % 8] for k in ks], tg, 18, 65 if t != 0 else 30)
        for k, it in zip(ks, st):
            if k == (7 if cfg.park else 15):
                if cfg.park: sg.sitems.append((smov("s%d" % (sO2 + 2), "s%d" % (sO_ + 2)), ("after", it), None))
                for a in tab_add(sOT): sg.sitems.append((a, ("after", it), None))
            if k == (7 if cfg.park else 15):
                sg.sitems.append((smov("s%d" % (sO_ + 2), "s%d" % sONR), ("after", it), None))
    for h, its in ((1 - cfg.pre, QA_IT), (cfg.pre, QB_IT)):
        if t in its:
            k = its.index(t)
            if k == 0:
                pass
            cn = QCNT_A if its is QA_IT else QCNT_B
            npi = cn[k]; o = sum(cn[:k])
            qd = chain(q_dmas(h, 1)[o:o + npi], {2: XT if not cfg.xpair else [cfg.xt, cfg.xt + 1], 3: [46, 53, 60], 4: [44, 50, 56, 62]}[npi], 43, 65)
    if t == QB_IT[-1] + 1:
        class Z: gap = -1
        for a in tab_add(sQT): sg.sitems.append((a, ("after", Z), None))
    if cfg.wbl2 and t == cfg.wbl2:
        sg.head += [raw("s_cmp_lg_u32 s%d, 0" % sCNT), raw("s_cbranch_scc1 L_nowb"), raw("s_cmp_lg_u32 s%d, 0" % sW), raw("s_cbranch_scc1 L_nowb"),
                    raw("buffer_wbl2 sc1"), raw("L_nowb:")]
    if cfg.park and t in (13, 14):
        for i in range(16):
            r = 16 * (t - 13) + i
            items.append(Item(v1("v_accvgpr_read_b32", "v%d" % (QR + r), "a%d" % (AO + 32 + r)), 0, INF, 2 + 4 * i))
    if cfg.park and t == 10:
        r = Ins("s_cbranch_scc1 L_last\nL_lastback:", "LAST", ["scc"]); r.cmt = "last"
        sg.head += [raw("s_cmp_eq_u32 s%d, 0" % sCNT), r]
        L = [s2("s_add_u32", "s%d" % (sLT + i), "s%d" % (sOT + 4 + i), str(USTRIDE)) for i in range(4)]
        L += [store(AO + 32 + 4 * j, sLT + j // 2, (j % 2) * 1024) for j in range(8)] + [raw("s_branch L_lastback", "BR")]
        RAMPS["last"] = L
    if t == QRD:
        gaps[29].sh.append(vsite([("Q", 1 - cfg.pre, 1)]))
        for i, ins in enumerate(q_reads(AQN, 1, 1) if not cfg.pre else q_reads(QR, 0, 1, p="v")):
            items.append(Item(ins, 30, INF, 30 + 4 * i))
        al = lsite(); al.needs = "all"; gaps[ng - 1].sh.insert(1, al)
    if cfg.fakepre and 8 <= t <= 14:
        for i in range(23):
            r = 2 + (i % 4)
            op = [v2("v_and_b32", "v%d" % r, "0xffff0000", "v10"), v2("v_lshlrev_b32", "v%d" % r, "16", "v10"), mul_(r), mul_(r), cvt_(8, 2, 3)][i % 5]
            items.append(Item(op, 0, INF, 3 * i))
    if cfg.fakepre and t == 15:
        for i in range(32):
            sg.tail += [v2("v_and_b32", "v3", "0xffff0000", "v10"), v2("v_lshlrev_b32", "v2", "16", "v10"),
                        valu("v_pk_mul_f32 v[4:5], v[2:3], v[6:7]", [], [], "K"), cvt_(8, 4, 5), v1("v_accvgpr_write_b32", "a%d" % (AQN + i), "v8")]
    if cfg.pre and QRD < t < 15:
        n = 14 - QRD; lo_ = (t - QRD - 1) * 32 // n; hi_ = (t - QRD) * 32 // n
        last = {}
        for j, i in enumerate(range(lo_, hi_)):
            k = i % 3; p = last.get(k); base = j * (ng - 6.0) / (hi_ - lo_)
            for m, op in enumerate(pre_ops(i, k)):
                it = Item(op, 0, INF, base + 2.2 * m, [(p, 0)] if p else []); items.append(it); p = it
            last[k] = p
    if cfg.pre and t == 15:
        gaps[15].sh.append(vsite([("Q", 1, 1)]))
        Wr = [Item(v1("v_accvgpr_write_b32", "a%d" % (AQ + i), "v%d" % (QR + i)), 16, 56, 16 + i) for i in range(32)]
        items += Wr
        for i, ins in enumerate(q_reads(QR, 1, 1, p="v")):
            items.append(Item(ins, 16, ng - 6, 22 + 4.5 * i, [(w, 1) for w in Wr[4 * i:4 * i + 4]]))
        sg.tail += [lsite()] + pre_burst(None, writes=False)
    if t == 15 and not cfg.pre:
        gaps[15].sh.append(vsite([("Q", 0, 1)]))
        for i, ins in enumerate(q_reads(AQ, 0, 1)):
            items.append(Item(ins, 16, ng - 1 - LAT, 17 + 5 * i))
        for i in range(16):
            items.append(Item(v1("v_accvgpr_mov_b32", "a%d" % (AQ + 32 + i), "a%d" % (AQN + i)), b3, INF, b3 + i))
    schedule(gaps, items, "it%d%s" % (t, "f" if first else ""))
    for it, ops in sg.post: gaps[it.gap].va += ops
    sg.gaps = gaps
    return sg

def place_scalar(sg):
    gaps = sg.gaps
    def busy(G): return sum(1 for x in G.sh if (x.kind not in ("LSITE", "VSITE")) ) + (1 if any(x.kind in ("LSITE", "VSITE") and x.n is not None for x in G.sh) else 0)
    lastpos = {}
    ntail = 0
    for ins, (how, it), _ in sg.sitems:
        lst = ins if isinstance(ins, list) else [ins]
        lo = max(it.gap + (1 if how == "after2" else 0), lastpos.get(id(it), -1)) + 1
        hi = len(gaps)
        for k in range(it.gap + 1, len(gaps)):
            if any(x.kind == "X" and ((x.rd & lst[0].wr) - {"scc"} or (x.cmt and "s%d" % x.cmt[0] in lst[0].wr)) for x in gaps[k].ds): hi = k - 1; break
        c = [k for k in range(lo, hi) if busy(gaps[k]) == 0]
        if c: gaps[c[0]].sh += lst; lastpos[id(it)] = c[0]
        elif hi < len(gaps):
            k = max(lo - 1, min(hi - 1, lo)); gaps[k].sh += lst; lastpos[id(it)] = k - 1
        else: sg.tail[ntail:ntail] = lst; ntail += len(lst); lastpos[id(it)] = len(gaps)
    cur = None; lastx = -1
    for g, G in enumerate(gaps):
        if any("s_mov_b32 m0" in x.text for x in G.pre): cur = None; lastx = max(lastx, g - 1)
        if any(x.kind == "RAMP" for x in G.sh): cur = None; lastx = max(lastx, g)
        for x in G.ds:
            if x.kind == "X" and "m0" in x.rd:
                if cur != x.cmt:
                    src = "s%d" % x.cmt[0]
                    lw = max([k for k in range(g) if any(src in y.wr for y in gaps[k].sh + gaps[k].va)] + [-1])
                    cands = [k for k in range(max(lastx + 1, lw), g)]
                    free = [k for k in cands if busy(gaps[k]) == 0]
                    if cands:
                        k = free[-1] if free else cands[-1]
                        gaps[k].sh.append(setm0(x.cmt))
                    elif any("s_mov_b32 m0" in y.text for y in G.pre):
                        G.pre.append(setm0(x.cmt))
                    else:
                        gaps[lastx].va.append(setm0(x.cmt))
                    cur = x.cmt
                lastx = g

def flat(sg):
    L = list(sg.head)
    for G in sg.gaps: L += G.flat()
    return L + sg.tail

def prologue():
    L = []
    A = L.append
    A(raw("s_cmp_ge_u32 s2, 256")); A(raw("s_cbranch_scc1 L_end"))
    A(raw("s_load_dwordx4 s[36:39], s[0:1], 0")); A(raw("s_load_dwordx4 s[40:43], s[0:1], 16"))
    A(v2("v_lshrrev_b32", "v1", "6", "v0")); A(v2("v_and_b32", "v0", "63", "v0"))
    A(valu("v_readfirstlane_b32 s%d, v1" % sW, ["v1"], ["s%d" % sW]))
    A(v2("v_lshrrev_b32", "v2", "4", "v0"))
    A(v2("v_and_b32", "v3", "15", "v0"))
    if cfg.xmap == 0:
        A(raw("s_and_b32 s45, s2, 7")); A(raw("s_lshr_b32 s46, s2, 4")); A(raw("s_lshl_b32 s45, s45, 4")); A(raw("s_add_u32 s45, s45, s46"))
    else:
        A(raw("s_and_b32 s45, s2, 7")); A(raw("s_lshr_b32 s46, s2, 4")); A(raw("s_lshl_b32 s46, s46, 3")); A(raw("s_add_u32 s45, s45, s46"))
    if cfg.rot:
        A(raw("s_mul_i32 s%d, s45, %d" % (sKt, cfg.rot * KSTEP))); A(raw("s_and_b32 s%d, s%d, %d" % (sKt, sKt, 16 * KSTEP - 1))); A(smov("s%d" % sVt, "s%d" % sKt))
    if cfg.rotq: A(raw("s_mul_i32 s82, s45, %d" % (cfg.rotq * PSTEP)))
    A(raw("s_lshl_b32 s45, s45, %d" % (19 if cfg.hmap == 0 else 17)))
    A(raw("s_bfe_u32 s46, s2, 0x10003")); A(raw("s_lshl_b32 s46, s46, %d" % HSH)); A(raw("s_add_u32 s46, s46, s45"))
    A(s2("s_lshl_b32", "s%d" % sMK, "s%d" % sW, "11"))
    A(v2("v_lshlrev_b32", "v4", "1", "v2")); A(v2("v_xor_b32", "v4", "v3", "v4")); A(v2("v_lshlrev_b32", "v4", "4", "v4"))
    A(v3("v_lshl_add_u32", "v%d" % DA, "v2", "8", "v4")); A(v2("v_xor_b32", "v%d" % DB, "0x80", "v%d" % DA))
    A(smov("s%d" % sMKn, "s%d" % sMK)); A(smov("s%d" % sMVn, "s%d" % sMK))
    if cfg.cpf:
        A(raw("s_lshr_b32 s%d, s2, 3" % sT)); A(raw("s_lshl_b32 s%d, s%d, 2" % (sT, sT))); A(raw("s_add_u32 s%d, s%d, s%d" % (sT, sT, sW)))
        A(raw("s_and_b32 s%d, s%d, 31" % (sT, sT))); A(raw("s_lshl_b32 s%d, s%d, 10" % (sT, sT)))
        A(raw("s_min_u32 s%d, s%d, L_end - L_pc - 1024" % (sT, sT)))
        A(v2("v_lshlrev_b32", "v5", "4", "v0")); A(v2("v_add_u32", "v5", "s%d" % sT, "v5"))
        A(raw("s_getpc_b64 s[58:59]\nL_pc:"))
        A(Ins("global_load_dwordx4 v[72:75], v5, s[58:59]", "X", ["v5"], R("v", 72, 4)))
    A(s2("s_lshl_b32", "s%d" % sMS, "s%d" % sW, "13")); A(s2("s_add_u32", "s%d" % sMS, "s%d" % sMS, str(LDS_S)))
    A(s2("s_lshl_b32", "s%d" % sQo, "s%d" % sW, str(WSH)))
    for i in range(8):
        if cfg.rotq:
            A(s2("s_add_u32", "s%d" % (sQT + i), "s82", str(i * PSTEP))); A(s2("s_and_b32", "s%d" % (sQT + i), "s%d" % (sQT + i), str(8 * PSTEP - 1)))
            A(s2("s_add_u32", "s%d" % (sQT + i), "s%d" % (sQT + i), "s%d" % sQo))
        else: A(s2("s_add_u32", "s%d" % (sQT + i), "s%d" % sQo, str(i * PSTEP)))
    for b in (sQ_, sK_, sV_, sO_): A(smov("s%d" % (b + 3), "0x20000"))
    A(smov("s%d" % (sK_ + 2), str(3 * USTRIDE + 131072))); A(smov("s%d" % (sV_ + 2), str(3 * USTRIDE + 131072)))
    A(smov("s%d" % (sQ_ + 2), str(3 * USTRIDE + QEND))); A(smov("s%d" % sONR, str(3 * USTRIDE + QEND))); A(smov("s%d" % (sO_ + 2), "0"))
    assert not cfg.flag_
    if cfg.kvmap == 0: A(s2("s_lshl_b32", "s%d" % sKo, "s%d" % sW, "11"))
    elif cfg.kvmap == 1: A(s2("s_lshl_b32", "s%d" % sKo, "s%d" % sW, "15"))
    else:
        A(s2("s_and_b32", "s%d" % sKo, "s%d" % sW, "1")); A(s2("s_lshl_b32", "s%d" % sKo, "s%d" % sKo, "11"))
        A(s2("s_lshr_b32", "s%d" % sVo, "s%d" % sW, "1")); A(s2("s_lshl_b32", "s%d" % sVo, "s%d" % sVo, "16")); A(s2("s_add_u32", "s%d" % sKo, "s%d" % sKo, "s%d" % sVo))
    if cfg.rot:
        A(smov("s%d" % sKb, "s%d" % sKo)); A(smov("s%d" % sVb, "s%d" % sKo)); A(s2("s_add_u32", "s%d" % sKo, "s%d" % sKo, "s%d" % sKt))
    A(smov("s%d" % sVo, "s%d" % sKo))
    A(raw("s_waitcnt lgkmcnt(0)"))
    if cfg.stamp2: L += stamp()
    for b, p, o in ((sK_, 38, 45), (sQ_, 36, 46), (sV_, 40, 45), (sO_, 42, 46)):
        A(salu("s_add_u32 s%d, s%d, s%d" % (b, p, o), [], ["s%d" % b])); A(salu("s_addc_u32 s%d, s%d, 0" % (b + 1, p + 1), [], ["s%d" % (b + 1)]))
    def issue(lst):
        cur = None
        for x in lst:
            if x.kind == "X" and cur != x.cmt:
                A(setm0(x.cmt)); A(nop(1)); cur = x.cmt
            A(x)
    k0 = kd(); v0 = vd() if cfg.early else None
    q0 = q_dmas(0, 0)
    if cfg.early:
        issue([k0[0], q0[0], v0[0], k0[1], v0[1]] + adv("K", False) + adv("V", False) + q0[1:])
    else:
        issue(k0 + adv("K", False) + q0)
    A(s2("s_sub_u32", "s%d" % sT, "s%d" % sMS, "32768"))
    issue(q_dmas(1, 0, msgpr=sT))
    if cfg.stamp2: L += stamp()
    for i in range(8): A(s2("s_sub_u32", "s%d" % (sOT + i), "s%d" % (sQT + i), str(USTRIDE * (2 if cfg.park and i >= 4 else 1))))
    if cfg.park:
        A(smov("s%d" % sO2, "s%d" % sO_)); A(smov("s%d" % (sO2 + 1), "s%d" % (sO_ + 1))); A(smov("s%d" % (sO2 + 2), "0")); A(smov("s%d" % (sO2 + 3), "0x20000"))
    L += tab_add(sQT)
    A(v2("v_and_b32", "v5", "7", "v3")); A(v2("v_lshlrev_b32", "v6", "1", "v5"))
    for s in range(4):
        A(v2("v_add_u32", "v7", str(4 * s), "v2")); A(v2("v_xor_b32", "v7", "v7", "v6")); A(v2("v_lshlrev_b32", "v7", "4", "v7"))
        A(v3("v_lshl_add_u32", "v%d" % (KA + s), "v3", "8", "v7"))
        A(v2("v_add_u32", "v%d" % (QA + s), "s%d" % sMS, "v%d" % (KA + s)))
        A(v2("v_subrev_u32", "v%d" % (TM + s), "0x8000", "v%d" % (QA + s)))
    A(v2("v_lshrrev_b32", "v76", "2", "v0"))
    A(v2("v_and_b32", "v77", "7", "v76")); A(v2("v_lshlrev_b32", "v77", "1", "v77"))
    A(valu("v_bfe_u32 v78, v0, 1, 1", ["v0"], ["v78"]))
    A(v2("v_and_b32", "v79", "1", "v0")); A(v2("v_lshlrev_b32", "v79", "3", "v79"))
    A(v3("v_lshl_add_u32", "v79", "v76", "8", "v79")); A(v2("v_add_u32", "v79", str(LDS_V), "v79"))
    for b in range(8):
        A(v2("v_add_u32", "v7", str(2 * b), "v78")); A(v2("v_xor_b32", "v7", "v7", "v77"))
        A(v3("v_lshl_add_u32", "v%d" % (VA + b), "v7", "4", "v79"))
    A(v2("v_lshlrev_b32", "v79", "8", "v3")); A(v2("v_add_u32", "v79", "s%d" % sMS, "v79"))
    A(v2("v_xor_b32", "v78", "v2", "v5"))
    A(v3("v_lshl_add_u32", "v%d" % OW, "v78", "4", "v79")); A(v2("v_xor_b32", "v%d" % (OW + 1), "64", "v%d" % OW))
    A(v2("v_and_b32", "v78", "12", "v3")); A(v2("v_and_b32", "v70", "1", "v3")); A(v3("v_lshl_add_u32", "v78", "v70", "1", "v78"))
    A(v2("v_xor_b32", "v78", "v78", "v2")); A(v2("v_lshlrev_b32", "v78", "4", "v78")); A(v3("v_lshl_add_u32", "v78", "v2", "8", "v78"))
    A(v2("v_and_b32", "v70", "2", "v3")); A(v3("v_lshl_add_u32", "v78", "v70", "2", "v78"))
    A(v2("v_add_u32", "v%d" % OR_, "s%d" % sMS, "v78"))
    for i, x in enumerate((16, 64, 80)): A(v2("v_xor_b32", "v%d" % (OR_ + 1 + i), str(x), "v%d" % OR_))
    A(v2("v_lshlrev_b32", "v%d" % OS, "4", "v0"))
    A(v2("v_and_b32", "v7", "3", "v0")); A(valu("v_cmp_eq_u32 vcc, 0, v7", ["v7"], ["vcc"])); A(v1("v_mov_b32", "v76", "0x3f803f80")); A(v1("v_mov_b32", "v77", "0"))
    A(valu("v_cndmask_b32 v7, v77, v76, vcc", ["v76", "v77", "vcc"], ["v7"]))
    for i in range(4):
        A(v1("v_accvgpr_write_b32", "a%d" % (AONE + i), "v7")); A(v1("v_accvgpr_write_b32", "a%d" % (AZERO + i), "v77"))
    A(smov("s%d" % sC, "0x%08x" % SCALE)); A(smov("s%d" % sC2, "0x%08x" % SCALE)); A(smov("s%d" % (sC2 + 1), "0x%08x" % SCALE))
    if cfg.fakepre: L += [v1("v_mov_b32", "v%d" % i, "1.0") for i in range(2, 12)]
    A(smov("s%d" % sLO, "0x%08x" % LO_BITS)); A(smov("s%d" % sRG, "0x%08x" % (HI_BITS - LO_BITS)))
    A(smov("s%d" % sBAD, "0")); A(salu("s_mov_b64 s[%d:%d], 0" % (sACC, sACC + 1), [], R("s", sACC, 2)))
    A(smov("s%d" % sCNT, "3"))
    A(salu("s_mov_b64 vcc, %d" % (-1 if RAMP_IT else 0), [], ["vcc"]))
    if cfg.stamp2: L += stamp()
    A(vsite([("K", 0), ("Q", 0, 0)]))
    if cfg.stamp2: L += stamp()
    A(bar())
    if cfg.pre:
        L += q_reads(QR, 0, 0, p="v") + [kread(f, 0, 0) for f in KORD] + [lsite()]
        b = pre_burst(AQ)
        for i in range(0, len(b), 20): L += b[i:i + 20] + [lsite()]
        return L + [nop(1), lsite()]
    qr = q_reads(AQ, 0, 0)
    seen = set()
    for kt, q, s in QKSEQ:
        if ("k", kt, s) not in seen: A(kread(4 * kt + s, 0, 0)); seen.add(("k", kt, s))
        if ("q", q, s) not in seen: A(qr[4 * q + s]); seen.add(("q", q, s))
    A(lsite())
    return L

def tail_seg():
    L = []
    sm = []
    for it in softmax_items(1, 0, lambda q, kt: 0, lambda q: 99, lo=(cfg.e0, cfg.e0, cfg.c0)):
        sm.append(it.ins)
        if it.ins.kind == "T" and it.ins.text == exp_(S_(1, *GRP[3]) + 3).text: sm.append(nop(1))
    if cfg.stmode == 1:
        L += [o_stores(1)[7]] + tab_add(sOT)
    if cfg.park: L += tab_add(sOT)[4:]
    gaps = [Gap(m) for m in pv_block(1, False)]
    st = o_stores(0)
    if cfg.tailv == 0:
        L += sm + epi_burst(0)
        for g, w in enumerate(o_writes(0)): gaps[g].ds.append(w)
        rd = o_reads(0, 0)
        for g in range(8): gaps[8 + g].ds += rd[2 * g:2 * g + 2]
        for G in gaps: L += G.flat()
        L += [lsite()] + st[:4]
    else:
        w0 = o_writes(0); r0 = o_reads(0, 0)
        L += [nop(2)] + epi_burst(0) + w0[:4] + r0[:8] + w0[4:] + r0[8:] + sm + [nop(2)]
        for j in range(8): gaps[1 + 2 * j].ds.append(st[j])
        for G in gaps: L += G.flat()
        L += [nop(4)]
        st = [None] * 4
    b1 = epi_burst(1)
    w1 = o_writes(1); r1 = o_reads(1, 0)
    if cfg.tailv < 2:
        k = [i for i, x in enumerate(b1) if x.kind == "K"][-1] + 1
        L += b1[:k] + [lsite()] + st[4:] + b1[k:]
        st = o_stores(1)
        L += w1[:4] + r1[:8] + w1[4:] + r1[8:]
        L += [lsite()] + st[:2] + [lsite()] + st[2:4] + [lsite()] + st[4:6] + [lsite()] + st[6:]
    else:
        head = [x for x in b1 if x.kind not in ("K", "M") and "v_cvt" not in x.text and "s_or" not in x.text and x.kind != "N"]
        pk = [x for x in b1 if x.kind == "K"]; cv = [x for x in b1 if "v_cvt" in x.text]
        mm = [x for x in b1 if x.kind == "M"]; so = [x for x in b1 if "s_or" in x.text]
        st = o_stores(1)
        L += head + pk[:16] + cv[:16] + w1[:4] + r1[:8] + pk[16:] + [lsite()] + st[:4] + cv[16:] + w1[4:] + r1[8:] + so + mm
        L += [lsite()] + st[4:6] + [lsite()] + st[6:] + [nop(6)]
    L += flag_ops()
    return L

def slow_path():
    T = []
    A = T.append
    def emit(l):
        for x in l: A(x.text)
    def wait(): A("s_waitcnt vmcnt(0) lgkmcnt(0)");
    A("s_barrier")
    if cfg.force_slow: A("s_mov_b32 s%d, 15" % sBAD)
    A("s_cmp_eq_u32 s%d, 0" % sBAD); A("s_cbranch_scc1 L_end")
    A("s_lshl_b32 s45, s%d, 13" % sW)
    for i in range(4): A("v_add_u32 v%d, s45, v%d" % (KA + i, KA + i))
    for i in range(8): A("v_add_u32 v%d, s45, v%d" % (VA + i, VA + i))
    A("s_add_u32 s46, s45, %d" % LDS_V)
    A("s_lshl_b32 s%d, s%d, %d" % (sQo, sW, WSH))
    A("v_mov_b32 v%d, v%d" % (TS + 4, DA)); A("v_mov_b32 v%d, v%d" % (TS + 5, DB))
    A("s_mov_b32 s%d, 0" % sCNT)
    A("L_slow_unit:")
    A("s_bitcmp1_b32 s%d, 3" % sBAD); A("s_cbranch_scc0 L_slow_next")
    for i in range(8): A("s_add_u32 s%d, s%d, %d" % (sQT + i, sQo, i * PSTEP)); A("s_mov_b32 s%d, s%d" % (sOT + i, sQT + i))
    wait()
    for h in range(2):
        cur = None
        for x in q_dmas(h, 0):
            if cur != x.cmt: A(setm0(x.cmt).text); A("s_nop 0"); cur = x.cmt
            A(x.text)
        wait(); emit(q_reads(AQ + 32 * h, h, 0)); wait()
    def tile_dma(sr, m0s):
        for i in range(8):
            if i % 4 == 0:
                A("s_add_u32 m0, s%d, %d" % (m0s, (i // 4) * 4096)); A("s_add_u32 s%d, s%d, %d" % (sT, sKo, (i // 4) * 4096))
            A("buffer_load_dwordx4 v%d, %s, s%d offen offset:%d lds" % (TS + 4 + i % 2, srd(sr), sT, (i % 4) * 1024))
    def qk_all():
        emit([kread(f, 0, 0) for f in range(8)]); wait()
        emit(qk_block(0) + qk_block(1)); A("s_nop 7"); A("s_nop 3")
    for i in range(4): A("v_mov_b32 v%d, 0xff800000" % (MX + i))
    A("s_mov_b32 s%d, s%d" % (sKo, sCNT)); A("s_add_u32 s%d, s%d, 131072" % (sVo, sCNT))
    A("L_slow_p1:")
    tile_dma(sK_, 45); wait(); qk_all()
    for h in range(2):
        for q in range(2):
            a = S_(h, q, 0)
            for i in range(4): A("v_max3_f32 v%d, v%d, v%d, v%d" % (MX + 2 * h + q, a + 2 * i, a + 2 * i + 1, MX + 2 * h + q))
    A("s_add_u32 s%d, s%d, 8192" % (sKo, sKo)); A("s_cmp_lt_u32 s%d, s%d" % (sKo, sVo)); A("s_cbranch_scc1 L_slow_p1")
    for op in ("v_permlane32_swap_b32", "v_permlane16_swap_b32"):
        for i in range(4): A("v_mov_b32 v%d, v%d" % (NM + i, MX + i))
        A("s_nop 1")
        for i in range(4): A("%s v%d, v%d" % (op, NM + i, MX + i))
        A("s_nop 1")
        for i in range(4): A("v_max_f32 v%d, v%d, v%d" % (MX + i, MX + i, NM + i))
    for i in range(4): A("v_mul_f32 v%d, s%d, v%d" % (NM + i, sC, MX + i))
    for i in range(128): A("v_mov_b32 v%d, 0" % (OB + i))
    for i in range(16): A("v_accvgpr_write_b32 a%d, 0" % (AL + i))
    A("s_mov_b32 s%d, s%d" % (sKo, sCNT))
    A("L_slow_p2:")
    tile_dma(sK_, 45); tile_dma(sV_, 46); wait(); qk_all()
    emit([vread(b, jj, 0, 0) for b in range(4) for jj in range(2)])
    for h in range(2):
        for q in range(2):
            a = S_(h, q, 0)
            for i in range(8): A("v_fma_f32 v%d, v%d, s%d, -v%d" % (a + i, a + i, sC, NM + 2 * h + q))
            for i in range(8): A("v_exp_f32 v%d, v%d" % (a + i, a + i))
            A("s_nop 0")
            for i in range(4): A(cvt_(P_(h, q) + i, a + 2 * i, a + 2 * i + 1).text)
    emit([vread(b, jj, 0, 0) for b in range(4, 8) for jj in range(2)])
    wait()
    emit(pv_block(0, False) + pv_block(1, False))
    A("s_add_u32 s%d, s%d, 8192" % (sKo, sKo)); A("s_cmp_lt_u32 s%d, s%d" % (sKo, sVo)); A("s_cbranch_scc1 L_slow_p2")
    A("s_nop 7"); A("s_nop 3")
    for h in range(2):
        emit(epi_burst(h, check=False)); emit(o_writes(h) + o_reads(h, 0))
        wait(); emit(o_stores(h)); wait()
    A("L_slow_next:")
    A("s_lshl_b32 s%d, s%d, 1" % (sBAD, sBAD)); A("s_and_b32 s%d, s%d, 15" % (sBAD, sBAD))
    for r in (sCNT, sQo): A("s_add_u32 s%d, s%d, %d" % (r, r, USTRIDE))
    A("s_cmp_lg_u32 s%d, 0" % sBAD); A("s_cbranch_scc1 L_slow_unit")
    return T

def stamp():
    if not cfg.stamp: return []
    return [raw("s_memtime s[58:59]"), raw("s_memrealtime s[62:63]"), raw("s_waitcnt lgkmcnt(0)"),
            raw("s_mov_b32 m0, s57"), raw("s_nop 0"), raw("v_writelane_b32 v38, s58, m0"), raw("v_writelane_b32 v39, s62, m0"), raw("s_add_u32 s57, s57, 1")]
def stamp_out():
    if not cfg.stamp: return []
    if cfg.dbgwg >= 0:
        return [x.text for x in stamp()] + ["s_cmp_lg_u32 s2, %d" % cfg.dbgwg, "s_cbranch_scc1 L_nodbg", "s_cmp_lg_u32 s%d, 0" % sW, "s_cbranch_scc1 L_nodbg",
            "s_load_dwordx2 s[36:37], s[0:1], 32", "s_waitcnt lgkmcnt(0)", "s_mov_b32 s38, 64", "s_mov_b32 s39, 0x20000",
            "v_readfirstlane_b32 s45, v39", "v_lshrrev_b32 v41, 2, v%d" % OS, "s_nop 1", "v_subrev_u32 v39, s45, v39",
            "buffer_store_dword v39, v41, s[36:39], 0 offen", "L_nodbg:"]
    return [x.text for x in stamp()] + ["s_load_dwordx2 s[36:37], s[0:1], 40", "s_waitcnt lgkmcnt(0)", "s_mov_b32 s38, 0x1000000", "s_mov_b32 s39, 0x20000",
            "s_lshl_b32 s45, s2, 2", "s_add_u32 s45, s45, s%d" % sW, "s_lshl_b32 s45, s45, 9", "v_lshrrev_b32 v41, 2, v%d" % OS,
            "buffer_store_dword v38, v41, s[36:39], s45 offen", "buffer_store_dword v39, v41, s[36:39], s45 offen offset:256"]
DOC = """; Generated by a scheduling script (hand-written instruction templates, list-scheduled into MFMA gaps).
;   wave = 64 q rows. S^T = K Q^T and O^T += V^T P^T with 16x16x32 bf16 MFMA, so P feeds the second product
;   sums the row (l) with one more MFMA. Every row is then checked at run time: l must lie in [2^-40, 2^126) and every
;   output must be finite (zero-operand MFMA turns any inf/NaN into NaN). A wave with a row that fails recomputes that
;   block at the end of the kernel with the true row max (two-pass fallback, label L_slow_unit)."""
def main():
    sgs = {"it0f": build_iter(0, True)}
    for t in range(16): sgs["it%d" % t] = build_iter(t)
    def segs():
        d = {"pro": pro, "tail": tl}
        d.update(RAMPS)
        for k, s in sgs.items(): d[k] = flat(s)
        return d
    pro = prologue(); tl = tail_seg()
    if cfg.jitter:
        for t in range(16):
            g = (t * 11 + cfg.jitter * 7) % 60
            sgs["it%d" % t].gaps[g].pre[0:0] = [raw("s_cmp_eq_u32 s%d, %d" % (sW, (t * cfg.jitter + t // 4) % 4)), raw("s_cbranch_scc0 L_j%d" % t), raw("s_sleep %d" % (8 + 5 * (t % 5))), raw("L_j%d:" % t)]
    if cfg.dbgspan:
        pro[2:2] = [raw("s_memrealtime s[60:61]"), raw("s_memtime s[62:63]"), raw("s_waitcnt lgkmcnt(0)"), raw("s_mov_b32 s56, s60"), raw("s_mov_b32 s57, s62")]
        i = [k for k, x in enumerate(pro) if x.kind == "BAR"][0]
        pro[i + 1:i + 1] = [raw("s_memrealtime s[58:59]")]
    if cfg.stamp:
        pro[2:2] = [raw("s_mov_b32 s57, 0")] + stamp()
        i = [k for k, x in enumerate(pro) if x.kind == "BAR"][0]
        pro[i + 1:i + 1] = stamp()
        for t in range(0, 16, cfg.stamp): sgs["it%d" % t].head[0:0] = stamp()
        tl[0:0] = stamp()
        if cfg.stamp3:
            G = sgs["it0"].gaps
            G[0].pre += stamp(); G[16].pre += stamp(); G[34].pre += stamp(); G[48].pre[0:0] = stamp(); G[48].pre += stamp()
            sgs["it1"].head[0:0] = stamp(); sgs["it1"].gaps[34].pre += stamp(); sgs["it2"].head[0:0] = stamp(); sgs["it3"].head[0:0] = stamp()
        if cfg.stamp2:
            sgs["it0f"].gaps[16].pre += stamp(); sgs["it0f"].gaps[cfg.fbar + 1].pre += stamp(); sgs["it0f"].tail[0:0] = stamp()
    traces = []
    for role in ("A", "B"):
        x = dict(role=role, lagK=cfg.flag_ if role == "B" else 0, lagV=cfg.flag_ if role == "A" else 0)
        trace = [("pro", dict(T=0, u=0, first=1, **x)), ("it0f", dict(T=0, u=0, first=1, **x))]
        for u in range(4):
            for t in range(16):
                if (u, t) != (0, 0): trace.append(("it%d" % t, dict(T=16 * u + t, u=u, first=(u == 0 and t <= (RAMP_IT[-1] if RAMP_IT else 0)), **x)))
        trace.append(("tail", dict(T=64, u=3, **x)))
        traces.append(trace)
    sgs["it0f"].tail.append(raw("s_branch L_it1", "BR"))
    sgs["it15"].tail += [s2("s_sub_u32", "s%d" % sCNT, "s%d" % sCNT, "1"), raw("s_cbranch_scc0 L_it0", "BR")]
    insert_waits(segs(), traces)
    for k, s in sgs.items():
        br = [x for x in s.tail if x.kind == "BR" or "s_sub_u32 s%d" % sCNT in x.text]
        s.tail = [x for x in s.tail if x not in br]
        place_scalar(s)
        s.tail += br
    fs = {k: finalize(v) for k, v in segs().items()}
    errs = sum((verify(fs, tr, {"K": 8, "V": 16, "Q": 8, "O": 16}) for tr in traces), [])
    for e in errs[:40]: sys.stderr.write("ERR " + e + "\n")
    tot = 0
    for k in ["pro", "it0f"] + ["it%d" % t for t in range(16)] + ["tail"]:
        est = issue_estimate(fs[k]); sys.stderr.write("%s:%d " % (k, est))
        if k.startswith("it") and k != "it0f": tot += est
    if cfg.stamp3:
        for k in ("it0", "it1", "it2"):
            parts = [[]]
            for x in fs[k]:
                if "s_memtime" in x.text: parts.append([])
                parts[-1].append(x)
            sys.stderr.write("\n%s parts %s" % (k, [issue_estimate(p) for p in parts]))
    sys.stderr.write("\nunit estimate %d cycles, errors %d\n" % (tot, len(errs)))
    out = []
    hdr = open(os.path.join(os.path.dirname(os.path.abspath(__file__)), "..", "cdna_kernels", NAME + ".s.ref")).read().split("; Override")[0]
    out.append(hdr.rstrip())
    out.append("; @launch grid=(256,1,1) block=(256,1,1) lds=163840")
    out.append(DOC)
    out.append('.amdgcn_target "amdgcn-amd-amdhsa--gfx950"\n.text\n.globl %s_kernel\n.p2align 8\n.type %s_kernel,@function\n%s_kernel:' % (NAME, NAME, NAME))
    par = {}
    def dump(k):
        out.append("; ---- " + k)
        for x in fs[k]:
            if cfg.nocomp and k != "pro" and x.kind in ("M", "V", "T", "K", "D", "W"):
                par[x.kind] = par.get(x.kind, 0) + 1
                if cfg.nocomp == 1 or par[x.kind] % cfg.nocomp == 0: continue
            if cfg.nomem and k != "pro" and x.kind == "X" and (cfg.nomem == 1 or "store" in x.text): continue
            if cfg.nostore and x.kind == "X" and "store" in x.text: continue
            out.append("  " + x.text)
            if cfg.nocomp and "m0" in x.wr: out.append("  s_nop 0")
    dump("pro"); dump("it0f")
    for k in RAMPS: out.append("L_%s:" % k); dump(k)
    out.append(".p2align 6\nL_it0:"); dump("it0"); out.append("L_it1:")
    for t in range(1, 16): dump("it%d" % t)
    dump("tail")
    if cfg.dbgspan:
        out += ["  " + x for x in ["s_waitcnt vmcnt(0)", "s_memrealtime s[60:61]", "s_memtime s[62:63]", "s_load_dwordx2 s[36:37], s[0:1], 32", "s_waitcnt lgkmcnt(0)", "s_mov_b32 s38, 256", "s_mov_b32 s39, 0x20000",
            "s_not_b32 s45, s56", "v_mov_b32 v2, s45", "v_mov_b32 v3, s58", "v_mov_b32 v4, s60", "v_mov_b32 v5, s56", "s_not_b32 s45, s60", "v_mov_b32 v6, s45", "s_sub_u32 s45, s62, s57", "v_mov_b32 v7, s45", "v_mov_b32 v1, 0",
            "s_mov_b64 exec, 1",
            "buffer_atomic_umax v2, v1, s[36:39], 0 offen", "buffer_atomic_umax v3, v1, s[36:39], 0 offen offset:4", "buffer_atomic_umax v4, v1, s[36:39], 0 offen offset:8",
            "buffer_atomic_umax v5, v1, s[36:39], 0 offen offset:12", "buffer_atomic_umax v6, v1, s[36:39], 0 offen offset:16", "buffer_atomic_umax v7, v1, s[36:39], 0 offen offset:20", "s_mov_b64 exec, -1"]]
    if cfg.stamp:
        out.append("  s_waitcnt vmcnt(0)")
        out += [("  " + x if not x.endswith(":") else x) for x in stamp_out()]
    if cfg.nocomp or cfg.nomem or cfg.fakepre: out.append("  s_mov_b32 s%d, 0" % sBAD)
    out += ["  " + x if not x.endswith(":") else x for x in slow_path()]
    out.append("L_end:\n  s_endpgm")
    out.append('.section .rodata,"a"\n.p2align 6\n.amdhsa_kernel %s_kernel' % NAME)
    out.append("  .amdhsa_next_free_vgpr 512\n  .amdhsa_next_free_sgpr 96\n  .amdhsa_accum_offset 256\n  .amdhsa_group_segment_fixed_size 0\n  .amdhsa_kernarg_size 48\n  .amdhsa_user_sgpr_count 2\n  .amdhsa_user_sgpr_kernarg_segment_ptr 1\n  .amdhsa_system_sgpr_workgroup_id_x 1\n.end_amdhsa_kernel")
    open(sys.argv[1], "w").write("\n".join(out) + "\n")
    if errs: sys.exit(1)
main()
```
